```python
import torch

def _softmax(x, axis=-1):
    return torch.softmax(x, dim=axis)
def _gelu(x):
    return torch.nn.functional.gelu(x, approximate="tanh")
def _silu(x):
    return torch.nn.functional.silu(x)
def _sigmoid(x):
    return torch.sigmoid(x)
def _layernorm(x, axis=-1, eps=1e-5):
    m = x.mean(dim=axis, keepdim=True)
    v = x.var(dim=axis, keepdim=True, unbiased=False)
    return (x - m) / torch.sqrt(v + eps)
def _scatter_add(tgt, idx, src, axis=0):
    return tgt.clone().index_add_(axis, idx, src)
def _segment_sum(src, seg, n):
    out = torch.zeros((n,) + src.shape[1:], dtype=src.dtype)
    return out.index_add_(0, seg, src)
def _pad(x, pw):
    flat = tuple(v for pair in reversed(pw) for v in pair)
    return torch.nn.functional.pad(x, flat)

kernel_name = 'standalone__edge_featured_mpnn_gatedgcn__graph'

def setup_inputs():

    _w = (lambda a: (lambda t: t.to(torch.bfloat16) if t.is_floating_point() else t)(torch.as_tensor(a)))
    N, deg, D, De = 25000, 32, 64, max(4, 1)
    E = N * deg
    return {
        "x": _w((lambda *s: torch.randn(*s, dtype=torch.bfloat16) * 0.8)(N, D)),
        "e_attr": _w((lambda *s: torch.randn(*s, dtype=torch.bfloat16) * 0.8)(E, De)),
        "src": _w((lambda lo, hi, *s: torch.randint(lo, hi, s))(0, N, E).to(torch.int64)),
        "dst": _w((lambda lo, hi, *s: torch.randint(lo, hi, s))(0, N, E).to(torch.int64)),
        "w_a": _w((lambda *s: torch.randn(*s, dtype=torch.bfloat16) * 0.8)(D, D)),
        "w_b": _w((lambda *s: torch.randn(*s, dtype=torch.bfloat16) * 0.8)(D, D)),
        "w_c": _w((lambda *s: torch.randn(*s, dtype=torch.bfloat16) * 0.8)(De, D)),
        "w_u": _w((lambda *s: torch.randn(*s, dtype=torch.bfloat16) * 0.05)(D, D)),
        "w_v": _w((lambda *s: torch.randn(*s, dtype=torch.bfloat16) * 0.05)(D, D)),
    }

def reference(x, e_attr, src, dst, w_a, w_b, w_c, w_u, w_v):
    N, D = x.shape
    hv = x @ w_v
    g = x[dst] @ w_a + x[src] @ w_b + e_attr @ w_c
    eta = _sigmoid(g)
    denom = _segment_sum(eta, dst, N) + 1e-6
    eta_n = eta / denom[dst]
    agg = _segment_sum(eta_n * hv[src], dst, N)
    z = x @ w_u + agg
    relu_z = torch.where(z > 0, z, 0 * z)
    return x + relu_z
```

```python
import sys, struct

NAME = "standalone__edge_featured_mpnn_gatedgcn__graph"
OPT = dict(stamp=0)
for a in sys.argv[2:]:
    k, v = a.split('=')
    OPT[k] = int(v)

L = []
def e(s=""): L.append("    " + s if s and not s.endswith(":") else s)
def c(s): L.append("    ; " + s)
def f32(x): return "0x%08x" % struct.unpack("<I", struct.pack("<f", x))[0]
def vr(a, n): return f"v[{a}:{a+n-1}]"
def sr(a, n): return f"s[{a}:{a+n-1}]"

N = 25000; E = 800000
CH = 3136
CHB = CH * 12
BM = 171799
BK = 6399988
WS_T = 0
WS_IMG = 0x40000
WS_REC = 0x80000
WS_TOT = 0xA00000
WS_SIZE = 0x2000000
LOG2E = 1.4426950408889634

def srd(d, b, size, stride=0):
    e(f"s_mov_b32 s{d}, s{b}")
    if stride:
        e(f"s_and_b32 s{d+1}, s{b+1}, 0xffff")
        e(f"s_or_b32 s{d+1}, s{d+1}, {stride<<16:#x}")
    else:
        e(f"s_and_b32 s{d+1}, s{b+1}, 0xffff")
    e(f"s_mov_b32 s{d+2}, {size}")
    e(f"s_mov_b32 s{d+3}, 0x20000")

def scan64(v):
    for m in ("row_shr:1 row_mask:0xf", "row_shr:2 row_mask:0xf", "row_shr:4 row_mask:0xf",
              "row_shr:8 row_mask:0xf", "row_bcast:15 row_mask:0xa", "row_bcast:31 row_mask:0xc"):
        e("s_nop 1")
        e(f"v_add_u32_dpp v{v}, v{v}, v{v} {m} bank_mask:0xf")

K1_HIST = 0
K1_BASE = 1024
K1_STG = 2048
K1_LDS = K1_STG + CHB

def k1():
    e(".p2align 8")
    e("part_kernel:")
    e("s_cmp_ge_u32 s2, 256")
    e("s_cbranch_scc1 K1_END")
    e("s_load_dwordx4 s[4:7], s[0:1], 8")
    e("s_load_dwordx2 s[8:9], s[0:1], 24")
    e("s_load_dwordx2 s[10:11], s[0:1], 88")
    e("s_load_dwordx4 s[40:43], s[0:1], 32")
    e("s_load_dwordx4 s[44:47], s[0:1], 56")
    e("v_lshrrev_b32 v1, 6, v0")
    e("s_mul_i32 s3, s2, %d" % (CH * 4))
    e("v_readfirstlane_b32 s33, v1")
    e("v_lshl_add_u32 v2, v0, 4, s3")
    e("v_lshlrev_b32 v3, 1, v2")
    e("s_movk_i32 s34, 784")
    e("s_mov_b32 s35, %d" % (E * 4))
    e("v_cmp_gt_u32 s[36:37], s34, v0")
    e("v_cmp_gt_u32 vcc, s35, v2")
    e("s_waitcnt lgkmcnt(0)")
    srd(12, 8, E * 4)
    srd(16, 6, E * 4)
    srd(20, 4, E * 8)
    srd(24, 10, WS_SIZE)
    e("s_cmp_eq_u32 s33, 13")
    e("s_cbranch_scc1 K1_IMG")
    e("s_and_b64 s[38:39], s[36:37], vcc")
    e("s_mov_b64 exec, s[38:39]")
    e("buffer_load_dwordx4 v[4:7], v2, s[12:15], 0 offen")
    e("buffer_load_dwordx4 v[8:11], v2, s[16:19], 0 offen")
    e("buffer_load_dwordx4 v[12:15], v3, s[20:23], 0 offen")
    e("buffer_load_dwordx4 v[16:19], v3, s[20:23], 0 offen offset:16")
    e("s_mov_b64 exec, -1")
    e("v_and_b32 v20, 63, v0")
    e("v_lshlrev_b32 v20, 4, v20")
    e("v_mov_b32 v24, 0")
    e("v_mov_b32 v25, 0")
    e("v_mov_b32 v26, 0")
    e("v_mov_b32 v27, 0")
    e("s_cmp_lg_u32 s33, 0")
    e("s_cbranch_scc1 K1_NOZERO")
    e(f"ds_write_b128 v20, v[24:27] offset:{K1_HIST}")
    e("s_waitcnt lgkmcnt(0)")
    e("K1_NOZERO:")
    e("v_mov_b32 v21, 12")
    e("s_mov_b32 s34, %d" % BM)
    e("s_barrier")
    e("s_mov_b64 exec, s[38:39]")
    e("s_waitcnt vmcnt(3)")
    for i in range(4):
        e(f"v_mul_u32_u24 v{28+i}, s34, v{4+i}")
    for i in range(4):
        e(f"v_lshrrev_b32 v{28+i}, 22, v{28+i}")
    for i in range(4):
        e(f"v_and_b32 v{28+i}, 0x3fc, v{28+i}")
        e(f"ds_add_rtn_u32 v{32+i}, v{28+i}, v21 offset:{K1_HIST}")
    e("s_mov_b64 exec, -1")
    e("s_waitcnt lgkmcnt(0)")
    e("s_barrier")
    e(f"ds_read_b128 v[24:27], v20 offset:{K1_HIST}")
    e("s_waitcnt lgkmcnt(0)")
    e("v_add_u32 v37, v24, v25")
    e("v_add_u32 v38, v37, v26")
    e("v_add_u32 v22, v38, v27")
    e("v_mov_b32 v23, v22")
    scan64(23)
    e("v_sub_u32 v40, v23, v22")
    e("v_add_u32 v41, v40, v24")
    e("v_add_u32 v42, v40, v37")
    e("v_add_u32 v43, v40, v38")
    e(f"ds_write_b128 v20, v[40:43] offset:{K1_BASE}")
    e("s_cmp_lg_u32 s33, 0")
    e("s_cbranch_scc1 K1_NOT")
    e("s_lshl_b32 s3, s2, 2")
    e("v_lshl_add_u32 v44, v20, 8, s3")
    for i in range(4):
        e(f"v_lshl_or_b32 v{45+i}, v{24+i}, 16, v{40+i}")
        e(f"buffer_store_dword v{45+i}, v44, s[24:27], 0 offen offset:{i*1024}")
    e("K1_NOT:")
    e("s_waitcnt lgkmcnt(0)")
    e("s_mov_b64 exec, s[38:39]")
    for i in range(4):
        e(f"ds_read_b32 v{28+i}, v{28+i} offset:{K1_BASE}")
    e("s_waitcnt vmcnt(0)")
    for i in range(4):
        e(f"v_lshl_or_b32 v{8+i}, v{4+i}, 16, v{8+i}")
    for i in range(4):
        e(f"s_waitcnt lgkmcnt({3-i+2*i})")
        e(f"v_add_u32 v{28+i}, v{28+i}, v{32+i}")
        e(f"v_add_u32 v{28+i}, {K1_STG}, v{28+i}")
        e(f"ds_write2_b32 v{28+i}, v{12+2*i}, v{13+2*i} offset0:0 offset1:1")
        e(f"ds_write_b32 v{28+i}, v{8+i} offset:8")
    e("s_mov_b64 exec, -1")
    e("v_lshlrev_b32 v2, 4, v0")
    e("s_mul_i32 s3, s2, %d" % CHB)
    e("s_add_u32 s3, s3, %d" % WS_REC)
    e("s_add_u32 s34, s3, %d" % (CHB // 3))
    e("s_add_u32 s35, s34, %d" % (CHB // 3))
    e("s_waitcnt lgkmcnt(0)")
    e("s_barrier")
    e("s_mov_b64 exec, s[36:37]")
    for k in range(3):
        e(f"ds_read_b128 {vr(4+4*k,4)}, v2 offset:{K1_STG + k*(CHB//3)}")
    for k, s in enumerate(("s3", "s34", "s35")):
        e(f"s_waitcnt lgkmcnt({2-k})")
        e(f"buffer_store_dwordx4 {vr(4+4*k,4)}, v2, s[24:27], {s} offen")
    e("K1_END:")
    e("s_endpgm")
    e("K1_IMG:")
    e("s_lshr_b32 s3, s2, 6")
    e("s_cmp_eq_u32 s3, 1")
    e("s_cselect_b32 s48, s42, s40")
    e("s_cselect_b32 s49, s43, s41")
    e("s_cselect_b32 s52, %s, 1.0" % f32(-LOG2E))
    e("s_cmp_eq_u32 s3, 2")
    e("s_cselect_b32 s48, s44, s48")
    e("s_cselect_b32 s49, s45, s49")
    e("s_cmp_eq_u32 s3, 3")
    e("s_cselect_b32 s48, s46, s48")
    e("s_cselect_b32 s49, s47, s49")
    e("s_and_b32 s49, s49, 0xffff")
    e("s_mov_b32 s50, 8192")
    e("s_mov_b32 s51, 0x20000")
    e("v_and_b32 v1, 31, v0")
    e("s_lshl_b32 s3, s2, 5")
    e("v_add_u32 v1, s3, v1")
    c("q=(d>>8)&7 = nt*4+s ; l'=(d>>2)&63 ; reg=d&3 ; k=16s+8(l'>>5)+2reg ; ch=2(l'&31)+nt")
    e("v_bfe_u32 v2, v1, 8, 2")
    e("v_lshlrev_b32 v2, 4, v2")
    e("v_bfe_u32 v3, v1, 7, 1")
    e("v_lshl_add_u32 v2, v3, 3, v2")
    e("v_and_b32 v3, 3, v1")
    e("v_lshl_add_u32 v2, v3, 1, v2")
    e("v_lshlrev_b32 v2, 7, v2")
    e("v_bfe_u32 v3, v1, 2, 5")
    e("v_lshl_add_u32 v2, v3, 2, v2")
    e("v_bfe_u32 v3, v1, 10, 1")
    e("v_lshl_add_u32 v2, v3, 1, v2")
    e("buffer_load_ushort v4, v2, s[48:51], 0 offen")
    e("buffer_load_ushort v5, v2, s[48:51], 0 offen offset:128")
    e("v_lshlrev_b32 v1, 2, v1")
    e("s_mov_b32 s3, %d" % WS_IMG)
    e("s_mov_b32 exec_hi, 0")
    e("s_waitcnt vmcnt(0)")
    e("v_lshlrev_b32 v4, 16, v4")
    e("v_lshlrev_b32 v5, 16, v5")
    e("v_mul_f32 v4, s52, v4")
    e("v_mul_f32 v5, s52, v5")
    e("v_cvt_pk_bf16_f32 v4, v4, v5")
    e("buffer_store_dword v4, v1, s[24:27], s3 offen")
    e("s_endpgm")

CAP = 3584
STG = 0
ROWS = 32768
DUMMY = ROWS + 98 * 512
ATAB = DUMMY + 512
AST = 136
E8 = ATAB + 98 * AST
M4 = E8 + CAP * 8
QWK = M4 + CAP * 4 + 256
QA = QWK + (CAP // 4) * 8 + 256
CNT = QA + (CAP // 4) * 4 + 256
MORE = CNT + 512
BI = MORE + 16
K2_LDS = BI + 512
assert E8 % 16 == 0 and QWK % 16 == 0 and CNT % 16 == 0 and K2_LDS <= 160 * 1024, K2_LDS
SC = 24
PADV = 0xF1807F00

vW = 128; vD = [192, 224]; vX = 112; vBq = [104, 108]; vAq = 100; vAcc = 84
vS = 72; vN = 76; vP = 80; vWK = 64; vIdx = 56; vU = 40; vXo = 32; vXa = 28; vT = 24
vLane = 1; vAqA = 2; vAqI = 3; vIxA = 4; vQaA = 5; vQaV = 6; vQaC = 7
vWkA = 16; vN8 = 17; vC1 = 18
vTe = 8
sX = 4; sXr = 8; sWs = 12; sOut = 16; sWc = 20
sBase = 24; sNN = 25; sWave = 26; sJ0 = 27; sLW = 28; sFirst = 29; sInit = 30; sQt = 31; sTt = 32
sNT = 33; sQw = 34; sStg = 35; sMore = 36; sBig = 37; sCnt = 38; sT0 = 39; sT1 = 40; sT2 = 41
sMk = 44
sDbg = 44
sSt = 82

def G(b): return vD[b]
def H(b): return vD[b] + 16
def Wg(nt, s): return vW + (nt * 4 + s) * 4
def Wh(nt, s): return vW + 32 + (nt * 4 + s) * 4
def mfma(d, a, b, cacc):
    return f"v_mfma_f32_32x32x16_bf16 {vr(d,16)}, {vr(a,4)}, {vr(b,4)}, " + (vr(d,16) if cacc else "0")
def mfmas(nt):
    d = nt
    return [mfma(G(d), vX, Wg(nt,0), 0), mfma(H(d), vX, Wh(nt,0), 0),
            mfma(G(d), vX+4, Wg(nt,1), 1), mfma(H(d), vX+4, Wh(nt,1), 1),
            mfma(G(d), vX+8, Wg(nt,2), 1), mfma(H(d), vX+8, Wh(nt,2), 1),
            mfma(G(d), vX+12, Wg(nt,3), 1), mfma(H(d), vX+12, Wh(nt,3), 1),
            mfma(G(d), vAq, vBq[nt], 1)]
def acc(nt, j): return vAcc + nt * 8 + j * 2
def chain(nt):
    o = []
    for j in range(4):
        a = acc(nt, j); p = acc(nt, (j + 3) % 4); k = vWK + 2 * j + 1
        o += [f"v_and_b32 v{a}, v{p}, v{k}", f"v_and_b32 v{a+1}, v{p+1}, v{k}",
              f"v_fmac_f32 v{a}, v{vS+j}, v{vP+j}", f"v_fmac_f32 v{a+1}, v{vN+j}, v{vP+j}"]
    return o
def writes(nt):
    return [f"ds_write_b64 v{vWK+2*j}, {vr(acc(nt,j),2)} offset:{nt*256}" for j in range(4)]
def frac(nt):
    g = G(nt); h = H(nt); o = []
    for r in range(16):
        o.append(f"v_fmaak_f32 v{g+r}, v{g+r}, v{vC1}, {f32(2.0**-SC)}")
    J = range(4)
    o += [f"v_add_f32 v{vS+j}, v{g+4*j}, v{g+4*j+1}" for j in J]
    o += [f"v_mul_f32 v{vP+j}, v{g+4*j}, v{g+4*j+1}" for j in J]
    o += [f"v_mul_f32 v{vN+j}, v{h+4*j}, v{g+4*j+1}" for j in J]
    o += [f"v_fmac_f32 v{vN+j}, v{h+4*j+1}, v{g+4*j}" for j in J]
    for i in (2, 3):
        o += [f"v_mul_f32 v{h+4*j+i}, v{h+4*j+i}, v{vP+j}" for j in J]
        o += [f"v_fma_f32 v{vS+j}, v{vS+j}, v{g+4*j+i}, v{vP+j}" for j in J]
        o += [f"v_fma_f32 v{vN+j}, v{vN+j}, v{g+4*j+i}, v{h+4*j+i}" for j in J]
        o += [f"v_mul_f32 v{vP+j}, v{vP+j}, v{g+4*j+i}" for j in J]
    return o
def exps(nt): return [f"v_exp_f32_e64 v{G(nt)+r}, v{G(nt)+r} clamp" for r in range(16)]
def rcps(): return [f"v_rcp_f32 v{vP+j}, v{vP+j}" for j in range(4)]
def rd_x(): return [f"ds_read_b128 {vr(vX+4*s,4)}, v{vXa+s}" for s in range(4)]
def rd_aq(): return [f"ds_read2_b32 {vr(vAq,2)}, v{vAqA} offset0:0 offset1:1"]
def rd_idx(): return [f"ds_read_u16 v{vIdx+2*i}, v{vIxA} offset:{4*i}" for i in range(4)]
def rd_qa(): return [f"ds_read_u16 v{vQaV}, v{vQaA}"]
def rd_bq(nt): return [f"ds_read_b64_tr_b16 {vr(vBq[nt]+2,2)}, v{vQaV} offset:{64*nt}"]
def rd_wk(): return [f"ds_read_b128 {vr(vWK,4)}, v{vWkA}", f"ds_read_b128 {vr(vWK+4,4)}, v{vWkA} offset:16"]
def dma():
    o = []
    for i in range(4):
        o.append([f"s_add_u32 m0, s{sStg}, {1024*i}", "s_nop 0",
                  f"buffer_load_dwordx4 {vr(vIdx+2*i,2)}, {sr(sX,4)}, 0 idxen offen lds"])
    return o

def stamp(i):
    if OPT['stamp']:
        e(f"s_memtime {sr(sSt+2*i,2)}")

def hi_phase(ms, trans, extras):
    per = [2, 2, 2, 3, 2, 2, 3, 2, 2]
    t = 0
    for g in range(9):
        e(ms[g])
        for _ in range(per[g]):
            e(trans[t]); t += 1
        for x in extras[g]:
            e(x)
    assert t == 20

def k2():
    e(".p2align 8")
    e(f"{NAME}_kernel:")
    e("s_cmp_ge_u32 s2, 256")
    e("s_cbranch_scc1 K2_END")
    stamp(0)
    e("s_load_dwordx2 s[44:45], s[0:1], 0")
    e("s_load_dwordx2 s[46:47], s[0:1], 48")
    e("s_load_dwordx4 s[48:51], s[0:1], 72")
    e("s_load_dwordx2 s[52:53], s[0:1], 88")
    e(f"v_and_b32 v{vLane}, 63, v0")
    e("v_lshrrev_b32 v2, 6, v0")
    e(f"s_mul_i32 s{sBase}, s2, {BK}")
    e(f"v_readfirstlane_b32 s{sWave}, v2")
    e(f"s_add_u32 s{sNN}, s{sBase}, {BK+65535}")
    e(f"s_add_u32 s{sBase}, s{sBase}, 65535")
    e(f"s_lshr_b32 s{sBase}, s{sBase}, 16")
    e(f"s_lshr_b32 s{sNN}, s{sNN}, 16")
    e(f"s_sub_u32 s{sNN}, s{sNN}, s{sBase}")
    e(f"s_mov_b32 s{sJ0}, 0")
    e(f"s_movk_i32 s{sLW}, 384")
    e(f"s_mov_b32 s{sFirst}, 1")
    e(f"s_mov_b32 s{sInit}, 1")
    e(f"s_lshl_b32 s{sStg}, s{sWave}, 12")
    c("table address: b*1024 + (tid>>4)*32")
    e("v_lshrrev_b32 v19, 4, v0")
    e(f"s_lshl_b32 s{sT0}, s2, 10")
    e(f"v_lshl_add_u32 v20, v19, 5, s{sT0}")
    e("s_waitcnt lgkmcnt(0)")
    srd(sWs, 52, WS_SIZE)
    e(f"buffer_load_dwordx4 {vr(vTe,4)}, v20, {sr(sWs,4)}, 0 offen")
    e(f"buffer_load_dwordx4 {vr(vTe+4,4)}, v20, {sr(sWs,4)}, 0 offen offset:16")
    srd(sX, 44, N, stride=128)
    srd(sXr, 44, N * 128)
    srd(sOut, 48, N * 128)
    srd(sWc, 46, 512)
    c("weight images -> staging area")
    e(f"v_lshlrev_b32 v21, 4, v{vLane}")
    e(f"s_add_u32 s{sT0}, s{sStg}, {WS_IMG}")
    e(f"s_mov_b32 m0, s{sStg}")
    e("s_nop 0")
    for i in range(4):
        e(f"buffer_load_dwordx4 v21, {sr(sWs,4)}, s{sT0} offen offset:{1024*i} lds")
    c("own x tile: rows base+16w+(l&31)")
    e(f"v_and_b32 v22, 31, v{vLane}")
    e(f"v_lshrrev_b32 v23, 5, v{vLane}")
    e(f"s_lshl_b32 s{sT0}, s{sWave}, 4")
    e(f"s_add_u32 s{sT0}, s{sT0}, s{sBase}")
    e(f"s_lshl_b32 s{sT0}, s{sT0}, 7")
    e("v_lshlrev_b32 v24, 7, v22")
    e("v_lshl_add_u32 v24, v23, 4, v24")
    for s in range(4):
        e(f"buffer_load_dwordx4 {vr(vX+4*s,4)}, v24, {sr(sXr,4)}, s{sT0} offen offset:{32*s}")
    e("v_lshlrev_b32 v25, 2, v22")
    e("v_lshl_add_u32 v24, v23, 9, v25")
    for r in range(8):
        e(f"buffer_load_dword v{vXo+r}, v24, {sr(sXr,4)}, s{sT0} offen offset:{(8*(r//4)+r%4)*128}")
    for r in range(4):
        e(f"buffer_load_dword v{96+r}, v25, {sr(sWc,4)}, 0 offen offset:{128*r}")
    e("s_branch K2_ZERO")

    e("K2_ROUND:")
    e(f"buffer_load_dwordx4 {vr(vTe,4)}, v20, {sr(sWs,4)}, 0 offen")
    e(f"buffer_load_dwordx4 {vr(vTe+4,4)}, v20, {sr(sWs,4)}, 0 offen offset:16")
    e("s_waitcnt vmcnt(0)")
    e("K2_ZERO:")
    c("zero CNT[128] and MORE")
    e("v_lshlrev_b32 v24, 2, v0")
    e(f"v_add_u32 v24, {CNT}, v24")
    e("v_mov_b32 v25, 0")
    e("s_movk_i32 s42, 132")
    e("v_cmp_gt_u32 vcc, s42, v0")
    e("s_mov_b64 exec, vcc")
    e("ds_write_b32 v24, v25")
    e("s_mov_b64 exec, -1")
    c("record addresses")
    e(f"v_and_b32 v24, 15, v{vLane}")
    e("v_mul_u32_u24 v24, 12, v24")
    e("v_add_u32 v25, 192, v24")
    e(f"v_cmp_gt_u32 s[76:77], s{sLW}, v24")
    e(f"v_cmp_gt_u32 s[78:79], s{sLW}, v25")
    e(f"v_add_u32 v24, s{sJ0}, v24")
    e(f"v_add_u32 v25, s{sJ0}, v25")
    e("v_lshrrev_b32 v19, 4, v0")
    e(f"s_mov_b32 s{sT0}, {8*CHB}")
    e(f"v_mul_u32_u24 v26, s{sT0}, v19")
    e("v_add_u32 v26, v26, v24")
    e(f"s_add_u32 s{sT1}, s{sJ0}, s{sLW}")
    e("s_mov_b64 s[80:81], 0")
    e(f"s_mov_b32 s{sT0}, {WS_REC}")
    e("s_waitcnt vmcnt(20)")
    stamp(1)
    for i in range(8):
        m0 = sMk + 4 * i; m1 = m0 + 2
        e(f"v_lshrrev_b32 v27, 16, v{vTe+i}")
        e(f"v_and_b32 v{vTe+i}, 0xffff, v{vTe+i}")
        e(f"v_cmp_lt_u32 {sr(m0,2)}, v24, v27")
        e(f"v_cmp_lt_u32 {sr(m1,2)}, v25, v27")
        e(f"v_cmp_lt_u32 vcc, s{sT1}, v27")
        e(f"v_add_u32 v{vTe+i}, v{vTe+i}, v26")
        e(f"s_and_b64 {sr(m0,2)}, {sr(m0,2)}, s[76:77]")
        e(f"s_and_b64 {sr(m1,2)}, {sr(m1,2)}, s[78:79]")
        e("s_or_b64 s[80:81], s[80:81], vcc")
        e(f"s_mov_b64 exec, {sr(m0,2)}")
        e(f"buffer_load_dwordx3 {vr(192+8*i,3)}, v{vTe+i}, {sr(sWs,4)}, s{sT0} offen")
        e(f"s_mov_b64 exec, {sr(m1,2)}")
        e(f"buffer_load_dwordx3 {vr(196+8*i,3)}, v{vTe+i}, {sr(sWs,4)}, s{sT0} offen offset:192")
        e("s_mov_b64 exec, -1")
        if i < 7:
            e(f"s_add_u32 s{sT0}, s{sT0}, {CHB}")
    e("s_waitcnt vmcnt(16) lgkmcnt(0)")
    e("s_barrier")
    stamp(2)
    e("s_mov_b64 exec, s[80:81]")
    e(f"v_mov_b32 v24, {MORE}")
    e("v_mov_b32 v25, 1")
    e("ds_write_b32 v24, v25")
    e("s_mov_b64 exec, -1")
    e(f"s_cmp_eq_u32 s{sInit}, 0")
    e("s_cbranch_scc1 K2_HIST")
    e(f"s_mov_b32 s{sInit}, 0")
    c("---- one-time setup: A table, U, weight operands, constants ----")
    for q in range(8):
        e(f"ds_read_b128 {vr(vW+4*q,4)}, v21 offset:{q*1024}")
    for q in range(8):
        e(f"ds_read_b128 {vr(vW+32+4*q,4)}, v21 offset:{16384+q*1024}")
    c("wc' operand halves and flag row")
    e(f"s_mov_b32 s{sT0}, {f32(-LOG2E)}")
    for r in range(4):
        e(f"v_and_b32 v{24+r}, 0xffff0000, v{96+r}")
        e(f"v_lshlrev_b32 v{96+r}, 16, v{96+r}")
    for r in range(4):
        e(f"v_mul_f32 v{24+r}, s{sT0}, v{24+r}")
        e(f"v_mul_f32 v{96+r}, s{sT0}, v{96+r}")
    e(f"v_cvt_pk_bf16_f32 v{vBq[0]}, v96, v97")
    e(f"v_cvt_pk_bf16_f32 v{vBq[0]+1}, v98, v99")
    e(f"v_cvt_pk_bf16_f32 v{vBq[1]}, v24, v25")
    e(f"v_cvt_pk_bf16_f32 v{vBq[1]+1}, v26, v27")
    e("s_mov_b32 exec_hi, 0")
    fl = struct.unpack("<I", struct.pack("<f", -2.0 * SC))[0] & 0xffff0000
    for nt in range(2):
        e(f"v_mov_b32 v{vBq[nt]}, {fl:#x}")
        e(f"v_mov_b32 v{vBq[nt]+1}, 0")
    e("s_mov_b64 exec, -1")
    c("one-hot constant half of the A operand")
    e(f"v_bfe_u32 v24, v{vLane}, 2, 1")
    e(f"v_bfe_u32 v25, v{vLane}, 3, 2")
    e("v_and_b32 v26, 1, v25")
    e("v_lshlrev_b32 v26, 4, v26")
    e("v_mov_b32 v27, 0x3f80")
    e("v_lshlrev_b32 v26, v26, v27")
    e("v_cmp_eq_u32 vcc, v24, v23")
    e("s_nop 1")
    e("v_cndmask_b32 v26, 0, v26, vcc")
    e("v_cmp_gt_u32 vcc, 2, v25")
    e("s_nop 1")
    e(f"v_cndmask_b32 v{vAq+2}, 0, v26, vcc")
    e(f"v_cndmask_b32 v{vAq+3}, v26, 0, vcc")
    e("s_waitcnt lgkmcnt(8)")
    for nt in range(2):
        for s in range(4):
            e(mfma(64 + 16 * nt, vW + (nt*4+s)*4, vX + 4*s, s > 0))
    c("x operand read addresses / gather chunk offsets")
    e(f"v_and_b32 v24, 3, v{vLane}")
    e(f"v_bfe_u32 v25, v{vLane}, 2, 3")
    e(f"v_bfe_u32 v26, v{vLane}, 4, 1")
    e("v_lshl_add_u32 v26, v26, 2, v24")
    e("v_lshlrev_b32 v24, 10, v24")
    e("v_lshl_add_u32 v24, v25, 7, v24")
    e(f"v_add_u32 v24, s{sStg}, v24")
    e("v_xor_b32 v26, v26, v23")
    for s in range(4):
        e(f"v_xor_b32 v25, {2*s}, v26")
        e(f"v_lshl_add_u32 v{vXa+s}, v25, 4, v24")
    e(f"v_and_b32 v24, 7, v{vLane}")
    e("v_lshlrev_b32 v25, 2, v23")
    e("v_xor_b32 v24, v24, v25")
    for i in range(4):
        e(f"v_xor_b32 v25, {i}, v24")
        e(f"v_lshlrev_b32 v{vIdx+2*i+1}, 4, v25")
    e(f"v_lshlrev_b32 v{vN8}, 3, v22")
    e(f"v_mov_b32 v{vC1}, {f32(2.0**SC)}")
    e(f"v_lshlrev_b32 v{vAqI}, 6, v23")
    e(f"v_add_u32 v{vAqI}, 64, v{vAqI}")
    e(f"v_bfe_u32 v24, v{vLane}, 4, 1")
    e(f"v_and_b32 v25, 3, v{vLane}")
    e("v_lshlrev_b32 v25, 3, v25")
    e("v_lshl_add_u32 v24, v24, 5, v25")
    e(f"v_add_u32 v{vQaC}, {ATAB}, v24")
    c("A table write address")
    e(f"s_lshl_b32 s{sT1}, s{sWave}, 4")
    e(f"v_add_u32 v24, s{sT1}, v22")
    e(f"v_cmp_gt_u32 vcc, 16, v22")
    e(f"v_cmp_gt_u32 s[76:77], s{sNN}, v24")
    e(f"v_mul_u32_u24 v24, {AST}, v24")
    e("v_lshl_add_u32 v24, v23, 3, v24")
    e(f"v_add_u32 v24, {ATAB}, v24")
    e("s_and_b64 s[76:77], s[76:77], vcc")
    for r in range(32):
        e(f"v_mul_f32 v{64+r}, s{sT0}, v{64+r}")
    for r in range(16):
        e(f"v_cvt_pk_bf16_f32 v{40+r}, v{64+2*r}, v{65+2*r}")
    e("s_waitcnt lgkmcnt(0)")
    for nt in range(2):
        for s in range(4):
            e(mfma(64 + 16 * nt, vX + 4*s, vW + 32 + (nt*4+s)*4, s > 0))
    e("s_mov_b64 exec, s[76:77]")
    for nt in range(2):
        for j in range(4):
            e(f"ds_write_b64 v24, {vr(40+nt*8+2*j,2)} offset:{nt*64+j*16}")
    e("s_mov_b64 exec, -1")
    for q in range(8):
        e(f"ds_read_b128 {vr(vW+4*q,4)}, v21 offset:{8192+q*1024}")
    for q in range(8):
        e(f"ds_read_b128 {vr(vW+32+4*q,4)}, v21 offset:{24576+q*1024}")
    e("s_waitcnt lgkmcnt(15)")
    for nt in range(2):
        for r in range(8):
            e(f"v_mov_b32 v{vU+nt*8+r}, v{64+16*nt+r}")

    e("K2_HIST:")
    stamp(3)
    e(f"s_lshl_b32 s{sT0}, s{sBase}, 2")
    e(f"s_sub_u32 s{sT0}, {CNT}, s{sT0}")
    e("v_mov_b32 v25, 1")
    for q in range(16):
        r = 192 + 4 * q
        e(f"s_mov_b64 exec, {sr(sMk+2*q,2)}")
        if q % 2:
            e(f"s_cbranch_execz K2_H{q}")
        e(f"s_waitcnt vmcnt({15-q})")
        e(f"v_lshrrev_b32 v24, 16, v{r+2}")
        e(f"v_lshl_add_u32 v24, v24, 2, s{sT0}")
        e(f"ds_add_rtn_u32 v{r+3}, v24, v25")
        if q % 2:
            e(f"K2_H{q}:")
    e("s_mov_b64 exec, -1")
    e(f"v_lshlrev_b32 v24, 3, v{vLane}")
    e(f"v_add_u32 v24, {CNT}, v24")
    e(f"v_mov_b32 v19, {MORE}")
    e("s_waitcnt vmcnt(0) lgkmcnt(0)")
    e("s_barrier")
    stamp(4)
    c("---- scan (every wave, redundantly) ----")
    e("ds_read_b64 v[8:9], v24")
    e("ds_read_b32 v10, v19")
    e(f"v_lshlrev_b32 v11, 1, v{vLane}")
    e("v_add_u32 v12, 1, v11")
    e(f"v_cmp_gt_u32 vcc, s{sNN}, v11")
    e(f"v_cmp_gt_u32 s[76:77], s{sNN}, v12")
    e("s_nop 1")
    e("v_cndmask_b32 v11, 0, 1, vcc")
    e("v_cndmask_b32 v12, 0, 1, s[76:77]")
    e("s_waitcnt lgkmcnt(0)")
    e(f"v_readfirstlane_b32 s{sMore}, v10")
    e("v_add_u32 v13, 3, v8")
    e("v_add_u32 v14, 3, v9")
    e("v_lshrrev_b32 v13, 2, v13")
    e("v_lshrrev_b32 v14, 2, v14")
    e("v_max_u32 v13, v13, v11")
    e("v_max_u32 v14, v14, v12")
    e("v_add_u32 v15, v13, v14")
    e("v_mov_b32 v10, v15")
    scan64(10)
    e("v_sub_u32 v11, v10, v15")
    e("v_add_u32 v12, v11, v13")
    e(f"v_readlane_b32 s{sQt}, v10, 63")
    e("v_lshlrev_b32 v11, 2, v11")
    e("v_lshlrev_b32 v12, 2, v12")
    e("v_lshl_or_b32 v8, v8, 16, v11")
    e("v_lshl_or_b32 v9, v9, 16, v12")
    e(f"ds_write_b64 v24, v[8:9] offset:{BI-CNT}")
    e("v_max_u32 v13, v13, v14")
    e(f"s_add_u32 s{sTt}, s{sQt}, 7")
    e(f"s_lshr_b32 s{sTt}, s{sTt}, 3")
    c("fast attempt failed?")
    e(f"s_cmp_gt_u32 s{sTt}, {CAP//32}")
    e(f"s_cselect_b32 s{sT0}, 1, s{sMore}")
    e(f"s_cmp_eq_u32 s{sLW}, 384")
    e(f"s_cselect_b32 s{sT0}, s{sT0}, 0")
    e(f"s_cmp_lg_u32 s{sT0}, 0")
    e("s_cbranch_scc1 K2_FAIL")
    e(f"s_lshr_b32 s{sT0}, s{sTt}, 3")
    e(f"s_and_b32 s{sT1}, s{sTt}, 7")
    e(f"s_lshl_b32 s{sT2}, s{sT0}, 2")
    e(f"v_cmp_lt_u32 vcc, s{sT2}, v13")
    e(f"s_mul_i32 s{sQw}, s{sT0}, s{sWave}")
    e(f"s_min_u32 s{sT2}, s{sT1}, s{sWave}")
    e(f"s_add_u32 s{sQw}, s{sQw}, s{sT2}")
    e(f"s_lshl_b32 s{sQw}, s{sQw}, 3")
    e(f"s_cmp_lt_u32 s{sWave}, s{sT1}")
    e(f"s_addc_u32 s{sNT}, s{sT0}, 0")
    e(f"s_or_b32 s{sBig}, vcc_lo, vcc_hi")
    c("---- scatter records ----")
    e(f"s_lshl_b32 s{sT0}, s{sBase}, 2")
    e(f"s_sub_u32 s{sT0}, {BI}, s{sT0}")
    e("v_lshrrev_b32 v19, 2, v0")
    e(f"v_lshlrev_b32 v24, 2, v19")
    e(f"v_add_u32 v24, {BI}, v24")
    e("s_waitcnt lgkmcnt(0)")
    e("ds_read_b32 v8, v24")
    for q in range(16):
        r = 192 + 4 * q
        e(f"s_mov_b64 exec, {sr(sMk+2*q,2)}")
        if q % 2:
            e(f"s_cbranch_execz K2_R{q}")
        e(f"v_lshrrev_b32 v24, 16, v{r+2}")
        e(f"v_lshl_add_u32 v24, v24, 2, s{sT0}")
        e(f"ds_read_u16 v{64+q}, v24")
        if q % 2:
            e(f"K2_R{q}:")
    e("s_mov_b64 exec, -1")
    e("s_mov_b32 s42, 0xffff")
    e("v_mov_b32 v25, 0x3f800000")
    e(f"s_mov_b32 s{sT0}, {E8}")
    e(f"s_mov_b32 s{sT1}, {M4}")
    e("s_waitcnt lgkmcnt(0)")
    for q in range(16):
        r = 192 + 4 * q
        e(f"s_mov_b64 exec, {sr(sMk+2*q,2)}")
        if q % 2:
            e(f"s_cbranch_execz K2_S{q}")
        e(f"v_add_u32 v{64+q}, v{64+q}, v{r+3}")
        e(f"v_and_or_b32 v{r+2}, v{r+2}, s42, v25")
        e(f"v_lshl_add_u32 v{r+3}, v{64+q}, 3, s{sT0}")
        e(f"v_lshl_add_u32 v{64+q}, v{64+q}, 2, s{sT1}")
        e(f"ds_write_b64 v{r+3}, {vr(r,2)}")
        e(f"ds_write_b32 v{64+q}, v{r+2}")
        if q % 2:
            e(f"K2_S{q}:")
    e("s_mov_b64 exec, -1")
    c("---- pads and quad meta: thread = (node, k0) ----")
    e("v_and_b32 v9, 3, v0")
    e("v_lshrrev_b32 v10, 16, v8")
    e("v_and_b32 v8, 0xffff, v8")
    e(f"v_cmp_gt_u32 vcc, s{sNN}, v19")
    e("v_add_u32 v11, 3, v10")
    e("v_lshrrev_b32 v11, 2, v11")
    e("v_cndmask_b32 v12, 0, 1, vcc")
    e("v_max_u32 v11, v11, v12")
    e("v_add_u32 v12, v10, v9")
    e("v_lshlrev_b32 v13, 2, v11")
    e("v_cmp_lt_u32 vcc, v12, v13")
    e("v_add_u32 v12, v12, v8")
    e(f"v_lshl_add_u32 v13, v12, 3, s{sT0}")
    e(f"v_lshl_add_u32 v12, v12, 2, s{sT1}")
    e("v_mov_b32 v14, 0")
    e("v_mov_b32 v15, 0")
    e(f"v_mov_b32 v24, {PADV:#x}")
    e("s_mov_b64 exec, vcc")
    e("ds_write_b64 v13, v[14:15]")
    e("ds_write_b32 v12, v24")
    e("s_mov_b64 exec, -1")
    c("dummy slots / quads after the last real quad")
    e(f"s_lshl_b32 s{sT2}, s{sTt}, 3")
    e(f"s_sub_u32 s{sT2}, s{sT2}, s{sQt}")
    e(f"s_lshl_b32 s42, s{sT2}, 2")
    e("v_cmp_gt_u32 vcc, s42, v0")
    e(f"v_cmp_gt_u32 s[76:77], s{sT2}, v0")
    e(f"s_lshl_b32 s42, s{sQt}, 2")
    e("v_add_u32 v12, s42, v0")
    e(f"v_lshl_add_u32 v13, v12, 3, s{sT0}")
    e(f"v_lshl_add_u32 v12, v12, 2, s{sT1}")
    e("s_mov_b64 exec, vcc")
    e("ds_write_b64 v13, v[14:15]")
    e("ds_write_b32 v12, v24")
    e("s_mov_b64 exec, -1")
    e(f"s_mov_b32 s{sT0}, {QWK}")
    e(f"s_mov_b32 s{sT1}, {QA}")
    e(f"v_add_u32 v12, s{sQt}, v0")
    e(f"v_lshl_add_u32 v13, v12, 3, s{sT0}")
    e(f"v_lshl_add_u32 v12, v12, 2, s{sT1}")
    e(f"v_mov_b32 v14, {DUMMY}")
    e("s_mov_b64 exec, s[76:77]")
    e("ds_write_b64 v13, v[14:15]")
    e("ds_write_b32 v12, v15")
    e("s_mov_b64 exec, -1")
    e("v_lshrrev_b32 v8, 2, v8")
    e("v_add_u32 v8, v8, v9")
    e(f"v_lshl_add_u32 v13, v8, 3, s{sT0}")
    e(f"v_lshl_add_u32 v12, v8, 2, s{sT1}")
    e(f"v_mul_u32_u24 v24, {AST + 65536}, v19")
    e("v_lshlrev_b32 v25, 9, v19")
    e(f"v_add_u32 v25, {ROWS}, v25")
    e("v_add_u32 v10, -1, v11")
    e("v_cmp_eq_u32 vcc, 0, v9")
    e("s_nop 1")
    e("v_cndmask_b32 v27, -1, 0, vcc")
    e("K2_QM:")
    e("v_cmp_lt_u32 vcc, v9, v11")
    e("s_and_b64 exec, exec, vcc")
    e("s_cbranch_execz K2_QMD")
    e("v_cmp_eq_u32 vcc, v9, v10")
    e("v_add_u32 v9, 4, v9")
    e("s_nop 0")
    e("v_cndmask_b32 v26, v14, v25, vcc")
    e("ds_write_b64 v13, v[26:27]")
    e("ds_write_b32 v12, v24")
    e("v_add_u32 v13, 32, v13")
    e("v_add_u32 v12, 16, v12")
    e("v_mov_b32 v27, -1")
    e("s_branch K2_QM")
    e("K2_QMD:")
    e("s_mov_b64 exec, -1")
    c("---- per-round address registers ----")
    e(f"s_lshl_b32 s{sT0}, s{sNT}, 2")
    e(f"v_bfe_u32 v24, v{vLane}, 2, 1")
    e(f"v_mul_u32_u24 v24, s{sT0}, v24")
    e(f"v_bfe_u32 v25, v{vLane}, 3, 2")
    e("v_add_u32 v24, v24, v25")
    e(f"v_add_u32 v24, s{sQw}, v24")
    e(f"v_and_b32 v25, 3, v{vLane}")
    e("v_lshl_add_u32 v24, v24, 2, v25")
    e(f"v_lshrrev_b32 v23, 5, v{vLane}")
    e("v_add_u32 v25, 2, v23")
    e("v_lshlrev_b32 v24, v25, v24")
    e(f"v_mov_b32 v25, {E8}")
    e("s_mov_b32 exec_hi, 0")
    e(f"v_mov_b32 v25, {M4}")
    e("s_mov_b64 exec, -1")
    e(f"v_add_u32 v{vAqA}, v24, v25")
    e(f"v_bfe_u32 v24, v{vLane}, 3, 1")
    e(f"v_mul_u32_u24 v24, s{sT0}, v24")
    e(f"v_lshrrev_b32 v25, 4, v{vLane}")
    e("v_add_u32 v24, v24, v25")
    e(f"v_add_u32 v24, s{sQw}, v24")
    e("v_lshlrev_b32 v24, 4, v24")
    e(f"v_add_u32 v{vIxA}, {M4}, v24")
    e(f"v_mul_u32_u24 v24, s{sT0}, v23")
    e(f"v_add_u32 v24, s{sQw}, v24")
    e("v_lshlrev_b32 v25, 3, v24")
    e(f"v_add_u32 v{vWkA}, {QWK}, v25")
    e(f"v_bfe_u32 v25, v{vLane}, 2, 2")
    e("v_add_u32 v25, v24, v25")
    e("v_lshlrev_b32 v25, 2, v25")
    e(f"v_add_u32 v{vQaA}, {QA}, v25")
    e(f"v_add_u32 v19, s{sT0}, v24")
    e("v_add_u32 v19, -1, v19")
    for r in range(16):
        e(f"v_mov_b32 v{vAcc+r}, 0")
    for j in range(4):
        e(f"v_mov_b32 v{vS+j}, 0")
        e(f"v_mov_b32 v{vN+j}, 0")
        e(f"v_mov_b32 v{vP+j}, 1.0")
        e(f"v_add_u32 v{vWK+2*j}, {DUMMY}, v{vN8}")
        e(f"v_mov_b32 v{vWK+2*j+1}, 0")
    e("s_waitcnt lgkmcnt(0)")
    e("s_barrier")
    stamp(5)
    e(f"s_cmp_eq_u32 s{sNT}, 0")
    e("s_cbranch_scc1 K2_LOOPDONE")
    c("---- pipeline fill ----")
    for x in rd_idx() + rd_qa() + rd_aq(): e(x)
    e(f"v_add_u32 v{vIxA}, 64, v{vIxA}")
    e(f"v_add_u32 v{vQaA}, 16, v{vQaA}")
    e(f"v_add_u32 v{vAqA}, v{vAqA}, v{vAqI}")
    e("s_waitcnt lgkmcnt(2)")
    for g in dma():
        for x in g: e(x)
    for x in rd_idx(): e(x)
    e(f"v_add_u32 v{vIxA}, 64, v{vIxA}")
    e("s_waitcnt lgkmcnt(5)")
    e(f"v_add_u32 v{vQaV}, v{vQaV}, v{vQaC}")
    for x in rd_bq(0) + rd_bq(1): e(x)
    e("s_waitcnt vmcnt(0)")
    for x in rd_x(): e(x)
    e("s_waitcnt lgkmcnt(0)")
    for g in dma():
        for x in g: e(x)
    for x in mfmas(0): e(x)
    e(f"s_mov_b32 s{sCnt}, s{sNT}")
    e("s_nop 7")
    e("s_nop 3")
    stamp(6)
    e(".p2align 6")
    e("K2_LOOP:")
    e("s_setprio 1")
    ex = [[] for _ in range(9)]
    w = writes(0)
    ex[0] = [w[0], w[1]]; ex[1] = [w[2], w[3]]
    ex[2] = rd_qa()
    ex[4] = rd_idx()[:2]; ex[5] = rd_idx()[2:]
    hi_phase(mfmas(1), rcps() + exps(0), ex)
    e("s_setprio 0")
    e("s_waitcnt vmcnt(0)")
    for x in rd_x() + rd_aq(): e(x)
    e("s_waitcnt lgkmcnt(9)")
    e(f"v_add_u32 v{vQaV}, v{vQaV}, v{vQaC}")
    for x in rd_bq(0) + rd_bq(1): e(x)
    for x in chain(1): e(x)
    e(f"v_add_u32 v{vIxA}, 64, v{vIxA}")
    e(f"v_add_u32 v{vQaA}, 16, v{vQaA}")
    e(f"v_add_u32 v{vAqA}, v{vAqA}, v{vAqI}")
    for x in frac(0): e(x)
    e("s_setprio 1")
    e("s_waitcnt lgkmcnt(0)")
    ex = [[] for _ in range(9)]
    w = writes(1); d = dma()
    ex[0] = [w[0], w[1]]; ex[1] = [w[2], w[3]]; ex[2] = rd_wk()
    ex[4] = d[0]; ex[5] = d[1]; ex[7] = d[2]; ex[8] = d[3]
    hi_phase(mfmas(0), rcps() + exps(1), ex)
    e("s_setprio 0")
    e("s_waitcnt lgkmcnt(0)")
    for x in chain(0): e(x)
    for j in range(4):
        e(f"v_add_u32 v{vWK+2*j}, v{vWK+2*j}, v{vN8}")
    e(f"v_add_u32 v{vWkA}, 32, v{vWkA}")
    for x in frac(1): e(x)
    e(f"s_sub_u32 s{sCnt}, s{sCnt}, 1")
    e(f"s_cmp_lg_u32 s{sCnt}, 0")
    e("s_cbranch_scc1 K2_LOOP")
    c("drain")
    for x in writes(0) + rcps(): e(x)
    e("s_nop 0")
    for x in chain(1): e(x)
    for x in writes(1): e(x)
    e("K2_LOOPDONE:")
    stamp(7)
    c("---- tails ----")
    e("v_lshlrev_b32 v24, 2, v19")
    e(f"v_add_u32 v24, {QA+2}, v24")
    e("ds_read_u16 v24, v24")
    e(f"v_add_u32 v25, {DUMMY}, v{vN8}")
    e(f"v_cmp_eq_u32 vcc, v25, v{vWK+6}")
    e(f"v_cmp_gt_u32 s[76:77], s{sQt}, v19")
    e(f"s_cmp_lg_u32 s{sNT}, 0")
    e("s_cselect_b64 s[78:79], -1, 0")
    e("s_and_b64 s[76:77], s[76:77], vcc")
    e("s_and_b64 s[76:77], s[76:77], s[78:79]")
    e("s_waitcnt vmcnt(0) lgkmcnt(0)")
    e(f"v_lshl_add_u32 v24, v24, 9, v{vN8}")
    e(f"v_add_u32 v24, {ROWS}, v24")
    e("s_barrier")
    e("s_mov_b64 exec, s[76:77]")
    e(f"s_cmp_lg_u32 s{sBig}, 0")
    e("s_cbranch_scc1 K2_TAILAT")
    e("ds_read2_b64 v[8:11], v24 offset0:0 offset1:32")
    e("s_waitcnt lgkmcnt(0)")
    e(f"v_add_f32 v8, v8, v{acc(0,3)}")
    e(f"v_add_f32 v9, v9, v{acc(0,3)+1}")
    e(f"v_add_f32 v10, v10, v{acc(1,3)}")
    e(f"v_add_f32 v11, v11, v{acc(1,3)+1}")
    e("ds_write2_b64 v24, v[8:9], v[10:11] offset0:0 offset1:32")
    e("K2_TAILD:")
    e("s_mov_b64 exec, -1")
    c("---- epilogue ----")
    e(f"v_lshrrev_b32 v23, 5, v{vLane}")
    e(f"s_lshl_b32 s{sT0}, s{sWave}, 4")
    e(f"v_lshl_add_u32 v25, v23, 2, s{sT0}")
    e(f"v_lshl_add_u32 v24, v25, 9, v{vN8}")
    e(f"v_add_u32 v24, {ROWS}, v24")
    e(f"v_add_u32 v26, 4096, v24")
    e("s_waitcnt lgkmcnt(0)")
    e("s_barrier")
    for r in range(8):
        e(f"ds_read2_b64 {vr(192+4*r,4)}, v{24 if r<4 else 26} offset0:{64*(r%4)} offset1:{64*(r%4)+32}")
    e(f"s_and_b32 s{sT1}, s{sFirst}, 1")
    e(f"s_cmp_eq_u32 s{sMore}, 0")
    e(f"s_cselect_b32 s{sT1}, s{sT1}, 0")
    e(f"s_cmp_eq_u32 s{sT1}, 0")
    e("s_cbranch_scc1 K2_SLOWTOT")
    e("K2_FIN:")
    e(f"v_add_u32 v26, s{sBase}, v25")
    e("v_lshlrev_b32 v26, 7, v26")
    e(f"v_lshrrev_b32 v27, 1, v{vN8}")
    e("v_add_u32 v26, v26, v27")
    e(f"v_sub_u32 v25, s{sNN}, v25")
    eps = f32(1e-6 * 2.0**SC)
    for r in range(8):
        b = 192 + 4 * r
        e(f"s_waitcnt lgkmcnt({7-r})")
        e(f"v_add_f32 v{b}, {eps}, v{b}")
        e(f"v_add_f32 v{b+2}, {eps}, v{b+2}")
        e(f"v_rcp_f32 v{b}, v{b}")
        e(f"v_rcp_f32 v{b+2}, v{b+2}")
        e(f"v_lshlrev_b32 v8, 16, v{vXo+r}")
        e(f"v_and_b32 v9, 0xffff0000, v{vXo+r}")
        e(f"v_fma_f32 v{b}, v{b}, v{b+1}, v{vU+r}")
        e(f"v_fma_f32 v{b+2}, v{b+2}, v{b+3}, v{vU+8+r}")
        e(f"v_cmp_lt_i32 vcc, {8*(r//4)+r%4}, v25")
        e(f"v_max_f32 v{b}, 0, v{b}")
        e(f"v_max_f32 v{b+2}, 0, v{b+2}")
        e(f"v_add_f32 v{b}, v{b}, v8")
        e(f"v_add_f32 v{b+2}, v{b+2}, v9")
        e(f"v_cvt_pk_bf16_f32 v{b}, v{b}, v{b+2}")
        e("s_mov_b64 exec, vcc")
        e(f"buffer_store_dword v{b}, v26, {sr(sOut,4)}, 0 offen offset:{(8*(r//4)+r%4)*128}")
        e("s_mov_b64 exec, -1")
    if OPT['stamp']:
        stamp(8)
        e("s_load_dwordx2 s[50:51], s[0:1], 80")
        e("s_waitcnt lgkmcnt(0)")
        srd(sDbg, 50, 256)
        e(f"s_cmp_lg_u32 s2, {OPT['stamp']}")
        e("s_cbranch_scc1 K2_END")
        e(f"s_cmp_ge_u32 s{sWave}, 6")
        e("s_cbranch_scc1 K2_END")
        e(f"s_cmp_eq_u32 s{sWave}, 1")
        e("s_cbranch_scc1 K2_END")
        e(f"s_cmp_eq_u32 s{sWave}, 2")
        e("s_cbranch_scc1 K2_END")
        e(f"s_cmp_eq_u32 s{sWave}, 3")
        e("s_cbranch_scc1 K2_END")
        e(f"s_mul_i32 s{sT0}, s{sWave}, 40")
        e("v_mov_b32 v8, 0")
        e("s_mov_b64 exec, 1")
        for i in range(1, 9):
            e(f"s_sub_u32 s{sT1}, s{sSt+2*i}, s{sSt}")
            e(f"v_mov_b32 v9, s{sT1}")
            e(f"buffer_store_dword v9, v8, {sr(sDbg,4)}, s{sT0} offen offset:{4*(i-1)}")
        e(f"v_mov_b32 v9, s{sNT}")
        e(f"buffer_store_dword v9, v8, {sr(sDbg,4)}, s{sT0} offen offset:32")
    e("K2_END:")
    e("s_endpgm")
    c("---- rare paths ----")
    e("K2_TAILAT:")
    e(f"ds_add_f32 v24, v{acc(0,3)}")
    e(f"ds_add_f32 v24, v{acc(0,3)+1} offset:4")
    e(f"ds_add_f32 v24, v{acc(1,3)} offset:256")
    e(f"ds_add_f32 v24, v{acc(1,3)+1} offset:260")
    e("s_branch K2_TAILD")
    e("K2_FAIL:")
    e(f"s_movk_i32 s{sLW}, 144")
    e("s_waitcnt lgkmcnt(0)")
    e("s_barrier")
    e("s_branch K2_ROUND")
    e("K2_SLOWTOT:")
    e("v_lshlrev_b32 v26, 7, v0")
    e(f"s_lshl_b32 s{sT1}, s2, 16")
    e(f"s_add_u32 s{sT1}, s{sT1}, {WS_TOT}")
    e("s_waitcnt lgkmcnt(0)")
    e(f"s_cmp_lg_u32 s{sFirst}, 0")
    e("s_cbranch_scc1 K2_ST1")
    for r in range(8):
        e(f"buffer_load_dwordx4 {vr(224+4*r,4)}, v26, {sr(sWs,4)}, s{sT1} offen offset:{16*r} sc1")
    e("s_waitcnt vmcnt(0)")
    for r in range(32):
        e(f"v_add_f32 v{192+r}, v{192+r}, v{224+r}")
    e(f"s_cmp_eq_u32 s{sMore}, 0")
    e("s_cbranch_scc1 K2_FIN")
    e("K2_ST1:")
    for r in range(8):
        e(f"buffer_store_dwordx4 {vr(192+4*r,4)}, v26, {sr(sWs,4)}, s{sT1} offen offset:{16*r} sc1")
    e(f"s_mov_b32 s{sFirst}, 0")
    e(f"s_add_u32 s{sJ0}, s{sJ0}, s{sLW}")
    e("s_waitcnt vmcnt(0)")
    e("s_barrier")
    e("s_branch K2_ROUND")

def kd(name, vg, sg):
    L.extend([f".amdhsa_kernel {name}",
              f"  .amdhsa_next_free_vgpr {vg}",
              f"  .amdhsa_next_free_sgpr {sg}",
              f"  .amdhsa_accum_offset {(vg+3)//4*4}",
              "  .amdhsa_group_segment_fixed_size 0",
              "  .amdhsa_kernarg_size 96",
              "  .amdhsa_user_sgpr_count 2",
              "  .amdhsa_user_sgpr_kernarg_segment_ptr 1",
              "  .amdhsa_system_sgpr_workgroup_id_x 1",
              ".end_amdhsa_kernel"])

hdr = open("cdna_kernels/%s.s.ref" % NAME).read().split("\n")
for l in hdr:
    if l.startswith("; Override") : break
    L.append(l)
L.append(f"; @launch kernel=part_kernel grid=(256,1,1) block=(896,1,1) lds={K1_LDS}")
L.append(f"; @launch kernel={NAME}_kernel grid=(256,1,1) block=(512,1,1) lds={K2_LDS}")
L.append('.amdgcn_target "amdgcn-amd-amdhsa--gfx950"')
L.append(".text")
L.append(".globl part_kernel")
L.append(".type part_kernel,@function")
L.append(f".globl {NAME}_kernel")
L.append(f".type {NAME}_kernel,@function")
k1()
k2()
L.append('.section .rodata,"a"')
L.append(".p2align 6")
kd("part_kernel", 56, 64)
L.append(".p2align 6")
kd(f"{NAME}_kernel", 256, 102)
open(sys.argv[1], "w").write("\n".join(L) + "\n")
print("K1_LDS", K1_LDS, "K2_LDS", K2_LDS)
```

```python
import sys, struct

NAME = "standalone__edge_featured_mpnn_gatedgcn__graph"
OPT = dict(stamp=0, trace=0, stf=1, ldf=3, sched=0, remap=1, nodefirst=0, kill=0, pf=1, h1=4)
for a in sys.argv[2:]:
    k, v = a.split('=')
    OPT[k] = int(v)

L = []
def e(s=""): L.append("    " + s if s and not s.endswith(":") else s)
def c(s): L.append("    ; " + s)
def f32(x): return "0x%08x" % struct.unpack("<I", struct.pack("<f", x))[0]
def vr(a, n): return f"v[{a}:{a+n-1}]"
def sr(a, n): return f"s[{a}:{a+n-1}]"
FL = ["", " sc1", " sc0 sc1", " nt"]

N = 25000; E = 800000
CH = 3136
CHB = CH * 12
BM = 171799
BK = 6399988
WS_T = 0
WS_IMG = 0x40000
WS_REC = 0x80000
WS_AU = 0xA00000
WS_TOT = 0x1100000
WS_DIAG = 0x2F00000
WS_SIZE = 0x3000000
LOG2E = 1.4426950408889634
NODE_WGS = 196
RFLAG = 0x21800000
sSt = 82

def srd(d, b, size, stride=0):
    e(f"s_mov_b32 s{d}, s{b}")
    e(f"s_and_b32 s{d+1}, s{b+1}, 0xffff")
    if stride:
        e(f"s_or_b32 s{d+1}, s{d+1}, {stride<<16:#x}")
    e(f"s_mov_b32 s{d+2}, {size}")
    e(f"s_mov_b32 s{d+3}, 0x20000")

def scan64(v):
    for m in ("row_shr:1 row_mask:0xf", "row_shr:2 row_mask:0xf", "row_shr:4 row_mask:0xf",
              "row_shr:8 row_mask:0xf", "row_bcast:15 row_mask:0xa", "row_bcast:31 row_mask:0xc"):
        e("s_nop 1")
        e(f"v_add_u32_dpp v{v}, v{v}, v{v} {m} bank_mask:0xf")

def stamp(i):
    if OPT['stamp']:
        e(f"s_memtime {sr(sSt+2*i,2)}")
        if i == 0:
            e(f"s_memrealtime {sr(sSt+18,2)}")
def diag_out(kidx, nst, swave, ssrd, extra=None, vt=8):
    e("s_memrealtime s[42:43]")
    e("s_waitcnt lgkmcnt(0)")
    e(f"s_lshl_b32 s39, s2, 4")
    e(f"s_add_u32 s39, s39, s{swave}")
    e(f"s_lshl_b32 s39, s39, 6")
    e(f"s_add_u32 s39, s39, {WS_DIAG + kidx*0x40000}")
    e(f"v_mov_b32 v{vt}, 0")
    e("s_mov_b64 exec, 1")
    for i in range(1, nst):
        e(f"s_sub_u32 s40, s{sSt+2*i}, s{sSt}")
        e(f"v_mov_b32 v{vt+1}, s40")
        e(f"buffer_store_dword v{vt+1}, v{vt}, {sr(ssrd,4)}, s39 offen offset:{4*(i-1)}")
    if extra is not None:
        e(f"v_mov_b32 v{vt+1}, s{extra}")
        e(f"buffer_store_dword v{vt+1}, v{vt}, {sr(ssrd,4)}, s39 offen offset:48")
    e("s_getreg_b32 s40, hwreg(HW_REG_HW_ID)")
    e(f"v_mov_b32 v{vt+1}, s40")
    e(f"buffer_store_dword v{vt+1}, v{vt}, {sr(ssrd,4)}, s39 offen offset:52")
    e(f"v_mov_b32 v{vt+1}, s{sSt+18}")
    e(f"buffer_store_dword v{vt+1}, v{vt}, {sr(ssrd,4)}, s39 offen offset:56")
    e(f"v_mov_b32 v{vt+1}, s42")
    e(f"buffer_store_dword v{vt+1}, v{vt}, {sr(ssrd,4)}, s39 offen offset:60")

def mfma(d, a, b, cc):
    cs = "0" if cc is None else vr(cc, 16)
    return f"v_mfma_f32_32x32x16_bf16 {vr(d,16)}, {vr(a,4)}, {vr(b,4)}, {cs}"

K1_HIST = 0
K1_BASE = 1024
K1_STG = 2048
NST = 264
K1_LDS = K1_STG + CHB

def k1():
    st = FL[OPT['stf']]; ld = FL[OPT['ldf']]
    e(".p2align 8")
    e("part_kernel:")
    e("s_cmp_ge_u32 s2, 256")
    e("s_cbranch_scc1 K1_END")
    stamp(0)
    e("s_load_dwordx4 s[4:7], s[0:1], 8")
    e("s_load_dwordx2 s[8:9], s[0:1], 24")
    e("s_load_dwordx2 s[10:11], s[0:1], 88")
    e("v_lshrrev_b32 v1, 6, v0")
    e("s_mul_i32 s3, s2, %d" % (CH * 4))
    e("v_readfirstlane_b32 s33, v1")
    e("v_lshl_add_u32 v2, v0, 4, s3")
    e("v_lshlrev_b32 v3, 1, v2")
    e("s_movk_i32 s34, 784")
    e("s_mov_b32 s35, %d" % (E * 4))
    e("v_cmp_gt_u32 s[36:37], s34, v0")
    e("v_cmp_gt_u32 vcc, s35, v2")
    e("v_and_b32 v20, 63, v0")
    e("v_lshlrev_b32 v20, 4, v20")
    e("v_mov_b32 v24, 0")
    e("v_mov_b32 v25, 0")
    e("v_mov_b32 v26, 0")
    e("v_mov_b32 v27, 0")
    e("s_and_b64 s[38:39], s[36:37], vcc")
    e("s_cmp_eq_u32 s33, 13")
    e("s_cbranch_scc1 K1_IMG")
    e("s_cmp_lg_u32 s33, 0")
    e("s_cbranch_scc1 K1_NOZERO")
    e(f"ds_write_b128 v20, v[24:27] offset:{K1_HIST}")
    e("K1_NOZERO:")
    e("s_waitcnt lgkmcnt(0)")
    stamp(1)
    srd(12, 8, E * 4)
    e("s_mov_b64 exec, s[38:39]")
    e("buffer_load_dwordx4 v[4:7], v2, s[12:15], 0 offen" + ld)
    srd(16, 6, E * 4)
    srd(20, 4, E * 8)
    srd(24, 10, WS_SIZE)
    e("v_mov_b32 v21, 12")
    e("s_mov_b32 s34, %d" % BM)
    e("s_barrier")
    stamp(2)
    e("buffer_load_dwordx4 v[8:11], v2, s[16:19], 0 offen" + ld)
    e("buffer_load_dwordx4 v[12:15], v3, s[20:23], 0 offen" + ld)
    e("buffer_load_dwordx4 v[16:19], v3, s[20:23], 0 offen offset:16" + ld)
    e("s_waitcnt vmcnt(3)")
    stamp(3)
    for i in range(4):
        e(f"v_mul_u32_u24 v{28+i}, s34, v{4+i}")
    for i in range(4):
        e(f"v_lshrrev_b32 v{28+i}, 22, v{28+i}")
    for i in range(4):
        e(f"v_and_b32 v{28+i}, 0x3fc, v{28+i}")
        e(f"ds_add_rtn_u32 v{32+i}, v{28+i}, v21 offset:{K1_HIST}")
    for i in range(4):
        e(f"v_and_b32 v{4+i}, 127, v{4+i}")
    e("s_mov_b64 exec, -1")
    e("s_waitcnt lgkmcnt(0)")
    e("s_barrier")
    stamp(4)
    e(f"ds_read_b128 v[24:27], v20 offset:{K1_HIST}")
    e("s_waitcnt lgkmcnt(0)")
    e("v_add_u32 v37, v24, v25")
    e("v_add_u32 v38, v37, v26")
    e("v_add_u32 v22, v38, v27")
    e("v_mov_b32 v23, v22")
    scan64(23)
    e("v_sub_u32 v40, v23, v22")
    e("v_add_u32 v41, v40, v24")
    e("v_add_u32 v42, v40, v37")
    e("v_add_u32 v43, v40, v38")
    e(f"ds_write_b128 v20, v[40:43] offset:{K1_BASE}")
    e("s_waitcnt lgkmcnt(0)")
    e("s_mov_b64 exec, s[38:39]")
    for i in range(4):
        e(f"ds_read_b32 v{28+i}, v{28+i} offset:{K1_BASE}")
    for i in range(4):
        e(f"v_add_u32 v{32+i}, {K1_STG}, v{32+i}")
    e("s_waitcnt vmcnt(2)")
    for i in range(4):
        e(f"v_lshl_or_b32 v{8+i}, v{4+i}, 18, v{8+i}")
    e("s_waitcnt lgkmcnt(0)")
    for i in range(4):
        e(f"v_add_u32 v{28+i}, v{28+i}, v{32+i}")
        e(f"ds_write_b32 v{28+i}, v{8+i} offset:8")
    for i in range(4):
        if i % 2 == 0:
            e(f"s_waitcnt vmcnt({1-i//2})")
        e(f"ds_write2_b32 v{28+i}, v{12+2*i}, v{13+2*i} offset0:0 offset1:1")
    stamp(5)
    e("s_mov_b64 exec, -1")
    e("s_cmp_lg_u32 s33, 12")
    e("s_cbranch_scc1 K1_NOT")
    e("s_lshl_b32 s3, s2, 10")
    for i in range(4):
        e(f"v_lshl_or_b32 v{44+i}, v{24+i}, 16, v{40+i}")
    e(f"buffer_store_dwordx4 v[44:47], v20, s[24:27], s3 offen" + st)
    e("K1_NOT:")
    e("v_lshlrev_b32 v2, 4, v0")
    e("s_mul_i32 s3, s2, %d" % CHB)
    e("s_add_u32 s3, s3, %d" % WS_REC)
    e("s_add_u32 s34, s3, %d" % (CHB // 3))
    e("s_add_u32 s35, s34, %d" % (CHB // 3))
    e("s_waitcnt lgkmcnt(0)")
    e("s_barrier")
    stamp(6)
    e("s_mov_b64 exec, s[36:37]")
    for k in range(3):
        e(f"ds_read_b128 {vr(4+4*k,4)}, v2 offset:{K1_STG + k*(CHB//3)}")
    for k, s in enumerate(("s3", "s34", "s35")):
        e(f"s_waitcnt lgkmcnt({2-k})")
        e(f"buffer_store_dwordx4 {vr(4+4*k,4)}, v2, s[24:27], {s} offen" + st)
    if OPT['stamp']:
        stamp(7)
        e("s_waitcnt vmcnt(0)")
        stamp(8)
        diag_out(0, 9, 33, 24, None, vt=50)
    e("K1_END:")
    e("s_endpgm")

    e("K1_IMG:")
    e("s_load_dwordx4 s[40:43], s[0:1], 32")
    e("s_load_dwordx4 s[44:47], s[0:1], 56")
    e("s_load_dwordx2 s[28:29], s[0:1], 48")
    e("v_and_b32 v1, 31, v0")
    e("s_lshl_b32 s3, s2, 5")
    e("v_lshlrev_b32 v6, 1, v1")
    e("v_add_u32 v1, s3, v1")
    c("q=(d>>8)&7 = nt*4+s ; l'=(d>>2)&63 ; reg=d&3 ; k=16s+8(l'>>5)+2reg ; ch=32nt+(l'&31)")
    e("v_bfe_u32 v2, v1, 8, 2")
    e("v_lshlrev_b32 v2, 4, v2")
    e("v_bfe_u32 v3, v1, 7, 1")
    e("v_lshl_add_u32 v2, v3, 3, v2")
    e("v_and_b32 v3, 3, v1")
    e("v_lshl_add_u32 v2, v3, 1, v2")
    e("v_lshlrev_b32 v2, 7, v2")
    e("v_bfe_u32 v3, v1, 2, 5")
    e("v_lshl_add_u32 v2, v3, 1, v2")
    e("v_bfe_u32 v3, v1, 10, 1")
    e("v_lshl_add_u32 v2, v3, 6, v2")
    e("s_lshr_b32 s3, s2, 6")
    e("s_waitcnt lgkmcnt(0)")
    srd(24, 10, WS_SIZE)
    e("s_cmp_eq_u32 s3, 0")
    e("s_cselect_b32 s48, s42, s46")
    e("s_cselect_b32 s49, s43, s47")
    e("s_cselect_b32 s52, %s, 1.0" % f32(-LOG2E))
    e("s_cmp_eq_u32 s3, 2")
    e("s_cselect_b32 s48, s40, s48")
    e("s_cselect_b32 s49, s41, s49")
    e("s_cmp_eq_u32 s3, 3")
    e("s_cselect_b32 s48, s44, s48")
    e("s_cselect_b32 s49, s45, s49")
    e("s_and_b32 s49, s49, 0xffff")
    e("s_mov_b32 s50, 8192")
    e("s_mov_b32 s51, 0x20000")
    e("buffer_load_ushort v4, v2, s[48:51], 0 offen")
    e("buffer_load_ushort v5, v2, s[48:51], 0 offen offset:128")
    srd(12, 28, 512)
    e("s_cmp_lg_u32 s2, 0")
    e("s_cbranch_scc1 K1_NOWC")
    for r in range(4):
        e(f"buffer_load_ushort v{8+r}, v6, s[12:15], 0 offen offset:{128*r}")
        e(f"buffer_load_ushort v{12+r}, v6, s[12:15], 0 offen offset:{128*r+64}")
    e("K1_NOWC:")
    e("s_barrier")
    e("s_barrier")
    e("v_lshlrev_b32 v1, 2, v1")
    e("s_mov_b32 s3, %d" % WS_IMG)
    e("s_waitcnt vmcnt(0)")
    e("v_lshlrev_b32 v4, 16, v4")
    e("v_lshlrev_b32 v5, 16, v5")
    e("v_mul_f32 v4, s52, v4")
    e("v_mul_f32 v5, s52, v5")
    e("v_cvt_pk_bf16_f32 v4, v4, v5")
    e("s_mov_b32 exec_hi, 0")
    e("buffer_store_dword v4, v1, s[24:27], s3 offen" + st)
    e("s_mov_b64 exec, -1")
    e("s_cmp_lg_u32 s2, 0")
    e("s_cbranch_scc1 K1_NOWC2")
    e("s_mov_b32 s3, %d" % (WS_IMG + 32768))
    for r in range(8):
        e(f"v_lshlrev_b32 v{8+r}, 16, v{8+r}")
        e(f"v_mul_f32 v{8+r}, s52, v{8+r}")
    for r in range(4):
        e(f"v_cvt_pk_bf16_f32 v{16+r}, v{8+2*r}, v{9+2*r}")
    e("s_mov_b32 exec_hi, 0")
    e(f"v_mov_b32 v16, {RFLAG:#x}")
    e("v_mov_b32 v17, 0")
    e(f"v_mov_b32 v18, {RFLAG:#x}")
    e("v_mov_b32 v19, 0")
    e("s_mov_b64 exec, -1")
    e("buffer_store_dwordx4 v[16:19], v20, s[24:27], s3 offen" + st)
    e("K1_NOWC2:")
    e("s_barrier")
    e("s_endpgm")

CAP = 3584
CNT = 0
MORE = 512
BI = 528
M4 = 1280
E8 = M4 + CAP * 4 + 256
QWK = E8 + CAP * 8 + 256
QA = QWK + (CAP // 4) * 8 + 256
AST = 136
RST = 528
ATAB = QA + (CAP // 4) * 4 + 256
STG = (ATAB + 98 * AST + 1023) // 1024 * 1024
ROWS = STG + 32768
IMG = ROWS
XOWN = ROWS + 33792
DUMMY = ROWS + 98 * RST
K2_LDS = DUMMY + 1024
assert XOWN + 16384 <= DUMMY
assert E8 % 16 == 0 and QWK % 16 == 0 and K2_LDS <= 160 * 1024 and ATAB < 65536, (K2_LDS, ATAB)
SC = 24
PADV = 0x7F007F00
RFLAG = 0x21800000

vW = 128; vD = [192, 224]; vX = 112; vBq = [104, 108]; vAq = 100; vAcc = 84
vS = 72; vN = 76; vP = 80; vWK = 64; vIdx = 56; vC = 40; vXo = 24; vU = 32; vXa = 20
vLane = 1; vAqA = 2; vAqI = 3; vIxA = 4; vQaA = 5; vQaV = 6; vQaC = 7
vWkA = 16; vN16 = 17; vC1 = 18; vTail = 19
vTe = 8
sX = 4; sXr = 8; sWs = 12; sOut = 16; sWc = 20
sBase = 24; sNN = 25; sWave = 26; sJ0 = 27; sLW = 28; sFirst = 29; sInit = 30; sQt = 31; sTt = 32
sNT = 33; sQw = 34; sStg = 35; sMore = 36; sBig = 37; sCnt = 38; sT0 = 39; sT1 = 40; sT2 = 41
sMk = 44

def G(b): return vD[b]
def H(b): return vD[b] + 16
def Wg(nt, s): return vW + (nt * 4 + s) * 4
def Wh(nt, s): return vW + 32 + (nt * 4 + s) * 4
def mfmas(nt):
    g = G(nt); h = H(nt)
    return [mfma(g, vAq, vBq[nt], vC),
            mfma(h, vX, Wh(nt,0), None), mfma(g, vX, Wg(nt,0), g),
            mfma(h, vX+4, Wh(nt,1), h), mfma(g, vX+4, Wg(nt,1), g),
            mfma(h, vX+8, Wh(nt,2), h), mfma(g, vX+8, Wg(nt,2), g),
            mfma(h, vX+12, Wh(nt,3), h), mfma(g, vX+12, Wg(nt,3), g)]
def acc(nt, j): return vAcc + j * 4 + nt * 2
def chain(nt):
    o = []
    for j in range(4):
        a = acc(nt, j); p = acc(nt, (j + 3) % 4); k = vWK + 2 * j + 1
        o += [f"v_and_b32 v{a}, v{p}, v{k}", f"v_and_b32 v{a+1}, v{p+1}, v{k}",
              f"v_fmac_f32 v{a}, v{vS+j}, v{vP+j}", f"v_fmac_f32 v{a+1}, v{vN+j}, v{vP+j}"]
    return o
def writes(): return [f"ds_write_b128 v{vWK+2*j}, {vr(vAcc+4*j,4)}" for j in range(4)]
def avals(nt):
    g = G(nt)
    return [f"v_fmaak_f32 v{g+r}, v{g+r}, v{vC1}, {f32(2.0**-SC)}" for r in range(16)]
def frac(nt):
    g = G(nt); h = H(nt); o = []
    J = range(4)
    o += [f"v_add_f32 v{vS+j}, v{g+4*j}, v{g+4*j+1}" for j in J]
    o += [f"v_mul_f32 v{vP+j}, v{g+4*j}, v{g+4*j+1}" for j in J]
    o += [f"v_mul_f32 v{vN+j}, v{h+4*j}, v{g+4*j+1}" for j in J]
    o += [f"v_fmac_f32 v{vN+j}, v{h+4*j+1}, v{g+4*j}" for j in J]
    for i in (2, 3):
        o += [f"v_mul_f32 v{h+4*j+i}, v{h+4*j+i}, v{vP+j}" for j in J]
        o += [f"v_fma_f32 v{vS+j}, v{vS+j}, v{g+4*j+i}, v{vP+j}" for j in J]
        o += [f"v_fma_f32 v{vN+j}, v{vN+j}, v{g+4*j+i}, v{h+4*j+i}" for j in J]
        o += [f"v_mul_f32 v{vP+j}, v{vP+j}, v{g+4*j+i}" for j in J]
    return o
def mix(a, b):
    o = []; a = list(a); b = list(b)
    while a or b:
        if a: o += a[:2]; a = a[2:]
        if b: o += b[:2]; b = b[2:]
    return o
def exps(nt): return [f"v_exp_f32_e64 v{G(nt)+r}, v{G(nt)+r} clamp" for r in range(16)]
def rcps(): return [f"v_rcp_f32 v{vP+j}, v{vP+j}" for j in range(4)]
def rd_x(): return [f"ds_read_b128 {vr(vX+4*s,4)}, v{vXa+s}" for s in range(4)]
def rd_aq(): return [f"ds_read2_b32 {vr(vAq,2)}, v{vAqA} offset0:0 offset1:1"]
def rd_idx(): return [f"ds_read_u16 v{vIdx+2*i}, v{vIxA} offset:{M4+4*i}" for i in range(4)]
def rd_qa(): return [f"ds_read_u16 v{vQaV}, v{vQaA} offset:{QA}"]
def rd_bq(nt): return [f"ds_read_b64_tr_b16 {vr(vBq[nt]+2,2)}, v{vQaV} offset:{ATAB+64*nt}"]
def rd_wk(): return [f"ds_read_b128 {vr(vWK,4)}, v{vWkA} offset:{QWK}", f"ds_read_b128 {vr(vWK+4,4)}, v{vWkA} offset:{QWK+16}"]
def dma(): return [f"buffer_load_dwordx4 {vr(vIdx+2*i,2)}, {sr(sX,4)}, 0 idxen offen offset:{1024*i} lds" for i in range(4)]

def hi_phase(ms, trans, extras, per=(2, 2, 2, 3, 2, 2, 3, 2, 2)):
    t = 0
    for g in range(9):
        e(ms[g])
        for _ in range(per[g]):
            e(trans[t]); t += 1
        for x in extras[g]:
            e(x)
    assert t == 20

def k2():
    e(".p2align 8")
    e(f"{NAME}_kernel:")
    e("s_cmp_ge_u32 s2, 256")
    e("s_cbranch_scc1 K2_END")
    stamp(0)
    e("s_load_dwordx2 s[52:53], s[0:1], 88")
    e("s_load_dwordx2 s[44:45], s[0:1], 0")
    e("s_load_dwordx2 s[48:49], s[0:1], 72")
    e("s_and_b32 s3, s2, 7")
    e("s_lshr_b32 s2, s2, 3")
    e("s_lshl_b32 s3, s3, 5")
    e("s_or_b32 s2, s2, s3")
    e(f"v_and_b32 v{vLane}, 63, v0")
    e("v_lshrrev_b32 v2, 6, v0")
    e(f"s_mul_i32 s{sBase}, s2, {BK}")
    e(f"v_readfirstlane_b32 s{sWave}, v2")
    e(f"s_add_u32 s{sNN}, s{sBase}, {BK+65535}")
    e(f"s_add_u32 s{sBase}, s{sBase}, 65535")
    e(f"s_lshr_b32 s{sBase}, s{sBase}, 16")
    e(f"s_lshr_b32 s{sNN}, s{sNN}, 16")
    e(f"s_sub_u32 s{sNN}, s{sNN}, s{sBase}")
    e(f"s_mov_b32 s{sJ0}, 0")
    e(f"s_movk_i32 s{sLW}, 384")
    e(f"s_mov_b32 s{sFirst}, 1")
    e(f"s_lshl_b32 s{sStg}, s{sWave}, 12")
    e(f"s_add_u32 s{sStg}, s{sStg}, {STG}")
    e("s_waitcnt lgkmcnt(0)")
    srd(sWs, 52, WS_SIZE)
    e("s_sub_u32 s50, s44, 3072")
    e("s_subb_u32 s51, s45, 0")
    srd(sX, 50, N, stride=128)
    srd(sXr, 44, N * 128)
    srd(sOut, 48, N * 128)
    e("K2_ROUND:")
    e("v_and_b32 v64, 0x1f0, v0")
    e("v_lshlrev_b32 v64, 9, v64")
    e(f"s_lshl_b32 s{sT0}, s2, 2")
    e(f"s_add_u32 s{sT1}, s{sT0}, 4096")
    for i in range(8):
        e(f"buffer_load_dword v{vTe+i}, v64, {sr(sWs,4)}, s{sT0 if i<4 else sT1} offen offset:{(i%4)*1024}")
    c("zero CNT[128] and MORE")
    e("v_lshlrev_b32 v64, 2, v0")
    e("v_mov_b32 v66, 0")
    e("s_movk_i32 s42, 132")
    e("v_cmp_gt_u32 vcc, s42, v0")
    e("s_mov_b64 exec, vcc")
    e(f"ds_write_b32 v64, v66 offset:{CNT}")
    e("s_mov_b64 exec, -1")
    c("---- lane constants ----")
    e(f"v_and_b32 v67, 31, v{vLane}")
    e(f"v_lshrrev_b32 v69, 5, v{vLane}")
    e(f"v_bfe_u32 v70, v{vLane}, 2, 1")
    e(f"v_bfe_u32 v71, v{vLane}, 3, 2")
    e("v_and_b32 v72, 1, v71")
    e("v_lshlrev_b32 v72, 4, v72")
    e("v_mov_b32 v73, 0x3f80")
    e("v_cmp_eq_u32 vcc, v70, v69")
    e("v_lshlrev_b32 v72, v72, v73")
    e("v_cmp_gt_u32 s[76:77], 2, v71")
    e("v_cndmask_b32 v72, 0, v72, vcc")
    e(f"v_and_b32 v73, 3, v{vLane}")
    e(f"v_cndmask_b32 v{vAq+2}, 0, v72, s[76:77]")
    e(f"v_cndmask_b32 v{vAq+3}, v72, 0, s[76:77]")
    e(f"v_and_b32 v72, 7, v{vLane}")
    e("v_lshlrev_b32 v74, 2, v69")
    e("v_xor_b32 v72, v72, v74")
    c("early copies: operand images, own x rows")
    e(f"v_lshlrev_b32 v65, 4, v{vLane}")
    e(f"s_and_b32 s{sT2}, s{sWave}, 1")
    e(f"s_lshl_b32 s{sT2}, s{sT2}, 1")
    e(f"v_xor_b32 v74, s{sT2}, v72")
    e("v_lshlrev_b32 v74, 4, v74")
    e(f"v_lshrrev_b32 v75, 3, v{vLane}")
    e("v_lshl_add_u32 v74, v75, 9, v74")
    e("v_xor_b32 v75, 16, v74")
    e("v_add_u32 v75, 128, v75")
    e(f"s_lshr_b32 s{sT0}, s{sWave}, 1")
    e(f"s_lshl_b32 s{sT0}, s{sT0}, 5")
    e(f"s_add_u32 s{sT0}, s{sT0}, s{sBase}")
    e(f"s_add_u32 s{sT0}, s{sT0}, s{sT2}")
    e(f"s_lshl_b32 s{sT0}, s{sT0}, 7")
    e(f"s_lshl_b32 s{sT1}, s{sWave}, 11")
    e(f"s_add_u32 m0, s{sT1}, {XOWN}")
    e(f"s_lshl_b32 s{sT1}, s{sWave}, 12")
    e(f"buffer_load_dwordx4 v74, {sr(sXr,4)}, s{sT0} offen lds")
    e("s_add_u32 m0, m0, 1024")
    e(f"s_add_u32 s{sT2}, s{sT1}, {WS_IMG}")
    e(f"buffer_load_dwordx4 v75, {sr(sXr,4)}, s{sT0} offen lds")
    e(f"s_add_u32 m0, s{sT1}, {IMG}")
    e(f"s_mov_b32 s{sT0}, {WS_IMG+32768}")
    for i in range(4):
        e(f"buffer_load_dwordx4 v65, {sr(sWs,4)}, s{sT2} offen offset:{1024*i} lds")
    e(f"buffer_load_dwordx4 v[120:123], v65, {sr(sWs,4)}, s{sT0} offen")
    for i in range(4):
        e(f"v_xor_b32 v74, {i}, v72")
        e(f"v_lshlrev_b32 v74, 4, v74")
        e(f"v_add_u32 v{vIdx+2*i+1}, {3072-1024*i}, v74")
    e(f"v_bfe_u32 v74, v{vLane}, 2, 3")
    e(f"v_bfe_u32 v75, v{vLane}, 4, 1")
    e("v_lshl_add_u32 v72, v75, 2, v73")
    e("v_lshlrev_b32 v76, 10, v73")
    e("v_lshl_add_u32 v76, v74, 7, v76")
    e(f"v_add_u32 v76, s{sStg}, v76")
    e("v_xor_b32 v72, v72, v69")
    for s_ in range(4):
        e(f"v_xor_b32 v74, {2*s_}, v72")
        e(f"v_lshl_add_u32 v{vXa+s_}, v74, 4, v76")
    e(f"v_lshlrev_b32 v{vN16}, 4, v67")
    e(f"v_mov_b32 v{vC1}, {f32(2.0**SC)}")
    e(f"v_lshlrev_b32 v{vAqI}, 6, v69")
    e(f"v_add_u32 v{vAqI}, 64, v{vAqI}")
    e("v_lshlrev_b32 v73, 3, v73")
    e(f"v_lshl_add_u32 v{vQaC}, v75, 5, v73")
    c("A table write address and mask")
    e(f"s_lshr_b32 s{sT0}, s{sWave}, 1")
    e(f"s_lshl_b32 s{sT0}, s{sT0}, 5")
    e(f"v_add_u32 v70, s{sT0}, v67")
    e(f"v_cmp_gt_u32 s[78:79], s{sNN}, v70")
    e(f"v_mul_u32_u24 v70, {AST}, v70")
    e("v_lshl_add_u32 v70, v69, 3, v70")
    e(f"s_and_b32 s{sT1}, s{sWave}, 1")
    e(f"s_lshl_b32 s{sT0}, s{sT1}, 6")
    e(f"v_add_u32 v70, s{sT0}, v70")
    e(f"s_lshl_b32 s{sT1}, s{sT1}, 12")
    e(f"s_add_u32 s{sT1}, s{sT1}, {IMG+16384}")
    e(f"v_add_u32 v71, s{sT1}, v65")
    e(f"v_add_u32 v65, {IMG}, v65")
    c("window offsets (0xffff = lane outside the window)")
    e(f"v_and_b32 v66, 15, v{vLane}")
    e("v_mul_u32_u24 v66, 12, v66")
    e("v_add_u32 v67, 192, v66")
    e(f"v_cmp_gt_u32 vcc, s{sLW}, v66")
    e(f"v_cmp_gt_u32 s[76:77], s{sLW}, v67")
    e(f"v_add_u32 v66, s{sJ0}, v66")
    e(f"v_add_u32 v67, s{sJ0}, v67")
    e("v_lshrrev_b32 v68, 4, v0")
    e(f"s_mov_b32 s{sT0}, {8*CHB}")
    e(f"v_mul_u32_u24 v68, s{sT0}, v68")
    e("v_add_u32 v68, v68, v66")
    e("v_mov_b32 v69, 0xffff")
    e("v_cndmask_b32 v66, v69, v66, vcc")
    e("v_cndmask_b32 v67, v69, v67, s[76:77]")
    e(f"s_mov_b32 s{sCnt}, {WS_REC}")
    e("s_waitcnt vmcnt(7)")
    stamp(1)
    sd = "dst_sel:DWORD dst_unused:UNUSED_PAD "
    def recs(rng):
        for i in rng:
            m0 = sMk + 4 * i; m1 = m0 + 2
            e(f"v_cmp_lt_u32_sdwa {sr(m0,2)}, v66, v{vTe+i} src0_sel:DWORD src1_sel:WORD_1")
            e(f"v_add_u32_sdwa v69, v68, v{vTe+i} {sd}src0_sel:DWORD src1_sel:WORD_0")
            e(f"v_cmp_lt_u32_sdwa {sr(m1,2)}, v67, v{vTe+i} src0_sel:DWORD src1_sel:WORD_1")
            e(f"s_mov_b64 exec, {sr(m0,2)}")
            e(f"buffer_load_dwordx3 {vr(192+8*i,3)}, v69, {sr(sWs,4)}, s{sCnt} offen")
            e(f"s_mov_b64 exec, {sr(m1,2)}")
            e(f"buffer_load_dwordx3 {vr(196+8*i,3)}, v69, {sr(sWs,4)}, s{sCnt} offen offset:192")
            e("s_mov_b64 exec, -1")
            if i < 7:
                e(f"s_add_u32 s{sCnt}, s{sCnt}, {CHB}")
    H1 = OPT['h1']
    recs(range(H1))
    e(f"s_lshr_b32 s{sT0}, s{sWave}, 1")
    e(f"s_lshl_b32 s{sT0}, s{sT0}, 12")
    e(f"s_add_u32 s{sT0}, s{sT0}, {XOWN}")
    e(f"s_sub_u32 s{sT0}, s{sT0}, s{sStg}")
    for s_ in range(4):
        e(f"v_add_u32 v{72+s_}, s{sT0}, v{vXa+s_}")
    e(f"s_waitcnt vmcnt({2*H1}) lgkmcnt(0)")
    e("s_barrier")
    stamp(2)
    c("---- A table and U for this wave's (node tile, channel half); weight operands ----")
    for s_ in range(4):
        e(f"ds_read_b128 {vr(40+4*s_,4)}, v{72+s_}")
        e(f"ds_read_b128 {vr(vW+4*s_,4)}, v71 offset:{s_*1024}")
    for s_ in range(4):
        e(f"ds_read_b128 {vr(vW+16+4*s_,4)}, v71 offset:{8192+s_*1024}")
    e(f"v_mov_b32 v{vBq[0]}, v120")
    e(f"v_mov_b32 v{vBq[0]+1}, v121")
    e(f"v_mov_b32 v{vBq[1]}, v122")
    e(f"v_mov_b32 v{vBq[1]+1}, v123")
    e(f"s_mov_b32 s{sT0}, {f32(-LOG2E)}")
    e("s_waitcnt lgkmcnt(4)")
    for s_ in range(4):
        e(mfma(84, vW+4*s_, 40+4*s_, 84 if s_ else None))
    e("s_waitcnt lgkmcnt(0)")
    for s_ in range(4):
        e(mfma(112, vW+16+4*s_, 40+4*s_, 112 if s_ else None))
    for q in range(16):
        e(f"ds_read_b128 {vr(vW+4*q,4)}, v65 offset:{q*1024}")
    for r in range(16):
        e(f"v_mul_f32 v{84+r}, s{sT0}, v{84+r}")
    for r in range(8):
        e(f"v_cvt_pk_bf16_f32 v{72+r}, v{84+2*r}, v{85+2*r}")
    e("s_mov_b64 exec, s[78:79]")
    for j in range(4):
        e(f"ds_write_b64 v70, {vr(72+2*j,2)} offset:{ATAB+j*16}")
    e("s_mov_b64 exec, -1")
    for r in range(8):
        e(f"v_cvt_pk_bf16_f32 v{vU+r}, v{112+2*r}, v{113+2*r}")
    recs(range(H1, 8))
    npf = 0
    if OPT['pf']:
        c("pull this bucket's slice of x into the L2 (one dword per line)")
        e("v_lshlrev_b32 v69, 7, v0")
        e(f"s_and_b32 s{sT0}, s2, 31")
        e(f"s_mul_i32 s{sT0}, s{sT0}, {782*128}")
        e(f"s_add_u32 s{sT1}, s{sT0}, {270*128}")
        e(f"buffer_load_dword v{vXo}, v69, {sr(sXr,4)}, s{sT0} offen")
        e(f"buffer_load_dword v{vXo+1}, v69, {sr(sXr,4)}, s{sT1} offen")
        npf = 2
    e(f"v_max3_u32 v{vTe}, v{vTe}, v{vTe+1}, v{vTe+2}")
    e(f"v_max3_u32 v{vTe+3}, v{vTe+3}, v{vTe+4}, v{vTe+5}")
    e(f"v_max3_u32 v{vTe}, v{vTe}, v{vTe+6}, v{vTe+7}")
    e(f"v_max_u32 v{vTe}, v{vTe}, v{vTe+3}")
    e(f"s_add_u32 s{sT1}, s{sJ0}, s{sLW}")
    e(f"s_lshl_b32 s{sT1}, s{sT1}, 16")
    e(f"s_or_b32 s{sT1}, s{sT1}, 0xffff")
    e(f"v_cmp_lt_u32 vcc, s{sT1}, v{vTe}")
    e("v_mov_b32 v66, 4")
    e("v_mov_b32 v67, 0")
    e("s_mov_b64 exec, vcc")
    e(f"ds_write_b32 v67, v66 offset:{MORE}")
    e("s_mov_b64 exec, -1")
    c("scan / meta lane constants while the records are in flight")
    e(f"v_lshl_add_u32 v8, v{vLane}, 1, s{sBase}")
    e("v_add_u32 v9, 1, v8")
    e("v_and_b32 v8, 127, v8")
    e("v_and_b32 v9, 127, v9")
    e("v_lshlrev_b32 v8, 2, v8")
    e("v_lshlrev_b32 v9, 2, v9")
    e(f"s_add_u32 s{sT0}, s{sNN}, 7")
    e(f"v_lshlrev_b32 v10, 1, v{vLane}")
    e("v_add_u32 v11, 1, v10")
    e(f"v_cmp_gt_u32 vcc, s{sT0}, v10")
    e(f"v_cmp_gt_u32 s[76:77], s{sT0}, v11")
    e("v_lshrrev_b32 v12, 2, v0")
    e("v_cndmask_b32 v10, 0, 16, vcc")
    e("v_cndmask_b32 v11, 0, 16, s[76:77]")
    e(f"v_cmp_gt_u32 vcc, s{sT0}, v12")
    e(f"v_cmp_gt_u32 s[76:77], s{sNN}, v12")
    e(f"v_add_u32 v13, s{sBase}, v12")
    e("v_cndmask_b32 v14, 0, 16, vcc")
    e("v_and_b32 v13, 127, v13")
    e("v_lshlrev_b32 v13, 2, v13")
    e(f"v_mul_u32_u24 v15, {RST}, v12")
    e(f"v_add_u32 v15, {ROWS}, v15")
    e(f"v_mov_b32 v64, {DUMMY+512}")
    e("v_cndmask_b32 v15, v64, v15, s[76:77]")
    e("v_cndmask_b32 v12, 0, v12, s[76:77]")
    e(f"v_mul_u32_u24 v12, {AST+65536}, v12")
    for r in range(16):
        e(f"v_mov_b32 v{vAcc+r}, 0")
    for r in range(16):
        e(f"v_mov_b32 v{vC+r}, {f32(-2.0*SC)}")
    for j in range(4):
        e(f"v_mov_b32 v{vN+j}, 0")
        e(f"v_mov_b32 v{vP+j}, 1.0")
    stamp(3)
    for q in range(16):
        r = 192 + 4 * q
        e(f"s_mov_b64 exec, {sr(sMk+2*q,2)}")
        if q % 2:
            e(f"s_cbranch_execz K2_H{q}")
        e(f"s_waitcnt vmcnt({15+npf-q})")
        e(f"v_lshrrev_b32 v{112+q}, 16, v{r+2}")
        e(f"ds_add_rtn_u32 v{r+3}, v{112+q}, v66 offset:{CNT}")
        if q % 2:
            e(f"K2_H{q}:")
    e("s_mov_b64 exec, -1")
    e("s_waitcnt lgkmcnt(0)")
    e("s_barrier")
    stamp(4)
    c("---- scan (every wave, redundantly) ----")
    e(f"ds_read_b32 v64, v8 offset:{CNT}")
    e(f"ds_read_b32 v65, v9 offset:{CNT}")
    e(f"ds_read_b32 v68, v67 offset:{MORE}")
    e("s_waitcnt lgkmcnt(1)")
    e("v_add_u32 v69, 15, v64")
    e("v_add_u32 v70, 15, v65")
    e("v_and_b32 v69, -16, v69")
    e("v_and_b32 v70, -16, v70")
    e("v_max_u32 v69, v69, v10")
    e("v_max_u32 v70, v70, v11")
    e("v_add_u32 v71, v69, v70")
    e("v_mov_b32 v72, v71")
    scan64(72)
    e("v_sub_u32 v73, v72, v71")
    e("v_add_u32 v74, v73, v69")
    e(f"v_readlane_b32 s{sQt}, v72, 63")
    e("v_lshl_or_b32 v64, v64, 16, v73")
    e("v_lshl_or_b32 v65, v65, 16, v74")
    e(f"ds_write_b32 v8, v64 offset:{BI}")
    e(f"ds_write_b32 v9, v65 offset:{BI}")
    e("v_max_u32 v69, v69, v70")
    e(f"s_lshr_b32 s{sTt}, s{sQt}, 7")
    e("s_waitcnt lgkmcnt(0)")
    e(f"v_readfirstlane_b32 s{sMore}, v68")
    e(f"ds_read_b32 v64, v13 offset:{BI}")
    for q in range(16):
        e(f"s_mov_b64 exec, {sr(sMk+2*q,2)}")
        e(f"ds_read_u16 v{112+q}, v{112+q} offset:{BI}")
    e("s_mov_b64 exec, -1")
    e(f"s_cmp_gt_u32 s{sQt}, {CAP*4}")
    e(f"s_cselect_b32 s{sT0}, 1, s{sMore}")
    e(f"s_cmp_eq_u32 s{sLW}, 384")
    e(f"s_cselect_b32 s{sT0}, s{sT0}, 0")
    e(f"s_cmp_lg_u32 s{sT0}, 0")
    e("s_cbranch_scc1 K2_FAIL")
    c("pads")
    e("v_and_b32 v65, 3, v0")
    e(f"v_mov_b32 v70, {PADV:#x}")
    e("v_mov_b32 v72, 0")
    e("v_mov_b32 v73, 0")
    e("s_waitcnt lgkmcnt(15)")
    e("v_lshrrev_b32 v68, 16, v64")
    e("v_and_b32 v64, 0xffff, v64")
    e("v_add_u32 v74, 15, v68")
    e("v_and_b32 v74, -16, v74")
    e("v_max_u32 v74, v74, v14")
    e("v_lshl_add_u32 v68, v65, 2, v68")
    e("v_cmp_lt_u32 vcc, v68, v74")
    e("v_add_u32 v68, v68, v64")
    e("v_lshlrev_b32 v71, 1, v68")
    e("s_mov_b64 exec, vcc")
    e(f"ds_write_b32 v68, v70 offset:{M4}")
    e(f"ds_write_b64 v71, v[72:73] offset:{E8}")
    e("s_waitcnt lgkmcnt(2)")
    c("---- scatter records ----")
    for q in range(16):
        r = 192 + 4 * q
        e(f"s_mov_b64 exec, {sr(sMk+2*q,2)}")
        if q % 2:
            e(f"s_cbranch_execz K2_S{q}")
        e(f"v_add_u32 v{112+q}, v{112+q}, v{r+3}")
        e(f"v_lshlrev_b32 v{r+3}, 1, v{112+q}")
        e(f"ds_write_b32 v{112+q}, v{r+2} offset:{M4}")
        e(f"ds_write_b64 v{r+3}, {vr(r,2)} offset:{E8}")
        if q % 2:
            e(f"K2_S{q}:")
    e("s_mov_b64 exec, -1")
    e(f"s_lshr_b32 s{sT0}, s{sTt}, 3")
    e(f"s_and_b32 s{sT1}, s{sTt}, 7")
    e(f"s_lshl_b32 s{sT2}, s{sT0}, 6")
    e(f"v_cmp_lt_u32 vcc, s{sT2}, v69")
    e(f"s_mul_i32 s{sQw}, s{sT0}, s{sWave}")
    e(f"s_min_u32 s{sT2}, s{sT1}, s{sWave}")
    e(f"s_add_u32 s{sQw}, s{sQw}, s{sT2}")
    e(f"s_lshl_b32 s{sQw}, s{sQw}, 3")
    e(f"s_cmp_lt_u32 s{sWave}, s{sT1}")
    e(f"s_addc_u32 s{sNT}, s{sT0}, 0")
    e(f"s_or_b32 s{sBig}, vcc_lo, vcc_hi")
    e(f"s_lshl_b32 s{sT0}, s{sNT}, 2")
    c("gather index address")
    e(f"v_bfe_u32 v68, v{vLane}, 3, 1")
    e(f"v_lshrrev_b32 v69, 4, v{vLane}")
    e(f"v_mad_u32_u24 v68, v68, s{sT0}, v69")
    e(f"v_add_lshl_u32 v{vIxA}, v68, s{sQw}, 4")
    e(f"s_mov_b32 m0, s{sStg}")
    c("quad meta: thread = (node, k0)")
    e("v_lshrrev_b32 v69, 4, v74")
    e("v_lshrrev_b32 v64, 4, v64")
    e("v_add_u32 v64, v64, v65")
    e("v_lshlrev_b32 v68, 3, v64")
    e("v_lshlrev_b32 v64, 2, v64")
    e("v_add_u32 v70, -1, v69")
    e("v_cmp_eq_u32 vcc, 0, v65")
    e(f"v_mov_b32 v71, {DUMMY}")
    e("s_waitcnt lgkmcnt(0)")
    e("s_barrier")
    stamp(5)
    for x in rd_idx(): e(x)
    e(f"v_add_u32 v{vIxA}, 64, v{vIxA}")
    e("v_cndmask_b32 v73, -1, 0, vcc")
    e("s_waitcnt lgkmcnt(0)")
    for x in dma(): e(x)
    for x in rd_idx(): e(x)
    e(f"v_add_u32 v{vIxA}, 64, v{vIxA}")
    e("K2_QM:")
    e("v_cmp_lt_u32 vcc, v65, v69")
    e("s_and_b64 exec, exec, vcc")
    e("s_cbranch_execz K2_QMD")
    e("v_cmp_eq_u32 vcc, v65, v70")
    e(f"ds_write_b32 v64, v12 offset:{QA}")
    e("v_add_u32 v65, 4, v65")
    e("v_cndmask_b32 v72, v71, v15, vcc")
    e("v_add_u32 v64, 16, v64")
    e(f"ds_write_b64 v68, v[72:73] offset:{QWK}")
    e("v_add_u32 v68, 32, v68")
    e("v_mov_b32 v73, -1")
    e("s_branch K2_QM")
    e("K2_QMD:")
    e("s_mov_b64 exec, -1")
    c("---- per-round address registers ----")
    e(f"v_bfe_u32 v64, v{vLane}, 2, 1")
    e(f"v_bfe_u32 v65, v{vLane}, 3, 2")
    e(f"v_mad_u32_u24 v64, v64, s{sT0}, v65")
    e(f"v_add_lshl_u32 v64, v64, s{sQw}, 2")
    e(f"v_and_or_b32 v64, v{vLane}, 3, v64")
    e(f"v_lshrrev_b32 v68, 5, v{vLane}")
    e("v_add_u32 v65, 2, v68")
    e("v_lshlrev_b32 v64, v65, v64")
    e(f"v_mul_u32_u24 v65, {E8-M4}, v68")
    e(f"v_add_u32 v65, {M4}, v65")
    e(f"v_add_u32 v{vAqA}, v64, v65")
    e(f"v_mul_u32_u24 v64, s{sT0}, v68")
    e(f"v_add_u32 v64, s{sQw}, v64")
    e(f"v_lshlrev_b32 v{vWkA}, 3, v64")
    e(f"v_bfe_u32 v65, v{vLane}, 2, 2")
    e(f"v_add_lshl_u32 v{vQaA}, v64, v65, 2")
    e(f"v_add_lshl_u32 v{vTail}, v64, s{sT0}, 2")
    for x in rd_aq(): e(x)
    e(f"v_add_u32 v{vAqA}, v{vAqA}, v{vAqI}")
    e("s_waitcnt lgkmcnt(0)")
    e("s_barrier")
    for x in rd_qa(): e(x)
    e(f"v_add_u32 v{vQaA}, 16, v{vQaA}")
    for j in range(4):
        e(f"v_mov_b32 v{vS+j}, 0")
        e(f"v_add_u32 v{vWK+2*j}, {DUMMY+512}, v{vN16}")
        e(f"v_mov_b32 v{vWK+2*j+1}, 0")
    c("residual operand: thread = (node tid>>2, chunks c and c+4)")
    e(f"v_lshrrev_b32 v8, 2, v0")
    e(f"v_add_u32 v8, s{sBase}, v8")
    e("v_and_b32 v9, 3, v0")
    e("v_lshlrev_b32 v9, 4, v9")
    e("v_lshl_add_u32 v8, v8, 7, v9")
    e("s_waitcnt lgkmcnt(0)")
    e(f"v_add_u32 v{vQaV}, v{vQaV}, v{vQaC}")
    for x in rd_bq(0) + rd_bq(1) + rd_qa(): e(x)
    e(f"v_add_u32 v{vQaA}, 16, v{vQaA}")
    e("s_waitcnt vmcnt(0)")
    for x in rd_x(): e(x)
    e(f"buffer_load_dwordx4 {vr(vXo,4)}, v8, {sr(sXr,4)}, 0 offen")
    e(f"buffer_load_dwordx4 {vr(vXo+4,4)}, v8, {sr(sXr,4)}, 0 offen offset:64")
    e(f"s_cmp_eq_u32 s{sNT}, 0")
    e("s_cbranch_scc1 K2_DRAIN")
    e("s_waitcnt lgkmcnt(0)")
    for x in dma(): e(x)
    for x in mfmas(0): e(x)
    e(f"s_mov_b32 s{sCnt}, s{sNT}")
    e(f"v_add_u32 v{vQaV}, v{vQaV}, v{vQaC}")
    e("s_nop 7")
    stamp(6)
    e(".p2align 6")
    e("K2_LOOP:")
    loop_body()
    e("K2_DRAIN:")
    for x in rcps(): e(x)
    e(f"v_and_b32 v9, 31, v{vLane}")
    e(f"v_lshrrev_b32 v10, 5, v{vLane}")
    for x in chain(1): e(x)
    for x in writes(): e(x)
    stamp(7)
    c("---- tails; U to LDS ----")
    e(f"ds_read_u16 v8, v{vTail} offset:{QA-2}")
    e("v_mul_u32_u24 v9, 72, v9")
    e("v_lshl_add_u32 v9, v10, 3, v9")
    e(f"v_add_u32 v9, s{sStg}, v9")
    e("s_waitcnt vmcnt(0)")
    for j in range(4):
        e(f"ds_write_b64 v9, {vr(vU+2*j,2)} offset:{16*j}")
    e(f"v_add_u32 v9, {DUMMY}, v{vN16}")
    e(f"v_cmp_eq_u32 s[76:77], v9, v{vWK+6}")
    e("v_lshrrev_b32 v10, 2, v0")
    e("v_and_b32 v14, 3, v0")
    e(f"v_mul_u32_u24 v11, {RST}, v10")
    e("v_lshl_add_u32 v11, v14, 7, v11")
    e(f"v_add_u32 v11, {ROWS}, v11")
    e("s_waitcnt lgkmcnt(0)")
    e(f"v_mul_u32_u24 v8, {RST}, v8")
    e(f"v_add_u32 v8, v8, v{vN16}")
    e(f"v_add_u32 v8, {ROWS}, v8")
    e("s_barrier")
    e("s_mov_b64 exec, s[76:77]")
    e(f"s_cmp_lg_u32 s{sBig}, 0")
    e("s_cbranch_scc1 K2_TAILAT")
    e("ds_read_b128 v[64:67], v8")
    e("s_waitcnt lgkmcnt(0)")
    for i in range(4):
        e(f"v_add_f32 v{64+i}, v{64+i}, v{vAcc+12+i}")
    e("ds_write_b128 v8, v[64:67]")
    e("K2_TAILD:")
    e("s_mov_b64 exec, -1")
    c("---- epilogue ----")
    e("v_and_b32 v12, 31, v10")
    e("v_mul_u32_u24 v12, 72, v12")
    e("v_lshrrev_b32 v13, 5, v10")
    e("v_lshl_add_u32 v12, v13, 13, v12")
    e("v_lshl_add_u32 v12, v14, 4, v12")
    e(f"v_add_u32 v12, {STG}, v12")
    e(f"v_add_u32 v15, 4096, v12")
    e("ds_read2_b64 v[112:115], v12 offset0:0 offset1:1")
    e("ds_read2_b64 v[116:119], v15 offset0:0 offset1:1")
    e(f"v_add_u32 v13, s{sBase}, v10")
    e("v_lshlrev_b32 v13, 7, v13")
    e("v_lshl_add_u32 v13, v14, 4, v13")
    e(f"v_cmp_gt_u32 s[76:77], s{sNN}, v10")
    e("s_waitcnt lgkmcnt(0)")
    e("s_barrier")
    for k in range(8):
        e(f"ds_read_b128 {vr(192+4*k,4)}, v11 offset:{16*k}")
    e(f"s_cmp_eq_u32 s{sMore}, 0")
    e(f"s_cselect_b32 s{sT1}, s{sFirst}, 0")
    e(f"s_cmp_eq_u32 s{sT1}, 0")
    e("s_cbranch_scc1 K2_SLOWTOT")
    e("K2_FIN:")
    eps = f32(1e-6 * 2.0**SC)
    e("s_mov_b64 exec, s[76:77]")
    e("s_cbranch_execz K2_DONE")
    for k in range(4):
        e(f"s_waitcnt lgkmcnt({6-2*k})")
        for it in range(2):
            b = 192 + 8 * k + 2 * it; xr = vXo + 4 * it + k; ur = 112 + 4 * it + k
            e(f"v_add_f32 v{b}, {eps}, v{b}")
            e(f"v_add_f32 v{b+4}, {eps}, v{b+4}")
            e(f"v_rcp_f32 v{b}, v{b}")
            e(f"v_rcp_f32 v{b+4}, v{b+4}")
            e(f"v_lshlrev_b32 v8, 16, v{ur}")
            e(f"v_and_b32 v9, 0xffff0000, v{ur}")
            e(f"v_fmac_f32 v8, v{b}, v{b+1}")
            e(f"v_fmac_f32 v9, v{b+4}, v{b+5}")
            e(f"v_lshlrev_b32 v{b}, 16, v{xr}")
            e(f"v_and_b32 v{b+4}, 0xffff0000, v{xr}")
            e(f"v_max_f32 v8, 0, v8")
            e(f"v_max_f32 v9, 0, v9")
            e(f"v_add_f32 v8, v8, v{b}")
            e(f"v_add_f32 v9, v9, v{b+4}")
            e(f"v_cvt_pk_bf16_f32 v{xr}, v8, v9")
    for it in range(2):
        e(f"buffer_store_dwordx4 {vr(vXo+4*it,4)}, v13, {sr(sOut,4)}, 0 offen offset:{64*it}")
    e("K2_DONE:")
    if OPT['stamp']:
        e("s_mov_b64 exec, -1")
        stamp(8)
        diag_out(1, 9, sWave, sWs, sNT)
    e("K2_END:")
    e("s_endpgm")
    c("---- rare paths ----")
    e("K2_TAILAT:")
    for i in range(4):
        e(f"ds_add_f32 v8, v{vAcc+12+i} offset:{4*i}")
    e("s_branch K2_TAILD")
    e("K2_FAIL:")
    e(f"s_movk_i32 s{sLW}, 144")
    e("s_waitcnt vmcnt(0) lgkmcnt(0)")
    e("s_barrier")
    e("s_branch K2_ROUND")
    e("K2_SLOWTOT:")
    e("v_lshlrev_b32 v14, 7, v0")
    e(f"s_lshl_b32 s{sT1}, s2, 16")
    e(f"s_add_u32 s{sT1}, s{sT1}, {WS_TOT}")
    e("s_waitcnt lgkmcnt(0)")
    e(f"s_cmp_lg_u32 s{sFirst}, 0")
    e("s_cbranch_scc1 K2_ST1")
    for r in range(8):
        e(f"buffer_load_dwordx4 {vr(224+4*r,4)}, v14, {sr(sWs,4)}, s{sT1} offen offset:{16*r} sc1")
    e("s_waitcnt vmcnt(0)")
    for r in range(32):
        e(f"v_add_f32 v{192+r}, v{192+r}, v{224+r}")
    e(f"s_cmp_eq_u32 s{sMore}, 0")
    e("s_cbranch_scc1 K2_FIN")
    e("K2_ST1:")
    for r in range(8):
        e(f"buffer_store_dwordx4 {vr(192+4*r,4)}, v14, {sr(sWs,4)}, s{sT1} offen offset:{16*r} sc1")
    e(f"s_mov_b32 s{sFirst}, 0")
    e(f"s_add_u32 s{sJ0}, s{sJ0}, s{sLW}")
    e("s_waitcnt vmcnt(0)")
    e("s_barrier")
    e("s_branch K2_ROUND")

def trace_code():
    e("s_memtime s[44:45]")
    e("s_memrealtime s[46:47]")
    e(f"s_lshl_b32 s48, s2, 3")
    e(f"s_add_u32 s48, s48, s{sWave}")
    e(f"s_lshl_b32 s48, s48, 4")
    e(f"s_add_u32 s48, s48, s{sCnt}")
    e(f"s_lshl_b32 s48, s48, 3")
    e(f"s_add_u32 s48, s48, {WS_DIAG+0x80000}")
    e("s_waitcnt lgkmcnt(0)")
    e("v_mov_b32 v8, s44")
    e("v_mov_b32 v9, s46")
    e("v_mov_b32 v10, 0")
    e("s_mov_b64 exec, 1")
    e(f"buffer_store_dwordx2 v[8:9], v10, {sr(sWs,4)}, s48 offen")
    e("s_mov_b64 exec, -1")

def loop_body():
    global L
    n0 = len(L)
    loop_body0()
    k = OPT['kill']
    body = L[n0:]; del L[n0:]
    for l in body:
        t = l.strip()
        if k & 1 and t.startswith('ds_read'): continue
        if k & 2 and t.startswith('ds_write'): continue
        if k & 4 and t.startswith('buffer_load'): continue
        if k & 8 and t.startswith('s_waitcnt') and not OPT['trace']: continue
        if k & 16 and t.startswith('v_add_u32'): continue
        if k & 32 and t.startswith('v_fmaak'): l = l.replace('v_fmaak_f32','v_mul_f32').rsplit(',',1)[0]
        if k & 64 and t.startswith('v_fma_f32'): l = l.replace('v_fma_f32','v_mul_f32').rsplit(',',1)[0]
        if k & 128 and t.startswith('v_and_b32'): continue
        L.append(l)
def loop_body0():
    e("s_setprio 1")
    ex = [[] for _ in range(9)]
    x = rd_x(); ix = rd_idx()
    ex[0] = rd_aq() + rd_bq(0)
    ex[1] = rd_bq(1) + ["s_waitcnt vmcnt(0)"]
    ex[2] = [x[0], ix[0]]
    ex[4] = [x[1], ix[1]]
    ex[5] = [ix[2], ix[3]]
    ex[6] = [x[2]]
    ex[8] = [x[3]]
    hi_phase(mfmas(1), rcps() + exps(0), ex)
    e("s_setprio 0")
    for y in mix(chain(1), avals(0)): e(y)
    e(f"v_add_u32 v{vIxA}, 64, v{vIxA}")
    e(f"v_add_u32 v{vAqA}, v{vAqA}, v{vAqI}")
    for y in frac(0): e(y)
    e("s_setprio 1")
    e("s_waitcnt lgkmcnt(0)")
    ex = [[] for _ in range(9)]
    w = writes(); d = dma(); wk = rd_wk()
    ex[0] = [d[0], w[0]]; ex[1] = [d[1], w[1]]; ex[2] = [d[2], w[2]]
    ex[4] = [d[3], w[3]]; ex[5] = wk; ex[7] = rd_qa() + [f"s_sub_u32 s{sCnt}, s{sCnt}, 1"]
    hi_phase(mfmas(0), rcps() + exps(1), ex)
    e("s_setprio 0")
    av = avals(1)
    for y in av[:8]: e(y)
    e("s_waitcnt lgkmcnt(0)")
    for y in mix(chain(0), av[8:]): e(y)
    for j in range(4):
        e(f"v_add_u32 v{vWK+2*j}, v{vWK+2*j}, v{vN16}")
    e(f"v_add_u32 v{vWkA}, 32, v{vWkA}")
    e(f"v_add_u32 v{vQaV}, v{vQaV}, v{vQaC}")
    e(f"v_add_u32 v{vQaA}, 16, v{vQaA}")
    for y in frac(1): e(y)
    if OPT['trace']: trace_code()
    e(f"s_cmp_lg_u32 s{sCnt}, 0")
    e("s_cbranch_scc1 K2_LOOP")

def kd(name, vg, sg):
    L.extend([f".amdhsa_kernel {name}",
              f"  .amdhsa_next_free_vgpr {vg}",
              f"  .amdhsa_next_free_sgpr {sg}",
              f"  .amdhsa_accum_offset {(vg+3)//4*4}",
              "  .amdhsa_group_segment_fixed_size 0",
              "  .amdhsa_kernarg_size 96",
              "  .amdhsa_user_sgpr_count 2",
              "  .amdhsa_user_sgpr_kernarg_segment_ptr 1",
              "  .amdhsa_system_sgpr_workgroup_id_x 1",
              ".end_amdhsa_kernel"])

hdr = open("cdna_kernels/%s.s.ref" % NAME).read().split("\n")
for l in hdr:
    if l.startswith("; Override") : break
    L.append(l)
L.append(f"; @launch kernel=part_kernel grid=(256,1,1) block=(896,1,1) lds={K1_LDS}")
L.append(f"; @launch kernel={NAME}_kernel grid=(256,1,1) block=(512,1,1) lds={K2_LDS}")
L.append('.amdgcn_target "amdgcn-amd-amdhsa--gfx950"')
L.append(".text")
L.append(".globl part_kernel")
L.append(".type part_kernel,@function")
L.append(f".globl {NAME}_kernel")
L.append(f".type {NAME}_kernel,@function")
sSt = 54
k1()
sSt = 82
k2()
L.append('.section .rodata,"a"')
L.append(".p2align 6")
kd("part_kernel", 64, 74 if OPT["stamp"] else 64)
L.append(".p2align 6")
kd(f"{NAME}_kernel", 256, 102)
open(sys.argv[1], "w").write("\n".join(L) + "\n")
print("K1_LDS", K1_LDS, "K2_LDS", K2_LDS, "ATAB", ATAB, "STG", STG, "ROWS", ROWS)
```

```python
import sys, struct

NAME = "standalone__edge_featured_mpnn_gatedgcn__graph"
OPT = dict(stamp=0, trace=0, stf=1, ldf=3, sched=0, remap=1, nodefirst=0, kill=0, pf=1, h1=4, dbg=0)
for a in sys.argv[2:]:
    k, v = a.split('=')
    OPT[k] = int(v)

L = []
def e(s=""): L.append("    " + s if s and not s.endswith(":") else s)
def c(s): L.append("    ; " + s)
def f32(x): return "0x%08x" % struct.unpack("<I", struct.pack("<f", x))[0]
def vr(a, n): return f"v[{a}:{a+n-1}]"
def sr(a, n): return f"s[{a}:{a+n-1}]"
FL = ["", " sc1", " sc0 sc1", " nt"]

N = 25000; E = 800000
CH = 3136
CHB = CH * 12
BM = 171799
BK = 6399988
WS_T = 0
WS_IMG = 0x40000
WS_REC = 0x80000
WS_AU = 0xA00000
WS_TOT = 0x1100000
WS_DIAG = 0x2F00000
WS_SIZE = 0x3000000
LOG2E = 1.4426950408889634
NODE_WGS = 196
RFLAG = 0x21800000
sSt = 82

def srd(d, b, size, stride=0):
    e(f"s_mov_b32 s{d}, s{b}")
    e(f"s_and_b32 s{d+1}, s{b+1}, 0xffff")
    if stride:
        e(f"s_or_b32 s{d+1}, s{d+1}, {stride<<16:#x}")
    e(f"s_mov_b32 s{d+2}, {size}")
    e(f"s_mov_b32 s{d+3}, 0x20000")

def scan64(v):
    for m in ("row_shr:1 row_mask:0xf", "row_shr:2 row_mask:0xf", "row_shr:4 row_mask:0xf",
              "row_shr:8 row_mask:0xf", "row_bcast:15 row_mask:0xa", "row_bcast:31 row_mask:0xc"):
        e("s_nop 1")
        e(f"v_add_u32_dpp v{v}, v{v}, v{v} {m} bank_mask:0xf")

def stamp(i):
    if OPT['stamp']:
        e(f"s_memtime {sr(sSt+2*i,2)}")
        if i == 0:
            e(f"s_memrealtime {sr(sSt+18,2)}")
def diag_out(kidx, nst, swave, ssrd, extra=None, vt=8):
    if OPT['dbg']:
        e("s_memrealtime s[42:43]")
        e("s_load_dwordx2 s[44:45], s[0:1], 80")
        e("s_waitcnt lgkmcnt(0)")
        e(f"s_cmp_lg_u32 s2, {OPT['dbg']}")
        e(f"s_cbranch_scc1 K{kidx+1}_END")
        e(f"s_cmp_lg_u32 s{swave}, 5")
        e(f"s_cbranch_scc1 K{kidx+1}_END")
        e(f"s_add_u32 s44, s44, {512*(1-kidx)}")
        e("s_addc_u32 s45, s45, 0")
        srd(48, 44, 64)
        e(f"v_mov_b32 v{vt}, 0")
        e("s_mov_b64 exec, 1")
        sel = [(2,3,5,6,8),(1,2,4,5,6,7,8)][kidx]
        o = [0, 7][kidx]
        e(f"v_mov_b32 v{vt+1}, s{sSt+18}")
        e(f"buffer_store_dword v{vt+1}, v{vt}, s[48:51], 0 offen offset:{4*o}")
        for n, i in enumerate(sel):
            e(f"s_sub_u32 s40, s{sSt+2*i}, s{sSt}")
            e(f"v_mov_b32 v{vt+1}, s40")
            e(f"buffer_store_dword v{vt+1}, v{vt}, s[48:51], 0 offen offset:{4*(o+1+n)}")
        e(f"v_mov_b32 v{vt+1}, s42")
        e(f"buffer_store_dword v{vt+1}, v{vt}, s[48:51], 0 offen offset:{4*(o+1+len(sel))}")
        return
    e("s_memrealtime s[42:43]")
    e("s_waitcnt lgkmcnt(0)")
    e(f"s_lshl_b32 s39, s2, 4")
    e(f"s_add_u32 s39, s39, s{swave}")
    e(f"s_lshl_b32 s39, s39, 6")
    e(f"s_add_u32 s39, s39, {WS_DIAG + kidx*0x40000}")
    e(f"v_mov_b32 v{vt}, 0")
    e("s_mov_b64 exec, 1")
    for i in range(1, nst):
        e(f"s_sub_u32 s40, s{sSt+2*i}, s{sSt}")
        e(f"v_mov_b32 v{vt+1}, s40")
        e(f"buffer_store_dword v{vt+1}, v{vt}, {sr(ssrd,4)}, s39 offen offset:{4*(i-1)}")
    if extra is not None:
        e(f"v_mov_b32 v{vt+1}, s{extra}")
        e(f"buffer_store_dword v{vt+1}, v{vt}, {sr(ssrd,4)}, s39 offen offset:48")
    e("s_getreg_b32 s40, hwreg(HW_REG_HW_ID)")
    e(f"v_mov_b32 v{vt+1}, s40")
    e(f"buffer_store_dword v{vt+1}, v{vt}, {sr(ssrd,4)}, s39 offen offset:52")
    e(f"v_mov_b32 v{vt+1}, s{sSt+18}")
    e(f"buffer_store_dword v{vt+1}, v{vt}, {sr(ssrd,4)}, s39 offen offset:56")
    e(f"v_mov_b32 v{vt+1}, s42")
    e(f"buffer_store_dword v{vt+1}, v{vt}, {sr(ssrd,4)}, s39 offen offset:60")

def mfma(d, a, b, cc):
    cs = "0" if cc is None else vr(cc, 16)
    return f"v_mfma_f32_32x32x16_bf16 {vr(d,16)}, {vr(a,4)}, {vr(b,4)}, {cs}"

K1_HIST = 0
K1_BASE = 1024
K1_STG = 2048
NST = 264
K1_LDS = K1_STG + CHB

def k1():
    st = FL[OPT['stf']]; ld = FL[OPT['ldf']]
    e(".p2align 8")
    e("part_kernel:")
    e("s_cmp_ge_u32 s2, 256")
    e("s_cbranch_scc1 K1_END")
    stamp(0)
    e("s_load_dwordx4 s[4:7], s[0:1], 8")
    e("s_load_dwordx2 s[8:9], s[0:1], 24")
    e("s_load_dwordx2 s[10:11], s[0:1], 88")
    e("v_lshrrev_b32 v1, 6, v0")
    e("s_mul_i32 s3, s2, %d" % (CH * 4))
    e("v_readfirstlane_b32 s33, v1")
    e("v_lshl_add_u32 v2, v0, 4, s3")
    e("v_lshlrev_b32 v3, 1, v2")
    e("s_movk_i32 s34, 784")
    e("s_mov_b32 s35, %d" % (E * 4))
    e("v_cmp_gt_u32 s[36:37], s34, v0")
    e("v_cmp_gt_u32 vcc, s35, v2")
    e("v_and_b32 v20, 63, v0")
    e("v_lshlrev_b32 v20, 4, v20")
    e("v_mov_b32 v24, 0")
    e("v_mov_b32 v25, 0")
    e("v_mov_b32 v26, 0")
    e("v_mov_b32 v27, 0")
    e("s_and_b64 s[38:39], s[36:37], vcc")
    e("s_cmp_eq_u32 s33, 13")
    e("s_cbranch_scc1 K1_IMG")
    e("s_cmp_lg_u32 s33, 0")
    e("s_cbranch_scc1 K1_NOZERO")
    e(f"ds_write_b128 v20, v[24:27] offset:{K1_HIST}")
    e("K1_NOZERO:")
    e("s_waitcnt lgkmcnt(0)")
    stamp(1)
    srd(12, 8, E * 4)
    e("s_mov_b64 exec, s[38:39]")
    e("buffer_load_dwordx4 v[4:7], v2, s[12:15], 0 offen" + ld)
    srd(16, 6, E * 4)
    srd(20, 4, E * 8)
    srd(24, 10, WS_SIZE)
    e("v_mov_b32 v21, 12")
    e("s_mov_b32 s34, %d" % BM)
    e("s_barrier")
    stamp(2)
    e("buffer_load_dwordx4 v[8:11], v2, s[16:19], 0 offen" + ld)
    e("buffer_load_dwordx4 v[12:15], v3, s[20:23], 0 offen" + ld)
    e("buffer_load_dwordx4 v[16:19], v3, s[20:23], 0 offen offset:16" + ld)
    e("s_waitcnt vmcnt(3)")
    stamp(3)
    for i in range(4):
        e(f"v_mul_u32_u24 v{28+i}, s34, v{4+i}")
    for i in range(4):
        e(f"v_lshrrev_b32 v{28+i}, 22, v{28+i}")
    for i in range(4):
        e(f"v_and_b32 v{28+i}, 0x3fc, v{28+i}")
        e(f"ds_add_rtn_u32 v{32+i}, v{28+i}, v21 offset:{K1_HIST}")
    for i in range(4):
        e(f"v_and_b32 v{4+i}, 127, v{4+i}")
    e("s_mov_b64 exec, -1")
    e("s_waitcnt lgkmcnt(0)")
    e("s_barrier")
    stamp(4)
    e(f"ds_read_b128 v[24:27], v20 offset:{K1_HIST}")
    e("s_waitcnt lgkmcnt(0)")
    e("v_add_u32 v37, v24, v25")
    e("v_add_u32 v38, v37, v26")
    e("v_add_u32 v22, v38, v27")
    e("v_mov_b32 v23, v22")
    scan64(23)
    e("v_sub_u32 v40, v23, v22")
    e("v_add_u32 v41, v40, v24")
    e("v_add_u32 v42, v40, v37")
    e("v_add_u32 v43, v40, v38")
    e(f"ds_write_b128 v20, v[40:43] offset:{K1_BASE}")
    e("s_waitcnt lgkmcnt(0)")
    e("s_mov_b64 exec, s[38:39]")
    for i in range(4):
        e(f"ds_read_b32 v{28+i}, v{28+i} offset:{K1_BASE}")
    for i in range(4):
        e(f"v_add_u32 v{32+i}, {K1_STG}, v{32+i}")
    e("s_waitcnt vmcnt(2)")
    for i in range(4):
        e(f"v_lshl_or_b32 v{8+i}, v{4+i}, 18, v{8+i}")
    e("s_waitcnt lgkmcnt(0)")
    for i in range(4):
        e(f"v_add_u32 v{28+i}, v{28+i}, v{32+i}")
        e(f"ds_write_b32 v{28+i}, v{8+i} offset:8")
    for i in range(4):
        if i % 2 == 0:
            e(f"s_waitcnt vmcnt({1-i//2})")
        e(f"ds_write2_b32 v{28+i}, v{12+2*i}, v{13+2*i} offset0:0 offset1:1")
    stamp(5)
    e("s_mov_b64 exec, -1")
    e("s_cmp_lg_u32 s33, 12")
    e("s_cbranch_scc1 K1_NOT")
    e("s_lshl_b32 s3, s2, 10")
    for i in range(4):
        e(f"v_lshl_or_b32 v{44+i}, v{24+i}, 16, v{40+i}")
    e(f"buffer_store_dwordx4 v[44:47], v20, s[24:27], s3 offen" + st)
    e("K1_NOT:")
    e("v_lshlrev_b32 v2, 4, v0")
    e("s_mul_i32 s3, s2, %d" % CHB)
    e("s_add_u32 s3, s3, %d" % WS_REC)
    e("s_add_u32 s34, s3, %d" % (CHB // 3))
    e("s_add_u32 s35, s34, %d" % (CHB // 3))
    e("s_waitcnt lgkmcnt(0)")
    e("s_barrier")
    stamp(6)
    e("s_mov_b64 exec, s[36:37]")
    for k in range(3):
        e(f"ds_read_b128 {vr(4+4*k,4)}, v2 offset:{K1_STG + k*(CHB//3)}")
    for k, s in enumerate(("s3", "s34", "s35")):
        e(f"s_waitcnt lgkmcnt({2-k})")
        e(f"buffer_store_dwordx4 {vr(4+4*k,4)}, v2, s[24:27], {s} offen" + st)
    if OPT['stamp']:
        stamp(7)
        e("s_waitcnt vmcnt(0)")
        stamp(8)
        diag_out(0, 9, 33, 24, None, vt=50)
    e("K1_END:")
    e("s_endpgm")

    e("K1_IMG:")
    e("s_load_dwordx4 s[40:43], s[0:1], 32")
    e("s_load_dwordx4 s[44:47], s[0:1], 56")
    e("s_load_dwordx2 s[28:29], s[0:1], 48")
    e("v_and_b32 v1, 31, v0")
    e("s_lshl_b32 s3, s2, 5")
    e("v_lshlrev_b32 v6, 1, v1")
    e("v_add_u32 v1, s3, v1")
    c("q=(d>>8)&7 = nt*4+s ; l'=(d>>2)&63 ; reg=d&3 ; k=16s+8(l'>>5)+2reg ; ch=32nt+(l'&31)")
    e("v_bfe_u32 v2, v1, 8, 2")
    e("v_lshlrev_b32 v2, 4, v2")
    e("v_bfe_u32 v3, v1, 7, 1")
    e("v_lshl_add_u32 v2, v3, 3, v2")
    e("v_and_b32 v3, 3, v1")
    e("v_lshl_add_u32 v2, v3, 1, v2")
    e("v_lshlrev_b32 v2, 7, v2")
    e("v_bfe_u32 v3, v1, 2, 5")
    e("v_lshl_add_u32 v2, v3, 1, v2")
    e("v_bfe_u32 v3, v1, 10, 1")
    e("v_lshl_add_u32 v2, v3, 6, v2")
    e("s_lshr_b32 s3, s2, 6")
    e("s_waitcnt lgkmcnt(0)")
    srd(24, 10, WS_SIZE)
    e("s_cmp_eq_u32 s3, 0")
    e("s_cselect_b32 s48, s42, s46")
    e("s_cselect_b32 s49, s43, s47")
    e("s_cselect_b32 s52, %s, 1.0" % f32(-LOG2E))
    e("s_cmp_eq_u32 s3, 2")
    e("s_cselect_b32 s48, s40, s48")
    e("s_cselect_b32 s49, s41, s49")
    e("s_cmp_eq_u32 s3, 3")
    e("s_cselect_b32 s48, s44, s48")
    e("s_cselect_b32 s49, s45, s49")
    e("s_and_b32 s49, s49, 0xffff")
    e("s_mov_b32 s50, 8192")
    e("s_mov_b32 s51, 0x20000")
    e("buffer_load_ushort v4, v2, s[48:51], 0 offen")
    e("buffer_load_ushort v5, v2, s[48:51], 0 offen offset:128")
    srd(12, 28, 512)
    e("s_cmp_lg_u32 s2, 0")
    e("s_cbranch_scc1 K1_NOWC")
    for r in range(4):
        e(f"buffer_load_ushort v{8+r}, v6, s[12:15], 0 offen offset:{128*r}")
        e(f"buffer_load_ushort v{12+r}, v6, s[12:15], 0 offen offset:{128*r+64}")
    e("K1_NOWC:")
    e("s_barrier")
    e("s_barrier")
    e("v_lshlrev_b32 v1, 2, v1")
    e("s_mov_b32 s3, %d" % WS_IMG)
    e("s_waitcnt vmcnt(0)")
    e("v_lshlrev_b32 v4, 16, v4")
    e("v_lshlrev_b32 v5, 16, v5")
    e("v_mul_f32 v4, s52, v4")
    e("v_mul_f32 v5, s52, v5")
    e("v_cvt_pk_bf16_f32 v4, v4, v5")
    e("s_mov_b32 exec_hi, 0")
    e("buffer_store_dword v4, v1, s[24:27], s3 offen" + st)
    e("s_mov_b64 exec, -1")
    e("s_cmp_lg_u32 s2, 0")
    e("s_cbranch_scc1 K1_NOWC2")
    e("s_mov_b32 s3, %d" % (WS_IMG + 32768))
    for r in range(8):
        e(f"v_lshlrev_b32 v{8+r}, 16, v{8+r}")
        e(f"v_mul_f32 v{8+r}, s52, v{8+r}")
    for r in range(4):
        e(f"v_cvt_pk_bf16_f32 v{16+r}, v{8+2*r}, v{9+2*r}")
    e("s_mov_b32 exec_hi, 0")
    e(f"v_mov_b32 v16, {RFLAG:#x}")
    e("v_mov_b32 v17, 0")
    e(f"v_mov_b32 v18, {RFLAG:#x}")
    e("v_mov_b32 v19, 0")
    e("s_mov_b64 exec, -1")
    e("buffer_store_dwordx4 v[16:19], v20, s[24:27], s3 offen" + st)
    e("K1_NOWC2:")
    e("s_barrier")
    e("s_endpgm")

CAP = 3584
CNT = 0
MORE = 512
BI = 528
M4 = 1280
E8 = M4 + CAP * 4 + 256
QWK = E8 + CAP * 8 + 256
QA = QWK + (CAP // 4) * 8 + 256
AST = 136
RST = 528
ATAB = QA + (CAP // 4) * 4 + 256
STG = (ATAB + 98 * AST + 1023) // 1024 * 1024
ROWS = STG + 32768
IMG = ROWS
XOWN = ROWS + 33792
DUMMY = ROWS + 98 * RST
K2_LDS = DUMMY + 1024
assert XOWN + 16384 <= DUMMY
assert E8 % 16 == 0 and QWK % 16 == 0 and K2_LDS <= 160 * 1024 and ATAB < 65536, (K2_LDS, ATAB)
SC = 24
PADV = 0x7F007F00
RFLAG = 0x21800000

vW = 128; vD = [192, 224]; vX = 112; vBq = [104, 108]; vAq = 100; vAcc = 84
vS = 72; vN = 76; vP = 80; vWK = 64; vIdx = 56; vC = 40; vXo = 24; vU = 32; vXa = 20
vLane = 1; vAqA = 2; vAqI = 3; vIxA = 4; vQaA = 5; vQaV = 6; vQaC = 7
vWkA = 16; vN16 = 17; vC1 = 18; vTail = 19
vTe = 8
sX = 4; sXr = 8; sWs = 12; sOut = 16; sWc = 20
sBase = 24; sNN = 25; sWave = 26; sJ0 = 27; sLW = 28; sFirst = 29; sInit = 30; sQt = 31; sTt = 32
sNT = 33; sQw = 34; sStg = 35; sMore = 36; sBig = 37; sCnt = 38; sT0 = 39; sT1 = 40; sT2 = 41
sMk = 44

def G(b): return vD[b]
def H(b): return vD[b] + 16
def Wg(nt, s): return vW + (nt * 4 + s) * 4
def Wh(nt, s): return vW + 32 + (nt * 4 + s) * 4
def mfmas(nt):
    g = G(nt); h = H(nt)
    return [mfma(g, vAq, vBq[nt], vC),
            mfma(h, vX, Wh(nt,0), None), mfma(g, vX, Wg(nt,0), g),
            mfma(h, vX+4, Wh(nt,1), h), mfma(g, vX+4, Wg(nt,1), g),
            mfma(h, vX+8, Wh(nt,2), h), mfma(g, vX+8, Wg(nt,2), g),
            mfma(h, vX+12, Wh(nt,3), h), mfma(g, vX+12, Wg(nt,3), g)]
def acc(nt, j): return vAcc + j * 4 + nt * 2
def chain(nt):
    o = []
    for j in range(4):
        a = acc(nt, j); p = acc(nt, (j + 3) % 4); k = vWK + 2 * j + 1
        o += [f"v_and_b32 v{a}, v{p}, v{k}", f"v_and_b32 v{a+1}, v{p+1}, v{k}",
              f"v_fmac_f32 v{a}, v{vS+j}, v{vP+j}", f"v_fmac_f32 v{a+1}, v{vN+j}, v{vP+j}"]
    return o
def writes(): return [f"ds_write_b128 v{vWK+2*j}, {vr(vAcc+4*j,4)}" for j in range(4)]
def avals(nt):
    g = G(nt)
    return [f"v_fmaak_f32 v{g+r}, v{g+r}, v{vC1}, {f32(2.0**-SC)}" for r in range(16)]
def frac(nt):
    g = G(nt); h = H(nt); o = []
    J = range(4)
    o += [f"v_add_f32 v{vS+j}, v{g+4*j}, v{g+4*j+1}" for j in J]
    o += [f"v_mul_f32 v{vP+j}, v{g+4*j}, v{g+4*j+1}" for j in J]
    o += [f"v_mul_f32 v{vN+j}, v{h+4*j}, v{g+4*j+1}" for j in J]
    o += [f"v_fmac_f32 v{vN+j}, v{h+4*j+1}, v{g+4*j}" for j in J]
    for i in (2, 3):
        o += [f"v_mul_f32 v{h+4*j+i}, v{h+4*j+i}, v{vP+j}" for j in J]
        o += [f"v_fma_f32 v{vS+j}, v{vS+j}, v{g+4*j+i}, v{vP+j}" for j in J]
        o += [f"v_fma_f32 v{vN+j}, v{vN+j}, v{g+4*j+i}, v{h+4*j+i}" for j in J]
        o += [f"v_mul_f32 v{vP+j}, v{vP+j}, v{g+4*j+i}" for j in J]
    return o
def mix(a, b):
    o = []; a = list(a); b = list(b)
    while a or b:
        if a: o += a[:2]; a = a[2:]
        if b: o += b[:2]; b = b[2:]
    return o
def exps(nt): return [f"v_exp_f32_e64 v{G(nt)+r}, v{G(nt)+r} clamp" for r in range(16)]
def rcps(): return [f"v_rcp_f32 v{vP+j}, v{vP+j}" for j in range(4)]
def rd_x(): return [f"ds_read_b128 {vr(vX+4*s,4)}, v{vXa+s}" for s in range(4)]
def rd_aq(): return [f"ds_read2_b32 {vr(vAq,2)}, v{vAqA} offset0:0 offset1:1"]
def rd_idx(): return [f"ds_read_u16 v{vIdx+2*i}, v{vIxA} offset:{M4+4*i}" for i in range(4)]
def rd_qa(): return [f"ds_read_u16 v{vQaV}, v{vQaA} offset:{QA}"]
def rd_bq(nt): return [f"ds_read_b64_tr_b16 {vr(vBq[nt]+2,2)}, v{vQaV} offset:{ATAB+64*nt}"]
def rd_wk(): return [f"ds_read_b128 {vr(vWK,4)}, v{vWkA} offset:{QWK}", f"ds_read_b128 {vr(vWK+4,4)}, v{vWkA} offset:{QWK+16}"]
def dma(): return [f"buffer_load_dwordx4 {vr(vIdx+2*i,2)}, {sr(sX,4)}, 0 idxen offen offset:{1024*i} lds" for i in range(4)]

def hi_phase(ms, trans, extras, per=(2, 2, 2, 3, 2, 2, 3, 2, 2)):
    t = 0
    for g in range(9):
        e(ms[g])
        for _ in range(per[g]):
            e(trans[t]); t += 1
        for x in extras[g]:
            e(x)
    assert t == 20

def k2():
    e(".p2align 8")
    e(f"{NAME}_kernel:")
    e("s_cmp_ge_u32 s2, 256")
    e("s_cbranch_scc1 K2_END")
    stamp(0)
    e("s_load_dwordx2 s[52:53], s[0:1], 88")
    e("s_load_dwordx2 s[44:45], s[0:1], 0")
    e("s_load_dwordx2 s[48:49], s[0:1], 72")
    e("s_and_b32 s3, s2, 7")
    e("s_lshr_b32 s2, s2, 3")
    e("s_lshl_b32 s3, s3, 5")
    e("s_or_b32 s2, s2, s3")
    e(f"v_and_b32 v{vLane}, 63, v0")
    e("v_lshrrev_b32 v2, 6, v0")
    e(f"s_mul_i32 s{sBase}, s2, {BK}")
    e(f"v_readfirstlane_b32 s{sWave}, v2")
    e(f"s_add_u32 s{sNN}, s{sBase}, {BK+65535}")
    e(f"s_add_u32 s{sBase}, s{sBase}, 65535")
    e(f"s_lshr_b32 s{sBase}, s{sBase}, 16")
    e(f"s_lshr_b32 s{sNN}, s{sNN}, 16")
    e(f"s_sub_u32 s{sNN}, s{sNN}, s{sBase}")
    e(f"s_mov_b32 s{sJ0}, 0")
    e(f"s_movk_i32 s{sLW}, 384")
    e(f"s_mov_b32 s{sFirst}, 1")
    e(f"s_lshl_b32 s{sStg}, s{sWave}, 12")
    e(f"s_add_u32 s{sStg}, s{sStg}, {STG}")
    e("s_waitcnt lgkmcnt(0)")
    srd(sWs, 52, WS_SIZE)
    e("s_sub_u32 s50, s44, 3072")
    e("s_subb_u32 s51, s45, 0")
    srd(sX, 50, N, stride=128)
    srd(sXr, 44, N * 128)
    srd(sOut, 48, N * 128)
    e("K2_ROUND:")
    e("v_and_b32 v64, 0x1f0, v0")
    e("v_lshlrev_b32 v64, 9, v64")
    e(f"s_lshl_b32 s{sT0}, s2, 2")
    e(f"s_add_u32 s{sT1}, s{sT0}, 4096")
    for i in range(8):
        e(f"buffer_load_dword v{vTe+i}, v64, {sr(sWs,4)}, s{sT0 if i<4 else sT1} offen offset:{(i%4)*1024}")
    c("zero CNT[128] and MORE")
    e("v_lshlrev_b32 v64, 2, v0")
    e("v_mov_b32 v66, 0")
    e("s_movk_i32 s42, 132")
    e("v_cmp_gt_u32 vcc, s42, v0")
    e("s_mov_b64 exec, vcc")
    e(f"ds_write_b32 v64, v66 offset:{CNT}")
    e("s_mov_b64 exec, -1")
    c("---- lane constants ----")
    e(f"v_and_b32 v67, 31, v{vLane}")
    e(f"v_lshrrev_b32 v69, 5, v{vLane}")
    e(f"v_bfe_u32 v70, v{vLane}, 2, 1")
    e(f"v_bfe_u32 v71, v{vLane}, 3, 2")
    e("v_and_b32 v72, 1, v71")
    e("v_lshlrev_b32 v72, 4, v72")
    e("v_mov_b32 v73, 0x3f80")
    e("v_cmp_eq_u32 vcc, v70, v69")
    e("v_lshlrev_b32 v72, v72, v73")
    e("v_cmp_gt_u32 s[76:77], 2, v71")
    e("v_cndmask_b32 v72, 0, v72, vcc")
    e(f"v_and_b32 v73, 3, v{vLane}")
    e(f"v_cndmask_b32 v{vAq+2}, 0, v72, s[76:77]")
    e(f"v_cndmask_b32 v{vAq+3}, v72, 0, s[76:77]")
    e(f"v_and_b32 v72, 7, v{vLane}")
    e("v_lshlrev_b32 v74, 2, v69")
    e("v_xor_b32 v72, v72, v74")
    c("early copies: operand images, own x rows")
    e(f"v_lshlrev_b32 v65, 4, v{vLane}")
    e(f"s_and_b32 s{sT2}, s{sWave}, 1")
    e(f"s_lshl_b32 s{sT2}, s{sT2}, 1")
    e(f"v_xor_b32 v74, s{sT2}, v72")
    e("v_lshlrev_b32 v74, 4, v74")
    e(f"v_lshrrev_b32 v75, 3, v{vLane}")
    e("v_lshl_add_u32 v74, v75, 9, v74")
    e("v_xor_b32 v75, 16, v74")
    e("v_add_u32 v75, 128, v75")
    e(f"s_lshr_b32 s{sT0}, s{sWave}, 1")
    e(f"s_lshl_b32 s{sT0}, s{sT0}, 5")
    e(f"s_add_u32 s{sT0}, s{sT0}, s{sBase}")
    e(f"s_add_u32 s{sT0}, s{sT0}, s{sT2}")
    e(f"s_lshl_b32 s{sT0}, s{sT0}, 7")
    e(f"s_lshl_b32 s{sT1}, s{sWave}, 11")
    e(f"s_add_u32 m0, s{sT1}, {XOWN}")
    e(f"s_lshl_b32 s{sT1}, s{sWave}, 12")
    e(f"buffer_load_dwordx4 v74, {sr(sXr,4)}, s{sT0} offen lds")
    e("s_add_u32 m0, m0, 1024")
    e(f"s_add_u32 s{sT2}, s{sT1}, {WS_IMG}")
    e(f"buffer_load_dwordx4 v75, {sr(sXr,4)}, s{sT0} offen lds")
    e(f"s_add_u32 m0, s{sT1}, {IMG}")
    e(f"s_mov_b32 s{sT0}, {WS_IMG+32768}")
    for i in range(4):
        e(f"buffer_load_dwordx4 v65, {sr(sWs,4)}, s{sT2} offen offset:{1024*i} lds")
    e(f"buffer_load_dwordx4 v[120:123], v65, {sr(sWs,4)}, s{sT0} offen")
    for i in range(4):
        e(f"v_xor_b32 v74, {i}, v72")
        e(f"v_lshlrev_b32 v74, 4, v74")
        e(f"v_add_u32 v{vIdx+2*i+1}, {3072-1024*i}, v74")
    e(f"v_bfe_u32 v74, v{vLane}, 2, 3")
    e(f"v_bfe_u32 v75, v{vLane}, 4, 1")
    e("v_lshl_add_u32 v72, v75, 2, v73")
    e("v_lshlrev_b32 v76, 10, v73")
    e("v_lshl_add_u32 v76, v74, 7, v76")
    e(f"v_add_u32 v76, s{sStg}, v76")
    e("v_xor_b32 v72, v72, v69")
    for s_ in range(4):
        e(f"v_xor_b32 v74, {2*s_}, v72")
        e(f"v_lshl_add_u32 v{vXa+s_}, v74, 4, v76")
    e(f"v_lshlrev_b32 v{vN16}, 4, v67")
    e(f"v_mov_b32 v{vC1}, {f32(2.0**SC)}")
    e(f"v_lshlrev_b32 v{vAqI}, 6, v69")
    e(f"v_add_u32 v{vAqI}, 64, v{vAqI}")
    e("v_lshlrev_b32 v73, 3, v73")
    e(f"v_lshl_add_u32 v{vQaC}, v75, 5, v73")
    c("A table write address and mask")
    e(f"s_lshr_b32 s{sT0}, s{sWave}, 1")
    e(f"s_lshl_b32 s{sT0}, s{sT0}, 5")
    e(f"v_add_u32 v70, s{sT0}, v67")
    e(f"v_cmp_gt_u32 s[78:79], s{sNN}, v70")
    e(f"v_mul_u32_u24 v70, {AST}, v70")
    e("v_lshl_add_u32 v70, v69, 3, v70")
    e(f"s_and_b32 s{sT1}, s{sWave}, 1")
    e(f"s_lshl_b32 s{sT0}, s{sT1}, 6")
    e(f"v_add_u32 v70, s{sT0}, v70")
    e(f"s_lshl_b32 s{sT1}, s{sT1}, 12")
    e(f"s_add_u32 s{sT1}, s{sT1}, {IMG+16384}")
    e(f"v_add_u32 v71, s{sT1}, v65")
    e(f"v_add_u32 v65, {IMG}, v65")
    c("window offsets (0xffff = lane outside the window)")
    e(f"v_and_b32 v66, 15, v{vLane}")
    e("v_mul_u32_u24 v66, 12, v66")
    e("v_add_u32 v67, 192, v66")
    e(f"v_cmp_gt_u32 vcc, s{sLW}, v66")
    e(f"v_cmp_gt_u32 s[76:77], s{sLW}, v67")
    e(f"v_add_u32 v66, s{sJ0}, v66")
    e(f"v_add_u32 v67, s{sJ0}, v67")
    e("v_lshrrev_b32 v68, 4, v0")
    e(f"s_mov_b32 s{sT0}, {8*CHB}")
    e(f"v_mul_u32_u24 v68, s{sT0}, v68")
    e("v_add_u32 v68, v68, v66")
    e("v_mov_b32 v69, 0xffff")
    e("v_cndmask_b32 v66, v69, v66, vcc")
    e("v_cndmask_b32 v67, v69, v67, s[76:77]")
    e(f"s_mov_b32 s{sCnt}, {WS_REC}")
    e("s_waitcnt vmcnt(7)")
    stamp(1)
    sd = "dst_sel:DWORD dst_unused:UNUSED_PAD "
    def recs(rng):
        for i in rng:
            m0 = sMk + 4 * i; m1 = m0 + 2
            e(f"v_cmp_lt_u32_sdwa {sr(m0,2)}, v66, v{vTe+i} src0_sel:DWORD src1_sel:WORD_1")
            e(f"v_add_u32_sdwa v69, v68, v{vTe+i} {sd}src0_sel:DWORD src1_sel:WORD_0")
            e(f"v_cmp_lt_u32_sdwa {sr(m1,2)}, v67, v{vTe+i} src0_sel:DWORD src1_sel:WORD_1")
            e(f"s_mov_b64 exec, {sr(m0,2)}")
            e(f"buffer_load_dwordx3 {vr(192+8*i,3)}, v69, {sr(sWs,4)}, s{sCnt} offen")
            e(f"s_mov_b64 exec, {sr(m1,2)}")
            e(f"buffer_load_dwordx3 {vr(196+8*i,3)}, v69, {sr(sWs,4)}, s{sCnt} offen offset:192")
            e("s_mov_b64 exec, -1")
            if i < 7:
                e(f"s_add_u32 s{sCnt}, s{sCnt}, {CHB}")
    H1 = OPT['h1']
    recs(range(H1))
    e(f"s_lshr_b32 s{sT0}, s{sWave}, 1")
    e(f"s_lshl_b32 s{sT0}, s{sT0}, 12")
    e(f"s_add_u32 s{sT0}, s{sT0}, {XOWN}")
    e(f"s_sub_u32 s{sT0}, s{sT0}, s{sStg}")
    for s_ in range(4):
        e(f"v_add_u32 v{72+s_}, s{sT0}, v{vXa+s_}")
    e(f"s_waitcnt vmcnt({2*H1}) lgkmcnt(0)")
    e("s_barrier")
    stamp(2)
    c("---- A table and U for this wave's (node tile, channel half); weight operands ----")
    for s_ in range(4):
        e(f"ds_read_b128 {vr(40+4*s_,4)}, v{72+s_}")
        e(f"ds_read_b128 {vr(vW+4*s_,4)}, v71 offset:{s_*1024}")
    for s_ in range(4):
        e(f"ds_read_b128 {vr(vW+16+4*s_,4)}, v71 offset:{8192+s_*1024}")
    e(f"v_mov_b32 v{vBq[0]}, v120")
    e(f"v_mov_b32 v{vBq[0]+1}, v121")
    e(f"v_mov_b32 v{vBq[1]}, v122")
    e(f"v_mov_b32 v{vBq[1]+1}, v123")
    e(f"s_mov_b32 s{sT0}, {f32(-LOG2E)}")
    e("s_waitcnt lgkmcnt(4)")
    for s_ in range(4):
        e(mfma(84, vW+4*s_, 40+4*s_, 84 if s_ else None))
    e("s_waitcnt lgkmcnt(0)")
    for s_ in range(4):
        e(mfma(112, vW+16+4*s_, 40+4*s_, 112 if s_ else None))
    for q in range(16):
        e(f"ds_read_b128 {vr(vW+4*q,4)}, v65 offset:{q*1024}")
    for r in range(16):
        e(f"v_mul_f32 v{84+r}, s{sT0}, v{84+r}")
    for r in range(8):
        e(f"v_cvt_pk_bf16_f32 v{72+r}, v{84+2*r}, v{85+2*r}")
    e("s_mov_b64 exec, s[78:79]")
    for j in range(4):
        e(f"ds_write_b64 v70, {vr(72+2*j,2)} offset:{ATAB+j*16}")
    e("s_mov_b64 exec, -1")
    for r in range(8):
        e(f"v_cvt_pk_bf16_f32 v{vU+r}, v{112+2*r}, v{113+2*r}")
    recs(range(H1, 8))
    npf = 0
    if OPT['pf']:
        c("pull this bucket's slice of x into the L2 (one dword per line)")
        e("v_lshlrev_b32 v69, 7, v0")
        e(f"s_and_b32 s{sT0}, s2, 31")
        e(f"s_mul_i32 s{sT0}, s{sT0}, {782*128}")
        e(f"s_add_u32 s{sT1}, s{sT0}, {270*128}")
        e(f"buffer_load_dword v{vXo}, v69, {sr(sXr,4)}, s{sT0} offen")
        e(f"buffer_load_dword v{vXo+1}, v69, {sr(sXr,4)}, s{sT1} offen")
        npf = 2
    e(f"v_max3_u32 v{vTe}, v{vTe}, v{vTe+1}, v{vTe+2}")
    e(f"v_max3_u32 v{vTe+3}, v{vTe+3}, v{vTe+4}, v{vTe+5}")
    e(f"v_max3_u32 v{vTe}, v{vTe}, v{vTe+6}, v{vTe+7}")
    e(f"v_max_u32 v{vTe}, v{vTe}, v{vTe+3}")
    e(f"s_add_u32 s{sT1}, s{sJ0}, s{sLW}")
    e(f"s_lshl_b32 s{sT1}, s{sT1}, 16")
    e(f"s_or_b32 s{sT1}, s{sT1}, 0xffff")
    e(f"v_cmp_lt_u32 vcc, s{sT1}, v{vTe}")
    e("v_mov_b32 v66, 4")
    e("v_mov_b32 v67, 0")
    e("s_mov_b64 exec, vcc")
    e(f"ds_write_b32 v67, v66 offset:{MORE}")
    e("s_mov_b64 exec, -1")
    c("scan / meta lane constants while the records are in flight")
    e(f"v_lshl_add_u32 v8, v{vLane}, 1, s{sBase}")
    e("v_add_u32 v9, 1, v8")
    e("v_and_b32 v8, 127, v8")
    e("v_and_b32 v9, 127, v9")
    e("v_lshlrev_b32 v8, 2, v8")
    e("v_lshlrev_b32 v9, 2, v9")
    e(f"s_add_u32 s{sT0}, s{sNN}, 7")
    e(f"v_lshlrev_b32 v10, 1, v{vLane}")
    e("v_add_u32 v11, 1, v10")
    e(f"v_cmp_gt_u32 vcc, s{sT0}, v10")
    e(f"v_cmp_gt_u32 s[76:77], s{sT0}, v11")
    e("v_lshrrev_b32 v12, 2, v0")
    e("v_cndmask_b32 v10, 0, 16, vcc")
    e("v_cndmask_b32 v11, 0, 16, s[76:77]")
    e(f"v_cmp_gt_u32 vcc, s{sT0}, v12")
    e(f"v_cmp_gt_u32 s[76:77], s{sNN}, v12")
    e(f"v_add_u32 v13, s{sBase}, v12")
    e("v_cndmask_b32 v14, 0, 16, vcc")
    e("v_and_b32 v13, 127, v13")
    e("v_lshlrev_b32 v13, 2, v13")
    e(f"v_mul_u32_u24 v15, {RST}, v12")
    e(f"v_add_u32 v15, {ROWS}, v15")
    e(f"v_mov_b32 v64, {DUMMY+512}")
    e("v_cndmask_b32 v15, v64, v15, s[76:77]")
    e("v_cndmask_b32 v12, 0, v12, s[76:77]")
    e(f"v_mul_u32_u24 v12, {AST+65536}, v12")
    for r in range(16):
        e(f"v_mov_b32 v{vAcc+r}, 0")
    for r in range(16):
        e(f"v_mov_b32 v{vC+r}, {f32(-2.0*SC)}")
    for j in range(4):
        e(f"v_mov_b32 v{vN+j}, 0")
        e(f"v_mov_b32 v{vP+j}, 1.0")
    stamp(3)
    for q in range(16):
        r = 192 + 4 * q
        e(f"s_mov_b64 exec, {sr(sMk+2*q,2)}")
        if q % 2:
            e(f"s_cbranch_execz K2_H{q}")
        e(f"s_waitcnt vmcnt({15+npf-q})")
        e(f"v_lshrrev_b32 v{112+q}, 16, v{r+2}")
        e(f"ds_add_rtn_u32 v{r+3}, v{112+q}, v66 offset:{CNT}")
        if q % 2:
            e(f"K2_H{q}:")
    e("s_mov_b64 exec, -1")
    e("s_waitcnt lgkmcnt(0)")
    e("s_barrier")
    stamp(4)
    c("---- scan (every wave, redundantly) ----")
    e(f"ds_read_b32 v64, v8 offset:{CNT}")
    e(f"ds_read_b32 v65, v9 offset:{CNT}")
    e(f"ds_read_b32 v68, v67 offset:{MORE}")
    e("s_waitcnt lgkmcnt(1)")
    e("v_add_u32 v69, 15, v64")
    e("v_add_u32 v70, 15, v65")
    e("v_and_b32 v69, -16, v69")
    e("v_and_b32 v70, -16, v70")
    e("v_max_u32 v69, v69, v10")
    e("v_max_u32 v70, v70, v11")
    e("v_add_u32 v71, v69, v70")
    e("v_mov_b32 v72, v71")
    scan64(72)
    e("v_sub_u32 v73, v72, v71")
    e("v_add_u32 v74, v73, v69")
    e(f"v_readlane_b32 s{sQt}, v72, 63")
    e("v_lshl_or_b32 v64, v64, 16, v73")
    e("v_lshl_or_b32 v65, v65, 16, v74")
    e(f"ds_write_b32 v8, v64 offset:{BI}")
    e(f"ds_write_b32 v9, v65 offset:{BI}")
    e("v_max_u32 v69, v69, v70")
    e(f"s_lshr_b32 s{sTt}, s{sQt}, 7")
    e("s_waitcnt lgkmcnt(0)")
    e(f"v_readfirstlane_b32 s{sMore}, v68")
    e(f"ds_read_b32 v64, v13 offset:{BI}")
    for q in range(16):
        e(f"s_mov_b64 exec, {sr(sMk+2*q,2)}")
        e(f"ds_read_u16 v{112+q}, v{112+q} offset:{BI}")
    e("s_mov_b64 exec, -1")
    e(f"s_cmp_gt_u32 s{sQt}, {CAP*4}")
    e(f"s_cselect_b32 s{sT0}, 1, s{sMore}")
    e(f"s_cmp_eq_u32 s{sLW}, 384")
    e(f"s_cselect_b32 s{sT0}, s{sT0}, 0")
    e(f"s_cmp_lg_u32 s{sT0}, 0")
    e("s_cbranch_scc1 K2_FAIL")
    c("pads")
    e("v_and_b32 v65, 3, v0")
    e(f"v_mov_b32 v70, {PADV:#x}")
    e("v_mov_b32 v72, 0")
    e("v_mov_b32 v73, 0")
    e("s_waitcnt lgkmcnt(15)")
    e("v_lshrrev_b32 v68, 16, v64")
    e("v_and_b32 v64, 0xffff, v64")
    e("v_add_u32 v74, 15, v68")
    e("v_and_b32 v74, -16, v74")
    e("v_max_u32 v74, v74, v14")
    e("v_lshl_add_u32 v68, v65, 2, v68")
    e("v_cmp_lt_u32 vcc, v68, v74")
    e("v_add_u32 v68, v68, v64")
    e("v_lshlrev_b32 v71, 1, v68")
    e("s_mov_b64 exec, vcc")
    e(f"ds_write_b32 v68, v70 offset:{M4}")
    e(f"ds_write_b64 v71, v[72:73] offset:{E8}")
    e("s_waitcnt lgkmcnt(2)")
    c("---- scatter records ----")
    for q in range(16):
        r = 192 + 4 * q
        e(f"s_mov_b64 exec, {sr(sMk+2*q,2)}")
        if q % 2:
            e(f"s_cbranch_execz K2_S{q}")
        e(f"v_add_u32 v{112+q}, v{112+q}, v{r+3}")
        e(f"v_lshlrev_b32 v{r+3}, 1, v{112+q}")
        e(f"ds_write_b32 v{112+q}, v{r+2} offset:{M4}")
        e(f"ds_write_b64 v{r+3}, {vr(r,2)} offset:{E8}")
        if q % 2:
            e(f"K2_S{q}:")
    e("s_mov_b64 exec, -1")
    e(f"s_lshr_b32 s{sT0}, s{sTt}, 3")
    e(f"s_and_b32 s{sT1}, s{sTt}, 7")
    e(f"s_lshl_b32 s{sT2}, s{sT0}, 6")
    e(f"v_cmp_lt_u32 vcc, s{sT2}, v69")
    e(f"s_mul_i32 s{sQw}, s{sT0}, s{sWave}")
    e(f"s_min_u32 s{sT2}, s{sT1}, s{sWave}")
    e(f"s_add_u32 s{sQw}, s{sQw}, s{sT2}")
    e(f"s_lshl_b32 s{sQw}, s{sQw}, 3")
    e(f"s_cmp_lt_u32 s{sWave}, s{sT1}")
    e(f"s_addc_u32 s{sNT}, s{sT0}, 0")
    e(f"s_or_b32 s{sBig}, vcc_lo, vcc_hi")
    e(f"s_lshl_b32 s{sT0}, s{sNT}, 2")
    c("gather index address")
    e(f"v_bfe_u32 v68, v{vLane}, 3, 1")
    e(f"v_lshrrev_b32 v69, 4, v{vLane}")
    e(f"v_mad_u32_u24 v68, v68, s{sT0}, v69")
    e(f"v_add_lshl_u32 v{vIxA}, v68, s{sQw}, 4")
    e(f"s_mov_b32 m0, s{sStg}")
    c("quad meta: thread = (node, k0)")
    e("v_lshrrev_b32 v69, 4, v74")
    e("v_lshrrev_b32 v64, 4, v64")
    e("v_add_u32 v64, v64, v65")
    e("v_lshlrev_b32 v68, 3, v64")
    e("v_lshlrev_b32 v64, 2, v64")
    e("v_add_u32 v70, -1, v69")
    e("v_cmp_eq_u32 vcc, 0, v65")
    e(f"v_mov_b32 v71, {DUMMY}")
    e("s_waitcnt lgkmcnt(0)")
    e("s_barrier")
    stamp(5)
    for x in rd_idx(): e(x)
    e(f"v_add_u32 v{vIxA}, 64, v{vIxA}")
    e("v_cndmask_b32 v73, -1, 0, vcc")
    e("s_waitcnt lgkmcnt(0)")
    for x in dma(): e(x)
    for x in rd_idx(): e(x)
    e(f"v_add_u32 v{vIxA}, 64, v{vIxA}")
    e("K2_QM:")
    e("v_cmp_lt_u32 vcc, v65, v69")
    e("s_and_b64 exec, exec, vcc")
    e("s_cbranch_execz K2_QMD")
    e("v_cmp_eq_u32 vcc, v65, v70")
    e(f"ds_write_b32 v64, v12 offset:{QA}")
    e("v_add_u32 v65, 4, v65")
    e("v_cndmask_b32 v72, v71, v15, vcc")
    e("v_add_u32 v64, 16, v64")
    e(f"ds_write_b64 v68, v[72:73] offset:{QWK}")
    e("v_add_u32 v68, 32, v68")
    e("v_mov_b32 v73, -1")
    e("s_branch K2_QM")
    e("K2_QMD:")
    e("s_mov_b64 exec, -1")
    c("---- per-round address registers ----")
    e(f"v_bfe_u32 v64, v{vLane}, 2, 1")
    e(f"v_bfe_u32 v65, v{vLane}, 3, 2")
    e(f"v_mad_u32_u24 v64, v64, s{sT0}, v65")
    e(f"v_add_lshl_u32 v64, v64, s{sQw}, 2")
    e(f"v_and_or_b32 v64, v{vLane}, 3, v64")
    e(f"v_lshrrev_b32 v68, 5, v{vLane}")
    e("v_add_u32 v65, 2, v68")
    e("v_lshlrev_b32 v64, v65, v64")
    e(f"v_mul_u32_u24 v65, {E8-M4}, v68")
    e(f"v_add_u32 v65, {M4}, v65")
    e(f"v_add_u32 v{vAqA}, v64, v65")
    e(f"v_mul_u32_u24 v64, s{sT0}, v68")
    e(f"v_add_u32 v64, s{sQw}, v64")
    e(f"v_lshlrev_b32 v{vWkA}, 3, v64")
    e(f"v_bfe_u32 v65, v{vLane}, 2, 2")
    e(f"v_add_lshl_u32 v{vQaA}, v64, v65, 2")
    e(f"v_add_lshl_u32 v{vTail}, v64, s{sT0}, 2")
    for x in rd_aq(): e(x)
    e(f"v_add_u32 v{vAqA}, v{vAqA}, v{vAqI}")
    e("s_waitcnt lgkmcnt(0)")
    e("s_barrier")
    for x in rd_qa(): e(x)
    e(f"v_add_u32 v{vQaA}, 16, v{vQaA}")
    for j in range(4):
        e(f"v_mov_b32 v{vS+j}, 0")
        e(f"v_add_u32 v{vWK+2*j}, {DUMMY+512}, v{vN16}")
        e(f"v_mov_b32 v{vWK+2*j+1}, 0")
    c("residual operand: thread = (node tid>>2, chunks c and c+4)")
    e(f"v_lshrrev_b32 v8, 2, v0")
    e(f"v_add_u32 v8, s{sBase}, v8")
    e("v_and_b32 v9, 3, v0")
    e("v_lshlrev_b32 v9, 4, v9")
    e("v_lshl_add_u32 v8, v8, 7, v9")
    e("s_waitcnt lgkmcnt(0)")
    e(f"v_add_u32 v{vQaV}, v{vQaV}, v{vQaC}")
    for x in rd_bq(0) + rd_bq(1) + rd_qa(): e(x)
    e(f"v_add_u32 v{vQaA}, 16, v{vQaA}")
    e("s_waitcnt vmcnt(0)")
    for x in rd_x(): e(x)
    e(f"buffer_load_dwordx4 {vr(vXo,4)}, v8, {sr(sXr,4)}, 0 offen")
    e(f"buffer_load_dwordx4 {vr(vXo+4,4)}, v8, {sr(sXr,4)}, 0 offen offset:64")
    e(f"s_cmp_eq_u32 s{sNT}, 0")
    e("s_cbranch_scc1 K2_DRAIN")
    e("s_waitcnt lgkmcnt(0)")
    for x in dma(): e(x)
    for x in mfmas(0): e(x)
    e(f"s_mov_b32 s{sCnt}, s{sNT}")
    e(f"v_add_u32 v{vQaV}, v{vQaV}, v{vQaC}")
    e("s_nop 7")
    stamp(6)
    e(".p2align 6")
    e("K2_LOOP:")
    loop_body()
    e("K2_DRAIN:")
    for x in rcps(): e(x)
    e(f"v_and_b32 v9, 31, v{vLane}")
    e(f"v_lshrrev_b32 v10, 5, v{vLane}")
    for x in chain(1): e(x)
    for x in writes(): e(x)
    stamp(7)
    c("---- tails; U to LDS ----")
    e(f"ds_read_u16 v8, v{vTail} offset:{QA-2}")
    e("v_mul_u32_u24 v9, 72, v9")
    e("v_lshl_add_u32 v9, v10, 3, v9")
    e(f"v_add_u32 v9, s{sStg}, v9")
    e("s_waitcnt vmcnt(0)")
    for j in range(4):
        e(f"ds_write_b64 v9, {vr(vU+2*j,2)} offset:{16*j}")
    e(f"v_add_u32 v9, {DUMMY}, v{vN16}")
    e(f"v_cmp_eq_u32 s[76:77], v9, v{vWK+6}")
    e("v_lshrrev_b32 v10, 2, v0")
    e("v_and_b32 v14, 3, v0")
    e(f"v_mul_u32_u24 v11, {RST}, v10")
    e("v_lshl_add_u32 v11, v14, 7, v11")
    e(f"v_add_u32 v11, {ROWS}, v11")
    e("s_waitcnt lgkmcnt(0)")
    e(f"v_mul_u32_u24 v8, {RST}, v8")
    e(f"v_add_u32 v8, v8, v{vN16}")
    e(f"v_add_u32 v8, {ROWS}, v8")
    e("s_barrier")
    e("s_mov_b64 exec, s[76:77]")
    e(f"s_cmp_lg_u32 s{sBig}, 0")
    e("s_cbranch_scc1 K2_TAILAT")
    e("ds_read_b128 v[64:67], v8")
    e("s_waitcnt lgkmcnt(0)")
    for i in range(4):
        e(f"v_add_f32 v{64+i}, v{64+i}, v{vAcc+12+i}")
    e("ds_write_b128 v8, v[64:67]")
    e("K2_TAILD:")
    e("s_mov_b64 exec, -1")
    c("---- epilogue ----")
    e("v_and_b32 v12, 31, v10")
    e("v_mul_u32_u24 v12, 72, v12")
    e("v_lshrrev_b32 v13, 5, v10")
    e("v_lshl_add_u32 v12, v13, 13, v12")
    e("v_lshl_add_u32 v12, v14, 4, v12")
    e(f"v_add_u32 v12, {STG}, v12")
    e(f"v_add_u32 v15, 4096, v12")
    e("ds_read2_b64 v[112:115], v12 offset0:0 offset1:1")
    e("ds_read2_b64 v[116:119], v15 offset0:0 offset1:1")
    e(f"v_add_u32 v13, s{sBase}, v10")
    e("v_lshlrev_b32 v13, 7, v13")
    e("v_lshl_add_u32 v13, v14, 4, v13")
    e(f"v_cmp_gt_u32 s[76:77], s{sNN}, v10")
    e("s_waitcnt lgkmcnt(0)")
    e("s_barrier")
    for k in range(8):
        e(f"ds_read_b128 {vr(192+4*k,4)}, v11 offset:{16*k}")
    e(f"s_cmp_eq_u32 s{sMore}, 0")
    e(f"s_cselect_b32 s{sT1}, s{sFirst}, 0")
    e(f"s_cmp_eq_u32 s{sT1}, 0")
    e("s_cbranch_scc1 K2_SLOWTOT")
    e("K2_FIN:")
    eps = f32(1e-6 * 2.0**SC)
    e("s_mov_b64 exec, s[76:77]")
    e("s_cbranch_execz K2_DONE")
    for k in range(4):
        e(f"s_waitcnt lgkmcnt({6-2*k})")
        for it in range(2):
            b = 192 + 8 * k + 2 * it; xr = vXo + 4 * it + k; ur = 112 + 4 * it + k
            e(f"v_add_f32 v{b}, {eps}, v{b}")
            e(f"v_add_f32 v{b+4}, {eps}, v{b+4}")
            e(f"v_rcp_f32 v{b}, v{b}")
            e(f"v_rcp_f32 v{b+4}, v{b+4}")
            e(f"v_lshlrev_b32 v8, 16, v{ur}")
            e(f"v_and_b32 v9, 0xffff0000, v{ur}")
            e(f"v_fmac_f32 v8, v{b}, v{b+1}")
            e(f"v_fmac_f32 v9, v{b+4}, v{b+5}")
            e(f"v_lshlrev_b32 v{b}, 16, v{xr}")
            e(f"v_and_b32 v{b+4}, 0xffff0000, v{xr}")
            e(f"v_max_f32 v8, 0, v8")
            e(f"v_max_f32 v9, 0, v9")
            e(f"v_add_f32 v8, v8, v{b}")
            e(f"v_add_f32 v9, v9, v{b+4}")
            e(f"v_cvt_pk_bf16_f32 v{xr}, v8, v9")
    for it in range(2):
        e(f"buffer_store_dwordx4 {vr(vXo+4*it,4)}, v13, {sr(sOut,4)}, 0 offen offset:{64*it}")
    e("K2_DONE:")
    if OPT['stamp']:
        e("s_mov_b64 exec, -1")
        stamp(8)
        diag_out(1, 9, sWave, sWs, sNT)
    e("K2_END:")
    e("s_endpgm")
    c("---- rare paths ----")
    e("K2_TAILAT:")
    for i in range(4):
        e(f"ds_add_f32 v8, v{vAcc+12+i} offset:{4*i}")
    e("s_branch K2_TAILD")
    e("K2_FAIL:")
    e(f"s_movk_i32 s{sLW}, 144")
    e("s_waitcnt vmcnt(0) lgkmcnt(0)")
    e("s_barrier")
    e("s_branch K2_ROUND")
    e("K2_SLOWTOT:")
    e("v_lshlrev_b32 v14, 7, v0")
    e(f"s_lshl_b32 s{sT1}, s2, 16")
    e(f"s_add_u32 s{sT1}, s{sT1}, {WS_TOT}")
    e("s_waitcnt lgkmcnt(0)")
    e(f"s_cmp_lg_u32 s{sFirst}, 0")
    e("s_cbranch_scc1 K2_ST1")
    for r in range(8):
        e(f"buffer_load_dwordx4 {vr(224+4*r,4)}, v14, {sr(sWs,4)}, s{sT1} offen offset:{16*r} sc1")
    e("s_waitcnt vmcnt(0)")
    for r in range(32):
        e(f"v_add_f32 v{192+r}, v{192+r}, v{224+r}")
    e(f"s_cmp_eq_u32 s{sMore}, 0")
    e("s_cbranch_scc1 K2_FIN")
    e("K2_ST1:")
    for r in range(8):
        e(f"buffer_store_dwordx4 {vr(192+4*r,4)}, v14, {sr(sWs,4)}, s{sT1} offen offset:{16*r} sc1")
    e(f"s_mov_b32 s{sFirst}, 0")
    e(f"s_add_u32 s{sJ0}, s{sJ0}, s{sLW}")
    e("s_waitcnt vmcnt(0)")
    e("s_barrier")
    e("s_branch K2_ROUND")

def trace_code():
    e("s_memtime s[44:45]")
    e("s_memrealtime s[46:47]")
    e(f"s_lshl_b32 s48, s2, 3")
    e(f"s_add_u32 s48, s48, s{sWave}")
    e(f"s_lshl_b32 s48, s48, 4")
    e(f"s_add_u32 s48, s48, s{sCnt}")
    e(f"s_lshl_b32 s48, s48, 3")
    e(f"s_add_u32 s48, s48, {WS_DIAG+0x80000}")
    e("s_waitcnt lgkmcnt(0)")
    e("v_mov_b32 v8, s44")
    e("v_mov_b32 v9, s46")
    e("v_mov_b32 v10, 0")
    e("s_mov_b64 exec, 1")
    e(f"buffer_store_dwordx2 v[8:9], v10, {sr(sWs,4)}, s48 offen")
    e("s_mov_b64 exec, -1")

def loop_body():
    global L
    n0 = len(L)
    loop_body0()
    k = OPT['kill']
    body = L[n0:]; del L[n0:]
    for l in body:
        t = l.strip()
        if k & 1 and t.startswith('ds_read'): continue
        if k & 2 and t.startswith('ds_write'): continue
        if k & 4 and t.startswith('buffer_load'): continue
        if k & 8 and t.startswith('s_waitcnt') and not OPT['trace']: continue
        if k & 16 and t.startswith('v_add_u32'): continue
        if k & 32 and t.startswith('v_fmaak'): l = l.replace('v_fmaak_f32','v_mul_f32').rsplit(',',1)[0]
        if k & 64 and t.startswith('v_fma_f32'): l = l.replace('v_fma_f32','v_mul_f32').rsplit(',',1)[0]
        if k & 128 and t.startswith('v_and_b32'): continue
        L.append(l)
def loop_body0():
    e("s_setprio 1")
    ex = [[] for _ in range(9)]
    x = rd_x(); ix = rd_idx()
    ex[0] = rd_aq() + rd_bq(0)
    ex[1] = rd_bq(1) + ["s_waitcnt vmcnt(0)"]
    ex[2] = [x[0], ix[0]]
    ex[4] = [x[1], ix[1]]
    ex[5] = [ix[2], ix[3]]
    ex[6] = [x[2]]
    ex[8] = [x[3]]
    hi_phase(mfmas(1), rcps() + exps(0), ex)
    e("s_setprio 0")
    for y in mix(chain(1), avals(0)): e(y)
    e(f"v_add_u32 v{vIxA}, 64, v{vIxA}")
    e(f"v_add_u32 v{vAqA}, v{vAqA}, v{vAqI}")
    for y in frac(0): e(y)
    e("s_setprio 1")
    e("s_waitcnt lgkmcnt(0)")
    ex = [[] for _ in range(9)]
    w = writes(); d = dma(); wk = rd_wk()
    ex[0] = [d[0], w[0]]; ex[1] = [d[1], w[1]]; ex[2] = [d[2], w[2]]
    ex[4] = [d[3], w[3]]; ex[5] = wk; ex[7] = rd_qa() + [f"s_sub_u32 s{sCnt}, s{sCnt}, 1"]
    hi_phase(mfmas(0), rcps() + exps(1), ex)
    e("s_setprio 0")
    av = avals(1)
    for y in av[:8]: e(y)
    e("s_waitcnt lgkmcnt(0)")
    for y in mix(chain(0), av[8:]): e(y)
    for j in range(4):
        e(f"v_add_u32 v{vWK+2*j}, v{vWK+2*j}, v{vN16}")
    e(f"v_add_u32 v{vWkA}, 32, v{vWkA}")
    e(f"v_add_u32 v{vQaV}, v{vQaV}, v{vQaC}")
    e(f"v_add_u32 v{vQaA}, 16, v{vQaA}")
    for y in frac(1): e(y)
    if OPT['trace']: trace_code()
    e(f"s_cmp_lg_u32 s{sCnt}, 0")
    e("s_cbranch_scc1 K2_LOOP")

def kd(name, vg, sg):
    L.extend([f".amdhsa_kernel {name}",
              f"  .amdhsa_next_free_vgpr {vg}",
              f"  .amdhsa_next_free_sgpr {sg}",
              f"  .amdhsa_accum_offset {(vg+3)//4*4}",
              "  .amdhsa_group_segment_fixed_size 0",
              "  .amdhsa_kernarg_size 96",
              "  .amdhsa_user_sgpr_count 2",
              "  .amdhsa_user_sgpr_kernarg_segment_ptr 1",
              "  .amdhsa_system_sgpr_workgroup_id_x 1",
              ".end_amdhsa_kernel"])

hdr = open("cdna_kernels/%s.s.ref" % NAME).read().split("\n")
for l in hdr:
    if l.startswith("; Override") : break
    L.append(l)
L.append(f"; @launch kernel=part_kernel grid=(256,1,1) block=(896,1,1) lds={K1_LDS}")
L.append(f"; @launch kernel={NAME}_kernel grid=(256,1,1) block=(512,1,1) lds={K2_LDS}")
L.append('.amdgcn_target "amdgcn-amd-amdhsa--gfx950"')
L.append(".text")
L.append(".globl part_kernel")
L.append(".type part_kernel,@function")
L.append(f".globl {NAME}_kernel")
L.append(f".type {NAME}_kernel,@function")
sSt = 54
k1()
sSt = 82
k2()
L.append('.section .rodata,"a"')
L.append(".p2align 6")
kd("part_kernel", 64, 74 if OPT["stamp"] else 64)
L.append(".p2align 6")
kd(f"{NAME}_kernel", 256, 102)
open(sys.argv[1], "w").write("\n".join(L) + "\n")
print("K1_LDS", K1_LDS, "K2_LDS", K2_LDS, "ATAB", ATAB, "STG", STG, "ROWS", ROWS)
```

```python
import sys, struct

NAME = "standalone__edge_featured_mpnn_gatedgcn__graph"
OPT = dict(stamp=0, trace=0, stf=1, ldf=3, sched=0, remap=1, nodefirst=0, kill=0, pf=1, h1=4, dbg=0, alt=0, lst=0)
for a in sys.argv[2:]:
    k, v = a.split('=')
    OPT[k] = int(v)

L = []
def e(s=""): L.append("    " + s if s and not s.endswith(":") else s)
def c(s): L.append("    ; " + s)
def f32(x): return "0x%08x" % struct.unpack("<I", struct.pack("<f", x))[0]
def vr(a, n): return f"v[{a}:{a+n-1}]"
def sr(a, n): return f"s[{a}:{a+n-1}]"
FL = ["", " sc1", " sc0 sc1", " nt"]

N = 25000; E = 800000
CH = 3136
CHB = CH * 12
BM = 171799
BK = 6399988
WS_T = 0
WS_IMG = 0x40000
WS_REC = 0x80000
WS_AU = 0xA00000
WS_TOT = 0x1100000
WS_DIAG = 0x2F00000
WS_SIZE = 0x3000000
LOG2E = 1.4426950408889634
NODE_WGS = 196
RFLAG = 0x21800000
sSt = 82

def srd(d, b, size, stride=0):
    e(f"s_mov_b32 s{d}, s{b}")
    e(f"s_and_b32 s{d+1}, s{b+1}, 0xffff")
    if stride:
        e(f"s_or_b32 s{d+1}, s{d+1}, {stride<<16:#x}")
    e(f"s_mov_b32 s{d+2}, {size}")
    e(f"s_mov_b32 s{d+3}, 0x20000")

def scan64(v):
    for m in ("row_shr:1 row_mask:0xf", "row_shr:2 row_mask:0xf", "row_shr:4 row_mask:0xf",
              "row_shr:8 row_mask:0xf", "row_bcast:15 row_mask:0xa", "row_bcast:31 row_mask:0xc"):
        e("s_nop 1")
        e(f"v_add_u32_dpp v{v}, v{v}, v{v} {m} bank_mask:0xf")

def stamp(i):
    if OPT['stamp']:
        e(f"s_memtime {sr(sSt+2*i,2)}")
        if i == 0:
            e(f"s_memrealtime {sr(sSt+18,2)}")
def diag_out(kidx, nst, swave, ssrd, extra=None, vt=8):
    if OPT['dbg']:
        e("s_memrealtime s[42:43]")
        e("s_load_dwordx2 s[44:45], s[0:1], 80")
        e("s_waitcnt lgkmcnt(0)")
        e(f"s_cmp_lg_u32 s2, {OPT['dbg']}")
        e(f"s_cbranch_scc1 K{kidx+1}_END")
        e(f"s_cmp_lg_u32 s{swave}, 5")
        e(f"s_cbranch_scc1 K{kidx+1}_END")
        e(f"s_add_u32 s44, s44, {512*(1-kidx)}")
        e("s_addc_u32 s45, s45, 0")
        srd(48, 44, 64)
        e(f"v_mov_b32 v{vt}, 0")
        e("s_mov_b64 exec, 1")
        sel = [(2,3,5,6,8),(1,2,4,5,6,7,8)][kidx]
        o = [0, 7][kidx]
        e(f"v_mov_b32 v{vt+1}, s{sSt+18}")
        e(f"buffer_store_dword v{vt+1}, v{vt}, s[48:51], 0 offen offset:{4*o}")
        for n, i in enumerate(sel):
            e(f"s_sub_u32 s40, s{sSt+2*i}, s{sSt}")
            e(f"v_mov_b32 v{vt+1}, s40")
            e(f"buffer_store_dword v{vt+1}, v{vt}, s[48:51], 0 offen offset:{4*(o+1+n)}")
        e(f"v_mov_b32 v{vt+1}, s42")
        e(f"buffer_store_dword v{vt+1}, v{vt}, s[48:51], 0 offen offset:{4*(o+1+len(sel))}")
        return
    e("s_memrealtime s[42:43]")
    e("s_waitcnt lgkmcnt(0)")
    e(f"s_lshl_b32 s39, s2, 4")
    e(f"s_add_u32 s39, s39, s{swave}")
    e(f"s_lshl_b32 s39, s39, 6")
    e(f"s_add_u32 s39, s39, {WS_DIAG + kidx*0x40000}")
    e(f"v_mov_b32 v{vt}, 0")
    e("s_mov_b64 exec, 1")
    for i in range(1, nst):
        e(f"s_sub_u32 s40, s{sSt+2*i}, s{sSt}")
        e(f"v_mov_b32 v{vt+1}, s40")
        e(f"buffer_store_dword v{vt+1}, v{vt}, {sr(ssrd,4)}, s39 offen offset:{4*(i-1)}")
    if extra is not None:
        e(f"v_mov_b32 v{vt+1}, s{extra}")
        e(f"buffer_store_dword v{vt+1}, v{vt}, {sr(ssrd,4)}, s39 offen offset:48")
    e("s_getreg_b32 s40, hwreg(HW_REG_HW_ID)")
    e(f"v_mov_b32 v{vt+1}, s40")
    e(f"buffer_store_dword v{vt+1}, v{vt}, {sr(ssrd,4)}, s39 offen offset:52")
    e(f"v_mov_b32 v{vt+1}, s{sSt+18}")
    e(f"buffer_store_dword v{vt+1}, v{vt}, {sr(ssrd,4)}, s39 offen offset:56")
    e(f"v_mov_b32 v{vt+1}, s42")
    e(f"buffer_store_dword v{vt+1}, v{vt}, {sr(ssrd,4)}, s39 offen offset:60")

def mfma(d, a, b, cc):
    cs = "0" if cc is None else vr(cc, 16)
    return f"v_mfma_f32_32x32x16_bf16 {vr(d,16)}, {vr(a,4)}, {vr(b,4)}, {cs}"

CAP = 3584
CNT = 0
MORE = 512
BI = 528
M4 = 1280
E8 = M4 + CAP * 4 + 256
QWK = E8 + CAP * 8 + 256
QA = QWK + (CAP // 4) * 8 + 256
AST = 136
RST = 528
ATAB = QA + (CAP // 4) * 4 + 256
STG = (ATAB + 98 * AST + 1023) // 1024 * 1024
ROWS = STG + 32768
WRAW = STG
XOWN = ROWS
WCT = ROWS + 16384
P_HIST = ROWS + 20480
P_BASE = P_HIST + 1024
P_STG = M4
assert P_STG + CHB <= QWK
DUMMY = ROWS + 98 * RST
K2_LDS = DUMMY + 1024
assert XOWN + 16384 <= DUMMY
assert E8 % 16 == 0 and QWK % 16 == 0 and K2_LDS <= 160 * 1024 and ATAB < 65536, (K2_LDS, ATAB)
SC = 24
PADV = 0x7F007F00
RFLAG = 0x21800000

vW = 128; vD = [192, 224]; vX = 112; vBq = [104, 108]; vAq = 100; vAcc = 84
vS = 72; vN = 76; vP = 80; vWK = 64; vIdx = 56; vC = 40; vXo = 24; vU = 32; vXa = 20
vLane = 1; vAqA = 2; vAqI = 3; vIxA = 4; vQaA = 5; vQaV = 6; vQaC = 7
vWkA = 16; vN16 = 17; vC1 = 18; vTail = 19
vTe = 8
sX = 4; sXr = 8; sWs = 12; sOut = 16; sWc = 20
sBase = 24; sNN = 25; sWave = 26; sJ0 = 27; sLW = 28; sFirst = 29; sInit = 30; sQt = 31; sTt = 32
sNT = 33; sQw = 34; sStg = 35; sMore = 36; sBig = 37; sCnt = 38; sT0 = 39; sT1 = 40; sT2 = 41
sMk = 44

def G(b): return vD[b]
def H(b): return vD[b] + 16
def Wg(nt, s): return vW + (nt * 4 + s) * 4
def Wh(nt, s): return vW + 32 + (nt * 4 + s) * 4
def mfmas(nt):
    g = G(nt); h = H(nt)
    return [mfma(g, vAq, vBq[nt], vC),
            mfma(h, vX, Wh(nt,0), None), mfma(g, vX, Wg(nt,0), g),
            mfma(h, vX+4, Wh(nt,1), h), mfma(g, vX+4, Wg(nt,1), g),
            mfma(h, vX+8, Wh(nt,2), h), mfma(g, vX+8, Wg(nt,2), g),
            mfma(h, vX+12, Wh(nt,3), h), mfma(g, vX+12, Wg(nt,3), g)]
def acc(nt, j): return vAcc + j * 4 + nt * 2
def chain(nt):
    o = []
    for j in range(4):
        a = acc(nt, j); p = acc(nt, (j + 3) % 4); k = vWK + 2 * j + 1
        o += [f"v_and_b32 v{a}, v{p}, v{k}", f"v_and_b32 v{a+1}, v{p+1}, v{k}",
              f"v_fmac_f32 v{a}, v{vS+j}, v{vP+j}", f"v_fmac_f32 v{a+1}, v{vN+j}, v{vP+j}"]
    return o
def writes(): return [f"ds_write_b128 v{vWK+2*j}, {vr(vAcc+4*j,4)}" for j in range(4)]
def avals(nt):
    g = G(nt)
    return [f"v_fmaak_f32 v{g+r}, v{g+r}, v{vC1}, {f32(2.0**-SC)}" for r in range(16)]
def frac(nt):
    g = G(nt); h = H(nt); o = []
    J = range(4)
    o += [f"v_add_f32 v{vS+j}, v{g+4*j}, v{g+4*j+1}" for j in J]
    o += [f"v_mul_f32 v{vP+j}, v{g+4*j}, v{g+4*j+1}" for j in J]
    o += [f"v_mul_f32 v{vN+j}, v{h+4*j}, v{g+4*j+1}" for j in J]
    o += [f"v_fmac_f32 v{vN+j}, v{h+4*j+1}, v{g+4*j}" for j in J]
    for i in (2, 3):
        o += [f"v_mul_f32 v{h+4*j+i}, v{h+4*j+i}, v{vP+j}" for j in J]
        o += [f"v_fma_f32 v{vS+j}, v{vS+j}, v{g+4*j+i}, v{vP+j}" for j in J]
        o += [f"v_fma_f32 v{vN+j}, v{vN+j}, v{g+4*j+i}, v{h+4*j+i}" for j in J]
        o += [f"v_mul_f32 v{vP+j}, v{vP+j}, v{g+4*j+i}" for j in J]
    return o
def mix(a, b):
    o = []; a = list(a); b = list(b)
    while a or b:
        if a: o += a[:2]; a = a[2:]
        if b: o += b[:2]; b = b[2:]
    return o
def exps(nt): return [f"v_exp_f32_e64 v{G(nt)+r}, v{G(nt)+r} clamp" for r in range(16)]
def rcps(): return [f"v_rcp_f32 v{vP+j}, v{vP+j}" for j in range(4)]
def rd_x(): return [f"ds_read_b128 {vr(vX+4*s,4)}, v{vXa+s}" for s in range(4)]
def rd_aq(): return [f"ds_read2_b32 {vr(vAq,2)}, v{vAqA} offset0:0 offset1:1"]
def rd_idx(): return [f"ds_read_u16 v{vIdx+2*i}, v{vIxA} offset:{M4+4*i}" for i in range(4)]
def rd_qa(): return [f"ds_read_u16 v{vQaV}, v{vQaA} offset:{QA}"]
def rd_bq(nt): return [f"ds_read_b64_tr_b16 {vr(vBq[nt]+2,2)}, v{vQaV} offset:{ATAB+64*nt}"]
def rd_wk(): return [f"ds_read_b128 {vr(vWK,4)}, v{vWkA} offset:{QWK}", f"ds_read_b128 {vr(vWK+4,4)}, v{vWkA} offset:{QWK+16}"]
def dma(): return [f"buffer_load_dwordx4 {vr(vIdx+2*i,2)}, {sr(sX,4)}, 0 idxen offen offset:{1024*i} lds" for i in range(4)]

def hi_phase(ms, trans, extras, per=(2, 2, 2, 3, 2, 2, 3, 2, 2)):
    t = 0
    for g in range(9):
        e(ms[g])
        for _ in range(per[g]):
            e(trans[t]); t += 1
        for x in extras[g]:
            e(x)
    assert t == 20

def k2():
    st = FL[OPT['stf']]; ld = FL[OPT['ldf']]
    sP = 3
    e(".p2align 8")
    e(f"{NAME}_kernel:")
    e("s_cmp_ge_u32 s2, 256")
    e("s_cbranch_scc1 K2_END")
    stamp(0)
    e("s_load_dwordx8 s[44:51], s[0:1], 0")
    e("s_load_dwordx8 s[52:59], s[0:1], 64")
    e("s_load_dwordx8 s[60:67], s[0:1], 32")
    e(f"s_mov_b32 s{sP}, s2")
    e(f"s_and_b32 s{sT0}, s2, 7")
    e("s_lshr_b32 s2, s2, 3")
    e(f"s_lshl_b32 s{sT0}, s{sT0}, 5")
    e(f"s_or_b32 s2, s2, s{sT0}")
    e(f"v_and_b32 v{vLane}, 63, v0")
    e("v_lshrrev_b32 v2, 6, v0")
    e(f"s_mul_i32 s{sT0}, s{sP}, {CH*4}")
    e(f"v_readfirstlane_b32 s{sWave}, v2")
    e(f"v_lshl_add_u32 v64, v0, 4, s{sT0}")
    e(f"v_add_u32 v65, 7168, v64")
    e("v_lshlrev_b32 v66, 1, v64")
    e("v_lshlrev_b32 v67, 1, v65")
    e(f"s_mov_b32 s{sT1}, {E*4}")
    e("s_movk_i32 s42, 336")
    e(f"v_cmp_gt_u32 s[76:77], s{sT1}, v64")
    e(f"v_cmp_gt_u32 s[78:79], s{sT1}, v65")
    e("v_cmp_gt_u32 vcc, s42, v0")
    e(f"v_lshlrev_b32 v68, 4, v{vLane}")
    e(f"v_add_u32 v69, {P_HIST}, v68")
    for i in range(4):
        e(f"v_mov_b32 v{72+i}, 0")
    e("s_and_b64 s[78:79], s[78:79], vcc")
    e(f"s_cmp_eq_u32 s{sWave}, 7")
    e("s_cselect_b64 s[80:81], -1, 0")
    e("s_andn2_b64 s[76:77], s[76:77], s[80:81]")
    e(f"s_cmp_lg_u32 s{sWave}, 0")
    e("s_cbranch_scc1 P1_NOZERO")
    e("ds_write_b128 v69, v[72:75]")
    e("P1_NOZERO:")
    e(f"s_mul_i32 s{sBase}, s2, {BK}")
    e(f"s_add_u32 s{sNN}, s{sBase}, {BK+65535}")
    e(f"s_add_u32 s{sBase}, s{sBase}, 65535")
    e(f"s_lshr_b32 s{sBase}, s{sBase}, 16")
    e(f"s_lshr_b32 s{sNN}, s{sNN}, 16")
    e(f"s_sub_u32 s{sNN}, s{sNN}, s{sBase}")
    e(f"s_mov_b32 s{sJ0}, 0")
    e(f"s_movk_i32 s{sLW}, 384")
    e(f"s_mov_b32 s{sFirst}, 1")
    e(f"s_lshl_b32 s{sStg}, s{sWave}, 12")
    e(f"s_add_u32 s{sStg}, s{sStg}, {STG}")
    e("s_waitcnt lgkmcnt(0)")
    srd(68, 50, E * 4)
    e("s_mov_b64 exec, s[76:77]")
    e("buffer_load_dwordx4 v[192:195], v64, s[68:71], 0 offen" + ld)
    e("s_mov_b64 exec, s[78:79]")
    e("buffer_load_dwordx4 v[196:199], v65, s[68:71], 0 offen" + ld)
    srd(sWs, 58, WS_SIZE)
    c("wave 7 clears this bucket's mailbox")
    e("s_mov_b64 exec, s[80:81]")
    e(f"s_lshl_b32 s{sT0}, s2, 10")
    e(f"buffer_store_dwordx4 v[72:75], v68, {sr(sWs,4)}, s{sT0} offen sc1")
    srd(72, 48, E * 4)
    srd(sOut, 46, E * 8)
    e("s_barrier")
    stamp(1)
    e("s_mov_b64 exec, s[76:77]")
    e("buffer_load_dwordx4 v[200:203], v64, s[72:75], 0 offen" + ld)
    e(f"buffer_load_dwordx4 v[208:211], v66, {sr(sOut,4)}, 0 offen" + ld)
    e(f"buffer_load_dwordx4 v[212:215], v66, {sr(sOut,4)}, 0 offen offset:16" + ld)
    e("s_mov_b64 exec, s[78:79]")
    e("buffer_load_dwordx4 v[204:207], v65, s[72:75], 0 offen" + ld)
    e(f"buffer_load_dwordx4 v[216:219], v67, {sr(sOut,4)}, 0 offen" + ld)
    e(f"buffer_load_dwordx4 v[220:223], v67, {sr(sOut,4)}, 0 offen offset:16" + ld)
    e("s_mov_b64 exec, -1")
    srd(sWc, 56, 256)
    e("v_mov_b32 v70, 12")
    e(f"s_mov_b32 s{sT0}, {BM}")
    e(f"s_mov_b32 s{sT1}, {P_HIST}")
    e("s_movk_i32 s42, 0x3fc")
    e(f"v_mov_b32 v71, s{sT1}")
    for it in range(2):
        e(f"s_mov_b64 exec, s[{76+2*it}:{77+2*it}]")
        e(f"s_waitcnt vmcnt({8-it})")
        for i in range(4):
            e(f"v_mul_u32_u24 v{224+4*it+i}, s{sT0}, v{192+4*it+i}")
        for i in range(4):
            e(f"v_lshrrev_b32 v{224+4*it+i}, 22, v{224+4*it+i}")
        for i in range(4):
            e(f"v_and_or_b32 v{224+4*it+i}, v{224+4*it+i}, s42, v71")
            e(f"ds_add_rtn_u32 v{232+4*it+i}, v{224+4*it+i}, v70")
        for i in range(4):
            e(f"v_and_b32 v{192+4*it+i}, 127, v{192+4*it+i}")
    c("wave 7: mailbox cleared -> count this bucket as ready")
    e(f"s_and_b32 s{sT0}, s{sP}, 3")
    e(f"s_lshl_b32 s{sT0}, s{sT0}, 6")
    e("s_mov_b64 exec, -1")
    e("v_mov_b32 v76, 1")
    e("s_and_b64 exec, s[80:81], 1")
    e("s_cbranch_scc0 P1_NOW")
    e("s_waitcnt vmcnt(0)")
    e("P1_NOW:")
    e(f"buffer_atomic_add v76, v72, {sr(sWc,4)}, s{sT0} offen sc1")
    e("s_mov_b64 exec, -1")
    c("operands for the setup phase: wv, wa, wu -> LDS ; wb -> registers ; own x rows ; wc")
    srd(sXr, 44, N * 128)
    e(f"v_and_b32 v77, 7, v{vLane}")
    e(f"v_lshrrev_b32 v78, 5, v{vLane}")
    e("v_lshlrev_b32 v78, 2, v78")
    e("v_xor_b32 v77, v77, v78")
    e(f"s_and_b32 s{sT2}, s{sWave}, 1")
    e(f"s_lshl_b32 s{sT2}, s{sT2}, 1")
    e(f"v_xor_b32 v78, s{sT2}, v77")
    e("v_lshlrev_b32 v78, 4, v78")
    e(f"v_lshrrev_b32 v79, 3, v{vLane}")
    e("v_lshl_add_u32 v78, v79, 9, v78")
    e("v_xor_b32 v79, 16, v78")
    e("v_add_u32 v79, 128, v79")
    e(f"s_lshr_b32 s{sT0}, s{sWave}, 1")
    e(f"s_lshl_b32 s{sT0}, s{sT0}, 5")
    e(f"s_add_u32 s{sT0}, s{sT0}, s{sBase}")
    e(f"s_add_u32 s{sT0}, s{sT0}, s{sT2}")
    e(f"s_lshl_b32 s{sT0}, s{sT0}, 7")
    e(f"s_lshl_b32 s{sT1}, s{sWave}, 11")
    e(f"s_add_u32 m0, s{sT1}, {XOWN}")
    e(f"s_lshl_b32 s{sT1}, s{sWave}, 10")
    e(f"buffer_load_dwordx4 v78, {sr(sXr,4)}, s{sT0} offen lds")
    e("s_add_u32 m0, m0, 1024")
    e("s_waitcnt lgkmcnt(0)")
    e(f"buffer_load_dwordx4 v79, {sr(sXr,4)}, s{sT0} offen lds")
    e("s_barrier")
    stamp(2)
    e("ds_read_b128 v[240:243], v69")
    for k, pw in enumerate((52, 60, 66)):
        srd(68, pw, 8192)
        e(f"s_add_u32 m0, s{sT1}, {WRAW+8192*(k+1)}")
        e("s_nop 0")
        e(f"buffer_load_dwordx4 v68, s[68:71], s{sT1} offen lds")
    srd(68, 62, 8192)
    e(f"buffer_load_dwordx4 v[112:115], v68, s[68:71], s{sT1} offen")
    srd(68, 64, 512)
    e(f"buffer_load_dwordx4 v[116:119], v68, s[68:71], 0 offen")
    e("s_waitcnt lgkmcnt(0)")
    e("v_add_u32 v78, v240, v241")
    e("v_add_u32 v79, v78, v242")
    e("v_add_u32 v76, v79, v243")
    e("v_mov_b32 v80, v76")
    scan64(80)
    e("v_sub_u32 v244, v80, v76")
    e("v_add_u32 v245, v244, v240")
    e("v_add_u32 v246, v244, v78")
    e("v_add_u32 v247, v244, v79")
    e(f"ds_write_b128 v69, v[244:247] offset:{P_BASE-P_HIST}")
    e("s_waitcnt lgkmcnt(0)")
    NX = 8
    for it in range(2):
        e(f"s_mov_b64 exec, s[{76+2*it}:{77+2*it}]")
        for i in range(4):
            e(f"ds_read_b32 v{224+4*it+i}, v{224+4*it+i} offset:{P_BASE-P_HIST}")
    for it in range(2):
        e(f"s_mov_b64 exec, s[{76+2*it}:{77+2*it}]")
        e(f"s_waitcnt vmcnt({NX+5-3*it}) lgkmcnt({4 if it==0 else 8})")
        for i in range(4):
            k = 4 * it + i
            e(f"v_lshl_or_b32 v{200+k}, v{192+k}, 18, v{200+k}")
            e(f"v_add_u32 v{224+k}, v{224+k}, v{232+k}")
            e(f"ds_write_b32 v{224+k}, v{200+k} offset:{P_STG+8}")
        for i in range(4):
            k = 4 * it + i
            if i % 2 == 0:
                e(f"s_waitcnt vmcnt({NX+4-3*it-i//2})")
            e(f"v_add_u32 v{224+k}, {P_STG}, v{224+k}")
            e(f"ds_write2_b32 v{224+k}, v{208+2*k}, v{209+2*k} offset0:0 offset1:1")
    e("s_mov_b64 exec, -1")
    e("v_lshlrev_b32 v64, 4, v0")
    e(f"s_mul_i32 s{sT0}, s{sP}, {CHB}")
    e(f"s_add_u32 s{sT0}, s{sT0}, {WS_REC}")
    e("s_movk_i32 s42, 304")
    e("v_cmp_gt_u32 vcc, s42, v0")
    e("s_waitcnt lgkmcnt(0)")
    e("s_barrier")
    stamp(3)
    for k in range(5):
        e(f"ds_read_b128 {vr(192+4*k,4)}, v64 offset:{P_STG + k*8192}")
    for k in range(5):
        if k == 4:
            e("s_mov_b64 exec, vcc")
        e(f"s_waitcnt lgkmcnt({4-k})")
        e(f"buffer_store_dwordx4 {vr(192+4*k,4)}, v64, {sr(sWs,4)}, s{sT0} offen sc1")
        if k < 4:
            e(f"s_add_u32 s{sT0}, s{sT0}, 8192")
    e("s_mov_b64 exec, -1")
    c("scaled wb and wc rows -> LDS")
    e(f"s_mov_b32 s{sT0}, {f32(-LOG2E)}")
    e("s_waitcnt vmcnt(5)")
    for r in range(8):
        e(f"v_lshlrev_b32 v78, 16, v{112+r}")
        e(f"v_and_b32 v79, 0xffff0000, v{112+r}")
        e(f"v_mul_f32 v78, s{sT0}, v78")
        e(f"v_mul_f32 v79, s{sT0}, v79")
        e(f"v_cvt_pk_bf16_f32 v{112+r}, v78, v79")
    e(f"v_add_u32 v78, {WRAW}, v64")
    e("ds_write_b128 v78, v[112:115]")
    c("lanes 32..63 hold flag rows (0, R, 0, 0); lanes 0..31 the wc' rows")
    e(f"v_lshrrev_b32 v79, 3, v{vLane}")
    e("v_cmp_eq_u32 vcc, 5, v79")
    e(f"v_mov_b32 v78, {(RFLAG>>16)*0x10001:#x}")
    e(f"v_xor_b32 v79, 512, v68")
    for r in range(4):
        e(f"v_cndmask_b32 v{116+r}, v{116+r}, v78, vcc")
    e(f"v_add_u32 v79, {WCT}, v79")
    e("ds_write_b128 v79, v[116:119]")
    for i in range(4):
        e(f"v_lshl_or_b32 v{244+i}, v{240+i}, 16, v{244+i}")
        e(f"v_or_b32 v{244+i}, 1, v{244+i}")
    c("---- lane constants ----")
    e("s_sub_u32 s50, s44, 3072")
    e("s_subb_u32 s51, s45, 0")
    srd(sX, 50, N, stride=128)
    srd(sOut, 54, N * 128)
    e(f"v_and_b32 v67, 31, v{vLane}")
    e(f"v_lshrrev_b32 v69, 5, v{vLane}")
    e(f"v_bfe_u32 v70, v{vLane}, 2, 1")
    e(f"v_bfe_u32 v71, v{vLane}, 3, 2")
    e("v_and_b32 v72, 1, v71")
    e("v_lshlrev_b32 v72, 4, v72")
    e("v_mov_b32 v73, 0x3f80")
    e("v_cmp_eq_u32 vcc, v70, v69")
    e("v_lshlrev_b32 v72, v72, v73")
    e("v_cmp_gt_u32 s[76:77], 2, v71")
    e("v_cndmask_b32 v72, 0, v72, vcc")
    e(f"v_and_b32 v73, 3, v{vLane}")
    e(f"v_cndmask_b32 v{vAq+2}, 0, v72, s[76:77]")
    e(f"v_cndmask_b32 v{vAq+3}, v72, 0, s[76:77]")
    for i in range(4):
        e(f"v_xor_b32 v74, {i}, v77")
        e(f"v_lshlrev_b32 v74, 4, v74")
        e(f"v_add_u32 v{vIdx+2*i+1}, {3072-1024*i}, v74")
    e(f"v_bfe_u32 v74, v{vLane}, 2, 3")
    e(f"v_bfe_u32 v75, v{vLane}, 4, 1")
    e("v_lshl_add_u32 v72, v75, 2, v73")
    e("v_lshlrev_b32 v76, 10, v73")
    e("v_lshl_add_u32 v76, v74, 7, v76")
    e(f"v_add_u32 v76, s{sStg}, v76")
    e("v_xor_b32 v72, v72, v69")
    for s_ in range(4):
        e(f"v_xor_b32 v74, {2*s_}, v72")
        e(f"v_lshl_add_u32 v{vXa+s_}, v74, 4, v76")
    e(f"v_lshlrev_b32 v{vN16}, 4, v67")
    e(f"v_mov_b32 v{vC1}, {f32(2.0**SC)}")
    e(f"v_lshlrev_b32 v{vAqI}, 6, v69")
    e(f"v_add_u32 v{vAqI}, 64, v{vAqI}")
    e("v_lshlrev_b32 v73, 3, v73")
    e(f"v_lshl_add_u32 v{vQaC}, v75, 5, v73")
    c("wave 7: every mailbox must be clear before anything is published")
    e(f"s_cmp_lg_u32 s{sWave}, 7")
    e("s_cbranch_scc1 P1_RDY")
    e(f"v_and_b32 v74, 3, v{vLane}")
    e("v_lshlrev_b32 v74, 6, v74")
    e(f"s_mov_b32 s{sCnt}, 0x40000")
    e("P1_POLL:")
    e(f"buffer_load_dword v76, v74, {sr(sWc,4)}, 0 offen sc1")
    e("s_waitcnt vmcnt(0)")
    e("v_cmp_ne_u32 vcc, 64, v76")
    e(f"s_sub_u32 s{sCnt}, s{sCnt}, 1")
    e("s_cbranch_scc1 K2_END")
    e("s_cmp_eq_u64 vcc, 0")
    e("s_cbranch_scc1 P1_RDY")
    e("s_sleep 2")
    e("s_branch P1_POLL")
    e("P1_RDY:")
    e("s_waitcnt vmcnt(0) lgkmcnt(0)")
    e("s_barrier")
    stamp(4)
    c("publish this chunk's run table: one word into every bucket's mailbox")
    e("v_lshlrev_b32 v74, 8, v68")
    e(f"s_lshl_b32 s{sT0}, s{sP}, 2")
    e("s_mov_b64 exec, s[80:81]")
    for i in range(4):
        e(f"buffer_store_dword v{244+i}, v74, {sr(sWs,4)}, s{sT0} offen offset:{1024*i} sc1")
    e("s_mov_b64 exec, -1")
    c("---- A table and U for this wave's (node tile, channel half); weight operands ----")
    e(f"s_lshr_b32 s{sT0}, s{sWave}, 1")
    e(f"s_lshl_b32 s{sT1}, s{sT0}, 5")
    e(f"v_add_u32 v70, s{sT1}, v67")
    e(f"v_cmp_gt_u32 s[78:79], s{sNN}, v70")
    e(f"v_mul_u32_u24 v70, {AST}, v70")
    e("v_lshl_add_u32 v70, v69, 3, v70")
    e(f"s_and_b32 s{sT1}, s{sWave}, 1")
    e(f"s_lshl_b32 s{sT1}, s{sT1}, 6")
    e(f"v_add_u32 v70, s{sT1}, v70")
    e(f"s_lshl_b32 s{sT0}, s{sT0}, 12")
    e(f"s_add_u32 s{sT0}, s{sT0}, {XOWN}")
    e(f"s_sub_u32 s{sT0}, s{sT0}, s{sStg}")
    for s_ in range(4):
        e(f"v_add_u32 v{72+s_}, s{sT0}, v{vXa+s_}")
        e(f"ds_read_b128 {vr(40+4*s_,4)}, v{72+s_}")
    e(f"v_bfe_u32 v71, v{vLane}, 2, 2")
    e("v_lshl_add_u32 v72, v69, 2, v71")
    e(f"v_lshl_add_u32 v72, v72, 7, v{vQaC}")
    e(f"v_add_u32 v72, {WCT}, v72")
    e("v_lshl_add_u32 v71, v69, 3, v71")
    e(f"v_lshl_add_u32 v71, v71, 7, v{vQaC}")
    e(f"v_add_u32 v65, {WRAW}, v71")
    e(f"v_add_u32 v71, s{sT1}, v65")
    for m in range(2):
        for s_ in range(4):
            for hf in range(2):
                e(f"ds_read_b64_tr_b16 {vr(192+16*m+4*s_+2*hf,2)}, v71 offset:{16384+m*8192+s_*2048+hf*512}")
    e(f"s_mov_b32 s{sT0}, {f32(-LOG2E)}")
    e("s_waitcnt lgkmcnt(8)")
    for s_ in range(4):
        e(mfma(84, 192+4*s_, 40+4*s_, 84 if s_ else None))
    e("s_waitcnt lgkmcnt(0)")
    for s_ in range(4):
        e(mfma(112, 208+4*s_, 40+4*s_, 112 if s_ else None))
    for m in range(2):
        for nt in range(2):
            for s_ in range(4):
                for hf in range(2):
                    e(f"ds_read_b64_tr_b16 {vr(vW+32*m+16*nt+4*s_+2*hf,2)}, v65 offset:{m*8192+s_*2048+hf*512+nt*64}")
    for nt in range(2):
        e(f"ds_read_b64_tr_b16 {vr(vBq[nt],2)}, v72 offset:{64*nt}")
    for r in range(16):
        e(f"v_mul_f32 v{84+r}, s{sT0}, v{84+r}")
    for r in range(8):
        e(f"v_cvt_pk_bf16_f32 v{120-48+r}, v{84+2*r}, v{85+2*r}")
    e("s_mov_b64 exec, s[78:79]")
    for j in range(4):
        e(f"ds_write_b64 v70, {vr(72+2*j,2)} offset:{ATAB+j*16}")
    e("s_mov_b64 exec, -1")
    for r in range(8):
        e(f"v_cvt_pk_bf16_f32 v{vU+r}, v{112+2*r}, v{113+2*r}")
    for r in range(16):
        e(f"v_mov_b32 v{vC+r}, {f32(-2.0*SC)}")
    e("K2_ROUND:")
    c("zero CNT[128] and MORE")
    e("v_lshlrev_b32 v64, 2, v0")
    e("v_mov_b32 v66, 0")
    e("s_movk_i32 s42, 132")
    e("v_cmp_gt_u32 vcc, s42, v0")
    e("s_mov_b64 exec, vcc")
    e(f"ds_write_b32 v64, v66 offset:{CNT}")
    e("s_mov_b64 exec, -1")
    c("window offsets (0xffff = lane outside the window)")
    e(f"v_and_b32 v66, 15, v{vLane}")
    e("v_mul_u32_u24 v66, 12, v66")
    e("v_add_u32 v67, 192, v66")
    e(f"v_cmp_gt_u32 vcc, s{sLW}, v66")
    e(f"v_cmp_gt_u32 s[76:77], s{sLW}, v67")
    e(f"v_add_u32 v66, s{sJ0}, v66")
    e(f"v_add_u32 v67, s{sJ0}, v67")
    e("v_lshrrev_b32 v68, 4, v0")
    e(f"s_mov_b32 s{sT0}, {8*CHB}")
    e(f"v_mul_u32_u24 v68, s{sT0}, v68")
    e("v_add3_u32 v68, v68, v66, -1")
    e("v_mov_b32 v69, 0xffff")
    e("v_cndmask_b32 v66, v69, v66, vcc")
    e("v_cndmask_b32 v67, v69, v67, s[76:77]")
    for r in range(16):
        e(f"v_mov_b32 v{vAcc+r}, 0")
    e("v_and_b32 v64, 0x1f0, v0")
    e("v_lshlrev_b32 v64, 1, v64")
    e(f"s_lshl_b32 s{sT0}, s2, 10")
    e(f"s_mov_b32 s{sCnt}, 0x40000")
    e("s_waitcnt lgkmcnt(0)")
    e("s_barrier")
    stamp(5)
    c("wait for the run tables of this wave's 32 producers")
    e("K2_POLL:")
    e(f"buffer_load_dwordx4 {vr(vTe,4)}, v64, {sr(sWs,4)}, s{sT0} offen sc1")
    e(f"buffer_load_dwordx4 {vr(vTe+4,4)}, v64, {sr(sWs,4)}, s{sT0} offen offset:16 sc1")
    e("s_waitcnt vmcnt(0)")
    e(f"v_bitop3_b32 v69, v{vTe}, v{vTe+1}, v{vTe+2} bitop3:0x80")
    e(f"v_bitop3_b32 v70, v{vTe+3}, v{vTe+4}, v{vTe+5} bitop3:0x80")
    e(f"v_bitop3_b32 v69, v69, v{vTe+6}, v{vTe+7} bitop3:0x80")
    e(f"v_bitop3_b32 v69, v69, v70, 1 bitop3:0x80")
    e("v_cmp_eq_u32 vcc, 0, v69")
    e(f"s_sub_u32 s{sCnt}, s{sCnt}, 1")
    e("s_cbranch_scc1 K2_END")
    e("s_cmp_eq_u64 vcc, 0")
    e("s_cbranch_scc1 K2_GO")
    e("s_sleep 1")
    e("s_branch K2_POLL")
    e("K2_GO:")
    if OPT['alt']: stamp(3)
    e(f"s_mov_b32 s{sCnt}, {WS_REC}")
    sd = "dst_sel:DWORD dst_unused:UNUSED_PAD "
    for i in range(8):
        m0 = sMk + 4 * i; m1 = m0 + 2
        e(f"v_cmp_lt_u32_sdwa {sr(m0,2)}, v66, v{vTe+i} src0_sel:DWORD src1_sel:WORD_1")
        e(f"v_add_u32_sdwa v69, v68, v{vTe+i} {sd}src0_sel:DWORD src1_sel:WORD_0")
        e(f"v_cmp_lt_u32_sdwa {sr(m1,2)}, v67, v{vTe+i} src0_sel:DWORD src1_sel:WORD_1")
        e(f"s_mov_b64 exec, {sr(m0,2)}")
        e(f"buffer_load_dwordx3 {vr(192+8*i,3)}, v69, {sr(sWs,4)}, s{sCnt} offen sc1")
        e(f"s_mov_b64 exec, {sr(m1,2)}")
        e(f"buffer_load_dwordx3 {vr(196+8*i,3)}, v69, {sr(sWs,4)}, s{sCnt} offen offset:192 sc1")
        e("s_mov_b64 exec, -1")
        if i < 7:
            e(f"s_add_u32 s{sCnt}, s{sCnt}, {CHB}")
    npf = 0
    e(f"v_max3_u32 v{vTe}, v{vTe}, v{vTe+1}, v{vTe+2}")
    e(f"v_max3_u32 v{vTe+3}, v{vTe+3}, v{vTe+4}, v{vTe+5}")
    e(f"v_max3_u32 v{vTe}, v{vTe}, v{vTe+6}, v{vTe+7}")
    e(f"v_max_u32 v{vTe}, v{vTe}, v{vTe+3}")
    e(f"s_add_u32 s{sT1}, s{sJ0}, s{sLW}")
    e(f"s_lshl_b32 s{sT1}, s{sT1}, 16")
    e(f"s_or_b32 s{sT1}, s{sT1}, 0xffff")
    e(f"v_cmp_lt_u32 vcc, s{sT1}, v{vTe}")
    e("v_mov_b32 v66, 4")
    e("v_mov_b32 v67, 0")
    e("s_mov_b64 exec, vcc")
    e(f"ds_write_b32 v67, v66 offset:{MORE}")
    e("s_mov_b64 exec, -1")
    c("scan / meta lane constants while the records are in flight")
    e(f"v_lshl_add_u32 v8, v{vLane}, 1, s{sBase}")
    e("v_add_u32 v9, 1, v8")
    e("v_and_b32 v8, 127, v8")
    e("v_and_b32 v9, 127, v9")
    e("v_lshlrev_b32 v8, 2, v8")
    e("v_lshlrev_b32 v9, 2, v9")
    e(f"s_add_u32 s{sT0}, s{sNN}, 7")
    e(f"v_lshlrev_b32 v10, 1, v{vLane}")
    e("v_add_u32 v11, 1, v10")
    e(f"v_cmp_gt_u32 vcc, s{sT0}, v10")
    e(f"v_cmp_gt_u32 s[76:77], s{sT0}, v11")
    e("v_lshrrev_b32 v12, 2, v0")
    e("v_cndmask_b32 v10, 0, 16, vcc")
    e("v_cndmask_b32 v11, 0, 16, s[76:77]")
    e(f"v_cmp_gt_u32 vcc, s{sT0}, v12")
    e(f"v_cmp_gt_u32 s[76:77], s{sNN}, v12")
    e(f"v_add_u32 v13, s{sBase}, v12")
    e("v_cndmask_b32 v14, 0, 16, vcc")
    e("v_and_b32 v13, 127, v13")
    e("v_lshlrev_b32 v13, 2, v13")
    e(f"v_mul_u32_u24 v15, {RST}, v12")
    e(f"v_add_u32 v15, {ROWS}, v15")
    e(f"v_mov_b32 v64, {DUMMY+512}")
    e("v_cndmask_b32 v15, v64, v15, s[76:77]")
    e("v_cndmask_b32 v12, 0, v12, s[76:77]")
    e(f"v_mul_u32_u24 v12, {AST+65536}, v12")
    for j in range(4):
        e(f"v_mov_b32 v{vN+j}, 0")
        e(f"v_mov_b32 v{vP+j}, 1.0")
    for q in range(16):
        r = 192 + 4 * q
        e(f"s_mov_b64 exec, {sr(sMk+2*q,2)}")
        if q % 2:
            e(f"s_cbranch_execz K2_H{q}")
        e(f"s_waitcnt vmcnt({15+npf-q})")
        e(f"v_lshrrev_b32 v{112+q}, 16, v{r+2}")
        e(f"ds_add_rtn_u32 v{r+3}, v{112+q}, v66 offset:{CNT}")
        if q % 2:
            e(f"K2_H{q}:")
    e("s_mov_b64 exec, -1")
    e("s_waitcnt lgkmcnt(0)")
    e("s_barrier")
    if OPT['alt']: stamp(1)
    c("---- scan (every wave, redundantly) ----")
    e(f"ds_read_b32 v64, v8 offset:{CNT}")
    e(f"ds_read_b32 v65, v9 offset:{CNT}")
    e(f"ds_read_b32 v68, v67 offset:{MORE}")
    e("s_waitcnt lgkmcnt(1)")
    e("v_add_u32 v69, 15, v64")
    e("v_add_u32 v70, 15, v65")
    e("v_and_b32 v69, -16, v69")
    e("v_and_b32 v70, -16, v70")
    e("v_max_u32 v69, v69, v10")
    e("v_max_u32 v70, v70, v11")
    e("v_add_u32 v71, v69, v70")
    e("v_mov_b32 v72, v71")
    scan64(72)
    e("v_sub_u32 v73, v72, v71")
    e("v_add_u32 v74, v73, v69")
    e(f"v_readlane_b32 s{sQt}, v72, 63")
    e("v_lshl_or_b32 v64, v64, 16, v73")
    e("v_lshl_or_b32 v65, v65, 16, v74")
    e(f"ds_write_b32 v8, v64 offset:{BI}")
    e(f"ds_write_b32 v9, v65 offset:{BI}")
    e("v_max_u32 v69, v69, v70")
    e(f"s_lshr_b32 s{sTt}, s{sQt}, 7")
    e("s_waitcnt lgkmcnt(0)")
    e(f"v_readfirstlane_b32 s{sMore}, v68")
    e(f"ds_read_b32 v64, v13 offset:{BI}")
    for q in range(16):
        e(f"s_mov_b64 exec, {sr(sMk+2*q,2)}")
        e(f"ds_read_u16 v{112+q}, v{112+q} offset:{BI}")
    e("s_mov_b64 exec, -1")
    e(f"s_cmp_gt_u32 s{sQt}, {CAP*4}")
    e(f"s_cselect_b32 s{sT0}, 1, s{sMore}")
    e(f"s_cmp_eq_u32 s{sLW}, 384")
    e(f"s_cselect_b32 s{sT0}, s{sT0}, 0")
    e(f"s_cmp_lg_u32 s{sT0}, 0")
    e("s_cbranch_scc1 K2_FAIL")
    c("pads")
    e("v_and_b32 v65, 3, v0")
    e(f"v_mov_b32 v70, {PADV:#x}")
    e("v_mov_b32 v72, 0")
    e("v_mov_b32 v73, 0")
    e("s_waitcnt lgkmcnt(15)")
    e("v_lshrrev_b32 v68, 16, v64")
    e("v_and_b32 v64, 0xffff, v64")
    e("v_add_u32 v74, 15, v68")
    e("v_and_b32 v74, -16, v74")
    e("v_max_u32 v74, v74, v14")
    e("v_lshl_add_u32 v68, v65, 2, v68")
    e("v_cmp_lt_u32 vcc, v68, v74")
    e("v_add_u32 v68, v68, v64")
    e("v_lshlrev_b32 v71, 1, v68")
    e("s_mov_b64 exec, vcc")
    e(f"ds_write_b32 v68, v70 offset:{M4}")
    e(f"ds_write_b64 v71, v[72:73] offset:{E8}")
    e("s_waitcnt lgkmcnt(2)")
    c("---- scatter records ----")
    for q in range(16):
        r = 192 + 4 * q
        e(f"s_mov_b64 exec, {sr(sMk+2*q,2)}")
        if q % 2:
            e(f"s_cbranch_execz K2_S{q}")
        e(f"v_add_u32 v{112+q}, v{112+q}, v{r+3}")
        e(f"v_lshlrev_b32 v{r+3}, 1, v{112+q}")
        e(f"ds_write_b32 v{112+q}, v{r+2} offset:{M4}")
        e(f"ds_write_b64 v{r+3}, {vr(r,2)} offset:{E8}")
        if q % 2:
            e(f"K2_S{q}:")
    e("s_mov_b64 exec, -1")
    e(f"s_lshr_b32 s{sT0}, s{sTt}, 3")
    e(f"s_and_b32 s{sT1}, s{sTt}, 7")
    e(f"s_lshl_b32 s{sT2}, s{sT0}, 6")
    e(f"v_cmp_lt_u32 vcc, s{sT2}, v69")
    e(f"s_mul_i32 s{sQw}, s{sT0}, s{sWave}")
    e(f"s_min_u32 s{sT2}, s{sT1}, s{sWave}")
    e(f"s_add_u32 s{sQw}, s{sQw}, s{sT2}")
    e(f"s_lshl_b32 s{sQw}, s{sQw}, 3")
    e(f"s_cmp_lt_u32 s{sWave}, s{sT1}")
    e(f"s_addc_u32 s{sNT}, s{sT0}, 0")
    e(f"s_or_b32 s{sBig}, vcc_lo, vcc_hi")
    e(f"s_lshl_b32 s{sT0}, s{sNT}, 2")
    c("gather index address")
    e(f"v_bfe_u32 v68, v{vLane}, 3, 1")
    e(f"v_lshrrev_b32 v69, 4, v{vLane}")
    e(f"v_mad_u32_u24 v68, v68, s{sT0}, v69")
    e(f"v_add_lshl_u32 v{vIxA}, v68, s{sQw}, 4")
    e(f"s_mov_b32 m0, s{sStg}")
    c("quad meta: thread = (node, k0)")
    e("v_lshrrev_b32 v69, 4, v74")
    e("v_lshrrev_b32 v64, 4, v64")
    e("v_add_u32 v64, v64, v65")
    e("v_lshlrev_b32 v68, 3, v64")
    e("v_lshlrev_b32 v64, 2, v64")
    e("v_add_u32 v70, -1, v69")
    e("v_cmp_eq_u32 vcc, 0, v65")
    e(f"v_mov_b32 v71, {DUMMY}")
    e("s_waitcnt lgkmcnt(0)")
    e("s_barrier")
    if OPT['alt']: stamp(2)
    for x in rd_idx(): e(x)
    e(f"v_add_u32 v{vIxA}, 64, v{vIxA}")
    e("v_cndmask_b32 v73, -1, 0, vcc")
    e("s_waitcnt lgkmcnt(0)")
    for x in dma(): e(x)
    for x in rd_idx(): e(x)
    e(f"v_add_u32 v{vIxA}, 64, v{vIxA}")
    e("K2_QM:")
    e("v_cmp_lt_u32 vcc, v65, v69")
    e("s_and_b64 exec, exec, vcc")
    e("s_cbranch_execz K2_QMD")
    e("v_cmp_eq_u32 vcc, v65, v70")
    e(f"ds_write_b32 v64, v12 offset:{QA}")
    e("v_add_u32 v65, 4, v65")
    e("v_cndmask_b32 v72, v71, v15, vcc")
    e("v_add_u32 v64, 16, v64")
    e(f"ds_write_b64 v68, v[72:73] offset:{QWK}")
    e("v_add_u32 v68, 32, v68")
    e("v_mov_b32 v73, -1")
    e("s_branch K2_QM")
    e("K2_QMD:")
    e("s_mov_b64 exec, -1")
    c("---- per-round address registers ----")
    e(f"v_bfe_u32 v64, v{vLane}, 2, 1")
    e(f"v_bfe_u32 v65, v{vLane}, 3, 2")
    e(f"v_mad_u32_u24 v64, v64, s{sT0}, v65")
    e(f"v_add_lshl_u32 v64, v64, s{sQw}, 2")
    e(f"v_and_or_b32 v64, v{vLane}, 3, v64")
    e(f"v_lshrrev_b32 v68, 5, v{vLane}")
    e("v_add_u32 v65, 2, v68")
    e("v_lshlrev_b32 v64, v65, v64")
    e(f"v_mul_u32_u24 v65, {E8-M4}, v68")
    e(f"v_add_u32 v65, {M4}, v65")
    e(f"v_add_u32 v{vAqA}, v64, v65")
    e(f"v_mul_u32_u24 v64, s{sT0}, v68")
    e(f"v_add_u32 v64, s{sQw}, v64")
    e(f"v_lshlrev_b32 v{vWkA}, 3, v64")
    e(f"v_bfe_u32 v65, v{vLane}, 2, 2")
    e(f"v_add_lshl_u32 v{vQaA}, v64, v65, 2")
    e(f"v_add_lshl_u32 v{vTail}, v64, s{sT0}, 2")
    for x in rd_aq(): e(x)
    e(f"v_add_u32 v{vAqA}, v{vAqA}, v{vAqI}")
    e("s_waitcnt lgkmcnt(0)")
    e("s_barrier")
    for x in rd_qa(): e(x)
    e(f"v_add_u32 v{vQaA}, 16, v{vQaA}")
    for j in range(4):
        e(f"v_mov_b32 v{vS+j}, 0")
        e(f"v_add_u32 v{vWK+2*j}, {DUMMY+512}, v{vN16}")
        e(f"v_mov_b32 v{vWK+2*j+1}, 0")
    c("residual operand: thread = (node tid>>2, chunks c and c+4)")
    e(f"v_lshrrev_b32 v8, 2, v0")
    e(f"v_add_u32 v8, s{sBase}, v8")
    e("v_and_b32 v9, 3, v0")
    e("v_lshlrev_b32 v9, 4, v9")
    e("v_lshl_add_u32 v8, v8, 7, v9")
    e("s_waitcnt lgkmcnt(0)")
    e(f"v_add_u32 v{vQaV}, v{vQaV}, v{vQaC}")
    for x in rd_bq(0) + rd_bq(1) + rd_qa(): e(x)
    e(f"v_add_u32 v{vQaA}, 16, v{vQaA}")
    e("s_waitcnt vmcnt(0)")
    for x in rd_x(): e(x)
    e(f"buffer_load_dwordx4 {vr(vXo,4)}, v8, {sr(sXr,4)}, 0 offen")
    e(f"buffer_load_dwordx4 {vr(vXo+4,4)}, v8, {sr(sXr,4)}, 0 offen offset:64")
    e(f"s_cmp_eq_u32 s{sNT}, 0")
    e("s_cbranch_scc1 K2_DRAIN")
    e("s_waitcnt lgkmcnt(0)")
    for x in dma(): e(x)
    for x in mfmas(0): e(x)
    e(f"s_mov_b32 s{sCnt}, s{sNT}")
    e(f"v_add_u32 v{vQaV}, v{vQaV}, v{vQaC}")
    e("s_nop 7")
    stamp(6)
    e(".p2align 6")
    e("K2_LOOP:")
    loop_body()
    e("K2_DRAIN:")
    for x in rcps(): e(x)
    e(f"v_and_b32 v9, 31, v{vLane}")
    e(f"v_lshrrev_b32 v10, 5, v{vLane}")
    for x in chain(1): e(x)
    for x in writes(): e(x)
    stamp(7)
    c("---- tails; U to LDS ----")
    e(f"ds_read_u16 v8, v{vTail} offset:{QA-2}")
    e("v_mul_u32_u24 v9, 72, v9")
    e("v_lshl_add_u32 v9, v10, 3, v9")
    e(f"v_add_u32 v9, s{sStg}, v9")
    e("s_waitcnt vmcnt(0)")
    for j in range(4):
        e(f"ds_write_b64 v9, {vr(vU+2*j,2)} offset:{16*j}")
    e(f"v_add_u32 v9, {DUMMY}, v{vN16}")
    e(f"v_cmp_eq_u32 s[76:77], v9, v{vWK+6}")
    e("v_lshrrev_b32 v10, 2, v0")
    e("v_and_b32 v14, 3, v0")
    e(f"v_mul_u32_u24 v11, {RST}, v10")
    e("v_lshl_add_u32 v11, v14, 7, v11")
    e(f"v_add_u32 v11, {ROWS}, v11")
    e("s_waitcnt lgkmcnt(0)")
    e(f"v_mul_u32_u24 v8, {RST}, v8")
    e(f"v_add_u32 v8, v8, v{vN16}")
    e(f"v_add_u32 v8, {ROWS}, v8")
    e("s_barrier")
    e("s_mov_b64 exec, s[76:77]")
    e(f"s_cmp_lg_u32 s{sBig}, 0")
    e("s_cbranch_scc1 K2_TAILAT")
    e("ds_read_b128 v[64:67], v8")
    e("s_waitcnt lgkmcnt(0)")
    for i in range(4):
        e(f"v_add_f32 v{64+i}, v{64+i}, v{vAcc+12+i}")
    e("ds_write_b128 v8, v[64:67]")
    e("K2_TAILD:")
    e("s_mov_b64 exec, -1")
    c("---- epilogue ----")
    e("v_and_b32 v12, 31, v10")
    e("v_mul_u32_u24 v12, 72, v12")
    e("v_lshrrev_b32 v13, 5, v10")
    e("v_lshl_add_u32 v12, v13, 13, v12")
    e("v_lshl_add_u32 v12, v14, 4, v12")
    e(f"v_add_u32 v12, {STG}, v12")
    e(f"v_add_u32 v15, 4096, v12")
    e("ds_read2_b64 v[112:115], v12 offset0:0 offset1:1")
    e("ds_read2_b64 v[116:119], v15 offset0:0 offset1:1")
    e(f"v_add_u32 v13, s{sBase}, v10")
    e("v_lshlrev_b32 v13, 7, v13")
    e("v_lshl_add_u32 v13, v14, 4, v13")
    e(f"v_cmp_gt_u32 s[76:77], s{sNN}, v10")
    e("s_waitcnt lgkmcnt(0)")
    e("s_barrier")
    for k in range(8):
        e(f"ds_read_b128 {vr(192+4*k,4)}, v11 offset:{16*k}")
    e(f"s_cmp_eq_u32 s{sMore}, 0")
    e(f"s_cselect_b32 s{sT1}, s{sFirst}, 0")
    e(f"s_cmp_eq_u32 s{sT1}, 0")
    e("s_cbranch_scc1 K2_SLOWTOT")
    e("K2_FIN:")
    eps = f32(1e-6 * 2.0**SC)
    e("s_mov_b64 exec, s[76:77]")
    e("s_cbranch_execz K2_DONE")
    for k in range(4):
        e(f"s_waitcnt lgkmcnt({6-2*k})")
        for it in range(2):
            b = 192 + 8 * k + 2 * it; xr = vXo + 4 * it + k; ur = 112 + 4 * it + k
            e(f"v_add_f32 v{b}, {eps}, v{b}")
            e(f"v_add_f32 v{b+4}, {eps}, v{b+4}")
            e(f"v_rcp_f32 v{b}, v{b}")
            e(f"v_rcp_f32 v{b+4}, v{b+4}")
            e(f"v_lshlrev_b32 v8, 16, v{ur}")
            e(f"v_and_b32 v9, 0xffff0000, v{ur}")
            e(f"v_fmac_f32 v8, v{b}, v{b+1}")
            e(f"v_fmac_f32 v9, v{b+4}, v{b+5}")
            e(f"v_lshlrev_b32 v{b}, 16, v{xr}")
            e(f"v_and_b32 v{b+4}, 0xffff0000, v{xr}")
            e(f"v_max_f32 v8, 0, v8")
            e(f"v_max_f32 v9, 0, v9")
            e(f"v_add_f32 v8, v8, v{b}")
            e(f"v_add_f32 v9, v9, v{b+4}")
            e(f"v_cvt_pk_bf16_f32 v{xr}, v8, v9")
    for it in range(2):
        e(f"buffer_store_dwordx4 {vr(vXo+4*it,4)}, v13, {sr(sOut,4)}, 0 offen offset:{64*it}")
    e("K2_DONE:")
    if OPT['stamp']:
        e("s_mov_b64 exec, -1")
        stamp(8)
        diag_out(1, 9, sWave, sWs, sNT)
    e("K2_END:")
    e("s_endpgm")
    c("---- rare paths ----")
    e("K2_TAILAT:")
    for i in range(4):
        e(f"ds_add_f32 v8, v{vAcc+12+i} offset:{4*i}")
    e("s_branch K2_TAILD")
    e("K2_FAIL:")
    e(f"s_movk_i32 s{sLW}, 144")
    e("s_waitcnt vmcnt(0) lgkmcnt(0)")
    e("s_barrier")
    e("s_branch K2_ROUND")
    e("K2_SLOWTOT:")
    e("v_lshlrev_b32 v14, 7, v0")
    e(f"s_lshl_b32 s{sT1}, s2, 16")
    e(f"s_add_u32 s{sT1}, s{sT1}, {WS_TOT}")
    e("s_waitcnt lgkmcnt(0)")
    e(f"s_cmp_lg_u32 s{sFirst}, 0")
    e("s_cbranch_scc1 K2_ST1")
    for r in range(8):
        e(f"buffer_load_dwordx4 {vr(224+4*r,4)}, v14, {sr(sWs,4)}, s{sT1} offen offset:{16*r} sc1")
    e("s_waitcnt vmcnt(0)")
    for r in range(32):
        e(f"v_add_f32 v{192+r}, v{192+r}, v{224+r}")
    e(f"s_cmp_eq_u32 s{sMore}, 0")
    e("s_cbranch_scc1 K2_FIN")
    e("K2_ST1:")
    for r in range(8):
        e(f"buffer_store_dwordx4 {vr(192+4*r,4)}, v14, {sr(sWs,4)}, s{sT1} offen offset:{16*r} sc1")
    e(f"s_mov_b32 s{sFirst}, 0")
    e(f"s_add_u32 s{sJ0}, s{sJ0}, s{sLW}")
    e("s_waitcnt vmcnt(0)")
    e("s_barrier")
    e("s_branch K2_ROUND")

def trace_code():
    e("s_memtime s[44:45]")
    e("s_memrealtime s[46:47]")
    e(f"s_lshl_b32 s48, s2, 3")
    e(f"s_add_u32 s48, s48, s{sWave}")
    e(f"s_lshl_b32 s48, s48, 4")
    e(f"s_add_u32 s48, s48, s{sCnt}")
    e(f"s_lshl_b32 s48, s48, 3")
    e(f"s_add_u32 s48, s48, {WS_DIAG+0x80000}")
    e("s_waitcnt lgkmcnt(0)")
    e("v_mov_b32 v8, s44")
    e("v_mov_b32 v9, s46")
    e("v_mov_b32 v10, 0")
    e("s_mov_b64 exec, 1")
    e(f"buffer_store_dwordx2 v[8:9], v10, {sr(sWs,4)}, s48 offen")
    e("s_mov_b64 exec, -1")

def loop_body():
    global L
    n0 = len(L)
    loop_body0()
    k = OPT['kill']
    body = L[n0:]; del L[n0:]
    for l in body:
        t = l.strip()
        if k & 1 and t.startswith('ds_read'): continue
        if k & 2 and t.startswith('ds_write'): continue
        if k & 4 and t.startswith('buffer_load'): continue
        if k & 8 and t.startswith('s_waitcnt') and not OPT['trace']: continue
        if k & 16 and t.startswith('v_add_u32'): continue
        if k & 32 and t.startswith('v_fmaak'): l = l.replace('v_fmaak_f32','v_mul_f32').rsplit(',',1)[0]
        if k & 64 and t.startswith('v_fma_f32'): l = l.replace('v_fma_f32','v_mul_f32').rsplit(',',1)[0]
        if k & 128 and t.startswith('v_and_b32'): continue
        L.append(l)
def loop_body0():
    e("s_setprio 1")
    ex = [[] for _ in range(9)]
    x = rd_x(); ix = rd_idx()
    ex[0] = rd_aq() + rd_bq(0)
    ex[1] = rd_bq(1) + ["s_waitcnt vmcnt(0)"]
    ex[2] = [x[0], ix[0]]
    ex[4] = [x[1], ix[1]]
    ex[5] = [ix[2], ix[3]]
    ex[6] = [x[2]]
    ex[8] = [x[3]]
    hi_phase(mfmas(1), rcps() + exps(0), ex)
    e("s_setprio 0")
    for y in mix(chain(1), avals(0)): e(y)
    e(f"v_add_u32 v{vIxA}, 64, v{vIxA}")
    e(f"v_add_u32 v{vAqA}, v{vAqA}, v{vAqI}")
    for y in frac(0): e(y)
    e("s_setprio 1")
    e("s_waitcnt lgkmcnt(0)")
    ex = [[] for _ in range(9)]
    w = writes(); d = dma(); wk = rd_wk()
    ex[0] = [d[0], w[0]]; ex[1] = [d[1], w[1]]; ex[2] = [d[2], w[2]]
    ex[4] = [d[3], w[3]]; ex[5] = wk; ex[7] = rd_qa() + [f"s_sub_u32 s{sCnt}, s{sCnt}, 1"]
    hi_phase(mfmas(0), rcps() + exps(1), ex)
    e("s_setprio 0")
    av = avals(1)
    for y in av[:8]: e(y)
    e("s_waitcnt lgkmcnt(0)")
    for y in mix(chain(0), av[8:]): e(y)
    for j in range(4):
        e(f"v_add_u32 v{vWK+2*j}, v{vWK+2*j}, v{vN16}")
    e(f"v_add_u32 v{vWkA}, 32, v{vWkA}")
    e(f"v_add_u32 v{vQaV}, v{vQaV}, v{vQaC}")
    e(f"v_add_u32 v{vQaA}, 16, v{vQaA}")
    for y in frac(1): e(y)
    if OPT['trace']: trace_code()
    e(f"s_cmp_lg_u32 s{sCnt}, 0")
    e("s_cbranch_scc1 K2_LOOP")

def kd(name, vg, sg):
    L.extend([f".amdhsa_kernel {name}",
              f"  .amdhsa_next_free_vgpr {vg}",
              f"  .amdhsa_next_free_sgpr {sg}",
              f"  .amdhsa_accum_offset {(vg+3)//4*4}",
              "  .amdhsa_group_segment_fixed_size 0",
              "  .amdhsa_kernarg_size 96",
              "  .amdhsa_user_sgpr_count 2",
              "  .amdhsa_user_sgpr_kernarg_segment_ptr 1",
              "  .amdhsa_system_sgpr_workgroup_id_x 1",
              ".end_amdhsa_kernel"])

hdr = open("cdna_kernels/%s.s.ref" % NAME).read().split("\n")
for l in hdr:
    if l.startswith("; Override") : break
    L.append(l)
if OPT['lst']:
    L.append(f"; @launch kernel={NAME}_kernel grid=(256,1,1) block=(512,1,1) lds={K2_LDS}")
else:
    L.append(f"; @launch grid=(256,1,1) block=(512,1,1) lds={K2_LDS}")
L.append('.amdgcn_target "amdgcn-amd-amdhsa--gfx950"')
L.append(".text")
L.append(f".globl {NAME}_kernel")
L.append(f".type {NAME}_kernel,@function")
sSt = 82
k2()
L.append('.section .rodata,"a"')
L.append(".p2align 6")
kd(f"{NAME}_kernel", 256, 102)
open(sys.argv[1], "w").write("\n".join(L) + "\n")
print("K2_LDS", K2_LDS, "ATAB", ATAB, "STG", STG, "ROWS", ROWS)
```

```python
import sys, struct

NAME = "standalone__edge_featured_mpnn_gatedgcn__graph"
OPT = dict(stamp=0, trace=0, stf=1, ldf=3, sched=0, remap=1, nodefirst=0, kill=0, pf=1, h1=4, dbg=0, alt=0, alt2=0, slp=2, rt=0, lst=0)
for a in sys.argv[2:]:
    k, v = a.split('=')
    OPT[k] = int(v) if k != 'pts' else v

L = []
def e(s=""): L.append("    " + s if s and not s.endswith(":") else s)
def c(s): L.append("    ; " + s)
def f32(x): return "0x%08x" % struct.unpack("<I", struct.pack("<f", x))[0]
def vr(a, n): return f"v[{a}:{a+n-1}]"
def sr(a, n): return f"s[{a}:{a+n-1}]"
FL = ["", " sc1", " sc0 sc1", " nt"]

N = 25000; E = 800000
CH = 3136
CHB = CH * 12
BM = 171799
BK = 6399988
WS_T = 0
WS_IMG = 0x40000
WS_REC = 0x80000
WS_AU = 0xA00000
WS_TOT = 0x1100000
WS_DIAG = 0x2F00000
WS_SIZE = 0x3000000
LOG2E = 1.4426950408889634
NODE_WGS = 196
RFLAG = 0x21800000
sSt = 82

def srd(d, b, size, stride=0):
    e(f"s_mov_b32 s{d}, s{b}")
    e(f"s_and_b32 s{d+1}, s{b+1}, 0xffff")
    if stride:
        e(f"s_or_b32 s{d+1}, s{d+1}, {stride<<16:#x}")
    e(f"s_mov_b32 s{d+2}, {size}")
    e(f"s_mov_b32 s{d+3}, 0x20000")

def scan64(v):
    for m in ("row_shr:1 row_mask:0xf", "row_shr:2 row_mask:0xf", "row_shr:4 row_mask:0xf",
              "row_shr:8 row_mask:0xf", "row_bcast:15 row_mask:0xa", "row_bcast:31 row_mask:0xc"):
        e("s_nop 1")
        e(f"v_add_u32_dpp v{v}, v{v}, v{v} {m} bank_mask:0xf")

PTS = {}
def pt(name):
    if name in PTS: stamp(PTS[name])
def stamp(i):
    if OPT['stamp']:
        e(f"{'s_memrealtime' if OPT['rt'] else 's_memtime'} {sr(sSt+2*i,2)}")
        if i == 0:
            e(f"s_memrealtime {sr(sSt+18,2)}")
def diag_out(kidx, nst, swave, ssrd, extra=None, vt=8):
    if OPT['dbg']:
        e("s_memrealtime s[42:43]")
        e("s_load_dwordx2 s[44:45], s[0:1], 80")
        e("s_waitcnt lgkmcnt(0)")
        e(f"s_cmp_lg_u32 s2, {OPT['dbg']}")
        e(f"s_cbranch_scc1 K{kidx+1}_END")
        e(f"s_cmp_lg_u32 s{swave}, 5")
        e(f"s_cbranch_scc1 K{kidx+1}_END")
        e(f"s_add_u32 s44, s44, {512*(1-kidx)}")
        e("s_addc_u32 s45, s45, 0")
        srd(48, 44, 64)
        e(f"v_mov_b32 v{vt}, 0")
        e("s_mov_b64 exec, 1")
        sel = [(2,3,5,6,8),(1,2,4,5,6,7,8)][kidx]
        o = [0, 7][kidx]
        e(f"v_mov_b32 v{vt+1}, s{sSt+18}")
        e(f"buffer_store_dword v{vt+1}, v{vt}, s[48:51], 0 offen offset:{4*o}")
        for n, i in enumerate(sel):
            e(f"s_sub_u32 s40, s{sSt+2*i}, s{sSt}")
            e(f"v_mov_b32 v{vt+1}, s40")
            e(f"buffer_store_dword v{vt+1}, v{vt}, s[48:51], 0 offen offset:{4*(o+1+n)}")
        e(f"v_mov_b32 v{vt+1}, s42")
        e(f"buffer_store_dword v{vt+1}, v{vt}, s[48:51], 0 offen offset:{4*(o+1+len(sel))}")
        return
    e("s_memrealtime s[42:43]")
    e("s_waitcnt lgkmcnt(0)")
    e(f"s_lshl_b32 s39, s2, 4")
    e(f"s_add_u32 s39, s39, s{swave}")
    e(f"s_lshl_b32 s39, s39, 6")
    e(f"s_add_u32 s39, s39, {WS_DIAG + kidx*0x40000}")
    e(f"v_mov_b32 v{vt}, 0")
    e("s_mov_b64 exec, 1")
    for i in range(1, nst):
        e(f"s_sub_u32 s40, s{sSt+2*i}, {'0' if OPT['rt']==2 else 's%d' % sSt}")
        e(f"v_mov_b32 v{vt+1}, s40")
        e(f"buffer_store_dword v{vt+1}, v{vt}, {sr(ssrd,4)}, s39 offen offset:{4*(i-1)}")
    if extra is not None:
        e(f"v_mov_b32 v{vt+1}, s{extra}")
        e(f"buffer_store_dword v{vt+1}, v{vt}, {sr(ssrd,4)}, s39 offen offset:48")
    e("s_getreg_b32 s40, hwreg(HW_REG_HW_ID)")
    e(f"v_mov_b32 v{vt+1}, s40")
    e(f"buffer_store_dword v{vt+1}, v{vt}, {sr(ssrd,4)}, s39 offen offset:52")
    e(f"v_mov_b32 v{vt+1}, s{sSt+18}")
    e(f"buffer_store_dword v{vt+1}, v{vt}, {sr(ssrd,4)}, s39 offen offset:56")
    e(f"v_mov_b32 v{vt+1}, s42")
    e(f"buffer_store_dword v{vt+1}, v{vt}, {sr(ssrd,4)}, s39 offen offset:60")

def mfma(d, a, b, cc):
    cs = "0" if cc is None else vr(cc, 16)
    return f"v_mfma_f32_32x32x16_bf16 {vr(d,16)}, {vr(a,4)}, {vr(b,4)}, {cs}"

CAP = 3584
CNT = 0
MORE = 512
BI = 528
M4 = 1280
E8 = M4 + CAP * 4 + 256
QWK = E8 + CAP * 8 + 256
QA = QWK + (CAP // 4) * 8 + 256
AST = 136
RST = 528
ATAB = QA + (CAP // 4) * 4 + 256
STG = (ATAB + 98 * AST + 1023) // 1024 * 1024
ROWS = STG + 32768
WRAW = STG
XOWN = ROWS
WCT = ROWS + 16384
P_HIST = ROWS + 20480
P_BASE = P_HIST + 1024
P_STG = M4
assert P_STG + CHB <= QWK
DUMMY = ROWS + 98 * RST
K2_LDS = DUMMY + 1024
assert XOWN + 16384 <= DUMMY
assert E8 % 16 == 0 and QWK % 16 == 0 and K2_LDS <= 160 * 1024 and ATAB < 65536, (K2_LDS, ATAB)
SC = 24
PADV = 0x7F007F00
RFLAG = 0x21800000

vW = 128; vD = [192, 224]; vX = 112; vBq = [104, 108]; vAq = 100; vAcc = 84
vS = 72; vN = 76; vP = 80; vWK = 64; vIdx = 56; vC = 40; vXo = 24; vU = 32; vXa = 20
vLane = 1; vAqA = 2; vAqI = 3; vIxA = 4; vQaA = 5; vQaV = 6; vQaC = 7
vWkA = 16; vN16 = 17; vC1 = 18; vTail = 19
vTe = 8
sX = 4; sXr = 8; sWs = 12; sOut = 16; sWc = 20
sBase = 24; sNN = 25; sWave = 26; sJ0 = 27; sLW = 28; sFirst = 29; sInit = 30; sQt = 31; sTt = 32
sNT = 33; sQw = 34; sStg = 35; sMore = 36; sBig = 37; sCnt = 38; sT0 = 39; sT1 = 40; sT2 = 41
sMk = 44

def G(b): return vD[b]
def H(b): return vD[b] + 16
def Wg(nt, s): return vW + (nt * 4 + s) * 4
def Wh(nt, s): return vW + 32 + (nt * 4 + s) * 4
def mfmas(nt):
    g = G(nt); h = H(nt)
    return [mfma(g, vAq, vBq[nt], vC),
            mfma(h, vX, Wh(nt,0), None), mfma(g, vX, Wg(nt,0), g),
            mfma(h, vX+4, Wh(nt,1), h), mfma(g, vX+4, Wg(nt,1), g),
            mfma(h, vX+8, Wh(nt,2), h), mfma(g, vX+8, Wg(nt,2), g),
            mfma(h, vX+12, Wh(nt,3), h), mfma(g, vX+12, Wg(nt,3), g)]
def acc(nt, j): return vAcc + j * 4 + nt * 2
def chain(nt):
    o = []
    for j in range(4):
        a = acc(nt, j); p = acc(nt, (j + 3) % 4); k = vWK + 2 * j + 1
        o += [f"v_and_b32 v{a}, v{p}, v{k}", f"v_and_b32 v{a+1}, v{p+1}, v{k}",
              f"v_fmac_f32 v{a}, v{vS+j}, v{vP+j}", f"v_fmac_f32 v{a+1}, v{vN+j}, v{vP+j}"]
    return o
def writes(): return [f"ds_write_b128 v{vWK+2*j}, {vr(vAcc+4*j,4)}" for j in range(4)]
def avals(nt):
    g = G(nt)
    return [f"v_fmaak_f32 v{g+r}, v{g+r}, v{vC1}, {f32(2.0**-SC)}" for r in range(16)]
def frac(nt):
    g = G(nt); h = H(nt); o = []
    J = range(4)
    o += [f"v_add_f32 v{vS+j}, v{g+4*j}, v{g+4*j+1}" for j in J]
    o += [f"v_mul_f32 v{vP+j}, v{g+4*j}, v{g+4*j+1}" for j in J]
    o += [f"v_mul_f32 v{vN+j}, v{h+4*j}, v{g+4*j+1}" for j in J]
    o += [f"v_fmac_f32 v{vN+j}, v{h+4*j+1}, v{g+4*j}" for j in J]
    for i in (2, 3):
        o += [f"v_mul_f32 v{h+4*j+i}, v{h+4*j+i}, v{vP+j}" for j in J]
        o += [f"v_fma_f32 v{vS+j}, v{vS+j}, v{g+4*j+i}, v{vP+j}" for j in J]
        o += [f"v_fma_f32 v{vN+j}, v{vN+j}, v{g+4*j+i}, v{h+4*j+i}" for j in J]
        o += [f"v_mul_f32 v{vP+j}, v{vP+j}, v{g+4*j+i}" for j in J]
    return o
def mix(a, b):
    o = []; a = list(a); b = list(b)
    while a or b:
        if a: o += a[:2]; a = a[2:]
        if b: o += b[:2]; b = b[2:]
    return o
def exps(nt): return [f"v_exp_f32_e64 v{G(nt)+r}, v{G(nt)+r} clamp" for r in range(16)]
def rcps(): return [f"v_rcp_f32 v{vP+j}, v{vP+j}" for j in range(4)]
def rd_x(): return [f"ds_read_b128 {vr(vX+4*s,4)}, v{vXa+s}" for s in range(4)]
def rd_aq(): return [f"ds_read2_b32 {vr(vAq,2)}, v{vAqA} offset0:0 offset1:1"]
def rd_idx(): return [f"ds_read_u16 v{vIdx+2*i}, v{vIxA} offset:{M4+4*i}" for i in range(4)]
def rd_qa(): return [f"ds_read_u16 v{vQaV}, v{vQaA} offset:{QA}"]
def rd_bq(nt): return [f"ds_read_b64_tr_b16 {vr(vBq[nt]+2,2)}, v{vQaV} offset:{ATAB+64*nt}"]
def rd_wk(): return [f"ds_read_b128 {vr(vWK,4)}, v{vWkA} offset:{QWK}", f"ds_read_b128 {vr(vWK+4,4)}, v{vWkA} offset:{QWK+16}"]
def dma(): return [f"buffer_load_dwordx4 {vr(vIdx+2*i,2)}, {sr(sX,4)}, 0 idxen offen offset:{1024*i} lds" for i in range(4)]

def hi_phase(ms, trans, extras, per=(2, 2, 2, 3, 2, 2, 3, 2, 2)):
    t = 0
    for g in range(9):
        e(ms[g])
        for _ in range(per[g]):
            e(trans[t]); t += 1
        for x in extras[g]:
            e(x)
    assert t == 20

def lane_consts():
    c("---- lane constants ----")
    e(f"v_and_b32 v67, 31, v{vLane}")
    e(f"v_lshrrev_b32 v81, 5, v{vLane}")
    e(f"v_bfe_u32 v70, v{vLane}, 2, 1")
    e(f"v_bfe_u32 v71, v{vLane}, 3, 2")
    e("v_and_b32 v72, 1, v71")
    e("v_lshlrev_b32 v72, 4, v72")
    e("v_mov_b32 v73, 0x3f80")
    e("v_cmp_eq_u32 vcc, v70, v81")
    e("v_lshlrev_b32 v72, v72, v73")
    e("v_cmp_gt_u32 s[42:43], 2, v71")
    e("v_cndmask_b32 v72, 0, v72, vcc")
    e(f"v_and_b32 v73, 3, v{vLane}")
    e(f"v_cndmask_b32 v{vAq+2}, 0, v72, s[42:43]")
    e(f"v_cndmask_b32 v{vAq+3}, v72, 0, s[42:43]")
    e(f"v_and_b32 v77, 7, v{vLane}")
    e("v_lshlrev_b32 v78, 2, v81")
    e("v_xor_b32 v77, v77, v78")
    for i in range(4):
        e(f"v_xor_b32 v74, {i}, v77")
        e(f"v_lshlrev_b32 v74, 4, v74")
        e(f"v_add_u32 v{vIdx+2*i+1}, {3072-1024*i}, v74")
    e(f"v_bfe_u32 v74, v{vLane}, 2, 3")
    e(f"v_bfe_u32 v75, v{vLane}, 4, 1")
    e("v_lshl_add_u32 v72, v75, 2, v73")
    e("v_lshlrev_b32 v76, 10, v73")
    e("v_lshl_add_u32 v76, v74, 7, v76")
    e(f"v_add_u32 v76, s{sStg}, v76")
    e("v_xor_b32 v72, v72, v81")
    for s_ in range(4):
        e(f"v_xor_b32 v74, {2*s_}, v72")
        e(f"v_lshl_add_u32 v{vXa+s_}, v74, 4, v76")
    e(f"v_lshlrev_b32 v{vN16}, 4, v67")
    e(f"v_mov_b32 v{vC1}, {f32(2.0**SC)}")
    e(f"v_lshlrev_b32 v{vAqI}, 6, v81")
    e(f"v_add_u32 v{vAqI}, 64, v{vAqI}")
    e("v_lshlrev_b32 v73, 3, v73")
    e(f"v_lshl_add_u32 v{vQaC}, v75, 5, v73")
    c("setup addresses: v82 weight copy source, v78/v79 own x source, v8 A table write, v9/v10/v11 transposed reads, v12 wc")
    e("v_lshlrev_b32 v75, 6, v75")
    e("v_xor_b32 v82, v68, v75")
    e(f"s_and_b32 s{sT2}, s{sWave}, 1")
    e(f"s_lshl_b32 s{sT1}, s{sT2}, 1")
    e(f"v_xor_b32 v78, s{sT1}, v77")
    e("v_lshlrev_b32 v78, 4, v78")
    e(f"v_lshrrev_b32 v79, 3, v{vLane}")
    e("v_lshl_add_u32 v78, v79, 9, v78")
    e("v_xor_b32 v79, 16, v78")
    e("v_add_u32 v79, 128, v79")
    e(f"s_lshr_b32 s{sT0}, s{sWave}, 1")
    e(f"s_lshl_b32 s{sT0}, s{sT0}, 5")
    e(f"v_add_u32 v8, s{sT0}, v67")
    e(f"v_cmp_gt_u32 {sr(sMore,2)}, s{sNN}, v8")
    e(f"v_mul_u32_u24 v8, {AST}, v8")
    e("v_lshl_add_u32 v8, v81, 3, v8")
    e(f"s_lshl_b32 s{sT2}, s{sT2}, 6")
    e(f"v_add_u32 v8, s{sT2}, v8")
    e(f"s_add_u32 s{sQw}, s{sT0}, s{sBase}")
    e(f"s_add_u32 s{sQw}, s{sQw}, s{sT1}")
    e(f"s_lshl_b32 s{sQw}, s{sQw}, 7")
    e(f"v_bfe_u32 v71, v{vLane}, 2, 2")
    e("v_lshl_add_u32 v12, v81, 2, v71")
    e(f"v_lshl_add_u32 v12, v12, 7, v{vQaC}")
    e(f"v_add_u32 v12, {WCT}, v12")
    e("v_lshl_add_u32 v9, v81, 3, v71")
    e(f"v_lshl_add_u32 v9, v9, 7, v{vQaC}")
    e(f"v_bfe_u32 v71, v{vLane}, 3, 1")
    e("v_lshl_add_u32 v9, v71, 6, v9")
    e(f"v_add_u32 v9, {WRAW}, v9")
    e("v_xor_b32 v10, 64, v9")
    e(f"v_xor_b32 v11, s{sT2}, v9")

def scale8(first, n):
    for r in range(n):
        e(f"v_lshlrev_b32 v72, 16, v{first+r}")
        e(f"v_and_b32 v73, 0xffff0000, v{first+r}")
        e(f"v_mul_f32 v72, v74, v72")
        e(f"v_mul_f32 v73, v74, v73")
        e(f"v_cvt_pk_bf16_f32 v{first+r}, v72, v73")

def k2():
    st = FL[OPT['stf']]; ld = FL[OPT['ldf']]
    sP = 3
    e(".p2align 8")
    e(f"{NAME}_kernel:")
    e("s_cmp_ge_u32 s2, 256")
    e("s_cbranch_scc1 K2_END")
    stamp(0)
    e("s_load_dwordx8 s[44:51], s[0:1], 0")
    e("s_load_dwordx8 s[52:59], s[0:1], 64")
    e("s_load_dwordx8 s[60:67], s[0:1], 32")
    e(f"s_mov_b32 s{sP}, s2")
    e(f"s_and_b32 s{sT0}, s2, 7")
    e("s_lshr_b32 s2, s2, 3")
    e(f"s_lshl_b32 s{sT0}, s{sT0}, 5")
    e(f"s_or_b32 s2, s2, s{sT0}")
    e(f"v_and_b32 v{vLane}, 63, v0")
    e("v_lshrrev_b32 v2, 6, v0")
    e(f"s_mul_i32 s{sT0}, s{sP}, {CH*4}")
    e(f"v_readfirstlane_b32 s{sWave}, v2")
    e(f"v_lshl_add_u32 v64, v0, 4, s{sT0}")
    e(f"v_add_u32 v65, 7168, v64")
    e("v_lshlrev_b32 v66, 1, v64")
    e("v_lshlrev_b32 v67, 1, v65")
    e(f"s_mov_b32 s{sT1}, {E*4}")
    e("s_movk_i32 s42, 336")
    e(f"v_cmp_gt_u32 s[76:77], s{sT1}, v64")
    e(f"v_cmp_gt_u32 s[78:79], s{sT1}, v65")
    e("v_cmp_gt_u32 vcc, s42, v0")
    e(f"v_lshlrev_b32 v68, 4, v{vLane}")
    e(f"v_add_u32 v69, {P_HIST}, v68")
    for i in range(4):
        e(f"v_mov_b32 v{72+i}, 0")
    e("s_and_b64 s[78:79], s[78:79], vcc")
    e(f"s_cmp_eq_u32 s{sWave}, 7")
    e("s_cselect_b64 s[80:81], -1, 0")
    e("s_andn2_b64 s[76:77], s[76:77], s[80:81]")
    e("s_mov_b64 exec, s[80:81]")
    e("ds_write_b128 v69, v[72:75]")
    e(f"ds_write_b128 v68, v[72:75] offset:{CNT}")
    e(f"s_mul_i32 s{sBase}, s2, {BK}")
    e(f"s_add_u32 s{sNN}, s{sBase}, {BK+65535}")
    e(f"s_add_u32 s{sBase}, s{sBase}, 65535")
    e(f"s_lshr_b32 s{sBase}, s{sBase}, 16")
    e(f"s_lshr_b32 s{sNN}, s{sNN}, 16")
    e(f"s_sub_u32 s{sNN}, s{sNN}, s{sBase}")
    e(f"s_mov_b32 s{sJ0}, 0")
    e(f"s_movk_i32 s{sLW}, 384")
    e(f"s_mov_b32 s{sFirst}, 1")
    e(f"s_lshl_b32 s{sStg}, s{sWave}, 12")
    e(f"s_add_u32 s{sStg}, s{sStg}, {STG}")
    e("s_waitcnt lgkmcnt(0)")
    srd(68, 50, E * 4)
    e("s_mov_b64 exec, s[76:77]")
    e("buffer_load_dwordx4 v[192:195], v64, s[68:71], 0 offen" + ld)
    e("s_mov_b64 exec, s[78:79]")
    e("buffer_load_dwordx4 v[196:199], v65, s[68:71], 0 offen" + ld)
    srd(sWs, 58, WS_SIZE)
    c("wave 7 clears this chunk's run-table row")
    e("s_mov_b64 exec, s[80:81]")
    e(f"s_lshl_b32 s{sT0}, s{sP}, 10")
    e(f"buffer_store_dwordx4 v[72:75], v68, {sr(sWs,4)}, s{sT0} offen sc1")
    srd(72, 48, E * 4)
    srd(sOut, 46, E * 8)
    e("s_barrier")
    pt('b1')
    e("s_mov_b64 exec, s[76:77]")
    e("buffer_load_dwordx4 v[200:203], v64, s[72:75], 0 offen" + ld)
    e(f"buffer_load_dwordx4 v[208:211], v66, {sr(sOut,4)}, 0 offen" + ld)
    e(f"buffer_load_dwordx4 v[212:215], v66, {sr(sOut,4)}, 0 offen offset:16" + ld)
    e("s_mov_b64 exec, -1")
    srd(sWc, 56, 256)
    srd(sXr, 44, N * 128)
    e("s_sub_u32 s50, s44, 3072")
    e("s_subb_u32 s51, s45, 0")
    srd(sX, 50, N, stride=128)
    e(f"s_cmp_eq_u32 s{sWave}, 7")
    e("s_cbranch_scc1 P1_W7A")
    e("v_mov_b32 v70, 12")
    e(f"s_mov_b32 s{sT0}, {BM}")
    e("s_movk_i32 s42, 0x3fc")
    e(f"v_mov_b32 v71, {P_HIST}")
    for it in range(2):
        e(f"s_mov_b64 exec, s[{76+2*it}:{77+2*it}]")
        e(f"s_waitcnt vmcnt({5-it})")
        for i in range(4):
            e(f"v_mul_u32_u24 v{224+4*it+i}, s{sT0}, v{192+4*it+i}")
        for i in range(4):
            e(f"v_lshrrev_b32 v{224+4*it+i}, 22, v{224+4*it+i}")
        for i in range(4):
            e(f"v_and_or_b32 v{224+4*it+i}, v{224+4*it+i}, s42, v71")
            e(f"ds_add_rtn_u32 v{232+4*it+i}, v{224+4*it+i}, v70")
        for i in range(4):
            e(f"v_and_b32 v{192+4*it+i}, 127, v{192+4*it+i}")
    e("s_mov_b64 exec, s[78:79]")
    e("buffer_load_dwordx4 v[204:207], v65, s[72:75], 0 offen" + ld)
    e(f"buffer_load_dwordx4 v[216:219], v67, {sr(sOut,4)}, 0 offen" + ld)
    e(f"buffer_load_dwordx4 v[220:223], v67, {sr(sOut,4)}, 0 offen offset:16" + ld)
    e("s_mov_b64 exec, -1")
    e("s_waitcnt lgkmcnt(0)")
    def p1_scan():
        e("s_barrier")
        pt('b2')
        e("ds_read_b128 v[240:243], v69")
        e("s_waitcnt lgkmcnt(0)")
        e("v_add_u32 v72, v240, v241")
        e("v_add_u32 v73, v72, v242")
        e("v_add_u32 v76, v73, v243")
        e("v_mov_b32 v80, v76")
        scan64(80)
        e("v_sub_u32 v244, v80, v76")
        e("v_add_u32 v245, v244, v240")
        e("v_add_u32 v246, v244, v72")
        e("v_add_u32 v247, v244, v73")
    p1_scan()
    e(f"ds_write_b128 v69, v[244:247] offset:{P_BASE-P_HIST}")
    e("s_waitcnt lgkmcnt(0)")
    for it in range(2):
        e(f"s_mov_b64 exec, s[{76+2*it}:{77+2*it}]")
        for i in range(4):
            e(f"ds_read_b32 v{224+4*it+i}, v{224+4*it+i} offset:{P_BASE-P_HIST}")
    e("s_mov_b64 exec, -1")
    def side_copies():
        e(f"s_lshl_b32 s{sT1}, s{sWave}, 11")
        e(f"s_add_u32 m0, s{sT1}, {XOWN}")
        e(f"s_lshl_b32 s{sT1}, s{sWave}, 10")
        e(f"buffer_load_dwordx4 v78, {sr(sXr,4)}, s{sQw} offen lds")
        e("s_add_u32 m0, m0, 1024")
        e("s_nop 0")
        e(f"buffer_load_dwordx4 v79, {sr(sXr,4)}, s{sQw} offen lds")
        for k, pw in enumerate((52, 60, 66)):
            e(f"s_add_u32 m0, s{sT1}, {WRAW+8192*(k+1)}")
            srd(68, pw, 8192)
            e(f"buffer_load_dwordx4 v82, s[68:71], s{sT1} offen lds")
        srd(68, 62, 8192)
        e(f"buffer_load_dwordx4 v[112:115], v82, s[68:71], s{sT1} offen")
    lane_consts()
    side_copies()
    pt('side')
    NX = 6
    for it in range(2):
        e(f"s_mov_b64 exec, s[{76+2*it}:{77+2*it}]")
        e(f"s_waitcnt vmcnt({NX+5-3*it}) lgkmcnt({4 if it==0 else 8})")
        for i in range(4):
            k = 4 * it + i
            e(f"v_lshl_or_b32 v{200+k}, v{192+k}, 18, v{200+k}")
            e(f"v_add_u32 v{224+k}, v{224+k}, v{232+k}")
            e(f"ds_write_b32 v{224+k}, v{200+k} offset:{P_STG+8}")
        for i in range(4):
            k = 4 * it + i
            if i % 2 == 0:
                e(f"s_waitcnt vmcnt({NX+4-3*it-i//2})")
            e(f"v_add_u32 v{224+k}, {P_STG}, v{224+k}")
            e(f"ds_write2_b32 v{224+k}, v{208+2*k}, v{209+2*k} offset0:0 offset1:1")
    e("s_mov_b64 exec, -1")
    pt('p1scat')
    e("s_waitcnt vmcnt(0)")
    e("P1_J:")
    pt('p1j')
    srd(sOut, 54, N * 128)
    e("v_lshlrev_b32 v64, 4, v0")
    e(f"v_mov_b32 v74, {f32(-LOG2E)}")
    e(f"v_add_u32 v75, {WRAW}, v64")
    scale8(112, 4)
    e("ds_write_b128 v75, v[112:115]")
    e(f"s_mul_i32 s{sT0}, s{sP}, {CHB}")
    e(f"s_add_u32 s{sT0}, s{sT0}, {WS_REC}")
    e("s_movk_i32 s42, 304")
    e("v_cmp_gt_u32 vcc, s42, v0")
    e("s_waitcnt lgkmcnt(0)")
    e("s_barrier")
    pt('b3')
    for k in range(5):
        e(f"ds_read_b128 {vr(192+4*k,4)}, v64 offset:{P_STG + k*8192}")
    for k in range(5):
        if k == 4:
            e("s_mov_b64 exec, vcc")
        e(f"s_waitcnt lgkmcnt({4-k})")
        e(f"buffer_store_dwordx4 {vr(192+4*k,4)}, v64, {sr(sWs,4)}, s{sT0} offen sc1")
        if k < 4:
            e(f"s_add_u32 s{sT0}, s{sT0}, 8192")
    e("s_mov_b64 exec, -1")
    pt('stored')
    c("---- A table and U for this wave's (node tile, channel half); weight operands ----")
    e(f"s_lshr_b32 s{sT0}, s{sWave}, 1")
    e(f"s_lshl_b32 s{sT0}, s{sT0}, 12")
    e(f"s_add_u32 s{sT0}, s{sT0}, {XOWN}")
    e(f"s_sub_u32 s{sT0}, s{sT0}, s{sStg}")
    for s_ in range(4):
        e(f"v_add_u32 v{72+s_}, s{sT0}, v{vXa+s_}")
        e(f"ds_read_b128 {vr(40+4*s_,4)}, v{72+s_}")
    for m in range(2):
        for s_ in range(4):
            for hf in range(2):
                e(f"ds_read_b64_tr_b16 {vr(vW+16*m+4*s_+2*hf,2)}, v11 offset:{16384+m*8192+s_*2048+hf*512}")
    e(f"s_mov_b32 s{sT0}, {f32(-LOG2E)}")
    e("s_waitcnt lgkmcnt(8)")
    for s_ in range(4):
        e(mfma(84, vW+4*s_, 40+4*s_, 84 if s_ else None))
    e("s_waitcnt lgkmcnt(0)")
    for s_ in range(4):
        e(mfma(112, vW+16+4*s_, 40+4*s_, 112 if s_ else None))
    for m in range(2):
        for nt in range(2):
            for s_ in range(4):
                for hf in range(2):
                    e(f"ds_read_b64_tr_b16 {vr(vW+32*m+16*nt+4*s_+2*hf,2)}, v{9+nt} offset:{m*8192+s_*2048+hf*512}")
    for nt in range(2):
        e(f"ds_read_b64_tr_b16 {vr(vBq[nt],2)}, v12 offset:{64*nt}")
    pt('setup1')
    c("wave 7: every row must have been cleared before any row is trusted")
    e(f"s_cmp_lg_u32 s{sWave}, 7")
    e("s_cbranch_scc1 P1_RDY")
    e(f"v_and_b32 v74, 3, v{vLane}")
    e("v_lshlrev_b32 v74, 6, v74")
    e(f"s_mov_b32 s{sCnt}, 0x40000")
    e("P1_POLL:")
    e(f"buffer_load_dword v76, v74, {sr(sWc,4)}, 0 offen sc1")
    e("s_waitcnt vmcnt(0)")
    e("v_cmp_gt_u32 vcc, 64, v76")
    e(f"s_sub_u32 s{sCnt}, s{sCnt}, 1")
    e("s_cbranch_scc1 K2_END")
    e("s_cmp_eq_u64 vcc, 0")
    e("s_cbranch_scc1 P1_RDY")
    e("s_sleep 8")
    e("s_branch P1_POLL")
    e("P1_RDY:")
    pt('rdy')
    e(f"s_lshl_b32 s{sT1}, s{sP}, 10")
    e("s_waitcnt vmcnt(0)")
    e("s_barrier")
    pt('b4')
    c("publish this chunk's run table (every word carries a valid bit)")
    e("s_mov_b64 exec, s[80:81]")
    e(f"buffer_store_dwordx4 v[244:247], v68, {sr(sWs,4)}, s{sT1} offen sc1")
    e("s_mov_b64 exec, -1")
    for r in range(16):
        e(f"v_mul_f32 v{84+r}, s{sT0}, v{84+r}")
    for r in range(8):
        e(f"v_cvt_pk_bf16_f32 v{72+r}, v{84+2*r}, v{85+2*r}")
    e(f"s_mov_b64 exec, {sr(sMore,2)}")
    for j in range(4):
        e(f"ds_write_b64 v8, {vr(72+2*j,2)} offset:{ATAB+j*16}")
    e("s_mov_b64 exec, -1")
    for r in range(8):
        e(f"v_cvt_pk_bf16_f32 v{vU+r}, v{112+2*r}, v{113+2*r}")
    for r in range(16):
        e(f"v_mov_b32 v{vC+r}, {f32(-2.0*SC)}")
    e("K2_ROUND:")
    c("window offsets (0xffff = lane outside the window)")
    e(f"v_and_b32 v66, 15, v{vLane}")
    e("v_mul_u32_u24 v66, 12, v66")
    e("v_add_u32 v67, 192, v66")
    e(f"v_cmp_gt_u32 vcc, s{sLW}, v66")
    e(f"v_cmp_gt_u32 s[76:77], s{sLW}, v67")
    e(f"v_add_u32 v66, s{sJ0}, v66")
    e(f"v_add_u32 v67, s{sJ0}, v67")
    e("v_lshrrev_b32 v68, 4, v0")
    e(f"s_mov_b32 s{sT0}, {8*CHB}")
    e(f"v_mul_u32_u24 v68, s{sT0}, v68")
    e("v_add3_u32 v68, v68, v66, -1")
    e("v_mov_b32 v69, 0xffff")
    e("v_cndmask_b32 v66, v69, v66, vcc")
    e("v_cndmask_b32 v67, v69, v67, s[76:77]")
    for r in range(16):
        e(f"v_mov_b32 v{vAcc+r}, 0")
    e("v_and_b32 v64, 0x1f0, v0")
    e("v_lshlrev_b32 v64, 9, v64")
    e(f"s_lshl_b32 s{sT0}, s2, 2")
    e(f"s_add_u32 s{sT1}, s{sT0}, 4096")
    e(f"s_mov_b32 s{sCnt}, 0x40000")
    pt('poll')
    c("wait for the run tables of this wave's 32 producers")
    e("K2_POLL:")
    for i in range(8):
        e(f"buffer_load_dword v{vTe+i}, v64, {sr(sWs,4)}, s{sT0 if i<4 else sT1} offen offset:{(i%4)*1024} sc1")
    e("s_waitcnt vmcnt(0)")
    e(f"v_bitop3_b32 v69, v{vTe}, v{vTe+1}, v{vTe+2} bitop3:0x80")
    e(f"v_bitop3_b32 v70, v{vTe+3}, v{vTe+4}, v{vTe+5} bitop3:0x80")
    e(f"v_bitop3_b32 v69, v69, v{vTe+6}, v{vTe+7} bitop3:0x80")
    e(f"v_bitop3_b32 v69, v69, v70, 1 bitop3:0x80")
    e("v_cmp_eq_u32 vcc, 0, v69")
    e(f"s_sub_u32 s{sCnt}, s{sCnt}, 1")
    e("s_cbranch_scc1 K2_END")
    e("s_cmp_eq_u64 vcc, 0")
    e("s_cbranch_scc1 K2_GO")
    e(f"s_sleep {OPT['slp']}")
    e("s_branch K2_POLL")
    e("K2_GO:")
    pt('go')
    e(f"s_mov_b32 s{sCnt}, {WS_REC}")
    sd = "dst_sel:DWORD dst_unused:UNUSED_PAD "
    for i in range(8):
        m0 = sMk + 4 * i; m1 = m0 + 2
        e(f"v_cmp_lt_u32_sdwa {sr(m0,2)}, v66, v{vTe+i} src0_sel:DWORD src1_sel:WORD_1")
        e(f"v_add_u32_sdwa v69, v68, v{vTe+i} {sd}src0_sel:DWORD src1_sel:WORD_0")
        e(f"v_cmp_lt_u32_sdwa {sr(m1,2)}, v67, v{vTe+i} src0_sel:DWORD src1_sel:WORD_1")
        e(f"s_mov_b64 exec, {sr(m0,2)}")
        e(f"buffer_load_dwordx3 {vr(192+8*i,3)}, v69, {sr(sWs,4)}, s{sCnt} offen sc1")
        e(f"s_mov_b64 exec, {sr(m1,2)}")
        e(f"buffer_load_dwordx3 {vr(196+8*i,3)}, v69, {sr(sWs,4)}, s{sCnt} offen offset:192 sc1")
        e("s_mov_b64 exec, -1")
        if i < 7:
            e(f"s_add_u32 s{sCnt}, s{sCnt}, {CHB}")
    npf = 0
    e(f"v_max3_u32 v{vTe}, v{vTe}, v{vTe+1}, v{vTe+2}")
    e(f"v_max3_u32 v{vTe+3}, v{vTe+3}, v{vTe+4}, v{vTe+5}")
    e(f"v_max3_u32 v{vTe}, v{vTe}, v{vTe+6}, v{vTe+7}")
    e(f"v_max_u32 v{vTe}, v{vTe}, v{vTe+3}")
    e(f"s_add_u32 s{sT1}, s{sJ0}, s{sLW}")
    e(f"s_lshl_b32 s{sT1}, s{sT1}, 16")
    e(f"s_or_b32 s{sT1}, s{sT1}, 0xffff")
    e(f"v_cmp_lt_u32 vcc, s{sT1}, v{vTe}")
    e("v_mov_b32 v66, 4")
    e("v_mov_b32 v67, 0")
    e("s_mov_b64 exec, vcc")
    e(f"ds_write_b32 v67, v66 offset:{MORE}")
    e("s_mov_b64 exec, -1")
    c("scan / meta lane constants while the records are in flight")
    e(f"v_lshl_add_u32 v8, v{vLane}, 1, s{sBase}")
    e("v_add_u32 v9, 1, v8")
    e("v_and_b32 v8, 127, v8")
    e("v_and_b32 v9, 127, v9")
    e("v_lshlrev_b32 v8, 2, v8")
    e("v_lshlrev_b32 v9, 2, v9")
    e(f"s_add_u32 s{sT0}, s{sNN}, 7")
    e(f"v_lshlrev_b32 v10, 1, v{vLane}")
    e("v_add_u32 v11, 1, v10")
    e(f"v_cmp_gt_u32 vcc, s{sT0}, v10")
    e(f"v_cmp_gt_u32 s[76:77], s{sT0}, v11")
    e("v_lshrrev_b32 v12, 2, v0")
    e("v_cndmask_b32 v10, 0, 16, vcc")
    e("v_cndmask_b32 v11, 0, 16, s[76:77]")
    e(f"v_cmp_gt_u32 vcc, s{sT0}, v12")
    e(f"v_cmp_gt_u32 s[76:77], s{sNN}, v12")
    e(f"v_add_u32 v13, s{sBase}, v12")
    e("v_cndmask_b32 v14, 0, 16, vcc")
    e("v_and_b32 v13, 127, v13")
    e("v_lshlrev_b32 v13, 2, v13")
    e(f"v_mul_u32_u24 v15, {RST}, v12")
    e(f"v_add_u32 v15, {ROWS}, v15")
    e(f"v_mov_b32 v64, {DUMMY+512}")
    e("v_cndmask_b32 v15, v64, v15, s[76:77]")
    e("v_cndmask_b32 v12, 0, v12, s[76:77]")
    e(f"v_mul_u32_u24 v12, {AST+65536}, v12")
    for j in range(4):
        e(f"v_mov_b32 v{vN+j}, 0")
        e(f"v_mov_b32 v{vP+j}, 1.0")
    for q in range(16):
        r = 192 + 4 * q
        e(f"s_mov_b64 exec, {sr(sMk+2*q,2)}")
        if q % 2:
            e(f"s_cbranch_execz K2_H{q}")
        e(f"s_waitcnt vmcnt({15+npf-q})")
        e(f"v_lshrrev_b32 v{112+q}, 16, v{r+2}")
        e(f"ds_add_rtn_u32 v{r+3}, v{112+q}, v66 offset:{CNT}")
        if q % 2:
            e(f"K2_H{q}:")
    e("s_mov_b64 exec, -1")
    e("s_waitcnt lgkmcnt(0)")
    e("s_barrier")
    pt('hist')
    c("---- scan (every wave, redundantly) ----")
    e(f"ds_read_b32 v64, v8 offset:{CNT}")
    e(f"ds_read_b32 v65, v9 offset:{CNT}")
    e(f"ds_read_b32 v68, v67 offset:{MORE}")
    e("s_waitcnt lgkmcnt(1)")
    e("v_add_u32 v69, 15, v64")
    e("v_add_u32 v70, 15, v65")
    e("v_and_b32 v69, -16, v69")
    e("v_and_b32 v70, -16, v70")
    e("v_max_u32 v69, v69, v10")
    e("v_max_u32 v70, v70, v11")
    e("v_add_u32 v71, v69, v70")
    e("v_mov_b32 v72, v71")
    scan64(72)
    e("v_sub_u32 v73, v72, v71")
    e("v_add_u32 v74, v73, v69")
    e(f"v_readlane_b32 s{sQt}, v72, 63")
    e("v_lshl_or_b32 v64, v64, 16, v73")
    e("v_lshl_or_b32 v65, v65, 16, v74")
    e(f"ds_write_b32 v8, v64 offset:{BI}")
    e(f"ds_write_b32 v9, v65 offset:{BI}")
    e("v_max_u32 v69, v69, v70")
    e(f"s_lshr_b32 s{sTt}, s{sQt}, 7")
    e("s_waitcnt lgkmcnt(0)")
    e(f"v_readfirstlane_b32 s{sMore}, v68")
    e(f"ds_read_b32 v64, v13 offset:{BI}")
    for q in range(16):
        e(f"s_mov_b64 exec, {sr(sMk+2*q,2)}")
        e(f"ds_read_u16 v{112+q}, v{112+q} offset:{BI}")
    e("s_mov_b64 exec, -1")
    e(f"s_cmp_gt_u32 s{sQt}, {CAP*4}")
    e(f"s_cselect_b32 s{sT0}, 1, s{sMore}")
    e(f"s_cmp_eq_u32 s{sLW}, 384")
    e(f"s_cselect_b32 s{sT0}, s{sT0}, 0")
    e(f"s_cmp_lg_u32 s{sT0}, 0")
    e("s_cbranch_scc1 K2_FAIL")
    c("pads")
    e("v_and_b32 v65, 3, v0")
    e(f"v_mov_b32 v70, {PADV:#x}")
    e("v_mov_b32 v72, 0")
    e("v_mov_b32 v73, 0")
    e("s_waitcnt lgkmcnt(15)")
    e("v_lshrrev_b32 v68, 16, v64")
    e("v_and_b32 v64, 0xffff, v64")
    e("v_add_u32 v74, 15, v68")
    e("v_and_b32 v74, -16, v74")
    e("v_max_u32 v74, v74, v14")
    e("v_lshl_add_u32 v68, v65, 2, v68")
    e("v_cmp_lt_u32 vcc, v68, v74")
    e("v_add_u32 v68, v68, v64")
    e("v_lshlrev_b32 v71, 1, v68")
    e("s_mov_b64 exec, vcc")
    e(f"ds_write_b32 v68, v70 offset:{M4}")
    e(f"ds_write_b64 v71, v[72:73] offset:{E8}")
    e("s_waitcnt lgkmcnt(2)")
    c("---- scatter records ----")
    for q in range(16):
        r = 192 + 4 * q
        e(f"s_mov_b64 exec, {sr(sMk+2*q,2)}")
        if q % 2:
            e(f"s_cbranch_execz K2_S{q}")
        e(f"v_add_u32 v{112+q}, v{112+q}, v{r+3}")
        e(f"v_lshlrev_b32 v{r+3}, 1, v{112+q}")
        e(f"ds_write_b32 v{112+q}, v{r+2} offset:{M4}")
        e(f"ds_write_b64 v{r+3}, {vr(r,2)} offset:{E8}")
        if q % 2:
            e(f"K2_S{q}:")
    e("s_mov_b64 exec, -1")
    e(f"s_lshr_b32 s{sT0}, s{sTt}, 3")
    e(f"s_and_b32 s{sT1}, s{sTt}, 7")
    e(f"s_lshl_b32 s{sT2}, s{sT0}, 6")
    e(f"v_cmp_lt_u32 vcc, s{sT2}, v69")
    e(f"s_mul_i32 s{sQw}, s{sT0}, s{sWave}")
    e(f"s_min_u32 s{sT2}, s{sT1}, s{sWave}")
    e(f"s_add_u32 s{sQw}, s{sQw}, s{sT2}")
    e(f"s_lshl_b32 s{sQw}, s{sQw}, 3")
    e(f"s_cmp_lt_u32 s{sWave}, s{sT1}")
    e(f"s_addc_u32 s{sNT}, s{sT0}, 0")
    e(f"s_or_b32 s{sBig}, vcc_lo, vcc_hi")
    e(f"s_lshl_b32 s{sT0}, s{sNT}, 2")
    c("gather index address")
    e(f"v_bfe_u32 v68, v{vLane}, 3, 1")
    e(f"v_lshrrev_b32 v69, 4, v{vLane}")
    e(f"v_mad_u32_u24 v68, v68, s{sT0}, v69")
    e(f"v_add_lshl_u32 v{vIxA}, v68, s{sQw}, 4")
    e(f"s_mov_b32 m0, s{sStg}")
    c("quad meta: thread = (node, k0)")
    e("v_lshrrev_b32 v69, 4, v74")
    e("v_lshrrev_b32 v64, 4, v64")
    e("v_add_u32 v64, v64, v65")
    e("v_lshlrev_b32 v68, 3, v64")
    e("v_lshlrev_b32 v64, 2, v64")
    e("v_add_u32 v70, -1, v69")
    e("v_cmp_eq_u32 vcc, 0, v65")
    e(f"v_mov_b32 v71, {DUMMY}")
    e("s_waitcnt lgkmcnt(0)")
    e("s_barrier")
    pt('scat')
    for x in rd_idx(): e(x)
    e(f"v_add_u32 v{vIxA}, 64, v{vIxA}")
    e("v_cndmask_b32 v73, -1, 0, vcc")
    e("s_waitcnt lgkmcnt(0)")
    for x in dma(): e(x)
    for x in rd_idx(): e(x)
    e(f"v_add_u32 v{vIxA}, 64, v{vIxA}")
    e("K2_QM:")
    e("v_cmp_lt_u32 vcc, v65, v69")
    e("s_and_b64 exec, exec, vcc")
    e("s_cbranch_execz K2_QMD")
    e("v_cmp_eq_u32 vcc, v65, v70")
    e(f"ds_write_b32 v64, v12 offset:{QA}")
    e("v_add_u32 v65, 4, v65")
    e("v_cndmask_b32 v72, v71, v15, vcc")
    e("v_add_u32 v64, 16, v64")
    e(f"ds_write_b64 v68, v[72:73] offset:{QWK}")
    e("v_add_u32 v68, 32, v68")
    e("v_mov_b32 v73, -1")
    e("s_branch K2_QM")
    e("K2_QMD:")
    e("s_mov_b64 exec, -1")
    c("---- per-round address registers ----")
    e(f"v_bfe_u32 v64, v{vLane}, 2, 1")
    e(f"v_bfe_u32 v65, v{vLane}, 3, 2")
    e(f"v_mad_u32_u24 v64, v64, s{sT0}, v65")
    e(f"v_add_lshl_u32 v64, v64, s{sQw}, 2")
    e(f"v_and_or_b32 v64, v{vLane}, 3, v64")
    e(f"v_lshrrev_b32 v68, 5, v{vLane}")
    e("v_add_u32 v65, 2, v68")
    e("v_lshlrev_b32 v64, v65, v64")
    e(f"v_mul_u32_u24 v65, {E8-M4}, v68")
    e(f"v_add_u32 v65, {M4}, v65")
    e(f"v_add_u32 v{vAqA}, v64, v65")
    e(f"v_mul_u32_u24 v64, s{sT0}, v68")
    e(f"v_add_u32 v64, s{sQw}, v64")
    e(f"v_lshlrev_b32 v{vWkA}, 3, v64")
    e(f"v_bfe_u32 v65, v{vLane}, 2, 2")
    e(f"v_add_lshl_u32 v{vQaA}, v64, v65, 2")
    e(f"v_add_lshl_u32 v{vTail}, v64, s{sT0}, 2")
    for x in rd_aq(): e(x)
    e(f"v_add_u32 v{vAqA}, v{vAqA}, v{vAqI}")
    e("s_waitcnt lgkmcnt(0)")
    e("s_barrier")
    for x in rd_qa(): e(x)
    e(f"v_add_u32 v{vQaA}, 16, v{vQaA}")
    for j in range(4):
        e(f"v_mov_b32 v{vS+j}, 0")
        e(f"v_add_u32 v{vWK+2*j}, {DUMMY+512}, v{vN16}")
        e(f"v_mov_b32 v{vWK+2*j+1}, 0")
    c("residual operand: thread = (node tid>>2, chunks c and c+4)")
    e(f"v_lshrrev_b32 v8, 2, v0")
    e(f"v_add_u32 v8, s{sBase}, v8")
    e("v_and_b32 v9, 3, v0")
    e("v_lshlrev_b32 v9, 4, v9")
    e("v_lshl_add_u32 v8, v8, 7, v9")
    e("s_waitcnt lgkmcnt(0)")
    e(f"v_add_u32 v{vQaV}, v{vQaV}, v{vQaC}")
    for x in rd_bq(0) + rd_bq(1) + rd_qa(): e(x)
    e(f"v_add_u32 v{vQaA}, 16, v{vQaA}")
    e("s_waitcnt vmcnt(0)")
    for x in rd_x(): e(x)
    e(f"buffer_load_dwordx4 {vr(vXo,4)}, v8, {sr(sXr,4)}, 0 offen")
    e(f"buffer_load_dwordx4 {vr(vXo+4,4)}, v8, {sr(sXr,4)}, 0 offen offset:64")
    e(f"s_cmp_eq_u32 s{sNT}, 0")
    e("s_cbranch_scc1 K2_DRAIN")
    e("s_waitcnt lgkmcnt(0)")
    for x in dma(): e(x)
    for x in mfmas(0): e(x)
    e(f"s_mov_b32 s{sCnt}, s{sNT}")
    e(f"v_add_u32 v{vQaV}, v{vQaV}, v{vQaC}")
    e("s_nop 7")
    stamp(6)
    e(".p2align 6")
    e("K2_LOOP:")
    loop_body()
    e("K2_DRAIN:")
    for x in rcps(): e(x)
    e(f"v_and_b32 v9, 31, v{vLane}")
    e(f"v_lshrrev_b32 v10, 5, v{vLane}")
    for x in chain(1): e(x)
    for x in writes(): e(x)
    stamp(7)
    c("---- tails; U to LDS ----")
    e(f"ds_read_u16 v8, v{vTail} offset:{QA-2}")
    e("v_mul_u32_u24 v9, 72, v9")
    e("v_lshl_add_u32 v9, v10, 3, v9")
    e(f"v_add_u32 v9, s{sStg}, v9")
    e("s_waitcnt vmcnt(0)")
    for j in range(4):
        e(f"ds_write_b64 v9, {vr(vU+2*j,2)} offset:{16*j}")
    e(f"v_add_u32 v9, {DUMMY}, v{vN16}")
    e(f"v_cmp_eq_u32 s[76:77], v9, v{vWK+6}")
    e("v_lshrrev_b32 v10, 2, v0")
    e("v_and_b32 v14, 3, v0")
    e(f"v_mul_u32_u24 v11, {RST}, v10")
    e("v_lshl_add_u32 v11, v14, 7, v11")
    e(f"v_add_u32 v11, {ROWS}, v11")
    e("s_waitcnt lgkmcnt(0)")
    e(f"v_mul_u32_u24 v8, {RST}, v8")
    e(f"v_add_u32 v8, v8, v{vN16}")
    e(f"v_add_u32 v8, {ROWS}, v8")
    e("s_barrier")
    e("s_mov_b64 exec, s[76:77]")
    e(f"s_cmp_lg_u32 s{sBig}, 0")
    e("s_cbranch_scc1 K2_TAILAT")
    e("ds_read_b128 v[64:67], v8")
    e("s_waitcnt lgkmcnt(0)")
    for i in range(4):
        e(f"v_add_f32 v{64+i}, v{64+i}, v{vAcc+12+i}")
    e("ds_write_b128 v8, v[64:67]")
    e("K2_TAILD:")
    e("s_mov_b64 exec, -1")
    c("---- epilogue ----")
    e("v_and_b32 v12, 31, v10")
    e("v_mul_u32_u24 v12, 72, v12")
    e("v_lshrrev_b32 v13, 5, v10")
    e("v_lshl_add_u32 v12, v13, 13, v12")
    e("v_lshl_add_u32 v12, v14, 4, v12")
    e(f"v_add_u32 v12, {STG}, v12")
    e(f"v_add_u32 v15, 4096, v12")
    e("ds_read2_b64 v[112:115], v12 offset0:0 offset1:1")
    e("ds_read2_b64 v[116:119], v15 offset0:0 offset1:1")
    e(f"v_add_u32 v13, s{sBase}, v10")
    e("v_lshlrev_b32 v13, 7, v13")
    e("v_lshl_add_u32 v13, v14, 4, v13")
    e(f"v_cmp_gt_u32 s[76:77], s{sNN}, v10")
    e("s_waitcnt lgkmcnt(0)")
    e("s_barrier")
    for k in range(8):
        e(f"ds_read_b128 {vr(192+4*k,4)}, v11 offset:{16*k}")
    e(f"s_cmp_eq_u32 s{sMore}, 0")
    e(f"s_cselect_b32 s{sT1}, s{sFirst}, 0")
    e(f"s_cmp_eq_u32 s{sT1}, 0")
    e("s_cbranch_scc1 K2_SLOWTOT")
    e("K2_FIN:")
    eps = f32(1e-6 * 2.0**SC)
    e("s_mov_b64 exec, s[76:77]")
    e("s_cbranch_execz K2_DONE")
    for k in range(4):
        e(f"s_waitcnt lgkmcnt({6-2*k})")
        for it in range(2):
            b = 192 + 8 * k + 2 * it; xr = vXo + 4 * it + k; ur = 112 + 4 * it + k
            e(f"v_add_f32 v{b}, {eps}, v{b}")
            e(f"v_add_f32 v{b+4}, {eps}, v{b+4}")
            e(f"v_rcp_f32 v{b}, v{b}")
            e(f"v_rcp_f32 v{b+4}, v{b+4}")
            e(f"v_lshlrev_b32 v8, 16, v{ur}")
            e(f"v_and_b32 v9, 0xffff0000, v{ur}")
            e(f"v_fmac_f32 v8, v{b}, v{b+1}")
            e(f"v_fmac_f32 v9, v{b+4}, v{b+5}")
            e(f"v_lshlrev_b32 v{b}, 16, v{xr}")
            e(f"v_and_b32 v{b+4}, 0xffff0000, v{xr}")
            e(f"v_max_f32 v8, 0, v8")
            e(f"v_max_f32 v9, 0, v9")
            e(f"v_add_f32 v8, v8, v{b}")
            e(f"v_add_f32 v9, v9, v{b+4}")
            e(f"v_cvt_pk_bf16_f32 v{xr}, v8, v9")
    for it in range(2):
        e(f"buffer_store_dwordx4 {vr(vXo+4*it,4)}, v13, {sr(sOut,4)}, 0 offen offset:{64*it}")
    e("K2_DONE:")
    if OPT['stamp']:
        e("s_mov_b64 exec, -1")
        stamp(8)
        diag_out(1, 9, sWave, sWs, sNT)
    e("K2_END:")
    e("s_endpgm")
    c("---- wave 7, phase 1: ready count, scaled wb / wc rows, run table words ----")
    e("P1_W7A:")
    lane_consts()
    srd(68, 64, 512)
    e(f"buffer_load_dwordx4 v[224:227], v68, s[68:71], 0 offen")
    side_copies()
    p1_scan()
    e(f"s_and_b32 s{sT0}, s3, 3")
    e(f"s_lshl_b32 s{sT0}, s{sT0}, 6")
    e("v_mov_b32 v76, 1")
    e("v_mov_b32 v72, 0")
    e("s_mov_b64 exec, 1")
    e("s_waitcnt vmcnt(0)")
    e(f"buffer_atomic_add v76, v72, {sr(sWc,4)}, s{sT0} offen sc1")
    e("s_mov_b64 exec, -1")
    for i in range(4):
        e(f"v_lshl_or_b32 v{244+i}, v{240+i}, 16, v{244+i}")
        e(f"v_or_b32 v{244+i}, 1, v{244+i}")
    e(f"v_mov_b32 v74, {f32(-LOG2E)}")
    scale8(224, 4)
    c("lanes 32..63 hold flag rows (0, R, 0, 0); lanes 0..31 the wc' rows")
    e(f"v_lshrrev_b32 v73, 3, v{vLane}")
    e("v_cmp_eq_u32 vcc, 5, v73")
    e(f"v_mov_b32 v72, {(RFLAG>>16)*0x10001:#x}")
    e(f"v_xor_b32 v73, 512, v68")
    for r in range(4):
        e(f"v_cndmask_b32 v{224+r}, v{224+r}, v72, vcc")
    e(f"v_add_u32 v73, {WCT}, v73")
    e("ds_write_b128 v73, v[224:227]")
    e("s_branch P1_J")
    c("---- rare paths ----")
    e("K2_NEXT:")
    e("v_lshlrev_b32 v64, 2, v0")
    e("v_mov_b32 v66, 0")
    e("s_movk_i32 s42, 132")
    e("v_cmp_gt_u32 vcc, s42, v0")
    e("s_mov_b64 exec, vcc")
    e(f"ds_write_b32 v64, v66 offset:{CNT}")
    e("s_mov_b64 exec, -1")
    e("s_waitcnt lgkmcnt(0)")
    e("s_barrier")
    e("s_branch K2_ROUND")
    e("K2_TAILAT:")
    for i in range(4):
        e(f"ds_add_f32 v8, v{vAcc+12+i} offset:{4*i}")
    e("s_branch K2_TAILD")
    e("K2_FAIL:")
    e(f"s_movk_i32 s{sLW}, 144")
    e("s_waitcnt vmcnt(0) lgkmcnt(0)")
    e("s_barrier")
    e("s_branch K2_NEXT")
    e("K2_SLOWTOT:")
    e("v_lshlrev_b32 v14, 7, v0")
    e(f"s_lshl_b32 s{sT1}, s2, 16")
    e(f"s_add_u32 s{sT1}, s{sT1}, {WS_TOT}")
    e("s_waitcnt lgkmcnt(0)")
    e(f"s_cmp_lg_u32 s{sFirst}, 0")
    e("s_cbranch_scc1 K2_ST1")
    for r in range(8):
        e(f"buffer_load_dwordx4 {vr(224+4*r,4)}, v14, {sr(sWs,4)}, s{sT1} offen offset:{16*r} sc1")
    e("s_waitcnt vmcnt(0)")
    for r in range(32):
        e(f"v_add_f32 v{192+r}, v{192+r}, v{224+r}")
    e(f"s_cmp_eq_u32 s{sMore}, 0")
    e("s_cbranch_scc1 K2_FIN")
    e("K2_ST1:")
    for r in range(8):
        e(f"buffer_store_dwordx4 {vr(192+4*r,4)}, v14, {sr(sWs,4)}, s{sT1} offen offset:{16*r} sc1")
    e(f"s_mov_b32 s{sFirst}, 0")
    e(f"s_add_u32 s{sJ0}, s{sJ0}, s{sLW}")
    e("s_waitcnt vmcnt(0)")
    e("s_barrier")
    e("s_branch K2_NEXT")

def trace_code():
    e("s_memtime s[44:45]")
    e("s_memrealtime s[46:47]")
    e(f"s_lshl_b32 s48, s2, 3")
    e(f"s_add_u32 s48, s48, s{sWave}")
    e(f"s_lshl_b32 s48, s48, 4")
    e(f"s_add_u32 s48, s48, s{sCnt}")
    e(f"s_lshl_b32 s48, s48, 3")
    e(f"s_add_u32 s48, s48, {WS_DIAG+0x80000}")
    e("s_waitcnt lgkmcnt(0)")
    e("v_mov_b32 v8, s44")
    e("v_mov_b32 v9, s46")
    e("v_mov_b32 v10, 0")
    e("s_mov_b64 exec, 1")
    e(f"buffer_store_dwordx2 v[8:9], v10, {sr(sWs,4)}, s48 offen")
    e("s_mov_b64 exec, -1")

def loop_body():
    global L
    n0 = len(L)
    loop_body0()
    k = OPT['kill']
    body = L[n0:]; del L[n0:]
    for l in body:
        t = l.strip()
        if k & 1 and t.startswith('ds_read'): continue
        if k & 2 and t.startswith('ds_write'): continue
        if k & 4 and t.startswith('buffer_load'): continue
        if k & 8 and t.startswith('s_waitcnt') and not OPT['trace']: continue
        if k & 16 and t.startswith('v_add_u32'): continue
        if k & 32 and t.startswith('v_fmaak'): l = l.replace('v_fmaak_f32','v_mul_f32').rsplit(',',1)[0]
        if k & 64 and t.startswith('v_fma_f32'): l = l.replace('v_fma_f32','v_mul_f32').rsplit(',',1)[0]
        if k & 128 and t.startswith('v_and_b32'): continue
        L.append(l)
def loop_body0():
    e("s_setprio 1")
    ex = [[] for _ in range(9)]
    x = rd_x(); ix = rd_idx()
    ex[0] = rd_aq() + rd_bq(0)
    ex[1] = rd_bq(1) + ["s_waitcnt vmcnt(0)"]
    ex[2] = [x[0], ix[0]]
    ex[4] = [x[1], ix[1]]
    ex[5] = [ix[2], ix[3]]
    ex[6] = [x[2]]
    ex[8] = [x[3]]
    hi_phase(mfmas(1), rcps() + exps(0), ex)
    e("s_setprio 0")
    for y in mix(chain(1), avals(0)): e(y)
    e(f"v_add_u32 v{vIxA}, 64, v{vIxA}")
    e(f"v_add_u32 v{vAqA}, v{vAqA}, v{vAqI}")
    for y in frac(0): e(y)
    e("s_setprio 1")
    e("s_waitcnt lgkmcnt(0)")
    ex = [[] for _ in range(9)]
    w = writes(); d = dma(); wk = rd_wk()
    ex[0] = [d[0], w[0]]; ex[1] = [d[1], w[1]]; ex[2] = [d[2], w[2]]
    ex[4] = [d[3], w[3]]; ex[5] = wk; ex[7] = rd_qa() + [f"s_sub_u32 s{sCnt}, s{sCnt}, 1"]
    hi_phase(mfmas(0), rcps() + exps(1), ex)
    e("s_setprio 0")
    av = avals(1)
    for y in av[:8]: e(y)
    e("s_waitcnt lgkmcnt(0)")
    for y in mix(chain(0), av[8:]): e(y)
    for j in range(4):
        e(f"v_add_u32 v{vWK+2*j}, v{vWK+2*j}, v{vN16}")
    e(f"v_add_u32 v{vWkA}, 32, v{vWkA}")
    e(f"v_add_u32 v{vQaV}, v{vQaV}, v{vQaC}")
    e(f"v_add_u32 v{vQaA}, 16, v{vQaA}")
    for y in frac(1): e(y)
    if OPT['trace']: trace_code()
    e(f"s_cmp_lg_u32 s{sCnt}, 0")
    e("s_cbranch_scc1 K2_LOOP")

def kd(name, vg, sg):
    L.extend([f".amdhsa_kernel {name}",
              f"  .amdhsa_next_free_vgpr {vg}",
              f"  .amdhsa_next_free_sgpr {sg}",
              f"  .amdhsa_accum_offset {(vg+3)//4*4}",
              "  .amdhsa_group_segment_fixed_size 0",
              "  .amdhsa_kernarg_size 96",
              "  .amdhsa_user_sgpr_count 2",
              "  .amdhsa_user_sgpr_kernarg_segment_ptr 1",
              "  .amdhsa_system_sgpr_workgroup_id_x 1",
              ".end_amdhsa_kernel"])

hdr = open("cdna_kernels/%s.s.ref" % NAME).read().split("\n")
for l in hdr:
    if l.startswith("; Override") : break
    L.append(l)
if OPT['lst']:
    L.append(f"; @launch kernel={NAME}_kernel grid=(256,1,1) block=(512,1,1) lds={K2_LDS}")
else:
    L.append(f"; @launch grid=(256,1,1) block=(512,1,1) lds={K2_LDS}")
L.append('.amdgcn_target "amdgcn-amd-amdhsa--gfx950"')
L.append(".text")
L.append(f".globl {NAME}_kernel")
L.append(f".type {NAME}_kernel,@function")
sSt = 82
for i, n in enumerate(OPT.get('pts', 'b2,b3,b4,go,hist').split(',')): PTS[n] = i + 1
k2()
L.append('.section .rodata,"a"')
L.append(".p2align 6")
kd(f"{NAME}_kernel", 256, 102)
open(sys.argv[1], "w").write("\n".join(L) + "\n")
print("K2_LDS", K2_LDS, "ATAB", ATAB, "STG", STG, "ROWS", ROWS)
```

```python
import sys, struct

NAME = "standalone__edge_featured_mpnn_gatedgcn__graph"
OPT = dict(stamp=0, trace=0, stf=1, ldf=3, sched=0, remap=1, nodefirst=0, kill=0, pf=1, h1=4, dbg=0, alt=0, alt2=0, slp=2, rt=0, ost=0, role=1, fill=14, pa=2, pb=1, pl=3, wf=1, tl=0, mw=1, bt=-1, fb=0, peel=1, pf7=0, pfa=0, pfb=0, skp=2, dl=1, qu=3, lat=0, tlb=0, eb=0, lst=0)
for a in sys.argv[2:]:
    k, v = a.split('=')
    OPT[k] = int(v) if k != 'pts' else v

L = []
def e(s=""): L.append("    " + s if s and not s.endswith(":") else s)
def c(s): L.append("    ; " + s)
def f32(x): return "0x%08x" % struct.unpack("<I", struct.pack("<f", x))[0]
def vr(a, n): return f"v[{a}:{a+n-1}]"
def sr(a, n): return f"s[{a}:{a+n-1}]"
FL = ["", " sc1", " sc0 sc1", " nt"]

N = 25000; E = 800000
CH = 3136
CHB = CH * 12
BM = 171799
BK = 6399988
WS_T = 0
WS_IMG = 0x40000
WS_REC = 0x80000
WS_AU = 0xA00000
WS_TOT = 0x1100000
WS_DIAG = 0x2F00000
WS_SIZE = 0x3000000
LOG2E = 1.4426950408889634
NODE_WGS = 196
RFLAG = 0x21800000
sSt = 82

def srd(d, b, size, stride=0):
    e(f"s_mov_b32 s{d}, s{b}")
    e(f"s_and_b32 s{d+1}, s{b+1}, 0xffff")
    if stride:
        e(f"s_or_b32 s{d+1}, s{d+1}, {stride<<16:#x}")
    e(f"s_mov_b32 s{d+2}, {size}")
    e(f"s_mov_b32 s{d+3}, 0x20000")

def scan64(v):
    for m in ("row_shr:1 row_mask:0xf", "row_shr:2 row_mask:0xf", "row_shr:4 row_mask:0xf",
              "row_shr:8 row_mask:0xf", "row_bcast:15 row_mask:0xa", "row_bcast:31 row_mask:0xc"):
        e("s_nop 1")
        e(f"v_add_u32_dpp v{v}, v{v}, v{v} {m} bank_mask:0xf")

PTS = {}
def pt(name):
    if name in PTS: stamp(PTS[name])
def stamp(i):
    if OPT['stamp']:
        e(f"{'s_memrealtime' if OPT['rt'] else 's_memtime'} {sr(sSt+2*i,2)}")
        if i == 0:
            e(f"s_memrealtime {sr(sSt+18,2)}")
def diag_out(kidx, nst, swave, ssrd, extra=None, vt=8):
    if OPT['dbg']:
        e("s_memrealtime s[42:43]")
        e("s_load_dwordx2 s[44:45], s[0:1], 80")
        e("s_waitcnt lgkmcnt(0)")
        e(f"s_cmp_lg_u32 s2, {OPT['dbg']}")
        e(f"s_cbranch_scc1 K{kidx+1}_END")
        e(f"s_cmp_lg_u32 s{swave}, 5")
        e(f"s_cbranch_scc1 K{kidx+1}_END")
        e(f"s_add_u32 s44, s44, {512*(1-kidx)}")
        e("s_addc_u32 s45, s45, 0")
        srd(48, 44, 64)
        e(f"v_mov_b32 v{vt}, 0")
        e("s_mov_b64 exec, 1")
        sel = [(2,3,5,6,8),(1,2,4,5,6,7,8)][kidx]
        o = [0, 7][kidx]
        e(f"v_mov_b32 v{vt+1}, s{sSt+18}")
        e(f"buffer_store_dword v{vt+1}, v{vt}, s[48:51], 0 offen offset:{4*o}")
        for n, i in enumerate(sel):
            e(f"s_sub_u32 s40, s{sSt+2*i}, s{sSt}")
            e(f"v_mov_b32 v{vt+1}, s40")
            e(f"buffer_store_dword v{vt+1}, v{vt}, s[48:51], 0 offen offset:{4*(o+1+n)}")
        e(f"v_mov_b32 v{vt+1}, s42")
        e(f"buffer_store_dword v{vt+1}, v{vt}, s[48:51], 0 offen offset:{4*(o+1+len(sel))}")
        return
    e("s_memrealtime s[42:43]")
    e("s_waitcnt lgkmcnt(0)")
    e(f"s_lshl_b32 s39, s2, 4")
    e(f"s_add_u32 s39, s39, s{swave}")
    e(f"s_lshl_b32 s39, s39, 6")
    e(f"s_add_u32 s39, s39, {WS_DIAG + kidx*0x40000}")
    e(f"v_mov_b32 v{vt}, 0")
    e("s_mov_b64 exec, 1")
    for i in range(1, nst):
        e(f"s_sub_u32 s40, s{sSt+2*i}, {'0' if OPT['rt']==2 or OPT['tl'] else 's%d' % sSt}")
        e(f"v_mov_b32 v{vt+1}, s40")
        e(f"buffer_store_dword v{vt+1}, v{vt}, {sr(ssrd,4)}, s39 offen offset:{4*(i-1)}")
    if extra is not None:
        e(f"v_mov_b32 v{vt+1}, s{extra}")
        e(f"buffer_store_dword v{vt+1}, v{vt}, {sr(ssrd,4)}, s39 offen offset:48")
    e("s_getreg_b32 s40, hwreg(HW_REG_HW_ID)")
    e(f"v_mov_b32 v{vt+1}, s40")
    e(f"buffer_store_dword v{vt+1}, v{vt}, {sr(ssrd,4)}, s39 offen offset:52")
    e(f"v_mov_b32 v{vt+1}, s{sSt+18}")
    e(f"buffer_store_dword v{vt+1}, v{vt}, {sr(ssrd,4)}, s39 offen offset:56")
    e(f"v_mov_b32 v{vt+1}, s42")
    e(f"buffer_store_dword v{vt+1}, v{vt}, {sr(ssrd,4)}, s39 offen offset:60")

def mfma(d, a, b, cc):
    cs = "0" if cc is None else vr(cc, 16)
    return f"v_mfma_f32_32x32x16_bf16 {vr(d,16)}, {vr(a,4)}, {vr(b,4)}, {cs}"

CAP = 3584
CNT = 0
MORE = 512
BI = 528
M4 = 1280
E8 = M4 + CAP * 4 + 256
QWK = E8 + CAP * 8 + 256
AST = 136
RST = 528
ATAB = QWK + (CAP // 4) * 8 + 256
STG = (ATAB + 128 * AST + 1023) // 1024 * 1024
ROWS = STG + 32768
WRAW = STG
XOWN = ROWS
WCT = ROWS + 16384
P_HIST = ROWS + 20480
P_BASE = P_HIST + 1024
P_STG = M4
assert P_STG + CHB <= QWK
DUMMY = ROWS + 98 * RST
K2_LDS = DUMMY + 1024
assert XOWN + 16384 <= DUMMY
assert E8 % 16 == 0 and QWK % 16 == 0 and K2_LDS <= 160 * 1024 and ATAB < 65536, (K2_LDS, ATAB)
SC = 24
PADV = 0x7F007F00
RFLAG = 0x21800000

vW = 128; vD = [192, 224]; vX = 112; vBq = [104, 108]; vAq = 100; vAcc = 84
vS = 72; vN = 76; vP = 80; vWK = 64; vIdx = 56; vC = 40; vXo = 24; vU = 32; vXa = 20
vLane = 1; vAqA = 2; vAqI = 3; vIxA = 4; vQaA = 5; vQaV = 6; vQaC = 7
vWkA = 16; vN16 = 17; vC1 = 18; vTail = 19
vTe = 8
sX = 4; sXr = 8; sWs = 12; sOut = 16; sWc = 20
sBase = 24; sNN = 25; sWave = 26; sJ0 = 27; sLW = 28; sFirst = 29; s128 = 30; sQt = 31; sTt = 32
sNT = 33; sQw = 34; sStg = 35; sMore = 36; sBig = 37; sCnt = 38; sT0 = 39; sT1 = 40; sT2 = 41
sMk = 44

def G(b): return vD[b]
def H(b): return vD[b] + 16
def Wg(nt, s): return vW + (nt * 4 + s) * 4
def Wh(nt, s): return vW + 32 + (nt * 4 + s) * 4
def mfmas(nt):
    g = G(nt); h = H(nt)
    return [mfma(g, vAq, vBq[nt], vC),
            mfma(h, vX, Wh(nt,0), None), mfma(g, vX, Wg(nt,0), g),
            mfma(h, vX+4, Wh(nt,1), h), mfma(g, vX+4, Wg(nt,1), g),
            mfma(h, vX+8, Wh(nt,2), h), mfma(g, vX+8, Wg(nt,2), g),
            mfma(h, vX+12, Wh(nt,3), h), mfma(g, vX+12, Wg(nt,3), g)]
def acc(nt, j): return vAcc + j * 4 + nt * 2
def chain(nt):
    o = []
    for j in range(4):
        a = acc(nt, j); p = acc(nt, (j + 3) % 4); k = vWK + 2 * j + 1
        o += [f"v_and_b32 v{a}, v{p}, v{k}", f"v_and_b32 v{a+1}, v{p+1}, v{k}",
              f"v_fmac_f32 v{a}, v{vS+j}, v{Pj(j)}", f"v_fmac_f32 v{a+1}, v{vN+j}, v{Pj(j)}"]
    return o
def writes(): return [f"ds_write_b128 v{vWK+2*j}, {vr(vAcc+4*j,4)}" for j in range(4)]
def avals(nt):
    g = G(nt)
    return [f"v_fmaak_f32 v{g+r}, v{g+r}, v{vC1}, {f32(2.0**-SC)}" for r in range(16)]
def Pj(j): return vP + (j + 1) % 4
def frac(nt):
    g = G(nt); h = H(nt); o = []
    J = range(4)
    o += [f"v_mul_f32 v{h+4*j}, v{h+4*j}, v{g+4*j+1}" for j in J]
    o += [f"v_add_f32 v{Pj(j)}, v{g+4*j}, v{g+4*j+1}" for j in J]
    o += [f"v_fmac_f32 v{h+4*j}, v{h+4*j+1}, v{g+4*j}" for j in J]
    o += [f"v_mul_f32 v{g+4*j}, v{g+4*j}, v{g+4*j+1}" for j in J]
    o += [f"v_mul_f32 v{h+4*j+2}, v{h+4*j+2}, v{g+4*j}" for j in J]
    o += [f"v_mul_f32 v{vS+j}, v{g+4*j}, v{g+4*j+2}" for j in J]
    o += [f"v_fmac_f32 v{h+4*j+2}, v{h+4*j}, v{g+4*j+2}" for j in J]
    o += [f"v_fmac_f32 v{g+4*j}, v{Pj(j)}, v{g+4*j+2}" for j in J]
    o += [f"v_mul_f32 v{vN+j}, v{h+4*j+3}, v{vS+j}" for j in J]
    o += [f"v_mul_f32 v{Pj(j)}, v{vS+j}, v{g+4*j+3}" for j in J]
    o += [f"v_fmac_f32 v{vN+j}, v{h+4*j+2}, v{g+4*j+3}" for j in J]
    o += [f"v_fmac_f32 v{vS+j}, v{g+4*j}, v{g+4*j+3}" for j in J]
    return o
def mix(a, b):
    o = []; a = list(a); b = list(b)
    while a or b:
        if a: o += a[:2]; a = a[2:]
        if b: o += b[:2]; b = b[2:]
    return o
def exps(nt): return [f"v_exp_f32_e64 v{G(nt)+r}, v{G(nt)+r} clamp" for r in range(16)]
def rcps(): return [f"v_rcp_f32 v{vP+j}, v{vP+j}" for j in range(4)]
def rd_x(): return [f"ds_read_b128 {vr(vX+4*s,4)}, v{vXa+s}" for s in range(4)]
def rd_aq(): return [f"ds_read2_b32 {vr(vAq,2)}, v{vAqA} offset0:0 offset1:1"]
def rd_idx(): return [f"ds_read_b128 {vr(vIdx,4)}, v{vIxA} offset:{M4}"]
def mads(): return [f"v_mad_u32_u16 v{vIdx+i}, v{vIdx+i}, s{s128}, v{vIdx+4+i}" for i in range(4)]
def rd_qa(): return [f"ds_read_u16 v{vQaV}, v{vQaA} offset:{M4+2}"]
AQV = f"v_mad_u32_u24 v{vQaV}, v{vQaV}, {AST//4}, v{vQaC}"
def rd_bq(nt): return [f"ds_read_b64_tr_b16 {vr(vBq[nt]+2,2)}, v{vQaV} offset:{ATAB+64*nt}"]
def rd_wk(): return [f"ds_read_b128 {vr(vWK,4)}, v{vWkA} offset:{QWK}", f"ds_read_b128 {vr(vWK+4,4)}, v{vWkA} offset:{QWK+16}"]
def dma(): return [f"buffer_load_dwordx4 v{vIdx+i}, {sr(sX,4)}, 0 offen offset:{1024*i} lds" for i in range(4)]

def hi_phase(ms, trans, extras, per=(2, 2, 2, 3, 2, 2, 3, 2, 2)):
    t = 0
    for g in range(9):
        e(ms[g])
        for _ in range(per[g]):
            e(trans[t]); t += 1
        for x in extras[g]:
            e(x)
    assert t == 20

def side_consts():
    c("copy source addresses: v82 weights, v78/v79 own x rows")
    e(f"v_lshrrev_b32 v81, 5, v{vLane}")
    e(f"v_and_b32 v77, 7, v{vLane}")
    e("v_lshlrev_b32 v78, 2, v81")
    e("v_xor_b32 v77, v77, v78")
    e(f"v_and_b32 v82, 16, v{vLane}")
    e("v_lshlrev_b32 v82, 2, v82")
    e("v_xor_b32 v82, v68, v82")
    e(f"s_and_b32 s{sT2}, s{sWave}, 1")
    e(f"s_lshl_b32 s{sT1}, s{sT2}, 1")
    e(f"v_xor_b32 v78, s{sT1}, v77")
    e("v_lshlrev_b32 v78, 4, v78")
    e(f"v_lshrrev_b32 v79, 3, v{vLane}")
    e("v_lshl_add_u32 v78, v79, 9, v78")
    e("v_xor_b32 v79, 16, v78")
    e("v_add_u32 v79, 128, v79")
    e(f"s_lshr_b32 s{sT0}, s{sWave}, 1")
    e(f"s_lshl_b32 s{sT0}, s{sT0}, 5")
    e(f"s_add_u32 s{sQw}, s{sT0}, s{sBase}")
    e(f"s_add_u32 s{sQw}, s{sQw}, s{sT1}")
    e(f"s_lshl_b32 s{sQw}, s{sQw}, 7")

def lane_consts():
    c("---- lane constants ----")
    e(f"v_and_b32 v67, 31, v{vLane}")
    e(f"v_bfe_u32 v70, v{vLane}, 2, 1")
    e(f"v_bfe_u32 v71, v{vLane}, 3, 2")
    e("v_and_b32 v72, 1, v71")
    e("v_lshlrev_b32 v72, 4, v72")
    e("v_mov_b32 v73, 0x3f80")
    e("v_cmp_eq_u32 vcc, v70, v81")
    e("v_lshlrev_b32 v72, v72, v73")
    e("v_cmp_gt_u32 s[42:43], 2, v71")
    e("v_cndmask_b32 v72, 0, v72, vcc")
    e(f"v_and_b32 v73, 3, v{vLane}")
    e(f"v_cndmask_b32 v{vAq+2}, 0, v72, s[42:43]")
    e(f"v_cndmask_b32 v{vAq+3}, v72, 0, s[42:43]")
    for i in range(4):
        e(f"v_xor_b32 v74, {i}, v77")
        e(f"v_lshlrev_b32 v74, 4, v74")
        e(f"v_add_u32 v{vIdx+4+i}, {3072-1024*i}, v74")
    e(f"v_bfe_u32 v74, v{vLane}, 2, 3")
    e(f"v_bfe_u32 v75, v{vLane}, 4, 1")
    e("v_lshl_add_u32 v72, v75, 2, v73")
    e("v_lshlrev_b32 v76, 10, v73")
    e("v_lshl_add_u32 v76, v74, 7, v76")
    e(f"v_add_u32 v76, s{sStg}, v76")
    e("v_xor_b32 v72, v72, v81")
    for s_ in range(4):
        e(f"v_xor_b32 v74, {2*s_}, v72")
        e(f"v_lshl_add_u32 v{vXa+s_}, v74, 4, v76")
    e(f"v_lshlrev_b32 v{vN16}, 4, v67")
    e(f"v_mov_b32 v{vC1}, {f32(2.0**SC)}")
    e(f"v_lshlrev_b32 v{vAqI}, 6, v81")
    e(f"v_add_u32 v{vAqI}, 64, v{vAqI}")
    e("v_lshlrev_b32 v73, 3, v73")
    e(f"v_lshl_add_u32 v{vQaC}, v75, 5, v73")
    c("setup addresses: v8 A table write, v9/v10/v11 transposed reads, v12 wc, v24..27 own x")
    e(f"s_and_b32 s{sT2}, s{sWave}, 1")
    e(f"s_lshr_b32 s{sT0}, s{sWave}, 1")
    e(f"s_lshl_b32 s{sT1}, s{sT0}, 5")
    e(f"s_add_u32 s{sT1}, s{sT1}, s{sBase}")
    e(f"v_add_u32 v8, s{sT1}, v67")
    e("v_and_b32 v8, 127, v8")
    e(f"v_mul_u32_u24 v8, {AST}, v8")
    e("v_lshl_add_u32 v8, v81, 3, v8")
    e(f"s_lshl_b32 s{sT2}, s{sT2}, 6")
    e(f"v_add_u32 v8, s{sT2}, v8")
    e(f"v_bfe_u32 v71, v{vLane}, 2, 2")
    e("v_lshl_add_u32 v12, v81, 2, v71")
    e(f"v_lshl_add_u32 v12, v12, 7, v{vQaC}")
    e(f"v_add_u32 v12, {WCT}, v12")
    e("v_lshl_add_u32 v9, v81, 3, v71")
    e(f"v_lshl_add_u32 v9, v9, 7, v{vQaC}")
    e(f"v_bfe_u32 v71, v{vLane}, 3, 1")
    e("v_lshl_add_u32 v9, v71, 6, v9")
    e(f"v_add_u32 v9, {WRAW}, v9")
    e("v_xor_b32 v10, 64, v9")
    e(f"v_xor_b32 v11, s{sT2}, v9")
    e(f"s_lshl_b32 s{sT0}, s{sT0}, 12")
    e(f"s_add_u32 s{sT0}, s{sT0}, {XOWN}")
    e(f"s_sub_u32 s{sT0}, s{sT0}, s{sStg}")
    for s_ in range(4):
        e(f"v_add_u32 v{24+s_}, s{sT0}, v{vXa+s_}")

def prefetch_all(lanes, first_line, vt):
    if not lanes: return
    e(f"s_and_b32 s{sT2}, s2, 31")
    e(f"s_mul_i32 s{sT2}, s{sT2}, 782")
    e(f"s_mul_i32 s42, s{sWave}, {lanes}")
    e(f"s_add_u32 s{sT2}, s{sT2}, s42")
    e(f"s_add_u32 s{sT2}, s{sT2}, {first_line}")
    e(f"s_lshl_b32 s{sT2}, s{sT2}, 7")
    e(f"v_lshlrev_b32 v{vt}, 7, v{vLane}")
    e(f"s_mov_b64 exec, {(1<<lanes)-1 if lanes<64 else -1}" if lanes<=32 or lanes==64 else f"s_bfm_b64 exec, {lanes}, 0")
    e(f"buffer_load_dword v{vt}, v{vt}, {sr(sXr,4)}, s{sT2} offen")
    e("s_mov_b64 exec, -1")

def scale8(first, n):
    for r in range(n):
        e(f"v_lshlrev_b32 v72, 16, v{first+r}")
        e(f"v_and_b32 v73, 0xffff0000, v{first+r}")
        e(f"v_mul_f32 v72, v74, v72")
        e(f"v_mul_f32 v73, v74, v73")
        e(f"v_cvt_pk_bf16_f32 v{first+r}, v72, v73")

def k2():
    st = FL[OPT['stf']]; ld = FL[OPT['ldf']]
    sP = 3
    e(".p2align 8")
    e(f"{NAME}_kernel:")
    e("s_cmp_ge_u32 s2, 256")
    e("s_cbranch_scc1 K2_END")
    stamp(0)
    e("s_load_dwordx8 s[44:51], s[0:1], 0")
    e("s_load_dwordx8 s[52:59], s[0:1], 64")
    e("s_load_dwordx8 s[60:67], s[0:1], 32")
    e(f"s_mov_b32 s{sP}, s2")
    e(f"s_and_b32 s{sT0}, s2, 7")
    e("s_lshr_b32 s2, s2, 3")
    e(f"s_lshl_b32 s{sT0}, s{sT0}, 5")
    e(f"s_or_b32 s2, s2, s{sT0}")
    e(f"v_and_b32 v{vLane}, 63, v0")
    e("v_lshrrev_b32 v2, 6, v0")
    e(f"s_mul_i32 s{sT0}, s{sP}, {CH*4}")
    e(f"v_readfirstlane_b32 s{sWave}, v2")
    e(f"v_lshl_add_u32 v64, v0, 4, s{sT0}")
    e(f"v_add_u32 v65, 7168, v64")
    e("v_lshlrev_b32 v66, 1, v64")
    e("v_lshlrev_b32 v67, 1, v65")
    e(f"s_mov_b32 s{sT1}, {E*4}")
    e("s_movk_i32 s42, 336")
    e(f"v_cmp_gt_u32 s[76:77], s{sT1}, v64")
    e(f"v_cmp_gt_u32 s[78:79], s{sT1}, v65")
    e("v_cmp_gt_u32 vcc, s42, v0")
    e(f"v_lshlrev_b32 v68, 4, v{vLane}")
    e(f"v_add_u32 v69, {P_HIST}, v68")
    for i in range(4):
        e(f"v_mov_b32 v{72+i}, 0")
    e("s_and_b64 s[78:79], s[78:79], vcc")
    e(f"s_cmp_eq_u32 s{sWave}, 7")
    e("s_cselect_b64 s[80:81], -1, 0")
    e("s_andn2_b64 s[76:77], s[76:77], s[80:81]")
    e("s_mov_b64 exec, s[80:81]")
    e("ds_write_b128 v69, v[72:75]")
    e(f"ds_write_b128 v68, v[72:75] offset:{CNT}")
    e(f"s_mul_i32 s{sBase}, s2, {BK}")
    e(f"s_add_u32 s{sNN}, s{sBase}, {BK+65535}")
    e(f"s_add_u32 s{sBase}, s{sBase}, 65535")
    e(f"s_lshr_b32 s{sBase}, s{sBase}, 16")
    e(f"s_lshr_b32 s{sNN}, s{sNN}, 16")
    e(f"s_sub_u32 s{sNN}, s{sNN}, s{sBase}")
    e(f"s_mov_b32 s{sJ0}, 0")
    e(f"s_movk_i32 s{sLW}, 384")
    e(f"s_mov_b32 s{sFirst}, 1")
    e(f"s_lshl_b32 s{sStg}, s{sWave}, 12")
    e(f"s_add_u32 s{sStg}, s{sStg}, {STG}")
    e("s_waitcnt lgkmcnt(0)")
    srd(68, 50, E * 4)
    e("s_mov_b64 exec, s[76:77]")
    e("buffer_load_dwordx4 v[192:195], v64, s[68:71], 0 offen" + ld)
    e("s_mov_b64 exec, s[78:79]")
    e("buffer_load_dwordx4 v[196:199], v65, s[68:71], 0 offen" + ld)
    srd(sWs, 58, WS_SIZE)
    c("wave 7 clears this chunk's run-table row")
    e("s_mov_b64 exec, s[80:81]")
    e(f"s_lshl_b32 s{sT0}, s{sP}, 10")
    e(f"buffer_store_dwordx4 v[72:75], v68, {sr(sWs,4)}, s{sT0} offen sc1")
    srd(72, 48, E * 4)
    srd(sOut, 46, E * 8)
    e("s_barrier")
    pt('b1')
    e("s_mov_b64 exec, s[76:77]")
    e("buffer_load_dwordx4 v[200:203], v64, s[72:75], 0 offen" + ld)
    e(f"buffer_load_dwordx4 v[208:211], v66, {sr(sOut,4)}, 0 offen" + ld)
    e(f"buffer_load_dwordx4 v[212:215], v66, {sr(sOut,4)}, 0 offen offset:16" + ld)
    e("s_mov_b64 exec, -1")
    srd(sWc, 56, 256)
    srd(sXr, 44, N * 128)
    e("s_sub_u32 s50, s44, 3072")
    e("s_subb_u32 s51, s45, 0")
    srd(sX, 50, N * 128 + 3072)
    e(f"s_movk_i32 s{s128}, 128")
    side_consts()
    e(f"s_cmp_eq_u32 s{sWave}, 7")
    e("s_cbranch_scc1 P1_W7A")
    e("v_mov_b32 v70, 12")
    e(f"s_mov_b32 s{sT0}, {BM}")
    e("s_movk_i32 s42, 0x3fc")
    e(f"v_mov_b32 v71, {P_HIST}")
    if OPT['eb']:
        if OPT['eb'] == 1: e("s_waitcnt vmcnt(4)")
        e("s_mov_b64 exec, s[78:79]")
        e("buffer_load_dwordx4 v[204:207], v65, s[72:75], 0 offen" + ld)
        e(f"buffer_load_dwordx4 v[216:219], v67, {sr(sOut,4)}, 0 offen" + ld)
        e(f"buffer_load_dwordx4 v[220:223], v67, {sr(sOut,4)}, 0 offen offset:16" + ld)
    for it in range(2):
        e(f"s_mov_b64 exec, s[{76+2*it}:{77+2*it}]")
        e(f"s_waitcnt vmcnt({(8 if OPT['eb'] else 5)-it})")
        for i in range(4):
            e(f"v_mul_u32_u24 v{224+4*it+i}, s{sT0}, v{192+4*it+i}")
        for i in range(4):
            e(f"v_lshrrev_b32 v{224+4*it+i}, 22, v{224+4*it+i}")
        for i in range(4):
            e(f"v_and_or_b32 v{224+4*it+i}, v{224+4*it+i}, s42, v71")
            e(f"ds_add_rtn_u32 v{232+4*it+i}, v{224+4*it+i}, v70")
        for i in range(4):
            e(f"v_and_b32 v{192+4*it+i}, 127, v{192+4*it+i}")
    if not OPT['eb']:
        e("s_mov_b64 exec, s[78:79]")
        e("buffer_load_dwordx4 v[204:207], v65, s[72:75], 0 offen" + ld)
        e(f"buffer_load_dwordx4 v[216:219], v67, {sr(sOut,4)}, 0 offen" + ld)
        e(f"buffer_load_dwordx4 v[220:223], v67, {sr(sOut,4)}, 0 offen offset:16" + ld)
    e("s_mov_b64 exec, -1")
    e("s_waitcnt lgkmcnt(0)")
    def p1_scan():
        e("s_barrier")
        pt('b2')
        e("ds_read_b128 v[240:243], v69")
        e("s_waitcnt lgkmcnt(0)")
        e("v_add_u32 v72, v240, v241")
        e("v_add_u32 v73, v72, v242")
        e("v_add_u32 v76, v73, v243")
        e("v_mov_b32 v80, v76")
        scan64(80)
        e("v_sub_u32 v244, v80, v76")
        e("v_add_u32 v245, v244, v240")
        e("v_add_u32 v246, v244, v72")
        e("v_add_u32 v247, v244, v73")
    p1_scan()
    e(f"ds_write_b128 v69, v[244:247] offset:{P_BASE-P_HIST}")
    e("s_waitcnt lgkmcnt(0)")
    for it in range(2):
        e(f"s_mov_b64 exec, s[{76+2*it}:{77+2*it}]")
        for i in range(4):
            e(f"ds_read_b32 v{224+4*it+i}, v{224+4*it+i} offset:{P_BASE-P_HIST}")
    e("s_mov_b64 exec, -1")
    def side_copies():
        e(f"s_lshl_b32 s{sT1}, s{sWave}, 11")
        e(f"s_add_u32 m0, s{sT1}, {XOWN}")
        e(f"s_lshl_b32 s{sT1}, s{sWave}, 10")
        e(f"buffer_load_dwordx4 v78, {sr(sXr,4)}, s{sQw} offen lds")
        e("s_add_u32 m0, m0, 1024")
        e("s_nop 0")
        e(f"buffer_load_dwordx4 v79, {sr(sXr,4)}, s{sQw} offen lds")
        for k, pw in enumerate((52, 60, 66)):
            e(f"s_add_u32 m0, s{sT1}, {WRAW+8192*(k+1)}")
            srd(68, pw, 8192)
            e(f"buffer_load_dwordx4 v82, s[68:71], s{sT1} offen lds")
        srd(68, 62, 8192)
        e(f"buffer_load_dwordx4 v[112:115], v82, s[68:71], s{sT1} offen")
    side_copies()
    pt('side')
    NX = 6
    for it in range(2):
        e(f"s_mov_b64 exec, s[{76+2*it}:{77+2*it}]")
        e(f"s_waitcnt vmcnt({NX+5-3*it}) lgkmcnt({4 if it==0 else 8})")
        for i in range(4):
            k = 4 * it + i
            e(f"v_lshl_or_b32 v{200+k}, v{192+k}, 18, v{200+k}")
            e(f"v_add_u32 v{224+k}, v{224+k}, v{232+k}")
            e(f"ds_write_b32 v{224+k}, v{200+k} offset:{P_STG+8}")
        for i in range(4):
            k = 4 * it + i
            if i % 2 == 0:
                e(f"s_waitcnt vmcnt({NX+4-3*it-i//2})")
            e(f"v_add_u32 v{224+k}, {P_STG}, v{224+k}")
            e(f"ds_write2_b32 v{224+k}, v{208+2*k}, v{209+2*k} offset0:0 offset1:1")
    e("s_mov_b64 exec, -1")
    pt('p1scat')
    e("P1_J:")
    e("v_lshlrev_b32 v64, 4, v0")
    e(f"s_mul_i32 s{sT0}, s{sP}, {CHB}")
    e(f"s_add_u32 s{sT0}, s{sT0}, {WS_REC}")
    NT_ = 448 if OPT['pf7'] else 512
    NR = -(-2352 // NT_)
    e(f"s_movk_i32 s42, {2352 - (NR-1)*NT_}")
    e("v_cmp_gt_u32 vcc, s42, v0")
    e("s_waitcnt lgkmcnt(0)")
    e("s_barrier")
    pt('b3')
    if OPT['pf7']:
        e("s_andn2_b64 exec, exec, s[80:81]")
    for k in range(NR):
        e(f"ds_read_b128 {vr(192+4*k,4)}, v64 offset:{P_STG + k*NT_*16}")
    for k in range(NR):
        if k == NR-1:
            e("s_mov_b64 exec, vcc")
        e(f"s_waitcnt lgkmcnt({NR-1-k})")
        e(f"buffer_store_dwordx4 {vr(192+4*k,4)}, v64, {sr(sWs,4)}, s{sT0} offen sc1")
        if k < NR-1:
            e(f"s_add_u32 s{sT0}, s{sT0}, {NT_*16}")
    e("s_mov_b64 exec, -1")
    e(f"s_cmp_eq_u32 s{sWave}, 7")
    e("s_cbranch_scc1 P1_W7B")
    pt('stored')
    def mid(wait):
        srd(sOut, 54, N * 128)
        lane_consts()
        e(f"v_mov_b32 v74, {f32(-LOG2E)}")
        e(f"v_add_u32 v75, {WRAW}, v64")
        if wait is not None: e(f"s_waitcnt vmcnt({wait})")
        scale8(112, 4)
        e("ds_write_b128 v75, v[112:115]")
    mid(NR)
    e("s_waitcnt vmcnt(0)")
    e("P1_RDY:")
    pt('rdy')
    e(f"s_lshl_b32 s{sT1}, s{sP}, 10")
    e("s_waitcnt lgkmcnt(0)")
    e("s_barrier")
    pt('b4')
    c("publish this chunk's run table (every word carries a valid bit)")
    e("s_mov_b64 exec, s[80:81]")
    e(f"buffer_store_dwordx4 v[244:247], v68, {sr(sWs,4)}, s{sT1} offen sc1")
    e("s_mov_b64 exec, -1")
    prefetch_all(OPT['pfa'], 64*OPT['pf7'], 15)
    if OPT['tlb']:
        e(f"v_lshlrev_b32 v15, {OPT['tlb']}, v0")
        e(f"buffer_load_dword v15, v15, {sr(sXr,4)}, 0 offen")
    c("---- A table and U for this wave's (node tile, channel half); weight operands ----")
    for s_ in range(4):
        e(f"ds_read_b128 {vr(40+4*s_,4)}, v{24+s_}")
    for m in range(2):
        for s_ in range(4):
            for hf in range(2):
                e(f"ds_read_b64_tr_b16 {vr(vW+16*m+4*s_+2*hf,2)}, v11 offset:{16384+m*8192+s_*2048+hf*512}")
    e(f"s_mov_b32 s{sT0}, {f32(-LOG2E)}")
    e("s_waitcnt lgkmcnt(8)")
    for s_ in range(4):
        e(mfma(84, vW+4*s_, 40+4*s_, 84 if s_ else None))
    e("s_waitcnt lgkmcnt(0)")
    for s_ in range(4):
        e(mfma(112, vW+16+4*s_, 40+4*s_, 112 if s_ else None))
    for m in range(2):
        for nt in range(2):
            for s_ in range(4):
                for hf in range(2):
                    e(f"ds_read_b64_tr_b16 {vr(vW+32*m+16*nt+4*s_+2*hf,2)}, v{9+nt} offset:{m*8192+s_*2048+hf*512}")
    for nt in range(2):
        e(f"ds_read_b64_tr_b16 {vr(vBq[nt],2)}, v12 offset:{64*nt}")
    for r in range(16):
        e(f"v_mul_f32 v{84+r}, s{sT0}, v{84+r}")
    for r in range(8):
        e(f"v_cvt_pk_bf16_f32 v{72+r}, v{84+2*r}, v{85+2*r}")
    for j in range(4):
        e(f"ds_write_b64 v8, {vr(72+2*j,2)} offset:{ATAB+j*16}")
    for r in range(8):
        e(f"v_cvt_pk_bf16_f32 v{vU+r}, v{112+2*r}, v{113+2*r}")
    for r in range(16):
        e(f"v_mov_b32 v{vC+r}, {f32(-2.0*SC)}")
    c("residual operand: thread = (node tid>>2, chunks c and c+4)")
    e(f"v_lshrrev_b32 v13, 2, v0")
    e(f"v_add_u32 v13, s{sBase}, v13")
    e("v_and_b32 v14, 3, v0")
    e("v_lshlrev_b32 v14, 4, v14")
    e("v_lshl_add_u32 v13, v13, 7, v14")
    e(f"buffer_load_dwordx4 {vr(vXo,4)}, v13, {sr(sXr,4)}, 0 offen")
    e(f"buffer_load_dwordx4 {vr(vXo+4,4)}, v13, {sr(sXr,4)}, 0 offen offset:64")
    e("K2_ROUND:")
    c("window offsets (0xffff = lane outside the window)")
    e(f"v_and_b32 v66, 15, v{vLane}")
    e("v_mul_u32_u24 v66, 12, v66")
    e("v_add_u32 v67, 192, v66")
    e(f"v_cmp_gt_u32 vcc, s{sLW}, v66")
    e(f"v_cmp_gt_u32 s[76:77], s{sLW}, v67")
    e(f"v_add_u32 v66, s{sJ0}, v66")
    e(f"v_add_u32 v67, s{sJ0}, v67")
    e("v_lshrrev_b32 v68, 4, v0")
    e(f"s_mov_b32 s{sT0}, {8*CHB}")
    e(f"v_mul_u32_u24 v68, s{sT0}, v68")
    e("v_add3_u32 v68, v68, v66, -1")
    e("v_mov_b32 v69, 0xffff")
    e("v_cndmask_b32 v66, v69, v66, vcc")
    e("v_cndmask_b32 v67, v69, v67, s[76:77]")
    for r in range(16):
        e(f"v_mov_b32 v{vAcc+r}, 0")
    e("v_and_b32 v64, 0x1f0, v0")
    e("v_lshlrev_b32 v64, 9, v64")
    e(f"s_lshl_b32 s{sT0}, s2, 2")
    e(f"s_add_u32 s{sT1}, s{sT0}, 4096")
    e(f"s_mov_b32 s{sCnt}, 0x40000")
    pt('poll')
    c("wait for the run tables of this wave's 32 producers")
    e("K2_POLL:")
    for i in range(8):
        e(f"buffer_load_dword v{vTe+i}, v64, {sr(sWs,4)}, s{sT0 if i<4 else sT1} offen offset:{(i%4)*1024} sc1")
    e("s_waitcnt vmcnt(0)")
    e(f"v_bitop3_b32 v69, v{vTe}, v{vTe+1}, v{vTe+2} bitop3:0x80")
    e(f"v_bitop3_b32 v70, v{vTe+3}, v{vTe+4}, v{vTe+5} bitop3:0x80")
    e(f"v_bitop3_b32 v69, v69, v{vTe+6}, v{vTe+7} bitop3:0x80")
    e(f"v_bitop3_b32 v69, v69, v70, 1 bitop3:0x80")
    e("v_cmp_eq_u32 vcc, 0, v69")
    e(f"s_sub_u32 s{sCnt}, s{sCnt}, 1")
    e("s_cbranch_scc1 K2_END")
    e("s_cmp_eq_u64 vcc, 0")
    e("s_cbranch_scc1 K2_GO")
    e(f"s_sleep {OPT['slp']}")
    e("s_branch K2_POLL")
    e("K2_GO:")
    pt('go')
    e(f"s_mov_b32 s{sCnt}, {WS_REC}")
    sd = "dst_sel:DWORD dst_unused:UNUSED_PAD "
    for i in range(8):
        m0 = sMk + 4 * i; m1 = m0 + 2
        e(f"v_cmp_lt_u32_sdwa {sr(m0,2)}, v66, v{vTe+i} src0_sel:DWORD src1_sel:WORD_1")
        e(f"v_add_u32_sdwa v69, v68, v{vTe+i} {sd}src0_sel:DWORD src1_sel:WORD_0")
        e(f"v_cmp_lt_u32_sdwa {sr(m1,2)}, v67, v{vTe+i} src0_sel:DWORD src1_sel:WORD_1")
        e(f"s_mov_b64 exec, {sr(m0,2)}")
        e(f"buffer_load_dwordx3 {vr(192+8*i,3)}, v69, {sr(sWs,4)}, s{sCnt} offen sc1")
        e(f"s_mov_b64 exec, {sr(m1,2)}")
        e(f"buffer_load_dwordx3 {vr(196+8*i,3)}, v69, {sr(sWs,4)}, s{sCnt} offen offset:192 sc1")
        e("s_mov_b64 exec, -1")
        if i < 7:
            e(f"s_add_u32 s{sCnt}, s{sCnt}, {CHB}")
    npf = 0
    e(f"v_max3_u32 v{vTe}, v{vTe}, v{vTe+1}, v{vTe+2}")
    e(f"v_max3_u32 v{vTe+3}, v{vTe+3}, v{vTe+4}, v{vTe+5}")
    e(f"v_max3_u32 v{vTe}, v{vTe}, v{vTe+6}, v{vTe+7}")
    e(f"v_max_u32 v{vTe}, v{vTe}, v{vTe+3}")
    e(f"s_add_u32 s{sT1}, s{sJ0}, s{sLW}")
    e(f"s_lshl_b32 s{sT1}, s{sT1}, 16")
    e(f"s_or_b32 s{sT1}, s{sT1}, 0xffff")
    e(f"v_cmp_lt_u32 vcc, s{sT1}, v{vTe}")
    e("v_mov_b32 v66, 4")
    e("v_mov_b32 v67, 0")
    e("s_mov_b64 exec, vcc")
    e(f"ds_write_b32 v67, v66 offset:{MORE}")
    e("s_mov_b64 exec, -1")
    c("scan / meta lane constants while the records are in flight")
    e(f"v_lshl_add_u32 v8, v{vLane}, 1, s{sBase}")
    e("v_add_u32 v9, 1, v8")
    e("v_and_b32 v8, 127, v8")
    e("v_and_b32 v9, 127, v9")
    e("v_lshlrev_b32 v8, 2, v8")
    e("v_lshlrev_b32 v9, 2, v9")
    e(f"s_add_u32 s{sT0}, s{sNN}, 7")
    e(f"v_lshlrev_b32 v10, 1, v{vLane}")
    e("v_add_u32 v11, 1, v10")
    e(f"v_cmp_gt_u32 vcc, s{sT0}, v10")
    e(f"v_cmp_gt_u32 s[76:77], s{sT0}, v11")
    e("v_lshrrev_b32 v12, 2, v0")
    e("v_cndmask_b32 v10, 0, 16, vcc")
    e("v_cndmask_b32 v11, 0, 16, s[76:77]")
    e(f"v_cmp_gt_u32 vcc, s{sT0}, v12")
    e(f"v_cmp_gt_u32 s[76:77], s{sNN}, v12")
    e(f"v_add_u32 v13, s{sBase}, v12")
    e("v_cndmask_b32 v14, 0, 16, vcc")
    e("v_and_b32 v13, 127, v13")
    e("v_lshlrev_b32 v13, 2, v13")
    e(f"v_mul_u32_u24 v15, {RST}, v12")
    e(f"v_add_u32 v15, {ROWS}, v15")
    e(f"v_mov_b32 v64, {DUMMY+512}")
    e("v_cndmask_b32 v15, v64, v15, s[76:77]")
    for j in range(4):
        e(f"v_mov_b32 v{vN+j}, 0")
        e(f"v_mov_b32 v{vP+j}, 1.0")
    for q in range(16):
        r = 192 + 4 * q
        e(f"s_mov_b64 exec, {sr(sMk+2*q,2)}")
        if q % 2:
            e(f"s_cbranch_execz K2_H{q}")
        e(f"s_waitcnt vmcnt({15+npf-q})")
        e(f"v_lshrrev_b32 v{112+q}, 16, v{r+2}")
        e(f"ds_add_rtn_u32 v{r+3}, v{112+q}, v66 offset:{CNT}")
        if q % 2:
            e(f"K2_H{q}:")
    e("s_mov_b64 exec, -1")
    prefetch_all(OPT['pfb'], 64*OPT['pf7'] + 8*OPT['pfa'], 12)
    e("s_waitcnt lgkmcnt(0)")
    e("s_barrier")
    pt('hist')
    c("---- scan (every wave, redundantly) ----")
    e(f"ds_read_b32 v64, v8 offset:{CNT}")
    e(f"ds_read_b32 v65, v9 offset:{CNT}")
    e(f"ds_read_b32 v68, v67 offset:{MORE}")
    e("s_waitcnt lgkmcnt(1)")
    e("v_add_u32 v69, 15, v64")
    e("v_add_u32 v70, 15, v65")
    e("v_and_b32 v69, -16, v69")
    e("v_and_b32 v70, -16, v70")
    e("v_max_u32 v69, v69, v10")
    e("v_max_u32 v70, v70, v11")
    e("v_add_u32 v71, v69, v70")
    e("v_mov_b32 v72, v71")
    scan64(72)
    e("v_sub_u32 v73, v72, v71")
    e("v_add_u32 v74, v73, v69")
    e(f"v_readlane_b32 s{sQt}, v72, 63")
    e("v_lshl_or_b32 v64, v64, 16, v73")
    e("v_lshl_or_b32 v65, v65, 16, v74")
    e(f"ds_write_b32 v8, v64 offset:{BI}")
    e(f"ds_write_b32 v9, v65 offset:{BI}")
    e("v_max_u32 v69, v69, v70")
    e(f"s_lshr_b32 s{sTt}, s{sQt}, 7")
    e("s_waitcnt lgkmcnt(0)")
    pt('s1')
    e(f"v_readfirstlane_b32 s{sMore}, v68")
    e(f"ds_read_b32 v64, v13 offset:{BI}")
    for q in range(16):
        e(f"s_mov_b64 exec, {sr(sMk+2*q,2)}")
        e(f"ds_read_u16 v{112+q}, v{112+q} offset:{BI}")
    e("s_mov_b64 exec, -1")
    e(f"s_cmp_gt_u32 s{sQt}, {CAP*4}")
    e(f"s_cselect_b32 s{sT0}, 1, s{sMore}")
    e(f"s_cmp_eq_u32 s{sLW}, 384")
    e(f"s_cselect_b32 s{sT0}, s{sT0}, 0")
    e(f"s_cmp_lg_u32 s{sT0}, 0")
    e("s_cbranch_scc1 K2_FAIL")
    c("pads")
    e("v_and_b32 v65, 3, v0")
    e(f"v_mov_b32 v70, {PADV:#x}")
    e("s_waitcnt lgkmcnt(15)")
    e("v_lshrrev_b32 v68, 16, v64")
    e("v_and_b32 v64, 0xffff, v64")
    e("v_add_u32 v74, 15, v68")
    e("v_and_b32 v74, -16, v74")
    e("v_max_u32 v74, v74, v14")
    e("v_lshl_add_u32 v68, v65, 2, v68")
    e("v_cmp_lt_u32 s[76:77], v68, v74")
    e("v_add_u32 v68, v68, v64")
    e("s_mov_b64 exec, s[76:77]")
    e(f"ds_write_b32 v68, v70 offset:{M4}")
    e("s_waitcnt lgkmcnt(1)")
    pt('s2')
    c("---- scatter: index words first ----")
    for q in range(16):
        r = 192 + 4 * q
        e(f"s_mov_b64 exec, {sr(sMk+2*q,2)}")
        if q % 2 and OPT['skp'] & 1: e(f"s_cbranch_execz K2_S{q}")
        e(f"v_add_u32 v{112+q}, v{112+q}, v{r+3}")
        e(f"ds_write_b32 v{112+q}, v{r+2} offset:{M4}")
        if q % 2 and OPT['skp'] & 1: e(f"K2_S{q}:")
    e("s_mov_b64 exec, -1")
    pt('s3')
    e(f"s_lshr_b32 s{sT0}, s{sTt}, 3")
    e(f"s_and_b32 s{sT1}, s{sTt}, 7")
    e(f"s_lshl_b32 s{sT2}, s{sT0}, 6")
    e(f"v_cmp_lt_u32 vcc, s{sT2}, v69")
    e(f"s_mul_i32 s{sQw}, s{sT0}, s{sWave}")
    e(f"s_min_u32 s{sT2}, s{sT1}, s{sWave}")
    e(f"s_add_u32 s{sQw}, s{sQw}, s{sT2}")
    e(f"s_lshl_b32 s{sQw}, s{sQw}, 3")
    e(f"s_cmp_lt_u32 s{sWave}, s{sT1}")
    e(f"s_addc_u32 s{sNT}, s{sT0}, 0")
    e(f"s_or_b32 s{sBig}, vcc_lo, vcc_hi")
    e(f"s_lshl_b32 s{sT0}, s{sNT}, 2")
    e(f"v_bfe_u32 v66, v{vLane}, 3, 1")
    e(f"v_lshrrev_b32 v69, 4, v{vLane}")
    e(f"v_mad_u32_u24 v66, v66, s{sT0}, v69")
    e(f"v_add_lshl_u32 v{vIxA}, v66, s{sQw}, 4")
    e(f"v_lshrrev_b32 v67, 5, v{vLane}")
    e(f"v_mul_u32_u24 v66, s{sT0}, v67")
    e(f"v_add_u32 v66, s{sQw}, v66")
    e(f"v_bfe_u32 v69, v{vLane}, 2, 2")
    e(f"v_add_lshl_u32 v{vQaA}, v66, v69, 4")
    e(f"s_mov_b32 m0, s{sStg}")
    e("s_waitcnt lgkmcnt(0)")
    e("s_barrier")
    pt('scat')
    for x in rd_idx() + rd_qa(): e(x)
    e(f"v_add_u32 v{vIxA}, 64, v{vIxA}")
    e(f"v_add_u32 v{vQaA}, 64, v{vQaA}")
    e(f"v_lshlrev_b32 v{vWkA}, 3, v66")
    e(f"v_add_lshl_u32 v{vTail}, v66, s{sT0}, 4")
    e("v_lshlrev_b32 v71, 1, v68")
    e("v_mov_b32 v72, 0")
    e("v_mov_b32 v73, 0")
    e("s_waitcnt lgkmcnt(1)")
    for x in mads() + dma(): e(x)
    e("s_waitcnt lgkmcnt(0)")
    e(AQV)
    for x in rd_idx() + rd_bq(0) + rd_bq(1) + rd_qa(): e(x)
    e(f"v_add_u32 v{vIxA}, 64, v{vIxA}")
    if OPT['lat']:
        pt('f0')
        e("s_waitcnt vmcnt(0)")
    pt('f1')
    c("---- scatter: edge attributes ----")
    e("s_mov_b64 exec, s[76:77]")
    e(f"ds_write_b64 v71, v[72:73] offset:{E8}")
    for q in range(16):
        r = 192 + 4 * q
        e(f"s_mov_b64 exec, {sr(sMk+2*q,2)}")
        if q % 2 and OPT['skp'] & 2: e(f"s_cbranch_execz K2_E{q}")
        e(f"v_lshlrev_b32 v{r+3}, 1, v{112+q}")
        e(f"ds_write_b64 v{r+3}, {vr(r,2)} offset:{E8}")
        if q % 2 and OPT['skp'] & 2: e(f"K2_E{q}:")
    e("s_mov_b64 exec, -1")
    pt('f2')
    c("quad meta: thread = (node, k0)")
    e("v_lshrrev_b32 v69, 4, v74")
    e("v_lshrrev_b32 v64, 4, v64")
    e("v_cmp_eq_u32 vcc, 0, v65")
    e("v_add_lshl_u32 v68, v64, v65, 3")
    e("v_add_u32 v70, -1, v69")
    e("v_cndmask_b32 v73, -1, 0, vcc")
    e(f"v_mov_b32 v71, {DUMMY}")
    for u in range(OPT['qu']):
        e("v_cmp_lt_u32 vcc, v65, v69")
        e("v_cmp_eq_u32 s[76:77], v65, v70")
        e("s_and_b64 exec, exec, vcc")
        e("v_add_u32 v65, 4, v65")
        e("v_cndmask_b32 v72, v71, v15, s[76:77]")
        e(f"ds_write_b64 v68, v[72:73] offset:{QWK+32*u}")
        if u == 0: e("v_mov_b32 v73, -1")
    if OPT['qu']: e(f"v_add_u32 v68, {32*OPT['qu']}, v68")
    e("K2_QM:")
    e("v_cmp_lt_u32 vcc, v65, v69")
    e("v_cmp_eq_u32 s[76:77], v65, v70")
    e("s_and_b64 exec, exec, vcc")
    e("s_cbranch_execz K2_QMD")
    e("v_add_u32 v65, 4, v65")
    e("v_cndmask_b32 v72, v71, v15, s[76:77]")
    e(f"ds_write_b64 v68, v[72:73] offset:{QWK}")
    e("v_add_u32 v68, 32, v68")
    e("v_mov_b32 v73, -1")
    e("s_branch K2_QM")
    e("K2_QMD:")
    e("s_mov_b64 exec, -1")
    pt('f3')
    e(f"v_bfe_u32 v64, v{vLane}, 2, 1")
    e(f"v_bfe_u32 v65, v{vLane}, 3, 2")
    e(f"v_mad_u32_u24 v64, v64, s{sT0}, v65")
    e(f"v_add_lshl_u32 v64, v64, s{sQw}, 2")
    e(f"v_and_or_b32 v64, v{vLane}, 3, v64")
    e("v_add_u32 v65, 2, v67")
    e("v_lshlrev_b32 v64, v65, v64")
    e(f"v_mul_u32_u24 v65, {E8-M4}, v67")
    e(f"v_add_u32 v65, {M4}, v65")
    e(f"v_add_u32 v{vAqA}, v64, v65")
    e("s_waitcnt vmcnt(0)")
    pt('f4')
    for x in rd_x(): e(x)
    for j in range(4):
        e(f"v_mov_b32 v{vS+j}, 0")
        e(f"v_add_u32 v{vWK+2*j}, {DUMMY+512}, v{vN16}")
        e(f"v_mov_b32 v{vWK+2*j+1}, 0")
    e("s_waitcnt lgkmcnt(4)")
    for x in mads(): e(x)
    e("s_waitcnt lgkmcnt(0)")
    if not OPT['dl']:
        for x in dma(): e(x)
    e("s_barrier")
    pt('meta')
    for x in rd_aq(): e(x)
    if not OPT['dl']:
        for x in rd_idx(): e(x)
    e(f"s_cmp_eq_u32 s{sNT}, 0")
    e("s_cbranch_scc1 K2_DRAIN")
    g0 = G(0); h0 = H(0)
    for s_ in range(4):
        e(mfma(g0, vX+4*s_, Wg(0,s_), g0 if s_ else vC))
        if OPT['dl'] and s_ < 2: e(dma()[2*s_])
        if OPT['dl'] and s_ == 2: e(rd_idx()[0])
        e(mfma(h0, vX+4*s_, Wh(0,s_), h0 if s_ else None))
        if OPT['dl'] and s_ < 2: e(dma()[2*s_+1])
    e("s_waitcnt lgkmcnt(0)")
    e(mfma(g0, vAq, vBq[0], g0))
    e(f"v_add_u32 v{vAqA}, v{vAqA}, v{vAqI}")
    e(f"s_mov_b32 s{sCnt}, s{sNT}")
    e("s_nop 5")
    if not OPT['tl']: stamp(6)
    if OPT['role']:
        role_loops()
    else:
        e(".p2align 6")
        e("K2_LOOP:")
        loop_body()
    e("K2_DRAIN:")
    e("s_setprio 0")
    for x in rcps(): e(x)
    e(f"v_and_b32 v9, 31, v{vLane}")
    e(f"v_lshrrev_b32 v10, 5, v{vLane}")
    for x in chain(1): e(x)
    for x in writes(): e(x)
    stamp(7)
    c("---- tails; U to LDS ----")
    e(f"ds_read_u16 v8, v{vTail} offset:{M4-14}")
    e("v_mul_u32_u24 v9, 72, v9")
    e("v_lshl_add_u32 v9, v10, 3, v9")
    e(f"v_add_u32 v9, s{sStg}, v9")
    e("s_waitcnt vmcnt(0)")
    for j in range(4):
        e(f"ds_write_b64 v9, {vr(vU+2*j,2)} offset:{16*j}")
    e(f"v_add_u32 v9, {DUMMY}, v{vN16}")
    e(f"v_cmp_eq_u32 s[76:77], v9, v{vWK+6}")
    e("v_lshrrev_b32 v10, 2, v0")
    e("v_and_b32 v14, 3, v0")
    e(f"v_mul_u32_u24 v11, {RST}, v10")
    e("v_lshl_add_u32 v11, v14, 7, v11")
    e(f"v_add_u32 v11, {ROWS}, v11")
    e("s_waitcnt lgkmcnt(0)")
    e("v_lshrrev_b32 v8, 2, v8")
    e(f"v_subrev_u32 v8, s{sBase}, v8")
    e("v_and_b32 v8, 127, v8")
    e(f"v_mul_u32_u24 v8, {RST}, v8")
    e(f"v_add_u32 v8, v8, v{vN16}")
    e(f"v_add_u32 v8, {ROWS}, v8")
    e("s_barrier")
    e("s_mov_b64 exec, s[76:77]")
    e(f"s_cmp_lg_u32 s{sBig}, 0")
    e("s_cbranch_scc1 K2_TAILAT")
    e("ds_read_b128 v[64:67], v8")
    e("s_waitcnt lgkmcnt(0)")
    for i in range(4):
        e(f"v_add_f32 v{64+i}, v{64+i}, v{vAcc+12+i}")
    e("ds_write_b128 v8, v[64:67]")
    e("K2_TAILD:")
    e("s_mov_b64 exec, -1")
    c("---- epilogue ----")
    e("v_and_b32 v12, 31, v10")
    e("v_mul_u32_u24 v12, 72, v12")
    e("v_lshrrev_b32 v13, 5, v10")
    e("v_lshl_add_u32 v12, v13, 13, v12")
    e("v_lshl_add_u32 v12, v14, 4, v12")
    e(f"v_add_u32 v12, {STG}, v12")
    e(f"v_add_u32 v15, 4096, v12")
    e("ds_read2_b64 v[112:115], v12 offset0:0 offset1:1")
    e("ds_read2_b64 v[116:119], v15 offset0:0 offset1:1")
    e(f"v_add_u32 v13, s{sBase}, v10")
    e("v_lshlrev_b32 v13, 7, v13")
    e("v_lshl_add_u32 v13, v14, 4, v13")
    e(f"v_cmp_gt_u32 s[76:77], s{sNN}, v10")
    e("s_waitcnt lgkmcnt(0)")
    e("s_barrier")
    for k in range(8):
        e(f"ds_read_b128 {vr(192+4*k,4)}, v11 offset:{16*k}")
    e(f"s_cmp_eq_u32 s{sMore}, 0")
    e(f"s_cselect_b32 s{sT1}, s{sFirst}, 0")
    e(f"s_cmp_eq_u32 s{sT1}, 0")
    e("s_cbranch_scc1 K2_SLOWTOT")
    e("K2_FIN:")
    eps = f32(1e-6 * 2.0**SC)
    e("s_mov_b64 exec, s[76:77]")
    e("s_cbranch_execz K2_DONE")
    for k in range(4):
        e(f"s_waitcnt lgkmcnt({6-2*k})")
        for it in range(2):
            b = 192 + 8 * k + 2 * it; xr = vXo + 4 * it + k; ur = 112 + 4 * it + k
            e(f"v_add_f32 v{b}, {eps}, v{b}")
            e(f"v_add_f32 v{b+4}, {eps}, v{b+4}")
            e(f"v_rcp_f32 v{b}, v{b}")
            e(f"v_rcp_f32 v{b+4}, v{b+4}")
            e(f"v_lshlrev_b32 v8, 16, v{ur}")
            e(f"v_and_b32 v9, 0xffff0000, v{ur}")
            e(f"v_fmac_f32 v8, v{b}, v{b+1}")
            e(f"v_fmac_f32 v9, v{b+4}, v{b+5}")
            e(f"v_lshlrev_b32 v{b}, 16, v{xr}")
            e(f"v_and_b32 v{b+4}, 0xffff0000, v{xr}")
            e(f"v_max_f32 v8, 0, v8")
            e(f"v_max_f32 v9, 0, v9")
            e(f"v_add_f32 v8, v8, v{b}")
            e(f"v_add_f32 v9, v9, v{b+4}")
            e(f"v_cvt_pk_bf16_f32 v{xr}, v8, v9")
    for it in range(2):
        e(f"buffer_store_dwordx4 {vr(vXo+4*it,4)}, v13, {sr(sOut,4)}, 0 offen offset:{64*it}" + FL[OPT['ost']])
    e("K2_DONE:")
    if OPT['stamp']:
        e("s_mov_b64 exec, -1")
        stamp(8)
        diag_out(1, 9, sWave, sWs, sNT)
    e("K2_END:")
    e("s_endpgm")
    c("---- wave 7, phase 1: ready count, scaled wb / wc rows, run table words ----")
    e("P1_W7A:")
    p1_scan()
    e(f"s_and_b32 s{sT0}, s3, 3")
    e(f"s_lshl_b32 s{sT0}, s{sT0}, 6")
    e("v_mov_b32 v76, 1")
    e("s_mov_b64 exec, 1")
    e("s_waitcnt vmcnt(0)")
    e(f"buffer_atomic_add v76, v74, {sr(sWc,4)}, s{sT0} offen sc1")
    e("s_mov_b64 exec, -1")
    srd(68, 64, 512)
    e(f"buffer_load_dwordx4 v[224:227], v68, s[68:71], 0 offen")
    side_copies()
    for i in range(4):
        e(f"v_lshl_or_b32 v{244+i}, v{240+i}, 16, v{244+i}")
        e(f"v_or_b32 v{244+i}, 1, v{244+i}")
    e("s_branch P1_J")
    e("P1_W7B:")
    mid(NR)
    scale8(224, 4)
    c("lanes 32..63 hold flag rows (0, R, 0, 0); lanes 0..31 the wc' rows")
    e(f"v_lshrrev_b32 v73, 3, v{vLane}")
    e("v_cmp_eq_u32 vcc, 5, v73")
    e(f"v_mov_b32 v72, {(RFLAG>>16)*0x10001:#x}")
    e(f"v_xor_b32 v73, 512, v68")
    for r in range(4):
        e(f"v_cndmask_b32 v{224+r}, v{224+r}, v72, vcc")
    e(f"v_add_u32 v73, {WCT}, v73")
    e("ds_write_b128 v73, v[224:227]")
    c("every row must have been cleared before any row is trusted")
    e(f"v_and_b32 v74, 3, v{vLane}")
    e("v_lshlrev_b32 v74, 6, v74")
    e(f"s_mov_b32 s{sCnt}, 0x40000")
    e("P1_POLL:")
    e(f"buffer_load_dword v76, v74, {sr(sWc,4)}, 0 offen sc1")
    e("s_waitcnt vmcnt(0)")
    e("v_cmp_gt_u32 vcc, 64, v76")
    e(f"s_sub_u32 s{sCnt}, s{sCnt}, 1")
    e("s_cbranch_scc1 K2_END")
    e("s_cmp_eq_u64 vcc, 0")
    e("s_cbranch_scc1 P1_RDY")
    e("s_sleep 8")
    e("s_branch P1_POLL")
    c("---- rare paths ----")
    e("K2_NEXT:")
    e("v_lshlrev_b32 v64, 2, v0")
    e("v_mov_b32 v66, 0")
    e("s_movk_i32 s42, 132")
    e("v_cmp_gt_u32 vcc, s42, v0")
    e("s_mov_b64 exec, vcc")
    e(f"ds_write_b32 v64, v66 offset:{CNT}")
    e("s_mov_b64 exec, -1")
    e("s_waitcnt lgkmcnt(0)")
    e("s_barrier")
    e("s_branch K2_ROUND")
    e("K2_TAILAT:")
    for i in range(4):
        e(f"ds_add_f32 v8, v{vAcc+12+i} offset:{4*i}")
    e("s_branch K2_TAILD")
    e("K2_FAIL:")
    e(f"s_movk_i32 s{sLW}, 144")
    e("s_waitcnt vmcnt(0) lgkmcnt(0)")
    e("s_barrier")
    e("s_branch K2_NEXT")
    e("K2_SLOWTOT:")
    e("v_lshlrev_b32 v14, 7, v0")
    e(f"s_lshl_b32 s{sT1}, s2, 16")
    e(f"s_add_u32 s{sT1}, s{sT1}, {WS_TOT}")
    e("s_waitcnt lgkmcnt(0)")
    e(f"s_cmp_lg_u32 s{sFirst}, 0")
    e("s_cbranch_scc1 K2_ST1")
    for r in range(8):
        e(f"buffer_load_dwordx4 {vr(224+4*r,4)}, v14, {sr(sWs,4)}, s{sT1} offen offset:{16*r} sc1")
    e("s_waitcnt vmcnt(0)")
    for r in range(32):
        e(f"v_add_f32 v{192+r}, v{192+r}, v{224+r}")
    e(f"s_cmp_eq_u32 s{sMore}, 0")
    e("s_cbranch_scc1 K2_FIN")
    e("K2_ST1:")
    for r in range(8):
        e(f"buffer_store_dwordx4 {vr(192+4*r,4)}, v14, {sr(sWs,4)}, s{sT1} offen offset:{16*r} sc1")
    e(f"s_mov_b32 s{sFirst}, 0")
    e(f"s_add_u32 s{sJ0}, s{sJ0}, s{sLW}")
    e("s_waitcnt vmcnt(0)")
    e("s_barrier")
    e("s_branch K2_NEXT")

def hi_pure(nt, prio, first=(), after=0, role='A', drop=0):
    e(f"s_setprio {prio}")
    ms = mfmas(1 - nt); av = list(first) + avals(nt)
    if role == 'A':
        tr = rcps() + exps(nt)
        per = (3, 3, 2, 2, 2, 2, 2, 2, 2); fl = [0, 0, 2, 2, 2, 2, 2, 2, 2]
    else:
        tr = exps(nt) + rcps()
        per = (2, 2, 2, 2, 2, 2, 2, 2, 4); fl = [2, 2, 2, 2, 2, 2, 2, 2, OPT['bt']]
        assert len(first) >= 2
    g = 7
    while drop > 0:
        d = min(fl[g], drop); fl[g] -= d; drop -= d; g -= 1
    t = 0; f = 0
    for g in range(9):
        e(ms[g])
        seq = [tr[t + i] for i in range(per[g])]; t += per[g]
        fs = [av[f + i] for i in range(fl[g])]; f += fl[g]
        while seq or fs:
            if seq: e(seq.pop(0))
            if fs: e(fs.pop(0))
    e(f"s_setprio {after}")
    assert f >= len(first)
    return av[f:]

def lo_part(nt, rest, adds):
    a = list(rest); b = chain(1 - nt) + list(adds)
    while a or b:
        if a: e(a.pop(0))
        for _ in range(2):
            if b: e(b.pop(0))
    for y in frac(nt): e(y)

sWm = 68
sDum = 43
def cmps(): return [f"v_cmp_gt_u32 {sr(sWm+2*j,2)}, s{sDum}, v{vWK+2*j}" for j in range(4)]
def mwrites():
    if not OPT['mw']: return writes()
    o = []
    for j, w in enumerate(writes()):
        o += [f"s_mov_b64 exec, {sr(sWm+2*j,2)}", w]
    return o + ["s_mov_b64 exec, -1"]

TL = [0]
def tl():
    if OPT['tl']:
        e(f"s_memtime {sr(44+2*TL[0],2)}"); TL[0] += 1
def tl_dump(lab):
    if not OPT['tl']: return
    n = TL[0]; TL[0] = 0
    e(f"s_cmp_lg_u32 s{sCnt}, {OPT['tl']}")
    e(f"s_cbranch_scc1 {lab}")
    e("s_waitcnt lgkmcnt(0)")
    for i in range(n):
        e(f"s_mov_b32 s{sSt+2+2*i}, s{44+2*i}")
    e(f"{lab}:")
def hi_last(prio, first, after):
    e(f"s_setprio {prio}")
    for y in rcps() + list(first) + exps(1): e(y)
    e(f"s_setprio {after}")
    return avals(1)

def role_loops():
    aIx = f"v_add_u32 v{vIxA}, 64, v{vIxA}"; aAq = f"v_add_u32 v{vAqA}, v{vAqA}, v{vAqI}"
    aW = [f"v_add_u32 v{vWK+2*j}, v{vWK+2*j}, v{vN16}" for j in range(4)]
    aWk = f"v_add_u32 v{vWkA}, 32, v{vWkA}"; aQa = f"v_add_u32 v{vQaA}, 64, v{vQaA}"
    cm = cmps()
    e(f"s_mov_b32 s{sDum}, {DUMMY}")
    e(f"s_cmp_ge_u32 s{sWave}, 4")
    e("s_cbranch_scc1 KB_LOOP")
    e(f"v_subrev_u32 v{vWkA}, 32, v{vWkA}")
    e("s_branch KA_ENTRY")
    e(".p2align 6")
    e("KA_LOOP:")
    tail = (cm + avals(1))[14:]
    e("s_waitcnt lgkmcnt(0)")
    lo_part(1, tail, aW)
    e("KA_ENTRY:")
    tl()
    r = hi_pure(0, OPT['pa'], mads() + [AQV])
    tl()
    e("s_waitcnt vmcnt(0)")
    for y in rd_x() + rd_aq() + rd_bq(0) + rd_bq(1): e(y)
    e(f"s_sub_u32 s{sCnt}, s{sCnt}, 1")
    e(f"s_cmp_eq_u32 s{sCnt}, 0")
    e("s_waitcnt lgkmcnt(3)")
    for y in dma(): e(y)
    e("s_waitcnt lgkmcnt(0)")
    tl()
    lo_part(0, r, [aIx, aAq, aWk, aQa])
    e("s_cbranch_scc1 KA_LAST")
    tl()
    hi_pure(1, OPT['pa'], cm)
    tl()
    for y in mwrites() + rd_wk() + rd_qa() + rd_idx(): e(y)
    tl()
    tl_dump("KA_TL")
    if OPT['trace']: trace_code()
    e("s_branch KA_LOOP")
    e("KA_LAST:")
    r = hi_last(OPT['pa'], cm, 0)
    for y in mwrites() + rd_wk(): e(y)
    e("s_waitcnt lgkmcnt(0)")
    lo_part(1, r, aW)
    e("s_branch K2_DRAIN")
    e(".p2align 6")
    e("KB_LOOP:")
    tl()
    r = hi_pure(0, OPT['pb'], mads() + cm + [AQV], OPT['pl'])
    tl()
    lo_part(0, r, [])
    tl()
    e("s_waitcnt vmcnt(0)")
    for y in rd_x() + rd_aq() + rd_bq(0) + mwrites() + rd_wk(): e(y)
    e(f"s_sub_u32 s{sCnt}, s{sCnt}, 1")
    e(f"s_cmp_eq_u32 s{sCnt}, 0")
    e("s_cbranch_scc1 KB_LAST")
    e("s_waitcnt lgkmcnt(6)")
    for y in dma(): e(y)
    e("s_waitcnt lgkmcnt(0)")
    tl()
    r = hi_pure(1, OPT['pb'], [], OPT['pl'])
    tl()
    lo_part(1, r, aW + [aIx, aQa, aWk, aAq])
    tl()
    for y in rd_bq(1) + rd_qa() + rd_idx(): e(y)
    tl_dump("KB_TL")
    if OPT['trace']: trace_code()
    e("s_waitcnt lgkmcnt(0)")
    e("s_branch KB_LOOP")
    e("KB_LAST:")
    r = hi_last(OPT['pb'], [], OPT['pl'])
    e("s_waitcnt lgkmcnt(0)")
    lo_part(1, r, aW)

def trace_code():
    e("s_memtime s[44:45]")
    e("s_memrealtime s[46:47]")
    e(f"s_lshl_b32 s48, s2, 3")
    e(f"s_add_u32 s48, s48, s{sWave}")
    e(f"s_lshl_b32 s48, s48, 4")
    e(f"s_add_u32 s48, s48, s{sCnt}")
    e(f"s_lshl_b32 s48, s48, 3")
    e(f"s_add_u32 s48, s48, {WS_DIAG+0x80000}")
    e("s_waitcnt lgkmcnt(0)")
    e("v_mov_b32 v8, s44")
    e("v_mov_b32 v9, s46")
    e("v_mov_b32 v10, 0")
    e("s_mov_b64 exec, 1")
    e(f"buffer_store_dwordx2 v[8:9], v10, {sr(sWs,4)}, s48 offen")
    e("s_mov_b64 exec, -1")

def loop_body():
    global L
    n0 = len(L)
    loop_body0()
    k = OPT['kill']
    body = L[n0:]; del L[n0:]
    for l in body:
        t = l.strip()
        if k & 1 and t.startswith('ds_read'): continue
        if k & 2 and t.startswith('ds_write'): continue
        if k & 4 and t.startswith('buffer_load'): continue
        if k & 8 and t.startswith('s_waitcnt') and not OPT['trace']: continue
        if k & 16 and t.startswith('v_add_u32'): continue
        if k & 32 and t.startswith('v_fmaak'): l = l.replace('v_fmaak_f32','v_mul_f32').rsplit(',',1)[0]
        if k & 64 and t.startswith('v_fma_f32'): l = l.replace('v_fma_f32','v_mul_f32').rsplit(',',1)[0]
        if k & 128 and t.startswith('v_and_b32'): continue
        L.append(l)
def loop_body0():
    e("s_setprio 1")
    ex = [[] for _ in range(9)]
    x = rd_x(); md = mads()
    ex[0] = rd_aq() + rd_bq(0)
    ex[1] = rd_bq(1) + ["s_waitcnt vmcnt(0)"]
    ex[2] = [x[0]]
    ex[4] = [x[1]]
    ex[5] = md[:2]
    ex[6] = [x[2]]
    ex[7] = md[2:]
    ex[8] = [x[3]]
    hi_phase(mfmas(1), rcps() + exps(0), ex)
    e("s_setprio 0")
    for y in mix(chain(1), avals(0)): e(y)
    e(f"v_add_u32 v{vIxA}, 64, v{vIxA}")
    e(f"v_add_u32 v{vAqA}, v{vAqA}, v{vAqI}")
    for y in frac(0): e(y)
    e("s_setprio 1")
    e("s_waitcnt lgkmcnt(0)")
    ex = [[] for _ in range(9)]
    w = writes(); d = dma(); wk = rd_wk()
    ex[0] = [d[0], w[0]]; ex[1] = [d[1], w[1]]; ex[2] = [d[2], w[2]]
    ex[4] = [d[3], w[3]]; ex[5] = wk; ex[7] = rd_qa() + [f"s_sub_u32 s{sCnt}, s{sCnt}, 1"]; ex[8] = rd_idx()
    hi_phase(mfmas(0), rcps() + exps(1), ex)
    e("s_setprio 0")
    av = avals(1)
    for y in av[:8]: e(y)
    e("s_waitcnt lgkmcnt(0)")
    for y in mix(chain(0), av[8:]): e(y)
    for j in range(4):
        e(f"v_add_u32 v{vWK+2*j}, v{vWK+2*j}, v{vN16}")
    e(f"v_add_u32 v{vWkA}, 32, v{vWkA}")
    e(f"v_add_u32 v{vQaV}, v{vQaV}, v{vQaC}")
    e(f"v_add_u32 v{vQaA}, 16, v{vQaA}")
    for y in frac(1): e(y)
    if OPT['trace']: trace_code()
    e(f"s_cmp_lg_u32 s{sCnt}, 0")
    e("s_cbranch_scc1 K2_LOOP")

def kd(name, vg, sg):
    L.extend([f".amdhsa_kernel {name}",
              f"  .amdhsa_next_free_vgpr {vg}",
              f"  .amdhsa_next_free_sgpr {sg}",
              f"  .amdhsa_accum_offset {(vg+3)//4*4}",
              "  .amdhsa_group_segment_fixed_size 0",
              "  .amdhsa_kernarg_size 96",
              "  .amdhsa_user_sgpr_count 2",
              "  .amdhsa_user_sgpr_kernarg_segment_ptr 1",
              "  .amdhsa_system_sgpr_workgroup_id_x 1",
              ".end_amdhsa_kernel"])

hdr = open("cdna_kernels/%s.s.ref" % NAME).read().split("\n")
for l in hdr:
    if l.startswith("; Override") : break
    L.append(l)
if OPT['lst']:
    L.append(f"; @launch kernel={NAME}_kernel grid=(256,1,1) block=(512,1,1) lds={K2_LDS}")
else:
    L.append(f"; @launch grid=(256,1,1) block=(512,1,1) lds={K2_LDS}")
L.append('.amdgcn_target "amdgcn-amd-amdhsa--gfx950"')
L.append(".text")
L.append(f".globl {NAME}_kernel")
L.append(f".type {NAME}_kernel,@function")
sSt = 82
for i, n in enumerate(OPT.get('pts', 'b2,b3,b4,go,hist').split(',')): PTS[n] = i + 1
k2()
L.append('.section .rodata,"a"')
L.append(".p2align 6")
kd(f"{NAME}_kernel", 256, 102)
open(sys.argv[1], "w").write("\n".join(L) + "\n")
print("K2_LDS", K2_LDS, "ATAB", ATAB, "STG", STG, "ROWS", ROWS)
```

```python
import sys, struct

NAME = "standalone__edge_featured_mpnn_gatedgcn__graph"
OPT = dict(stamp=0, trace=0, stf=1, ldf=3, sched=0, remap=1, nodefirst=0, kill=0, pf=1, h1=4, dbg=0, alt=0, alt2=0, slp=2, rt=0, ost=0, role=1, fill=14, pa=2, pb=1, pl=3, wf=1, tl=0, mw=1, bt=-1, fb=0, peel=1, pf7=0, pfa=0, pfb=0, skp=2, dl=1, qu=3, lat=0, tlb=0, tw=0, rs=1, rl=1, pl_=1, ps=1, ncl=32, cat=0, eb=0, lst=0)
for a in sys.argv[2:]:
    k, v = a.split('=')
    OPT[k] = int(v) if k != 'pts' else v

L = []
def e(s=""): L.append("    " + s if s and not s.endswith(":") else s)
def c(s): L.append("    ; " + s)
def f32(x): return "0x%08x" % struct.unpack("<I", struct.pack("<f", x))[0]
def vr(a, n): return f"v[{a}:{a+n-1}]"
def sr(a, n): return f"s[{a}:{a+n-1}]"
FL = ["", " sc1", " sc0 sc1", " nt", " sc1 nt", " sc0 sc1 nt"]

N = 25000; E = 800000
CH = 3136
CHB = CH * 12
BM = 171799
BK = 6399988
WS_T = 0
WS_IMG = 0x40000
WS_REC = 0x80000
WS_AU = 0xA00000
WS_TOT = 0x1100000
WS_DIAG = 0x2F00000
WS_SIZE = 0x3000000
LOG2E = 1.4426950408889634
NODE_WGS = 196
RFLAG = 0x21800000
sSt = 82

def srd(d, b, size, stride=0):
    e(f"s_mov_b32 s{d}, s{b}")
    e(f"s_and_b32 s{d+1}, s{b+1}, 0xffff")
    if stride:
        e(f"s_or_b32 s{d+1}, s{d+1}, {stride<<16:#x}")
    e(f"s_mov_b32 s{d+2}, {size}")
    e(f"s_mov_b32 s{d+3}, 0x20000")

def scan64(v):
    for m in ("row_shr:1 row_mask:0xf", "row_shr:2 row_mask:0xf", "row_shr:4 row_mask:0xf",
              "row_shr:8 row_mask:0xf", "row_bcast:15 row_mask:0xa", "row_bcast:31 row_mask:0xc"):
        e("s_nop 1")
        e(f"v_add_u32_dpp v{v}, v{v}, v{v} {m} bank_mask:0xf")

PTS = {}
def pt(name):
    if name in PTS: stamp(PTS[name])
def stamp(i):
    if OPT['stamp']:
        e(f"{'s_memrealtime' if OPT['rt'] else 's_memtime'} {sr(sSt+2*i,2)}")
        if i == 0:
            e(f"s_memrealtime {sr(sSt+18,2)}")
def diag_out(kidx, nst, swave, ssrd, extra=None, vt=8):
    if OPT['dbg']:
        e("s_memrealtime s[42:43]")
        e("s_load_dwordx2 s[44:45], s[0:1], 80")
        e("s_waitcnt lgkmcnt(0)")
        e(f"s_cmp_lg_u32 s2, {OPT['dbg']}")
        e(f"s_cbranch_scc1 K{kidx+1}_END")
        e(f"s_cmp_lg_u32 s{swave}, 5")
        e(f"s_cbranch_scc1 K{kidx+1}_END")
        e(f"s_add_u32 s44, s44, {512*(1-kidx)}")
        e("s_addc_u32 s45, s45, 0")
        srd(48, 44, 64)
        e(f"v_mov_b32 v{vt}, 0")
        e("s_mov_b64 exec, 1")
        sel = [(2,3,5,6,8),(1,2,4,5,6,7,8)][kidx]
        o = [0, 7][kidx]
        e(f"v_mov_b32 v{vt+1}, s{sSt+18}")
        e(f"buffer_store_dword v{vt+1}, v{vt}, s[48:51], 0 offen offset:{4*o}")
        for n, i in enumerate(sel):
            e(f"s_sub_u32 s40, s{sSt+2*i}, s{sSt}")
            e(f"v_mov_b32 v{vt+1}, s40")
            e(f"buffer_store_dword v{vt+1}, v{vt}, s[48:51], 0 offen offset:{4*(o+1+n)}")
        e(f"v_mov_b32 v{vt+1}, s42")
        e(f"buffer_store_dword v{vt+1}, v{vt}, s[48:51], 0 offen offset:{4*(o+1+len(sel))}")
        return
    e("s_memrealtime s[42:43]")
    e("s_waitcnt lgkmcnt(0)")
    e(f"s_lshl_b32 s39, s2, 4")
    e(f"s_add_u32 s39, s39, s{swave}")
    e(f"s_lshl_b32 s39, s39, 6")
    e(f"s_add_u32 s39, s39, {WS_DIAG + kidx*0x40000}")
    e(f"v_mov_b32 v{vt}, 0")
    e("s_mov_b64 exec, 1")
    for i in range(1, nst):
        e(f"s_sub_u32 s40, s{sSt+2*i}, {'0' if OPT['rt']==2 or OPT['tl'] else 's%d' % sSt}")
        e(f"v_mov_b32 v{vt+1}, s40")
        e(f"buffer_store_dword v{vt+1}, v{vt}, {sr(ssrd,4)}, s39 offen offset:{4*(i-1)}")
    if extra is not None:
        e(f"v_mov_b32 v{vt+1}, s{extra}")
        e(f"buffer_store_dword v{vt+1}, v{vt}, {sr(ssrd,4)}, s39 offen offset:48")
    e("s_getreg_b32 s40, hwreg(HW_REG_HW_ID)")
    e(f"v_mov_b32 v{vt+1}, s40")
    e(f"buffer_store_dword v{vt+1}, v{vt}, {sr(ssrd,4)}, s39 offen offset:52")
    e(f"v_mov_b32 v{vt+1}, s{sSt+18}")
    e(f"buffer_store_dword v{vt+1}, v{vt}, {sr(ssrd,4)}, s39 offen offset:56")
    e(f"v_mov_b32 v{vt+1}, s42")
    e(f"buffer_store_dword v{vt+1}, v{vt}, {sr(ssrd,4)}, s39 offen offset:60")

def mfma(d, a, b, cc):
    cs = "0" if cc is None else vr(cc, 16)
    return f"v_mfma_f32_32x32x16_bf16 {vr(d,16)}, {vr(a,4)}, {vr(b,4)}, {cs}"

CAP = 3584
CNT = 0
MORE = 512
BI = 528
M4 = 1280
E8 = M4 + CAP * 4 + 256
QWK = E8 + CAP * 8 + 256
AST = 136
RST = 528
ATAB = QWK + (CAP // 4) * 8 + 256
STG = (ATAB + 128 * AST + 1023) // 1024 * 1024
ROWS = STG + 32768
WRAW = STG
XOWN = ROWS
WCT = ROWS + 16384
P_HIST = ROWS + 20480
P_BASE = P_HIST + 1024
P_STG = M4
assert P_STG + CHB <= QWK
DUMMY = ROWS + 98 * RST
K2_LDS = DUMMY + 1024
assert XOWN + 16384 <= DUMMY
assert E8 % 16 == 0 and QWK % 16 == 0 and K2_LDS <= 160 * 1024 and ATAB < 65536, (K2_LDS, ATAB)
SC = 24
PADV = 0x7F007F00
RFLAG = 0x21800000

vW = 128; vD = [192, 224]; vX = 112; vBq = [104, 108]; vAq = 100; vAcc = 84
vS = 72; vN = 76; vP = 80; vWK = 64; vIdx = 56; vC = 40; vXo = 24; vU = 32; vXa = 20
vLane = 1; vAqA = 2; vAqI = 3; vIxA = 4; vQaA = 5; vQaV = 6; vQaC = 7
vWkA = 16; vN16 = 17; vC1 = 18; vTail = 19
vTe = 8
sX = 4; sXr = 8; sWs = 12; sOut = 16; sWc = 20
sBase = 24; sNN = 25; sWave = 26; sJ0 = 27; sLW = 28; sFirst = 29; s128 = 30; sQt = 31; sTt = 32
sNT = 33; sQw = 34; sStg = 35; sMore = 36; sBig = 37; sCnt = 38; sT0 = 39; sT1 = 40; sT2 = 41
sMk = 44

def G(b): return vD[b]
def H(b): return vD[b] + 16
def Wg(nt, s): return vW + (nt * 4 + s) * 4
def Wh(nt, s): return vW + 32 + (nt * 4 + s) * 4
def mfmas(nt):
    g = G(nt); h = H(nt)
    return [mfma(g, vAq, vBq[nt], vC),
            mfma(h, vX, Wh(nt,0), None), mfma(g, vX, Wg(nt,0), g),
            mfma(h, vX+4, Wh(nt,1), h), mfma(g, vX+4, Wg(nt,1), g),
            mfma(h, vX+8, Wh(nt,2), h), mfma(g, vX+8, Wg(nt,2), g),
            mfma(h, vX+12, Wh(nt,3), h), mfma(g, vX+12, Wg(nt,3), g)]
def acc(nt, j): return vAcc + j * 4 + nt * 2
def chain(nt):
    o = []
    for j in range(4):
        a = acc(nt, j); p = acc(nt, (j + 3) % 4); k = vWK + 2 * j + 1
        o += [f"v_and_b32 v{a}, v{p}, v{k}", f"v_and_b32 v{a+1}, v{p+1}, v{k}",
              f"v_fmac_f32 v{a}, v{vS+j}, v{Pj(j)}", f"v_fmac_f32 v{a+1}, v{vN+j}, v{Pj(j)}"]
    return o
def writes(): return [f"ds_write_b128 v{vWK+2*j}, {vr(vAcc+4*j,4)}" for j in range(4)]
def avals(nt):
    g = G(nt)
    return [f"v_fmaak_f32 v{g+r}, v{g+r}, v{vC1}, {f32(2.0**-SC)}" for r in range(16)]
def Pj(j): return vP + (j + 1) % 4
def frac(nt):
    g = G(nt); h = H(nt); o = []
    J = range(4)
    o += [f"v_mul_f32 v{h+4*j}, v{h+4*j}, v{g+4*j+1}" for j in J]
    o += [f"v_add_f32 v{Pj(j)}, v{g+4*j}, v{g+4*j+1}" for j in J]
    o += [f"v_fmac_f32 v{h+4*j}, v{h+4*j+1}, v{g+4*j}" for j in J]
    o += [f"v_mul_f32 v{g+4*j}, v{g+4*j}, v{g+4*j+1}" for j in J]
    o += [f"v_mul_f32 v{h+4*j+2}, v{h+4*j+2}, v{g+4*j}" for j in J]
    o += [f"v_mul_f32 v{vS+j}, v{g+4*j}, v{g+4*j+2}" for j in J]
    o += [f"v_fmac_f32 v{h+4*j+2}, v{h+4*j}, v{g+4*j+2}" for j in J]
    o += [f"v_fmac_f32 v{g+4*j}, v{Pj(j)}, v{g+4*j+2}" for j in J]
    o += [f"v_mul_f32 v{vN+j}, v{h+4*j+3}, v{vS+j}" for j in J]
    o += [f"v_mul_f32 v{Pj(j)}, v{vS+j}, v{g+4*j+3}" for j in J]
    o += [f"v_fmac_f32 v{vN+j}, v{h+4*j+2}, v{g+4*j+3}" for j in J]
    o += [f"v_fmac_f32 v{vS+j}, v{g+4*j}, v{g+4*j+3}" for j in J]
    return o
def mix(a, b):
    o = []; a = list(a); b = list(b)
    while a or b:
        if a: o += a[:2]; a = a[2:]
        if b: o += b[:2]; b = b[2:]
    return o
def exps(nt): return [f"v_exp_f32_e64 v{G(nt)+r}, v{G(nt)+r} clamp" for r in range(16)]
def rcps(): return [f"v_rcp_f32 v{vP+j}, v{vP+j}" for j in range(4)]
def rd_x(): return [f"ds_read_b128 {vr(vX+4*s,4)}, v{vXa+s}" for s in range(4)]
def rd_aq(): return [f"ds_read2_b32 {vr(vAq,2)}, v{vAqA} offset0:0 offset1:1"]
def rd_idx(): return [f"ds_read_b128 {vr(vIdx,4)}, v{vIxA} offset:{M4}"]
def mads(): return [f"v_mad_u32_u16 v{vIdx+i}, v{vIdx+i}, s{s128}, v{vIdx+4+i}" for i in range(4)]
def rd_qa(): return [f"ds_read_u16 v{vQaV}, v{vQaA} offset:{M4+2}"]
AQV = f"v_mad_u32_u24 v{vQaV}, v{vQaV}, {AST//4}, v{vQaC}"
def rd_bq(nt): return [f"ds_read_b64_tr_b16 {vr(vBq[nt]+2,2)}, v{vQaV} offset:{ATAB+64*nt}"]
def rd_wk(): return [f"ds_read_b128 {vr(vWK,4)}, v{vWkA} offset:{QWK}", f"ds_read_b128 {vr(vWK+4,4)}, v{vWkA} offset:{QWK+16}"]
def dma(): return [f"buffer_load_dwordx4 v{vIdx+i}, {sr(sX,4)}, 0 offen offset:{1024*i} lds" for i in range(4)]

def hi_phase(ms, trans, extras, per=(2, 2, 2, 3, 2, 2, 3, 2, 2)):
    t = 0
    for g in range(9):
        e(ms[g])
        for _ in range(per[g]):
            e(trans[t]); t += 1
        for x in extras[g]:
            e(x)
    assert t == 20

def side_consts():
    c("copy source addresses: v82 weights, v78/v79 own x rows")
    e(f"v_lshrrev_b32 v81, 5, v{vLane}")
    e(f"v_and_b32 v77, 7, v{vLane}")
    e("v_lshlrev_b32 v78, 2, v81")
    e("v_xor_b32 v77, v77, v78")
    e(f"v_and_b32 v82, 16, v{vLane}")
    e("v_lshlrev_b32 v82, 2, v82")
    e("v_xor_b32 v82, v68, v82")
    e(f"s_and_b32 s{sT2}, s{sWave}, 1")
    e(f"s_lshl_b32 s{sT1}, s{sT2}, 1")
    e(f"v_xor_b32 v78, s{sT1}, v77")
    e("v_lshlrev_b32 v78, 4, v78")
    e(f"v_lshrrev_b32 v79, 3, v{vLane}")
    e("v_lshl_add_u32 v78, v79, 9, v78")
    e("v_xor_b32 v79, 16, v78")
    e("v_add_u32 v79, 128, v79")
    e(f"s_lshr_b32 s{sT0}, s{sWave}, 1")
    e(f"s_lshl_b32 s{sT0}, s{sT0}, 5")
    e(f"s_add_u32 s{sQw}, s{sT0}, s{sBase}")
    e(f"s_add_u32 s{sQw}, s{sQw}, s{sT1}")
    e(f"s_lshl_b32 s{sQw}, s{sQw}, 7")

def lane_consts():
    c("---- lane constants ----")
    e(f"v_and_b32 v67, 31, v{vLane}")
    e(f"v_bfe_u32 v70, v{vLane}, 2, 1")
    e(f"v_bfe_u32 v71, v{vLane}, 3, 2")
    e("v_and_b32 v72, 1, v71")
    e("v_lshlrev_b32 v72, 4, v72")
    e("v_mov_b32 v73, 0x3f80")
    e("v_cmp_eq_u32 vcc, v70, v81")
    e("v_lshlrev_b32 v72, v72, v73")
    e("v_cmp_gt_u32 s[42:43], 2, v71")
    e("v_cndmask_b32 v72, 0, v72, vcc")
    e(f"v_and_b32 v73, 3, v{vLane}")
    e(f"v_cndmask_b32 v{vAq+2}, 0, v72, s[42:43]")
    e(f"v_cndmask_b32 v{vAq+3}, v72, 0, s[42:43]")
    for i in range(4):
        e(f"v_xor_b32 v74, {i}, v77")
        e(f"v_lshlrev_b32 v74, 4, v74")
        e(f"v_add_u32 v{vIdx+4+i}, {3072-1024*i}, v74")
    e(f"v_bfe_u32 v74, v{vLane}, 2, 3")
    e(f"v_bfe_u32 v75, v{vLane}, 4, 1")
    e("v_lshl_add_u32 v72, v75, 2, v73")
    e("v_lshlrev_b32 v76, 10, v73")
    e("v_lshl_add_u32 v76, v74, 7, v76")
    e(f"v_add_u32 v76, s{sStg}, v76")
    e("v_xor_b32 v72, v72, v81")
    for s_ in range(4):
        e(f"v_xor_b32 v74, {2*s_}, v72")
        e(f"v_lshl_add_u32 v{vXa+s_}, v74, 4, v76")
    e(f"v_lshlrev_b32 v{vN16}, 4, v67")
    e(f"v_mov_b32 v{vC1}, {f32(2.0**SC)}")
    e(f"v_lshlrev_b32 v{vAqI}, 6, v81")
    e(f"v_add_u32 v{vAqI}, 64, v{vAqI}")
    e("v_lshlrev_b32 v73, 3, v73")
    e(f"v_lshl_add_u32 v{vQaC}, v75, 5, v73")
    c("setup addresses: v8 A table write, v9/v10/v11 transposed reads, v12 wc, v24..27 own x")
    e(f"s_and_b32 s{sT2}, s{sWave}, 1")
    e(f"s_lshr_b32 s{sT0}, s{sWave}, 1")
    e(f"s_lshl_b32 s{sT1}, s{sT0}, 5")
    e(f"s_add_u32 s{sT1}, s{sT1}, s{sBase}")
    e(f"v_add_u32 v8, s{sT1}, v67")
    e("v_and_b32 v8, 127, v8")
    e(f"v_mul_u32_u24 v8, {AST}, v8")
    e("v_lshl_add_u32 v8, v81, 3, v8")
    e(f"s_lshl_b32 s{sT2}, s{sT2}, 6")
    e(f"v_add_u32 v8, s{sT2}, v8")
    e(f"v_bfe_u32 v71, v{vLane}, 2, 2")
    e("v_lshl_add_u32 v12, v81, 2, v71")
    e(f"v_lshl_add_u32 v12, v12, 7, v{vQaC}")
    e(f"v_add_u32 v12, {WCT}, v12")
    e("v_lshl_add_u32 v9, v81, 3, v71")
    e(f"v_lshl_add_u32 v9, v9, 7, v{vQaC}")
    e(f"v_bfe_u32 v71, v{vLane}, 3, 1")
    e("v_lshl_add_u32 v9, v71, 6, v9")
    e(f"v_add_u32 v9, {WRAW}, v9")
    e("v_xor_b32 v10, 64, v9")
    e(f"v_xor_b32 v11, s{sT2}, v9")
    e(f"s_lshl_b32 s{sT0}, s{sT0}, 12")
    e(f"s_add_u32 s{sT0}, s{sT0}, {XOWN}")
    e(f"s_sub_u32 s{sT0}, s{sT0}, s{sStg}")
    for s_ in range(4):
        e(f"v_add_u32 v{24+s_}, s{sT0}, v{vXa+s_}")

def prefetch_all(lanes, first_line, vt):
    if not lanes: return
    e(f"s_and_b32 s{sT2}, s2, 31")
    e(f"s_mul_i32 s{sT2}, s{sT2}, 782")
    e(f"s_mul_i32 s42, s{sWave}, {lanes}")
    e(f"s_add_u32 s{sT2}, s{sT2}, s42")
    e(f"s_add_u32 s{sT2}, s{sT2}, {first_line}")
    e(f"s_lshl_b32 s{sT2}, s{sT2}, 7")
    e(f"v_lshlrev_b32 v{vt}, 7, v{vLane}")
    e(f"s_mov_b64 exec, {(1<<lanes)-1 if lanes<64 else -1}" if lanes<=32 or lanes==64 else f"s_bfm_b64 exec, {lanes}, 0")
    e(f"buffer_load_dword v{vt}, v{vt}, {sr(sXr,4)}, s{sT2} offen")
    e("s_mov_b64 exec, -1")

def scale8(first, n):
    for r in range(n):
        e(f"v_lshlrev_b32 v72, 16, v{first+r}")
        e(f"v_and_b32 v73, 0xffff0000, v{first+r}")
        e(f"v_mul_f32 v72, v74, v72")
        e(f"v_mul_f32 v73, v74, v73")
        e(f"v_cvt_pk_bf16_f32 v{first+r}, v72, v73")

def k2():
    st = FL[OPT['stf']]; ld = FL[OPT['ldf']]
    sP = 3
    e(".p2align 8")
    e(f"{NAME}_kernel:")
    e("s_cmp_ge_u32 s2, 256")
    e("s_cbranch_scc1 K2_END")
    stamp(0)
    e("s_load_dwordx8 s[44:51], s[0:1], 0")
    e("s_load_dwordx8 s[52:59], s[0:1], 64")
    e("s_load_dwordx8 s[60:67], s[0:1], 32")
    e(f"s_mov_b32 s{sP}, s2")
    e(f"s_and_b32 s{sT0}, s2, 7")
    e("s_lshr_b32 s2, s2, 3")
    e(f"s_lshl_b32 s{sT0}, s{sT0}, 5")
    e(f"s_or_b32 s2, s2, s{sT0}")
    e(f"v_and_b32 v{vLane}, 63, v0")
    e("v_lshrrev_b32 v2, 6, v0")
    e(f"s_mul_i32 s{sT0}, s{sP}, {CH*4}")
    e(f"v_readfirstlane_b32 s{sWave}, v2")
    e(f"v_lshl_add_u32 v64, v0, 4, s{sT0}")
    e(f"v_add_u32 v65, 7168, v64")
    e("v_lshlrev_b32 v66, 1, v64")
    e("v_lshlrev_b32 v67, 1, v65")
    e(f"s_mov_b32 s{sT1}, {E*4}")
    e("s_movk_i32 s42, 336")
    e(f"v_cmp_gt_u32 s[76:77], s{sT1}, v64")
    e(f"v_cmp_gt_u32 s[78:79], s{sT1}, v65")
    e("v_cmp_gt_u32 vcc, s42, v0")
    e(f"v_lshlrev_b32 v68, 4, v{vLane}")
    e(f"v_add_u32 v69, {P_HIST}, v68")
    e(f"v_lshrrev_b32 v248, 3, v{vLane}")
    e("v_and_b32 v249, 0x70, v68")
    e("v_lshl_or_b32 v248, v248, 15, v249")
    for i in range(4):
        e(f"v_mov_b32 v{72+i}, 0")
    e("s_and_b64 s[78:79], s[78:79], vcc")
    e(f"s_cmp_eq_u32 s{sWave}, 7")
    e("s_cselect_b64 s[80:81], -1, 0")
    e("s_andn2_b64 s[76:77], s[76:77], s[80:81]")
    e("s_mov_b64 exec, s[80:81]")
    e("ds_write_b128 v69, v[72:75]")
    e(f"ds_write_b128 v68, v[72:75] offset:{CNT}")
    e(f"s_mul_i32 s{sBase}, s2, {BK}")
    e(f"s_add_u32 s{sNN}, s{sBase}, {BK+65535}")
    e(f"s_add_u32 s{sBase}, s{sBase}, 65535")
    e(f"s_lshr_b32 s{sBase}, s{sBase}, 16")
    e(f"s_lshr_b32 s{sNN}, s{sNN}, 16")
    e(f"s_sub_u32 s{sNN}, s{sNN}, s{sBase}")
    e(f"s_mov_b32 s{sJ0}, 0")
    e(f"s_movk_i32 s{sLW}, 384")
    e(f"s_mov_b32 s{sFirst}, 1")
    e(f"s_lshl_b32 s{sStg}, s{sWave}, 12")
    e(f"s_add_u32 s{sStg}, s{sStg}, {STG}")
    e("s_waitcnt lgkmcnt(0)")
    if OPT['tw']:
        srd(sWs, 58, WS_SIZE)
        e(f"v_lshlrev_b32 v83, {OPT['tw']}, v{vLane}")
        e(f"buffer_load_dword v83, v83, {sr(sWs,4)}, 0 offen")
    srd(68, 50, E * 4)
    e("s_mov_b64 exec, s[76:77]")
    e("buffer_load_dwordx4 v[192:195], v64, s[68:71], 0 offen" + ld)
    e("s_mov_b64 exec, s[78:79]")
    e("buffer_load_dwordx4 v[196:199], v65, s[68:71], 0 offen" + ld)
    srd(sWs, 58, WS_SIZE)
    c("wave 7 of the first workgroups clears the run table")
    NCL = OPT['ncl']; PER = 262144 // NCL
    e(f"s_cmp_lt_u32 s{sP}, {NCL}")
    e("s_cselect_b64 exec, s[80:81], 0")
    e("s_cbranch_execz P1_NOCL")
    e(f"s_mul_i32 s{sT0}, s{sP}, {PER}")
    for k in range(PER // 1024):
        e(f"buffer_store_dwordx4 v[72:75], v68, {sr(sWs,4)}, s{sT0} offen offset:{(k%4)*1024} sc1")
        if k % 4 == 3 and k + 1 < PER // 1024:
            e(f"s_add_u32 s{sT0}, s{sT0}, 4096")
    e("P1_NOCL:")
    srd(72, 48, E * 4)
    srd(sOut, 46, E * 8)
    e("s_barrier")
    pt('b1')
    e("s_mov_b64 exec, s[76:77]")
    e("buffer_load_dwordx4 v[200:203], v64, s[72:75], 0 offen" + ld)
    e(f"buffer_load_dwordx4 v[208:211], v66, {sr(sOut,4)}, 0 offen" + ld)
    e(f"buffer_load_dwordx4 v[212:215], v66, {sr(sOut,4)}, 0 offen offset:16" + ld)
    e("s_mov_b64 exec, -1")
    srd(sWc, 56, 256)
    srd(sXr, 44, N * 128)
    e("s_sub_u32 s50, s44, 3072")
    e("s_subb_u32 s51, s45, 0")
    srd(sX, 50, N * 128 + 3072)
    e(f"s_movk_i32 s{s128}, 128")
    side_consts()
    e(f"s_cmp_eq_u32 s{sWave}, 7")
    e("s_cbranch_scc1 P1_W7A")
    e("v_mov_b32 v70, 12")
    e(f"s_mov_b32 s{sT0}, {BM}")
    e("s_movk_i32 s42, 0x3fc")
    e(f"v_mov_b32 v71, {P_HIST}")
    if OPT['eb']:
        if OPT['eb'] == 1: e("s_waitcnt vmcnt(4)")
        e("s_mov_b64 exec, s[78:79]")
        e("buffer_load_dwordx4 v[204:207], v65, s[72:75], 0 offen" + ld)
        e(f"buffer_load_dwordx4 v[216:219], v67, {sr(sOut,4)}, 0 offen" + ld)
        e(f"buffer_load_dwordx4 v[220:223], v67, {sr(sOut,4)}, 0 offen offset:16" + ld)
    for it in range(2):
        e(f"s_mov_b64 exec, s[{76+2*it}:{77+2*it}]")
        e(f"s_waitcnt vmcnt({4-it})")
        for i in range(4):
            e(f"v_mul_u32_u24 v{224+4*it+i}, s{sT0}, v{192+4*it+i}")
        for i in range(4):
            e(f"v_lshrrev_b32 v{224+4*it+i}, 22, v{224+4*it+i}")
        for i in range(4):
            e(f"v_and_or_b32 v{224+4*it+i}, v{224+4*it+i}, s42, v71")
            e(f"ds_add_rtn_u32 v{232+4*it+i}, v{224+4*it+i}, v70")
        for i in range(4):
            e(f"v_and_b32 v{192+4*it+i}, 127, v{192+4*it+i}")
    if not OPT['eb']:
        e("s_mov_b64 exec, s[78:79]")
        e("buffer_load_dwordx4 v[204:207], v65, s[72:75], 0 offen" + ld)
        e(f"buffer_load_dwordx4 v[216:219], v67, {sr(sOut,4)}, 0 offen" + ld)
        e(f"buffer_load_dwordx4 v[220:223], v67, {sr(sOut,4)}, 0 offen offset:16" + ld)
    e("s_mov_b64 exec, -1")
    e("s_waitcnt lgkmcnt(0)")
    def p1_scan():
        e("s_barrier")
        pt('b2')
        e("ds_read_b128 v[240:243], v69")
        e("s_waitcnt lgkmcnt(0)")
        e("v_add_u32 v72, v240, v241")
        e("v_add_u32 v73, v72, v242")
        e("v_add_u32 v76, v73, v243")
        e("v_mov_b32 v80, v76")
        scan64(80)
        e("v_sub_u32 v244, v80, v76")
        e("v_add_u32 v245, v244, v240")
        e("v_add_u32 v246, v244, v72")
        e("v_add_u32 v247, v244, v73")
    p1_scan()
    e(f"ds_write_b128 v69, v[244:247] offset:{P_BASE-P_HIST}")
    e("s_waitcnt lgkmcnt(0)")
    for it in range(2):
        e(f"s_mov_b64 exec, s[{76+2*it}:{77+2*it}]")
        for i in range(4):
            e(f"ds_read_b32 v{224+4*it+i}, v{224+4*it+i} offset:{P_BASE-P_HIST}")
    e("s_mov_b64 exec, -1")
    def side_copies():
        e(f"s_lshl_b32 s{sT1}, s{sWave}, 11")
        e(f"s_add_u32 m0, s{sT1}, {XOWN}")
        e(f"s_lshl_b32 s{sT1}, s{sWave}, 10")
        e(f"buffer_load_dwordx4 v78, {sr(sXr,4)}, s{sQw} offen lds")
        e("s_add_u32 m0, m0, 1024")
        e("s_nop 0")
        e(f"buffer_load_dwordx4 v79, {sr(sXr,4)}, s{sQw} offen lds")
        for k, pw in enumerate((52, 60, 66)):
            e(f"s_add_u32 m0, s{sT1}, {WRAW+8192*(k+1)}")
            srd(68, pw, 8192)
            e(f"buffer_load_dwordx4 v82, s[68:71], s{sT1} offen lds")
        srd(68, 62, 8192)
        e(f"buffer_load_dwordx4 v[112:115], v82, s[68:71], s{sT1} offen")
    side_copies()
    pt('side')
    NX = 6
    for it in range(2):
        e(f"s_mov_b64 exec, s[{76+2*it}:{77+2*it}]")
        e(f"s_waitcnt vmcnt({NX+5-3*it}) lgkmcnt({4 if it==0 else 8})")
        for i in range(4):
            k = 4 * it + i
            e(f"v_lshl_or_b32 v{200+k}, v{192+k}, 18, v{200+k}")
            e(f"v_add_u32 v{224+k}, v{224+k}, v{232+k}")
            e(f"ds_write_b32 v{224+k}, v{200+k} offset:{P_STG+8}")
        for i in range(4):
            k = 4 * it + i
            if i % 2 == 0:
                e(f"s_waitcnt vmcnt({NX+4-3*it-i//2})")
            e(f"v_add_u32 v{224+k}, {P_STG}, v{224+k}")
            e(f"ds_write2_b32 v{224+k}, v{208+2*k}, v{209+2*k} offset0:0 offset1:1")
    e("s_mov_b64 exec, -1")
    pt('p1scat')
    e("P1_J:")
    e("v_lshlrev_b32 v64, 4, v0")
    e(f"s_mul_i32 s{sT0}, s{sP}, {CHB}")
    e(f"s_add_u32 s{sT0}, s{sT0}, {WS_REC}")
    NT_ = 448 if OPT['pf7'] else 512
    NR = -(-2352 // NT_)
    e(f"s_movk_i32 s42, {2352 - (NR-1)*NT_}")
    e("v_cmp_gt_u32 vcc, s42, v0")
    e("s_waitcnt lgkmcnt(0)")
    e("s_barrier")
    pt('b3')
    if OPT['pf7']:
        e("s_andn2_b64 exec, exec, s[80:81]")
    for k in range(NR):
        e(f"ds_read_b128 {vr(192+4*k,4)}, v64 offset:{P_STG + k*NT_*16}")
    for k in range(NR):
        if k == NR-1:
            e("s_mov_b64 exec, vcc")
        e(f"s_waitcnt lgkmcnt({NR-1-k})")
        e(f"buffer_store_dwordx4 {vr(192+4*k,4)}, v64, {sr(sWs,4)}, s{sT0} offen" + FL[OPT['rs']])
        if k < NR-1:
            e(f"s_add_u32 s{sT0}, s{sT0}, {NT_*16}")
    e("s_mov_b64 exec, -1")
    e(f"s_cmp_eq_u32 s{sWave}, 7")
    e("s_cbranch_scc1 P1_W7B")
    pt('stored')
    def mid(wait):
        srd(sOut, 54, N * 128)
        lane_consts()
        e(f"v_mov_b32 v74, {f32(-LOG2E)}")
        e(f"v_add_u32 v75, {WRAW}, v64")
        if wait is not None: e(f"s_waitcnt vmcnt({wait})")
        scale8(112, 4)
        e("ds_write_b128 v75, v[112:115]")
    mid(NR)
    e("s_waitcnt vmcnt(0)")
    e("P1_RDY:")
    pt('rdy')
    e(f"s_lshl_b32 s{sT1}, s{sP}, 7")
    e("s_waitcnt lgkmcnt(0)")
    e("s_barrier")
    pt('b4')
    c("publish this chunk's run table (every word carries a valid bit)")
    e("s_mov_b64 exec, s[80:81]")
    e(f"buffer_store_dwordx4 v[244:247], v248, {sr(sWs,4)}, s{sT1} offen" + FL[OPT['ps']])
    e("s_mov_b64 exec, -1")
    prefetch_all(OPT['pfa'], 64*OPT['pf7'], 15)
    if OPT['tlb']:
        e(f"v_lshlrev_b32 v15, {OPT['tlb']}, v0")
        e(f"buffer_load_dword v15, v15, {sr(sXr,4)}, 0 offen")
    c("---- A table and U for this wave's (node tile, channel half); weight operands ----")
    for s_ in range(4):
        e(f"ds_read_b128 {vr(40+4*s_,4)}, v{24+s_}")
    for m in range(2):
        for s_ in range(4):
            for hf in range(2):
                e(f"ds_read_b64_tr_b16 {vr(vW+16*m+4*s_+2*hf,2)}, v11 offset:{16384+m*8192+s_*2048+hf*512}")
    e(f"s_mov_b32 s{sT0}, {f32(-LOG2E)}")
    e("s_waitcnt lgkmcnt(8)")
    for s_ in range(4):
        e(mfma(84, vW+4*s_, 40+4*s_, 84 if s_ else None))
    e("s_waitcnt lgkmcnt(0)")
    for s_ in range(4):
        e(mfma(112, vW+16+4*s_, 40+4*s_, 112 if s_ else None))
    for m in range(2):
        for nt in range(2):
            for s_ in range(4):
                for hf in range(2):
                    e(f"ds_read_b64_tr_b16 {vr(vW+32*m+16*nt+4*s_+2*hf,2)}, v{9+nt} offset:{m*8192+s_*2048+hf*512}")
    for nt in range(2):
        e(f"ds_read_b64_tr_b16 {vr(vBq[nt],2)}, v12 offset:{64*nt}")
    for r in range(16):
        e(f"v_mul_f32 v{84+r}, s{sT0}, v{84+r}")
    for r in range(8):
        e(f"v_cvt_pk_bf16_f32 v{72+r}, v{84+2*r}, v{85+2*r}")
    for j in range(4):
        e(f"ds_write_b64 v8, {vr(72+2*j,2)} offset:{ATAB+j*16}")
    for r in range(8):
        e(f"v_cvt_pk_bf16_f32 v{vU+r}, v{112+2*r}, v{113+2*r}")
    for r in range(16):
        e(f"v_mov_b32 v{vC+r}, {f32(-2.0*SC)}")
    c("residual operand: thread = (node tid>>2, chunks c and c+4)")
    e(f"v_lshrrev_b32 v13, 2, v0")
    e(f"v_add_u32 v13, s{sBase}, v13")
    e("v_and_b32 v14, 3, v0")
    e("v_lshlrev_b32 v14, 4, v14")
    e("v_lshl_add_u32 v13, v13, 7, v14")
    e(f"buffer_load_dwordx4 {vr(vXo,4)}, v13, {sr(sXr,4)}, 0 offen")
    e(f"buffer_load_dwordx4 {vr(vXo+4,4)}, v13, {sr(sXr,4)}, 0 offen offset:64")
    e("K2_ROUND:")
    c("window offsets (0xffff = lane outside the window)")
    e(f"v_and_b32 v66, 15, v{vLane}")
    e("v_mul_u32_u24 v66, 12, v66")
    e("v_add_u32 v67, 192, v66")
    e(f"v_cmp_gt_u32 vcc, s{sLW}, v66")
    e(f"v_cmp_gt_u32 s[76:77], s{sLW}, v67")
    e(f"v_add_u32 v66, s{sJ0}, v66")
    e(f"v_add_u32 v67, s{sJ0}, v67")
    e("v_lshrrev_b32 v68, 4, v0")
    e(f"s_mov_b32 s{sT0}, {8*CHB}")
    e(f"v_mul_u32_u24 v68, s{sT0}, v68")
    e("v_add3_u32 v68, v68, v66, -1")
    e("v_mov_b32 v69, 0xffff")
    e("v_cndmask_b32 v66, v69, v66, vcc")
    e("v_cndmask_b32 v67, v69, v67, s[76:77]")
    for r in range(16):
        e(f"v_mov_b32 v{vAcc+r}, 0")
    e("v_and_b32 v64, 0x1f0, v0")
    e("v_lshlrev_b32 v64, 6, v64")
    e(f"s_lshr_b32 s{sT0}, s2, 5")
    e(f"s_lshl_b32 s{sT0}, s{sT0}, 15")
    e(f"s_and_b32 s{sT1}, s2, 31")
    e(f"s_lshl_b32 s{sT1}, s{sT1}, 2")
    e(f"s_add_u32 s{sT0}, s{sT0}, s{sT1}")
    e(f"s_mov_b32 s{sCnt}, 0x40000")
    pt('poll')
    c("wait for the run tables of this wave's 32 producers")
    e("K2_POLL:")
    for i in range(8):
        e(f"buffer_load_dword v{vTe+i}, v64, {sr(sWs,4)}, s{sT0} offen offset:{i*128}" + FL[OPT['pl_']])
    e("s_waitcnt vmcnt(0)")
    e(f"v_bitop3_b32 v69, v{vTe}, v{vTe+1}, v{vTe+2} bitop3:0x80")
    e(f"v_bitop3_b32 v70, v{vTe+3}, v{vTe+4}, v{vTe+5} bitop3:0x80")
    e(f"v_bitop3_b32 v69, v69, v{vTe+6}, v{vTe+7} bitop3:0x80")
    e(f"v_bitop3_b32 v69, v69, v70, 1 bitop3:0x80")
    e("v_cmp_eq_u32 vcc, 0, v69")
    e(f"s_sub_u32 s{sCnt}, s{sCnt}, 1")
    e("s_cbranch_scc1 K2_END")
    e("s_cmp_eq_u64 vcc, 0")
    e("s_cbranch_scc1 K2_GO")
    e(f"s_sleep {OPT['slp']}")
    e("s_branch K2_POLL")
    e("K2_GO:")
    pt('go')
    e(f"s_mov_b32 s{sCnt}, {WS_REC}")
    sd = "dst_sel:DWORD dst_unused:UNUSED_PAD "
    for i in range(8):
        m0 = sMk + 4 * i; m1 = m0 + 2
        e(f"v_cmp_lt_u32_sdwa {sr(m0,2)}, v66, v{vTe+i} src0_sel:DWORD src1_sel:WORD_1")
        e(f"v_add_u32_sdwa v69, v68, v{vTe+i} {sd}src0_sel:DWORD src1_sel:WORD_0")
        e(f"v_cmp_lt_u32_sdwa {sr(m1,2)}, v67, v{vTe+i} src0_sel:DWORD src1_sel:WORD_1")
        e(f"s_mov_b64 exec, {sr(m0,2)}")
        e(f"buffer_load_dwordx3 {vr(192+8*i,3)}, v69, {sr(sWs,4)}, s{sCnt} offen" + FL[OPT['rl']])
        e(f"s_mov_b64 exec, {sr(m1,2)}")
        e(f"buffer_load_dwordx3 {vr(196+8*i,3)}, v69, {sr(sWs,4)}, s{sCnt} offen offset:192" + FL[OPT['rl']])
        e("s_mov_b64 exec, -1")
        if i < 7:
            e(f"s_add_u32 s{sCnt}, s{sCnt}, {CHB}")
    npf = 0
    e(f"v_max3_u32 v{vTe}, v{vTe}, v{vTe+1}, v{vTe+2}")
    e(f"v_max3_u32 v{vTe+3}, v{vTe+3}, v{vTe+4}, v{vTe+5}")
    e(f"v_max3_u32 v{vTe}, v{vTe}, v{vTe+6}, v{vTe+7}")
    e(f"v_max_u32 v{vTe}, v{vTe}, v{vTe+3}")
    e(f"s_add_u32 s{sT1}, s{sJ0}, s{sLW}")
    e(f"s_lshl_b32 s{sT1}, s{sT1}, 16")
    e(f"s_or_b32 s{sT1}, s{sT1}, 0xffff")
    e(f"v_cmp_lt_u32 vcc, s{sT1}, v{vTe}")
    e("v_mov_b32 v66, 4")
    e("v_mov_b32 v67, 0")
    e("s_mov_b64 exec, vcc")
    e(f"ds_write_b32 v67, v66 offset:{MORE}")
    e("s_mov_b64 exec, -1")
    c("scan / meta lane constants while the records are in flight")
    e(f"v_lshl_add_u32 v8, v{vLane}, 1, s{sBase}")
    e("v_add_u32 v9, 1, v8")
    e("v_and_b32 v8, 127, v8")
    e("v_and_b32 v9, 127, v9")
    e("v_lshlrev_b32 v8, 2, v8")
    e("v_lshlrev_b32 v9, 2, v9")
    e(f"s_add_u32 s{sT0}, s{sNN}, 7")
    e(f"v_lshlrev_b32 v10, 1, v{vLane}")
    e("v_add_u32 v11, 1, v10")
    e(f"v_cmp_gt_u32 vcc, s{sT0}, v10")
    e(f"v_cmp_gt_u32 s[76:77], s{sT0}, v11")
    e("v_lshrrev_b32 v12, 2, v0")
    e("v_cndmask_b32 v10, 0, 16, vcc")
    e("v_cndmask_b32 v11, 0, 16, s[76:77]")
    e(f"v_cmp_gt_u32 vcc, s{sT0}, v12")
    e(f"v_cmp_gt_u32 s[76:77], s{sNN}, v12")
    e(f"v_add_u32 v13, s{sBase}, v12")
    e("v_cndmask_b32 v14, 0, 16, vcc")
    e("v_and_b32 v13, 127, v13")
    e("v_lshlrev_b32 v13, 2, v13")
    e(f"v_mul_u32_u24 v15, {RST}, v12")
    e(f"v_add_u32 v15, {ROWS}, v15")
    e(f"v_mov_b32 v64, {DUMMY+512}")
    e("v_cndmask_b32 v15, v64, v15, s[76:77]")
    for j in range(4):
        e(f"v_mov_b32 v{vN+j}, 0")
        e(f"v_mov_b32 v{vP+j}, 1.0")
    for q in range(16):
        r = 192 + 4 * q
        e(f"s_mov_b64 exec, {sr(sMk+2*q,2)}")
        if q % 2:
            e(f"s_cbranch_execz K2_H{q}")
        e(f"s_waitcnt vmcnt({15+npf-q})")
        e(f"v_lshrrev_b32 v{112+q}, 16, v{r+2}")
        e(f"ds_add_rtn_u32 v{r+3}, v{112+q}, v66 offset:{CNT}")
        if q % 2:
            e(f"K2_H{q}:")
    e("s_mov_b64 exec, -1")
    prefetch_all(OPT['pfb'], 64*OPT['pf7'] + 8*OPT['pfa'], 12)
    e("s_waitcnt lgkmcnt(0)")
    e("s_barrier")
    pt('hist')
    c("---- scan (every wave, redundantly) ----")
    e(f"ds_read_b32 v64, v8 offset:{CNT}")
    e(f"ds_read_b32 v65, v9 offset:{CNT}")
    e(f"ds_read_b32 v68, v67 offset:{MORE}")
    e("s_waitcnt lgkmcnt(1)")
    e("v_add_u32 v69, 15, v64")
    e("v_add_u32 v70, 15, v65")
    e("v_and_b32 v69, -16, v69")
    e("v_and_b32 v70, -16, v70")
    e("v_max_u32 v69, v69, v10")
    e("v_max_u32 v70, v70, v11")
    e("v_add_u32 v71, v69, v70")
    e("v_mov_b32 v72, v71")
    scan64(72)
    e("v_sub_u32 v73, v72, v71")
    e("v_add_u32 v74, v73, v69")
    e(f"v_readlane_b32 s{sQt}, v72, 63")
    e("v_lshl_or_b32 v64, v64, 16, v73")
    e("v_lshl_or_b32 v65, v65, 16, v74")
    e(f"ds_write_b32 v8, v64 offset:{BI}")
    e(f"ds_write_b32 v9, v65 offset:{BI}")
    e("v_max_u32 v69, v69, v70")
    e(f"s_lshr_b32 s{sTt}, s{sQt}, 7")
    e("s_waitcnt lgkmcnt(0)")
    pt('s1')
    e(f"v_readfirstlane_b32 s{sMore}, v68")
    e(f"ds_read_b32 v64, v13 offset:{BI}")
    for q in range(16):
        e(f"s_mov_b64 exec, {sr(sMk+2*q,2)}")
        e(f"ds_read_u16 v{112+q}, v{112+q} offset:{BI}")
    e("s_mov_b64 exec, -1")
    e(f"s_cmp_gt_u32 s{sQt}, {CAP*4}")
    e(f"s_cselect_b32 s{sT0}, 1, s{sMore}")
    e(f"s_cmp_eq_u32 s{sLW}, 384")
    e(f"s_cselect_b32 s{sT0}, s{sT0}, 0")
    e(f"s_cmp_lg_u32 s{sT0}, 0")
    e("s_cbranch_scc1 K2_FAIL")
    c("pads")
    e("v_and_b32 v65, 3, v0")
    e(f"v_mov_b32 v70, {PADV:#x}")
    e("s_waitcnt lgkmcnt(15)")
    e("v_lshrrev_b32 v68, 16, v64")
    e("v_and_b32 v64, 0xffff, v64")
    e("v_add_u32 v74, 15, v68")
    e("v_and_b32 v74, -16, v74")
    e("v_max_u32 v74, v74, v14")
    e("v_lshl_add_u32 v68, v65, 2, v68")
    e("v_cmp_lt_u32 s[76:77], v68, v74")
    e("v_add_u32 v68, v68, v64")
    e("s_mov_b64 exec, s[76:77]")
    e(f"ds_write_b32 v68, v70 offset:{M4}")
    e("s_waitcnt lgkmcnt(1)")
    pt('s2')
    c("---- scatter: index words first ----")
    for q in range(16):
        r = 192 + 4 * q
        e(f"s_mov_b64 exec, {sr(sMk+2*q,2)}")
        if q % 2 and OPT['skp'] & 1: e(f"s_cbranch_execz K2_S{q}")
        e(f"v_add_u32 v{112+q}, v{112+q}, v{r+3}")
        e(f"ds_write_b32 v{112+q}, v{r+2} offset:{M4}")
        if q % 2 and OPT['skp'] & 1: e(f"K2_S{q}:")
    e("s_mov_b64 exec, -1")
    pt('s3')
    e(f"s_lshr_b32 s{sT0}, s{sTt}, 3")
    e(f"s_and_b32 s{sT1}, s{sTt}, 7")
    e(f"s_lshl_b32 s{sT2}, s{sT0}, 6")
    e(f"v_cmp_lt_u32 vcc, s{sT2}, v69")
    e(f"s_mul_i32 s{sQw}, s{sT0}, s{sWave}")
    e(f"s_min_u32 s{sT2}, s{sT1}, s{sWave}")
    e(f"s_add_u32 s{sQw}, s{sQw}, s{sT2}")
    e(f"s_lshl_b32 s{sQw}, s{sQw}, 3")
    e(f"s_cmp_lt_u32 s{sWave}, s{sT1}")
    e(f"s_addc_u32 s{sNT}, s{sT0}, 0")
    e(f"s_or_b32 s{sBig}, vcc_lo, vcc_hi")
    e(f"s_lshl_b32 s{sT0}, s{sNT}, 2")
    e(f"v_bfe_u32 v66, v{vLane}, 3, 1")
    e(f"v_lshrrev_b32 v69, 4, v{vLane}")
    e(f"v_mad_u32_u24 v66, v66, s{sT0}, v69")
    e(f"v_add_lshl_u32 v{vIxA}, v66, s{sQw}, 4")
    e(f"v_lshrrev_b32 v67, 5, v{vLane}")
    e(f"v_mul_u32_u24 v66, s{sT0}, v67")
    e(f"v_add_u32 v66, s{sQw}, v66")
    e(f"v_bfe_u32 v69, v{vLane}, 2, 2")
    e(f"v_add_lshl_u32 v{vQaA}, v66, v69, 4")
    e(f"s_mov_b32 m0, s{sStg}")
    e("s_waitcnt lgkmcnt(0)")
    e("s_barrier")
    pt('scat')
    for x in rd_idx() + rd_qa(): e(x)
    e(f"v_add_u32 v{vIxA}, 64, v{vIxA}")
    e(f"v_add_u32 v{vQaA}, 64, v{vQaA}")
    e(f"v_lshlrev_b32 v{vWkA}, 3, v66")
    e(f"v_add_lshl_u32 v{vTail}, v66, s{sT0}, 4")
    e("v_lshlrev_b32 v71, 1, v68")
    e("v_mov_b32 v72, 0")
    e("v_mov_b32 v73, 0")
    e("s_waitcnt lgkmcnt(1)")
    for x in mads() + dma(): e(x)
    e("s_waitcnt lgkmcnt(0)")
    e(AQV)
    for x in rd_idx() + rd_bq(0) + rd_bq(1) + rd_qa(): e(x)
    e(f"v_add_u32 v{vIxA}, 64, v{vIxA}")
    if OPT['lat']:
        pt('f0')
        e("s_waitcnt vmcnt(0)")
    pt('f1')
    c("---- scatter: edge attributes ----")
    e("s_mov_b64 exec, s[76:77]")
    e(f"ds_write_b64 v71, v[72:73] offset:{E8}")
    for q in range(16):
        r = 192 + 4 * q
        e(f"s_mov_b64 exec, {sr(sMk+2*q,2)}")
        if q % 2 and OPT['skp'] & 2: e(f"s_cbranch_execz K2_E{q}")
        e(f"v_lshlrev_b32 v{r+3}, 1, v{112+q}")
        e(f"ds_write_b64 v{r+3}, {vr(r,2)} offset:{E8}")
        if q % 2 and OPT['skp'] & 2: e(f"K2_E{q}:")
    e("s_mov_b64 exec, -1")
    pt('f2')
    c("quad meta: thread = (node, k0)")
    e("v_lshrrev_b32 v69, 4, v74")
    e("v_lshrrev_b32 v64, 4, v64")
    e("v_cmp_eq_u32 vcc, 0, v65")
    e("v_add_lshl_u32 v68, v64, v65, 3")
    e("v_add_u32 v70, -1, v69")
    e("v_cndmask_b32 v73, -1, 0, vcc")
    e(f"v_mov_b32 v71, {DUMMY}")
    for u in range(OPT['qu']):
        e("v_cmp_lt_u32 vcc, v65, v69")
        e("v_cmp_eq_u32 s[76:77], v65, v70")
        e("s_and_b64 exec, exec, vcc")
        e("v_add_u32 v65, 4, v65")
        e("v_cndmask_b32 v72, v71, v15, s[76:77]")
        e(f"ds_write_b64 v68, v[72:73] offset:{QWK+32*u}")
        if u == 0: e("v_mov_b32 v73, -1")
    if OPT['qu']: e(f"v_add_u32 v68, {32*OPT['qu']}, v68")
    e("K2_QM:")
    e("v_cmp_lt_u32 vcc, v65, v69")
    e("v_cmp_eq_u32 s[76:77], v65, v70")
    e("s_and_b64 exec, exec, vcc")
    e("s_cbranch_execz K2_QMD")
    e("v_add_u32 v65, 4, v65")
    e("v_cndmask_b32 v72, v71, v15, s[76:77]")
    e(f"ds_write_b64 v68, v[72:73] offset:{QWK}")
    e("v_add_u32 v68, 32, v68")
    e("v_mov_b32 v73, -1")
    e("s_branch K2_QM")
    e("K2_QMD:")
    e("s_mov_b64 exec, -1")
    pt('f3')
    e(f"v_bfe_u32 v64, v{vLane}, 2, 1")
    e(f"v_bfe_u32 v65, v{vLane}, 3, 2")
    e(f"v_mad_u32_u24 v64, v64, s{sT0}, v65")
    e(f"v_add_lshl_u32 v64, v64, s{sQw}, 2")
    e(f"v_and_or_b32 v64, v{vLane}, 3, v64")
    e("v_add_u32 v65, 2, v67")
    e("v_lshlrev_b32 v64, v65, v64")
    e(f"v_mul_u32_u24 v65, {E8-M4}, v67")
    e(f"v_add_u32 v65, {M4}, v65")
    e(f"v_add_u32 v{vAqA}, v64, v65")
    e("s_waitcnt vmcnt(0)")
    pt('f4')
    for x in rd_x(): e(x)
    for j in range(4):
        e(f"v_mov_b32 v{vS+j}, 0")
        e(f"v_add_u32 v{vWK+2*j}, {DUMMY+512}, v{vN16}")
        e(f"v_mov_b32 v{vWK+2*j+1}, 0")
    e("s_waitcnt lgkmcnt(4)")
    for x in mads(): e(x)
    e("s_waitcnt lgkmcnt(0)")
    if not OPT['dl']:
        for x in dma(): e(x)
    e("s_barrier")
    pt('meta')
    for x in rd_aq(): e(x)
    if not OPT['dl']:
        for x in rd_idx(): e(x)
    e(f"s_cmp_eq_u32 s{sNT}, 0")
    e("s_cbranch_scc1 K2_DRAIN")
    g0 = G(0); h0 = H(0)
    for s_ in range(4):
        e(mfma(g0, vX+4*s_, Wg(0,s_), g0 if s_ else vC))
        if OPT['dl'] and s_ < 2: e(dma()[2*s_])
        if OPT['dl'] and s_ == 2: e(rd_idx()[0])
        e(mfma(h0, vX+4*s_, Wh(0,s_), h0 if s_ else None))
        if OPT['dl'] and s_ < 2: e(dma()[2*s_+1])
    e("s_waitcnt lgkmcnt(0)")
    e(mfma(g0, vAq, vBq[0], g0))
    e(f"v_add_u32 v{vAqA}, v{vAqA}, v{vAqI}")
    e(f"s_mov_b32 s{sCnt}, s{sNT}")
    e("s_nop 5")
    if not OPT['tl']: stamp(6)
    if OPT['role']:
        role_loops()
    else:
        e(".p2align 6")
        e("K2_LOOP:")
        loop_body()
    e("K2_DRAIN:")
    e("s_setprio 0")
    for x in rcps(): e(x)
    e(f"v_and_b32 v9, 31, v{vLane}")
    e(f"v_lshrrev_b32 v10, 5, v{vLane}")
    for x in chain(1): e(x)
    for x in writes(): e(x)
    stamp(7)
    c("---- tails; U to LDS ----")
    e(f"ds_read_u16 v8, v{vTail} offset:{M4-14}")
    e("v_mul_u32_u24 v9, 72, v9")
    e("v_lshl_add_u32 v9, v10, 3, v9")
    e(f"v_add_u32 v9, s{sStg}, v9")
    e("s_waitcnt vmcnt(0)")
    for j in range(4):
        e(f"ds_write_b64 v9, {vr(vU+2*j,2)} offset:{16*j}")
    e(f"v_add_u32 v9, {DUMMY}, v{vN16}")
    e(f"v_cmp_eq_u32 s[76:77], v9, v{vWK+6}")
    e("v_lshrrev_b32 v10, 2, v0")
    e("v_and_b32 v14, 3, v0")
    e(f"v_mul_u32_u24 v11, {RST}, v10")
    e("v_lshl_add_u32 v11, v14, 7, v11")
    e(f"v_add_u32 v11, {ROWS}, v11")
    e("s_waitcnt lgkmcnt(0)")
    e("v_lshrrev_b32 v8, 2, v8")
    e(f"v_subrev_u32 v8, s{sBase}, v8")
    e("v_and_b32 v8, 127, v8")
    e(f"v_mul_u32_u24 v8, {RST}, v8")
    e(f"v_add_u32 v8, v8, v{vN16}")
    e(f"v_add_u32 v8, {ROWS}, v8")
    e("s_barrier")
    e("s_mov_b64 exec, s[76:77]")
    e(f"s_cmp_lg_u32 s{sBig}, 0")
    e("s_cbranch_scc1 K2_TAILAT")
    e("ds_read_b128 v[64:67], v8")
    e("s_waitcnt lgkmcnt(0)")
    for i in range(4):
        e(f"v_add_f32 v{64+i}, v{64+i}, v{vAcc+12+i}")
    e("ds_write_b128 v8, v[64:67]")
    e("K2_TAILD:")
    e("s_mov_b64 exec, -1")
    c("---- epilogue ----")
    e("v_and_b32 v12, 31, v10")
    e("v_mul_u32_u24 v12, 72, v12")
    e("v_lshrrev_b32 v13, 5, v10")
    e("v_lshl_add_u32 v12, v13, 13, v12")
    e("v_lshl_add_u32 v12, v14, 4, v12")
    e(f"v_add_u32 v12, {STG}, v12")
    e(f"v_add_u32 v15, 4096, v12")
    e("ds_read2_b64 v[112:115], v12 offset0:0 offset1:1")
    e("ds_read2_b64 v[116:119], v15 offset0:0 offset1:1")
    e(f"v_add_u32 v13, s{sBase}, v10")
    e("v_lshlrev_b32 v13, 7, v13")
    e("v_lshl_add_u32 v13, v14, 4, v13")
    e(f"v_cmp_gt_u32 s[76:77], s{sNN}, v10")
    e("s_waitcnt lgkmcnt(0)")
    e("s_barrier")
    for k in range(8):
        e(f"ds_read_b128 {vr(192+4*k,4)}, v11 offset:{16*k}")
    e(f"s_cmp_eq_u32 s{sMore}, 0")
    e(f"s_cselect_b32 s{sT1}, s{sFirst}, 0")
    e(f"s_cmp_eq_u32 s{sT1}, 0")
    e("s_cbranch_scc1 K2_SLOWTOT")
    e("K2_FIN:")
    eps = f32(1e-6 * 2.0**SC)
    e("s_mov_b64 exec, s[76:77]")
    e("s_cbranch_execz K2_DONE")
    for k in range(4):
        e(f"s_waitcnt lgkmcnt({6-2*k})")
        for it in range(2):
            b = 192 + 8 * k + 2 * it; xr = vXo + 4 * it + k; ur = 112 + 4 * it + k
            e(f"v_add_f32 v{b}, {eps}, v{b}")
            e(f"v_add_f32 v{b+4}, {eps}, v{b+4}")
            e(f"v_rcp_f32 v{b}, v{b}")
            e(f"v_rcp_f32 v{b+4}, v{b+4}")
            e(f"v_lshlrev_b32 v8, 16, v{ur}")
            e(f"v_and_b32 v9, 0xffff0000, v{ur}")
            e(f"v_fmac_f32 v8, v{b}, v{b+1}")
            e(f"v_fmac_f32 v9, v{b+4}, v{b+5}")
            e(f"v_lshlrev_b32 v{b}, 16, v{xr}")
            e(f"v_and_b32 v{b+4}, 0xffff0000, v{xr}")
            e(f"v_max_f32 v8, 0, v8")
            e(f"v_max_f32 v9, 0, v9")
            e(f"v_add_f32 v8, v8, v{b}")
            e(f"v_add_f32 v9, v9, v{b+4}")
            e(f"v_cvt_pk_bf16_f32 v{xr}, v8, v9")
    for it in range(2):
        e(f"buffer_store_dwordx4 {vr(vXo+4*it,4)}, v13, {sr(sOut,4)}, 0 offen offset:{64*it}" + FL[OPT['ost']])
    e("K2_DONE:")
    if OPT['stamp']:
        e("s_mov_b64 exec, -1")
        stamp(8)
        diag_out(1, 9, sWave, sWs, sNT)
    e("K2_END:")
    e("s_endpgm")
    c("---- wave 7, phase 1: ready count, scaled wb / wc rows, run table words ----")
    e("P1_W7A:")
    p1_scan()
    e(f"s_cmp_lt_u32 s3, {NCL}")
    e("s_cbranch_scc0 P1_NOF")
    e(f"s_lshl_b32 s{sT0}, s3, 2")
    e("v_mov_b32 v76, 1")
    e("s_mov_b64 exec, 1")
    e("s_waitcnt vmcnt(0)")
    if OPT['cat']:
        e(f"buffer_atomic_add v76, v74, {sr(sWc,4)}, s{sT0} offen sc1")
    else:
        e(f"buffer_store_dword v76, v74, {sr(sWc,4)}, s{sT0} offen sc1")
    e("s_mov_b64 exec, -1")
    e("P1_NOF:")
    srd(68, 64, 512)
    e(f"buffer_load_dwordx4 v[224:227], v68, s[68:71], 0 offen")
    side_copies()
    for i in range(4):
        e(f"v_lshl_or_b32 v{244+i}, v{240+i}, 16, v{244+i}")
        e(f"v_or_b32 v{244+i}, 1, v{244+i}")
    e("s_branch P1_J")
    e("P1_W7B:")
    mid(NR)
    scale8(224, 4)
    c("lanes 32..63 hold flag rows (0, R, 0, 0); lanes 0..31 the wc' rows")
    e(f"v_lshrrev_b32 v73, 3, v{vLane}")
    e("v_cmp_eq_u32 vcc, 5, v73")
    e(f"v_mov_b32 v72, {(RFLAG>>16)*0x10001:#x}")
    e(f"v_xor_b32 v73, 512, v68")
    for r in range(4):
        e(f"v_cndmask_b32 v{224+r}, v{224+r}, v72, vcc")
    e(f"v_add_u32 v73, {WCT}, v73")
    e("ds_write_b128 v73, v[224:227]")
    c("the whole table must have been cleared before anything is published or trusted")
    e(f"v_and_b32 v74, {NCL-1}, v{vLane}")
    e("v_lshlrev_b32 v74, 2, v74")
    e(f"s_mov_b32 s{sCnt}, 0x40000")
    e("P1_POLL:")
    e(f"buffer_load_dword v76, v74, {sr(sWc,4)}, 0 offen" + FL[OPT['pl_']])
    e("s_waitcnt vmcnt(0)")
    e("v_cmp_eq_u32 vcc, 0, v76")
    e(f"s_sub_u32 s{sCnt}, s{sCnt}, 1")
    e("s_cbranch_scc1 K2_END")
    e("s_cmp_eq_u64 vcc, 0")
    e("s_cbranch_scc1 P1_RDY")
    e("s_sleep 8")
    e("s_branch P1_POLL")
    c("---- rare paths ----")
    e("K2_NEXT:")
    e("v_lshlrev_b32 v64, 2, v0")
    e("v_mov_b32 v66, 0")
    e("s_movk_i32 s42, 132")
    e("v_cmp_gt_u32 vcc, s42, v0")
    e("s_mov_b64 exec, vcc")
    e(f"ds_write_b32 v64, v66 offset:{CNT}")
    e("s_mov_b64 exec, -1")
    e("s_waitcnt lgkmcnt(0)")
    e("s_barrier")
    e("s_branch K2_ROUND")
    e("K2_TAILAT:")
    for i in range(4):
        e(f"ds_add_f32 v8, v{vAcc+12+i} offset:{4*i}")
    e("s_branch K2_TAILD")
    e("K2_FAIL:")
    e(f"s_movk_i32 s{sLW}, 144")
    e("s_waitcnt vmcnt(0) lgkmcnt(0)")
    e("s_barrier")
    e("s_branch K2_NEXT")
    e("K2_SLOWTOT:")
    e("v_lshlrev_b32 v14, 7, v0")
    e(f"s_lshl_b32 s{sT1}, s2, 16")
    e(f"s_add_u32 s{sT1}, s{sT1}, {WS_TOT}")
    e("s_waitcnt lgkmcnt(0)")
    e(f"s_cmp_lg_u32 s{sFirst}, 0")
    e("s_cbranch_scc1 K2_ST1")
    for r in range(8):
        e(f"buffer_load_dwordx4 {vr(224+4*r,4)}, v14, {sr(sWs,4)}, s{sT1} offen offset:{16*r} sc1")
    e("s_waitcnt vmcnt(0)")
    for r in range(32):
        e(f"v_add_f32 v{192+r}, v{192+r}, v{224+r}")
    e(f"s_cmp_eq_u32 s{sMore}, 0")
    e("s_cbranch_scc1 K2_FIN")
    e("K2_ST1:")
    for r in range(8):
        e(f"buffer_store_dwordx4 {vr(192+4*r,4)}, v14, {sr(sWs,4)}, s{sT1} offen offset:{16*r} sc1")
    e(f"s_mov_b32 s{sFirst}, 0")
    e(f"s_add_u32 s{sJ0}, s{sJ0}, s{sLW}")
    e("s_waitcnt vmcnt(0)")
    e("s_barrier")
    e("s_branch K2_NEXT")

def hi_pure(nt, prio, first=(), after=0, role='A', drop=0):
    e(f"s_setprio {prio}")
    ms = mfmas(1 - nt); av = list(first) + avals(nt)
    if role == 'A':
        tr = rcps() + exps(nt)
        per = (3, 3, 2, 2, 2, 2, 2, 2, 2); fl = [0, 0, 2, 2, 2, 2, 2, 2, 2]
    else:
        tr = exps(nt) + rcps()
        per = (2, 2, 2, 2, 2, 2, 2, 2, 4); fl = [2, 2, 2, 2, 2, 2, 2, 2, OPT['bt']]
        assert len(first) >= 2
    g = 7
    while drop > 0:
        d = min(fl[g], drop); fl[g] -= d; drop -= d; g -= 1
    t = 0; f = 0
    for g in range(9):
        e(ms[g])
        seq = [tr[t + i] for i in range(per[g])]; t += per[g]
        fs = [av[f + i] for i in range(fl[g])]; f += fl[g]
        while seq or fs:
            if seq: e(seq.pop(0))
            if fs: e(fs.pop(0))
    e(f"s_setprio {after}")
    assert f >= len(first)
    return av[f:]

def lo_part(nt, rest, adds):
    a = list(rest); b = chain(1 - nt) + list(adds)
    while a or b:
        if a: e(a.pop(0))
        for _ in range(2):
            if b: e(b.pop(0))
    for y in frac(nt): e(y)

sWm = 68
sDum = 43
def cmps(): return [f"v_cmp_gt_u32 {sr(sWm+2*j,2)}, s{sDum}, v{vWK+2*j}" for j in range(4)]
def mwrites():
    if not OPT['mw']: return writes()
    o = []
    for j, w in enumerate(writes()):
        o += [f"s_mov_b64 exec, {sr(sWm+2*j,2)}", w]
    return o + ["s_mov_b64 exec, -1"]

TL = [0]
def tl():
    if OPT['tl']:
        e(f"s_memtime {sr(44+2*TL[0],2)}"); TL[0] += 1
def tl_dump(lab):
    if not OPT['tl']: return
    n = TL[0]; TL[0] = 0
    e(f"s_cmp_lg_u32 s{sCnt}, {OPT['tl']}")
    e(f"s_cbranch_scc1 {lab}")
    e("s_waitcnt lgkmcnt(0)")
    for i in range(n):
        e(f"s_mov_b32 s{sSt+2+2*i}, s{44+2*i}")
    e(f"{lab}:")
def hi_last(prio, first, after):
    e(f"s_setprio {prio}")
    for y in rcps() + list(first) + exps(1): e(y)
    e(f"s_setprio {after}")
    return avals(1)

def role_loops():
    aIx = f"v_add_u32 v{vIxA}, 64, v{vIxA}"; aAq = f"v_add_u32 v{vAqA}, v{vAqA}, v{vAqI}"
    aW = [f"v_add_u32 v{vWK+2*j}, v{vWK+2*j}, v{vN16}" for j in range(4)]
    aWk = f"v_add_u32 v{vWkA}, 32, v{vWkA}"; aQa = f"v_add_u32 v{vQaA}, 64, v{vQaA}"
    cm = cmps()
    e(f"s_mov_b32 s{sDum}, {DUMMY}")
    e(f"s_cmp_ge_u32 s{sWave}, 4")
    e("s_cbranch_scc1 KB_LOOP")
    e(f"v_subrev_u32 v{vWkA}, 32, v{vWkA}")
    e("s_branch KA_ENTRY")
    e(".p2align 6")
    e("KA_LOOP:")
    tail = (cm + avals(1))[14:]
    e("s_waitcnt lgkmcnt(0)")
    lo_part(1, tail, aW)
    e("KA_ENTRY:")
    tl()
    r = hi_pure(0, OPT['pa'], mads() + [AQV])
    tl()
    e("s_waitcnt vmcnt(0)")
    for y in rd_x() + rd_aq() + rd_bq(0) + rd_bq(1): e(y)
    e(f"s_sub_u32 s{sCnt}, s{sCnt}, 1")
    e(f"s_cmp_eq_u32 s{sCnt}, 0")
    e("s_waitcnt lgkmcnt(3)")
    for y in dma(): e(y)
    e("s_waitcnt lgkmcnt(0)")
    tl()
    lo_part(0, r, [aIx, aAq, aWk, aQa])
    e("s_cbranch_scc1 KA_LAST")
    tl()
    hi_pure(1, OPT['pa'], cm)
    tl()
    for y in mwrites() + rd_wk() + rd_qa() + rd_idx(): e(y)
    tl()
    tl_dump("KA_TL")
    if OPT['trace']: trace_code()
    e("s_branch KA_LOOP")
    e("KA_LAST:")
    r = hi_last(OPT['pa'], cm, 0)
    for y in mwrites() + rd_wk(): e(y)
    e("s_waitcnt lgkmcnt(0)")
    lo_part(1, r, aW)
    e("s_branch K2_DRAIN")
    e(".p2align 6")
    e("KB_LOOP:")
    tl()
    r = hi_pure(0, OPT['pb'], mads() + cm + [AQV], OPT['pl'])
    tl()
    lo_part(0, r, [])
    tl()
    e("s_waitcnt vmcnt(0)")
    for y in rd_x() + rd_aq() + rd_bq(0) + mwrites() + rd_wk(): e(y)
    e(f"s_sub_u32 s{sCnt}, s{sCnt}, 1")
    e(f"s_cmp_eq_u32 s{sCnt}, 0")
    e("s_cbranch_scc1 KB_LAST")
    e("s_waitcnt lgkmcnt(6)")
    for y in dma(): e(y)
    e("s_waitcnt lgkmcnt(0)")
    tl()
    r = hi_pure(1, OPT['pb'], [], OPT['pl'])
    tl()
    lo_part(1, r, aW + [aIx, aQa, aWk, aAq])
    tl()
    for y in rd_bq(1) + rd_qa() + rd_idx(): e(y)
    tl_dump("KB_TL")
    if OPT['trace']: trace_code()
    e("s_waitcnt lgkmcnt(0)")
    e("s_branch KB_LOOP")
    e("KB_LAST:")
    r = hi_last(OPT['pb'], [], OPT['pl'])
    e("s_waitcnt lgkmcnt(0)")
    lo_part(1, r, aW)

def trace_code():
    e("s_memtime s[44:45]")
    e("s_memrealtime s[46:47]")
    e(f"s_lshl_b32 s48, s2, 3")
    e(f"s_add_u32 s48, s48, s{sWave}")
    e(f"s_lshl_b32 s48, s48, 4")
    e(f"s_add_u32 s48, s48, s{sCnt}")
    e(f"s_lshl_b32 s48, s48, 3")
    e(f"s_add_u32 s48, s48, {WS_DIAG+0x80000}")
    e("s_waitcnt lgkmcnt(0)")
    e("v_mov_b32 v8, s44")
    e("v_mov_b32 v9, s46")
    e("v_mov_b32 v10, 0")
    e("s_mov_b64 exec, 1")
    e(f"buffer_store_dwordx2 v[8:9], v10, {sr(sWs,4)}, s48 offen")
    e("s_mov_b64 exec, -1")

def loop_body():
    global L
    n0 = len(L)
    loop_body0()
    k = OPT['kill']
    body = L[n0:]; del L[n0:]
    for l in body:
        t = l.strip()
        if k & 1 and t.startswith('ds_read'): continue
        if k & 2 and t.startswith('ds_write'): continue
        if k & 4 and t.startswith('buffer_load'): continue
        if k & 8 and t.startswith('s_waitcnt') and not OPT['trace']: continue
        if k & 16 and t.startswith('v_add_u32'): continue
        if k & 32 and t.startswith('v_fmaak'): l = l.replace('v_fmaak_f32','v_mul_f32').rsplit(',',1)[0]
        if k & 64 and t.startswith('v_fma_f32'): l = l.replace('v_fma_f32','v_mul_f32').rsplit(',',1)[0]
        if k & 128 and t.startswith('v_and_b32'): continue
        L.append(l)
def loop_body0():
    e("s_setprio 1")
    ex = [[] for _ in range(9)]
    x = rd_x(); md = mads()
    ex[0] = rd_aq() + rd_bq(0)
    ex[1] = rd_bq(1) + ["s_waitcnt vmcnt(0)"]
    ex[2] = [x[0]]
    ex[4] = [x[1]]
    ex[5] = md[:2]
    ex[6] = [x[2]]
    ex[7] = md[2:]
    ex[8] = [x[3]]
    hi_phase(mfmas(1), rcps() + exps(0), ex)
    e("s_setprio 0")
    for y in mix(chain(1), avals(0)): e(y)
    e(f"v_add_u32 v{vIxA}, 64, v{vIxA}")
    e(f"v_add_u32 v{vAqA}, v{vAqA}, v{vAqI}")
    for y in frac(0): e(y)
    e("s_setprio 1")
    e("s_waitcnt lgkmcnt(0)")
    ex = [[] for _ in range(9)]
    w = writes(); d = dma(); wk = rd_wk()
    ex[0] = [d[0], w[0]]; ex[1] = [d[1], w[1]]; ex[2] = [d[2], w[2]]
    ex[4] = [d[3], w[3]]; ex[5] = wk; ex[7] = rd_qa() + [f"s_sub_u32 s{sCnt}, s{sCnt}, 1"]; ex[8] = rd_idx()
    hi_phase(mfmas(0), rcps() + exps(1), ex)
    e("s_setprio 0")
    av = avals(1)
    for y in av[:8]: e(y)
    e("s_waitcnt lgkmcnt(0)")
    for y in mix(chain(0), av[8:]): e(y)
    for j in range(4):
        e(f"v_add_u32 v{vWK+2*j}, v{vWK+2*j}, v{vN16}")
    e(f"v_add_u32 v{vWkA}, 32, v{vWkA}")
    e(f"v_add_u32 v{vQaV}, v{vQaV}, v{vQaC}")
    e(f"v_add_u32 v{vQaA}, 16, v{vQaA}")
    for y in frac(1): e(y)
    if OPT['trace']: trace_code()
    e(f"s_cmp_lg_u32 s{sCnt}, 0")
    e("s_cbranch_scc1 K2_LOOP")

def kd(name, vg, sg):
    L.extend([f".amdhsa_kernel {name}",
              f"  .amdhsa_next_free_vgpr {vg}",
              f"  .amdhsa_next_free_sgpr {sg}",
              f"  .amdhsa_accum_offset {(vg+3)//4*4}",
              "  .amdhsa_group_segment_fixed_size 0",
              "  .amdhsa_kernarg_size 96",
              "  .amdhsa_user_sgpr_count 2",
              "  .amdhsa_user_sgpr_kernarg_segment_ptr 1",
              "  .amdhsa_system_sgpr_workgroup_id_x 1",
              ".end_amdhsa_kernel"])

hdr = open("cdna_kernels/%s.s.ref" % NAME).read().split("\n")
for l in hdr:
    if l.startswith("; Override") : break
    L.append(l)
if OPT['lst']:
    L.append(f"; @launch kernel={NAME}_kernel grid=(256,1,1) block=(512,1,1) lds={K2_LDS}")
else:
    L.append(f"; @launch grid=(256,1,1) block=(512,1,1) lds={K2_LDS}")
L.append('.amdgcn_target "amdgcn-amd-amdhsa--gfx950"')
L.append(".text")
L.append(f".globl {NAME}_kernel")
L.append(f".type {NAME}_kernel,@function")
sSt = 82
for i, n in enumerate(OPT.get('pts', 'b2,b3,b4,go,hist').split(',')): PTS[n] = i + 1
k2()
L.append('.section .rodata,"a"')
L.append(".p2align 6")
kd(f"{NAME}_kernel", 256, 102)
open(sys.argv[1], "w").write("\n".join(L) + "\n")
print("K2_LDS", K2_LDS, "ATAB", ATAB, "STG", STG, "ROWS", ROWS)
```

```python
import sys
src=open(sys.argv[1]).read()
DIAG=0x2F00000
def red(spec,dst,lab):
    k,f,m=spec.split(':'); k=int(k); f=int(f)
    o=[f"s_mov_b32 s20, {DIAG+k*0x40000+f}"]
    op={'min':'min','max':'max','avg':'add'}[m]
    first=True
    for g in range(4):
        for w in range(8):
            o.append(f"buffer_load_dword v3, v1, s[12:15], s20 offen offset:{g*1024+w*64} sc1")
            o.append("s_waitcnt vmcnt(0)")
            if m=='avg': o.append("v_subrev_u32 v3, s24, v3")
            o.append("v_mov_b32 v2, v3" if first else f"v_{op}_u32 v2, v2, v3"); first=False
    o+=["s_nop 1",f"v_readlane_b32 s{dst}, v2, 0","s_mov_b32 s21, 1",f"{lab}:","s_nop 3","v_readlane_b32 s22, v2, s21","s_nop 3",f"s_{op}_u32 s{dst}, s{dst}, s22","s_add_u32 s21, s21, 1","s_cmp_lt_u32 s21, 64",f"s_cbranch_scc1 {lab}"]
    if m=='avg': o+=[f"s_lshr_b32 s{dst}, s{dst}, 11", f"s_add_u32 s{dst}, s{dst}, s24"]
    return o
body=["s_cmp_lg_u32 s2, 0","s_cbranch_scc1 SP_END","s_load_dwordx2 s[4:5], s[0:1], 88","v_lshlrev_b32 v1, 12, v0","s_waitcnt lgkmcnt(0)",
 "s_mov_b32 s12, s4","s_and_b32 s13, s5, 0xffff","s_mov_b32 s14, 0x3000000","s_mov_b32 s15, 0x20000"]
body+=red(sys.argv[3],24,"SP_A")+red(sys.argv[4],25,"SP_B")
body+=["s_sub_u32 s24, s25, s24","s_min_u32 s24, s24, 10000",f"s_mul_i32 s24, s24, {sys.argv[5] if len(sys.argv)>5 else 10}","s_memrealtime s[26:27]","s_waitcnt lgkmcnt(0)",
 "SP_L:","s_memrealtime s[28:29]","s_waitcnt lgkmcnt(0)","s_sub_u32 s30, s28, s26","s_cmp_lt_u32 s30, s24","s_cbranch_scc1 SP_L","SP_END:","s_endpgm"]
lines=src.split('\n')
i=max(j for j,l in enumerate(lines) if l.startswith('; @launch'))
lines.insert(i+1,'; @launch kernel=spin_kernel grid=(1,1,1) block=(64,1,1) lds=0')
t='\n'.join(lines)
t=t.replace('.section .rodata,"a"','.p2align 8\n.globl spin_kernel\n.type spin_kernel,@function\nspin_kernel:\n'+'\n'.join('    '+b if not b.endswith(':') else b for b in body)+'\n.section .rodata,"a"\n.p2align 6\n.amdhsa_kernel spin_kernel\n  .amdhsa_next_free_vgpr 8\n  .amdhsa_next_free_sgpr 40\n  .amdhsa_accum_offset 8\n  .amdhsa_group_segment_fixed_size 0\n  .amdhsa_kernarg_size 96\n  .amdhsa_user_sgpr_count 2\n  .amdhsa_user_sgpr_kernarg_segment_ptr 1\n  .amdhsa_system_sgpr_workgroup_id_x 1\n.end_amdhsa_kernel',1)
open(sys.argv[2],'w').write(t)
```

```python
import sys, struct

NAME = "standalone__edge_featured_mpnn_gatedgcn__graph"
OPT = dict(stamp=0, trace=0, stf=1, ldf=3, sched=0, remap=1, nodefirst=0, kill=0, pf=1, h1=4, dbg=0, alt=0, alt2=0, slp=10, rt=0, ost=0, role=1, fill=14, pa=2, pb=1, pl=3, wf=1, tl=0, mw=1, bt=-1, fb=0, peel=1, pf7=0, pfa=0, pfb=0, skp=2, dl=1, qu=3, lat=0, tlb=0, tw=0, rs=1, rl=1, pl_=1, ps=1, ncl=64, cat=0, wofs=0, bal=4, sp=0, ra=0, cz=1, co=0, cpf=0, em=1, eb=0, lst=0)
for a in sys.argv[2:]:
    k, v = a.split('=')
    OPT[k] = int(v) if k != 'pts' else v

L = []
def e(s=""): L.append("    " + s if s and not s.endswith(":") else s)
def c(s): L.append("    ; " + s)
def f32(x): return "0x%08x" % struct.unpack("<I", struct.pack("<f", x))[0]
def vr(a, n): return f"v[{a}:{a+n-1}]"
def sr(a, n): return f"s[{a}:{a+n-1}]"
FL = ["", " sc1", " sc0 sc1", " nt", " sc1 nt", " sc0 sc1 nt"]

N = 25000; E = 800000
CH = 3136
CHB = CH * 12
BM = 171799
BK = 6399988
WS_T = 0
WS_IMG = 0x40000
WS_REC = 0x80000 + OPT['wofs'] * 0x100000
WS_AU = 0xA00000
WS_TOT = 0x1100000
WS_DIAG = 0x2F00000
WS_SIZE = 0x10000000
LOG2E = 1.4426950408889634
NODE_WGS = 196
RFLAG = 0x21800000
sSt = 82

def srd(d, b, size, stride=0):
    e(f"s_mov_b32 s{d}, s{b}")
    e(f"s_and_b32 s{d+1}, s{b+1}, 0xffff")
    if stride:
        e(f"s_or_b32 s{d+1}, s{d+1}, {stride<<16:#x}")
    e(f"s_mov_b32 s{d+2}, {size}")
    e(f"s_mov_b32 s{d+3}, 0x20000")

def scan64(v):
    for m in ("row_shr:1 row_mask:0xf", "row_shr:2 row_mask:0xf", "row_shr:4 row_mask:0xf",
              "row_shr:8 row_mask:0xf", "row_bcast:15 row_mask:0xa", "row_bcast:31 row_mask:0xc"):
        e("s_nop 1")
        e(f"v_add_u32_dpp v{v}, v{v}, v{v} {m} bank_mask:0xf")

PTS = {}
def pt(name):
    if name in PTS: stamp(PTS[name])
def stamp(i):
    if OPT['stamp']:
        e(f"{'s_memrealtime' if OPT['rt'] else 's_memtime'} {sr(sSt+2*i,2)}")
        if i == 0:
            e(f"s_memrealtime {sr(sSt+18,2)}")
def diag_out(kidx, nst, swave, ssrd, extra=None, vt=8):
    if OPT['dbg']:
        e("s_memrealtime s[42:43]")
        e("s_load_dwordx2 s[44:45], s[0:1], 80")
        e("s_waitcnt lgkmcnt(0)")
        e(f"s_cmp_lg_u32 s2, {OPT['dbg']}")
        e(f"s_cbranch_scc1 K{kidx+1}_END")
        e(f"s_cmp_lg_u32 s{swave}, 5")
        e(f"s_cbranch_scc1 K{kidx+1}_END")
        e(f"s_add_u32 s44, s44, {512*(1-kidx)}")
        e("s_addc_u32 s45, s45, 0")
        srd(48, 44, 64)
        e(f"v_mov_b32 v{vt}, 0")
        e("s_mov_b64 exec, 1")
        sel = [(2,3,5,6,8),(1,2,4,5,6,7,8)][kidx]
        o = [0, 7][kidx]
        e(f"v_mov_b32 v{vt+1}, s{sSt+18}")
        e(f"buffer_store_dword v{vt+1}, v{vt}, s[48:51], 0 offen offset:{4*o}")
        for n, i in enumerate(sel):
            e(f"s_sub_u32 s40, s{sSt+2*i}, s{sSt}")
            e(f"v_mov_b32 v{vt+1}, s40")
            e(f"buffer_store_dword v{vt+1}, v{vt}, s[48:51], 0 offen offset:{4*(o+1+n)}")
        e(f"v_mov_b32 v{vt+1}, s42")
        e(f"buffer_store_dword v{vt+1}, v{vt}, s[48:51], 0 offen offset:{4*(o+1+len(sel))}")
        return
    e("s_memrealtime s[42:43]")
    e("s_waitcnt lgkmcnt(0)")
    e(f"s_lshl_b32 s39, s2, 4")
    e(f"s_add_u32 s39, s39, s{swave}")
    e(f"s_lshl_b32 s39, s39, 6")
    e(f"s_add_u32 s39, s39, {WS_DIAG + kidx*0x40000}")
    e(f"v_mov_b32 v{vt}, 0")
    e("s_mov_b64 exec, 1")
    for i in range(1, nst):
        e(f"s_sub_u32 s40, s{sSt+2*i}, {'0' if OPT['rt']==2 or OPT['tl'] else 's%d' % sSt}")
        e(f"v_mov_b32 v{vt+1}, s40")
        e(f"buffer_store_dword v{vt+1}, v{vt}, {sr(ssrd,4)}, s39 offen offset:{4*(i-1)}")
    if extra is not None:
        e(f"v_mov_b32 v{vt+1}, s{extra}")
        e(f"buffer_store_dword v{vt+1}, v{vt}, {sr(ssrd,4)}, s39 offen offset:48")
    e("s_getreg_b32 s40, hwreg(HW_REG_HW_ID)")
    e(f"v_mov_b32 v{vt+1}, s40")
    e(f"buffer_store_dword v{vt+1}, v{vt}, {sr(ssrd,4)}, s39 offen offset:52")
    e(f"v_mov_b32 v{vt+1}, s{sSt+18}")
    e(f"buffer_store_dword v{vt+1}, v{vt}, {sr(ssrd,4)}, s39 offen offset:56")
    e(f"v_mov_b32 v{vt+1}, s42")
    e(f"buffer_store_dword v{vt+1}, v{vt}, {sr(ssrd,4)}, s39 offen offset:60")

def mfma(d, a, b, cc):
    cs = "0" if cc is None else vr(cc, 16)
    return f"v_mfma_f32_32x32x16_bf16 {vr(d,16)}, {vr(a,4)}, {vr(b,4)}, {cs}"

CAP = 3584
CNT = 0
MORE = 512
BI = 528
M4 = 1280
E8 = M4 + CAP * 4 + 256
QWK = E8 + CAP * 8 + 256
AST = 136
RST = 528
ATAB = QWK + (CAP // 4) * 8 + 256
STG = (ATAB + 128 * AST + 1023) // 1024 * 1024
ROWS = STG + 32768
WRAW = STG
XOWN = ROWS
WCT = ROWS + 16384
P_HIST = ROWS + 20480
P_BASE = P_HIST + 1024
P_STG = M4
assert P_STG + CHB <= QWK
DUMMY = ROWS + 98 * RST
K2_LDS = DUMMY + 1024
assert XOWN + 16384 <= DUMMY
assert E8 % 16 == 0 and QWK % 16 == 0 and K2_LDS <= 160 * 1024 and ATAB < 65536, (K2_LDS, ATAB)
SC = 24
PADV = 0x7F007F00
RFLAG = 0x21800000

vW = 128; vD = [192, 224]; vX = 112; vBq = [104, 108]; vAq = 100; vAcc = 84
vS = 72; vN = 76; vP = 80; vWK = 64; vIdx = 56; vC = 40; vXo = 32; vV = 40; vRow = 28; vOut = 29; vTl = 30; vXa = 20
vLane = 1; vAqA = 2; vAqI = 3; vIxA = 4; vQaA = 5; vQaV = 6; vQaC = 7
vWkA = 16; vN16 = 17; vC1 = 18; vTail = 19
vTe = 8
sX = 4; sXr = 8; sWs = 12; sOut = 16; sWc = 20
sBase = 24; sNN = 25; sWave = 26; sJ0 = 27; sLW = 28; sFirst = 29; s128 = 30; sQt = 31; sTt = 32
sNT = 33; sQw = 34; sStg = 35; sMore = 36; sBig = 37; sCnt = 38; sT0 = 39; sT1 = 40; sT2 = 41
sMk = 44

def G(b): return vD[b]
def H(b): return vD[b] + 16
def Wg(nt, s): return vW + (nt * 4 + s) * 4
def Wh(nt, s): return vW + 32 + (nt * 4 + s) * 4
def mfmas(nt):
    g = G(nt); h = H(nt)
    first = [mfma(g, vAq, vBq[nt], None if OPT['cz'] else vC)]
    gs = [mfma(g, vX+4*k, Wg(nt,k), g) for k in range(4)]
    hs = [mfma(h, vX+4*k, Wh(nt,k), h if k else None) for k in range(4)]
    if OPT['co']: return first + gs + hs
    return first + [x for p in zip(hs, gs) for x in p]
def acc(nt, j): return vAcc + j * 4 + nt * 2
SS = [72, 73, 74, 75, 8, 9, 10, 11]; NN = [76, 77, 78, 79, 12, 13, 14, 15]; PP = [81, 82, 83, 80, 25, 26, 27, 24]
def chain(nt):
    o = []
    for j in range(4):
        a = acc(nt, j); p = acc(nt, (j + 3) % 4); k = vWK + 2 * j + 1
        o += [f"v_and_b32 v{a}, v{p}, v{k}", f"v_and_b32 v{a+1}, v{p+1}, v{k}"]
        for q in (j, 4 + j):
            o += [f"v_fmac_f32 v{a}, v{SS[q]}, v{PP[q]}", f"v_fmac_f32 v{a+1}, v{NN[q]}, v{PP[q]}"]
    return o
def writes(): return [f"ds_write_b128 v{vWK+2*j}, {vr(vAcc+4*j,4)}" for j in range(4)]
def avals(nt):
    g = G(nt)
    return [f"v_add_f32 v{g+r}, v{g+r}, v{vC1}" for r in range(16)]
def frac(nt):
    g = G(nt); h = H(nt); o = []
    R = range(8); f = lambda q: 4 * (q % 4) + 2 * (q // 4)
    o += [f"v_mul_f32 v{NN[q]}, v{h+f(q)}, v{g+f(q)+1}" for q in R]
    o += [f"v_add_f32 v{SS[q]}, v{g+f(q)}, v{g+f(q)+1}" for q in R]
    o += [f"v_mul_f32 v{PP[q]}, v{g+f(q)}, v{g+f(q)+1}" for q in R]
    o += [f"v_fmac_f32 v{NN[q]}, v{h+f(q)+1}, v{g+f(q)}" for q in R]
    return o
def mix(a, b):
    o = []; a = list(a); b = list(b)
    while a or b:
        if a: o += a[:2]; a = a[2:]
        if b: o += b[:2]; b = b[2:]
    return o
def exps(nt): return [f"v_exp_f32_e64 v{G(nt)+r}, v{G(nt)+r} clamp" for r in range(16)]
def rcps(): return [f"v_rcp_f32 v{p}, v{p}" for p in PP]
def rd_x(): return [f"ds_read_b128 {vr(vX+4*s,4)}, v{vXa+s}" for s in range(4)]
def rd_aq():
    if not OPT['cz']: return [f"ds_read2_b32 {vr(vAq,2)}, v{vAqA} offset0:0 offset1:1"]
    return [f"ds_read_b32 v{vAq}, v{vAqA}", "s_mov_b32 exec_lo, 0", f"ds_read_b32 v{vAq+1}, v{vAqA} offset:4", "s_mov_b32 exec_lo, -1"]
def rd_idx(): return [f"ds_read_b128 {vr(vIdx,4)}, v{vIxA} offset:{M4}"]
def mads(): return [f"v_mad_u32_u16 v{vIdx+i}, v{vIdx+i}, s{s128}, v{vIdx+4+i}" for i in range(4)]
def rd_qa(): return [f"ds_read_u16 v{vQaV}, v{vQaA} offset:{M4+2}"]
AQV = f"v_mad_u32_u24 v{vQaV}, v{vQaV}, {AST//4}, v{vQaC}"
def rd_bq(nt): return [f"ds_read_b64_tr_b16 {vr(vBq[nt]+2,2)}, v{vQaV} offset:{ATAB+64*nt}"]
def rd_wk(): return [f"ds_read_b128 {vr(vWK,4)}, v{vWkA} offset:{QWK}", f"ds_read_b128 {vr(vWK+4,4)}, v{vWkA} offset:{QWK+16}"]
def dma(): return [f"buffer_load_dwordx4 v{vIdx+i}, {sr(sX,4)}, 0 offen offset:{1024*i} lds" for i in range(4)]

def hi_phase(ms, trans, extras, per=(2, 2, 2, 3, 2, 2, 3, 2, 2)):
    t = 0
    for g in range(9):
        e(ms[g])
        for _ in range(per[g]):
            e(trans[t]); t += 1
        for x in extras[g]:
            e(x)
    assert t == 20

def side_consts():
    c("copy source addresses: v82 weights, v78/v79 own x rows")
    e(f"v_lshrrev_b32 v81, 5, v{vLane}")
    e(f"v_and_b32 v77, 7, v{vLane}")
    e("v_lshlrev_b32 v78, 2, v81")
    e("v_xor_b32 v77, v77, v78")
    e(f"v_and_b32 v82, 16, v{vLane}")
    e("v_lshlrev_b32 v82, 2, v82")
    e("v_xor_b32 v82, v68, v82")
    e(f"s_and_b32 s{sT2}, s{sWave}, 1")
    e(f"s_lshl_b32 s{sT1}, s{sT2}, 1")
    e(f"v_xor_b32 v78, s{sT1}, v77")
    e("v_lshlrev_b32 v78, 4, v78")
    e(f"v_lshrrev_b32 v79, 3, v{vLane}")
    e("v_lshl_add_u32 v78, v79, 9, v78")
    e("v_xor_b32 v79, 16, v78")
    e("v_add_u32 v79, 128, v79")
    e(f"s_lshr_b32 s{sT0}, s{sWave}, 1")
    e(f"s_lshl_b32 s{sT0}, s{sT0}, 5")
    e(f"s_add_u32 s{sQw}, s{sT0}, s{sBase}")
    e(f"s_add_u32 s{sQw}, s{sQw}, s{sT1}")
    e(f"s_lshl_b32 s{sQw}, s{sQw}, 7")

def lane_consts():
    c("---- lane constants ----")
    e(f"v_and_b32 v67, 31, v{vLane}")
    e(f"v_bfe_u32 v70, v{vLane}, 2, 1")
    e(f"v_bfe_u32 v71, v{vLane}, 3, 2")
    e("v_and_b32 v72, 1, v71")
    e("v_lshlrev_b32 v72, 4, v72")
    e("v_mov_b32 v73, 0x3f80")
    e("v_cmp_eq_u32 vcc, v70, v81")
    e("v_lshlrev_b32 v72, v72, v73")
    e("v_cmp_gt_u32 s[42:43], 2, v71")
    e("v_cndmask_b32 v72, 0, v72, vcc")
    e(f"v_and_b32 v73, 3, v{vLane}")
    e(f"v_cndmask_b32 v{vAq+2}, 0, v72, s[42:43]")
    e(f"v_cndmask_b32 v{vAq+3}, v72, 0, s[42:43]")
    e(f"v_mov_b32 v{vAq+1}, 0x3f80")
    for i in range(4):
        e(f"v_xor_b32 v74, {i}, v77")
        e(f"v_lshlrev_b32 v74, 4, v74")
        e(f"v_add_u32 v{vIdx+4+i}, {3072-1024*i}, v74")
    e(f"v_bfe_u32 v74, v{vLane}, 2, 3")
    e(f"v_bfe_u32 v75, v{vLane}, 4, 1")
    e("v_lshl_add_u32 v72, v75, 2, v73")
    e("v_lshlrev_b32 v76, 10, v73")
    e("v_lshl_add_u32 v76, v74, 7, v76")
    e(f"v_add_u32 v76, s{sStg}, v76")
    e("v_xor_b32 v72, v72, v81")
    for s_ in range(4):
        e(f"v_xor_b32 v74, {2*s_}, v72")
        e(f"v_lshl_add_u32 v{vXa+s_}, v74, 4, v76")
    e(f"v_lshlrev_b32 v{vN16}, 2, v75")
    e(f"v_xor_b32 v{vN16}, v{vN16}, v67")
    e(f"v_lshlrev_b32 v{vN16}, 4, v{vN16}")
    e(f"v_mov_b32 v{vC1}, {f32(2.0**(-2*SC))}")
    e(f"v_lshlrev_b32 v{vAqI}, 6, v81")
    e(f"v_add_u32 v{vAqI}, 64, v{vAqI}")
    e("v_lshlrev_b32 v73, 3, v73")
    e(f"v_lshl_add_u32 v{vQaC}, v75, 5, v73")
    c("setup addresses: v8 A table write, v9/v10/v11 transposed reads, v12 wc, v24..27 own x")
    e(f"s_and_b32 s{sT2}, s{sWave}, 1")
    e(f"s_lshr_b32 s{sT0}, s{sWave}, 1")
    e(f"s_lshl_b32 s{sT1}, s{sT0}, 5")
    e(f"s_add_u32 s{sT1}, s{sT1}, s{sBase}")
    e(f"v_add_u32 v8, s{sT1}, v67")
    e("v_and_b32 v8, 127, v8")
    e(f"v_mul_u32_u24 v8, {AST}, v8")
    e("v_lshl_add_u32 v8, v81, 3, v8")
    e(f"s_lshl_b32 s{sT2}, s{sT2}, 6")
    e(f"v_add_u32 v8, s{sT2}, v8")
    e(f"v_bfe_u32 v71, v{vLane}, 2, 2")
    e("v_lshl_add_u32 v12, v81, 2, v71")
    e(f"v_lshl_add_u32 v12, v12, 7, v{vQaC}")
    e(f"v_add_u32 v12, {WCT}, v12")
    e("v_lshl_add_u32 v9, v81, 3, v71")
    e(f"v_lshl_add_u32 v9, v9, 7, v{vQaC}")
    e(f"v_bfe_u32 v71, v{vLane}, 3, 1")
    e("v_lshl_add_u32 v9, v71, 6, v9")
    e(f"v_add_u32 v9, {WRAW}, v9")
    e("v_xor_b32 v10, 64, v9")
    e(f"v_xor_b32 v11, s{sT2}, v9")
    e(f"s_lshl_b32 s{sT0}, s{sT0}, 12")
    e(f"s_add_u32 s{sT0}, s{sT0}, {XOWN}")
    e(f"s_sub_u32 s{sT0}, s{sT0}, s{sStg}")
    for s_ in range(4):
        e(f"v_add_u32 v{24+s_}, s{sT0}, v{vXa+s_}")

def prefetch_all(lanes, first_line, vt):
    if not lanes: return
    e(f"s_and_b32 s{sT2}, s2, 31")
    e(f"s_mul_i32 s{sT2}, s{sT2}, 782")
    e(f"s_mul_i32 s42, s{sWave}, {lanes}")
    e(f"s_add_u32 s{sT2}, s{sT2}, s42")
    e(f"s_add_u32 s{sT2}, s{sT2}, {first_line}")
    e(f"s_lshl_b32 s{sT2}, s{sT2}, 7")
    e(f"v_lshlrev_b32 v{vt}, 7, v{vLane}")
    e(f"s_mov_b64 exec, {(1<<lanes)-1 if lanes<64 else -1}" if lanes<=32 or lanes==64 else f"s_bfm_b64 exec, {lanes}, 0")
    e(f"buffer_load_dword v{vt}, v{vt}, {sr(sXr,4)}, s{sT2} offen")
    e("s_mov_b64 exec, -1")

def scale8(first, n):
    for r in range(n):
        e(f"v_lshlrev_b32 v72, 16, v{first+r}")
        e(f"v_and_b32 v73, 0xffff0000, v{first+r}")
        e(f"v_mul_f32 v72, v74, v72")
        e(f"v_mul_f32 v73, v74, v73")
        e(f"v_cvt_pk_bf16_f32 v{first+r}, v72, v73")

def k2():
    st = FL[OPT['stf']]; ld = FL[OPT['ldf']]
    sP = 3
    e(".p2align 8")
    e(f"{NAME}_kernel:")
    e("s_cmp_ge_u32 s2, 256")
    e("s_cbranch_scc1 K2_END")
    stamp(0)
    e("s_load_dwordx8 s[44:51], s[0:1], 0")
    e("s_load_dwordx8 s[52:59], s[0:1], 64")
    e("s_load_dwordx8 s[60:67], s[0:1], 32")
    e(f"s_mov_b32 s{sP}, s2")
    if OPT['cpf']:
        c("pull the code into the L2 (one dword per 128-byte line, threads 0..CODE/128)")
        e("s_getpc_b64 s[68:69]")
        e("v_lshlrev_b32 v250, 7, v0")
        e("v_mov_b32 v251, s69")
        e(f"s_movk_i32 s70, {OPT['cpf']}")
        e("v_cmp_gt_u32 s[72:73], s70, v0")
        e("v_add_co_u32 v250, vcc, s68, v250")
        e("s_nop 1")
        e("v_addc_co_u32 v251, vcc, 0, v251, vcc")
        e("s_mov_b64 exec, s[72:73]")
        e("s_cbranch_execz K2_NOPF")
        e("global_load_dword v252, v[250:251], off")
        e("K2_NOPF:")
        e("s_mov_b64 exec, -1")
    e(f"s_and_b32 s{sT0}, s2, 7")
    e("s_lshr_b32 s2, s2, 3")
    e(f"s_lshl_b32 s{sT0}, s{sT0}, 5")
    e(f"s_or_b32 s2, s2, s{sT0}")
    e(f"v_and_b32 v{vLane}, 63, v0")
    e("v_lshrrev_b32 v2, 6, v0")
    e(f"s_mul_i32 s{sT0}, s{sP}, {CH*4}")
    e(f"v_readfirstlane_b32 s{sWave}, v2")
    e(f"v_lshl_add_u32 v64, v0, 4, s{sT0}")
    e(f"v_add_u32 v65, 7168, v64")
    e("v_lshlrev_b32 v66, 1, v64")
    e("v_lshlrev_b32 v67, 1, v65")
    e(f"s_mov_b32 s{sT1}, {E*4}")
    e("s_movk_i32 s42, 336")
    e(f"v_cmp_gt_u32 s[76:77], s{sT1}, v64")
    e(f"v_cmp_gt_u32 s[78:79], s{sT1}, v65")
    e("v_cmp_gt_u32 vcc, s42, v0")
    e(f"v_lshlrev_b32 v68, 4, v{vLane}")
    e(f"v_add_u32 v69, {P_HIST}, v68")
    e(f"v_lshrrev_b32 v248, 3, v{vLane}")
    e("v_and_b32 v249, 0x70, v68")
    e("v_lshl_or_b32 v248, v248, 15, v249")
    for i in range(4):
        e(f"v_mov_b32 v{72+i}, 0")
    e("s_and_b64 s[78:79], s[78:79], vcc")
    e(f"s_cmp_eq_u32 s{sWave}, 7")
    e("s_cselect_b64 s[80:81], -1, 0")
    e("s_andn2_b64 s[76:77], s[76:77], s[80:81]")
    e("s_mov_b64 exec, s[80:81]")
    e("ds_write_b128 v69, v[72:75]")
    e(f"ds_write_b128 v68, v[72:75] offset:{CNT}")
    e(f"s_mul_i32 s{sBase}, s2, {BK}")
    e(f"s_add_u32 s{sNN}, s{sBase}, {BK+65535}")
    e(f"s_add_u32 s{sBase}, s{sBase}, 65535")
    e(f"s_lshr_b32 s{sBase}, s{sBase}, 16")
    e(f"s_lshr_b32 s{sNN}, s{sNN}, 16")
    e(f"s_sub_u32 s{sNN}, s{sNN}, s{sBase}")
    e(f"s_mov_b32 s{sJ0}, 0")
    e(f"s_movk_i32 s{sLW}, 384")
    e(f"s_mov_b32 s{sFirst}, 1")
    e(f"s_lshl_b32 s{sStg}, s{sWave}, 12")
    e(f"s_add_u32 s{sStg}, s{sStg}, {STG}")
    e("s_waitcnt lgkmcnt(0)")
    if OPT['tw']:
        srd(sWs, 58, WS_SIZE)
        e(f"v_lshlrev_b32 v83, {OPT['tw']}, v{vLane}")
        e(f"buffer_load_dword v83, v83, {sr(sWs,4)}, 0 offen")
    srd(68, 50, E * 4)
    e("s_mov_b64 exec, s[76:77]")
    e("buffer_load_dwordx4 v[192:195], v64, s[68:71], 0 offen" + ld)
    e("s_mov_b64 exec, s[78:79]")
    e("buffer_load_dwordx4 v[196:199], v65, s[68:71], 0 offen" + ld)
    srd(sWs, 58, WS_SIZE)
    c("wave 7 of the first workgroups clears the run table")
    NCL = OPT['ncl']; PER = 262144 // NCL
    e(f"s_cmp_lt_u32 s{sP}, {NCL}")
    e("s_cselect_b64 exec, s[80:81], 0")
    e("s_cbranch_execz P1_NOCL")
    e(f"s_mul_i32 s{sT0}, s{sP}, {PER}")
    for k in range(PER // 1024):
        e(f"buffer_store_dwordx4 v[72:75], v68, {sr(sWs,4)}, s{sT0} offen offset:{(k%4)*1024} sc1")
        if k % 4 == 3 and k + 1 < PER // 1024:
            e(f"s_add_u32 s{sT0}, s{sT0}, 4096")
    e("P1_NOCL:")
    srd(72, 48, E * 4)
    srd(sOut, 46, E * 8)
    e("s_barrier")
    pt('b1')
    e("s_mov_b64 exec, s[76:77]")
    e("buffer_load_dwordx4 v[200:203], v64, s[72:75], 0 offen" + ld)
    e(f"buffer_load_dwordx4 v[208:211], v66, {sr(sOut,4)}, 0 offen" + ld)
    e(f"buffer_load_dwordx4 v[212:215], v66, {sr(sOut,4)}, 0 offen offset:16" + ld)
    e("s_mov_b64 exec, -1")
    srd(sWc, 56, 256)
    srd(sXr, 44, N * 128)
    e("s_sub_u32 s50, s44, 3072")
    e("s_subb_u32 s51, s45, 0")
    srd(sX, 50, N * 128 + 3072)
    e(f"s_movk_i32 s{s128}, 128")
    side_consts()
    e(f"s_cmp_eq_u32 s{sWave}, 7")
    e("s_cbranch_scc1 P1_W7A")
    e("v_mov_b32 v70, 12")
    e(f"s_mov_b32 s{sT0}, {BM}")
    e("s_movk_i32 s42, 0x3fc")
    e(f"v_mov_b32 v71, {P_HIST}")
    if OPT['eb']:
        if OPT['eb'] == 1: e("s_waitcnt vmcnt(4)")
        e("s_mov_b64 exec, s[78:79]")
        e("buffer_load_dwordx4 v[204:207], v65, s[72:75], 0 offen" + ld)
        e(f"buffer_load_dwordx4 v[216:219], v67, {sr(sOut,4)}, 0 offen" + ld)
        e(f"buffer_load_dwordx4 v[220:223], v67, {sr(sOut,4)}, 0 offen offset:16" + ld)
    for it in range(2):
        e(f"s_mov_b64 exec, s[{76+2*it}:{77+2*it}]")
        e(f"s_waitcnt vmcnt({4-it})")
        for i in range(4):
            e(f"v_mul_u32_u24 v{224+4*it+i}, s{sT0}, v{192+4*it+i}")
        for i in range(4):
            e(f"v_lshrrev_b32 v{224+4*it+i}, 22, v{224+4*it+i}")
        for i in range(4):
            e(f"v_and_or_b32 v{224+4*it+i}, v{224+4*it+i}, s42, v71")
            e(f"ds_add_rtn_u32 v{232+4*it+i}, v{224+4*it+i}, v70")
        for i in range(4):
            e(f"v_and_b32 v{192+4*it+i}, 127, v{192+4*it+i}")
    if not OPT['eb']:
        e("s_mov_b64 exec, s[78:79]")
        e("buffer_load_dwordx4 v[204:207], v65, s[72:75], 0 offen" + ld)
        e(f"buffer_load_dwordx4 v[216:219], v67, {sr(sOut,4)}, 0 offen" + ld)
        e(f"buffer_load_dwordx4 v[220:223], v67, {sr(sOut,4)}, 0 offen offset:16" + ld)
    e("s_mov_b64 exec, -1")
    e("s_waitcnt lgkmcnt(0)")
    def p1_scan():
        e("s_barrier")
        pt('b2')
        e("ds_read_b128 v[240:243], v69")
        e("s_waitcnt lgkmcnt(0)")
        e("v_add_u32 v72, v240, v241")
        e("v_add_u32 v73, v72, v242")
        e("v_add_u32 v76, v73, v243")
        e("v_mov_b32 v80, v76")
        scan64(80)
        e("v_sub_u32 v244, v80, v76")
        e("v_add_u32 v245, v244, v240")
        e("v_add_u32 v246, v244, v72")
        e("v_add_u32 v247, v244, v73")
    p1_scan()
    e(f"ds_write_b128 v69, v[244:247] offset:{P_BASE-P_HIST}")
    e("s_waitcnt lgkmcnt(0)")
    for it in range(2):
        e(f"s_mov_b64 exec, s[{76+2*it}:{77+2*it}]")
        for i in range(4):
            e(f"ds_read_b32 v{224+4*it+i}, v{224+4*it+i} offset:{P_BASE-P_HIST}")
    e("s_mov_b64 exec, -1")
    def side_dma():
        e(f"s_lshl_b32 s{sT1}, s{sWave}, 11")
        e(f"s_add_u32 m0, s{sT1}, {XOWN}")
        e(f"s_lshl_b32 s{sT1}, s{sWave}, 10")
        e(f"buffer_load_dwordx4 v78, {sr(sXr,4)}, s{sQw} offen lds")
        e("s_add_u32 m0, m0, 1024")
        e("s_nop 0")
        e(f"buffer_load_dwordx4 v79, {sr(sXr,4)}, s{sQw} offen lds")
        for k, pw in enumerate((52, 60, 66)):
            e(f"s_add_u32 m0, s{sT1}, {WRAW+8192*(k+1)}")
            srd(68, pw, 8192)
            e(f"buffer_load_dwordx4 v82, s[68:71], s{sT1} offen lds")
    def side_wb():
        e(f"s_lshl_b32 s{sT1}, s{sWave}, 10")
        srd(68, 62, 8192)
        e(f"buffer_load_dwordx4 v[112:115], v82, s[68:71], s{sT1} offen")
    def side_copies():
        if OPT['sp'] == 0:
            side_dma(); side_wb()
    side_copies()
    pt('side')
    NX = 6 if OPT['sp'] == 0 else 0
    for it in range(2):
        e(f"s_mov_b64 exec, s[{76+2*it}:{77+2*it}]")
        e(f"s_waitcnt vmcnt({NX+5-3*it}) lgkmcnt({4 if it==0 else 8})")
        for i in range(4):
            k = 4 * it + i
            e(f"v_lshl_or_b32 v{200+k}, v{192+k}, 18, v{200+k}")
            e(f"v_add_u32 v{224+k}, v{224+k}, v{232+k}")
            e(f"ds_write_b32 v{224+k}, v{200+k} offset:{P_STG+8}")
        for i in range(4):
            k = 4 * it + i
            if i % 2 == 0:
                e(f"s_waitcnt vmcnt({NX+4-3*it-i//2})")
            e(f"v_add_u32 v{224+k}, {P_STG}, v{224+k}")
            e(f"ds_write2_b32 v{224+k}, v{208+2*k}, v{209+2*k} offset0:0 offset1:1")
    e("s_mov_b64 exec, -1")
    pt('p1scat')
    e("P1_J:")
    pt('pj')
    if OPT['sp'] == 1:
        side_dma(); side_wb()
    if OPT['sp'] == 2:
        side_wb()
    e("v_lshlrev_b32 v64, 4, v0")
    e(f"s_mul_i32 s{sT0}, s{sP}, {CHB}")
    e(f"s_add_u32 s{sT0}, s{sT0}, {WS_REC}")
    NT_ = 448 if OPT['pf7'] else 512
    NR = -(-2352 // NT_)
    e(f"s_movk_i32 s42, {2352 - (NR-1)*NT_}")
    e("v_cmp_gt_u32 vcc, s42, v0")
    e("s_waitcnt lgkmcnt(0)")
    e("s_barrier")
    pt('b3')
    if OPT['pf7']:
        e("s_andn2_b64 exec, exec, s[80:81]")
    for k in range(NR):
        e(f"ds_read_b128 {vr(192+4*k,4)}, v64 offset:{P_STG + k*NT_*16}")
    for k in range(NR):
        if k == NR-1:
            e("s_mov_b64 exec, vcc")
        e(f"s_waitcnt lgkmcnt({NR-1-k})")
        e(f"buffer_store_dwordx4 {vr(192+4*k,4)}, v64, {sr(sWs,4)}, s{sT0} offen" + FL[OPT['rs']])
        if k < NR-1:
            e(f"s_add_u32 s{sT0}, s{sT0}, {NT_*16}")
    e("s_mov_b64 exec, -1")
    if OPT['sp'] == 2:
        side_dma(); NR += 5
    e(f"s_cmp_eq_u32 s{sWave}, 7")
    e("s_cbranch_scc1 P1_W7B")
    pt('stored')
    def mid(wait):
        srd(sOut, 54, N * 128)
        lane_consts()
        e(f"v_mov_b32 v74, {f32(-LOG2E)}")
        e(f"v_add_u32 v75, {WRAW}, v64")
        if wait is not None: e(f"s_waitcnt vmcnt({wait})")
        scale8(112, 4)
        e("ds_write_b128 v75, v[112:115]")
    mid(NR)
    e("s_waitcnt vmcnt(0)")
    e("P1_RDY:")
    pt('rdy')
    e(f"s_lshl_b32 s{sT1}, s{sP}, 7")
    e("s_waitcnt lgkmcnt(0)")
    e("s_barrier")
    pt('b4')
    c("publish this chunk's run table (every word carries a valid bit)")
    e("s_mov_b64 exec, s[80:81]")
    e(f"buffer_store_dwordx4 v[244:247], v248, {sr(sWs,4)}, s{sT1} offen" + FL[OPT['ps']])
    e("s_mov_b64 exec, -1")
    prefetch_all(OPT['pfa'], 64*OPT['pf7'], 15)
    if OPT['tlb']:
        e(f"v_lshlrev_b32 v15, {OPT['tlb']}, v0")
        e(f"buffer_load_dword v15, v15, {sr(sXr,4)}, 0 offen")
    c("---- A table and U for this wave's (node tile, channel half); weight operands ----")
    for s_ in range(4):
        e(f"ds_read_b128 {vr(40+4*s_,4)}, v{24+s_}")
    for m in range(2):
        for s_ in range(4):
            for hf in range(2):
                e(f"ds_read_b64_tr_b16 {vr(vW+16*m+4*s_+2*hf,2)}, v11 offset:{16384+m*8192+s_*2048+hf*512}")
    e(f"s_mov_b32 s{sT0}, {f32(-LOG2E)}")
    e("s_waitcnt lgkmcnt(8)")
    for s_ in range(4):
        e(mfma(84, vW+4*s_, 40+4*s_, 84 if s_ else None))
    e("s_waitcnt lgkmcnt(0)")
    for s_ in range(4):
        e(mfma(112, vW+16+4*s_, 40+4*s_, 112 if s_ else None))
    for m in range(2):
        for nt in range(2):
            for s_ in range(4):
                for hf in range(2):
                    e(f"ds_read_b64_tr_b16 {vr(vW+32*m+16*nt+4*s_+2*hf,2)}, v{9+nt} offset:{m*8192+s_*2048+hf*512}")
    for nt in range(2):
        e(f"ds_read_b64_tr_b16 {vr(vBq[nt],2)}, v12 offset:{64*nt}")
    for r in range(16):
        e(f"v_mul_f32 v{84+r}, s{sT0}, v{84+r}")
    for r in range(8):
        e(f"v_cvt_pk_bf16_f32 v{72+r}, v{84+2*r}, v{85+2*r}")
    for j in range(4):
        e(f"ds_write_b64 v8, {vr(72+2*j,2)} offset:{ATAB+j*16}")
    c("U (f32) to its final owners through LDS: 16-byte chunk q of node n sits at n*256 + (q ^ (n&7))*16")
    e(f"s_lshr_b32 s{sT0}, s{sWave}, 1")
    e(f"s_lshl_b32 s{sT0}, s{sT0}, 5")
    e(f"s_and_b32 s{sT1}, s{sWave}, 1")
    e(f"s_lshl_b32 s{sT1}, s{sT1}, 3")
    e(f"v_add_u32 v13, s{sT0}, v67")
    e("s_movk_i32 s42, 112")
    e("v_cmp_gt_u32 vcc, s42, v13")
    e(f"v_and_b32 v14, 7, v{vLane}")
    e("v_xor_b32 v14, v14, v81")
    e(f"v_or_b32 v14, s{sT1}, v14")
    e("v_lshlrev_b32 v13, 8, v13")
    e("s_mov_b64 exec, vcc")
    for j in range(4):
        e(f"v_xor_b32 v15, {2*j}, v14")
        e("v_lshl_add_u32 v15, v15, 4, v13")
        e(f"ds_write_b128 v15, {vr(112+4*j,4)} offset:{E8}")
    e("s_mov_b64 exec, -1")
    c("epilogue thread = (node tid>>2, chunks c and c+4): output offset, row address, residual operand")
    e("v_lshrrev_b32 v13, 2, v0")
    e("v_and_b32 v14, 3, v0")
    e(f"v_add_u32 v{vOut}, s{sBase}, v13")
    e(f"v_lshlrev_b32 v{vOut}, 7, v{vOut}")
    e(f"v_lshl_add_u32 v{vOut}, v14, 4, v{vOut}")
    e(f"buffer_load_dwordx4 {vr(vXo,4)}, v{vOut}, {sr(sXr,4)}, 0 offen")
    e(f"buffer_load_dwordx4 {vr(vXo+4,4)}, v{vOut}, {sr(sXr,4)}, 0 offen offset:64")
    e(f"v_mul_u32_u24 v{vRow}, {RST}, v13")
    e(f"v_lshl_add_u32 v{vRow}, v14, 7, v{vRow}")
    e(f"v_add_u32 v{vRow}, {ROWS}, v{vRow}")
    e("v_lshrrev_b32 v15, 1, v14")
    e(f"v_lshl_add_u32 v{vRow}, v15, 6, v{vRow}")
    e("v_and_b32 v15, 7, v13")
    e("v_lshlrev_b32 v14, 1, v14")
    e("v_xor_b32 v14, v14, v15")
    e("v_lshlrev_b32 v14, 4, v14")
    e(f"v_lshl_add_u32 v{vTl}, v13, 8, v14")
    e(f"v_xor_b32 v31, 16, v{vTl}")
    if not OPT['cz']:
        for r in range(16):
            e(f"v_mov_b32 v{vC+r}, {f32(-2.0*SC)}")
    e("K2_ROUND:")
    c("window offsets (0xffff = lane outside the window)")
    e(f"v_and_b32 v66, 15, v{vLane}")
    e("v_mul_u32_u24 v66, 12, v66")
    e("v_add_u32 v67, 192, v66")
    e(f"v_cmp_gt_u32 vcc, s{sLW}, v66")
    e(f"v_cmp_gt_u32 s[76:77], s{sLW}, v67")
    e(f"v_add_u32 v66, s{sJ0}, v66")
    e(f"v_add_u32 v67, s{sJ0}, v67")
    e("v_lshrrev_b32 v68, 4, v0")
    e(f"s_mov_b32 s{sT0}, {8*CHB}")
    e(f"v_mul_u32_u24 v68, s{sT0}, v68")
    e("v_add3_u32 v68, v68, v66, -1")
    e("v_mov_b32 v69, 0xffff")
    e("v_cndmask_b32 v66, v69, v66, vcc")
    e("v_cndmask_b32 v67, v69, v67, s[76:77]")
    for r in range(16):
        e(f"v_mov_b32 v{vAcc+r}, 0")
    e("v_and_b32 v64, 0x1f0, v0")
    e("v_lshlrev_b32 v64, 6, v64")
    e(f"s_lshr_b32 s{sT0}, s2, 5")
    e(f"s_lshl_b32 s{sT0}, s{sT0}, 15")
    e(f"s_and_b32 s{sT1}, s2, 31")
    e(f"s_lshl_b32 s{sT1}, s{sT1}, 2")
    e(f"s_add_u32 s{sT0}, s{sT0}, s{sT1}")
    e(f"s_mov_b32 s{sCnt}, 0x40000")
    pt('poll')
    c("wait for the run tables of this wave's 32 producers")
    e("K2_POLL:")
    for i in range(8):
        e(f"buffer_load_dword v{vTe+i}, v64, {sr(sWs,4)}, s{sT0} offen offset:{i*128}" + FL[OPT['pl_']])
    e("s_waitcnt vmcnt(0)")
    e(f"v_bitop3_b32 v69, v{vTe}, v{vTe+1}, v{vTe+2} bitop3:0x80")
    e(f"v_bitop3_b32 v70, v{vTe+3}, v{vTe+4}, v{vTe+5} bitop3:0x80")
    e(f"v_bitop3_b32 v69, v69, v{vTe+6}, v{vTe+7} bitop3:0x80")
    e(f"v_bitop3_b32 v69, v69, v70, 1 bitop3:0x80")
    e("v_cmp_eq_u32 vcc, 0, v69")
    e(f"s_sub_u32 s{sCnt}, s{sCnt}, 1")
    e("s_cbranch_scc1 K2_END")
    e("s_cmp_eq_u64 vcc, 0")
    e("s_cbranch_scc1 K2_GO")
    e(f"s_sleep {OPT['slp']}")
    e("s_branch K2_POLL")
    e("K2_GO:")
    pt('go')
    e(f"s_mov_b32 s{sCnt}, {WS_REC}")
    sd = "dst_sel:DWORD dst_unused:UNUSED_PAD "
    for i in range(8):
        m0 = sMk + 4 * i; m1 = m0 + 2
        e(f"v_cmp_lt_u32_sdwa {sr(m0,2)}, v66, v{vTe+i} src0_sel:DWORD src1_sel:WORD_1")
        e(f"v_add_u32_sdwa v69, v68, v{vTe+i} {sd}src0_sel:DWORD src1_sel:WORD_0")
        e(f"v_cmp_lt_u32_sdwa {sr(m1,2)}, v67, v{vTe+i} src0_sel:DWORD src1_sel:WORD_1")
        e(f"s_mov_b64 exec, {sr(m0,2)}")
        e(f"buffer_load_dwordx3 {vr(192+8*i,3)}, v69, {sr(sWs,4)}, s{sCnt} offen" + FL[OPT['rl']])
        e(f"s_mov_b64 exec, {sr(m1,2)}")
        e(f"buffer_load_dwordx3 {vr(196+8*i,3)}, v69, {sr(sWs,4)}, s{sCnt} offen offset:192" + FL[OPT['rl']])
        e("s_mov_b64 exec, -1")
        if i < 7:
            e(f"s_add_u32 s{sCnt}, s{sCnt}, {CHB}")
    npf = 0
    e(f"v_max3_u32 v{vTe}, v{vTe}, v{vTe+1}, v{vTe+2}")
    e(f"v_max3_u32 v{vTe+3}, v{vTe+3}, v{vTe+4}, v{vTe+5}")
    e(f"v_max3_u32 v{vTe}, v{vTe}, v{vTe+6}, v{vTe+7}")
    e(f"v_max_u32 v{vTe}, v{vTe}, v{vTe+3}")
    e(f"s_add_u32 s{sT1}, s{sJ0}, s{sLW}")
    e(f"s_lshl_b32 s{sT1}, s{sT1}, 16")
    e(f"s_or_b32 s{sT1}, s{sT1}, 0xffff")
    e(f"v_cmp_lt_u32 vcc, s{sT1}, v{vTe}")
    e("v_mov_b32 v66, 4")
    e("v_mov_b32 v67, 0")
    e("s_mov_b64 exec, vcc")
    e(f"ds_write_b32 v67, v66 offset:{MORE}")
    e("s_mov_b64 exec, -1")
    c("scan / meta lane constants while the records are in flight")
    e(f"v_lshl_add_u32 v8, v{vLane}, 1, s{sBase}")
    e("v_add_u32 v9, 1, v8")
    e("v_and_b32 v8, 127, v8")
    e("v_and_b32 v9, 127, v9")
    e("v_lshlrev_b32 v8, 2, v8")
    e("v_lshlrev_b32 v9, 2, v9")
    e(f"s_add_u32 s{sT0}, s{sNN}, 7")
    e(f"v_lshlrev_b32 v10, 1, v{vLane}")
    e("v_add_u32 v11, 1, v10")
    e(f"v_cmp_gt_u32 vcc, s{sT0}, v10")
    e(f"v_cmp_gt_u32 s[76:77], s{sT0}, v11")
    e("v_lshrrev_b32 v12, 2, v0")
    e("v_cndmask_b32 v10, 0, 16, vcc")
    e("v_cndmask_b32 v11, 0, 16, s[76:77]")
    e(f"v_cmp_gt_u32 vcc, s{sT0}, v12")
    e(f"v_cmp_gt_u32 s[76:77], s{sNN}, v12")
    e(f"v_add_u32 v13, s{sBase}, v12")
    e("v_cndmask_b32 v14, 0, 16, vcc")
    e("v_and_b32 v13, 127, v13")
    e("v_lshlrev_b32 v13, 2, v13")
    e(f"v_mul_u32_u24 v15, {RST}, v12")
    e(f"v_add_u32 v15, {ROWS}, v15")
    e(f"v_mov_b32 v64, {DUMMY+512}")
    e("v_cndmask_b32 v15, v64, v15, s[76:77]")
    for j in range(4):
        e(f"v_mov_b32 v{vN+j}, 0")
        e(f"v_mov_b32 v{vP+j}, 1.0")
        e(f"v_mov_b32 v{24+j}, 1.0")
    for q in range(16):
        r = 192 + 4 * q
        e(f"s_mov_b64 exec, {sr(sMk+2*q,2)}")
        if q % 2:
            e(f"s_cbranch_execz K2_H{q}")
        e(f"s_waitcnt vmcnt({15+npf-q})")
        e(f"v_lshrrev_b32 v{112+q}, 16, v{r+2}")
        e(f"ds_add_rtn_u32 v{r+3}, v{112+q}, v66 offset:{CNT}")
        if q % 2:
            e(f"K2_H{q}:")
    e("s_mov_b64 exec, -1")
    prefetch_all(OPT['pfb'], 64*OPT['pf7'] + 8*OPT['pfa'], 12)
    e("s_waitcnt lgkmcnt(0)")
    e("s_barrier")
    pt('hist')
    c("---- scan (every wave, redundantly) ----")
    e(f"ds_read_b32 v64, v8 offset:{CNT}")
    e(f"ds_read_b32 v65, v9 offset:{CNT}")
    e(f"ds_read_b32 v68, v67 offset:{MORE}")
    e("s_waitcnt lgkmcnt(1)")
    e(f"s_cmp_eq_u32 s{sFirst}, 0")
    e("s_cbranch_scc1 K2_NOU")
    for it in range(2):
        e(f"ds_read_b128 {vr(vV+8*it,4)}, v{vTl} offset:{E8+128*it}")
        e(f"ds_read_b128 {vr(vV+8*it+4,4)}, v31 offset:{E8+128*it}")
    e("K2_NOU:")
    e("v_add_u32 v69, 15, v64")
    e("v_add_u32 v70, 15, v65")
    e("v_and_b32 v69, -16, v69")
    e("v_and_b32 v70, -16, v70")
    e("v_max_u32 v69, v69, v10")
    e("v_max_u32 v70, v70, v11")
    e("v_add_u32 v71, v69, v70")
    e("v_mov_b32 v72, v71")
    scan64(72)
    e("v_sub_u32 v73, v72, v71")
    e("v_add_u32 v74, v73, v69")
    e(f"v_readlane_b32 s{sQt}, v72, 63")
    e("v_lshl_or_b32 v64, v64, 16, v73")
    e("v_lshl_or_b32 v65, v65, 16, v74")
    e(f"ds_write_b32 v8, v64 offset:{BI}")
    e(f"ds_write_b32 v9, v65 offset:{BI}")
    e("v_max_u32 v69, v69, v70")
    e(f"s_lshr_b32 s{sTt}, s{sQt}, 7")
    e("s_waitcnt lgkmcnt(0)")
    pt('s1')
    e(f"v_readfirstlane_b32 s{sMore}, v68")
    e(f"ds_read_b32 v64, v13 offset:{BI}")
    for q in range(16):
        e(f"s_mov_b64 exec, {sr(sMk+2*q,2)}")
        e(f"ds_read_u16 v{112+q}, v{112+q} offset:{BI}")
    e("s_mov_b64 exec, -1")
    e(f"s_cmp_gt_u32 s{sQt}, {CAP*4}")
    e(f"s_cselect_b32 s{sT0}, 1, s{sMore}")
    e(f"s_cmp_eq_u32 s{sLW}, 384")
    e(f"s_cselect_b32 s{sT0}, s{sT0}, 0")
    e(f"s_cmp_lg_u32 s{sT0}, 0")
    e("s_cbranch_scc1 K2_FAIL")
    c("pads")
    e("v_and_b32 v65, 3, v0")
    e(f"v_mov_b32 v70, {PADV:#x}")
    e("s_waitcnt lgkmcnt(15)")
    e("v_lshrrev_b32 v68, 16, v64")
    e("v_and_b32 v64, 0xffff, v64")
    e("v_add_u32 v74, 15, v68")
    e("v_and_b32 v74, -16, v74")
    e("v_max_u32 v74, v74, v14")
    e("v_lshl_add_u32 v68, v65, 2, v68")
    e("v_cmp_lt_u32 s[76:77], v68, v74")
    e("v_add_u32 v68, v68, v64")
    e("s_mov_b64 exec, s[76:77]")
    e(f"ds_write_b32 v68, v70 offset:{M4}")
    e("s_waitcnt lgkmcnt(1)")
    pt('s2')
    c("---- scatter: index words first ----")
    for q in range(16):
        r = 192 + 4 * q
        e(f"s_mov_b64 exec, {sr(sMk+2*q,2)}")
        if q % 2 and OPT['skp'] & 1: e(f"s_cbranch_execz K2_S{q}")
        e(f"v_add_u32 v{112+q}, v{112+q}, v{r+3}")
        e(f"ds_write_b32 v{112+q}, v{r+2} offset:{M4}")
        if q % 2 and OPT['skp'] & 1: e(f"K2_S{q}:")
    e("s_mov_b64 exec, -1")
    pt('s3')
    e(f"s_lshr_b32 s{sT0}, s{sTt}, 3")
    e(f"s_and_b32 s{sT1}, s{sTt}, 7")
    e(f"s_lshl_b32 s{sT2}, s{sT0}, 6")
    e(f"v_cmp_lt_u32 vcc, s{sT2}, v69")
    e(f"s_mul_i32 s{sQw}, s{sT0}, s{sWave}")
    e(f"s_min_u32 s{sT2}, s{sT1}, s{sWave}")
    e(f"s_add_u32 s{sQw}, s{sQw}, s{sT2}")
    e(f"s_lshl_b32 s{sQw}, s{sQw}, 3")
    e(f"s_cmp_lt_u32 s{sWave}, s{sT1}")
    e(f"s_addc_u32 s{sNT}, s{sT0}, 0")
    e(f"s_or_b32 s{sBig}, vcc_lo, vcc_hi")
    e(f"s_lshl_b32 s{sT0}, s{sNT}, 2")
    e(f"v_bfe_u32 v66, v{vLane}, 3, 1")
    e(f"v_lshrrev_b32 v69, 4, v{vLane}")
    e(f"v_mad_u32_u24 v66, v66, s{sT0}, v69")
    e(f"v_add_lshl_u32 v{vIxA}, v66, s{sQw}, 4")
    e(f"v_lshrrev_b32 v67, 5, v{vLane}")
    e(f"v_mul_u32_u24 v66, s{sT0}, v67")
    e(f"v_add_u32 v66, s{sQw}, v66")
    e(f"v_bfe_u32 v69, v{vLane}, 2, 2")
    e(f"v_add_lshl_u32 v{vQaA}, v66, v69, 4")
    e(f"s_mov_b32 m0, s{sStg}")
    e(f"s_mov_b32 s{sDum}, {DUMMY}")
    e("s_waitcnt lgkmcnt(0)")
    e("s_barrier")
    pt('scat')
    for x in rd_idx() + rd_qa(): e(x)
    e(f"v_add_u32 v{vIxA}, 64, v{vIxA}")
    e(f"v_add_u32 v{vQaA}, 64, v{vQaA}")
    e(f"v_lshlrev_b32 v{vWkA}, 3, v66")
    e(f"v_add_lshl_u32 v{vTail}, v66, s{sT0}, 4")
    e("v_lshlrev_b32 v71, 1, v68")
    e("v_mov_b32 v72, 0")
    e("v_mov_b32 v73, 0")
    e("s_waitcnt lgkmcnt(1)")
    for x in mads() + dma(): e(x)
    e("s_waitcnt lgkmcnt(0)")
    e(AQV)
    for x in rd_idx() + rd_bq(0) + rd_bq(1) + rd_qa(): e(x)
    e(f"v_add_u32 v{vIxA}, 64, v{vIxA}")
    if OPT['lat']:
        pt('f0')
        e("s_waitcnt vmcnt(0)")
    pt('f1')
    c("---- scatter: edge attributes ----")
    e("s_mov_b64 exec, s[76:77]")
    e(f"ds_write_b64 v71, v[72:73] offset:{E8}")
    for q in range(16):
        r = 192 + 4 * q
        e(f"s_mov_b64 exec, {sr(sMk+2*q,2)}")
        if q % 2 and OPT['skp'] & 2: e(f"s_cbranch_execz K2_E{q}")
        e(f"v_lshlrev_b32 v{r+3}, 1, v{112+q}")
        e(f"ds_write_b64 v{r+3}, {vr(r,2)} offset:{E8}")
        if q % 2 and OPT['skp'] & 2: e(f"K2_E{q}:")
    e("s_mov_b64 exec, -1")
    pt('f2')
    c("quad meta: thread = (node, k0)")
    e("v_lshrrev_b32 v69, 4, v74")
    e("v_lshrrev_b32 v64, 4, v64")
    e("v_cmp_eq_u32 vcc, 0, v65")
    e("v_add_lshl_u32 v68, v64, v65, 3")
    e("v_add_u32 v70, -1, v69")
    e("v_cndmask_b32 v73, -1, 0, vcc")
    e(f"v_mov_b32 v71, {DUMMY}")
    for u in range(OPT['qu']):
        e("v_cmp_lt_u32 vcc, v65, v69")
        e("v_cmp_eq_u32 s[76:77], v65, v70")
        e("s_and_b64 exec, exec, vcc")
        e("v_add_u32 v65, 4, v65")
        e("v_cndmask_b32 v72, v71, v15, s[76:77]")
        e(f"ds_write_b64 v68, v[72:73] offset:{QWK+32*u}")
        if u == 0: e("v_mov_b32 v73, -1")
    if OPT['qu']: e(f"v_add_u32 v68, {32*OPT['qu']}, v68")
    e("K2_QM:")
    e("v_cmp_lt_u32 vcc, v65, v69")
    e("v_cmp_eq_u32 s[76:77], v65, v70")
    e("s_and_b64 exec, exec, vcc")
    e("s_cbranch_execz K2_QMD")
    e("v_add_u32 v65, 4, v65")
    e("v_cndmask_b32 v72, v71, v15, s[76:77]")
    e(f"ds_write_b64 v68, v[72:73] offset:{QWK}")
    e("v_add_u32 v68, 32, v68")
    e("v_mov_b32 v73, -1")
    e("s_branch K2_QM")
    e("K2_QMD:")
    e("s_mov_b64 exec, -1")
    pt('f3')
    e(f"v_bfe_u32 v64, v{vLane}, 2, 1")
    e(f"v_bfe_u32 v65, v{vLane}, 3, 2")
    e(f"v_mad_u32_u24 v64, v64, s{sT0}, v65")
    e(f"v_add_lshl_u32 v64, v64, s{sQw}, 2")
    e(f"v_and_or_b32 v64, v{vLane}, 3, v64")
    e("v_add_u32 v65, 2, v67")
    e("v_lshlrev_b32 v64, v65, v64")
    e(f"v_mul_u32_u24 v65, {E8-M4}, v67")
    e(f"v_add_u32 v65, {M4}, v65")
    e(f"v_add_u32 v{vAqA}, v64, v65")
    e(f"ds_read_u16 v{vTl}, v{vTail} offset:{M4-14}")
    e(f"s_cmp_eq_u32 s{sFirst}, 0")
    e("s_cbranch_scc1 K2_NOV")
    for r in range(8):
        e(f"v_lshlrev_b32 v64, 16, v{vXo+r}")
        e(f"v_and_b32 v65, 0xffff0000, v{vXo+r}")
        e(f"v_add_f32 v{vV+2*r}, v{vV+2*r}, v64")
        e(f"v_add_f32 v{vV+2*r+1}, v{vV+2*r+1}, v65")
    e("K2_NOV:")
    e("s_waitcnt lgkmcnt(0)")
    e(f"v_lshrrev_b32 v{vTl}, 2, v{vTl}")
    e(f"v_subrev_u32 v{vTl}, s{sBase}, v{vTl}")
    e(f"v_and_b32 v{vTl}, 127, v{vTl}")
    e(f"v_mul_u32_u24 v{vTl}, {RST}, v{vTl}")
    e(f"v_add_u32 v{vTl}, v{vTl}, v{vN16}")
    e(f"v_add_u32 v{vTl}, {ROWS}, v{vTl}")
    e("s_waitcnt vmcnt(0)")
    pt('f4')
    for x in rd_x(): e(x)
    for j in range(4):
        e(f"v_mov_b32 v{vS+j}, 0")
        e(f"v_mov_b32 v{8+j}, 0")
        e(f"v_mov_b32 v{12+j}, 0")
        e(f"v_add_u32 v{vWK+2*j}, {DUMMY+512}, v{vN16}")
        e(f"v_mov_b32 v{vWK+2*j+1}, 0")
    e("s_waitcnt lgkmcnt(4)")
    for x in mads(): e(x)
    e("s_waitcnt lgkmcnt(0)")
    if not OPT['dl']:
        for x in dma(): e(x)
    e("s_barrier")
    pt('meta')
    for x in rd_aq(): e(x)
    if not OPT['dl']:
        for x in rd_idx(): e(x)
    e(f"s_cmp_eq_u32 s{sNT}, 0")
    e("s_cbranch_scc1 K2_DRAIN")
    g0 = G(0); h0 = H(0)
    for s_ in range(4):
        e(mfma(g0, vX+4*s_, Wg(0,s_), g0 if s_ else (None if OPT['cz'] else vC)))
        if OPT['dl'] and s_ < 2: e(dma()[2*s_])
        if OPT['dl'] and s_ == 2: e(rd_idx()[0])
        e(mfma(h0, vX+4*s_, Wh(0,s_), h0 if s_ else None))
        if OPT['dl'] and s_ < 2: e(dma()[2*s_+1])
    e("s_waitcnt lgkmcnt(0)")
    e(mfma(g0, vAq, vBq[0], g0))
    e(f"v_add_u32 v{vAqA}, v{vAqA}, v{vAqI}")
    e(f"s_mov_b32 s{sCnt}, s{sNT}")
    e("s_nop 5")
    if not OPT['tl']: stamp(6)
    if OPT['role']:
        role_loops()
    else:
        e(".p2align 6")
        e("K2_LOOP:")
        loop_body()
    e("K2_DRAIN:")
    e("s_setprio 0")
    for x in rcps(): e(x)
    e(f"v_add_u32 v31, {DUMMY}, v{vN16}")
    for x in cmps(): e(x)
    for x in chain(1): e(x)
    for x in mwrites(): e(x)
    stamp(7)
    c("---- tails ----")
    e(f"v_cmp_eq_u32 s[76:77], v31, v{vWK+6}")
    e("v_lshrrev_b32 v10, 2, v0")
    e(f"v_cmp_gt_u32 s[78:79], s{sNN}, v10")
    eps = f32(1e-6 * 2.0**(2*SC))
    e(f"v_mov_b32 v9, {eps}")
    e("v_and_b32 v8, 2, v0")
    e("v_lshlrev_b32 v8, 6, v8")
    e(f"v_sub_u32 v8, v{vRow}, v8")
    e("s_waitcnt lgkmcnt(0)")
    e("s_barrier")
    pt('e0')
    e("s_mov_b64 exec, s[76:77]")
    e(f"s_cmp_lg_u32 s{sBig}, 0")
    e("s_cbranch_scc1 K2_TAILAT")
    e(f"ds_read_b128 v[64:67], v{vTl}")
    e("s_waitcnt lgkmcnt(0)")
    for i in range(4):
        e(f"v_add_f32 v{64+i}, v{64+i}, v{vAcc+12+i}")
    e(f"ds_write_b128 v{vTl}, v[64:67]")
    e("K2_TAILD:")
    e("s_mov_b64 exec, -1")
    c("---- epilogue ----")
    e(f"s_cmp_eq_u32 s{sMore}, 0")
    e(f"s_cselect_b32 s{sT1}, s{sFirst}, 0")
    e(f"s_cmp_eq_u32 s{sT1}, 0")
    e("s_waitcnt lgkmcnt(0)")
    pt('e1')
    e("s_barrier")
    pt('e2')
    if OPT['em']: e("s_mov_b64 exec, s[78:79]")
    for k in range(8):
        e(f"ds_read_b128 {vr(192+4*k,4)}, v{vRow if k<4 else 8} offset:{16*k}")
    e("s_cbranch_scc1 K2_SLOWTOT")
    e("K2_FIN:")
    e("s_mov_b64 exec, s[78:79]")
    e("s_cbranch_execz K2_DONE")
    for k in range(8):
        e(f"s_waitcnt lgkmcnt({7-k})")
        e(f"v_add_f32 v{192+4*k}, v{192+4*k}, v9")
        e(f"v_add_f32 v{194+4*k}, v{194+4*k}, v9")
    pt('e3')
    for it in range(2):
        for k in range(8):
            e(f"v_rcp_f32 v{192+4*k+2*it}, v{192+4*k+2*it}")
        e("s_nop 0")
        for k in range(8):
            e(f"v_fmac_f32 v{vV+8*it+k}, v{192+4*k+2*it}, v{193+4*k+2*it}")
        for k in range(4):
            e(f"v_cvt_pk_bf16_f32 v{112+4*it+k}, v{vV+8*it+2*k}, v{vV+8*it+2*k+1}")
        c("x + relu(z) = max(x + z, x); bf16 patterns order like f16 patterns")
        for k in range(4):
            e(f"v_pk_max_f16 v{112+4*it+k}, v{112+4*it+k}, v{vXo+4*it+k}")
        e(f"buffer_store_dwordx4 {vr(112+4*it,4)}, v{vOut}, {sr(sOut,4)}, 0 offen offset:{64*it}" + FL[OPT['ost']])
    e("K2_DONE:")
    if OPT['stamp']:
        e("s_mov_b64 exec, -1")
        stamp(8)
        diag_out(1, 9, sWave, sWs, sNT)
    e("K2_END:")
    e("s_endpgm")
    c("---- wave 7, phase 1: ready count, scaled wb / wc rows, run table words ----")
    e("P1_W7A:")
    p1_scan()
    e(f"s_cmp_lt_u32 s3, {NCL}")
    e("s_cbranch_scc0 P1_NOF")
    e(f"s_lshl_b32 s{sT0}, s3, {2 if NCL<=64 else (1 if NCL==128 else 0)}")
    e("v_mov_b32 v76, 1")
    e("s_mov_b64 exec, 1")
    e("s_waitcnt vmcnt(0)")
    if OPT['cat']:
        e(f"buffer_atomic_add v76, v74, {sr(sWc,4)}, s{sT0} offen sc1")
    else:
        e(f"buffer_store_{'dword' if NCL<=64 else ('short' if NCL==128 else 'byte')} v76, v74, {sr(sWc,4)}, s{sT0} offen sc1")
    e("s_mov_b64 exec, -1")
    e("P1_NOF:")
    srd(68, 64, 512)
    e(f"buffer_load_dwordx4 v[224:227], v68, s[68:71], 0 offen")
    side_copies()
    for i in range(4):
        e(f"v_lshl_or_b32 v{244+i}, v{240+i}, 16, v{244+i}")
        e(f"v_or_b32 v{244+i}, 1, v{244+i}")
    e("s_branch P1_J")
    e("P1_W7B:")
    mid(NR)
    scale8(224, 4)
    c("lanes 32..63 hold flag rows (0, R, 0, 0); lanes 0..31 the wc' rows")
    e(f"v_lshrrev_b32 v73, 3, v{vLane}")
    e("v_cmp_eq_u32 vcc, 5, v73")
    e(f"v_mov_b32 v72, {(RFLAG>>16)*0x10001:#x}")
    e(f"v_xor_b32 v73, 512, v68")
    for r in range(4):
        e(f"v_cndmask_b32 v{224+r}, v{224+r}, v72, vcc")
    if OPT['cz']:
        bz = struct.unpack("<I", struct.pack("<f", -2.0 * SC))[0] >> 16
        e("s_bfm_b64 exec, 8, 48")
        for r in range(4):
            e(f"v_mov_b32 v{224+r}, {bz*0x10001:#x}")
        e("s_mov_b64 exec, -1")
    e(f"v_add_u32 v73, {WCT}, v73")
    e("ds_write_b128 v73, v[224:227]")
    c("the whole table must have been cleared before anything is published or trusted")
    e(f"v_and_b32 v74, {min(NCL,64)-1}, v{vLane}")
    e("v_lshlrev_b32 v74, 2, v74")
    e(f"s_mov_b32 s{sCnt}, 0x40000")
    if OPT['ra']: e("s_waitcnt vmcnt(0)")
    e("P1_POLL:")
    e(f"buffer_load_dword v76, v74, {sr(sWc,4)}, 0 offen" + FL[OPT['pl_']])
    e("s_waitcnt vmcnt(0)")
    e(f"v_cmp_ne_u32 vcc, {1 if NCL<=64 else (0x10001 if NCL==128 else 0x01010101)}, v76")
    e(f"s_sub_u32 s{sCnt}, s{sCnt}, 1")
    e("s_cbranch_scc1 K2_END")
    e("s_cmp_eq_u64 vcc, 0")
    e("s_cbranch_scc1 P1_RDY")
    e("s_sleep 8")
    e("s_branch P1_POLL")
    c("---- rare paths ----")
    e("K2_NEXT:")
    e("v_lshlrev_b32 v64, 2, v0")
    e("v_mov_b32 v66, 0")
    e("s_movk_i32 s42, 132")
    e("v_cmp_gt_u32 vcc, s42, v0")
    e("s_mov_b64 exec, vcc")
    e(f"ds_write_b32 v64, v66 offset:{CNT}")
    e("s_mov_b64 exec, -1")
    e("s_waitcnt lgkmcnt(0)")
    e("s_barrier")
    e("s_branch K2_ROUND")
    e("K2_TAILAT:")
    for i in range(4):
        e(f"ds_add_f32 v{vTl}, v{vAcc+12+i} offset:{4*i}")
    e("s_branch K2_TAILD")
    e("K2_FAIL:")
    e(f"s_movk_i32 s{sLW}, 144")
    e("s_waitcnt vmcnt(0) lgkmcnt(0)")
    e("s_barrier")
    e("s_branch K2_NEXT")
    e("K2_SLOWTOT:")
    e("s_mov_b64 exec, -1")
    e("v_lshlrev_b32 v14, 7, v0")
    e(f"s_lshl_b32 s{sT1}, s2, 16")
    e(f"s_add_u32 s{sT1}, s{sT1}, {WS_TOT}")
    e("s_waitcnt lgkmcnt(0)")
    e(f"s_cmp_lg_u32 s{sFirst}, 0")
    e("s_cbranch_scc1 K2_ST1")
    for r in range(8):
        e(f"buffer_load_dwordx4 {vr(224+4*r,4)}, v14, {sr(sWs,4)}, s{sT1} offen offset:{16*r} sc1")
    e("s_waitcnt vmcnt(0)")
    for r in range(32):
        e(f"v_add_f32 v{192+r}, v{192+r}, v{224+r}")
    e(f"s_cmp_eq_u32 s{sMore}, 0")
    e("s_cbranch_scc1 K2_FIN")
    e("K2_ST1:")
    for r in range(8):
        e(f"buffer_store_dwordx4 {vr(192+4*r,4)}, v14, {sr(sWs,4)}, s{sT1} offen offset:{16*r} sc1")
    e(f"s_mov_b32 s{sFirst}, 0")
    e(f"s_add_u32 s{sJ0}, s{sJ0}, s{sLW}")
    e("s_waitcnt vmcnt(0)")
    e("s_barrier")
    e("s_branch K2_NEXT")

def hi_pure(nt, prio, first=(), after=0):
    e(f"s_setprio {prio}")
    ms = mfmas(1 - nt); av = list(first) + avals(nt)
    tr = rcps() + exps(nt)
    per = (3, 3, 3, 3, 3, 3, 2, 2, 2); fl = [0, 0, 0, 0, 0, 0, 2, 2, 2]
    t = 0; f = 0
    for g in range(9):
        e(ms[g])
        seq = [tr[t + i] for i in range(per[g])]; t += per[g]
        fs = [av[f + i] for i in range(fl[g])]; f += fl[g]
        while seq or fs:
            if seq: e(seq.pop(0))
            if fs: e(fs.pop(0))
    e(f"s_setprio {after}")
    assert f >= len(first)
    return av[f:]

def lo_part(nt, rest, adds):
    for y in list(rest) + chain(1 - nt) + list(adds) + frac(nt): e(y)

sWm = 68
sDum = 43
def cmps(): return [f"v_cmp_gt_u32 {sr(sWm+2*j,2)}, s{sDum}, v{vWK+2*j}" for j in range(4)]
def mwrites():
    if not OPT['mw']: return writes()
    o = []
    for j, w in enumerate(writes()):
        o += [f"s_mov_b64 exec, {sr(sWm+2*j,2)}", w]
    return o + ["s_mov_b64 exec, -1"]

TL = [0]
def tl():
    if OPT['tl']:
        e(f"s_memtime {sr(44+2*TL[0],2)}"); TL[0] += 1
def tl_dump(lab):
    if not OPT['tl']: return
    n = TL[0]; TL[0] = 0
    e(f"s_cmp_lg_u32 s{sCnt}, {OPT['tl']}")
    e(f"s_cbranch_scc1 {lab}")
    e("s_waitcnt lgkmcnt(0)")
    for i in range(n):
        e(f"s_mov_b32 s{sSt+2+2*i}, s{44+2*i}")
    e(f"{lab}:")
def hi_last(prio, first, after):
    e(f"s_setprio {prio}")
    for y in rcps() + list(first) + exps(1): e(y)
    e(f"s_setprio {after}")
    return avals(1)

def role_loops():
    aIx = f"v_add_u32 v{vIxA}, 64, v{vIxA}"; aAq = f"v_add_u32 v{vAqA}, v{vAqA}, v{vAqI}"
    aW = [f"v_add_u32 v{vWK+2*j}, v{vWK+2*j}, v{vN16}" for j in range(4)]
    aWk = f"v_add_u32 v{vWkA}, 32, v{vWkA}"; aQa = f"v_add_u32 v{vQaA}, 64, v{vQaA}"
    cm = cmps()
    for j in range(4):
        e(f"s_mov_b64 {sr(sWm+2*j,2)}, 0")
    e(f"v_subrev_u32 v{vWkA}, 32, v{vWkA}")
    e(f"s_cmp_ge_u32 s{sWave}, 4")
    e("s_cbranch_scc1 KB_PRE")
    e("s_branch KA_ENTRY")
    e(".p2align 6")
    e("KA_LOOP:")
    tail = (cm + avals(1))[6:]
    e("s_waitcnt lgkmcnt(0)")
    lo_part(1, tail, aW)
    e("KA_ENTRY:")
    tl()
    r = hi_pure(0, OPT['pa'], mads() + [AQV])
    tl()
    e("s_waitcnt vmcnt(0)")
    for y in rd_x() + rd_aq() + rd_bq(0) + rd_bq(1): e(y)
    e(f"s_sub_u32 s{sCnt}, s{sCnt}, 1")
    e(f"s_cmp_eq_u32 s{sCnt}, 0")
    e(f"s_waitcnt lgkmcnt({4 if OPT['cz'] else 3})")
    for y in dma(): e(y)
    e("s_waitcnt lgkmcnt(0)")
    tl()
    lo_part(0, r, [aIx, aAq, aWk, aQa])
    e("s_cbranch_scc1 KA_LAST")
    tl()
    hi_pure(1, OPT['pa'], cm)
    tl()
    for y in mwrites() + rd_wk() + rd_qa() + rd_idx(): e(y)
    tl()
    tl_dump("KA_TL")
    if OPT['trace']: trace_code()
    e("s_branch KA_LOOP")
    e("KA_LAST:")
    r = hi_last(OPT['pa'], cm, 0)
    for y in mwrites() + rd_wk(): e(y)
    e("s_waitcnt lgkmcnt(0)")
    lo_part(1, r, aW)
    e("s_branch K2_DRAIN")
    e("KB_PRE:")
    e(f"v_sub_u32 v{vAqA}, v{vAqA}, v{vAqI}")
    e(".p2align 6")
    e("KB_LOOP:")
    tl()
    r = hi_pure(0, OPT['pb'], mads() + [AQV], OPT['pl'])
    tl()
    lo_part(0, r, [aIx, aQa, aWk, aAq][:OPT['bal']])
    tl()
    e("s_waitcnt vmcnt(0)")
    for y in rd_x() + rd_aq() + rd_bq(0) + mwrites() + rd_wk(): e(y)
    e(f"s_sub_u32 s{sCnt}, s{sCnt}, 1")
    e(f"s_cmp_eq_u32 s{sCnt}, 0")
    e("s_cbranch_scc1 KB_LAST")
    e("s_waitcnt lgkmcnt(6)")
    for y in dma(): e(y)
    e("s_waitcnt lgkmcnt(0)")
    tl()
    r = hi_pure(1, OPT['pb'], cm, OPT['pl'])
    tl()
    lo_part(1, r, aW + [aIx, aQa, aWk, aAq][OPT['bal']:])
    tl()
    for y in rd_bq(1) + rd_qa() + rd_idx(): e(y)
    tl_dump("KB_TL")
    if OPT['trace']: trace_code()
    e("s_waitcnt lgkmcnt(0)")
    e("s_branch KB_LOOP")
    e("KB_LAST:")
    r = hi_last(OPT['pb'], [], OPT['pl'])
    e("s_waitcnt lgkmcnt(0)")
    lo_part(1, r, aW)

def trace_code():
    e("s_memtime s[44:45]")
    e("s_memrealtime s[46:47]")
    e(f"s_lshl_b32 s48, s2, 3")
    e(f"s_add_u32 s48, s48, s{sWave}")
    e(f"s_lshl_b32 s48, s48, 4")
    e(f"s_add_u32 s48, s48, s{sCnt}")
    e(f"s_lshl_b32 s48, s48, 3")
    e(f"s_add_u32 s48, s48, {WS_DIAG+0x80000}")
    e("s_waitcnt lgkmcnt(0)")
    e("v_mov_b32 v8, s44")
    e("v_mov_b32 v9, s46")
    e("v_mov_b32 v10, 0")
    e("s_mov_b64 exec, 1")
    e(f"buffer_store_dwordx2 v[8:9], v10, {sr(sWs,4)}, s48 offen")
    e("s_mov_b64 exec, -1")

def loop_body():
    global L
    n0 = len(L)
    loop_body0()
    k = OPT['kill']
    body = L[n0:]; del L[n0:]
    for l in body:
        t = l.strip()
        if k & 1 and t.startswith('ds_read'): continue
        if k & 2 and t.startswith('ds_write'): continue
        if k & 4 and t.startswith('buffer_load'): continue
        if k & 8 and t.startswith('s_waitcnt') and not OPT['trace']: continue
        if k & 16 and t.startswith('v_add_u32'): continue
        if k & 32 and t.startswith('v_fmaak'): l = l.replace('v_fmaak_f32','v_mul_f32').rsplit(',',1)[0]
        if k & 64 and t.startswith('v_fma_f32'): l = l.replace('v_fma_f32','v_mul_f32').rsplit(',',1)[0]
        if k & 128 and t.startswith('v_and_b32'): continue
        L.append(l)
def loop_body0():
    e("s_setprio 1")
    ex = [[] for _ in range(9)]
    x = rd_x(); md = mads()
    ex[0] = rd_aq() + rd_bq(0)
    ex[1] = rd_bq(1) + ["s_waitcnt vmcnt(0)"]
    ex[2] = [x[0]]
    ex[4] = [x[1]]
    ex[5] = md[:2]
    ex[6] = [x[2]]
    ex[7] = md[2:]
    ex[8] = [x[3]]
    hi_phase(mfmas(1), rcps() + exps(0), ex)
    e("s_setprio 0")
    for y in mix(chain(1), avals(0)): e(y)
    e(f"v_add_u32 v{vIxA}, 64, v{vIxA}")
    e(f"v_add_u32 v{vAqA}, v{vAqA}, v{vAqI}")
    for y in frac(0): e(y)
    e("s_setprio 1")
    e("s_waitcnt lgkmcnt(0)")
    ex = [[] for _ in range(9)]
    w = writes(); d = dma(); wk = rd_wk()
    ex[0] = [d[0], w[0]]; ex[1] = [d[1], w[1]]; ex[2] = [d[2], w[2]]
    ex[4] = [d[3], w[3]]; ex[5] = wk; ex[7] = rd_qa() + [f"s_sub_u32 s{sCnt}, s{sCnt}, 1"]; ex[8] = rd_idx()
    hi_phase(mfmas(0), rcps() + exps(1), ex)
    e("s_setprio 0")
    av = avals(1)
    for y in av[:8]: e(y)
    e("s_waitcnt lgkmcnt(0)")
    for y in mix(chain(0), av[8:]): e(y)
    for j in range(4):
        e(f"v_add_u32 v{vWK+2*j}, v{vWK+2*j}, v{vN16}")
    e(f"v_add_u32 v{vWkA}, 32, v{vWkA}")
    e(f"v_add_u32 v{vQaV}, v{vQaV}, v{vQaC}")
    e(f"v_add_u32 v{vQaA}, 16, v{vQaA}")
    for y in frac(1): e(y)
    if OPT['trace']: trace_code()
    e(f"s_cmp_lg_u32 s{sCnt}, 0")
    e("s_cbranch_scc1 K2_LOOP")

def kd(name, vg, sg):
    L.extend([f".amdhsa_kernel {name}",
              f"  .amdhsa_next_free_vgpr {vg}",
              f"  .amdhsa_next_free_sgpr {sg}",
              f"  .amdhsa_accum_offset {(vg+3)//4*4}",
              "  .amdhsa_group_segment_fixed_size 0",
              "  .amdhsa_kernarg_size 96",
              "  .amdhsa_user_sgpr_count 2",
              "  .amdhsa_user_sgpr_kernarg_segment_ptr 1",
              "  .amdhsa_system_sgpr_workgroup_id_x 1",
              ".end_amdhsa_kernel"])

hdr = open("cdna_kernels/%s.s.ref" % NAME).read().split("\n")
for l in hdr:
    if l.startswith("; Override") : break
    L.append(l)
if OPT['lst']:
    L.append(f"; @launch kernel={NAME}_kernel grid=(256,1,1) block=(512,1,1) lds={K2_LDS}")
else:
    L.append(f"; @launch grid=(256,1,1) block=(512,1,1) lds={K2_LDS}")
L.append('.amdgcn_target "amdgcn-amd-amdhsa--gfx950"')
L.append(".text")
L.append(f".globl {NAME}_kernel")
L.append(f".type {NAME}_kernel,@function")
sSt = 82
for i, n in enumerate(OPT.get('pts', 'b2,b3,b4,go,hist').split(',')): PTS[n] = i + 1
k2()
L.append("K2_CODE_END:")
L.append('.section .rodata,"a"')
L.append(".p2align 6")
kd(f"{NAME}_kernel", 256, 102)
open(sys.argv[1], "w").write("\n".join(L) + "\n")
print("K2_LDS", K2_LDS, "ATAB", ATAB, "STG", STG, "ROWS", ROWS)
```

```python
import sys, struct

NAME = "standalone__edge_featured_mpnn_gatedgcn__graph"
OPT = dict(stamp=0, trace=0, stf=1, ldf=3, sched=0, remap=1, nodefirst=0, kill=0, pf=1, h1=4, dbg=0, alt=0, alt2=0, slp=10, rt=0, ost=0, role=1, fill=14, pa=2, pb=1, pl=3, wf=1, tl=0, mw=1, bt=-1, fb=0, peel=1, pf7=0, pfa=0, pfb=0, skp=2, dl=1, qu=3, lat=0, tlb=0, tw=0, rs=1, rl=1, pl_=1, ps=1, ncl=64, cat=0, wofs=0, bal=4, sp=0, ra=0, cz=1, co=0, cpf=0, em=1, eb=0, lst=0)
for a in sys.argv[2:]:
    k, v = a.split('=')
    OPT[k] = int(v) if k != 'pts' else v

L = []
def e(s=""): L.append("    " + s if s and not s.endswith(":") else s)
def c(s): L.append("    ; " + s)
def f32(x): return "0x%08x" % struct.unpack("<I", struct.pack("<f", x))[0]
def vr(a, n): return f"v[{a}:{a+n-1}]"
def sr(a, n): return f"s[{a}:{a+n-1}]"
FL = ["", " sc1", " sc0 sc1", " nt", " sc1 nt", " sc0 sc1 nt"]

N = 25000; E = 800000
CH = 3136
CHB = CH * 12
BM = 171799
BK = 6399988
WS_T = 0
WS_IMG = 0x40000
WS_REC = 0x80000 + OPT['wofs'] * 0x100000
WS_AU = 0xA00000
WS_TOT = 0x1100000
WS_DIAG = 0x2F00000
WS_SIZE = 0x10000000
LOG2E = 1.4426950408889634
NODE_WGS = 196
RFLAG = 0x21800000
sSt = 82

def srd(d, b, size, stride=0):
    e(f"s_mov_b32 s{d}, s{b}")
    e(f"s_and_b32 s{d+1}, s{b+1}, 0xffff")
    if stride:
        e(f"s_or_b32 s{d+1}, s{d+1}, {stride<<16:#x}")
    e(f"s_mov_b32 s{d+2}, {size}")
    e(f"s_mov_b32 s{d+3}, 0x20000")

def scan64(v):
    for m in ("row_shr:1 row_mask:0xf", "row_shr:2 row_mask:0xf", "row_shr:4 row_mask:0xf",
              "row_shr:8 row_mask:0xf", "row_bcast:15 row_mask:0xa", "row_bcast:31 row_mask:0xc"):
        e("s_nop 1")
        e(f"v_add_u32_dpp v{v}, v{v}, v{v} {m} bank_mask:0xf")

PTS = {}
def pt(name):
    if name in PTS: stamp(PTS[name])
def stamp(i):
    if OPT['stamp']:
        e(f"{'s_memrealtime' if OPT['rt'] else 's_memtime'} {sr(sSt+2*i,2)}")
        if i == 0:
            e(f"s_memrealtime {sr(sSt+18,2)}")
def diag_out(kidx, nst, swave, ssrd, extra=None, vt=8):
    if OPT['dbg']:
        e("s_memrealtime s[42:43]")
        e("s_load_dwordx2 s[44:45], s[0:1], 80")
        e("s_waitcnt lgkmcnt(0)")
        e(f"s_cmp_lg_u32 s2, {OPT['dbg']}")
        e(f"s_cbranch_scc1 K{kidx+1}_END")
        e(f"s_cmp_lg_u32 s{swave}, 5")
        e(f"s_cbranch_scc1 K{kidx+1}_END")
        e(f"s_add_u32 s44, s44, {512*(1-kidx)}")
        e("s_addc_u32 s45, s45, 0")
        srd(48, 44, 64)
        e(f"v_mov_b32 v{vt}, 0")
        e("s_mov_b64 exec, 1")
        sel = [(2,3,5,6,8),(1,2,4,5,6,7,8)][kidx]
        o = [0, 7][kidx]
        e(f"v_mov_b32 v{vt+1}, s{sSt+18}")
        e(f"buffer_store_dword v{vt+1}, v{vt}, s[48:51], 0 offen offset:{4*o}")
        for n, i in enumerate(sel):
            e(f"s_sub_u32 s40, s{sSt+2*i}, s{sSt}")
            e(f"v_mov_b32 v{vt+1}, s40")
            e(f"buffer_store_dword v{vt+1}, v{vt}, s[48:51], 0 offen offset:{4*(o+1+n)}")
        e(f"v_mov_b32 v{vt+1}, s42")
        e(f"buffer_store_dword v{vt+1}, v{vt}, s[48:51], 0 offen offset:{4*(o+1+len(sel))}")
        return
    e("s_memrealtime s[42:43]")
    e("s_waitcnt lgkmcnt(0)")
    e(f"s_lshl_b32 s39, s2, 4")
    e(f"s_add_u32 s39, s39, s{swave}")
    e(f"s_lshl_b32 s39, s39, 6")
    e(f"s_add_u32 s39, s39, {WS_DIAG + kidx*0x40000}")
    e(f"v_mov_b32 v{vt}, 0")
    e("s_mov_b64 exec, 1")
    for i in range(1, nst):
        e(f"s_sub_u32 s40, s{sSt+2*i}, {'0' if OPT['rt']==2 or OPT['tl'] else 's%d' % sSt}")
        e(f"v_mov_b32 v{vt+1}, s40")
        e(f"buffer_store_dword v{vt+1}, v{vt}, {sr(ssrd,4)}, s39 offen offset:{4*(i-1)}")
    if extra is not None:
        e(f"v_mov_b32 v{vt+1}, s{extra}")
        e(f"buffer_store_dword v{vt+1}, v{vt}, {sr(ssrd,4)}, s39 offen offset:48")
    e("s_getreg_b32 s40, hwreg(HW_REG_HW_ID)")
    e(f"v_mov_b32 v{vt+1}, s40")
    e(f"buffer_store_dword v{vt+1}, v{vt}, {sr(ssrd,4)}, s39 offen offset:52")
    e(f"v_mov_b32 v{vt+1}, s{sSt+18}")
    e(f"buffer_store_dword v{vt+1}, v{vt}, {sr(ssrd,4)}, s39 offen offset:56")
    e(f"v_mov_b32 v{vt+1}, s42")
    e(f"buffer_store_dword v{vt+1}, v{vt}, {sr(ssrd,4)}, s39 offen offset:60")

def mfma(d, a, b, cc):
    cs = "0" if cc is None else vr(cc, 16)
    return f"v_mfma_f32_32x32x16_bf16 {vr(d,16)}, {vr(a,4)}, {vr(b,4)}, {cs}"

CAP = 3584
CNT = 0
MORE = 512
BI = 528
M4 = 1280
E8 = M4 + CAP * 4 + 256
QWK = E8 + CAP * 8 + 256
AST = 136
RST = 528
ATAB = QWK + (CAP // 4) * 8 + 256
STG = (ATAB + 128 * AST + 1023) // 1024 * 1024
ROWS = STG + 32768
WRAW = STG
XOWN = ROWS
WCT = ROWS + 16384
P_HIST = ROWS + 20480
P_BASE = P_HIST + 1024
P_STG = M4
assert P_STG + CHB <= QWK
DUMMY = ROWS + 98 * RST
K2_LDS = DUMMY + 1024
assert XOWN + 16384 <= DUMMY
assert E8 % 16 == 0 and QWK % 16 == 0 and K2_LDS <= 160 * 1024 and ATAB < 65536, (K2_LDS, ATAB)
SC = 24
PADV = 0x7F007F00
RFLAG = 0x21800000

vW = 128; vD = [192, 224]; vX = 112; vBq = [104, 108]; vAq = 100; vAcc = 84
vS = 72; vN = 76; vP = 80; vWK = 64; vIdx = 56; vC = 40; vXo = 32; vV = 40; vRow = 28; vOut = 29; vTl = 30; vXa = 20
vLane = 1; vAqA = 2; vAqI = 3; vIxA = 4; vQaA = 5; vQaV = 6; vQaC = 7
vWkA = 16; vN16 = 17; vC1 = 18; vTail = 19
vTe = 8
sX = 4; sXr = 8; sWs = 12; sOut = 16; sWc = 20
sBase = 24; sNN = 25; sWave = 26; sJ0 = 27; sLW = 28; sFirst = 29; s128 = 30; sQt = 31; sTt = 32
sNT = 33; sQw = 34; sStg = 35; sMore = 36; sBig = 37; sCnt = 38; sT0 = 39; sT1 = 40; sT2 = 41
sMk = 44

def G(b): return vD[b]
def H(b): return vD[b] + 16
def Wg(nt, s): return vW + (nt * 4 + s) * 4
def Wh(nt, s): return vW + 32 + (nt * 4 + s) * 4
def mfmas(nt):
    g = G(nt); h = H(nt)
    first = [mfma(g, vAq, vBq[nt], None if OPT['cz'] else vC)]
    gs = [mfma(g, vX+4*k, Wg(nt,k), g) for k in range(4)]
    hs = [mfma(h, vX+4*k, Wh(nt,k), h if k else None) for k in range(4)]
    if OPT['co']: return first + gs + hs
    return first + [x for p in zip(hs, gs) for x in p]
def acc(nt, j): return vAcc + j * 4 + nt * 2
SS = [72, 73, 74, 75, 8, 9, 10, 11]; NN = [76, 77, 78, 79, 12, 13, 14, 15]; PP = [81, 82, 83, 80, 25, 26, 27, 24]
def chain(nt):
    o = []
    for j in range(4):
        a = acc(nt, j); p = acc(nt, (j + 3) % 4); k = vWK + 2 * j + 1
        o += [f"v_and_b32 v{a}, v{p}, v{k}", f"v_and_b32 v{a+1}, v{p+1}, v{k}"]
        for q in (j, 4 + j):
            o += [f"v_fmac_f32 v{a}, v{SS[q]}, v{PP[q]}", f"v_fmac_f32 v{a+1}, v{NN[q]}, v{PP[q]}"]
    return o
def writes(): return [f"ds_write_b128 v{vWK+2*j}, {vr(vAcc+4*j,4)}" for j in range(4)]
def avals(nt):
    g = G(nt)
    return [f"v_add_f32 v{g+r}, v{g+r}, v{vC1}" for r in range(16)]
def frac(nt):
    g = G(nt); h = H(nt); o = []
    R = range(8); f = lambda q: 4 * (q % 4) + 2 * (q // 4)
    o += [f"v_mul_f32 v{NN[q]}, v{h+f(q)}, v{g+f(q)+1}" for q in R]
    o += [f"v_add_f32 v{SS[q]}, v{g+f(q)}, v{g+f(q)+1}" for q in R]
    o += [f"v_mul_f32 v{PP[q]}, v{g+f(q)}, v{g+f(q)+1}" for q in R]
    o += [f"v_fmac_f32 v{NN[q]}, v{h+f(q)+1}, v{g+f(q)}" for q in R]
    return o
def mix(a, b):
    o = []; a = list(a); b = list(b)
    while a or b:
        if a: o += a[:2]; a = a[2:]
        if b: o += b[:2]; b = b[2:]
    return o
def exps(nt): return [f"v_exp_f32_e64 v{G(nt)+r}, v{G(nt)+r} clamp" for r in range(16)]
def rcps(): return [f"v_rcp_f32 v{p}, v{p}" for p in PP]
def rd_x(): return [f"ds_read_b128 {vr(vX+4*s,4)}, v{vXa+s}" for s in range(4)]
def rd_aq():
    if not OPT['cz']: return [f"ds_read2_b32 {vr(vAq,2)}, v{vAqA} offset0:0 offset1:1"]
    return [f"ds_read_b32 v{vAq}, v{vAqA}", "s_mov_b32 exec_lo, 0", f"ds_read_b32 v{vAq+1}, v{vAqA} offset:4", "s_mov_b32 exec_lo, -1"]
def rd_idx(): return [f"ds_read_b128 {vr(vIdx,4)}, v{vIxA} offset:{M4}"]
def mads(): return [f"v_mad_u32_u16 v{vIdx+i}, v{vIdx+i}, s{s128}, v{vIdx+4+i}" for i in range(4)]
def rd_qa(): return [f"ds_read_u16 v{vQaV}, v{vQaA} offset:{M4+2}"]
AQV = f"v_mad_u32_u24 v{vQaV}, v{vQaV}, {AST//4}, v{vQaC}"
def rd_bq(nt): return [f"ds_read_b64_tr_b16 {vr(vBq[nt]+2,2)}, v{vQaV} offset:{ATAB+64*nt}"]
def rd_wk(): return [f"ds_read_b128 {vr(vWK,4)}, v{vWkA} offset:{QWK}", f"ds_read_b128 {vr(vWK+4,4)}, v{vWkA} offset:{QWK+16}"]
def dma(): return [f"buffer_load_dwordx4 v{vIdx+i}, {sr(sX,4)}, 0 offen offset:{1024*i} lds" for i in range(4)]

def hi_phase(ms, trans, extras, per=(2, 2, 2, 3, 2, 2, 3, 2, 2)):
    t = 0
    for g in range(9):
        e(ms[g])
        for _ in range(per[g]):
            e(trans[t]); t += 1
        for x in extras[g]:
            e(x)
    assert t == 20

def side_consts():
    c("copy source addresses: v82 weights, v78/v79 own x rows")
    e(f"v_lshrrev_b32 v81, 5, v{vLane}")
    e(f"v_and_b32 v77, 7, v{vLane}")
    e("v_lshlrev_b32 v78, 2, v81")
    e("v_xor_b32 v77, v77, v78")
    e(f"v_and_b32 v82, 16, v{vLane}")
    e("v_lshlrev_b32 v82, 2, v82")
    e("v_xor_b32 v82, v68, v82")
    e(f"s_and_b32 s{sT2}, s{sWave}, 1")
    e(f"s_lshl_b32 s{sT1}, s{sT2}, 1")
    e(f"v_xor_b32 v78, s{sT1}, v77")
    e("v_lshlrev_b32 v78, 4, v78")
    e(f"v_lshrrev_b32 v79, 3, v{vLane}")
    e("v_lshl_add_u32 v78, v79, 9, v78")
    e("v_xor_b32 v79, 16, v78")
    e("v_add_u32 v79, 128, v79")
    e(f"s_lshr_b32 s{sT0}, s{sWave}, 1")
    e(f"s_lshl_b32 s{sT0}, s{sT0}, 5")
    e(f"s_add_u32 s{sQw}, s{sT0}, s{sBase}")
    e(f"s_add_u32 s{sQw}, s{sQw}, s{sT1}")
    e(f"s_lshl_b32 s{sQw}, s{sQw}, 7")

def lane_consts():
    c("---- lane constants ----")
    e(f"v_and_b32 v67, 31, v{vLane}")
    e(f"v_bfe_u32 v70, v{vLane}, 2, 1")
    e(f"v_bfe_u32 v71, v{vLane}, 3, 2")
    e("v_and_b32 v72, 1, v71")
    e("v_lshlrev_b32 v72, 4, v72")
    e("v_mov_b32 v73, 0x3f80")
    e("v_cmp_eq_u32 vcc, v70, v81")
    e("v_lshlrev_b32 v72, v72, v73")
    e("v_cmp_gt_u32 s[42:43], 2, v71")
    e("v_cndmask_b32 v72, 0, v72, vcc")
    e(f"v_and_b32 v73, 3, v{vLane}")
    e(f"v_cndmask_b32 v{vAq+2}, 0, v72, s[42:43]")
    e(f"v_cndmask_b32 v{vAq+3}, v72, 0, s[42:43]")
    e(f"v_mov_b32 v{vAq+1}, 0x3f80")
    for i in range(4):
        e(f"v_xor_b32 v74, {i}, v77")
        e(f"v_lshlrev_b32 v74, 4, v74")
        e(f"v_add_u32 v{vIdx+4+i}, {3072-1024*i}, v74")
    e(f"v_bfe_u32 v74, v{vLane}, 2, 3")
    e(f"v_bfe_u32 v75, v{vLane}, 4, 1")
    e("v_lshl_add_u32 v72, v75, 2, v73")
    e("v_lshlrev_b32 v76, 10, v73")
    e("v_lshl_add_u32 v76, v74, 7, v76")
    e(f"v_add_u32 v76, s{sStg}, v76")
    e("v_xor_b32 v72, v72, v81")
    for s_ in range(4):
        e(f"v_xor_b32 v74, {2*s_}, v72")
        e(f"v_lshl_add_u32 v{vXa+s_}, v74, 4, v76")
    e(f"v_lshlrev_b32 v{vN16}, 2, v75")
    e(f"v_xor_b32 v{vN16}, v{vN16}, v67")
    e(f"v_lshlrev_b32 v{vN16}, 4, v{vN16}")
    e(f"v_mov_b32 v{vC1}, {f32(2.0**(-2*SC))}")
    e(f"v_lshlrev_b32 v{vAqI}, 6, v81")
    e(f"v_add_u32 v{vAqI}, 64, v{vAqI}")
    e("v_lshlrev_b32 v73, 3, v73")
    e(f"v_lshl_add_u32 v{vQaC}, v75, 5, v73")
    c("setup addresses: v8 A table write, v9/v10/v11 transposed reads, v12 wc, v24..27 own x")
    e(f"s_and_b32 s{sT2}, s{sWave}, 1")
    e(f"s_lshr_b32 s{sT0}, s{sWave}, 1")
    e(f"s_lshl_b32 s{sT1}, s{sT0}, 5")
    e(f"s_add_u32 s{sT1}, s{sT1}, s{sBase}")
    e(f"v_add_u32 v8, s{sT1}, v67")
    e("v_and_b32 v8, 127, v8")
    e(f"v_mul_u32_u24 v8, {AST}, v8")
    e("v_lshl_add_u32 v8, v81, 3, v8")
    e(f"s_lshl_b32 s{sT2}, s{sT2}, 6")
    e(f"v_add_u32 v8, s{sT2}, v8")
    e(f"v_bfe_u32 v71, v{vLane}, 2, 2")
    e("v_lshl_add_u32 v12, v81, 2, v71")
    e(f"v_lshl_add_u32 v12, v12, 7, v{vQaC}")
    e(f"v_add_u32 v12, {WCT}, v12")
    e("v_lshl_add_u32 v9, v81, 3, v71")
    e(f"v_lshl_add_u32 v9, v9, 7, v{vQaC}")
    e(f"v_bfe_u32 v71, v{vLane}, 3, 1")
    e("v_lshl_add_u32 v9, v71, 6, v9")
    e(f"v_add_u32 v9, {WRAW}, v9")
    e("v_xor_b32 v10, 64, v9")
    e(f"v_xor_b32 v11, s{sT2}, v9")
    e(f"s_lshl_b32 s{sT0}, s{sT0}, 12")
    e(f"s_add_u32 s{sT0}, s{sT0}, {XOWN}")
    e(f"s_sub_u32 s{sT0}, s{sT0}, s{sStg}")
    for s_ in range(4):
        e(f"v_add_u32 v{24+s_}, s{sT0}, v{vXa+s_}")

def prefetch_all(lanes, first_line, vt):
    if not lanes: return
    e(f"s_and_b32 s{sT2}, s2, 31")
    e(f"s_mul_i32 s{sT2}, s{sT2}, 782")
    e(f"s_mul_i32 s42, s{sWave}, {lanes}")
    e(f"s_add_u32 s{sT2}, s{sT2}, s42")
    e(f"s_add_u32 s{sT2}, s{sT2}, {first_line}")
    e(f"s_lshl_b32 s{sT2}, s{sT2}, 7")
    e(f"v_lshlrev_b32 v{vt}, 7, v{vLane}")
    e(f"s_mov_b64 exec, {(1<<lanes)-1 if lanes<64 else -1}" if lanes<=32 or lanes==64 else f"s_bfm_b64 exec, {lanes}, 0")
    e(f"buffer_load_dword v{vt}, v{vt}, {sr(sXr,4)}, s{sT2} offen")
    e("s_mov_b64 exec, -1")

def scale8(first, n):
    for r in range(n):
        e(f"v_lshlrev_b32 v72, 16, v{first+r}")
        e(f"v_and_b32 v73, 0xffff0000, v{first+r}")
        e(f"v_mul_f32 v72, v74, v72")
        e(f"v_mul_f32 v73, v74, v73")
        e(f"v_cvt_pk_bf16_f32 v{first+r}, v72, v73")

def k2():
    st = FL[OPT['stf']]; ld = FL[OPT['ldf']]
    sP = 3
    e(".p2align 8")
    e(f"{NAME}_kernel:")
    e("s_cmp_ge_u32 s2, 256")
    e("s_cbranch_scc1 K2_END")
    stamp(0)
    e("s_load_dwordx8 s[44:51], s[0:1], 0")
    e("s_load_dwordx8 s[52:59], s[0:1], 64")
    e("s_load_dwordx8 s[60:67], s[0:1], 32")
    e(f"s_mov_b32 s{sP}, s2")
    if OPT['cpf']:
        c("pull the code into the L2 (one dword per 128-byte line, threads 0..CODE/128)")
        e("s_getpc_b64 s[68:69]")
        e("v_lshlrev_b32 v250, 7, v0")
        e("v_mov_b32 v251, s69")
        e(f"s_movk_i32 s70, {OPT['cpf']}")
        e("v_cmp_gt_u32 s[72:73], s70, v0")
        e("v_add_co_u32 v250, vcc, s68, v250")
        e("s_nop 1")
        e("v_addc_co_u32 v251, vcc, 0, v251, vcc")
        e("s_mov_b64 exec, s[72:73]")
        e("s_cbranch_execz K2_NOPF")
        e("global_load_dword v252, v[250:251], off")
        e("K2_NOPF:")
        e("s_mov_b64 exec, -1")
    e(f"s_and_b32 s{sT0}, s2, 7")
    e("s_lshr_b32 s2, s2, 3")
    e(f"s_lshl_b32 s{sT0}, s{sT0}, 5")
    e(f"s_or_b32 s2, s2, s{sT0}")
    e(f"v_and_b32 v{vLane}, 63, v0")
    e("v_lshrrev_b32 v2, 6, v0")
    e(f"s_mul_i32 s{sT0}, s{sP}, {CH*4}")
    e(f"v_readfirstlane_b32 s{sWave}, v2")
    e(f"v_lshl_add_u32 v64, v0, 4, s{sT0}")
    e(f"v_add_u32 v65, 7168, v64")
    e("v_lshlrev_b32 v66, 1, v64")
    e("v_lshlrev_b32 v67, 1, v65")
    e(f"s_mov_b32 s{sT1}, {E*4}")
    e("s_movk_i32 s42, 336")
    e(f"v_cmp_gt_u32 s[76:77], s{sT1}, v64")
    e(f"v_cmp_gt_u32 s[78:79], s{sT1}, v65")
    e("v_cmp_gt_u32 vcc, s42, v0")
    e(f"v_lshlrev_b32 v68, 4, v{vLane}")
    e(f"v_add_u32 v69, {P_HIST}, v68")
    e(f"v_lshrrev_b32 v248, 3, v{vLane}")
    e("v_and_b32 v249, 0x70, v68")
    e("v_lshl_or_b32 v248, v248, 15, v249")
    for i in range(4):
        e(f"v_mov_b32 v{72+i}, 0")
    e("s_and_b64 s[78:79], s[78:79], vcc")
    e(f"s_cmp_eq_u32 s{sWave}, 7")
    e("s_cselect_b64 s[80:81], -1, 0")
    e("s_andn2_b64 s[76:77], s[76:77], s[80:81]")
    e("s_mov_b64 exec, s[80:81]")
    e("ds_write_b128 v69, v[72:75]")
    e(f"ds_write_b128 v68, v[72:75] offset:{CNT}")
    e(f"s_mul_i32 s{sBase}, s2, {BK}")
    e(f"s_add_u32 s{sNN}, s{sBase}, {BK+65535}")
    e(f"s_add_u32 s{sBase}, s{sBase}, 65535")
    e(f"s_lshr_b32 s{sBase}, s{sBase}, 16")
    e(f"s_lshr_b32 s{sNN}, s{sNN}, 16")
    e(f"s_sub_u32 s{sNN}, s{sNN}, s{sBase}")
    e(f"s_mov_b32 s{sJ0}, 0")
    e(f"s_movk_i32 s{sLW}, 384")
    e(f"s_mov_b32 s{sFirst}, 1")
    e(f"s_lshl_b32 s{sStg}, s{sWave}, 12")
    e(f"s_add_u32 s{sStg}, s{sStg}, {STG}")
    e("s_waitcnt lgkmcnt(0)")
    if OPT['tw']:
        srd(sWs, 58, WS_SIZE)
        e(f"v_lshlrev_b32 v83, {OPT['tw']}, v{vLane}")
        e(f"buffer_load_dword v83, v83, {sr(sWs,4)}, 0 offen")
    srd(68, 50, E * 4)
    e("s_mov_b64 exec, s[76:77]")
    e("buffer_load_dwordx4 v[192:195], v64, s[68:71], 0 offen" + ld)
    e("s_mov_b64 exec, s[78:79]")
    e("buffer_load_dwordx4 v[196:199], v65, s[68:71], 0 offen" + ld)
    srd(sWs, 58, WS_SIZE)
    c("wave 7 of the first workgroups clears the run table")
    NCL = OPT['ncl']; PER = 262144 // NCL
    e(f"s_cmp_lt_u32 s{sP}, {NCL}")
    e("s_cselect_b64 exec, s[80:81], 0")
    e("s_cbranch_execz P1_NOCL")
    e(f"s_mul_i32 s{sT0}, s{sP}, {PER}")
    for k in range(PER // 1024):
        e(f"buffer_store_dwordx4 v[72:75], v68, {sr(sWs,4)}, s{sT0} offen offset:{(k%4)*1024} sc1")
        if k % 4 == 3 and k + 1 < PER // 1024:
            e(f"s_add_u32 s{sT0}, s{sT0}, 4096")
    e("P1_NOCL:")
    srd(72, 48, E * 4)
    srd(sOut, 46, E * 8)
    e("s_barrier")
    pt('b1')
    e("s_mov_b64 exec, s[76:77]")
    e("buffer_load_dwordx4 v[200:203], v64, s[72:75], 0 offen" + ld)
    e(f"buffer_load_dwordx4 v[208:211], v66, {sr(sOut,4)}, 0 offen" + ld)
    e(f"buffer_load_dwordx4 v[212:215], v66, {sr(sOut,4)}, 0 offen offset:16" + ld)
    e("s_mov_b64 exec, -1")
    srd(sWc, 56, 256)
    srd(sXr, 44, N * 128)
    e("s_sub_u32 s50, s44, 3072")
    e("s_subb_u32 s51, s45, 0")
    srd(sX, 50, N * 128 + 3072)
    e(f"s_movk_i32 s{s128}, 128")
    side_consts()
    e(f"s_cmp_eq_u32 s{sWave}, 7")
    e("s_cbranch_scc1 P1_W7A")
    e("v_mov_b32 v70, 12")
    e(f"s_mov_b32 s{sT0}, {BM}")
    e("s_movk_i32 s42, 0x3fc")
    e(f"v_mov_b32 v71, {P_HIST}")
    if OPT['eb']:
        if OPT['eb'] == 1: e("s_waitcnt vmcnt(4)")
        e("s_mov_b64 exec, s[78:79]")
        e("buffer_load_dwordx4 v[204:207], v65, s[72:75], 0 offen" + ld)
        e(f"buffer_load_dwordx4 v[216:219], v67, {sr(sOut,4)}, 0 offen" + ld)
        e(f"buffer_load_dwordx4 v[220:223], v67, {sr(sOut,4)}, 0 offen offset:16" + ld)
    for it in range(2):
        e(f"s_mov_b64 exec, s[{76+2*it}:{77+2*it}]")
        e(f"s_waitcnt vmcnt({4-it})")
        for i in range(4):
            e(f"v_mul_u32_u24 v{224+4*it+i}, s{sT0}, v{192+4*it+i}")
        for i in range(4):
            e(f"v_lshrrev_b32 v{224+4*it+i}, 22, v{224+4*it+i}")
        for i in range(4):
            e(f"v_and_or_b32 v{224+4*it+i}, v{224+4*it+i}, s42, v71")
            e(f"ds_add_rtn_u32 v{232+4*it+i}, v{224+4*it+i}, v70")
        for i in range(4):
            e(f"v_and_b32 v{192+4*it+i}, 127, v{192+4*it+i}")
    if not OPT['eb']:
        e("s_mov_b64 exec, s[78:79]")
        e("buffer_load_dwordx4 v[204:207], v65, s[72:75], 0 offen" + ld)
        e(f"buffer_load_dwordx4 v[216:219], v67, {sr(sOut,4)}, 0 offen" + ld)
        e(f"buffer_load_dwordx4 v[220:223], v67, {sr(sOut,4)}, 0 offen offset:16" + ld)
    e("s_mov_b64 exec, -1")
    e("s_waitcnt lgkmcnt(0)")
    def p1_scan():
        e("s_barrier")
        pt('b2')
        e("ds_read_b128 v[240:243], v69")
        e("s_waitcnt lgkmcnt(0)")
        e("v_add_u32 v72, v240, v241")
        e("v_add_u32 v73, v72, v242")
        e("v_add_u32 v76, v73, v243")
        e("v_mov_b32 v80, v76")
        scan64(80)
        e("v_sub_u32 v244, v80, v76")
        e("v_add_u32 v245, v244, v240")
        e("v_add_u32 v246, v244, v72")
        e("v_add_u32 v247, v244, v73")
    p1_scan()
    e(f"ds_write_b128 v69, v[244:247] offset:{P_BASE-P_HIST}")
    e("s_waitcnt lgkmcnt(0)")
    for it in range(2):
        e(f"s_mov_b64 exec, s[{76+2*it}:{77+2*it}]")
        for i in range(4):
            e(f"ds_read_b32 v{224+4*it+i}, v{224+4*it+i} offset:{P_BASE-P_HIST}")
    e("s_mov_b64 exec, -1")
    def side_dma():
        e(f"s_lshl_b32 s{sT1}, s{sWave}, 11")
        e(f"s_add_u32 m0, s{sT1}, {XOWN}")
        e(f"s_lshl_b32 s{sT1}, s{sWave}, 10")
        e(f"buffer_load_dwordx4 v78, {sr(sXr,4)}, s{sQw} offen lds")
        e("s_add_u32 m0, m0, 1024")
        e("s_nop 0")
        e(f"buffer_load_dwordx4 v79, {sr(sXr,4)}, s{sQw} offen lds")
        for k, pw in enumerate((52, 60, 66)):
            e(f"s_add_u32 m0, s{sT1}, {WRAW+8192*(k+1)}")
            srd(68, pw, 8192)
            e(f"buffer_load_dwordx4 v82, s[68:71], s{sT1} offen lds")
    def side_wb():
        e(f"s_lshl_b32 s{sT1}, s{sWave}, 10")
        srd(68, 62, 8192)
        e(f"buffer_load_dwordx4 v[112:115], v82, s[68:71], s{sT1} offen")
    def side_copies():
        if OPT['sp'] == 0:
            side_dma(); side_wb()
    side_copies()
    pt('side')
    NX = 6 if OPT['sp'] == 0 else 0
    for it in range(2):
        e(f"s_mov_b64 exec, s[{76+2*it}:{77+2*it}]")
        e(f"s_waitcnt vmcnt({NX+5-3*it}) lgkmcnt({4 if it==0 else 8})")
        for i in range(4):
            k = 4 * it + i
            e(f"v_lshl_or_b32 v{200+k}, v{192+k}, 18, v{200+k}")
            e(f"v_add_u32 v{224+k}, v{224+k}, v{232+k}")
            e(f"ds_write_b32 v{224+k}, v{200+k} offset:{P_STG+8}")
        for i in range(4):
            k = 4 * it + i
            if i % 2 == 0:
                e(f"s_waitcnt vmcnt({NX+4-3*it-i//2})")
            e(f"v_add_u32 v{224+k}, {P_STG}, v{224+k}")
            e(f"ds_write2_b32 v{224+k}, v{208+2*k}, v{209+2*k} offset0:0 offset1:1")
    e("s_mov_b64 exec, -1")
    pt('p1scat')
    e("P1_J:")
    pt('pj')
    if OPT['sp'] == 1:
        side_dma(); side_wb()
    if OPT['sp'] == 2:
        side_wb()
    e("v_lshlrev_b32 v64, 4, v0")
    e(f"s_mul_i32 s{sT0}, s{sP}, {CHB}")
    e(f"s_add_u32 s{sT0}, s{sT0}, {WS_REC}")
    NT_ = 448 if OPT['pf7'] else 512
    NR = -(-2352 // NT_)
    e(f"s_movk_i32 s42, {2352 - (NR-1)*NT_}")
    e("v_cmp_gt_u32 vcc, s42, v0")
    e("s_waitcnt lgkmcnt(0)")
    e("s_barrier")
    pt('b3')
    if OPT['pf7']:
        e("s_andn2_b64 exec, exec, s[80:81]")
    for k in range(NR):
        e(f"ds_read_b128 {vr(192+4*k,4)}, v64 offset:{P_STG + k*NT_*16}")
    for k in range(NR):
        if k == NR-1:
            e("s_mov_b64 exec, vcc")
        e(f"s_waitcnt lgkmcnt({NR-1-k})")
        e(f"buffer_store_dwordx4 {vr(192+4*k,4)}, v64, {sr(sWs,4)}, s{sT0} offen" + FL[OPT['rs']])
        if k < NR-1:
            e(f"s_add_u32 s{sT0}, s{sT0}, {NT_*16}")
    e("s_mov_b64 exec, -1")
    if OPT['sp'] == 2:
        side_dma(); NR += 5
    e(f"s_cmp_eq_u32 s{sWave}, 7")
    e("s_cbranch_scc1 P1_W7B")
    pt('stored')
    def mid(wait):
        srd(sOut, 54, N * 128)
        lane_consts()
        e(f"v_mov_b32 v74, {f32(-LOG2E)}")
        e(f"v_add_u32 v75, {WRAW}, v64")
        if wait is not None: e(f"s_waitcnt vmcnt({wait})")
        scale8(112, 4)
        e("ds_write_b128 v75, v[112:115]")
    mid(NR)
    e("s_waitcnt vmcnt(0)")
    e("P1_RDY:")
    pt('rdy')
    e(f"s_lshl_b32 s{sT1}, s{sP}, 7")
    e("s_waitcnt lgkmcnt(0)")
    e("s_barrier")
    pt('b4')
    c("publish this chunk's run table (every word carries a valid bit)")
    e("s_mov_b64 exec, s[80:81]")
    e(f"buffer_store_dwordx4 v[244:247], v248, {sr(sWs,4)}, s{sT1} offen" + FL[OPT['ps']])
    e("s_mov_b64 exec, -1")
    prefetch_all(OPT['pfa'], 64*OPT['pf7'], 15)
    if OPT['tlb']:
        e(f"v_lshlrev_b32 v15, {OPT['tlb']}, v0")
        e(f"buffer_load_dword v15, v15, {sr(sXr,4)}, 0 offen")
    c("---- A table and U for this wave's (node tile, channel half); weight operands ----")
    for s_ in range(4):
        e(f"ds_read_b128 {vr(40+4*s_,4)}, v{24+s_}")
    for m in range(2):
        for s_ in range(4):
            for hf in range(2):
                e(f"ds_read_b64_tr_b16 {vr(vW+16*m+4*s_+2*hf,2)}, v11 offset:{16384+m*8192+s_*2048+hf*512}")
    e(f"s_mov_b32 s{sT0}, {f32(-LOG2E)}")
    e("s_waitcnt lgkmcnt(8)")
    for s_ in range(4):
        e(mfma(84, vW+4*s_, 40+4*s_, 84 if s_ else None))
    e("s_waitcnt lgkmcnt(0)")
    for s_ in range(4):
        e(mfma(112, vW+16+4*s_, 40+4*s_, 112 if s_ else None))
    for m in range(2):
        for nt in range(2):
            for s_ in range(4):
                for hf in range(2):
                    e(f"ds_read_b64_tr_b16 {vr(vW+32*m+16*nt+4*s_+2*hf,2)}, v{9+nt} offset:{m*8192+s_*2048+hf*512}")
    for nt in range(2):
        e(f"ds_read_b64_tr_b16 {vr(vBq[nt],2)}, v12 offset:{64*nt}")
    for r in range(16):
        e(f"v_mul_f32 v{84+r}, s{sT0}, v{84+r}")
    for r in range(8):
        e(f"v_cvt_pk_bf16_f32 v{72+r}, v{84+2*r}, v{85+2*r}")
    for j in range(4):
        e(f"ds_write_b64 v8, {vr(72+2*j,2)} offset:{ATAB+j*16}")
    c("U (f32) to its final owners through LDS: 16-byte chunk q of node n sits at n*256 + (q ^ (n&7))*16")
    e(f"s_lshr_b32 s{sT0}, s{sWave}, 1")
    e(f"s_lshl_b32 s{sT0}, s{sT0}, 5")
    e(f"s_and_b32 s{sT1}, s{sWave}, 1")
    e(f"s_lshl_b32 s{sT1}, s{sT1}, 3")
    e(f"v_add_u32 v13, s{sT0}, v67")
    e("s_movk_i32 s42, 112")
    e("v_cmp_gt_u32 vcc, s42, v13")
    e(f"v_and_b32 v14, 7, v{vLane}")
    e("v_xor_b32 v14, v14, v81")
    e(f"v_or_b32 v14, s{sT1}, v14")
    e("v_lshlrev_b32 v13, 8, v13")
    e("s_mov_b64 exec, vcc")
    for j in range(4):
        e(f"v_xor_b32 v15, {2*j}, v14")
        e("v_lshl_add_u32 v15, v15, 4, v13")
        e(f"ds_write_b128 v15, {vr(112+4*j,4)} offset:{E8}")
    e("s_mov_b64 exec, -1")
    c("epilogue thread = (node tid>>2, chunks c and c+4): output offset, row address, residual operand")
    e("v_lshrrev_b32 v13, 2, v0")
    e("v_and_b32 v14, 3, v0")
    e(f"v_add_u32 v{vOut}, s{sBase}, v13")
    e(f"v_lshlrev_b32 v{vOut}, 7, v{vOut}")
    e(f"v_lshl_add_u32 v{vOut}, v14, 4, v{vOut}")
    e(f"buffer_load_dwordx4 {vr(vXo,4)}, v{vOut}, {sr(sXr,4)}, 0 offen")
    e(f"buffer_load_dwordx4 {vr(vXo+4,4)}, v{vOut}, {sr(sXr,4)}, 0 offen offset:64")
    e(f"v_mul_u32_u24 v{vRow}, {RST}, v13")
    e(f"v_lshl_add_u32 v{vRow}, v14, 7, v{vRow}")
    e(f"v_add_u32 v{vRow}, {ROWS}, v{vRow}")
    e("v_lshrrev_b32 v15, 1, v14")
    e(f"v_lshl_add_u32 v{vRow}, v15, 6, v{vRow}")
    e("v_and_b32 v15, 7, v13")
    e("v_lshlrev_b32 v14, 1, v14")
    e("v_xor_b32 v14, v14, v15")
    e("v_lshlrev_b32 v14, 4, v14")
    e(f"v_lshl_add_u32 v{vTl}, v13, 8, v14")
    e(f"v_xor_b32 v31, 16, v{vTl}")
    if not OPT['cz']:
        for r in range(16):
            e(f"v_mov_b32 v{vC+r}, {f32(-2.0*SC)}")
    e("K2_ROUND:")
    c("window offsets (0xffff = lane outside the window)")
    e(f"v_and_b32 v66, 15, v{vLane}")
    e("v_mul_u32_u24 v66, 12, v66")
    e("v_add_u32 v67, 192, v66")
    e(f"v_cmp_gt_u32 vcc, s{sLW}, v66")
    e(f"v_cmp_gt_u32 s[76:77], s{sLW}, v67")
    e(f"v_add_u32 v66, s{sJ0}, v66")
    e(f"v_add_u32 v67, s{sJ0}, v67")
    e("v_lshrrev_b32 v68, 4, v0")
    e(f"s_mov_b32 s{sT0}, {8*CHB}")
    e(f"v_mul_u32_u24 v68, s{sT0}, v68")
    e("v_add3_u32 v68, v68, v66, -1")
    e("v_mov_b32 v69, 0xffff")
    e("v_cndmask_b32 v66, v69, v66, vcc")
    e("v_cndmask_b32 v67, v69, v67, s[76:77]")
    for r in range(16):
        e(f"v_mov_b32 v{vAcc+r}, 0")
    e("v_and_b32 v64, 0x1f0, v0")
    e("v_lshlrev_b32 v64, 6, v64")
    e(f"s_lshr_b32 s{sT0}, s2, 5")
    e(f"s_lshl_b32 s{sT0}, s{sT0}, 15")
    e(f"s_and_b32 s{sT1}, s2, 31")
    e(f"s_lshl_b32 s{sT1}, s{sT1}, 2")
    e(f"s_add_u32 s{sT0}, s{sT0}, s{sT1}")
    e(f"s_mov_b32 s{sCnt}, 0x40000")
    pt('poll')
    c("wait for the run tables of this wave's 32 producers")
    e("K2_POLL:")
    for i in range(8):
        e(f"buffer_load_dword v{vTe+i}, v64, {sr(sWs,4)}, s{sT0} offen offset:{i*128}" + FL[OPT['pl_']])
    e("s_waitcnt vmcnt(0)")
    e(f"v_bitop3_b32 v69, v{vTe}, v{vTe+1}, v{vTe+2} bitop3:0x80")
    e(f"v_bitop3_b32 v70, v{vTe+3}, v{vTe+4}, v{vTe+5} bitop3:0x80")
    e(f"v_bitop3_b32 v69, v69, v{vTe+6}, v{vTe+7} bitop3:0x80")
    e(f"v_bitop3_b32 v69, v69, v70, 1 bitop3:0x80")
    e("v_cmp_eq_u32 vcc, 0, v69")
    e(f"s_sub_u32 s{sCnt}, s{sCnt}, 1")
    e("s_cbranch_scc1 K2_END")
    e("s_cmp_eq_u64 vcc, 0")
    e("s_cbranch_scc1 K2_GO")
    e(f"s_sleep {OPT['slp']}")
    e("s_branch K2_POLL")
    e("K2_GO:")
    pt('go')
    e(f"s_mov_b32 s{sCnt}, {WS_REC}")
    sd = "dst_sel:DWORD dst_unused:UNUSED_PAD "
    for i in range(8):
        m0 = sMk + 4 * i; m1 = m0 + 2
        e(f"v_cmp_lt_u32_sdwa {sr(m0,2)}, v66, v{vTe+i} src0_sel:DWORD src1_sel:WORD_1")
        e(f"v_add_u32_sdwa v69, v68, v{vTe+i} {sd}src0_sel:DWORD src1_sel:WORD_0")
        e(f"v_cmp_lt_u32_sdwa {sr(m1,2)}, v67, v{vTe+i} src0_sel:DWORD src1_sel:WORD_1")
        e(f"s_mov_b64 exec, {sr(m0,2)}")
        e(f"buffer_load_dwordx3 {vr(192+8*i,3)}, v69, {sr(sWs,4)}, s{sCnt} offen" + FL[OPT['rl']])
        e(f"s_mov_b64 exec, {sr(m1,2)}")
        e(f"buffer_load_dwordx3 {vr(196+8*i,3)}, v69, {sr(sWs,4)}, s{sCnt} offen offset:192" + FL[OPT['rl']])
        e("s_mov_b64 exec, -1")
        if i < 7:
            e(f"s_add_u32 s{sCnt}, s{sCnt}, {CHB}")
    npf = 0
    e(f"v_max3_u32 v{vTe}, v{vTe}, v{vTe+1}, v{vTe+2}")
    e(f"v_max3_u32 v{vTe+3}, v{vTe+3}, v{vTe+4}, v{vTe+5}")
    e(f"v_max3_u32 v{vTe}, v{vTe}, v{vTe+6}, v{vTe+7}")
    e(f"v_max_u32 v{vTe}, v{vTe}, v{vTe+3}")
    e(f"s_add_u32 s{sT1}, s{sJ0}, s{sLW}")
    e(f"s_lshl_b32 s{sT1}, s{sT1}, 16")
    e(f"s_or_b32 s{sT1}, s{sT1}, 0xffff")
    e(f"v_cmp_lt_u32 vcc, s{sT1}, v{vTe}")
    e("v_mov_b32 v66, 4")
    e("v_mov_b32 v67, 0")
    e("s_mov_b64 exec, vcc")
    e(f"ds_write_b32 v67, v66 offset:{MORE}")
    e("s_mov_b64 exec, -1")
    c("scan / meta lane constants while the records are in flight")
    e(f"v_lshl_add_u32 v8, v{vLane}, 1, s{sBase}")
    e("v_add_u32 v9, 1, v8")
    e("v_and_b32 v8, 127, v8")
    e("v_and_b32 v9, 127, v9")
    e("v_lshlrev_b32 v8, 2, v8")
    e("v_lshlrev_b32 v9, 2, v9")
    e(f"s_add_u32 s{sT0}, s{sNN}, 7")
    e(f"v_lshlrev_b32 v10, 1, v{vLane}")
    e("v_add_u32 v11, 1, v10")
    e(f"v_cmp_gt_u32 vcc, s{sT0}, v10")
    e(f"v_cmp_gt_u32 s[76:77], s{sT0}, v11")
    e("v_lshrrev_b32 v12, 2, v0")
    e("v_cndmask_b32 v10, 0, 16, vcc")
    e("v_cndmask_b32 v11, 0, 16, s[76:77]")
    e(f"v_cmp_gt_u32 vcc, s{sT0}, v12")
    e(f"v_cmp_gt_u32 s[76:77], s{sNN}, v12")
    e(f"v_add_u32 v13, s{sBase}, v12")
    e("v_cndmask_b32 v14, 0, 16, vcc")
    e("v_and_b32 v13, 127, v13")
    e("v_lshlrev_b32 v13, 2, v13")
    e(f"v_mul_u32_u24 v15, {RST}, v12")
    e(f"v_add_u32 v15, {ROWS}, v15")
    e(f"v_mov_b32 v64, {DUMMY+512}")
    e("v_cndmask_b32 v15, v64, v15, s[76:77]")
    for j in range(4):
        e(f"v_mov_b32 v{vN+j}, 0")
        e(f"v_mov_b32 v{vP+j}, 1.0")
        e(f"v_mov_b32 v{24+j}, 1.0")
    for q in range(16):
        r = 192 + 4 * q
        e(f"s_mov_b64 exec, {sr(sMk+2*q,2)}")
        if q % 2:
            e(f"s_cbranch_execz K2_H{q}")
        e(f"s_waitcnt vmcnt({15+npf-q})")
        e(f"v_lshrrev_b32 v{112+q}, 16, v{r+2}")
        e(f"ds_add_rtn_u32 v{r+3}, v{112+q}, v66 offset:{CNT}")
        if q % 2:
            e(f"K2_H{q}:")
    e("s_mov_b64 exec, -1")
    prefetch_all(OPT['pfb'], 64*OPT['pf7'] + 8*OPT['pfa'], 12)
    e("s_waitcnt lgkmcnt(0)")
    e("s_barrier")
    pt('hist')
    c("---- scan (every wave, redundantly) ----")
    e(f"ds_read_b32 v64, v8 offset:{CNT}")
    e(f"ds_read_b32 v65, v9 offset:{CNT}")
    e(f"ds_read_b32 v68, v67 offset:{MORE}")
    e("s_waitcnt lgkmcnt(1)")
    e(f"s_cmp_eq_u32 s{sFirst}, 0")
    e("s_cbranch_scc1 K2_NOU")
    for it in range(2):
        e(f"ds_read_b128 {vr(vV+8*it,4)}, v{vTl} offset:{E8+128*it}")
        e(f"ds_read_b128 {vr(vV+8*it+4,4)}, v31 offset:{E8+128*it}")
    e("K2_NOU:")
    e("v_add_u32 v69, 15, v64")
    e("v_add_u32 v70, 15, v65")
    e("v_and_b32 v69, -16, v69")
    e("v_and_b32 v70, -16, v70")
    e("v_max_u32 v69, v69, v10")
    e("v_max_u32 v70, v70, v11")
    e("v_add_u32 v71, v69, v70")
    e("v_mov_b32 v72, v71")
    scan64(72)
    e("v_sub_u32 v73, v72, v71")
    e("v_add_u32 v74, v73, v69")
    e(f"v_readlane_b32 s{sQt}, v72, 63")
    e("v_lshl_or_b32 v64, v64, 16, v73")
    e("v_lshl_or_b32 v65, v65, 16, v74")
    e(f"ds_write_b32 v8, v64 offset:{BI}")
    e(f"ds_write_b32 v9, v65 offset:{BI}")
    e("v_max_u32 v69, v69, v70")
    e(f"s_lshr_b32 s{sTt}, s{sQt}, 7")
    e("s_waitcnt lgkmcnt(0)")
    pt('s1')
    e(f"v_readfirstlane_b32 s{sMore}, v68")
    e(f"ds_read_b32 v64, v13 offset:{BI}")
    for q in range(16):
        e(f"s_mov_b64 exec, {sr(sMk+2*q,2)}")
        e(f"ds_read_u16 v{112+q}, v{112+q} offset:{BI}")
    e("s_mov_b64 exec, -1")
    e(f"s_cmp_gt_u32 s{sQt}, {CAP*4}")
    e(f"s_cselect_b32 s{sT0}, 1, s{sMore}")
    e(f"s_cmp_eq_u32 s{sLW}, 384")
    e(f"s_cselect_b32 s{sT0}, s{sT0}, 0")
    e(f"s_cmp_lg_u32 s{sT0}, 0")
    e("s_cbranch_scc1 K2_FAIL")
    c("pads")
    e("v_and_b32 v65, 3, v0")
    e(f"v_mov_b32 v70, {PADV:#x}")
    e("s_waitcnt lgkmcnt(15)")
    e("v_lshrrev_b32 v68, 16, v64")
    e("v_and_b32 v64, 0xffff, v64")
    e("v_add_u32 v74, 15, v68")
    e("v_and_b32 v74, -16, v74")
    e("v_max_u32 v74, v74, v14")
    e("v_lshl_add_u32 v68, v65, 2, v68")
    e("v_cmp_lt_u32 s[76:77], v68, v74")
    e("v_add_u32 v68, v68, v64")
    e("s_mov_b64 exec, s[76:77]")
    e(f"ds_write_b32 v68, v70 offset:{M4}")
    e("s_waitcnt lgkmcnt(1)")
    pt('s2')
    c("---- scatter: index words first ----")
    for q in range(16):
        r = 192 + 4 * q
        e(f"s_mov_b64 exec, {sr(sMk+2*q,2)}")
        if q % 2 and OPT['skp'] & 1: e(f"s_cbranch_execz K2_S{q}")
        e(f"v_add_u32 v{112+q}, v{112+q}, v{r+3}")
        e(f"ds_write_b32 v{112+q}, v{r+2} offset:{M4}")
        if q % 2 and OPT['skp'] & 1: e(f"K2_S{q}:")
    e("s_mov_b64 exec, -1")
    pt('s3')
    e(f"s_lshr_b32 s{sT0}, s{sTt}, 3")
    e(f"s_and_b32 s{sT1}, s{sTt}, 7")
    e(f"s_lshl_b32 s{sT2}, s{sT0}, 6")
    e(f"v_cmp_lt_u32 vcc, s{sT2}, v69")
    e(f"s_mul_i32 s{sQw}, s{sT0}, s{sWave}")
    e(f"s_min_u32 s{sT2}, s{sT1}, s{sWave}")
    e(f"s_add_u32 s{sQw}, s{sQw}, s{sT2}")
    e(f"s_lshl_b32 s{sQw}, s{sQw}, 3")
    e(f"s_cmp_lt_u32 s{sWave}, s{sT1}")
    e(f"s_addc_u32 s{sNT}, s{sT0}, 0")
    e(f"s_or_b32 s{sBig}, vcc_lo, vcc_hi")
    e(f"s_lshl_b32 s{sT0}, s{sNT}, 2")
    e(f"v_bfe_u32 v66, v{vLane}, 3, 1")
    e(f"v_lshrrev_b32 v69, 4, v{vLane}")
    e(f"v_mad_u32_u24 v66, v66, s{sT0}, v69")
    e(f"v_add_lshl_u32 v{vIxA}, v66, s{sQw}, 4")
    e(f"v_lshrrev_b32 v67, 5, v{vLane}")
    e(f"v_mul_u32_u24 v66, s{sT0}, v67")
    e(f"v_add_u32 v66, s{sQw}, v66")
    e(f"v_bfe_u32 v69, v{vLane}, 2, 2")
    e(f"v_add_lshl_u32 v{vQaA}, v66, v69, 4")
    e(f"s_mov_b32 m0, s{sStg}")
    e(f"s_mov_b32 s{sDum}, {DUMMY}")
    e("s_waitcnt lgkmcnt(0)")
    e("s_barrier")
    pt('scat')
    for x in rd_idx() + rd_qa(): e(x)
    e(f"v_add_u32 v{vIxA}, 64, v{vIxA}")
    e(f"v_add_u32 v{vQaA}, 64, v{vQaA}")
    e(f"v_lshlrev_b32 v{vWkA}, 3, v66")
    e(f"v_add_lshl_u32 v{vTail}, v66, s{sT0}, 4")
    e("v_lshlrev_b32 v71, 1, v68")
    e("v_mov_b32 v72, 0")
    e("v_mov_b32 v73, 0")
    e("s_waitcnt lgkmcnt(1)")
    for x in mads() + dma(): e(x)
    e("s_waitcnt lgkmcnt(0)")
    e(AQV)
    for x in rd_idx() + rd_bq(0) + rd_bq(1) + rd_qa(): e(x)
    e(f"v_add_u32 v{vIxA}, 64, v{vIxA}")
    e(f"ds_read_u16 v{vTl}, v{vTail} offset:{M4-14}")
    pt('f1')
    def blk_lds(t):
        c("---- scatter: edge attributes ----")
        e("s_mov_b64 exec, s[76:77]")
        e(f"ds_write_b64 v71, v[72:73] offset:{E8}")
        for q in range(16):
            r = 192 + 4 * q
            e(f"s_mov_b64 exec, {sr(sMk+2*q,2)}")
            if q % 2: e(f"s_cbranch_execz K2_E{q}{t}")
            e(f"v_lshlrev_b32 v{r+3}, 1, v{112+q}")
            e(f"ds_write_b64 v{r+3}, {vr(r,2)} offset:{E8}")
            if q % 2: e(f"K2_E{q}{t}:")
        e("s_mov_b64 exec, -1")
        c("quad meta: thread = (node, k0)")
        e("v_lshrrev_b32 v69, 4, v74")
        e("v_lshrrev_b32 v64, 4, v64")
        e("v_cmp_eq_u32 vcc, 0, v65")
        e("v_add_lshl_u32 v68, v64, v65, 3")
        e("v_add_u32 v70, -1, v69")
        e("v_cndmask_b32 v73, -1, 0, vcc")
        e(f"v_mov_b32 v71, {DUMMY}")
        for u in range(3):
            e("v_cmp_lt_u32 vcc, v65, v69")
            e("v_cmp_eq_u32 s[76:77], v65, v70")
            e("s_and_b64 exec, exec, vcc")
            e("v_add_u32 v65, 4, v65")
            e("v_cndmask_b32 v72, v71, v15, s[76:77]")
            e(f"ds_write_b64 v68, v[72:73] offset:{QWK+32*u}")
            if u == 0: e("v_mov_b32 v73, -1")
        e(f"K2_QM{t}:")
        e("v_cmp_lt_u32 vcc, v65, v69")
        e("v_cmp_eq_u32 s[76:77], v65, v70")
        e("s_and_b64 exec, exec, vcc")
        e(f"s_cbranch_execz K2_QMD{t}")
        e("v_add_u32 v65, 4, v65")
        e("v_cndmask_b32 v72, v71, v15, s[76:77]")
        e(f"ds_write_b64 v68, v[72:73] offset:{QWK+96}")
        e("v_add_u32 v68, 32, v68")
        e(f"s_branch K2_QM{t}")
        e(f"K2_QMD{t}:")
        e("s_mov_b64 exec, -1")
    def blk_val(t):
        e(f"v_bfe_u32 v8, v{vLane}, 2, 1")
        e(f"v_bfe_u32 v9, v{vLane}, 3, 2")
        e(f"v_mad_u32_u24 v8, v8, s{sT0}, v9")
        e(f"v_add_lshl_u32 v8, v8, s{sQw}, 2")
        e(f"v_and_or_b32 v8, v{vLane}, 3, v8")
        e("v_add_u32 v9, 2, v67")
        e("v_lshlrev_b32 v8, v9, v8")
        e(f"v_mul_u32_u24 v9, {E8-M4}, v67")
        e(f"v_add_u32 v9, {M4}, v9")
        e(f"v_add_u32 v{vAqA}, v8, v9")
        e(f"s_cmp_eq_u32 s{sFirst}, 0")
        e(f"s_cbranch_scc1 K2_NOV{t}")
        for r in range(8):
            e(f"v_lshlrev_b32 v8, 16, v{vXo+r}")
            e(f"v_and_b32 v9, 0xffff0000, v{vXo+r}")
            e(f"v_add_f32 v{vV+2*r}, v{vV+2*r}, v8")
            e(f"v_add_f32 v{vV+2*r+1}, v{vV+2*r+1}, v9")
        e(f"K2_NOV{t}:")
        for r in range(8, 15):
            e(f"v_mov_b32 v{r}, 0")
        e("s_waitcnt lgkmcnt(0)")
        e(f"v_lshrrev_b32 v{vTl}, 2, v{vTl}")
        e(f"v_subrev_u32 v{vTl}, s{sBase}, v{vTl}")
        e(f"v_and_b32 v{vTl}, 127, v{vTl}")
        e(f"v_mul_u32_u24 v{vTl}, {RST}, v{vTl}")
        e(f"v_add_u32 v{vTl}, v{vTl}, v{vN16}")
        e(f"v_add_u32 v{vTl}, {ROWS}, v{vTl}")
        for x in mads(): e(x)
    e(f"s_cmp_ge_u32 s{sWave}, 4")
    e("s_cbranch_scc1 K2_ORD_B")
    blk_lds('a'); blk_val('a')
    e("s_branch K2_ORD_J")
    e("K2_ORD_B:")
    blk_val('b'); blk_lds('b')
    e("K2_ORD_J:")
    pt('f3')
    e("s_waitcnt lgkmcnt(0)")
    e("s_barrier")
    pt('meta')
    for x in rd_aq(): e(x)
    e("v_mov_b32 v15, 0")
    for j in range(4):
        e(f"v_mov_b32 v{vS+j}, 0")
        e(f"v_mov_b32 v{vWK+2*j}, -1")
    e(f"v_add_u32 v{vAqA}, v{vAqA}, v{vAqI}")
    e(f"s_mov_b32 s{sCnt}, s{sNT}")
    e("s_waitcnt vmcnt(0)")
    pt('f4')
    for x in rd_x(): e(x)
    e(f"s_cmp_eq_u32 s{sNT}, 0")
    e("s_cbranch_scc1 K2_DRAIN")
    ms = mfmas(0); dm = dma()
    e("s_waitcnt lgkmcnt(4)")
    e(ms[0])
    e("s_waitcnt lgkmcnt(0)")
    for k in range(1, 9):
        e(ms[k])
        if k <= 4: e(dm[k-1])
        if k == 5: e(rd_idx()[0])
    e("s_waitcnt lgkmcnt(0)")
    e("s_nop 3")
    if not OPT['tl']: stamp(6)
    if OPT['role']:
        role_loops()
    else:
        e(".p2align 6")
        e("K2_LOOP:")
        loop_body()
    e("K2_DRAIN:")
    e("s_setprio 0")
    for x in rcps(): e(x)
    e(f"v_add_u32 v31, {DUMMY}, v{vN16}")
    for x in cmps(): e(x)
    for x in chain(1): e(x)
    for x in mwrites(): e(x)
    stamp(7)
    c("---- tails ----")
    e(f"v_cmp_eq_u32 s[76:77], v31, v{vWK+6}")
    e("v_lshrrev_b32 v10, 2, v0")
    e(f"v_cmp_gt_u32 s[78:79], s{sNN}, v10")
    eps = f32(1e-6 * 2.0**(2*SC))
    e(f"v_mov_b32 v9, {eps}")
    e("v_and_b32 v8, 2, v0")
    e("v_lshlrev_b32 v8, 6, v8")
    e(f"v_sub_u32 v8, v{vRow}, v8")
    e("s_waitcnt lgkmcnt(0)")
    e("s_barrier")
    pt('e0')
    e("s_mov_b64 exec, s[76:77]")
    e(f"s_cmp_lg_u32 s{sBig}, 0")
    e("s_cbranch_scc1 K2_TAILAT")
    e(f"ds_read_b128 v[64:67], v{vTl}")
    e("s_waitcnt lgkmcnt(0)")
    for i in range(4):
        e(f"v_add_f32 v{64+i}, v{64+i}, v{vAcc+12+i}")
    e(f"ds_write_b128 v{vTl}, v[64:67]")
    e("K2_TAILD:")
    e("s_mov_b64 exec, -1")
    c("---- epilogue ----")
    e(f"s_cmp_eq_u32 s{sMore}, 0")
    e(f"s_cselect_b32 s{sT1}, s{sFirst}, 0")
    e(f"s_cmp_eq_u32 s{sT1}, 0")
    e("s_waitcnt lgkmcnt(0)")
    pt('e1')
    e("s_barrier")
    pt('e2')
    if OPT['em']: e("s_mov_b64 exec, s[78:79]")
    for k in range(8):
        e(f"ds_read_b128 {vr(192+4*k,4)}, v{vRow if k<4 else 8} offset:{16*k}")
    e("s_cbranch_scc1 K2_SLOWTOT")
    e("K2_FIN:")
    e("s_mov_b64 exec, s[78:79]")
    e("s_cbranch_execz K2_DONE")
    for k in range(8):
        e(f"s_waitcnt lgkmcnt({7-k})")
        e(f"v_add_f32 v{192+4*k}, v{192+4*k}, v9")
        e(f"v_add_f32 v{194+4*k}, v{194+4*k}, v9")
    pt('e3')
    for it in range(2):
        for k in range(8):
            e(f"v_rcp_f32 v{192+4*k+2*it}, v{192+4*k+2*it}")
        e("s_nop 0")
        for k in range(8):
            e(f"v_fmac_f32 v{vV+8*it+k}, v{192+4*k+2*it}, v{193+4*k+2*it}")
        for k in range(4):
            e(f"v_cvt_pk_bf16_f32 v{112+4*it+k}, v{vV+8*it+2*k}, v{vV+8*it+2*k+1}")
        c("x + relu(z) = max(x + z, x); bf16 patterns order like f16 patterns")
        for k in range(4):
            e(f"v_pk_max_f16 v{112+4*it+k}, v{112+4*it+k}, v{vXo+4*it+k}")
        e(f"buffer_store_dwordx4 {vr(112+4*it,4)}, v{vOut}, {sr(sOut,4)}, 0 offen offset:{64*it}" + FL[OPT['ost']])
    e("K2_DONE:")
    if OPT['stamp']:
        e("s_mov_b64 exec, -1")
        stamp(8)
        diag_out(1, 9, sWave, sWs, sNT)
    e("K2_END:")
    e("s_endpgm")
    c("---- wave 7, phase 1: ready count, scaled wb / wc rows, run table words ----")
    e("P1_W7A:")
    p1_scan()
    e(f"s_cmp_lt_u32 s3, {NCL}")
    e("s_cbranch_scc0 P1_NOF")
    e(f"s_lshl_b32 s{sT0}, s3, {2 if NCL<=64 else (1 if NCL==128 else 0)}")
    e("v_mov_b32 v76, 1")
    e("s_mov_b64 exec, 1")
    e("s_waitcnt vmcnt(0)")
    if OPT['cat']:
        e(f"buffer_atomic_add v76, v74, {sr(sWc,4)}, s{sT0} offen sc1")
    else:
        e(f"buffer_store_{'dword' if NCL<=64 else ('short' if NCL==128 else 'byte')} v76, v74, {sr(sWc,4)}, s{sT0} offen sc1")
    e("s_mov_b64 exec, -1")
    e("P1_NOF:")
    srd(68, 64, 512)
    e(f"buffer_load_dwordx4 v[224:227], v68, s[68:71], 0 offen")
    side_copies()
    for i in range(4):
        e(f"v_lshl_or_b32 v{244+i}, v{240+i}, 16, v{244+i}")
        e(f"v_or_b32 v{244+i}, 1, v{244+i}")
    e("s_branch P1_J")
    e("P1_W7B:")
    mid(NR)
    scale8(224, 4)
    c("lanes 32..63 hold flag rows (0, R, 0, 0); lanes 0..31 the wc' rows")
    e(f"v_lshrrev_b32 v73, 3, v{vLane}")
    e("v_cmp_eq_u32 vcc, 5, v73")
    e(f"v_mov_b32 v72, {(RFLAG>>16)*0x10001:#x}")
    e(f"v_xor_b32 v73, 512, v68")
    for r in range(4):
        e(f"v_cndmask_b32 v{224+r}, v{224+r}, v72, vcc")
    if OPT['cz']:
        bz = struct.unpack("<I", struct.pack("<f", -2.0 * SC))[0] >> 16
        e("s_bfm_b64 exec, 8, 48")
        for r in range(4):
            e(f"v_mov_b32 v{224+r}, {bz*0x10001:#x}")
        e("s_mov_b64 exec, -1")
    e(f"v_add_u32 v73, {WCT}, v73")
    e("ds_write_b128 v73, v[224:227]")
    c("the whole table must have been cleared before anything is published or trusted")
    e(f"v_and_b32 v74, {min(NCL,64)-1}, v{vLane}")
    e("v_lshlrev_b32 v74, 2, v74")
    e(f"s_mov_b32 s{sCnt}, 0x40000")
    if OPT['ra']: e("s_waitcnt vmcnt(0)")
    e("P1_POLL:")
    e(f"buffer_load_dword v76, v74, {sr(sWc,4)}, 0 offen" + FL[OPT['pl_']])
    e("s_waitcnt vmcnt(0)")
    e(f"v_cmp_ne_u32 vcc, {1 if NCL<=64 else (0x10001 if NCL==128 else 0x01010101)}, v76")
    e(f"s_sub_u32 s{sCnt}, s{sCnt}, 1")
    e("s_cbranch_scc1 K2_END")
    e("s_cmp_eq_u64 vcc, 0")
    e("s_cbranch_scc1 P1_RDY")
    e("s_sleep 8")
    e("s_branch P1_POLL")
    c("---- rare paths ----")
    e("K2_NEXT:")
    e("v_lshlrev_b32 v64, 2, v0")
    e("v_mov_b32 v66, 0")
    e("s_movk_i32 s42, 132")
    e("v_cmp_gt_u32 vcc, s42, v0")
    e("s_mov_b64 exec, vcc")
    e(f"ds_write_b32 v64, v66 offset:{CNT}")
    e("s_mov_b64 exec, -1")
    e("s_waitcnt lgkmcnt(0)")
    e("s_barrier")
    e("s_branch K2_ROUND")
    e("K2_TAILAT:")
    for i in range(4):
        e(f"ds_add_f32 v{vTl}, v{vAcc+12+i} offset:{4*i}")
    e("s_branch K2_TAILD")
    e("K2_FAIL:")
    e(f"s_movk_i32 s{sLW}, 144")
    e("s_waitcnt vmcnt(0) lgkmcnt(0)")
    e("s_barrier")
    e("s_branch K2_NEXT")
    e("K2_SLOWTOT:")
    e("s_mov_b64 exec, -1")
    e("v_lshlrev_b32 v14, 7, v0")
    e(f"s_lshl_b32 s{sT1}, s2, 16")
    e(f"s_add_u32 s{sT1}, s{sT1}, {WS_TOT}")
    e("s_waitcnt lgkmcnt(0)")
    e(f"s_cmp_lg_u32 s{sFirst}, 0")
    e("s_cbranch_scc1 K2_ST1")
    for r in range(8):
        e(f"buffer_load_dwordx4 {vr(224+4*r,4)}, v14, {sr(sWs,4)}, s{sT1} offen offset:{16*r} sc1")
    e("s_waitcnt vmcnt(0)")
    for r in range(32):
        e(f"v_add_f32 v{192+r}, v{192+r}, v{224+r}")
    e(f"s_cmp_eq_u32 s{sMore}, 0")
    e("s_cbranch_scc1 K2_FIN")
    e("K2_ST1:")
    for r in range(8):
        e(f"buffer_store_dwordx4 {vr(192+4*r,4)}, v14, {sr(sWs,4)}, s{sT1} offen offset:{16*r} sc1")
    e(f"s_mov_b32 s{sFirst}, 0")
    e(f"s_add_u32 s{sJ0}, s{sJ0}, s{sLW}")
    e("s_waitcnt vmcnt(0)")
    e("s_barrier")
    e("s_branch K2_NEXT")

def hi_pure(nt, prio, first=(), after=0):
    e(f"s_setprio {prio}")
    ms = mfmas(1 - nt); av = list(first) + avals(nt)
    tr = rcps() + exps(nt)
    per = (3, 3, 3, 3, 3, 3, 2, 2, 2); fl = [0, 0, 0, 0, 0, 0, 2, 2, 2]
    t = 0; f = 0
    for g in range(9):
        e(ms[g])
        seq = [tr[t + i] for i in range(per[g])]; t += per[g]
        fs = [av[f + i] for i in range(fl[g])]; f += fl[g]
        while seq or fs:
            if seq: e(seq.pop(0))
            if fs: e(fs.pop(0))
    e(f"s_setprio {after}")
    assert f >= len(first)
    return av[f:]

def lo_part(nt, rest, adds):
    for y in list(rest) + chain(1 - nt) + list(adds) + frac(nt): e(y)

sWm = 68
sDum = 43
def cmps(): return [f"v_cmp_gt_u32 {sr(sWm+2*j,2)}, s{sDum}, v{vWK+2*j}" for j in range(4)]
def mwrites():
    if not OPT['mw']: return writes()
    o = []
    for j, w in enumerate(writes()):
        o += [f"s_mov_b64 exec, {sr(sWm+2*j,2)}", w]
    return o + ["s_mov_b64 exec, -1"]

TL = [0]
def tl():
    if OPT['tl']:
        e(f"s_memtime {sr(44+2*TL[0],2)}"); TL[0] += 1
def tl_dump(lab):
    if not OPT['tl']: return
    n = TL[0]; TL[0] = 0
    e(f"s_cmp_lg_u32 s{sCnt}, {OPT['tl']}")
    e(f"s_cbranch_scc1 {lab}")
    e("s_waitcnt lgkmcnt(0)")
    for i in range(n):
        e(f"s_mov_b32 s{sSt+2+2*i}, s{44+2*i}")
    e(f"{lab}:")
def hi_last(prio, first, after):
    e(f"s_setprio {prio}")
    for y in rcps() + list(first) + exps(1): e(y)
    e(f"s_setprio {after}")
    return avals(1)

def role_loops():
    aIx = f"v_add_u32 v{vIxA}, 64, v{vIxA}"; aAq = f"v_add_u32 v{vAqA}, v{vAqA}, v{vAqI}"
    aW = [f"v_add_u32 v{vWK+2*j}, v{vWK+2*j}, v{vN16}" for j in range(4)]
    aWk = f"v_add_u32 v{vWkA}, 32, v{vWkA}"; aQa = f"v_add_u32 v{vQaA}, 64, v{vQaA}"
    cm = cmps()
    for j in range(4):
        e(f"s_mov_b64 {sr(sWm+2*j,2)}, 0")
    e(f"v_subrev_u32 v{vWkA}, 32, v{vWkA}")
    e(f"s_cmp_ge_u32 s{sWave}, 4")
    e("s_cbranch_scc1 KB_PRE")
    e("s_branch KA_ENTRY")
    e(".p2align 6")
    e("KA_LOOP:")
    tail = (cm + avals(1))[6:]
    e("s_waitcnt lgkmcnt(0)")
    lo_part(1, tail, aW)
    e("KA_ENTRY:")
    tl()
    r = hi_pure(0, OPT['pa'], mads() + [AQV])
    tl()
    e("s_waitcnt vmcnt(0)")
    for y in rd_x() + rd_aq() + rd_bq(0) + rd_bq(1): e(y)
    e(f"s_sub_u32 s{sCnt}, s{sCnt}, 1")
    e(f"s_cmp_eq_u32 s{sCnt}, 0")
    e(f"s_waitcnt lgkmcnt({4 if OPT['cz'] else 3})")
    for y in dma(): e(y)
    e("s_waitcnt lgkmcnt(0)")
    tl()
    lo_part(0, r, [aIx, aAq, aWk, aQa])
    e("s_cbranch_scc1 KA_LAST")
    tl()
    hi_pure(1, OPT['pa'], cm)
    tl()
    for y in mwrites() + rd_wk() + rd_qa() + rd_idx(): e(y)
    tl()
    tl_dump("KA_TL")
    if OPT['trace']: trace_code()
    e("s_branch KA_LOOP")
    e("KA_LAST:")
    r = hi_last(OPT['pa'], cm, 0)
    for y in mwrites() + rd_wk(): e(y)
    e("s_waitcnt lgkmcnt(0)")
    lo_part(1, r, aW)
    e("s_branch K2_DRAIN")
    e("KB_PRE:")
    e(f"v_sub_u32 v{vAqA}, v{vAqA}, v{vAqI}")
    e(".p2align 6")
    e("KB_LOOP:")
    tl()
    r = hi_pure(0, OPT['pb'], mads() + [AQV], OPT['pl'])
    tl()
    lo_part(0, r, [aIx, aQa, aWk, aAq][:OPT['bal']])
    tl()
    e("s_waitcnt vmcnt(0)")
    for y in rd_x() + rd_aq() + rd_bq(0) + mwrites() + rd_wk(): e(y)
    e(f"s_sub_u32 s{sCnt}, s{sCnt}, 1")
    e(f"s_cmp_eq_u32 s{sCnt}, 0")
    e("s_cbranch_scc1 KB_LAST")
    e("s_waitcnt lgkmcnt(6)")
    for y in dma(): e(y)
    e("s_waitcnt lgkmcnt(0)")
    tl()
    r = hi_pure(1, OPT['pb'], cm, OPT['pl'])
    tl()
    lo_part(1, r, aW + [aIx, aQa, aWk, aAq][OPT['bal']:])
    tl()
    for y in rd_bq(1) + rd_qa() + rd_idx(): e(y)
    tl_dump("KB_TL")
    if OPT['trace']: trace_code()
    e("s_waitcnt lgkmcnt(0)")
    e("s_branch KB_LOOP")
    e("KB_LAST:")
    r = hi_last(OPT['pb'], [], OPT['pl'])
    e("s_waitcnt lgkmcnt(0)")
    lo_part(1, r, aW)

def trace_code():
    e("s_memtime s[44:45]")
    e("s_memrealtime s[46:47]")
    e(f"s_lshl_b32 s48, s2, 3")
    e(f"s_add_u32 s48, s48, s{sWave}")
    e(f"s_lshl_b32 s48, s48, 4")
    e(f"s_add_u32 s48, s48, s{sCnt}")
    e(f"s_lshl_b32 s48, s48, 3")
    e(f"s_add_u32 s48, s48, {WS_DIAG+0x80000}")
    e("s_waitcnt lgkmcnt(0)")
    e("v_mov_b32 v8, s44")
    e("v_mov_b32 v9, s46")
    e("v_mov_b32 v10, 0")
    e("s_mov_b64 exec, 1")
    e(f"buffer_store_dwordx2 v[8:9], v10, {sr(sWs,4)}, s48 offen")
    e("s_mov_b64 exec, -1")

def loop_body():
    global L
    n0 = len(L)
    loop_body0()
    k = OPT['kill']
    body = L[n0:]; del L[n0:]
    for l in body:
        t = l.strip()
        if k & 1 and t.startswith('ds_read'): continue
        if k & 2 and t.startswith('ds_write'): continue
        if k & 4 and t.startswith('buffer_load'): continue
        if k & 8 and t.startswith('s_waitcnt') and not OPT['trace']: continue
        if k & 16 and t.startswith('v_add_u32'): continue
        if k & 32 and t.startswith('v_fmaak'): l = l.replace('v_fmaak_f32','v_mul_f32').rsplit(',',1)[0]
        if k & 64 and t.startswith('v_fma_f32'): l = l.replace('v_fma_f32','v_mul_f32').rsplit(',',1)[0]
        if k & 128 and t.startswith('v_and_b32'): continue
        L.append(l)
def loop_body0():
    e("s_setprio 1")
    ex = [[] for _ in range(9)]
    x = rd_x(); md = mads()
    ex[0] = rd_aq() + rd_bq(0)
    ex[1] = rd_bq(1) + ["s_waitcnt vmcnt(0)"]
    ex[2] = [x[0]]
    ex[4] = [x[1]]
    ex[5] = md[:2]
    ex[6] = [x[2]]
    ex[7] = md[2:]
    ex[8] = [x[3]]
    hi_phase(mfmas(1), rcps() + exps(0), ex)
    e("s_setprio 0")
    for y in mix(chain(1), avals(0)): e(y)
    e(f"v_add_u32 v{vIxA}, 64, v{vIxA}")
    e(f"v_add_u32 v{vAqA}, v{vAqA}, v{vAqI}")
    for y in frac(0): e(y)
    e("s_setprio 1")
    e("s_waitcnt lgkmcnt(0)")
    ex = [[] for _ in range(9)]
    w = writes(); d = dma(); wk = rd_wk()
    ex[0] = [d[0], w[0]]; ex[1] = [d[1], w[1]]; ex[2] = [d[2], w[2]]
    ex[4] = [d[3], w[3]]; ex[5] = wk; ex[7] = rd_qa() + [f"s_sub_u32 s{sCnt}, s{sCnt}, 1"]; ex[8] = rd_idx()
    hi_phase(mfmas(0), rcps() + exps(1), ex)
    e("s_setprio 0")
    av = avals(1)
    for y in av[:8]: e(y)
    e("s_waitcnt lgkmcnt(0)")
    for y in mix(chain(0), av[8:]): e(y)
    for j in range(4):
        e(f"v_add_u32 v{vWK+2*j}, v{vWK+2*j}, v{vN16}")
    e(f"v_add_u32 v{vWkA}, 32, v{vWkA}")
    e(f"v_add_u32 v{vQaV}, v{vQaV}, v{vQaC}")
    e(f"v_add_u32 v{vQaA}, 16, v{vQaA}")
    for y in frac(1): e(y)
    if OPT['trace']: trace_code()
    e(f"s_cmp_lg_u32 s{sCnt}, 0")
    e("s_cbranch_scc1 K2_LOOP")

def kd(name, vg, sg):
    L.extend([f".amdhsa_kernel {name}",
              f"  .amdhsa_next_free_vgpr {vg}",
              f"  .amdhsa_next_free_sgpr {sg}",
              f"  .amdhsa_accum_offset {(vg+3)//4*4}",
              "  .amdhsa_group_segment_fixed_size 0",
              "  .amdhsa_kernarg_size 96",
              "  .amdhsa_user_sgpr_count 2",
              "  .amdhsa_user_sgpr_kernarg_segment_ptr 1",
              "  .amdhsa_system_sgpr_workgroup_id_x 1",
              ".end_amdhsa_kernel"])

hdr = open("cdna_kernels/%s.s.ref" % NAME).read().split("\n")
for l in hdr:
    if l.startswith("; Override") : break
    L.append(l)
if OPT['lst']:
    L.append(f"; @launch kernel={NAME}_kernel grid=(256,1,1) block=(512,1,1) lds={K2_LDS}")
else:
    L.append(f"; @launch grid=(256,1,1) block=(512,1,1) lds={K2_LDS}")
L.append('.amdgcn_target "amdgcn-amd-amdhsa--gfx950"')
L.append(".text")
L.append(f".globl {NAME}_kernel")
L.append(f".type {NAME}_kernel,@function")
sSt = 82
for i, n in enumerate(OPT.get('pts', 'b2,b3,b4,go,hist').split(',')): PTS[n] = i + 1
k2()
L.append("K2_CODE_END:")
L.append('.section .rodata,"a"')
L.append(".p2align 6")
kd(f"{NAME}_kernel", 256, 102)
open(sys.argv[1], "w").write("\n".join(L) + "\n")
print("K2_LDS", K2_LDS, "ATAB", ATAB, "STG", STG, "ROWS", ROWS)
```

```python
import sys, struct

NAME = "standalone__edge_featured_mpnn_gatedgcn__graph"
OPT = dict(stamp=0, trace=0, stf=1, ldf=3, sched=0, remap=1, nodefirst=0, kill=0, pf=1, h1=4, dbg=0, alt=0, alt2=0, slp=10, rt=0, ost=0, role=1, fill=14, pa=2, pb=1, pl=3, wf=1, tl=0, mw=1, bt=-1, fb=0, peel=1, pf7=0, pfa=0, pfb=16, skp=2, dl=1, qu=3, lat=0, tlb=0, tw=0, rs=1, rl=1, pl_=1, ps=1, ncl=64, cat=0, wofs=0, bal=4, sp=0, ra=0, cz=1, co=0, cpf=0, em=1, bo=0, prog=1, eb=0, lst=0)
for a in sys.argv[2:]:
    k, v = a.split('=')
    OPT[k] = int(v) if k != 'pts' else v

L = []
def e(s=""): L.append("    " + s if s and not s.endswith(":") else s)
def c(s): L.append("    ; " + s)
def f32(x): return "0x%08x" % struct.unpack("<I", struct.pack("<f", x))[0]
def vr(a, n): return f"v[{a}:{a+n-1}]"
def sr(a, n): return f"s[{a}:{a+n-1}]"
FL = ["", " sc1", " sc0 sc1", " nt", " sc1 nt", " sc0 sc1 nt"]

N = 25000; E = 800000
CH = 3136
CHB = CH * 12
BM = 171799
BK = 6399988
WS_T = 0
WS_IMG = 0x40000
WS_REC = 0x80000 + OPT['wofs'] * 0x100000
WS_AU = 0xA00000
WS_TOT = 0x1100000
WS_DIAG = 0x2F00000
WS_SIZE = 0x10000000
LOG2E = 1.4426950408889634
NODE_WGS = 196
RFLAG = 0x21800000
sSt = 82

def srd(d, b, size, stride=0):
    e(f"s_mov_b32 s{d}, s{b}")
    e(f"s_and_b32 s{d+1}, s{b+1}, 0xffff")
    if stride:
        e(f"s_or_b32 s{d+1}, s{d+1}, {stride<<16:#x}")
    e(f"s_mov_b32 s{d+2}, {size}")
    e(f"s_mov_b32 s{d+3}, 0x20000")

def scan64(v):
    for m in ("row_shr:1 row_mask:0xf", "row_shr:2 row_mask:0xf", "row_shr:4 row_mask:0xf",
              "row_shr:8 row_mask:0xf", "row_bcast:15 row_mask:0xa", "row_bcast:31 row_mask:0xc"):
        e("s_nop 1")
        e(f"v_add_u32_dpp v{v}, v{v}, v{v} {m} bank_mask:0xf")

PTS = {}
def pt(name):
    if name in PTS: stamp(PTS[name])
def stamp(i):
    if OPT['stamp']:
        e(f"{'s_memrealtime' if OPT['rt'] else 's_memtime'} {sr(sSt+2*i,2)}")
        if i == 0:
            e(f"s_memrealtime {sr(sSt+18,2)}")
def diag_out(kidx, nst, swave, ssrd, extra=None, vt=8):
    if OPT['dbg']:
        e("s_memrealtime s[42:43]")
        e("s_load_dwordx2 s[44:45], s[0:1], 80")
        e("s_waitcnt lgkmcnt(0)")
        e(f"s_cmp_lg_u32 s2, {OPT['dbg']}")
        e(f"s_cbranch_scc1 K{kidx+1}_END")
        e(f"s_cmp_lg_u32 s{swave}, 5")
        e(f"s_cbranch_scc1 K{kidx+1}_END")
        e(f"s_add_u32 s44, s44, {512*(1-kidx)}")
        e("s_addc_u32 s45, s45, 0")
        srd(48, 44, 64)
        e(f"v_mov_b32 v{vt}, 0")
        e("s_mov_b64 exec, 1")
        sel = [(2,3,5,6,8),(1,2,4,5,6,7,8)][kidx]
        o = [0, 7][kidx]
        e(f"v_mov_b32 v{vt+1}, s{sSt+18}")
        e(f"buffer_store_dword v{vt+1}, v{vt}, s[48:51], 0 offen offset:{4*o}")
        for n, i in enumerate(sel):
            e(f"s_sub_u32 s40, s{sSt+2*i}, s{sSt}")
            e(f"v_mov_b32 v{vt+1}, s40")
            e(f"buffer_store_dword v{vt+1}, v{vt}, s[48:51], 0 offen offset:{4*(o+1+n)}")
        e(f"v_mov_b32 v{vt+1}, s42")
        e(f"buffer_store_dword v{vt+1}, v{vt}, s[48:51], 0 offen offset:{4*(o+1+len(sel))}")
        return
    e("s_memrealtime s[42:43]")
    e("s_waitcnt lgkmcnt(0)")
    e(f"s_lshl_b32 s39, s2, 4")
    e(f"s_add_u32 s39, s39, s{swave}")
    e(f"s_lshl_b32 s39, s39, 6")
    e(f"s_add_u32 s39, s39, {WS_DIAG + kidx*0x40000}")
    e(f"v_mov_b32 v{vt}, 0")
    e("s_mov_b64 exec, 1")
    for i in range(1, nst):
        e(f"s_sub_u32 s40, s{sSt+2*i}, {'0' if OPT['rt']==2 or OPT['tl'] else 's%d' % sSt}")
        e(f"v_mov_b32 v{vt+1}, s40")
        e(f"buffer_store_dword v{vt+1}, v{vt}, {sr(ssrd,4)}, s39 offen offset:{4*(i-1)}")
    if extra is not None:
        e(f"v_mov_b32 v{vt+1}, s{extra}")
        e(f"buffer_store_dword v{vt+1}, v{vt}, {sr(ssrd,4)}, s39 offen offset:48")
    e("s_getreg_b32 s40, hwreg(HW_REG_HW_ID)")
    e(f"v_mov_b32 v{vt+1}, s40")
    e(f"buffer_store_dword v{vt+1}, v{vt}, {sr(ssrd,4)}, s39 offen offset:52")
    e(f"v_mov_b32 v{vt+1}, s{sSt+18}")
    e(f"buffer_store_dword v{vt+1}, v{vt}, {sr(ssrd,4)}, s39 offen offset:56")
    e(f"v_mov_b32 v{vt+1}, s42")
    e(f"buffer_store_dword v{vt+1}, v{vt}, {sr(ssrd,4)}, s39 offen offset:60")

def mfma(d, a, b, cc):
    cs = "0" if cc is None else vr(cc, 16)
    return f"v_mfma_f32_32x32x16_bf16 {vr(d,16)}, {vr(a,4)}, {vr(b,4)}, {cs}"

CAP = 3584
CNT = 0
MORE = 512
BI = 528
M4 = 1280
QWK = M4 + CAP * 4 + 64
QA = QWK + (CAP // 4) * 8 + 64
AST = 136
RST = 528
ATAB = QA + (CAP // 4) * 2 + 32
ER = (ATAB + 98 * AST + 15) // 16 * 16
STG = (ER + 40960 + 255) // 256 * 256
ROWS = STG + 32768
K2_LDS = ROWS + 98 * RST
WRAW = STG
XOWN = ROWS
WCT = ROWS + 16384
P_HIST = (WCT + 1024 + 1023) // 1024 * 1024
P_BASE = P_HIST + 1024
UTMP = P_BASE + 1024
P_STG = ER
NONLAST = 0x80000000; NOROW = 0x40000000
assert CHB <= 40960 and UTMP + 112 * 256 <= K2_LDS
assert QWK % 16 == 0 and ATAB % 8 == 0 and K2_LDS <= 160 * 1024 and ATAB < 65536, (K2_LDS, ATAB)
SC = 24
PADV = 0x7F007F00
RFLAG = 0x21800000

vW = 128; vD = [192, 224]; vX = 112; vBq = [104, 108]; vAq = 100; vAcc = 84
vS = 72; vN = 76; vP = 80; vWK = 64; vIdx = 56; vC = 40; vXo = 32; vV = 40; vRow = 28; vOut = 29; vTl = 30; vXa = 20
vLane = 1; vAqA = 2; vEa = 3; vIxA = 4; vQaA = 5; vQaV = 6; vQaC = 7
vWkA = 16; vN16 = 17; vC1 = 18; vTail = 19
vTe = 8
sX = 4; sXr = 8; sWs = 12; sOut = 16; sWc = 20
sBase = 24; sNN = 25; sWave = 26; sJ0 = 27; sLW = 28; sFirst = 29; s128 = 30; sQt = 31; sTt = 32
sNT = 33; sQw = 34; sStg = 35; sMore = 36; sBig = 37; sCnt = 38; sT0 = 39; sT1 = 40; sT2 = 41
sMk = 44

def G(b): return vD[b]
def H(b): return vD[b] + 16
def Wg(nt, s): return vW + (nt * 4 + s) * 4
def Wh(nt, s): return vW + 32 + (nt * 4 + s) * 4
def mfmas(nt):
    g = G(nt); h = H(nt)
    first = [mfma(g, vAq, vBq[nt], None if OPT['cz'] else vC)]
    gs = [mfma(g, vX+4*k, Wg(nt,k), g) for k in range(4)]
    hs = [mfma(h, vX+4*k, Wh(nt,k), h if k else None) for k in range(4)]
    if OPT['co']: return first + gs + hs
    return first + [x for p in zip(hs, gs) for x in p]
def acc(nt, j): return vAcc + j * 4 + nt * 2
SS = [72, 73, 74, 75, 8, 9, 10, 11]; NN = [76, 77, 78, 79, 12, 13, 14, 15]; PP = [81, 82, 83, 80, 25, 26, 27, 24]
def chain(nt):
    o = []
    for j in range(4):
        a = acc(nt, j); p = acc(nt, (j + 3) % 4); k = vWK + 2 * j + 1
        o += [f"v_and_b32 v{a}, v{p}, v{k}", f"v_and_b32 v{a+1}, v{p+1}, v{k}"]
        for q in (j, 4 + j):
            o += [f"v_fmac_f32 v{a}, v{SS[q]}, v{PP[q]}", f"v_fmac_f32 v{a+1}, v{NN[q]}, v{PP[q]}"]
    return o
def writes(): return [f"ds_write_b128 v{vWK+2*j}, {vr(vAcc+4*j,4)}" for j in range(4)]
def avals(nt):
    g = G(nt)
    return [f"v_add_f32 v{g+r}, v{g+r}, v{vC1}" for r in range(16)]
def frac(nt):
    g = G(nt); h = H(nt); o = []
    R = range(8); f = lambda q: 4 * (q % 4) + 2 * (q // 4)
    o += [f"v_mul_f32 v{NN[q]}, v{h+f(q)}, v{g+f(q)+1}" for q in R]
    o += [f"v_add_f32 v{SS[q]}, v{g+f(q)}, v{g+f(q)+1}" for q in R]
    o += [f"v_mul_f32 v{PP[q]}, v{g+f(q)}, v{g+f(q)+1}" for q in R]
    o += [f"v_fmac_f32 v{NN[q]}, v{h+f(q)+1}, v{g+f(q)}" for q in R]
    return o
def mix(a, b):
    o = []; a = list(a); b = list(b)
    while a or b:
        if a: o += a[:2]; a = a[2:]
        if b: o += b[:2]; b = b[2:]
    return o
def exps(nt): return [f"v_exp_f32_e64 v{G(nt)+r}, v{G(nt)+r} clamp" for r in range(16)]
def rcps(): return [f"v_rcp_f32 v{p}, v{p}" for p in PP]
def rd_x(): return [f"ds_read_b128 {vr(vX+4*s,4)}, v{vXa+s}" for s in range(4)]
def rd_aq():
    return [f"ds_read_b32 v{vAq}, v{vAqA} offset:{M4}", "s_mov_b32 exec_lo, 0", f"ds_read_b64 {vr(vAq,2)}, v{vEa}", "s_mov_b32 exec_lo, -1"]
def rd_mr(ahead): return [f"ds_read_u16 v{vEa}, v{vAqA} offset:{M4+2+ahead}"]
AEV = f"v_lshl_add_u32 v{vEa}, v{vEa}, 3, s42"
def rd_idx(): return [f"ds_read_b128 {vr(vIdx,4)}, v{vIxA} offset:{M4}"]
def mads(): return [f"v_mad_u32_u16 v{vIdx+i}, v{vIdx+i}, s{s128}, v{vIdx+4+i}" for i in range(4)]
def rd_qa(): return [f"ds_read_u16 v{vQaV}, v{vQaA} offset:{QA}"]
AQV = f"v_add_u32 v{vQaV}, v{vQaV}, v{vQaC}"
def rd_bq(nt): return [f"ds_read_b64_tr_b16 {vr(vBq[nt]+2,2)}, v{vQaV} offset:{ATAB+64*nt}"]
def rd_wk(): return [f"ds_read_b128 {vr(vWK,4)}, v{vWkA} offset:{QWK}", f"ds_read_b128 {vr(vWK+4,4)}, v{vWkA} offset:{QWK+16}"]
def dma(): return [f"buffer_load_dwordx4 v{vIdx+i}, {sr(sX,4)}, 0 offen offset:{1024*i} lds" for i in range(4)]

def hi_phase(ms, trans, extras, per=(2, 2, 2, 3, 2, 2, 3, 2, 2)):
    t = 0
    for g in range(9):
        e(ms[g])
        for _ in range(per[g]):
            e(trans[t]); t += 1
        for x in extras[g]:
            e(x)
    assert t == 20

def side_consts():
    c("copy source addresses: v82 weights, v78/v79 own x rows")
    e(f"v_lshrrev_b32 v81, 5, v{vLane}")
    e(f"v_and_b32 v77, 7, v{vLane}")
    e("v_lshlrev_b32 v78, 2, v81")
    e("v_xor_b32 v77, v77, v78")
    e(f"v_and_b32 v82, 16, v{vLane}")
    e("v_lshlrev_b32 v82, 2, v82")
    e("v_xor_b32 v82, v68, v82")
    e(f"s_and_b32 s{sT2}, s{sWave}, 1")
    e(f"s_lshl_b32 s{sT1}, s{sT2}, 1")
    e(f"v_xor_b32 v78, s{sT1}, v77")
    e("v_lshlrev_b32 v78, 4, v78")
    e(f"v_lshrrev_b32 v79, 3, v{vLane}")
    e("v_lshl_add_u32 v78, v79, 9, v78")
    e("v_xor_b32 v79, 16, v78")
    e("v_add_u32 v79, 128, v79")
    e(f"s_lshr_b32 s{sT0}, s{sWave}, 1")
    e(f"s_lshl_b32 s{sT0}, s{sT0}, 5")
    e(f"s_add_u32 s{sQw}, s{sT0}, s{sBase}")
    e(f"s_add_u32 s{sQw}, s{sQw}, s{sT1}")
    e(f"s_lshl_b32 s{sQw}, s{sQw}, 7")

def lane_consts():
    c("---- lane constants ----")
    e(f"v_and_b32 v67, 31, v{vLane}")
    e(f"v_bfe_u32 v70, v{vLane}, 2, 1")
    e(f"v_bfe_u32 v71, v{vLane}, 3, 2")
    e("v_and_b32 v72, 1, v71")
    e("v_lshlrev_b32 v72, 4, v72")
    e("v_mov_b32 v73, 0x3f80")
    e("v_cmp_eq_u32 vcc, v70, v81")
    e("v_lshlrev_b32 v72, v72, v73")
    e("v_cmp_gt_u32 s[42:43], 2, v71")
    e("v_cndmask_b32 v72, 0, v72, vcc")
    e(f"v_and_b32 v73, 3, v{vLane}")
    e(f"v_cndmask_b32 v{vAq+2}, 0, v72, s[42:43]")
    e(f"v_cndmask_b32 v{vAq+3}, v72, 0, s[42:43]")
    e(f"v_mov_b32 v{vAq+1}, 0x3f80")
    for i in range(4):
        e(f"v_xor_b32 v74, {i}, v77")
        e(f"v_lshlrev_b32 v74, 4, v74")
        e(f"v_add_u32 v{vIdx+4+i}, {3072-1024*i}, v74")
    e(f"v_bfe_u32 v74, v{vLane}, 2, 3")
    e(f"v_bfe_u32 v75, v{vLane}, 4, 1")
    e("v_lshl_add_u32 v72, v75, 2, v73")
    e("v_lshlrev_b32 v76, 10, v73")
    e("v_lshl_add_u32 v76, v74, 7, v76")
    e(f"v_add_u32 v76, s{sStg}, v76")
    e("v_xor_b32 v72, v72, v81")
    for s_ in range(4):
        e(f"v_xor_b32 v74, {2*s_}, v72")
        e(f"v_lshl_add_u32 v{vXa+s_}, v74, 4, v76")
    e(f"v_lshlrev_b32 v{vN16}, 2, v75")
    e(f"v_xor_b32 v{vN16}, v{vN16}, v67")
    e(f"v_lshlrev_b32 v{vN16}, 4, v{vN16}")
    e(f"v_add_u32 v{vN16}, {ROWS}, v{vN16}")
    e(f"v_mov_b32 v{vC1}, {f32(2.0**(-2*SC))}")
    e("v_lshlrev_b32 v73, 3, v73")
    e(f"v_lshl_add_u32 v{vQaC}, v75, 5, v73")
    c("setup addresses: v8 A table write, v9/v10/v11 transposed reads, v12 wc, v24..27 own x")
    e(f"s_and_b32 s{sT2}, s{sWave}, 1")
    e(f"s_lshr_b32 s{sT0}, s{sWave}, 1")
    e(f"s_lshl_b32 s{sT1}, s{sT0}, 5")
    e(f"v_add_u32 v8, s{sT1}, v67")
    e(f"v_cmp_gt_u32 {sr(sMore,2)}, s{sNN}, v8")
    e(f"v_mul_u32_u24 v8, {AST}, v8")
    e("v_lshl_add_u32 v8, v81, 3, v8")
    e(f"s_lshl_b32 s{sT2}, s{sT2}, 6")
    e(f"v_add_u32 v8, s{sT2}, v8")
    e(f"v_bfe_u32 v71, v{vLane}, 2, 2")
    e("v_lshl_add_u32 v12, v81, 2, v71")
    e(f"v_lshl_add_u32 v12, v12, 7, v{vQaC}")
    e(f"v_add_u32 v12, {WCT}, v12")
    e("v_lshl_add_u32 v9, v81, 3, v71")
    e(f"v_lshl_add_u32 v9, v9, 7, v{vQaC}")
    e(f"v_bfe_u32 v71, v{vLane}, 3, 1")
    e("v_lshl_add_u32 v9, v71, 6, v9")
    e(f"v_add_u32 v9, {WRAW}, v9")
    e("v_xor_b32 v10, 64, v9")
    e(f"v_xor_b32 v11, s{sT2}, v9")
    e(f"s_lshl_b32 s{sT0}, s{sT0}, 12")
    e(f"s_add_u32 s{sT0}, s{sT0}, {XOWN}")
    e(f"s_sub_u32 s{sT0}, s{sT0}, s{sStg}")
    for s_ in range(4):
        e(f"v_add_u32 v{24+s_}, s{sT0}, v{vXa+s_}")

def prefetch_all(lanes, first_line, vt):
    if not lanes: return
    e(f"s_and_b32 s{sT2}, s2, 31")
    e(f"s_mul_i32 s{sT2}, s{sT2}, 782")
    e(f"s_mul_i32 s{sT1}, s{sWave}, {lanes}")
    e(f"s_add_u32 s{sT2}, s{sT2}, s{sT1}")
    e(f"s_add_u32 s{sT2}, s{sT2}, {first_line}")
    e(f"s_lshl_b32 s{sT2}, s{sT2}, 7")
    e(f"v_lshlrev_b32 v{vt}, 7, v{vLane}")
    e(f"s_mov_b64 exec, {(1<<lanes)-1 if lanes<64 else -1}" if lanes<=32 or lanes==64 else f"s_bfm_b64 exec, {lanes}, 0")
    e(f"buffer_load_dword v{vt}, v{vt}, {sr(sXr,4)}, s{sT2} offen")
    e("s_mov_b64 exec, -1")

def scale8(first, n):
    for r in range(n):
        e(f"v_lshlrev_b32 v72, 16, v{first+r}")
        e(f"v_and_b32 v73, 0xffff0000, v{first+r}")
        e(f"v_mul_f32 v72, v74, v72")
        e(f"v_mul_f32 v73, v74, v73")
        e(f"v_cvt_pk_bf16_f32 v{first+r}, v72, v73")

def k2():
    st = FL[OPT['stf']]; ld = FL[OPT['ldf']]
    sP = 3
    e(".p2align 8")
    e(f"{NAME}_kernel:")
    e("s_cmp_ge_u32 s2, 256")
    e("s_cbranch_scc1 K2_END")
    stamp(0)
    e("s_load_dwordx8 s[44:51], s[0:1], 0")
    e("s_load_dwordx8 s[52:59], s[0:1], 64")
    e("s_load_dwordx8 s[60:67], s[0:1], 32")
    e(f"s_mov_b32 s{sP}, s2")
    if OPT['cpf']:
        c("pull the code into the L2 (one dword per 128-byte line, threads 0..CODE/128)")
        e("s_getpc_b64 s[68:69]")
        e("v_lshlrev_b32 v250, 7, v0")
        e("v_mov_b32 v251, s69")
        e(f"s_movk_i32 s70, {OPT['cpf']}")
        e("v_cmp_gt_u32 s[72:73], s70, v0")
        e("v_add_co_u32 v250, vcc, s68, v250")
        e("s_nop 1")
        e("v_addc_co_u32 v251, vcc, 0, v251, vcc")
        e("s_mov_b64 exec, s[72:73]")
        e("s_cbranch_execz K2_NOPF")
        e("global_load_dword v252, v[250:251], off")
        e("K2_NOPF:")
        e("s_mov_b64 exec, -1")
    e(f"s_and_b32 s{sT0}, s2, 7")
    e("s_lshr_b32 s2, s2, 3")
    e(f"s_lshl_b32 s{sT0}, s{sT0}, 5")
    e(f"s_or_b32 s2, s2, s{sT0}")
    e(f"v_and_b32 v{vLane}, 63, v0")
    e("v_lshrrev_b32 v2, 6, v0")
    e(f"s_mul_i32 s{sT0}, s{sP}, {CH*4}")
    e(f"v_readfirstlane_b32 s{sWave}, v2")
    e(f"v_lshl_add_u32 v64, v0, 4, s{sT0}")
    e(f"v_add_u32 v65, 7168, v64")
    e("v_lshlrev_b32 v66, 1, v64")
    e("v_lshlrev_b32 v67, 1, v65")
    e(f"s_mov_b32 s{sT1}, {E*4}")
    e("s_movk_i32 s42, 336")
    e(f"v_cmp_gt_u32 s[76:77], s{sT1}, v64")
    e(f"v_cmp_gt_u32 s[78:79], s{sT1}, v65")
    e("v_cmp_gt_u32 vcc, s42, v0")
    e(f"v_lshlrev_b32 v68, 4, v{vLane}")
    e(f"v_add_u32 v69, {P_HIST}, v68")
    e(f"v_lshrrev_b32 v248, 3, v{vLane}")
    e("v_and_b32 v249, 0x70, v68")
    e("v_lshl_or_b32 v248, v248, 15, v249")
    for i in range(4):
        e(f"v_mov_b32 v{72+i}, 0")
    e("s_and_b64 s[78:79], s[78:79], vcc")
    e(f"s_cmp_eq_u32 s{sWave}, 7")
    e("s_cselect_b64 s[80:81], -1, 0")
    e("s_andn2_b64 s[76:77], s[76:77], s[80:81]")
    e("s_mov_b64 exec, s[80:81]")
    e("ds_write_b128 v69, v[72:75]")
    e(f"ds_write_b128 v68, v[72:75] offset:{CNT}")
    e(f"s_mul_i32 s{sBase}, s2, {BK}")
    e(f"s_add_u32 s{sNN}, s{sBase}, {BK+65535}")
    e(f"s_add_u32 s{sBase}, s{sBase}, 65535")
    e(f"s_lshr_b32 s{sBase}, s{sBase}, 16")
    e(f"s_lshr_b32 s{sNN}, s{sNN}, 16")
    e(f"s_sub_u32 s{sNN}, s{sNN}, s{sBase}")
    e(f"s_mov_b32 s{sJ0}, 0")
    e(f"s_movk_i32 s{sLW}, 384")
    e(f"s_mov_b32 s{sFirst}, 1")
    e(f"s_lshl_b32 s{sStg}, s{sWave}, 12")
    e(f"s_add_u32 s{sStg}, s{sStg}, {STG}")
    e("s_waitcnt lgkmcnt(0)")
    if OPT['tw']:
        srd(sWs, 58, WS_SIZE)
        e(f"v_lshlrev_b32 v83, {OPT['tw']}, v{vLane}")
        e(f"buffer_load_dword v83, v83, {sr(sWs,4)}, 0 offen")
    srd(68, 50, E * 4)
    e("s_mov_b64 exec, s[76:77]")
    e("buffer_load_dwordx4 v[192:195], v64, s[68:71], 0 offen" + ld)
    e("s_mov_b64 exec, s[78:79]")
    e("buffer_load_dwordx4 v[196:199], v65, s[68:71], 0 offen" + ld)
    srd(sWs, 58, WS_SIZE)
    c("wave 7 of the first workgroups clears the run table")
    NCL = OPT['ncl']; PER = 262144 // NCL
    e(f"s_cmp_lt_u32 s{sP}, {NCL}")
    e("s_cselect_b64 exec, s[80:81], 0")
    e("s_cbranch_execz P1_NOCL")
    e(f"s_mul_i32 s{sT0}, s{sP}, {PER}")
    for k in range(PER // 1024):
        e(f"buffer_store_dwordx4 v[72:75], v68, {sr(sWs,4)}, s{sT0} offen offset:{(k%4)*1024} sc1")
        if k % 4 == 3 and k + 1 < PER // 1024:
            e(f"s_add_u32 s{sT0}, s{sT0}, 4096")
    e("P1_NOCL:")
    srd(72, 48, E * 4)
    srd(sOut, 46, E * 8)
    e("s_barrier")
    pt('b1')
    e("s_mov_b64 exec, s[76:77]")
    e("buffer_load_dwordx4 v[200:203], v64, s[72:75], 0 offen" + ld)
    e(f"buffer_load_dwordx4 v[208:211], v66, {sr(sOut,4)}, 0 offen" + ld)
    e(f"buffer_load_dwordx4 v[212:215], v66, {sr(sOut,4)}, 0 offen offset:16" + ld)
    e("s_mov_b64 exec, -1")
    srd(sWc, 56, 256)
    srd(sXr, 44, N * 128)
    e("s_sub_u32 s50, s44, 3072")
    e("s_subb_u32 s51, s45, 0")
    srd(sX, 50, N * 128 + 3072)
    e(f"s_movk_i32 s{s128}, 128")
    side_consts()
    e(f"s_cmp_eq_u32 s{sWave}, 7")
    e("s_cbranch_scc1 P1_W7A")
    e("v_mov_b32 v70, 12")
    e(f"s_mov_b32 s{sT0}, {BM}")
    e("s_movk_i32 s42, 0x3fc")
    e(f"v_mov_b32 v71, {P_HIST}")
    if OPT['eb']:
        if OPT['eb'] == 1: e("s_waitcnt vmcnt(4)")
        e("s_mov_b64 exec, s[78:79]")
        e("buffer_load_dwordx4 v[204:207], v65, s[72:75], 0 offen" + ld)
        e(f"buffer_load_dwordx4 v[216:219], v67, {sr(sOut,4)}, 0 offen" + ld)
        e(f"buffer_load_dwordx4 v[220:223], v67, {sr(sOut,4)}, 0 offen offset:16" + ld)
    for it in range(2):
        e(f"s_mov_b64 exec, s[{76+2*it}:{77+2*it}]")
        e(f"s_waitcnt vmcnt({4-it})")
        for i in range(4):
            e(f"v_mul_u32_u24 v{224+4*it+i}, s{sT0}, v{192+4*it+i}")
        for i in range(4):
            e(f"v_lshrrev_b32 v{224+4*it+i}, 22, v{224+4*it+i}")
        for i in range(4):
            e(f"v_and_or_b32 v{224+4*it+i}, v{224+4*it+i}, s42, v71")
            e(f"ds_add_rtn_u32 v{232+4*it+i}, v{224+4*it+i}, v70")
        for i in range(4):
            e(f"v_and_b32 v{192+4*it+i}, 127, v{192+4*it+i}")
    if not OPT['eb']:
        e("s_mov_b64 exec, s[78:79]")
        e("buffer_load_dwordx4 v[204:207], v65, s[72:75], 0 offen" + ld)
        e(f"buffer_load_dwordx4 v[216:219], v67, {sr(sOut,4)}, 0 offen" + ld)
        e(f"buffer_load_dwordx4 v[220:223], v67, {sr(sOut,4)}, 0 offen offset:16" + ld)
    e("s_mov_b64 exec, -1")
    e("s_waitcnt lgkmcnt(0)")
    def p1_scan():
        e("s_barrier")
        pt('b2')
        e("ds_read_b128 v[240:243], v69")
        e("s_waitcnt lgkmcnt(0)")
        e("v_add_u32 v72, v240, v241")
        e("v_add_u32 v73, v72, v242")
        e("v_add_u32 v76, v73, v243")
        e("v_mov_b32 v80, v76")
        scan64(80)
        e("v_sub_u32 v244, v80, v76")
        e("v_add_u32 v245, v244, v240")
        e("v_add_u32 v246, v244, v72")
        e("v_add_u32 v247, v244, v73")
    p1_scan()
    e(f"ds_write_b128 v69, v[244:247] offset:{P_BASE-P_HIST}")
    e("s_waitcnt lgkmcnt(0)")
    for it in range(2):
        e(f"s_mov_b64 exec, s[{76+2*it}:{77+2*it}]")
        for i in range(4):
            e(f"ds_read_b32 v{224+4*it+i}, v{224+4*it+i} offset:{P_BASE-P_HIST}")
    e("s_mov_b64 exec, -1")
    def side_dma():
        e(f"s_lshl_b32 s{sT1}, s{sWave}, 11")
        e(f"s_add_u32 m0, s{sT1}, {XOWN}")
        e(f"s_lshl_b32 s{sT1}, s{sWave}, 10")
        e(f"buffer_load_dwordx4 v78, {sr(sXr,4)}, s{sQw} offen lds")
        e("s_add_u32 m0, m0, 1024")
        e("s_nop 0")
        e(f"buffer_load_dwordx4 v79, {sr(sXr,4)}, s{sQw} offen lds")
        for k, pw in enumerate((52, 60, 66)):
            e(f"s_add_u32 m0, s{sT1}, {WRAW+8192*(k+1)}")
            srd(68, pw, 8192)
            e(f"buffer_load_dwordx4 v82, s[68:71], s{sT1} offen lds")
    def side_wb():
        e(f"s_lshl_b32 s{sT1}, s{sWave}, 10")
        srd(68, 62, 8192)
        e(f"buffer_load_dwordx4 v[112:115], v82, s[68:71], s{sT1} offen")
    def side_copies():
        if OPT['sp'] == 0:
            side_dma(); side_wb()
    side_copies()
    pt('side')
    NX = 6 if OPT['sp'] == 0 else 0
    for it in range(2):
        e(f"s_mov_b64 exec, s[{76+2*it}:{77+2*it}]")
        e(f"s_waitcnt vmcnt({NX+5-3*it}) lgkmcnt({4 if it==0 else 8})")
        for i in range(4):
            k = 4 * it + i
            e(f"v_lshl_or_b32 v{200+k}, v{192+k}, 18, v{200+k}")
            e(f"v_add_u32 v{224+k}, v{224+k}, v{232+k}")
            e(f"ds_write_b32 v{224+k}, v{200+k} offset:{P_STG+8}")
        for i in range(4):
            k = 4 * it + i
            if i % 2 == 0:
                e(f"s_waitcnt vmcnt({NX+4-3*it-i//2})")
            e(f"v_add_u32 v{224+k}, {P_STG}, v{224+k}")
            e(f"ds_write2_b32 v{224+k}, v{208+2*k}, v{209+2*k} offset0:0 offset1:1")
    e("s_mov_b64 exec, -1")
    pt('p1scat')
    e("P1_J:")
    pt('pj')
    if OPT['sp'] == 1:
        side_dma(); side_wb()
    if OPT['sp'] == 2:
        side_wb()
    e("v_lshlrev_b32 v64, 4, v0")
    e(f"v_add_u32 v65, {P_STG}, v64")
    e(f"s_mul_i32 s{sT0}, s{sP}, {CHB}")
    e(f"s_add_u32 s{sT0}, s{sT0}, {WS_REC}")
    NT_ = 448 if OPT['pf7'] else 512
    NR = -(-2352 // NT_)
    e(f"s_movk_i32 s42, {2352 - (NR-1)*NT_}")
    e("v_cmp_gt_u32 vcc, s42, v0")
    e("s_waitcnt lgkmcnt(0)")
    e("s_barrier")
    pt('b3')
    if OPT['pf7']:
        e("s_andn2_b64 exec, exec, s[80:81]")
    for k in range(NR):
        e(f"ds_read_b128 {vr(192+4*k,4)}, v65 offset:{k*NT_*16}")
    for k in range(NR):
        if k == NR-1:
            e("s_mov_b64 exec, vcc")
        e(f"s_waitcnt lgkmcnt({NR-1-k})")
        e(f"buffer_store_dwordx4 {vr(192+4*k,4)}, v64, {sr(sWs,4)}, s{sT0} offen" + FL[OPT['rs']])
        if k < NR-1:
            e(f"s_add_u32 s{sT0}, s{sT0}, {NT_*16}")
    e("s_mov_b64 exec, -1")
    if OPT['sp'] == 2:
        side_dma(); NR += 5
    e(f"s_cmp_eq_u32 s{sWave}, 7")
    e("s_cbranch_scc1 P1_W7B")
    pt('stored')
    def mid(wait):
        srd(sOut, 54, N * 128)
        lane_consts()
        e(f"v_mov_b32 v74, {f32(-LOG2E)}")
        e(f"v_add_u32 v75, {WRAW}, v64")
        if wait is not None: e(f"s_waitcnt vmcnt({wait})")
        scale8(112, 4)
        e("ds_write_b128 v75, v[112:115]")
    mid(NR)
    e("s_waitcnt vmcnt(0)")
    e("P1_RDY:")
    pt('rdy')
    e(f"s_lshl_b32 s{sT1}, s{sP}, 7")
    e("s_waitcnt lgkmcnt(0)")
    e("s_barrier")
    pt('b4')
    c("publish this chunk's run table (every word carries a valid bit)")
    e("s_mov_b64 exec, s[80:81]")
    e(f"buffer_store_dwordx4 v[244:247], v248, {sr(sWs,4)}, s{sT1} offen" + FL[OPT['ps']])
    e("s_mov_b64 exec, -1")
    prefetch_all(OPT['pfa'], 0, 19)
    if OPT['tlb']:
        e(f"v_lshlrev_b32 v15, {OPT['tlb']}, v0")
        e(f"buffer_load_dword v15, v15, {sr(sXr,4)}, 0 offen")
    c("---- A table and U for this wave's (node tile, channel half); weight operands ----")
    for s_ in range(4):
        e(f"ds_read_b128 {vr(40+4*s_,4)}, v{24+s_}")
    for m in range(2):
        for s_ in range(4):
            for hf in range(2):
                e(f"ds_read_b64_tr_b16 {vr(vW+16*m+4*s_+2*hf,2)}, v11 offset:{16384+m*8192+s_*2048+hf*512}")
    e(f"s_mov_b32 s{sT0}, {f32(-LOG2E)}")
    e("s_waitcnt lgkmcnt(8)")
    for s_ in range(4):
        e(mfma(84, vW+4*s_, 40+4*s_, 84 if s_ else None))
    e("s_waitcnt lgkmcnt(0)")
    for s_ in range(4):
        e(mfma(112, vW+16+4*s_, 40+4*s_, 112 if s_ else None))
    for m in range(2):
        for nt in range(2):
            for s_ in range(4):
                for hf in range(2):
                    e(f"ds_read_b64_tr_b16 {vr(vW+32*m+16*nt+4*s_+2*hf,2)}, v{9+nt} offset:{m*8192+s_*2048+hf*512}")
    for nt in range(2):
        e(f"ds_read_b64_tr_b16 {vr(vBq[nt],2)}, v12 offset:{64*nt}")
    for r in range(16):
        e(f"v_mul_f32 v{84+r}, s{sT0}, v{84+r}")
    for r in range(8):
        e(f"v_cvt_pk_bf16_f32 v{72+r}, v{84+2*r}, v{85+2*r}")
    e(f"s_mov_b64 exec, {sr(sMore,2)}")
    for j in range(4):
        e(f"ds_write_b64 v8, {vr(72+2*j,2)} offset:{ATAB+j*16}")
    e("s_mov_b64 exec, -1")
    c("U (f32) to its final owners through LDS: 16-byte chunk q of node n sits at n*256 + (q ^ (n&7))*16")
    e(f"s_lshr_b32 s{sT0}, s{sWave}, 1")
    e(f"s_lshl_b32 s{sT0}, s{sT0}, 5")
    e(f"s_and_b32 s{sT1}, s{sWave}, 1")
    e(f"s_lshl_b32 s{sT1}, s{sT1}, 3")
    e(f"v_add_u32 v13, s{sT0}, v67")
    e("s_movk_i32 s42, 112")
    e("v_cmp_gt_u32 vcc, s42, v13")
    e(f"v_and_b32 v14, 7, v{vLane}")
    e("v_xor_b32 v14, v14, v81")
    e(f"v_or_b32 v14, s{sT1}, v14")
    e("v_lshlrev_b32 v13, 8, v13")
    e(f"v_add_u32 v13, {UTMP}, v13")
    e("s_mov_b64 exec, vcc")
    for j in range(4):
        e(f"v_xor_b32 v15, {2*j}, v14")
        e("v_lshl_add_u32 v15, v15, 4, v13")
        e(f"ds_write_b128 v15, {vr(112+4*j,4)}")
    e("s_mov_b64 exec, -1")
    c("epilogue thread = (node tid>>2, chunks c and c+4): output offset, row address, residual operand")
    e("v_lshrrev_b32 v13, 2, v0")
    e("v_and_b32 v14, 3, v0")
    e(f"v_add_u32 v{vOut}, s{sBase}, v13")
    e(f"v_lshlrev_b32 v{vOut}, 7, v{vOut}")
    e(f"v_lshl_add_u32 v{vOut}, v14, 4, v{vOut}")
    e(f"buffer_load_dwordx4 {vr(vXo,4)}, v{vOut}, {sr(sXr,4)}, 0 offen")
    e(f"buffer_load_dwordx4 {vr(vXo+4,4)}, v{vOut}, {sr(sXr,4)}, 0 offen offset:64")
    e(f"v_mul_u32_u24 v{vRow}, {RST}, v13")
    e(f"v_lshl_add_u32 v{vRow}, v14, 7, v{vRow}")
    e(f"v_add_u32 v{vRow}, {ROWS}, v{vRow}")
    e("v_lshrrev_b32 v15, 1, v14")
    e(f"v_lshl_add_u32 v{vRow}, v15, 6, v{vRow}")
    e("v_and_b32 v15, 7, v13")
    e("v_lshlrev_b32 v14, 1, v14")
    e("v_xor_b32 v14, v14, v15")
    e("v_lshlrev_b32 v14, 4, v14")
    e(f"v_lshl_add_u32 v{vTl}, v13, 8, v14")
    e(f"v_add_u32 v{vTl}, {UTMP}, v{vTl}")
    e(f"v_xor_b32 v31, 16, v{vTl}")
    if not OPT['cz']:
        for r in range(16):
            e(f"v_mov_b32 v{vC+r}, {f32(-2.0*SC)}")
    e("K2_ROUND:")
    c("window offset (0xffff = lane outside the window)")
    e(f"v_and_b32 v67, 15, v{vLane}")
    e("v_mul_u32_u24 v67, 12, v67")
    e(f"v_cmp_gt_u32 vcc, s{sLW}, v67")
    e(f"v_add_u32 v66, s{sJ0}, v67")
    e("v_lshrrev_b32 v68, 4, v0")
    e(f"s_mov_b32 s{sT0}, {8*CHB}")
    e(f"v_mul_u32_u24 v68, s{sT0}, v68")
    e("v_add3_u32 v68, v68, v66, -1")
    e("v_mov_b32 v69, 0xffff")
    e("v_cndmask_b32 v66, v69, v66, vcc")
    e("v_mov_b32 v71, 192")
    e("v_and_b32 v64, 0x1f0, v0")
    e("v_lshlrev_b32 v64, 6, v64")
    e(f"s_lshr_b32 s{sT0}, s2, 5")
    e(f"s_lshl_b32 s{sT0}, s{sT0}, 15")
    e(f"s_and_b32 s{sT1}, s2, 31")
    e(f"s_lshl_b32 s{sT1}, s{sT1}, 2")
    e(f"s_add_u32 s{sT0}, s{sT0}, s{sT1}")
    e(f"s_mov_b32 s{sCnt}, 0x40000")
    pt('poll')
    c("wait for the run tables of this wave's 32 producers")
    sd = "dst_sel:DWORD dst_unused:UNUSED_PAD "
    vRa = 84
    for i in range(8):
        e(f"s_mov_b64 {sr(sMk+2*i,2)}, 0")
    e("K2_POLL:")
    for i in range(8):
        e(f"buffer_load_dword v{vTe+i}, v64, {sr(sWs,4)}, s{sT0} offen offset:{i*128} sc1")
    e("s_waitcnt vmcnt(0)")
    e(f"v_bitop3_b32 v69, v{vTe}, v{vTe+1}, v{vTe+2} bitop3:0x80")
    e(f"v_bitop3_b32 v70, v{vTe+3}, v{vTe+4}, v{vTe+5} bitop3:0x80")
    e(f"v_bitop3_b32 v69, v69, v{vTe+6}, v{vTe+7} bitop3:0x80")
    e(f"v_bitop3_b32 v69, v69, v70, 1 bitop3:0x80")
    e("v_cmp_eq_u32 s[76:77], 0, v69")
    pt('go')
    c("fetch the runs that have been published since the last look (a cleared word has count 0)")
    e(f"s_mov_b32 s{sT1}, {WS_REC}")
    for i in range(8):
        e(f"v_cmp_lt_u32_sdwa vcc, v66, v{vTe+i} src0_sel:DWORD src1_sel:WORD_1")
        e(f"v_add_u32_sdwa v{vRa+i}, v68, v{vTe+i} {sd}src0_sel:DWORD src1_sel:WORD_0")
        e(f"s_andn2_b64 exec, vcc, {sr(sMk+2*i,2)}")
        e(f"buffer_load_dwordx3 {vr(192+4*i,3)}, v{vRa+i}, {sr(sWs,4)}, s{sT1} offen sc1")
        e(f"s_mov_b64 {sr(sMk+2*i,2)}, vcc")
        e("s_mov_b64 exec, -1")
        if i < 7:
            e(f"s_add_u32 s{sT1}, s{sT1}, {CHB}")
    e("s_cmp_eq_u64 s[76:77], 0")
    e("s_cbranch_scc1 K2_GO")
    e(f"s_sub_u32 s{sCnt}, s{sCnt}, 1")
    e("s_cbranch_scc1 K2_END")
    e(f"s_sleep {OPT['slp']}")
    e("s_branch K2_POLL")
    e("K2_GO:")
    c("records past the 16th of a run: packed per 16-lane group into two more slots")
    def ovf(vj, extra):
        e("v_mov_b32 v72, 0")
        e("v_mov_b32 v73, 0")
        for i in range(8):
            e(f"v_sub_u32_sdwa v69, v{vTe+i}, v71 clamp {sd}src0_sel:WORD_1 src1_sel:DWORD")
            e(f"v_add_u32 v74, v{vj}, v72")
            e(f"s_mov_b32 s{sT0}, {192+extra+i*CHB}")
            e("v_cmp_lt_u32 vcc, v74, v69")
            e(f"v_add3_u32 v75, v{vRa+i}, v72, s{sT0}")
            e("v_sub_u32 v72, v72, v69")
            e("v_cndmask_b32 v73, v73, v75, vcc")
    ovf(67, 0)
    e("v_add_u32 v74, v67, v72")
    e("v_add_u32 v75, 192, v74")
    e("v_add_u32 v69, 384, v72")
    e(f"v_cmp_gt_i32 {sr(sMk+16,2)}, 0, v74")
    e(f"v_cmp_gt_i32 {sr(sMk+18,2)}, 0, v75")
    e("v_cmp_gt_i32 s[76:77], 0, v69")
    e(f"v_max3_u32 v69, v{vTe}, v{vTe+1}, v{vTe+2}")
    e(f"v_max3_u32 v70, v{vTe+3}, v{vTe+4}, v{vTe+5}")
    e(f"v_max3_u32 v69, v69, v{vTe+6}, v{vTe+7}")
    e("v_max_u32 v69, v69, v70")
    e(f"s_add_u32 s{sT1}, s{sJ0}, s{sLW}")
    e(f"s_lshl_b32 s{sT1}, s{sT1}, 16")
    e(f"s_or_b32 s{sT1}, s{sT1}, 0xffff")
    e(f"v_cmp_lt_u32 vcc, s{sT1}, v69")
    e(f"s_mov_b32 s{sCnt}, {WS_REC}")
    e(f"s_cmp_eq_u32 s{sLW}, 384")
    e(f"s_cselect_b64 {sr(sMk+16,2)}, {sr(sMk+16,2)}, 0")
    e(f"s_cselect_b64 {sr(sMk+18,2)}, {sr(sMk+18,2)}, 0")
    e("s_cselect_b64 s[76:77], s[76:77], vcc")
    e(f"s_mov_b64 exec, {sr(sMk+16,2)}")
    e(f"buffer_load_dwordx3 v[224:226], v73, {sr(sWs,4)}, s{sCnt} offen sc1")
    e("s_mov_b64 exec, -1")
    e(f"s_cmp_lg_u64 {sr(sMk+18,2)}, 0")
    e("s_cbranch_scc1 K2_OVF2")
    e("K2_OVFD:")
    e("v_mov_b32 v66, 4")
    e("v_mov_b32 v67, 0")
    e("s_mov_b64 exec, s[76:77]")
    e(f"ds_write_b32 v67, v66 offset:{MORE}")
    e("s_mov_b64 exec, -1")
    for r in range(16):
        e(f"v_mov_b32 v{vAcc+r}, 0")
    c("scan / meta lane constants while the records are in flight")
    e(f"v_lshl_add_u32 v8, v{vLane}, 1, s{sBase}")
    e("v_add_u32 v9, 1, v8")
    e("v_and_b32 v8, 127, v8")
    e("v_and_b32 v9, 127, v9")
    e("v_lshlrev_b32 v8, 2, v8")
    e("v_lshlrev_b32 v9, 2, v9")
    e(f"s_add_u32 s{sT0}, s{sNN}, 7")
    e(f"v_lshlrev_b32 v10, 1, v{vLane}")
    e("v_add_u32 v11, 1, v10")
    e(f"v_cmp_gt_u32 vcc, s{sT0}, v10")
    e(f"v_cmp_gt_u32 s[76:77], s{sT0}, v11")
    e("v_lshrrev_b32 v12, 2, v0")
    e("v_cndmask_b32 v10, 0, 16, vcc")
    e("v_cndmask_b32 v11, 0, 16, s[76:77]")
    e(f"v_cmp_gt_u32 vcc, s{sT0}, v12")
    e(f"v_cmp_gt_u32 s[76:77], s{sNN}, v12")
    e(f"v_add_u32 v13, s{sBase}, v12")
    e("v_cndmask_b32 v14, 0, 16, vcc")
    e("v_and_b32 v13, 127, v13")
    e("v_lshlrev_b32 v13, 2, v13")
    e(f"v_mul_u32_u24 v15, {RST}, v12")
    e(f"v_mov_b32 v64, {NOROW:#x}")
    e("v_cndmask_b32 v15, v64, v15, s[76:77]")
    e("v_cndmask_b32 v12, 0, v12, s[76:77]")
    e(f"v_mul_u32_u24 v12, {AST}, v12")
    e(f"s_mul_i32 s{sT0}, s{sWave}, 640")
    e(f"v_add_u32 v64, s{sT0}, v{vLane}")
    e(f"s_mov_b32 s{sEr}, {ER}")
    e(f"v_lshl_add_u32 v65, v64, 3, s{sEr}")
    e("v_lshlrev_b32 v64, 16, v64")
    e(f"s_mov_b32 s{sT0}, 0xffff")
    for j in range(4):
        e(f"v_mov_b32 v{vN+j}, 0")
        e(f"v_mov_b32 v{vP+j}, 1.0")
        e(f"v_mov_b32 v{24+j}, 1.0")
    for q in range(10):
        r = 192 + 4 * q
        e(f"s_mov_b64 exec, {sr(sMk+2*q,2)}")
        if q < 9: e(f"s_waitcnt vmcnt({8-q})")
        e(f"v_lshrrev_b32 v{112+q}, 16, v{r+2}")
        e(f"ds_add_rtn_u32 v{r+3}, v{112+q}, v66 offset:{CNT}")
        e(f"ds_write_b64 v65, {vr(r,2)} offset:{512*q}")
        e(f"v_and_or_b32 v{r+2}, v{r+2}, s{sT0}, v64")
        if q: e(f"v_add_u32 v{r+2}, {q<<22:#x}, v{r+2}")
    e("s_mov_b64 exec, -1")
    e("s_waitcnt lgkmcnt(0)")
    e("s_barrier")
    pt('hist')
    c("---- scan (every wave, redundantly) ----")
    e(f"ds_read_b32 v64, v8 offset:{CNT}")
    e(f"ds_read_b32 v65, v9 offset:{CNT}")
    e(f"ds_read_b32 v68, v67 offset:{MORE}")
    prefetch_all(OPT['pfb'], 8*OPT['pfa'], 19)
    e("s_waitcnt lgkmcnt(1)")
    e(f"s_cmp_eq_u32 s{sFirst}, 0")
    e("s_cbranch_scc1 K2_NOU")
    for it in range(2):
        e(f"ds_read_b128 {vr(vV+8*it,4)}, v{vTl} offset:{128*it}")
        e(f"ds_read_b128 {vr(vV+8*it+4,4)}, v31 offset:{128*it}")
    e("K2_NOU:")
    e("v_add_u32 v69, 15, v64")
    e("v_add_u32 v70, 15, v65")
    e("v_and_b32 v69, -16, v69")
    e("v_and_b32 v70, -16, v70")
    e("v_max_u32 v69, v69, v10")
    e("v_max_u32 v70, v70, v11")
    e("v_add_u32 v71, v69, v70")
    e("v_mov_b32 v72, v71")
    scan64(72)
    e("v_sub_u32 v73, v72, v71")
    e("v_add_u32 v74, v73, v69")
    e(f"v_readlane_b32 s{sQt}, v72, 63")
    e("v_lshl_or_b32 v64, v64, 16, v73")
    e("v_lshl_or_b32 v65, v65, 16, v74")
    e(f"ds_write_b32 v8, v64 offset:{BI}")
    e(f"ds_write_b32 v9, v65 offset:{BI}")
    e("v_max_u32 v69, v69, v70")
    e(f"s_lshr_b32 s{sTt}, s{sQt}, 7")
    pt('s1')
    e(f"ds_read_b32 v64, v13 offset:{BI}")
    for q in range(10):
        e(f"s_mov_b64 exec, {sr(sMk+2*q,2)}")
        e(f"ds_read_u16 v{112+q}, v{112+q} offset:{BI}")
    e("s_mov_b64 exec, -1")
    e("s_waitcnt lgkmcnt(13)")
    e(f"v_readfirstlane_b32 s{sMore}, v68")
    e(f"s_cmp_gt_u32 s{sQt}, {CAP*4}")
    e(f"s_cselect_b32 s{sT0}, 1, s{sMore}")
    e(f"s_cmp_eq_u32 s{sLW}, 384")
    e(f"s_cselect_b32 s{sT0}, s{sT0}, 0")
    e(f"s_cmp_lg_u32 s{sT0}, 0")
    e("s_cbranch_scc1 K2_FAIL")
    c("pads")
    e("v_and_b32 v65, 3, v0")
    e(f"v_mov_b32 v70, {PADV:#x}")
    e("s_waitcnt lgkmcnt(10)")
    e("v_lshrrev_b32 v68, 16, v64")
    e("v_and_b32 v64, 0xffff, v64")
    e("v_add_u32 v74, 15, v68")
    e("v_and_b32 v74, -16, v74")
    e("v_max_u32 v74, v74, v14")
    e("v_lshl_add_u32 v68, v65, 2, v68")
    e("v_cmp_lt_u32 s[76:77], v68, v74")
    e("v_add_u32 v68, v68, v64")
    e("s_mov_b64 exec, s[76:77]")
    e(f"ds_write_b32 v68, v70 offset:{M4}")
    e("s_waitcnt lgkmcnt(1)")
    pt('s2')
    c("---- scatter: index words first ----")
    for q in range(10):
        r = 192 + 4 * q
        e(f"s_mov_b64 exec, {sr(sMk+2*q,2)}")
        e(f"v_add_u32 v{112+q}, v{112+q}, v{r+3}")
        e(f"ds_write_b32 v{112+q}, v{r+2} offset:{M4}")
    e("s_mov_b64 exec, -1")
    pt('s3')
    e(f"s_lshr_b32 s{sT0}, s{sTt}, 3")
    e(f"s_and_b32 s{sT1}, s{sTt}, 7")
    e(f"s_lshl_b32 s{sT2}, s{sT0}, 6")
    e(f"v_cmp_lt_u32 vcc, s{sT2}, v69")
    e(f"s_mul_i32 s{sQw}, s{sT0}, s{sWave}")
    e(f"s_min_u32 s{sT2}, s{sT1}, s{sWave}")
    e(f"s_add_u32 s{sQw}, s{sQw}, s{sT2}")
    e(f"s_lshl_b32 s{sQw}, s{sQw}, 3")
    e(f"s_cmp_lt_u32 s{sWave}, s{sT1}")
    e(f"s_addc_u32 s{sNT}, s{sT0}, 0")
    e(f"s_or_b32 s{sBig}, vcc_lo, vcc_hi")
    e(f"s_lshl_b32 s{sT0}, s{sNT}, 2")
    e(f"v_bfe_u32 v66, v{vLane}, 3, 1")
    e(f"v_lshrrev_b32 v69, 4, v{vLane}")
    e(f"v_mad_u32_u24 v66, v66, s{sT0}, v69")
    e(f"v_add_lshl_u32 v{vIxA}, v66, s{sQw}, 4")
    e(f"v_lshrrev_b32 v67, 5, v{vLane}")
    e(f"v_mul_u32_u24 v66, s{sT0}, v67")
    e(f"v_add_u32 v66, s{sQw}, v66")
    e(f"v_bfe_u32 v69, v{vLane}, 2, 2")
    e(f"v_add_lshl_u32 v{vQaA}, v66, v69, 1")
    e(f"s_mov_b32 m0, s{sStg}")
    e(f"s_mov_b32 s{sDum}, {NOROW:#x}")
    e("s_waitcnt lgkmcnt(0)")
    e("s_barrier")
    pt('scat')
    for x in rd_idx(): e(x)
    e(f"v_add_u32 v{vIxA}, 64, v{vIxA}")
    e(f"v_lshlrev_b32 v{vWkA}, 3, v66")
    c("quad meta: thread = (node, k0)")
    e("v_lshrrev_b32 v69, 4, v74")
    e("v_lshrrev_b32 v64, 4, v64")
    e("v_cmp_eq_u32 vcc, 0, v65")
    e("v_add_lshl_u32 v68, v64, v65, 3")
    e("v_add_u32 v70, -1, v69")
    e("v_cndmask_b32 v73, -1, 0, vcc")
    e(f"v_or_b32 v71, {NONLAST:#x}, v15")
    e("v_lshrrev_b32 v64, 2, v68")
    def blk_dma():
        for x in mads() + dma() + rd_idx(): e(x)
        e(f"v_add_u32 v{vIxA}, 64, v{vIxA}")
    def blk_qm(t):
        for u in range(3):
            e("v_cmp_lt_u32 vcc, v65, v69")
            e("v_cmp_eq_u32 s[76:77], v65, v70")
            e("s_and_b64 exec, exec, vcc")
            e(f"ds_write_b16 v64, v12 offset:{QA+8*u}")
            e("v_add_u32 v65, 4, v65")
            e("v_cndmask_b32 v72, v71, v15, s[76:77]")
            e(f"ds_write_b64 v68, v[72:73] offset:{QWK+32*u}")
            if u == 0: e("v_mov_b32 v73, -1")
        e(f"K2_QM{t}:")
        e("v_cmp_lt_u32 vcc, v65, v69")
        e("v_cmp_eq_u32 s[76:77], v65, v70")
        e("s_and_b64 exec, exec, vcc")
        e(f"s_cbranch_execz K2_QMD{t}")
        e(f"ds_write_b16 v64, v12 offset:{QA+24}")
        e("v_add_u32 v65, 4, v65")
        e("v_cndmask_b32 v72, v71, v15, s[76:77]")
        e(f"ds_write_b64 v68, v[72:73] offset:{QWK+96}")
        e("v_add_u32 v68, 32, v68")
        e("v_add_u32 v64, 8, v64")
        e(f"s_branch K2_QM{t}")
        e(f"K2_QMD{t}:")
        e("s_mov_b64 exec, -1")
        e("s_waitcnt lgkmcnt(0)")
    e(f"s_cmp_ge_u32 s{sWave}, 4")
    e("s_cbranch_scc1 K2_ORD_B")
    e("s_waitcnt lgkmcnt(0)")
    blk_dma(); blk_qm('a')
    e("s_barrier")
    e("s_branch K2_ORD_J")
    e("K2_ORD_B:")
    blk_qm('b')
    e("s_barrier")
    blk_dma()
    e("K2_ORD_J:")
    pt('meta')
    e(f"v_bfe_u32 v8, v{vLane}, 2, 1")
    e(f"v_bfe_u32 v9, v{vLane}, 3, 2")
    e(f"v_mad_u32_u24 v8, v8, s{sT0}, v9")
    e(f"v_add_lshl_u32 v8, v8, s{sQw}, 2")
    e(f"v_and_or_b32 v8, v{vLane}, 3, v8")
    e(f"v_lshlrev_b32 v{vAqA}, 2, v8")
    for x in rd_qa() + rd_mr(0): e(x)
    e(f"v_add_u32 v{vQaA}, 8, v{vQaA}")
    e(f"s_cmp_eq_u32 s{sFirst}, 0")
    e(f"s_cbranch_scc1 K2_NOV")
    for r in range(8):
        e(f"v_lshlrev_b32 v8, 16, v{vXo+r}")
        e(f"v_and_b32 v9, 0xffff0000, v{vXo+r}")
        e(f"v_add_f32 v{vV+2*r}, v{vV+2*r}, v8")
        e(f"v_add_f32 v{vV+2*r+1}, v{vV+2*r+1}, v9")
    e(f"K2_NOV:")
    e("s_waitcnt lgkmcnt(0)")
    e(AQV); e(AEV)
    for x in rd_bq(0) + rd_bq(1) + rd_aq() + rd_qa() + rd_mr(64): e(x)
    for r in range(8, 16):
        e(f"v_mov_b32 v{r}, 0")
    for j in range(4):
        e(f"v_mov_b32 v{vS+j}, 0")
        e(f"v_mov_b32 v{vWK+2*j}, {NOROW:#x}")
    for x in mads(): e(x)
    e(f"v_add_u32 v{vAqA}, 64, v{vAqA}")
    e(f"s_mov_b32 s{sCnt}, s{sNT}")
    e("s_waitcnt vmcnt(0)")
    pt('f4')
    for x in rd_x(): e(x)
    e(f"s_cmp_eq_u32 s{sNT}, 0")
    e("s_cbranch_scc1 K2_DRAIN")
    ms = mfmas(0); dm = dma()
    e("s_waitcnt lgkmcnt(4)")
    e(ms[0])
    e("s_waitcnt lgkmcnt(0)")
    for k in range(1, 9):
        e(ms[k])
        if k <= 4: e(dm[k-1])
        if k == 5: e(rd_idx()[0])
    e("s_waitcnt lgkmcnt(0)")
    e("s_nop 3")
    if not OPT['tl']: stamp(6)
    if OPT['role']:
        role_loops()
    else:
        e(".p2align 6")
        e("K2_LOOP:")
        loop_body()
    e("K2_DRAIN:")
    e("s_setprio 0")
    for x in rcps(): e(x)
    e(f"v_and_b32 v{vTl}, 0x7fffffff, v{vWK+6}")
    for x in cmps(): e(x)
    for x in chain(1): e(x)
    for x in mwrites(): e(x)
    stamp(7)
    c("---- tails ----")
    e(f"v_cmp_gt_i32 s[76:77], 0, v{vWK+6}")
    e("v_lshrrev_b32 v10, 2, v0")
    e(f"v_cmp_gt_u32 s[78:79], s{sNN}, v10")
    eps = f32(1e-6 * 2.0**(2*SC))
    e(f"v_mov_b32 v9, {eps}")
    e("v_and_b32 v8, 2, v0")
    e("v_lshlrev_b32 v8, 6, v8")
    e(f"v_sub_u32 v8, v{vRow}, v8")
    e("s_waitcnt lgkmcnt(0)")
    e("s_barrier")
    pt('e0')
    e("s_mov_b64 exec, s[76:77]")
    e(f"s_cmp_lg_u32 s{sBig}, 0")
    e("s_cbranch_scc1 K2_TAILAT")
    e(f"ds_read_b128 v[64:67], v{vTl}")
    e("s_waitcnt lgkmcnt(0)")
    for i in range(4):
        e(f"v_add_f32 v{64+i}, v{64+i}, v{vAcc+12+i}")
    e(f"ds_write_b128 v{vTl}, v[64:67]")
    e("K2_TAILD:")
    e("s_mov_b64 exec, -1")
    c("---- epilogue ----")
    e(f"s_cmp_eq_u32 s{sMore}, 0")
    e(f"s_cselect_b32 s{sT1}, s{sFirst}, 0")
    e(f"s_cmp_eq_u32 s{sT1}, 0")
    e("s_waitcnt lgkmcnt(0)")
    pt('e1')
    e("s_barrier")
    pt('e2')
    if OPT['em']: e("s_mov_b64 exec, s[78:79]")
    for k in range(8):
        e(f"ds_read_b128 {vr(192+4*k,4)}, v{vRow if k<4 else 8} offset:{16*k}")
    e("s_cbranch_scc1 K2_SLOWTOT")
    e("K2_FIN:")
    e("s_mov_b64 exec, s[78:79]")
    e("s_cbranch_execz K2_DONE")
    for k in range(8):
        e(f"s_waitcnt lgkmcnt({7-k})")
        e(f"v_add_f32 v{192+4*k}, v{192+4*k}, v9")
        e(f"v_add_f32 v{194+4*k}, v{194+4*k}, v9")
    pt('e3')
    for it in range(2):
        for k in range(8):
            e(f"v_rcp_f32 v{192+4*k+2*it}, v{192+4*k+2*it}")
        e("s_nop 0")
        for k in range(8):
            e(f"v_fmac_f32 v{vV+8*it+k}, v{192+4*k+2*it}, v{193+4*k+2*it}")
        for k in range(4):
            e(f"v_cvt_pk_bf16_f32 v{112+4*it+k}, v{vV+8*it+2*k}, v{vV+8*it+2*k+1}")
        c("x + relu(z) = max(x + z, x); bf16 patterns order like f16 patterns")
        for k in range(4):
            e(f"v_pk_max_f16 v{112+4*it+k}, v{112+4*it+k}, v{vXo+4*it+k}")
        e(f"buffer_store_dwordx4 {vr(112+4*it,4)}, v{vOut}, {sr(sOut,4)}, 0 offen offset:{64*it}" + FL[OPT['ost']])
    e("K2_DONE:")
    if OPT['stamp']:
        e("s_mov_b64 exec, -1")
        stamp(8)
        diag_out(1, 9, sWave, sWs, sNT)
    e("K2_END:")
    e("s_endpgm")
    c("---- wave 7, phase 1: ready count, scaled wb / wc rows, run table words ----")
    e("P1_W7A:")
    p1_scan()
    e(f"s_cmp_lt_u32 s3, {NCL}")
    e("s_cbranch_scc0 P1_NOF")
    e(f"s_lshl_b32 s{sT0}, s3, {2 if NCL<=64 else (1 if NCL==128 else 0)}")
    e("v_mov_b32 v76, 1")
    e("s_mov_b64 exec, 1")
    e("s_waitcnt vmcnt(0)")
    if OPT['cat']:
        e(f"buffer_atomic_add v76, v74, {sr(sWc,4)}, s{sT0} offen sc1")
    else:
        e(f"buffer_store_{'dword' if NCL<=64 else ('short' if NCL==128 else 'byte')} v76, v74, {sr(sWc,4)}, s{sT0} offen sc1")
    e("s_mov_b64 exec, -1")
    e("P1_NOF:")
    srd(68, 64, 512)
    e(f"buffer_load_dwordx4 v[224:227], v68, s[68:71], 0 offen")
    side_copies()
    for i in range(4):
        e(f"v_lshl_or_b32 v{244+i}, v{240+i}, 16, v{244+i}")
        e(f"v_or_b32 v{244+i}, 1, v{244+i}")
    e("s_branch P1_J")
    e("P1_W7B:")
    mid(NR)
    scale8(224, 4)
    c("lanes 32..63 hold flag rows (0, R, 0, 0); lanes 0..31 the wc' rows")
    e(f"v_lshrrev_b32 v73, 3, v{vLane}")
    e("v_cmp_eq_u32 vcc, 5, v73")
    e(f"v_mov_b32 v72, {(RFLAG>>16)*0x10001:#x}")
    e(f"v_xor_b32 v73, 512, v68")
    for r in range(4):
        e(f"v_cndmask_b32 v{224+r}, v{224+r}, v72, vcc")
    if OPT['cz']:
        bz = struct.unpack("<I", struct.pack("<f", -2.0 * SC))[0] >> 16
        e("s_bfm_b64 exec, 8, 48")
        for r in range(4):
            e(f"v_mov_b32 v{224+r}, {bz*0x10001:#x}")
        e("s_mov_b64 exec, -1")
    e(f"v_add_u32 v73, {WCT}, v73")
    e("ds_write_b128 v73, v[224:227]")
    c("the whole table must have been cleared before anything is published or trusted")
    e(f"v_and_b32 v74, {min(NCL,64)-1}, v{vLane}")
    e("v_lshlrev_b32 v74, 2, v74")
    e(f"s_mov_b32 s{sCnt}, 0x40000")
    if OPT['ra']: e("s_waitcnt vmcnt(0)")
    e("P1_POLL:")
    e(f"buffer_load_dword v76, v74, {sr(sWc,4)}, 0 offen" + FL[OPT['pl_']])
    e("s_waitcnt vmcnt(0)")
    e(f"v_cmp_ne_u32 vcc, {1 if NCL<=64 else (0x10001 if NCL==128 else 0x01010101)}, v76")
    e(f"s_sub_u32 s{sCnt}, s{sCnt}, 1")
    e("s_cbranch_scc1 K2_END")
    e("s_cmp_eq_u64 vcc, 0")
    e("s_cbranch_scc1 P1_RDY")
    e("s_sleep 8")
    e("s_branch P1_POLL")
    c("---- rare paths ----")
    e("K2_OVF2:")
    e("v_add_u32 v70, 192, v67")
    ovf(70, 192)
    e(f"s_mov_b64 exec, {sr(sMk+18,2)}")
    e(f"buffer_load_dwordx3 v[228:230], v73, {sr(sWs,4)}, s{sCnt} offen sc1")
    e("s_mov_b64 exec, -1")
    e("s_waitcnt vmcnt(0)")
    e("s_branch K2_OVFD")
    e("K2_NEXT:")
    e("v_lshlrev_b32 v64, 2, v0")
    e("v_mov_b32 v66, 0")
    e("s_movk_i32 s42, 132")
    e("v_cmp_gt_u32 vcc, s42, v0")
    e("s_mov_b64 exec, vcc")
    e(f"ds_write_b32 v64, v66 offset:{CNT}")
    e("s_mov_b64 exec, -1")
    e("s_waitcnt lgkmcnt(0)")
    e("s_barrier")
    e("s_branch K2_ROUND")
    e("K2_TAILAT:")
    for i in range(4):
        e(f"ds_add_f32 v{vTl}, v{vAcc+12+i} offset:{4*i}")
    e("s_branch K2_TAILD")
    e("K2_FAIL:")
    e(f"s_movk_i32 s{sLW}, 144")
    e("s_waitcnt vmcnt(0) lgkmcnt(0)")
    e("s_barrier")
    e("s_branch K2_NEXT")
    e("K2_SLOWTOT:")
    e("s_mov_b64 exec, -1")
    e("v_lshlrev_b32 v14, 7, v0")
    e(f"s_lshl_b32 s{sT1}, s2, 16")
    e(f"s_add_u32 s{sT1}, s{sT1}, {WS_TOT}")
    e("s_waitcnt lgkmcnt(0)")
    e(f"s_cmp_lg_u32 s{sFirst}, 0")
    e("s_cbranch_scc1 K2_ST1")
    for r in range(8):
        e(f"buffer_load_dwordx4 {vr(224+4*r,4)}, v14, {sr(sWs,4)}, s{sT1} offen offset:{16*r} sc1")
    e("s_waitcnt vmcnt(0)")
    for r in range(32):
        e(f"v_add_f32 v{192+r}, v{192+r}, v{224+r}")
    e(f"s_cmp_eq_u32 s{sMore}, 0")
    e("s_cbranch_scc1 K2_FIN")
    e("K2_ST1:")
    for r in range(8):
        e(f"buffer_store_dwordx4 {vr(192+4*r,4)}, v14, {sr(sWs,4)}, s{sT1} offen offset:{16*r} sc1")
    e(f"s_mov_b32 s{sFirst}, 0")
    e(f"s_add_u32 s{sJ0}, s{sJ0}, s{sLW}")
    e("s_waitcnt vmcnt(0)")
    e("s_barrier")
    e("s_branch K2_NEXT")

def hi_pure(nt, prio, first=(), after=0):
    e(f"s_setprio {prio}")
    ms = mfmas(1 - nt); av = list(first) + avals(nt)
    tr = rcps() + exps(nt)
    per = (3, 3, 3, 3, 3, 3, 2, 2, 2); fl = [0, 0, 0, 0, 0, 0, 2, 2, 2]
    t = 0; f = 0
    for g in range(9):
        e(ms[g])
        seq = [tr[t + i] for i in range(per[g])]; t += per[g]
        fs = [av[f + i] for i in range(fl[g])]; f += fl[g]
        while seq or fs:
            if seq: e(seq.pop(0))
            if fs: e(fs.pop(0))
    e(f"s_setprio {after}")
    assert f >= len(first)
    return av[f:]

def lo_part(nt, rest, adds):
    for y in list(rest) + chain(1 - nt) + list(adds) + frac(nt): e(y)

sEr = 42
sWm = 68
sDum = 43
def cmps(): return [f"v_cmp_gt_u32 {sr(sWm+2*j,2)}, s{sDum}, v{vWK+2*j}" for j in range(4)]
def mwrites():
    if not OPT['mw']: return writes()
    o = []
    for j, w in enumerate(writes()):
        o += [f"s_mov_b64 exec, {sr(sWm+2*j,2)}", w]
    return o + ["s_mov_b64 exec, -1"]

TL = [0]
def tl():
    if OPT['tl']:
        e(f"s_memtime {sr(44+2*TL[0],2)}"); TL[0] += 1
def tl_dump(lab):
    if not OPT['tl']: return
    n = TL[0]; TL[0] = 0
    e(f"s_cmp_lg_u32 s{sCnt}, {OPT['tl']}")
    e(f"s_cbranch_scc1 {lab}")
    e("s_waitcnt lgkmcnt(0)")
    for i in range(n):
        e(f"s_mov_b32 s{sSt+2+2*i}, s{44+2*i}")
    e(f"{lab}:")
def hi_last(prio, first, after):
    e(f"s_setprio {prio}")
    for y in rcps() + list(first) + exps(1): e(y)
    e(f"s_setprio {after}")
    return avals(1)

def role_loops():
    aIx = f"v_add_u32 v{vIxA}, 64, v{vIxA}"; aAq = f"v_add_u32 v{vAqA}, 64, v{vAqA}"
    aW = [f"v_add_u32 v{vWK+2*j}, v{vWK+2*j}, v{vN16}" for j in range(4)]
    aWk = f"v_add_u32 v{vWkA}, 32, v{vWkA}"; aQa = f"v_add_u32 v{vQaA}, 8, v{vQaA}"
    cm = cmps()
    for j in range(4):
        e(f"s_mov_b64 {sr(sWm+2*j,2)}, 0")
    e(f"v_subrev_u32 v{vWkA}, 32, v{vWkA}")
    e(f"s_cmp_ge_u32 s{sWave}, 4")
    e("s_cbranch_scc1 KB_PRE")
    e("s_branch KA_ENTRY")
    e(".p2align 6")
    e("KA_LOOP:")
    tail = (cm + avals(1))[6:]
    e("s_waitcnt lgkmcnt(0)")
    lo_part(1, tail, aW)
    e("KA_ENTRY:")
    tl()
    r = hi_pure(0, OPT['pa'], mads() + [AEV, AQV])
    tl()
    e("s_waitcnt vmcnt(0)")
    for y in rd_x() + rd_aq() + rd_bq(0) + rd_bq(1): e(y)
    e(f"s_sub_u32 s{sCnt}, s{sCnt}, 1")
    e(f"s_cmp_eq_u32 s{sCnt}, 0")
    e(f"s_waitcnt lgkmcnt({4 if OPT['cz'] else 3})")
    for y in dma(): e(y)
    e("s_waitcnt lgkmcnt(0)")
    tl()
    lo_part(0, r, [aIx, aAq, aWk, aQa])
    e("s_cbranch_scc1 KA_LAST")
    tl()
    hi_pure(1, OPT['pa'], cm)
    tl()
    for y in mwrites() + rd_wk() + rd_qa() + rd_idx() + rd_mr(0): e(y)
    tl()
    tl_dump("KA_TL")
    if OPT['trace']: trace_code()
    e("s_branch KA_LOOP")
    e("KA_LAST:")
    r = hi_last(OPT['pa'], cm, 0)
    for y in mwrites() + rd_wk(): e(y)
    e("s_waitcnt lgkmcnt(0)")
    lo_part(1, r, aW)
    e("s_branch K2_DRAIN")
    e("KB_PRE:")
    e(f"v_subrev_u32 v{vAqA}, 64, v{vAqA}")
    e(".p2align 6")
    e("KB_LOOP:")
    tl()
    r = hi_pure(0, OPT['pb'], mads() + [AEV, AQV], OPT['pl'])
    tl()
    lo_part(0, r, [aIx, aQa, aWk, aAq][:OPT['bal']])
    tl()
    e("s_waitcnt vmcnt(0)")
    for y in rd_x() + rd_aq() + rd_bq(0) + mwrites() + rd_wk(): e(y)
    e(f"s_sub_u32 s{sCnt}, s{sCnt}, 1")
    e(f"s_cmp_eq_u32 s{sCnt}, 0")
    e("s_cbranch_scc1 KB_LAST")
    e("s_waitcnt lgkmcnt(6)")
    for y in dma(): e(y)
    e("s_waitcnt lgkmcnt(0)")
    tl()
    r = hi_pure(1, OPT['pb'], cm, OPT['pl'])
    tl()
    lo_part(1, r, aW + [aIx, aQa, aWk, aAq][OPT['bal']:])
    tl()
    for y in rd_bq(1) + rd_qa() + rd_idx() + rd_mr(64): e(y)
    tl_dump("KB_TL")
    if OPT['trace']: trace_code()
    e("s_waitcnt lgkmcnt(0)")
    e("s_branch KB_LOOP")
    e("KB_LAST:")
    r = hi_last(OPT['pb'], [], OPT['pl'])
    e("s_waitcnt lgkmcnt(0)")
    lo_part(1, r, aW)

def trace_code():
    e("s_memtime s[44:45]")
    e("s_memrealtime s[46:47]")
    e(f"s_lshl_b32 s48, s2, 3")
    e(f"s_add_u32 s48, s48, s{sWave}")
    e(f"s_lshl_b32 s48, s48, 4")
    e(f"s_add_u32 s48, s48, s{sCnt}")
    e(f"s_lshl_b32 s48, s48, 3")
    e(f"s_add_u32 s48, s48, {WS_DIAG+0x80000}")
    e("s_waitcnt lgkmcnt(0)")
    e("v_mov_b32 v8, s44")
    e("v_mov_b32 v9, s46")
    e("v_mov_b32 v10, 0")
    e("s_mov_b64 exec, 1")
    e(f"buffer_store_dwordx2 v[8:9], v10, {sr(sWs,4)}, s48 offen")
    e("s_mov_b64 exec, -1")

def loop_body():
    global L
    n0 = len(L)
    loop_body0()
    k = OPT['kill']
    body = L[n0:]; del L[n0:]
    for l in body:
        t = l.strip()
        if k & 1 and t.startswith('ds_read'): continue
        if k & 2 and t.startswith('ds_write'): continue
        if k & 4 and t.startswith('buffer_load'): continue
        if k & 8 and t.startswith('s_waitcnt') and not OPT['trace']: continue
        if k & 16 and t.startswith('v_add_u32'): continue
        if k & 32 and t.startswith('v_fmaak'): l = l.replace('v_fmaak_f32','v_mul_f32').rsplit(',',1)[0]
        if k & 64 and t.startswith('v_fma_f32'): l = l.replace('v_fma_f32','v_mul_f32').rsplit(',',1)[0]
        if k & 128 and t.startswith('v_and_b32'): continue
        L.append(l)
def loop_body0():
    e("s_setprio 1")
    ex = [[] for _ in range(9)]
    x = rd_x(); md = mads()
    ex[0] = rd_aq() + rd_bq(0)
    ex[1] = rd_bq(1) + ["s_waitcnt vmcnt(0)"]
    ex[2] = [x[0]]
    ex[4] = [x[1]]
    ex[5] = md[:2]
    ex[6] = [x[2]]
    ex[7] = md[2:]
    ex[8] = [x[3]]
    hi_phase(mfmas(1), rcps() + exps(0), ex)
    e("s_setprio 0")
    for y in mix(chain(1), avals(0)): e(y)
    e(f"v_add_u32 v{vIxA}, 64, v{vIxA}")
    e(f"v_add_u32 v{vAqA}, v{vAqA}, v{vAqI}")
    for y in frac(0): e(y)
    e("s_setprio 1")
    e("s_waitcnt lgkmcnt(0)")
    ex = [[] for _ in range(9)]
    w = writes(); d = dma(); wk = rd_wk()
    ex[0] = [d[0], w[0]]; ex[1] = [d[1], w[1]]; ex[2] = [d[2], w[2]]
    ex[4] = [d[3], w[3]]; ex[5] = wk; ex[7] = rd_qa() + [f"s_sub_u32 s{sCnt}, s{sCnt}, 1"]; ex[8] = rd_idx()
    hi_phase(mfmas(0), rcps() + exps(1), ex)
    e("s_setprio 0")
    av = avals(1)
    for y in av[:8]: e(y)
    e("s_waitcnt lgkmcnt(0)")
    for y in mix(chain(0), av[8:]): e(y)
    for j in range(4):
        e(f"v_add_u32 v{vWK+2*j}, v{vWK+2*j}, v{vN16}")
    e(f"v_add_u32 v{vWkA}, 32, v{vWkA}")
    e(f"v_add_u32 v{vQaV}, v{vQaV}, v{vQaC}")
    e(f"v_add_u32 v{vQaA}, 16, v{vQaA}")
    for y in frac(1): e(y)
    if OPT['trace']: trace_code()
    e(f"s_cmp_lg_u32 s{sCnt}, 0")
    e("s_cbranch_scc1 K2_LOOP")

def kd(name, vg, sg):
    L.extend([f".amdhsa_kernel {name}",
              f"  .amdhsa_next_free_vgpr {vg}",
              f"  .amdhsa_next_free_sgpr {sg}",
              f"  .amdhsa_accum_offset {(vg+3)//4*4}",
              "  .amdhsa_group_segment_fixed_size 0",
              "  .amdhsa_kernarg_size 96",
              "  .amdhsa_user_sgpr_count 2",
              "  .amdhsa_user_sgpr_kernarg_segment_ptr 1",
              "  .amdhsa_system_sgpr_workgroup_id_x 1",
              ".end_amdhsa_kernel"])

hdr = open("cdna_kernels/%s.s.ref" % NAME).read().split("\n")
for l in hdr:
    if l.startswith("; Override") : break
    L.append(l)
if OPT['lst']:
    L.append(f"; @launch kernel={NAME}_kernel grid=(256,1,1) block=(512,1,1) lds={K2_LDS}")
else:
    L.append(f"; @launch grid=(256,1,1) block=(512,1,1) lds={K2_LDS}")
L.append('.amdgcn_target "amdgcn-amd-amdhsa--gfx950"')
L.append(".text")
L.append(f".globl {NAME}_kernel")
L.append(f".type {NAME}_kernel,@function")
sSt = 82
for i, n in enumerate(OPT.get('pts', 'b2,b3,b4,go,hist').split(',')): PTS[n] = i + 1
k2()
L.append("K2_CODE_END:")
L.append('.section .rodata,"a"')
L.append(".p2align 6")
kd(f"{NAME}_kernel", 256, 102)
open(sys.argv[1], "w").write("\n".join(L) + "\n")
print("K2_LDS", K2_LDS, "ATAB", ATAB, "STG", STG, "ROWS", ROWS)
```

```python
import sys, struct

NAME = "standalone__edge_featured_mpnn_gatedgcn__graph"
OPT = dict(stamp=0, trace=0, stf=1, ldf=3, sched=0, remap=1, nodefirst=0, kill=0, pf=1, h1=4, dbg=0, alt=0, alt2=0, slp=10, rt=0, ost=0, role=1, fill=14, pa=2, pb=1, pl=3, wf=1, tl=0, mw=1, bt=-1, fb=0, peel=1, pf7=0, pfa=0, pfb=16, skp=2, dl=1, qu=3, lat=0, tlb=0, tw=0, rs=1, rl=1, pl_=1, ps=1, ncl=64, cat=0, wofs=0, bal=4, sp=0, ra=0, cz=1, co=0, cpf=0, em=1, bo=0, prog=1, bw=1, b64=0, wsk=1, wa=1, bd=1, eb=0, lst=0)
for a in sys.argv[2:]:
    k, v = a.split('=')
    OPT[k] = int(v) if k != 'pts' else v

L = []
def e(s=""): L.append("    " + s if s and not s.endswith(":") else s)
def c(s): L.append("    ; " + s)
def f32(x): return "0x%08x" % struct.unpack("<I", struct.pack("<f", x))[0]
def vr(a, n): return f"v[{a}:{a+n-1}]"
def sr(a, n): return f"s[{a}:{a+n-1}]"
FL = ["", " sc1", " sc0 sc1", " nt", " sc1 nt", " sc0 sc1 nt"]

N = 25000; E = 800000
CH = 3136
CHB = CH * 12
BM = 171799
BK = 6399988
WS_T = 0
WS_IMG = 0x40000
WS_REC = 0x80000 + OPT['wofs'] * 0x100000
WS_AU = 0xA00000
WS_TOT = 0x1100000
WS_DIAG = 0x2F00000
WS_SIZE = 0x10000000
LOG2E = 1.4426950408889634
NODE_WGS = 196
RFLAG = 0x21800000
sSt = 82

def srd(d, b, size, stride=0):
    e(f"s_mov_b32 s{d}, s{b}")
    e(f"s_and_b32 s{d+1}, s{b+1}, 0xffff")
    if stride:
        e(f"s_or_b32 s{d+1}, s{d+1}, {stride<<16:#x}")
    e(f"s_mov_b32 s{d+2}, {size}")
    e(f"s_mov_b32 s{d+3}, 0x20000")

def scan64(v):
    for m in ("row_shr:1 row_mask:0xf", "row_shr:2 row_mask:0xf", "row_shr:4 row_mask:0xf",
              "row_shr:8 row_mask:0xf", "row_bcast:15 row_mask:0xa", "row_bcast:31 row_mask:0xc"):
        e("s_nop 1")
        e(f"v_add_u32_dpp v{v}, v{v}, v{v} {m} bank_mask:0xf")

PTS = {}
def pt(name):
    if name in PTS: stamp(PTS[name])
def stamp(i):
    if OPT['stamp']:
        e(f"{'s_memrealtime' if OPT['rt'] else 's_memtime'} {sr(sSt+2*i,2)}")
        if i == 0:
            e(f"s_memrealtime {sr(sSt+18,2)}")
def diag_out(kidx, nst, swave, ssrd, extra=None, vt=8):
    if OPT['dbg']:
        e("s_memrealtime s[42:43]")
        e("s_load_dwordx2 s[44:45], s[0:1], 80")
        e("s_waitcnt lgkmcnt(0)")
        e(f"s_cmp_lg_u32 s2, {OPT['dbg']}")
        e(f"s_cbranch_scc1 K{kidx+1}_END")
        e(f"s_cmp_lg_u32 s{swave}, 5")
        e(f"s_cbranch_scc1 K{kidx+1}_END")
        e(f"s_add_u32 s44, s44, {512*(1-kidx)}")
        e("s_addc_u32 s45, s45, 0")
        srd(48, 44, 64)
        e(f"v_mov_b32 v{vt}, 0")
        e("s_mov_b64 exec, 1")
        sel = [(2,3,5,6,8),(1,2,4,5,6,7,8)][kidx]
        o = [0, 7][kidx]
        e(f"v_mov_b32 v{vt+1}, s{sSt+18}")
        e(f"buffer_store_dword v{vt+1}, v{vt}, s[48:51], 0 offen offset:{4*o}")
        for n, i in enumerate(sel):
            e(f"s_sub_u32 s40, s{sSt+2*i}, s{sSt}")
            e(f"v_mov_b32 v{vt+1}, s40")
            e(f"buffer_store_dword v{vt+1}, v{vt}, s[48:51], 0 offen offset:{4*(o+1+n)}")
        e(f"v_mov_b32 v{vt+1}, s42")
        e(f"buffer_store_dword v{vt+1}, v{vt}, s[48:51], 0 offen offset:{4*(o+1+len(sel))}")
        return
    e("s_memrealtime s[42:43]")
    e("s_waitcnt lgkmcnt(0)")
    e(f"s_lshl_b32 s39, s2, 4")
    e(f"s_add_u32 s39, s39, s{swave}")
    e(f"s_lshl_b32 s39, s39, 6")
    e(f"s_add_u32 s39, s39, {WS_DIAG + kidx*0x40000}")
    e(f"v_mov_b32 v{vt}, 0")
    e("s_mov_b64 exec, 1")
    for i in range(1, nst):
        e(f"s_sub_u32 s40, s{sSt+2*i}, {'0' if OPT['rt']==2 or OPT['tl'] else 's%d' % sSt}")
        e(f"v_mov_b32 v{vt+1}, s40")
        e(f"buffer_store_dword v{vt+1}, v{vt}, {sr(ssrd,4)}, s39 offen offset:{4*(i-1)}")
    if extra is not None:
        e(f"v_mov_b32 v{vt+1}, s{extra}")
        e(f"buffer_store_dword v{vt+1}, v{vt}, {sr(ssrd,4)}, s39 offen offset:48")
    e("s_getreg_b32 s40, hwreg(HW_REG_HW_ID)")
    e(f"v_mov_b32 v{vt+1}, s40")
    e(f"buffer_store_dword v{vt+1}, v{vt}, {sr(ssrd,4)}, s39 offen offset:52")
    e(f"v_mov_b32 v{vt+1}, s{sSt+18}")
    e(f"buffer_store_dword v{vt+1}, v{vt}, {sr(ssrd,4)}, s39 offen offset:56")
    e(f"v_mov_b32 v{vt+1}, s42")
    e(f"buffer_store_dword v{vt+1}, v{vt}, {sr(ssrd,4)}, s39 offen offset:60")

def mfma(d, a, b, cc):
    cs = "0" if cc is None else vr(cc, 16)
    return f"v_mfma_f32_32x32x16_bf16 {vr(d,16)}, {vr(a,4)}, {vr(b,4)}, {cs}"

CAP = 3584
CNT = 0
MORE = 512
BI = 528
M4 = 1280
QWK = M4 + CAP * 4 + 64
QA = QWK + (CAP // 4) * 8 + 64
AST = 136
RST = 528
ATAB = QA + (CAP // 4) * 2 + 32
ER = (ATAB + 98 * AST + 15) // 16 * 16
STG = (ER + 40960 + 255) // 256 * 256
ROWS = STG + 32768
K2_LDS = ROWS + 98 * RST
WRAW = STG
XOWN = ROWS
WCT = ROWS + 16384
P_HIST = (WCT + 1024 + 1023) // 1024 * 1024
P_BASE = P_HIST + 1024
UTMP = P_BASE + 1024
P_STG = ER
NONLAST = 0x80000000; NOROW = 0x40000000
assert CHB <= 40960 and UTMP + 112 * 256 <= K2_LDS
assert QWK % 16 == 0 and ATAB % 8 == 0 and K2_LDS <= 160 * 1024 and ATAB < 65536, (K2_LDS, ATAB)
SC = 24
PADV = 0x7F007F00
RFLAG = 0x21800000

vW = 128; vD = [192, 224]; vX = 112; vBq = [104, 108]; vAq = 100; vAcc = 84
vS = 72; vN = 76; vP = 80; vWK = 64; vIdx = 56; vC = 40; vXo = 32; vV = 40; vRow = 28; vOut = 29; vTl = 30; vXa = 20
vLane = 1; vAqA = 2; vEa = 3; vIxA = 4; vQaA = 5; vQaV = 6; vQaC = 7
vWkA = 16; vN16 = 17; vC1 = 18; vTail = 19
vTe = 8
sX = 4; sXr = 8; sWs = 12; sOut = 16; sWc = 20
sBase = 24; sNN = 25; sWave = 26; sJ0 = 27; sLW = 28; sFirst = 29; s128 = 30; sQt = 31; sTt = 32
sNT = 33; sQw = 34; sStg = 35; sMore = 36; sBig = 37; sCnt = 38; sT0 = 39; sT1 = 40; sT2 = 41
sMk = 44

def G(b): return vD[b]
def H(b): return vD[b] + 16
def Wg(nt, s): return vW + (nt * 4 + s) * 4
def Wh(nt, s): return vW + 32 + (nt * 4 + s) * 4
def mfmas(nt):
    g = G(nt); h = H(nt)
    first = [mfma(g, vAq, vBq[nt], None if OPT['cz'] else vC)]
    gs = [mfma(g, vX+4*k, Wg(nt,k), g) for k in range(4)]
    hs = [mfma(h, vX+4*k, Wh(nt,k), h if k else None) for k in range(4)]
    if OPT['co']: return first + gs + hs
    return first + [x for p in zip(hs, gs) for x in p]
def acc(nt, j): return vAcc + j * 4 + nt * 2
SS = [72, 73, 74, 75, 8, 9, 10, 11]; NN = [76, 77, 78, 79, 12, 13, 14, 15]; PP = [81, 82, 83, 80, 25, 26, 27, 24]
def chain(nt):
    o = []
    for j in range(4):
        a = acc(nt, j); p = acc(nt, (j + 3) % 4); k = vWK + 2 * j + 1
        o += [f"v_and_b32 v{a}, v{p}, v{k}", f"v_and_b32 v{a+1}, v{p+1}, v{k}"]
        for q in (j, 4 + j):
            o += [f"v_fmac_f32 v{a}, v{SS[q]}, v{PP[q]}", f"v_fmac_f32 v{a+1}, v{NN[q]}, v{PP[q]}"]
    return o
def writes(): return [f"ds_write_b128 v{vWK+2*j}, {vr(vAcc+4*j,4)}" for j in range(4)]
def avals(nt):
    g = G(nt)
    return [f"v_add_f32 v{g+r}, v{g+r}, v{vC1}" for r in range(16)]
def frac(nt):
    g = G(nt); h = H(nt); o = []
    R = range(8); f = lambda q: 4 * (q % 4) + 2 * (q // 4)
    o += [f"v_mul_f32 v{NN[q]}, v{h+f(q)}, v{g+f(q)+1}" for q in R]
    o += [f"v_add_f32 v{SS[q]}, v{g+f(q)}, v{g+f(q)+1}" for q in R]
    o += [f"v_mul_f32 v{PP[q]}, v{g+f(q)}, v{g+f(q)+1}" for q in R]
    o += [f"v_fmac_f32 v{NN[q]}, v{h+f(q)+1}, v{g+f(q)}" for q in R]
    return o
def mix(a, b):
    o = []; a = list(a); b = list(b)
    while a or b:
        if a: o += a[:2]; a = a[2:]
        if b: o += b[:2]; b = b[2:]
    return o
def exps(nt): return [f"v_exp_f32_e64 v{G(nt)+r}, v{G(nt)+r} clamp" for r in range(16)]
def rcps(): return [f"v_rcp_f32 v{p}, v{p}" for p in PP]
def rd_x(): return [f"ds_read_b128 {vr(vX+4*s,4)}, v{vXa+s}" for s in range(4)]
def rd_aq():
    return [f"ds_read_b32 v{vAq}, v{vAqA} offset:{M4}", "s_mov_b32 exec_lo, 0", f"ds_read_b64 {vr(vAq,2)}, v{vEa}", "s_mov_b32 exec_lo, -1"]
def rd_mr(ahead): return [f"ds_read_u16 v{vEa}, v{vAqA} offset:{M4+2+ahead}"]
AEV = f"v_lshl_add_u32 v{vEa}, v{vEa}, 3, s42"
def rd_idx(): return [f"ds_read_b128 {vr(vIdx,4)}, v{vIxA} offset:{M4}"]
def mads(): return [f"v_mad_u32_u16 v{vIdx+i}, v{vIdx+i}, s{s128}, v{vIdx+4+i}" for i in range(4)]
def rd_qa(): return [f"ds_read_u16 v{vQaV}, v{vQaA} offset:{QA}"]
AQV = f"v_add_u32 v{vQaV}, v{vQaV}, v{vQaC}"
def rd_bq(nt): return [f"ds_read_b64_tr_b16 {vr(vBq[nt]+2,2)}, v{vQaV} offset:{ATAB+64*nt}"]
def rd_wk(): return [f"ds_read_b128 {vr(vWK,4)}, v{vWkA} offset:{QWK}", f"ds_read_b128 {vr(vWK+4,4)}, v{vWkA} offset:{QWK+16}"]
def dma(): return [f"buffer_load_dwordx4 v{vIdx+i}, {sr(sX,4)}, 0 offen offset:{1024*i} lds" for i in range(4)]

def hi_phase(ms, trans, extras, per=(2, 2, 2, 3, 2, 2, 3, 2, 2)):
    t = 0
    for g in range(9):
        e(ms[g])
        for _ in range(per[g]):
            e(trans[t]); t += 1
        for x in extras[g]:
            e(x)
    assert t == 20

def side_consts():
    c("copy source addresses: v82 weights, v78/v79 own x rows")
    e(f"v_lshrrev_b32 v81, 5, v{vLane}")
    e(f"v_and_b32 v77, 7, v{vLane}")
    e("v_lshlrev_b32 v78, 2, v81")
    e("v_xor_b32 v77, v77, v78")
    e(f"v_and_b32 v82, 16, v{vLane}")
    e("v_lshlrev_b32 v82, 2, v82")
    e("v_xor_b32 v82, v68, v82")
    e(f"s_and_b32 s{sT2}, s{sWave}, 1")
    e(f"s_lshl_b32 s{sT1}, s{sT2}, 1")
    e(f"v_xor_b32 v78, s{sT1}, v77")
    e("v_lshlrev_b32 v78, 4, v78")
    e(f"v_lshrrev_b32 v79, 3, v{vLane}")
    e("v_lshl_add_u32 v78, v79, 9, v78")
    e("v_xor_b32 v79, 16, v78")
    e("v_add_u32 v79, 128, v79")
    e(f"s_lshr_b32 s{sT0}, s{sWave}, 1")
    e(f"s_lshl_b32 s{sT0}, s{sT0}, 5")
    e(f"s_add_u32 s{sQw}, s{sT0}, s{sBase}")
    e(f"s_add_u32 s{sQw}, s{sQw}, s{sT1}")
    e(f"s_lshl_b32 s{sQw}, s{sQw}, 7")

def lane_consts():
    c("---- lane constants ----")
    e(f"v_and_b32 v67, 31, v{vLane}")
    e(f"v_bfe_u32 v70, v{vLane}, 2, 1")
    e(f"v_bfe_u32 v71, v{vLane}, 3, 2")
    e("v_and_b32 v72, 1, v71")
    e("v_lshlrev_b32 v72, 4, v72")
    e("v_mov_b32 v73, 0x3f80")
    e("v_cmp_eq_u32 vcc, v70, v81")
    e("v_lshlrev_b32 v72, v72, v73")
    e("v_cmp_gt_u32 s[42:43], 2, v71")
    e("v_cndmask_b32 v72, 0, v72, vcc")
    e(f"v_and_b32 v73, 3, v{vLane}")
    e(f"v_cndmask_b32 v{vAq+2}, 0, v72, s[42:43]")
    e(f"v_cndmask_b32 v{vAq+3}, v72, 0, s[42:43]")
    e(f"v_mov_b32 v{vAq+1}, 0x3f80")
    for i in range(4):
        e(f"v_xor_b32 v74, {i}, v77")
        e(f"v_lshlrev_b32 v74, 4, v74")
        e(f"v_add_u32 v{vIdx+4+i}, {3072-1024*i}, v74")
    e(f"v_bfe_u32 v74, v{vLane}, 2, 3")
    e(f"v_bfe_u32 v75, v{vLane}, 4, 1")
    e("v_lshl_add_u32 v72, v75, 2, v73")
    e("v_lshlrev_b32 v76, 10, v73")
    e("v_lshl_add_u32 v76, v74, 7, v76")
    e(f"v_add_u32 v76, s{sStg}, v76")
    e("v_xor_b32 v72, v72, v81")
    for s_ in range(4):
        e(f"v_xor_b32 v74, {2*s_}, v72")
        e(f"v_lshl_add_u32 v{vXa+s_}, v74, 4, v76")
    e(f"v_lshlrev_b32 v{vN16}, 2, v75")
    e(f"v_xor_b32 v{vN16}, v{vN16}, v67")
    e(f"v_lshlrev_b32 v{vN16}, 4, v{vN16}")
    e(f"v_add_u32 v{vN16}, {ROWS}, v{vN16}")
    e(f"v_mov_b32 v{vC1}, {f32(2.0**(-2*SC))}")
    e("v_lshlrev_b32 v73, 3, v73")
    e(f"v_lshl_add_u32 v{vQaC}, v75, 5, v73")
    c("setup addresses: v8 A table write, v9/v10/v11 transposed reads, v12 wc, v24..27 own x")
    e(f"s_and_b32 s{sT2}, s{sWave}, 1")
    e(f"s_lshr_b32 s{sT0}, s{sWave}, 1")
    e(f"s_lshl_b32 s{sT1}, s{sT0}, 5")
    e(f"v_add_u32 v8, s{sT1}, v67")
    e(f"v_cmp_gt_u32 {sr(sMore,2)}, s{sNN}, v8")
    e(f"v_mul_u32_u24 v8, {AST}, v8")
    e("v_lshl_add_u32 v8, v81, 3, v8")
    e(f"s_lshl_b32 s{sT2}, s{sT2}, 6")
    e(f"v_add_u32 v8, s{sT2}, v8")
    e(f"v_bfe_u32 v71, v{vLane}, 2, 2")
    e("v_lshl_add_u32 v12, v81, 2, v71")
    e(f"v_lshl_add_u32 v12, v12, 7, v{vQaC}")
    e(f"v_add_u32 v12, {WCT}, v12")
    e("v_lshl_add_u32 v9, v81, 3, v71")
    e(f"v_lshl_add_u32 v9, v9, 7, v{vQaC}")
    e(f"v_bfe_u32 v71, v{vLane}, 3, 1")
    e("v_lshl_add_u32 v9, v71, 6, v9")
    e(f"v_add_u32 v9, {WRAW}, v9")
    e("v_xor_b32 v10, 64, v9")
    e(f"v_xor_b32 v11, s{sT2}, v9")
    e(f"s_lshl_b32 s{sT0}, s{sT0}, 12")
    e(f"s_add_u32 s{sT0}, s{sT0}, {XOWN}")
    e(f"s_sub_u32 s{sT0}, s{sT0}, s{sStg}")
    for s_ in range(4):
        e(f"v_add_u32 v{24+s_}, s{sT0}, v{vXa+s_}")

def prefetch_all(lanes, first_line, vt):
    if not lanes: return
    e(f"s_and_b32 s{sT2}, s2, 31")
    e(f"s_mul_i32 s{sT2}, s{sT2}, 782")
    e(f"s_mul_i32 s{sT1}, s{sWave}, {lanes}")
    e(f"s_add_u32 s{sT2}, s{sT2}, s{sT1}")
    e(f"s_add_u32 s{sT2}, s{sT2}, {first_line}")
    e(f"s_lshl_b32 s{sT2}, s{sT2}, 7")
    e(f"v_lshlrev_b32 v{vt}, 7, v{vLane}")
    e(f"s_mov_b64 exec, {(1<<lanes)-1 if lanes<64 else -1}" if lanes<=32 or lanes==64 else f"s_bfm_b64 exec, {lanes}, 0")
    e(f"buffer_load_dword v{vt}, v{vt}, {sr(sXr,4)}, s{sT2} offen")
    e("s_mov_b64 exec, -1")

def scale8(first, n):
    for r in range(n):
        e(f"v_lshlrev_b32 v72, 16, v{first+r}")
        e(f"v_and_b32 v73, 0xffff0000, v{first+r}")
        e(f"v_mul_f32 v72, v74, v72")
        e(f"v_mul_f32 v73, v74, v73")
        e(f"v_cvt_pk_bf16_f32 v{first+r}, v72, v73")

def k2():
    st = FL[OPT['stf']]; ld = FL[OPT['ldf']]
    sP = 3
    e(".p2align 8")
    e(f"{NAME}_kernel:")
    e("s_cmp_ge_u32 s2, 256")
    e("s_cbranch_scc1 K2_END")
    stamp(0)
    e("s_load_dwordx8 s[44:51], s[0:1], 0")
    e("s_load_dwordx8 s[52:59], s[0:1], 64")
    e("s_load_dwordx8 s[60:67], s[0:1], 32")
    e(f"s_mov_b32 s{sP}, s2")
    if OPT['cpf']:
        c("pull the code into the L2 (one dword per 128-byte line, threads 0..CODE/128)")
        e("s_getpc_b64 s[68:69]")
        e("v_lshlrev_b32 v250, 7, v0")
        e("v_mov_b32 v251, s69")
        e(f"s_movk_i32 s70, {OPT['cpf']}")
        e("v_cmp_gt_u32 s[72:73], s70, v0")
        e("v_add_co_u32 v250, vcc, s68, v250")
        e("s_nop 1")
        e("v_addc_co_u32 v251, vcc, 0, v251, vcc")
        e("s_mov_b64 exec, s[72:73]")
        e("s_cbranch_execz K2_NOPF")
        e("global_load_dword v252, v[250:251], off")
        e("K2_NOPF:")
        e("s_mov_b64 exec, -1")
    e(f"s_and_b32 s{sT0}, s2, 7")
    e("s_lshr_b32 s2, s2, 3")
    e(f"s_lshl_b32 s{sT0}, s{sT0}, 5")
    e(f"s_or_b32 s2, s2, s{sT0}")
    e(f"v_and_b32 v{vLane}, 63, v0")
    e("v_lshrrev_b32 v2, 6, v0")
    e(f"s_mul_i32 s{sT0}, s{sP}, {CH*4}")
    e(f"v_readfirstlane_b32 s{sWave}, v2")
    e(f"v_lshl_add_u32 v64, v0, 4, s{sT0}")
    e(f"v_add_u32 v65, 7168, v64")
    e("v_lshlrev_b32 v66, 1, v64")
    e("v_lshlrev_b32 v67, 1, v65")
    e(f"s_mov_b32 s{sT1}, {E*4}")
    e("s_movk_i32 s42, 336")
    e(f"v_cmp_gt_u32 s[76:77], s{sT1}, v64")
    e(f"v_cmp_gt_u32 s[78:79], s{sT1}, v65")
    e("v_cmp_gt_u32 vcc, s42, v0")
    e(f"v_lshlrev_b32 v68, 4, v{vLane}")
    e(f"v_add_u32 v69, {P_HIST}, v68")
    e(f"v_lshrrev_b32 v248, 3, v{vLane}")
    e("v_and_b32 v249, 0x70, v68")
    e("v_lshl_or_b32 v248, v248, 15, v249")
    for i in range(4):
        e(f"v_mov_b32 v{72+i}, 0")
    e("s_and_b64 s[78:79], s[78:79], vcc")
    e(f"s_cmp_eq_u32 s{sWave}, 7")
    e("s_cselect_b64 s[80:81], -1, 0")
    e("s_andn2_b64 s[76:77], s[76:77], s[80:81]")
    e("s_mov_b64 exec, s[80:81]")
    e("ds_write_b128 v69, v[72:75]")
    e(f"ds_write_b128 v68, v[72:75] offset:{CNT}")
    e(f"s_mul_i32 s{sBase}, s2, {BK}")
    e(f"s_add_u32 s{sNN}, s{sBase}, {BK+65535}")
    e(f"s_add_u32 s{sBase}, s{sBase}, 65535")
    e(f"s_lshr_b32 s{sBase}, s{sBase}, 16")
    e(f"s_lshr_b32 s{sNN}, s{sNN}, 16")
    e(f"s_sub_u32 s{sNN}, s{sNN}, s{sBase}")
    e(f"s_mov_b32 s{sJ0}, 0")
    e(f"s_movk_i32 s{sLW}, 384")
    e(f"s_mov_b32 s{sFirst}, 1")
    e(f"s_lshl_b32 s{sStg}, s{sWave}, 12")
    e(f"s_add_u32 s{sStg}, s{sStg}, {STG}")
    e("s_waitcnt lgkmcnt(0)")
    if OPT['tw']:
        srd(sWs, 58, WS_SIZE)
        e(f"v_lshlrev_b32 v83, {OPT['tw']}, v{vLane}")
        e(f"buffer_load_dword v83, v83, {sr(sWs,4)}, 0 offen")
    srd(68, 50, E * 4)
    e("s_mov_b64 exec, s[76:77]")
    e("buffer_load_dwordx4 v[192:195], v64, s[68:71], 0 offen" + ld)
    e("s_mov_b64 exec, s[78:79]")
    e("buffer_load_dwordx4 v[196:199], v65, s[68:71], 0 offen" + ld)
    srd(sWs, 58, WS_SIZE)
    c("wave 7 of the first workgroups clears the run table")
    NCL = OPT['ncl']; PER = 262144 // NCL
    e(f"s_cmp_lt_u32 s{sP}, {NCL}")
    e("s_cselect_b64 exec, s[80:81], 0")
    e("s_cbranch_execz P1_NOCL")
    e(f"s_mul_i32 s{sT0}, s{sP}, {PER}")
    for k in range(PER // 1024):
        e(f"buffer_store_dwordx4 v[72:75], v68, {sr(sWs,4)}, s{sT0} offen offset:{(k%4)*1024} sc1")
        if k % 4 == 3 and k + 1 < PER // 1024:
            e(f"s_add_u32 s{sT0}, s{sT0}, 4096")
    e("P1_NOCL:")
    srd(72, 48, E * 4)
    srd(sOut, 46, E * 8)
    e("s_barrier")
    pt('b1')
    e("s_mov_b64 exec, s[76:77]")
    e("buffer_load_dwordx4 v[200:203], v64, s[72:75], 0 offen" + ld)
    e(f"buffer_load_dwordx4 v[208:211], v66, {sr(sOut,4)}, 0 offen" + ld)
    e(f"buffer_load_dwordx4 v[212:215], v66, {sr(sOut,4)}, 0 offen offset:16" + ld)
    e("s_mov_b64 exec, -1")
    srd(sWc, 56, 256)
    srd(sXr, 44, N * 128)
    e("s_sub_u32 s50, s44, 3072")
    e("s_subb_u32 s51, s45, 0")
    srd(sX, 50, N * 128 + 3072)
    e(f"s_movk_i32 s{s128}, 128")
    side_consts()
    e(f"s_cmp_eq_u32 s{sWave}, 7")
    e("s_cbranch_scc1 P1_W7A")
    e("v_mov_b32 v70, 12")
    e(f"s_mov_b32 s{sT0}, {BM}")
    e("s_movk_i32 s42, 0x3fc")
    e(f"v_mov_b32 v71, {P_HIST}")
    if OPT['eb']:
        if OPT['eb'] == 1: e("s_waitcnt vmcnt(4)")
        e("s_mov_b64 exec, s[78:79]")
        e("buffer_load_dwordx4 v[204:207], v65, s[72:75], 0 offen" + ld)
        e(f"buffer_load_dwordx4 v[216:219], v67, {sr(sOut,4)}, 0 offen" + ld)
        e(f"buffer_load_dwordx4 v[220:223], v67, {sr(sOut,4)}, 0 offen offset:16" + ld)
    for it in range(2):
        e(f"s_mov_b64 exec, s[{76+2*it}:{77+2*it}]")
        e(f"s_waitcnt vmcnt({4-it})")
        for i in range(4):
            e(f"v_mul_u32_u24 v{224+4*it+i}, s{sT0}, v{192+4*it+i}")
        for i in range(4):
            e(f"v_lshrrev_b32 v{224+4*it+i}, 22, v{224+4*it+i}")
        for i in range(4):
            e(f"v_and_or_b32 v{224+4*it+i}, v{224+4*it+i}, s42, v71")
            e(f"ds_add_rtn_u32 v{232+4*it+i}, v{224+4*it+i}, v70")
        for i in range(4):
            e(f"v_and_b32 v{192+4*it+i}, 127, v{192+4*it+i}")
    if not OPT['eb']:
        e("s_mov_b64 exec, s[78:79]")
        e("buffer_load_dwordx4 v[204:207], v65, s[72:75], 0 offen" + ld)
        e(f"buffer_load_dwordx4 v[216:219], v67, {sr(sOut,4)}, 0 offen" + ld)
        e(f"buffer_load_dwordx4 v[220:223], v67, {sr(sOut,4)}, 0 offen offset:16" + ld)
    e("s_mov_b64 exec, -1")
    e("s_waitcnt lgkmcnt(0)")
    def p1_scan():
        e("s_barrier")
        pt('b2')
        e("ds_read_b128 v[240:243], v69")
        e("s_waitcnt lgkmcnt(0)")
        e("v_add_u32 v72, v240, v241")
        e("v_add_u32 v73, v72, v242")
        e("v_add_u32 v76, v73, v243")
        e("v_mov_b32 v80, v76")
        scan64(80)
        e("v_sub_u32 v244, v80, v76")
        e("v_add_u32 v245, v244, v240")
        e("v_add_u32 v246, v244, v72")
        e("v_add_u32 v247, v244, v73")
    p1_scan()
    e(f"ds_write_b128 v69, v[244:247] offset:{P_BASE-P_HIST}")
    e("s_waitcnt lgkmcnt(0)")
    for it in range(2):
        e(f"s_mov_b64 exec, s[{76+2*it}:{77+2*it}]")
        for i in range(4):
            e(f"ds_read_b32 v{224+4*it+i}, v{224+4*it+i} offset:{P_BASE-P_HIST}")
    e("s_mov_b64 exec, -1")
    def side_dma():
        e(f"s_lshl_b32 s{sT1}, s{sWave}, 11")
        e(f"s_add_u32 m0, s{sT1}, {XOWN}")
        e(f"s_lshl_b32 s{sT1}, s{sWave}, 10")
        e(f"buffer_load_dwordx4 v78, {sr(sXr,4)}, s{sQw} offen lds")
        e("s_add_u32 m0, m0, 1024")
        e("s_nop 0")
        e(f"buffer_load_dwordx4 v79, {sr(sXr,4)}, s{sQw} offen lds")
        for k, pw in enumerate((52, 60, 66)):
            e(f"s_add_u32 m0, s{sT1}, {WRAW+8192*(k+1)}")
            srd(68, pw, 8192)
            e(f"buffer_load_dwordx4 v82, s[68:71], s{sT1} offen lds")
    def side_wb():
        e(f"s_lshl_b32 s{sT1}, s{sWave}, 10")
        srd(68, 62, 8192)
        e(f"buffer_load_dwordx4 v[112:115], v82, s[68:71], s{sT1} offen")
    def side_copies():
        if OPT['sp'] == 0:
            side_dma(); side_wb()
    side_copies()
    pt('side')
    NX = 6 if OPT['sp'] == 0 else 0
    for it in range(2):
        e(f"s_mov_b64 exec, s[{76+2*it}:{77+2*it}]")
        e(f"s_waitcnt vmcnt({NX+5-3*it}) lgkmcnt({4 if it==0 else 8})")
        for i in range(4):
            k = 4 * it + i
            e(f"v_lshl_or_b32 v{200+k}, v{192+k}, 18, v{200+k}")
            e(f"v_add_u32 v{224+k}, v{224+k}, v{232+k}")
            e(f"ds_write_b32 v{224+k}, v{200+k} offset:{P_STG+8}")
        for i in range(4):
            k = 4 * it + i
            if i % 2 == 0:
                e(f"s_waitcnt vmcnt({NX+4-3*it-i//2})")
            e(f"v_add_u32 v{224+k}, {P_STG}, v{224+k}")
            e(f"ds_write2_b32 v{224+k}, v{208+2*k}, v{209+2*k} offset0:0 offset1:1")
    e("s_mov_b64 exec, -1")
    pt('p1scat')
    e("P1_J:")
    pt('pj')
    if OPT['sp'] == 1:
        side_dma(); side_wb()
    if OPT['sp'] == 2:
        side_wb()
    e("v_lshlrev_b32 v64, 4, v0")
    e(f"v_add_u32 v65, {P_STG}, v64")
    e(f"s_mul_i32 s{sT0}, s{sP}, {CHB}")
    e(f"s_add_u32 s{sT0}, s{sT0}, {WS_REC}")
    NT_ = 448 if OPT['pf7'] else 512
    NR = -(-2352 // NT_)
    e(f"s_movk_i32 s42, {2352 - (NR-1)*NT_}")
    e("v_cmp_gt_u32 vcc, s42, v0")
    e("s_waitcnt lgkmcnt(0)")
    e("s_barrier")
    pt('b3')
    if OPT['pf7']:
        e("s_andn2_b64 exec, exec, s[80:81]")
    for k in range(NR):
        e(f"ds_read_b128 {vr(192+4*k,4)}, v65 offset:{k*NT_*16}")
    for k in range(NR):
        if k == NR-1:
            e("s_mov_b64 exec, vcc")
        e(f"s_waitcnt lgkmcnt({NR-1-k})")
        e(f"buffer_store_dwordx4 {vr(192+4*k,4)}, v64, {sr(sWs,4)}, s{sT0} offen" + FL[OPT['rs']])
        if k < NR-1:
            e(f"s_add_u32 s{sT0}, s{sT0}, {NT_*16}")
    e("s_mov_b64 exec, -1")
    if OPT['sp'] == 2:
        side_dma(); NR += 5
    e(f"s_cmp_eq_u32 s{sWave}, 7")
    e("s_cbranch_scc1 P1_W7B")
    pt('stored')
    def mid(wait):
        srd(sOut, 54, N * 128)
        lane_consts()
        e(f"v_mov_b32 v74, {f32(-LOG2E)}")
        e(f"v_add_u32 v75, {WRAW}, v64")
        if wait is not None: e(f"s_waitcnt vmcnt({wait})")
        scale8(112, 4)
        e("ds_write_b128 v75, v[112:115]")
    mid(NR)
    e("s_waitcnt vmcnt(0)")
    e("P1_RDY:")
    pt('rdy')
    e(f"s_lshl_b32 s{sT1}, s{sP}, 7")
    e("s_waitcnt lgkmcnt(0)")
    e("s_barrier")
    pt('b4')
    c("publish this chunk's run table (every word carries a valid bit)")
    e("s_mov_b64 exec, s[80:81]")
    e(f"buffer_store_dwordx4 v[244:247], v248, {sr(sWs,4)}, s{sT1} offen" + FL[OPT['ps']])
    e("s_mov_b64 exec, -1")
    prefetch_all(OPT['pfa'], 0, 19)
    if OPT['tlb']:
        e(f"v_lshlrev_b32 v15, {OPT['tlb']}, v0")
        e(f"buffer_load_dword v15, v15, {sr(sXr,4)}, 0 offen")
    c("---- A table and U for this wave's (node tile, channel half); weight operands ----")
    for s_ in range(4):
        e(f"ds_read_b128 {vr(40+4*s_,4)}, v{24+s_}")
    for m in range(2):
        for s_ in range(4):
            for hf in range(2):
                e(f"ds_read_b64_tr_b16 {vr(vW+16*m+4*s_+2*hf,2)}, v11 offset:{16384+m*8192+s_*2048+hf*512}")
    e(f"s_mov_b32 s{sT0}, {f32(-LOG2E)}")
    e("s_waitcnt lgkmcnt(8)")
    for s_ in range(4):
        e(mfma(84, vW+4*s_, 40+4*s_, 84 if s_ else None))
    e("s_waitcnt lgkmcnt(0)")
    for s_ in range(4):
        e(mfma(112, vW+16+4*s_, 40+4*s_, 112 if s_ else None))
    for m in range(2):
        for nt in range(2):
            for s_ in range(4):
                for hf in range(2):
                    e(f"ds_read_b64_tr_b16 {vr(vW+32*m+16*nt+4*s_+2*hf,2)}, v{9+nt} offset:{m*8192+s_*2048+hf*512}")
    for nt in range(2):
        e(f"ds_read_b64_tr_b16 {vr(vBq[nt],2)}, v12 offset:{64*nt}")
    for r in range(16):
        e(f"v_mul_f32 v{84+r}, s{sT0}, v{84+r}")
    for r in range(8):
        e(f"v_cvt_pk_bf16_f32 v{72+r}, v{84+2*r}, v{85+2*r}")
    e(f"s_mov_b64 exec, {sr(sMore,2)}")
    for j in range(4):
        e(f"ds_write_b64 v8, {vr(72+2*j,2)} offset:{ATAB+j*16}")
    e("s_mov_b64 exec, -1")
    c("U (f32) to its final owners through LDS: 16-byte chunk q of node n sits at n*256 + (q ^ (n&7))*16")
    e(f"s_lshr_b32 s{sT0}, s{sWave}, 1")
    e(f"s_lshl_b32 s{sT0}, s{sT0}, 5")
    e(f"s_and_b32 s{sT1}, s{sWave}, 1")
    e(f"s_lshl_b32 s{sT1}, s{sT1}, 3")
    e(f"v_add_u32 v13, s{sT0}, v67")
    e("s_movk_i32 s42, 112")
    e("v_cmp_gt_u32 vcc, s42, v13")
    e(f"v_and_b32 v14, 7, v{vLane}")
    e("v_xor_b32 v14, v14, v81")
    e(f"v_or_b32 v14, s{sT1}, v14")
    e("v_lshlrev_b32 v13, 8, v13")
    e(f"v_add_u32 v13, {UTMP}, v13")
    e("s_mov_b64 exec, vcc")
    for j in range(4):
        e(f"v_xor_b32 v15, {2*j}, v14")
        e("v_lshl_add_u32 v15, v15, 4, v13")
        e(f"ds_write_b128 v15, {vr(112+4*j,4)}")
    e("s_mov_b64 exec, -1")
    c("epilogue thread = (node tid>>2, chunks c and c+4): output offset, row address, residual operand")
    e("v_lshrrev_b32 v13, 2, v0")
    e("v_and_b32 v14, 3, v0")
    e(f"v_add_u32 v{vOut}, s{sBase}, v13")
    e(f"v_lshlrev_b32 v{vOut}, 7, v{vOut}")
    e(f"v_lshl_add_u32 v{vOut}, v14, 4, v{vOut}")
    e(f"buffer_load_dwordx4 {vr(vXo,4)}, v{vOut}, {sr(sXr,4)}, 0 offen")
    e(f"buffer_load_dwordx4 {vr(vXo+4,4)}, v{vOut}, {sr(sXr,4)}, 0 offen offset:64")
    e(f"v_mul_u32_u24 v{vRow}, {RST}, v13")
    e(f"v_lshl_add_u32 v{vRow}, v14, 7, v{vRow}")
    e(f"v_add_u32 v{vRow}, {ROWS}, v{vRow}")
    e("v_lshrrev_b32 v15, 1, v14")
    e(f"v_lshl_add_u32 v{vRow}, v15, 6, v{vRow}")
    e("v_and_b32 v15, 7, v13")
    e("v_lshlrev_b32 v14, 1, v14")
    e("v_xor_b32 v14, v14, v15")
    e("v_lshlrev_b32 v14, 4, v14")
    e(f"v_lshl_add_u32 v{vTl}, v13, 8, v14")
    e(f"v_add_u32 v{vTl}, {UTMP}, v{vTl}")
    e(f"v_xor_b32 v31, 16, v{vTl}")
    if not OPT['cz']:
        for r in range(16):
            e(f"v_mov_b32 v{vC+r}, {f32(-2.0*SC)}")
    e("K2_ROUND:")
    c("window offset (0xffff = lane outside the window)")
    e(f"v_and_b32 v67, 15, v{vLane}")
    e("v_mul_u32_u24 v67, 12, v67")
    e(f"v_cmp_gt_u32 vcc, s{sLW}, v67")
    e(f"v_add_u32 v66, s{sJ0}, v67")
    e("v_lshrrev_b32 v68, 4, v0")
    e(f"s_mov_b32 s{sT0}, {8*CHB}")
    e(f"v_mul_u32_u24 v68, s{sT0}, v68")
    e("v_add3_u32 v68, v68, v66, -1")
    e("v_mov_b32 v69, 0xffff")
    e("v_cndmask_b32 v66, v69, v66, vcc")
    e("v_mov_b32 v71, 192")
    e("v_and_b32 v64, 0x1f0, v0")
    e("v_lshlrev_b32 v64, 6, v64")
    e(f"s_lshr_b32 s{sT0}, s2, 5")
    e(f"s_lshl_b32 s{sT0}, s{sT0}, 15")
    e(f"s_and_b32 s{sT1}, s2, 31")
    e(f"s_lshl_b32 s{sT1}, s{sT1}, 2")
    e(f"s_add_u32 s{sT0}, s{sT0}, s{sT1}")
    e(f"s_mov_b32 s{sCnt}, 0x40000")
    pt('poll')
    c("wait for the run tables of this wave's 32 producers")
    sd = "dst_sel:DWORD dst_unused:UNUSED_PAD "
    vRa = 84
    for i in range(8):
        e(f"s_mov_b64 {sr(sMk+2*i,2)}, 0")
    e("K2_POLL:")
    for i in range(8):
        e(f"buffer_load_dword v{vTe+i}, v64, {sr(sWs,4)}, s{sT0} offen offset:{i*128} sc1")
    e("s_waitcnt vmcnt(0)")
    e(f"v_bitop3_b32 v69, v{vTe}, v{vTe+1}, v{vTe+2} bitop3:0x80")
    e(f"v_bitop3_b32 v70, v{vTe+3}, v{vTe+4}, v{vTe+5} bitop3:0x80")
    e(f"v_bitop3_b32 v69, v69, v{vTe+6}, v{vTe+7} bitop3:0x80")
    e(f"v_bitop3_b32 v69, v69, v70, 1 bitop3:0x80")
    e("v_cmp_eq_u32 s[76:77], 0, v69")
    pt('go')
    c("fetch the runs that have been published since the last look (a cleared word has count 0)")
    e(f"s_mov_b32 s{sT1}, {WS_REC}")
    for i in range(8):
        e(f"v_cmp_lt_u32_sdwa vcc, v66, v{vTe+i} src0_sel:DWORD src1_sel:WORD_1")
        e(f"v_add_u32_sdwa v{vRa+i}, v68, v{vTe+i} {sd}src0_sel:DWORD src1_sel:WORD_0")
        e(f"s_andn2_b64 exec, vcc, {sr(sMk+2*i,2)}")
        e(f"buffer_load_dwordx3 {vr(192+4*i,3)}, v{vRa+i}, {sr(sWs,4)}, s{sT1} offen sc1")
        e(f"s_mov_b64 {sr(sMk+2*i,2)}, vcc")
        e("s_mov_b64 exec, -1")
        if i < 7:
            e(f"s_add_u32 s{sT1}, s{sT1}, {CHB}")
    e("s_cmp_eq_u64 s[76:77], 0")
    e("s_cbranch_scc1 K2_GO")
    e(f"s_sub_u32 s{sCnt}, s{sCnt}, 1")
    e("s_cbranch_scc1 K2_END")
    e(f"s_sleep {OPT['slp']}")
    e("s_branch K2_POLL")
    e("K2_GO:")
    c("records past the 16th of a run: packed per 16-lane group into two more slots")
    def ovf(vj, extra):
        e("v_mov_b32 v72, 0")
        e("v_mov_b32 v73, 0")
        for i in range(8):
            e(f"v_sub_u32_sdwa v69, v{vTe+i}, v71 clamp {sd}src0_sel:WORD_1 src1_sel:DWORD")
            e(f"v_add_u32 v74, v{vj}, v72")
            e(f"s_mov_b32 s{sT0}, {192+extra+i*CHB}")
            e("v_cmp_lt_u32 vcc, v74, v69")
            e(f"v_add3_u32 v75, v{vRa+i}, v72, s{sT0}")
            e("v_sub_u32 v72, v72, v69")
            e("v_cndmask_b32 v73, v73, v75, vcc")
    ovf(67, 0)
    e("v_add_u32 v74, v67, v72")
    e("v_add_u32 v75, 192, v74")
    e("v_add_u32 v69, 384, v72")
    e(f"v_cmp_gt_i32 {sr(sMk+16,2)}, 0, v74")
    e(f"v_cmp_gt_i32 {sr(sMk+18,2)}, 0, v75")
    e("v_cmp_gt_i32 s[76:77], 0, v69")
    e(f"v_max3_u32 v69, v{vTe}, v{vTe+1}, v{vTe+2}")
    e(f"v_max3_u32 v70, v{vTe+3}, v{vTe+4}, v{vTe+5}")
    e(f"v_max3_u32 v69, v69, v{vTe+6}, v{vTe+7}")
    e("v_max_u32 v69, v69, v70")
    e(f"s_add_u32 s{sT1}, s{sJ0}, s{sLW}")
    e(f"s_lshl_b32 s{sT1}, s{sT1}, 16")
    e(f"s_or_b32 s{sT1}, s{sT1}, 0xffff")
    e(f"v_cmp_lt_u32 vcc, s{sT1}, v69")
    e(f"s_mov_b32 s{sCnt}, {WS_REC}")
    e(f"s_cmp_eq_u32 s{sLW}, 384")
    e(f"s_cselect_b64 {sr(sMk+16,2)}, {sr(sMk+16,2)}, 0")
    e(f"s_cselect_b64 {sr(sMk+18,2)}, {sr(sMk+18,2)}, 0")
    e("s_cselect_b64 s[76:77], s[76:77], vcc")
    e(f"s_mov_b64 exec, {sr(sMk+16,2)}")
    e(f"buffer_load_dwordx3 v[224:226], v73, {sr(sWs,4)}, s{sCnt} offen sc1")
    e("s_mov_b64 exec, -1")
    e(f"s_cmp_lg_u64 {sr(sMk+18,2)}, 0")
    e("s_cbranch_scc1 K2_OVF2")
    e("K2_OVFD:")
    e("v_mov_b32 v66, 4")
    e("v_mov_b32 v67, 0")
    e("s_mov_b64 exec, s[76:77]")
    e(f"ds_write_b32 v67, v66 offset:{MORE}")
    e("s_mov_b64 exec, -1")
    for r in range(16):
        e(f"v_mov_b32 v{vAcc+r}, 0")
    c("scan / meta lane constants while the records are in flight")
    e(f"v_lshl_add_u32 v8, v{vLane}, 1, s{sBase}")
    e("v_add_u32 v9, 1, v8")
    e("v_and_b32 v8, 127, v8")
    e("v_and_b32 v9, 127, v9")
    e("v_lshlrev_b32 v8, 2, v8")
    e("v_lshlrev_b32 v9, 2, v9")
    e(f"s_add_u32 s{sT0}, s{sNN}, 7")
    e(f"v_lshlrev_b32 v10, 1, v{vLane}")
    e("v_add_u32 v11, 1, v10")
    e(f"v_cmp_gt_u32 vcc, s{sT0}, v10")
    e(f"v_cmp_gt_u32 s[76:77], s{sT0}, v11")
    e("v_lshrrev_b32 v12, 2, v0")
    e("v_cndmask_b32 v10, 0, 16, vcc")
    e("v_cndmask_b32 v11, 0, 16, s[76:77]")
    e(f"v_cmp_gt_u32 vcc, s{sT0}, v12")
    e(f"v_cmp_gt_u32 s[76:77], s{sNN}, v12")
    e(f"v_add_u32 v13, s{sBase}, v12")
    e("v_cndmask_b32 v14, 0, 16, vcc")
    e("v_and_b32 v13, 127, v13")
    e("v_lshlrev_b32 v13, 2, v13")
    e(f"v_mul_u32_u24 v15, {RST}, v12")
    e(f"v_mov_b32 v64, {NOROW:#x}")
    e("v_cndmask_b32 v15, v64, v15, s[76:77]")
    e("v_cndmask_b32 v12, 0, v12, s[76:77]")
    e(f"v_mul_u32_u24 v12, {AST}, v12")
    e(f"s_mul_i32 s{sT0}, s{sWave}, 640")
    e(f"v_add_u32 v64, s{sT0}, v{vLane}")
    e(f"s_mov_b32 s{sEr}, {ER}")
    e(f"v_lshl_add_u32 v65, v64, 3, s{sEr}")
    e("v_lshlrev_b32 v64, 16, v64")
    e(f"s_mov_b32 s{sT0}, 0xffff")
    for j in range(4):
        e(f"v_mov_b32 v{vN+j}, 0")
        e(f"v_mov_b32 v{vP+j}, 1.0")
        e(f"v_mov_b32 v{24+j}, 1.0")
    for q in range(10):
        r = 192 + 4 * q
        e(f"s_mov_b64 exec, {sr(sMk+2*q,2)}")
        if q < 9: e(f"s_waitcnt vmcnt({8-q})")
        e(f"v_lshrrev_b32 v{112+q}, 16, v{r+2}")
        e(f"ds_add_rtn_u32 v{r+3}, v{112+q}, v66 offset:{CNT}")
        e(f"ds_write_b64 v65, {vr(r,2)} offset:{512*q}")
        e(f"v_and_or_b32 v{r+2}, v{r+2}, s{sT0}, v64")
        if q: e(f"v_add_u32 v{r+2}, {q<<22:#x}, v{r+2}")
    e("s_mov_b64 exec, -1")
    e("s_waitcnt lgkmcnt(0)")
    e("s_barrier")
    pt('hist')
    c("---- scan (every wave, redundantly) ----")
    e(f"ds_read_b32 v64, v8 offset:{CNT}")
    e(f"ds_read_b32 v65, v9 offset:{CNT}")
    e(f"ds_read_b32 v68, v67 offset:{MORE}")
    prefetch_all(OPT['pfb'], 8*OPT['pfa'], 19)
    e("s_waitcnt lgkmcnt(1)")
    e(f"s_cmp_eq_u32 s{sFirst}, 0")
    e("s_cbranch_scc1 K2_NOU")
    for it in range(2):
        e(f"ds_read_b128 {vr(vV+8*it,4)}, v{vTl} offset:{128*it}")
        e(f"ds_read_b128 {vr(vV+8*it+4,4)}, v31 offset:{128*it}")
    e("K2_NOU:")
    e("v_add_u32 v69, 15, v64")
    e("v_add_u32 v70, 15, v65")
    e("v_and_b32 v69, -16, v69")
    e("v_and_b32 v70, -16, v70")
    e("v_max_u32 v69, v69, v10")
    e("v_max_u32 v70, v70, v11")
    e("v_add_u32 v71, v69, v70")
    e("v_mov_b32 v72, v71")
    scan64(72)
    e("v_sub_u32 v73, v72, v71")
    e("v_add_u32 v74, v73, v69")
    e(f"v_readlane_b32 s{sQt}, v72, 63")
    e("v_lshl_or_b32 v64, v64, 16, v73")
    e("v_lshl_or_b32 v65, v65, 16, v74")
    e(f"ds_write_b32 v8, v64 offset:{BI}")
    e(f"ds_write_b32 v9, v65 offset:{BI}")
    e("v_max_u32 v69, v69, v70")
    e(f"s_lshr_b32 s{sTt}, s{sQt}, 7")
    pt('s1')
    e(f"ds_read_b32 v64, v13 offset:{BI}")
    for q in range(10):
        e(f"s_mov_b64 exec, {sr(sMk+2*q,2)}")
        e(f"ds_read_u16 v{112+q}, v{112+q} offset:{BI}")
    e("s_mov_b64 exec, -1")
    e("s_waitcnt lgkmcnt(13)")
    e(f"v_readfirstlane_b32 s{sMore}, v68")
    e(f"s_cmp_gt_u32 s{sQt}, {CAP*4}")
    e(f"s_cselect_b32 s{sT0}, 1, s{sMore}")
    e(f"s_cmp_eq_u32 s{sLW}, 384")
    e(f"s_cselect_b32 s{sT0}, s{sT0}, 0")
    e(f"s_cmp_lg_u32 s{sT0}, 0")
    e("s_cbranch_scc1 K2_FAIL")
    c("pads")
    e("v_and_b32 v65, 3, v0")
    e(f"v_mov_b32 v70, {PADV:#x}")
    e("s_waitcnt lgkmcnt(10)")
    e("v_lshrrev_b32 v68, 16, v64")
    e("v_and_b32 v64, 0xffff, v64")
    e("v_add_u32 v74, 15, v68")
    e("v_and_b32 v74, -16, v74")
    e("v_max_u32 v74, v74, v14")
    e("v_lshl_add_u32 v68, v65, 2, v68")
    e("v_cmp_lt_u32 s[76:77], v68, v74")
    e("v_add_u32 v68, v68, v64")
    e("s_mov_b64 exec, s[76:77]")
    e(f"ds_write_b32 v68, v70 offset:{M4}")
    e("s_waitcnt lgkmcnt(1)")
    pt('s2')
    c("---- scatter: index words first ----")
    for q in range(10):
        r = 192 + 4 * q
        e(f"s_mov_b64 exec, {sr(sMk+2*q,2)}")
        e(f"v_add_u32 v{112+q}, v{112+q}, v{r+3}")
        e(f"ds_write_b32 v{112+q}, v{r+2} offset:{M4}")
    e("s_mov_b64 exec, -1")
    pt('s3')
    e(f"s_lshr_b32 s{sT0}, s{sTt}, 3")
    e(f"s_and_b32 s{sT1}, s{sTt}, 7")
    e(f"s_lshl_b32 s{sT2}, s{sT0}, 6")
    e(f"v_cmp_lt_u32 vcc, s{sT2}, v69")
    e(f"s_mul_i32 s{sQw}, s{sT0}, s{sWave}")
    e(f"s_min_u32 s{sT2}, s{sT1}, s{sWave}")
    e(f"s_add_u32 s{sQw}, s{sQw}, s{sT2}")
    e(f"s_lshl_b32 s{sQw}, s{sQw}, 3")
    e(f"s_cmp_lt_u32 s{sWave}, s{sT1}")
    e(f"s_addc_u32 s{sNT}, s{sT0}, 0")
    e(f"s_or_b32 s{sBig}, vcc_lo, vcc_hi")
    e(f"s_lshl_b32 s{sT0}, s{sNT}, 2")
    e(f"v_bfe_u32 v66, v{vLane}, 3, 1")
    e(f"v_lshrrev_b32 v69, 4, v{vLane}")
    e(f"v_mad_u32_u24 v66, v66, s{sT0}, v69")
    e(f"v_add_lshl_u32 v{vIxA}, v66, s{sQw}, 4")
    e(f"v_lshrrev_b32 v67, 5, v{vLane}")
    e(f"v_mul_u32_u24 v66, s{sT0}, v67")
    e(f"v_add_u32 v66, s{sQw}, v66")
    e(f"v_bfe_u32 v69, v{vLane}, 2, 2")
    e(f"v_add_lshl_u32 v{vQaA}, v66, v69, 1")
    e(f"s_mov_b32 m0, s{sStg}")
    e(f"s_mov_b32 s{sDum}, {NOROW:#x}")
    e("s_waitcnt lgkmcnt(0)")
    e("s_barrier")
    pt('scat')
    for x in rd_idx(): e(x)
    e(f"v_add_u32 v{vIxA}, 64, v{vIxA}")
    e(f"v_lshlrev_b32 v{vWkA}, 3, v66")
    c("quad meta: thread = (node, k0)")
    e("v_lshrrev_b32 v69, 4, v74")
    e("v_lshrrev_b32 v64, 4, v64")
    e("v_cmp_eq_u32 vcc, 0, v65")
    e("v_add_lshl_u32 v68, v64, v65, 3")
    e("v_add_u32 v70, -1, v69")
    e("v_cndmask_b32 v73, -1, 0, vcc")
    e(f"v_or_b32 v71, {NONLAST:#x}, v15")
    e("v_lshrrev_b32 v64, 2, v68")
    def blk_dma():
        for x in mads() + dma() + rd_idx(): e(x)
        e(f"v_add_u32 v{vIxA}, 64, v{vIxA}")
    def blk_qm(t):
        for u in range(3):
            e("v_cmp_lt_u32 vcc, v65, v69")
            e("v_cmp_eq_u32 s[76:77], v65, v70")
            e("s_and_b64 exec, exec, vcc")
            e(f"ds_write_b16 v64, v12 offset:{QA+8*u}")
            e("v_add_u32 v65, 4, v65")
            e("v_cndmask_b32 v72, v71, v15, s[76:77]")
            e(f"ds_write_b64 v68, v[72:73] offset:{QWK+32*u}")
            if u == 0: e("v_mov_b32 v73, -1")
        e(f"K2_QM{t}:")
        e("v_cmp_lt_u32 vcc, v65, v69")
        e("v_cmp_eq_u32 s[76:77], v65, v70")
        e("s_and_b64 exec, exec, vcc")
        e(f"s_cbranch_execz K2_QMD{t}")
        e(f"ds_write_b16 v64, v12 offset:{QA+24}")
        e("v_add_u32 v65, 4, v65")
        e("v_cndmask_b32 v72, v71, v15, s[76:77]")
        e(f"ds_write_b64 v68, v[72:73] offset:{QWK+96}")
        e("v_add_u32 v68, 32, v68")
        e("v_add_u32 v64, 8, v64")
        e(f"s_branch K2_QM{t}")
        e(f"K2_QMD{t}:")
        e("s_mov_b64 exec, -1")
        e("s_waitcnt lgkmcnt(0)")
    e(f"s_cmp_ge_u32 s{sWave}, 4")
    e("s_cbranch_scc1 K2_ORD_B")
    e("s_waitcnt lgkmcnt(0)")
    blk_dma(); blk_qm('a')
    e("s_barrier")
    e("s_branch K2_ORD_J")
    e("K2_ORD_B:")
    blk_qm('b')
    e("s_barrier")
    blk_dma()
    e("K2_ORD_J:")
    pt('meta')
    e(f"v_bfe_u32 v8, v{vLane}, 2, 1")
    e(f"v_bfe_u32 v9, v{vLane}, 3, 2")
    e(f"v_mad_u32_u24 v8, v8, s{sT0}, v9")
    e(f"v_add_lshl_u32 v8, v8, s{sQw}, 2")
    e(f"v_and_or_b32 v8, v{vLane}, 3, v8")
    e(f"v_lshlrev_b32 v{vAqA}, 2, v8")
    for x in rd_qa() + rd_mr(0): e(x)
    e(f"v_add_u32 v{vQaA}, 8, v{vQaA}")
    e(f"s_cmp_eq_u32 s{sFirst}, 0")
    e(f"s_cbranch_scc1 K2_NOV")
    for r in range(8):
        e(f"v_lshlrev_b32 v8, 16, v{vXo+r}")
        e(f"v_and_b32 v9, 0xffff0000, v{vXo+r}")
        e(f"v_add_f32 v{vV+2*r}, v{vV+2*r}, v8")
        e(f"v_add_f32 v{vV+2*r+1}, v{vV+2*r+1}, v9")
    e(f"K2_NOV:")
    e("s_waitcnt lgkmcnt(0)")
    e(AQV); e(AEV)
    for x in rd_bq(0) + rd_bq(1) + rd_aq() + rd_qa() + rd_mr(64): e(x)
    for r in range(8, 16):
        e(f"v_mov_b32 v{r}, 0")
    for j in range(4):
        e(f"v_mov_b32 v{vS+j}, 0")
        e(f"v_mov_b32 v{vWK+2*j}, {NOROW:#x}")
    for x in mads(): e(x)
    e(f"v_add_u32 v{vAqA}, 64, v{vAqA}")
    e(f"s_mov_b32 s{sCnt}, s{sNT}")
    e("s_waitcnt vmcnt(0)")
    pt('f4')
    for x in rd_x(): e(x)
    e(f"s_cmp_eq_u32 s{sNT}, 0")
    e("s_cbranch_scc1 K2_DRAIN")
    ms = mfmas(0); dm = dma()
    e("s_waitcnt lgkmcnt(4)")
    e(ms[0])
    e("s_waitcnt lgkmcnt(0)")
    for k in range(1, 9):
        e(ms[k])
        if k <= 4: e(dm[k-1])
        if k == 5: e(rd_idx()[0])
    e("s_waitcnt lgkmcnt(0)")
    e("s_nop 3")
    if not OPT['tl']: stamp(6)
    if OPT['role']:
        role_loops()
    else:
        e(".p2align 6")
        e("K2_LOOP:")
        loop_body()
    e("K2_DRAIN:")
    e("s_setprio 0")
    for x in rcps(): e(x)
    e(f"v_and_b32 v{vTl}, 0x7fffffff, v{vWK+6}")
    if OPT['wa']: e(f"v_add_u32 v{vTl}, v{vTl}, v{vN16}")
    for x in cmps(): e(x)
    for x in chain(1): e(x)
    for x in mwrites(): e(x)
    stamp(7)
    c("---- tails ----")
    e(f"v_cmp_gt_i32 s[76:77], 0, v{vWK+6}")
    e("v_lshrrev_b32 v10, 2, v0")
    e(f"v_cmp_gt_u32 s[78:79], s{sNN}, v10")
    eps = f32(1e-6 * 2.0**(2*SC))
    e(f"v_mov_b32 v9, {eps}")
    e("v_and_b32 v8, 2, v0")
    e("v_lshlrev_b32 v8, 6, v8")
    e(f"v_sub_u32 v8, v{vRow}, v8")
    e("s_waitcnt lgkmcnt(0)")
    e("s_barrier")
    pt('e0')
    e("s_mov_b64 exec, s[76:77]")
    e(f"s_cmp_lg_u32 s{sBig}, 0")
    e("s_cbranch_scc1 K2_TAILAT")
    e(f"ds_read_b128 v[64:67], v{vTl}")
    e("s_waitcnt lgkmcnt(0)")
    for i in range(4):
        e(f"v_add_f32 v{64+i}, v{64+i}, v{vAcc+12+i}")
    e(f"ds_write_b128 v{vTl}, v[64:67]")
    e("K2_TAILD:")
    e("s_mov_b64 exec, -1")
    c("---- epilogue ----")
    e(f"s_cmp_eq_u32 s{sMore}, 0")
    e(f"s_cselect_b32 s{sT1}, s{sFirst}, 0")
    e(f"s_cmp_eq_u32 s{sT1}, 0")
    e("s_waitcnt lgkmcnt(0)")
    pt('e1')
    e("s_barrier")
    pt('e2')
    if OPT['em']: e("s_mov_b64 exec, s[78:79]")
    for k in range(8):
        e(f"ds_read_b128 {vr(192+4*k,4)}, v{vRow if k<4 else 8} offset:{16*k}")
    e("s_cbranch_scc1 K2_SLOWTOT")
    e("K2_FIN:")
    e("s_mov_b64 exec, s[78:79]")
    e("s_cbranch_execz K2_DONE")
    for k in range(8):
        e(f"s_waitcnt lgkmcnt({7-k})")
        e(f"v_add_f32 v{192+4*k}, v{192+4*k}, v9")
        e(f"v_add_f32 v{194+4*k}, v{194+4*k}, v9")
    pt('e3')
    for it in range(2):
        for k in range(8):
            e(f"v_rcp_f32 v{192+4*k+2*it}, v{192+4*k+2*it}")
        e("s_nop 0")
        for k in range(8):
            e(f"v_fmac_f32 v{vV+8*it+k}, v{192+4*k+2*it}, v{193+4*k+2*it}")
        for k in range(4):
            e(f"v_cvt_pk_bf16_f32 v{112+4*it+k}, v{vV+8*it+2*k}, v{vV+8*it+2*k+1}")
        c("x + relu(z) = max(x + z, x); bf16 patterns order like f16 patterns")
        for k in range(4):
            e(f"v_pk_max_f16 v{112+4*it+k}, v{112+4*it+k}, v{vXo+4*it+k}")
        e(f"buffer_store_dwordx4 {vr(112+4*it,4)}, v{vOut}, {sr(sOut,4)}, 0 offen offset:{64*it}" + FL[OPT['ost']])
    e("K2_DONE:")
    if OPT['stamp']:
        e("s_mov_b64 exec, -1")
        stamp(8)
        diag_out(1, 9, sWave, sWs, sNT)
    e("K2_END:")
    e("s_endpgm")
    flush_ool()
    c("---- wave 7, phase 1: ready count, scaled wb / wc rows, run table words ----")
    e("P1_W7A:")
    p1_scan()
    e(f"s_cmp_lt_u32 s3, {NCL}")
    e("s_cbranch_scc0 P1_NOF")
    e(f"s_lshl_b32 s{sT0}, s3, {2 if NCL<=64 else (1 if NCL==128 else 0)}")
    e("v_mov_b32 v76, 1")
    e("s_mov_b64 exec, 1")
    e("s_waitcnt vmcnt(0)")
    if OPT['cat']:
        e(f"buffer_atomic_add v76, v74, {sr(sWc,4)}, s{sT0} offen sc1")
    else:
        e(f"buffer_store_{'dword' if NCL<=64 else ('short' if NCL==128 else 'byte')} v76, v74, {sr(sWc,4)}, s{sT0} offen sc1")
    e("s_mov_b64 exec, -1")
    e("P1_NOF:")
    srd(68, 64, 512)
    e(f"buffer_load_dwordx4 v[224:227], v68, s[68:71], 0 offen")
    side_copies()
    for i in range(4):
        e(f"v_lshl_or_b32 v{244+i}, v{240+i}, 16, v{244+i}")
        e(f"v_or_b32 v{244+i}, 1, v{244+i}")
    e("s_branch P1_J")
    e("P1_W7B:")
    mid(NR)
    scale8(224, 4)
    c("lanes 32..63 hold flag rows (0, R, 0, 0); lanes 0..31 the wc' rows")
    e(f"v_lshrrev_b32 v73, 3, v{vLane}")
    e("v_cmp_eq_u32 vcc, 5, v73")
    e(f"v_mov_b32 v72, {(RFLAG>>16)*0x10001:#x}")
    e(f"v_xor_b32 v73, 512, v68")
    for r in range(4):
        e(f"v_cndmask_b32 v{224+r}, v{224+r}, v72, vcc")
    if OPT['cz']:
        bz = struct.unpack("<I", struct.pack("<f", -2.0 * SC))[0] >> 16
        e("s_bfm_b64 exec, 8, 48")
        for r in range(4):
            e(f"v_mov_b32 v{224+r}, {bz*0x10001:#x}")
        e("s_mov_b64 exec, -1")
    e(f"v_add_u32 v73, {WCT}, v73")
    e("ds_write_b128 v73, v[224:227]")
    c("the whole table must have been cleared before anything is published or trusted")
    e(f"v_and_b32 v74, {min(NCL,64)-1}, v{vLane}")
    e("v_lshlrev_b32 v74, 2, v74")
    e(f"s_mov_b32 s{sCnt}, 0x40000")
    if OPT['ra']: e("s_waitcnt vmcnt(0)")
    e("P1_POLL:")
    e(f"buffer_load_dword v76, v74, {sr(sWc,4)}, 0 offen" + FL[OPT['pl_']])
    e("s_waitcnt vmcnt(0)")
    e(f"v_cmp_ne_u32 vcc, {1 if NCL<=64 else (0x10001 if NCL==128 else 0x01010101)}, v76")
    e(f"s_sub_u32 s{sCnt}, s{sCnt}, 1")
    e("s_cbranch_scc1 K2_END")
    e("s_cmp_eq_u64 vcc, 0")
    e("s_cbranch_scc1 P1_RDY")
    e("s_sleep 8")
    e("s_branch P1_POLL")
    c("---- rare paths ----")
    e("K2_OVF2:")
    e("v_add_u32 v70, 192, v67")
    ovf(70, 192)
    e(f"s_mov_b64 exec, {sr(sMk+18,2)}")
    e(f"buffer_load_dwordx3 v[228:230], v73, {sr(sWs,4)}, s{sCnt} offen sc1")
    e("s_mov_b64 exec, -1")
    e("s_waitcnt vmcnt(0)")
    e("s_branch K2_OVFD")
    e("K2_NEXT:")
    e("v_lshlrev_b32 v64, 2, v0")
    e("v_mov_b32 v66, 0")
    e("s_movk_i32 s42, 132")
    e("v_cmp_gt_u32 vcc, s42, v0")
    e("s_mov_b64 exec, vcc")
    e(f"ds_write_b32 v64, v66 offset:{CNT}")
    e("s_mov_b64 exec, -1")
    e("s_waitcnt lgkmcnt(0)")
    e("s_barrier")
    e("s_branch K2_ROUND")
    e("K2_TAILAT:")
    for i in range(4):
        e(f"ds_add_f32 v{vTl}, v{vAcc+12+i} offset:{4*i}")
    e("s_branch K2_TAILD")
    e("K2_FAIL:")
    e(f"s_movk_i32 s{sLW}, 144")
    e("s_waitcnt vmcnt(0) lgkmcnt(0)")
    e("s_barrier")
    e("s_branch K2_NEXT")
    e("K2_SLOWTOT:")
    e("s_mov_b64 exec, -1")
    e("v_lshlrev_b32 v14, 7, v0")
    e(f"s_lshl_b32 s{sT1}, s2, 16")
    e(f"s_add_u32 s{sT1}, s{sT1}, {WS_TOT}")
    e("s_waitcnt lgkmcnt(0)")
    e(f"s_cmp_lg_u32 s{sFirst}, 0")
    e("s_cbranch_scc1 K2_ST1")
    for r in range(8):
        e(f"buffer_load_dwordx4 {vr(224+4*r,4)}, v14, {sr(sWs,4)}, s{sT1} offen offset:{16*r} sc1")
    e("s_waitcnt vmcnt(0)")
    for r in range(32):
        e(f"v_add_f32 v{192+r}, v{192+r}, v{224+r}")
    e(f"s_cmp_eq_u32 s{sMore}, 0")
    e("s_cbranch_scc1 K2_FIN")
    e("K2_ST1:")
    for r in range(8):
        e(f"buffer_store_dwordx4 {vr(192+4*r,4)}, v14, {sr(sWs,4)}, s{sT1} offen offset:{16*r} sc1")
    e(f"s_mov_b32 s{sFirst}, 0")
    e(f"s_add_u32 s{sJ0}, s{sJ0}, s{sLW}")
    e("s_waitcnt vmcnt(0)")
    e("s_barrier")
    e("s_branch K2_NEXT")

def hi_pure(nt, prio, first=(), after=0, wait=False):
    e(f"s_setprio {prio}")
    ms = mfmas(1 - nt); av = list(first) + avals(nt)
    tr = rcps() + exps(nt)
    per = (3, 3, 3, 3, 3, 3, 2, 2, 2); fl = [0, 0, 0, 0, 0, 0, 2, 2, 2]
    t = 0; f = 0
    for g in range(9):
        e(ms[g])
        seq = [tr[t + i] for i in range(per[g])]; t += per[g]
        fs = [av[f + i] for i in range(fl[g])]; f += fl[g]
        while seq or fs:
            if seq: e(seq.pop(0))
            if fs: e(fs.pop(0))
    e(f"s_setprio {after}")
    assert f >= len(first)
    return av[f:]

def lo_part(nt, rest, adds):
    for y in list(rest) + chain(1 - nt) + list(adds) + frac(nt): e(y)

sEr = 42
sWm = 68
sDum = 43
def cmps(): return [f"v_cmp_gt_u32 {sr(sWm+2*j,2)}, s{sDum}, v{vWK+2*j}" for j in range(4)]
WL = [0]; OOL = []
def flush_ool():
    for y in OOL: e(y)
    OOL.clear()
def mwrites64(nt):
    o = []
    for j in range(4):
        o += [f"s_mov_b64 exec, {sr(sWm+2*j,2)}", f"ds_write_b64 v{vWK+2*j}, {vr(acc(nt,j),2)} offset:{8*nt}"]
    return o + ["s_mov_b64 exec, -1"]
def mwrites():
    if not OPT['mw']: return writes()
    o = []
    for j, w in enumerate(writes()):
        if OPT['wsk'] == 2:
            WL[0] += 1
            o += [f"s_mov_b64 exec, {sr(sWm+2*j,2)}", f"s_cbranch_execnz KWO{WL[0]}", f"KW{WL[0]}:"]
            OOL.extend([f"KWO{WL[0]}:", w, f"s_branch KW{WL[0]}"])
        elif OPT['wsk']:
            WL[0] += 1
            ad = [f"v_add_u32 v{vWK+2*j}, v{vWK+2*j}, v{vN16}"] if OPT['wa'] else []
            o += [f"s_mov_b64 exec, {sr(sWm+2*j,2)}", f"s_cbranch_execz KW{WL[0]}"] + ad + [w, f"KW{WL[0]}:"]
        else:
            o += [f"s_mov_b64 exec, {sr(sWm+2*j,2)}", w]
    return o + ["s_mov_b64 exec, -1"]

TL = [0]
def tl():
    if OPT['tl']:
        e(f"s_memtime {sr(44+2*TL[0],2)}"); TL[0] += 1
def tl_dump(lab):
    if not OPT['tl']: return
    n = TL[0]; TL[0] = 0
    e(f"s_cmp_lg_u32 s{sCnt}, {OPT['tl']}")
    e(f"s_cbranch_scc1 {lab}")
    e("s_waitcnt lgkmcnt(0)")
    for i in range(n):
        e(f"s_mov_b32 s{sSt+2+2*i}, s{44+2*i}")
    e(f"{lab}:")
def hi_last(prio, first, after):
    e(f"s_setprio {prio}")
    for y in rcps() + list(first) + exps(1): e(y)
    e(f"s_setprio {after}")
    return avals(1)

def role_loops():
    aIx = f"v_add_u32 v{vIxA}, 64, v{vIxA}"; aAq = f"v_add_u32 v{vAqA}, 64, v{vAqA}"
    aW = [f"v_add_u32 v{vWK+2*j}, v{vWK+2*j}, v{vN16}" for j in range(4)] if not OPT['wa'] else []
    aWk = f"v_add_u32 v{vWkA}, 32, v{vWkA}"; aQa = f"v_add_u32 v{vQaA}, 8, v{vQaA}"
    cm = cmps()
    for j in range(4):
        e(f"s_mov_b64 {sr(sWm+2*j,2)}, 0")
    e(f"v_subrev_u32 v{vWkA}, 32, v{vWkA}")
    e(f"s_cmp_ge_u32 s{sWave}, 4")
    e("s_cbranch_scc1 KB_PRE")
    e("s_branch KA_ENTRY")
    e(".p2align 6")
    e("KA_LOOP:")
    tail = (cm + avals(1))[6:]
    e("s_waitcnt lgkmcnt(0)")
    lo_part(1, tail, aW)
    e("KA_ENTRY:")
    tl()
    r = hi_pure(0, OPT['pa'], mads() + [AEV, AQV])
    tl()
    e("s_waitcnt vmcnt(0)")
    for y in rd_x() + rd_aq() + rd_bq(0) + rd_bq(1): e(y)
    e(f"s_sub_u32 s{sCnt}, s{sCnt}, 1")
    e(f"s_cmp_eq_u32 s{sCnt}, 0")
    e(f"s_waitcnt lgkmcnt({4 if OPT['cz'] else 3})")
    for y in dma(): e(y)
    e("s_waitcnt lgkmcnt(0)")
    tl()
    lo_part(0, r, [aIx, aAq, aWk, aQa])
    e("s_cbranch_scc1 KA_LAST")
    tl()
    hi_pure(1, OPT['pa'], cm, OPT['pa'] if OPT['wa'] else 0)
    if OPT['wa']: L.pop()
    tl()
    for y in mwrites() + (["s_setprio 0"] if OPT['wa'] else []) + rd_wk() + rd_qa() + rd_idx() + rd_mr(0): e(y)
    tl()
    tl_dump("KA_TL")
    if OPT['trace']: trace_code()
    e("s_branch KA_LOOP")
    flush_ool()
    e("KA_LAST:")
    r = hi_last(OPT['pa'], cm, OPT['pa'])
    for y in mwrites() + ["s_setprio 0"] + rd_wk(): e(y)
    e("s_waitcnt lgkmcnt(0)")
    lo_part(1, r, aW)
    e("s_branch K2_DRAIN")
    flush_ool()
    e("KB_PRE:")
    e(f"v_subrev_u32 v{vAqA}, 64, v{vAqA}")
    e(".p2align 6")
    e("KB_LOOP:")
    tl()
    r = hi_pure(0, OPT['pb'], mads() + [AEV, AQV], OPT['pl'])
    tl()
    lo_part(0, r, [aIx, aQa, aWk, aAq][:OPT['bal']])
    tl()
    e("s_waitcnt vmcnt(0)")
    mw = mwrites64(1) if OPT['b64'] else mwrites()
    if OPT['wsk']:
        for y in rd_x() + rd_aq() + rd_bq(0): e(y)
        e(f"s_sub_u32 s{sCnt}, s{sCnt}, 1")
        e(f"s_cmp_eq_u32 s{sCnt}, 0")
        if OPT['bd'] != 1:
            e("s_waitcnt lgkmcnt(3)")
            e("s_cbranch_scc1 KB_LAST0")
            for y in dma()[:4 if OPT['bd'] == 0 else 2]: e(y)
            e("KB_LAST0:")
        for y in mw + rd_wk(): e(y)
        e("s_cbranch_scc1 KB_LAST")
        e("s_waitcnt lgkmcnt(2)")
        tl()
        r = hi_pure(1, OPT['pb'], ["s_waitcnt lgkmcnt(0)"] + cm, OPT['pl'])
    elif OPT['bw']:
        for y in rd_x() + rd_aq() + rd_bq(0) + mw: e(y)
        e(f"s_sub_u32 s{sCnt}, s{sCnt}, 1")
        e(f"s_cmp_eq_u32 s{sCnt}, 0")
        e("s_waitcnt lgkmcnt(4)")
        for y in rd_wk(): e(y)
        e("s_cbranch_scc1 KB_LAST")
        for y in dma(): e(y)
        tl()
        r = hi_pure(1, OPT['pb'], ["s_waitcnt lgkmcnt(0)"] + cm, OPT['pl'])
    else:
        for y in rd_x() + rd_aq() + rd_bq(0) + mw + rd_wk(): e(y)
        e(f"s_sub_u32 s{sCnt}, s{sCnt}, 1")
        e(f"s_cmp_eq_u32 s{sCnt}, 0")
        e("s_cbranch_scc1 KB_LAST")
        e("s_waitcnt lgkmcnt(6)")
        for y in dma(): e(y)
        e("s_waitcnt lgkmcnt(0)")
        tl()
        r = hi_pure(1, OPT['pb'], cm, OPT['pl'])
    tl()
    lo_part(1, r, aW + [aIx, aQa, aWk, aAq][OPT['bal']:])
    tl()
    for y in rd_bq(1) + rd_qa() + rd_mr(64) + (dma()[0 if OPT['bd'] == 1 else 2:] if OPT['bd'] else []) + rd_idx(): e(y)
    nw = 0
    if OPT['b64']:
        for y in mwrites64(0): e(y)
        nw = 4
    tl_dump("KB_TL")
    if OPT['trace']: trace_code()
    e(f"s_waitcnt lgkmcnt({nw})")
    e("s_branch KB_LOOP")
    flush_ool()
    e("KB_LAST:")
    r = hi_last(OPT['pb'], [], OPT['pl'])
    e("s_waitcnt lgkmcnt(0)")
    lo_part(1, r, aW)

def trace_code():
    e("s_memtime s[44:45]")
    e("s_memrealtime s[46:47]")
    e(f"s_lshl_b32 s48, s2, 3")
    e(f"s_add_u32 s48, s48, s{sWave}")
    e(f"s_lshl_b32 s48, s48, 4")
    e(f"s_add_u32 s48, s48, s{sCnt}")
    e(f"s_lshl_b32 s48, s48, 3")
    e(f"s_add_u32 s48, s48, {WS_DIAG+0x80000}")
    e("s_waitcnt lgkmcnt(0)")
    e("v_mov_b32 v8, s44")
    e("v_mov_b32 v9, s46")
    e("v_mov_b32 v10, 0")
    e("s_mov_b64 exec, 1")
    e(f"buffer_store_dwordx2 v[8:9], v10, {sr(sWs,4)}, s48 offen")
    e("s_mov_b64 exec, -1")

def loop_body():
    global L
    n0 = len(L)
    loop_body0()
    k = OPT['kill']
    body = L[n0:]; del L[n0:]
    for l in body:
        t = l.strip()
        if k & 1 and t.startswith('ds_read'): continue
        if k & 2 and t.startswith('ds_write'): continue
        if k & 4 and t.startswith('buffer_load'): continue
        if k & 8 and t.startswith('s_waitcnt') and not OPT['trace']: continue
        if k & 16 and t.startswith('v_add_u32'): continue
        if k & 32 and t.startswith('v_fmaak'): l = l.replace('v_fmaak_f32','v_mul_f32').rsplit(',',1)[0]
        if k & 64 and t.startswith('v_fma_f32'): l = l.replace('v_fma_f32','v_mul_f32').rsplit(',',1)[0]
        if k & 128 and t.startswith('v_and_b32'): continue
        L.append(l)
def loop_body0():
    e("s_setprio 1")
    ex = [[] for _ in range(9)]
    x = rd_x(); md = mads()
    ex[0] = rd_aq() + rd_bq(0)
    ex[1] = rd_bq(1) + ["s_waitcnt vmcnt(0)"]
    ex[2] = [x[0]]
    ex[4] = [x[1]]
    ex[5] = md[:2]
    ex[6] = [x[2]]
    ex[7] = md[2:]
    ex[8] = [x[3]]
    hi_phase(mfmas(1), rcps() + exps(0), ex)
    e("s_setprio 0")
    for y in mix(chain(1), avals(0)): e(y)
    e(f"v_add_u32 v{vIxA}, 64, v{vIxA}")
    e(f"v_add_u32 v{vAqA}, v{vAqA}, v{vAqI}")
    for y in frac(0): e(y)
    e("s_setprio 1")
    e("s_waitcnt lgkmcnt(0)")
    ex = [[] for _ in range(9)]
    w = writes(); d = dma(); wk = rd_wk()
    ex[0] = [d[0], w[0]]; ex[1] = [d[1], w[1]]; ex[2] = [d[2], w[2]]
    ex[4] = [d[3], w[3]]; ex[5] = wk; ex[7] = rd_qa() + [f"s_sub_u32 s{sCnt}, s{sCnt}, 1"]; ex[8] = rd_idx()
    hi_phase(mfmas(0), rcps() + exps(1), ex)
    e("s_setprio 0")
    av = avals(1)
    for y in av[:8]: e(y)
    e("s_waitcnt lgkmcnt(0)")
    for y in mix(chain(0), av[8:]): e(y)
    for j in range(4):
        e(f"v_add_u32 v{vWK+2*j}, v{vWK+2*j}, v{vN16}")
    e(f"v_add_u32 v{vWkA}, 32, v{vWkA}")
    e(f"v_add_u32 v{vQaV}, v{vQaV}, v{vQaC}")
    e(f"v_add_u32 v{vQaA}, 16, v{vQaA}")
    for y in frac(1): e(y)
    if OPT['trace']: trace_code()
    e(f"s_cmp_lg_u32 s{sCnt}, 0")
    e("s_cbranch_scc1 K2_LOOP")

def kd(name, vg, sg):
    L.extend([f".amdhsa_kernel {name}",
              f"  .amdhsa_next_free_vgpr {vg}",
              f"  .amdhsa_next_free_sgpr {sg}",
              f"  .amdhsa_accum_offset {(vg+3)//4*4}",
              "  .amdhsa_group_segment_fixed_size 0",
              "  .amdhsa_kernarg_size 96",
              "  .amdhsa_user_sgpr_count 2",
              "  .amdhsa_user_sgpr_kernarg_segment_ptr 1",
              "  .amdhsa_system_sgpr_workgroup_id_x 1",
              ".end_amdhsa_kernel"])

hdr = open("cdna_kernels/%s.s.ref" % NAME).read().split("\n")
for l in hdr:
    if l.startswith("; Override") : break
    L.append(l)
if OPT['lst']:
    L.append(f"; @launch kernel={NAME}_kernel grid=(256,1,1) block=(512,1,1) lds={K2_LDS}")
else:
    L.append(f"; @launch grid=(256,1,1) block=(512,1,1) lds={K2_LDS}")
L.append('.amdgcn_target "amdgcn-amd-amdhsa--gfx950"')
L.append(".text")
L.append(f".globl {NAME}_kernel")
L.append(f".type {NAME}_kernel,@function")
sSt = 82
for i, n in enumerate(OPT.get('pts', 'b2,b3,b4,go,hist').split(',')): PTS[n] = i + 1
k2()
L.append("K2_CODE_END:")
L.append('.section .rodata,"a"')
L.append(".p2align 6")
kd(f"{NAME}_kernel", 256, 102)
open(sys.argv[1], "w").write("\n".join(L) + "\n")
print("K2_LDS", K2_LDS, "ATAB", ATAB, "STG", STG, "ROWS", ROWS)
```

```python
import sys, struct

NAME = "standalone__edge_featured_mpnn_gatedgcn__graph"
OPT = dict(stamp=0, trace=0, stf=1, ldf=3, sched=0, remap=1, nodefirst=0, kill=0, pf=1, h1=4, dbg=0, alt=0, alt2=0, slp=10, rt=0, ost=0, role=1, fill=14, pa=2, pb=1, pl=3, wf=1, tl=0, mw=1, bt=-1, fb=0, peel=1, pf7=0, pfa=0, pfb=16, skp=2, dl=1, qu=3, lat=0, tlb=0, tw=0, rs=1, rl=1, pl_=1, ps=1, ncl=64, cat=0, wofs=0, bal=4, sp=0, ra=0, cz=1, co=0, cpf=0, em=1, bo=0, prog=1, bw=1, b64=0, wsk=1, wa=1, bd=1, fo=2, tr=1, eb=0, lst=0)
for a in sys.argv[2:]:
    k, v = a.split('=')
    OPT[k] = int(v) if k != 'pts' else v

L = []
def e(s=""): L.append("    " + s if s and not s.endswith(":") else s)
def c(s): L.append("    ; " + s)
def f32(x): return "0x%08x" % struct.unpack("<I", struct.pack("<f", x))[0]
def vr(a, n): return f"v[{a}:{a+n-1}]"
def sr(a, n): return f"s[{a}:{a+n-1}]"
FL = ["", " sc1", " sc0 sc1", " nt", " sc1 nt", " sc0 sc1 nt"]

N = 25000; E = 800000
CH = 3136
CHB = CH * 12
BM = 171799
BK = 6399988
WS_T = 0
WS_IMG = 0x40000
WS_REC = 0x80000 + OPT['wofs'] * 0x100000
WS_AU = 0xA00000
WS_TOT = 0x1100000
WS_DIAG = 0x2F00000
WS_SIZE = 0x10000000
LOG2E = 1.4426950408889634
NODE_WGS = 196
RFLAG = 0x21800000
sSt = 82

def srd(d, b, size, stride=0):
    e(f"s_mov_b32 s{d}, s{b}")
    e(f"s_and_b32 s{d+1}, s{b+1}, 0xffff")
    if stride:
        e(f"s_or_b32 s{d+1}, s{d+1}, {stride<<16:#x}")
    e(f"s_mov_b32 s{d+2}, {size}")
    e(f"s_mov_b32 s{d+3}, 0x20000")

def scan64(v):
    for m in ("row_shr:1 row_mask:0xf", "row_shr:2 row_mask:0xf", "row_shr:4 row_mask:0xf",
              "row_shr:8 row_mask:0xf", "row_bcast:15 row_mask:0xa", "row_bcast:31 row_mask:0xc"):
        e("s_nop 1")
        e(f"v_add_u32_dpp v{v}, v{v}, v{v} {m} bank_mask:0xf")

PTS = {}
def pt(name):
    if name in PTS: stamp(PTS[name])
def stamp(i):
    if OPT['stamp']:
        e(f"{'s_memrealtime' if OPT['rt'] else 's_memtime'} {sr(sSt+2*i,2)}")
        if i == 0:
            e(f"s_memrealtime {sr(sSt+18,2)}")
def diag_out(kidx, nst, swave, ssrd, extra=None, vt=8):
    if OPT['dbg']:
        e("s_memrealtime s[42:43]")
        e("s_load_dwordx2 s[44:45], s[0:1], 80")
        e("s_waitcnt lgkmcnt(0)")
        e(f"s_cmp_lg_u32 s2, {OPT['dbg']}")
        e(f"s_cbranch_scc1 K{kidx+1}_END")
        e(f"s_cmp_lg_u32 s{swave}, 5")
        e(f"s_cbranch_scc1 K{kidx+1}_END")
        e(f"s_add_u32 s44, s44, {512*(1-kidx)}")
        e("s_addc_u32 s45, s45, 0")
        srd(48, 44, 64)
        e(f"v_mov_b32 v{vt}, 0")
        e("s_mov_b64 exec, 1")
        sel = [(2,3,5,6,8),(1,2,4,5,6,7,8)][kidx]
        o = [0, 7][kidx]
        e(f"v_mov_b32 v{vt+1}, s{sSt+18}")
        e(f"buffer_store_dword v{vt+1}, v{vt}, s[48:51], 0 offen offset:{4*o}")
        for n, i in enumerate(sel):
            e(f"s_sub_u32 s40, s{sSt+2*i}, s{sSt}")
            e(f"v_mov_b32 v{vt+1}, s40")
            e(f"buffer_store_dword v{vt+1}, v{vt}, s[48:51], 0 offen offset:{4*(o+1+n)}")
        e(f"v_mov_b32 v{vt+1}, s42")
        e(f"buffer_store_dword v{vt+1}, v{vt}, s[48:51], 0 offen offset:{4*(o+1+len(sel))}")
        return
    e("s_memrealtime s[42:43]")
    e("s_waitcnt lgkmcnt(0)")
    e(f"s_lshl_b32 s39, s2, 4")
    e(f"s_add_u32 s39, s39, s{swave}")
    e(f"s_lshl_b32 s39, s39, 6")
    e(f"s_add_u32 s39, s39, {WS_DIAG + kidx*0x40000}")
    e(f"v_mov_b32 v{vt}, 0")
    e("s_mov_b64 exec, 1")
    for i in range(1, nst):
        e(f"s_sub_u32 s40, s{sSt+2*i}, {'0' if OPT['rt']==2 or OPT['tl'] else 's%d' % sSt}")
        e(f"v_mov_b32 v{vt+1}, s40")
        e(f"buffer_store_dword v{vt+1}, v{vt}, {sr(ssrd,4)}, s39 offen offset:{4*(i-1)}")
    if extra is not None:
        e(f"v_mov_b32 v{vt+1}, s{extra}")
        e(f"buffer_store_dword v{vt+1}, v{vt}, {sr(ssrd,4)}, s39 offen offset:48")
    e("s_getreg_b32 s40, hwreg(HW_REG_HW_ID)")
    e(f"v_mov_b32 v{vt+1}, s40")
    e(f"buffer_store_dword v{vt+1}, v{vt}, {sr(ssrd,4)}, s39 offen offset:52")
    e(f"v_mov_b32 v{vt+1}, s{sSt+18}")
    e(f"buffer_store_dword v{vt+1}, v{vt}, {sr(ssrd,4)}, s39 offen offset:56")
    e(f"v_mov_b32 v{vt+1}, s42")
    e(f"buffer_store_dword v{vt+1}, v{vt}, {sr(ssrd,4)}, s39 offen offset:60")

def mfma(d, a, b, cc):
    cs = "0" if cc is None else vr(cc, 16)
    return f"v_mfma_f32_32x32x16_bf16 {vr(d,16)}, {vr(a,4)}, {vr(b,4)}, {cs}"

CAP = 3584
CNT = 0
MORE = 512
ZERO = 1056
BI = 528
M4 = 1280
QA = M4 + CAP * 4 + 64
AST = 136
RST = 528
ATAB = QA + (CAP // 4) * 4 + 64
ER = (ATAB + 98 * AST + 15) // 16 * 16
STG = (ER + 40960 + 255) // 256 * 256
SST = 4352
ROWS = STG + 8 * SST
K2_LDS = ROWS + 98 * RST
WRAW = STG
XOWN = ROWS
WCT = ROWS + 16384
P_HIST = (WCT + 1024 + 1023) // 1024 * 1024
P_BASE = P_HIST + 1024
UTMP = P_BASE + 1024
P_STG = ER
NONLAST = 0x80000000; NOROW = 0x40000000
assert CHB <= 40960 and UTMP + 112 * 256 <= K2_LDS
assert ATAB % 8 == 0 and K2_LDS <= 160 * 1024 and ATAB < 65536, (K2_LDS, ATAB)
SC = 24
PADV = 0x7F007F00
RFLAG = 0x21800000

vW = 128; vD = [192, 224]; vX = 112; vBq = [104, 108]; vAq = 100; vAcc = 84
vS = 72; vN = 76; vP = 80; vWK = 64; vIdx = 56; vC = 40; vXo = 32; vV = 40; vRow = 28; vOut = 29; vTl = 30; vXa = 20
vLane = 1; vAqA = 2; vEa = 3; vIxA = 4; vQaA = 5; vQaV = 6; vQaC = 7
vZa = 16; vN16 = 17; vC1 = 18; vTail = 19
vTe = 8
sX = 4; sXr = 8; sWs = 12; sOut = 16; sWc = 20
sBase = 24; sNN = 25; sWave = 26; sJ0 = 27; sLW = 28; sFirst = 29; s128 = 30; sQt = 31; sTt = 32
sNT = 33; sQw = 34; sStg = 35; sMore = 36; sBig = 37; sCnt = 38; sT0 = 39; sT1 = 40; sT2 = 41
sMk = 44

def G(b): return vD[b]
def H(b): return vD[b] + 16
def Wg(nt, s): return vW + (nt * 4 + s) * 4
def Wh(nt, s): return vW + 32 + (nt * 4 + s) * 4
def mfmas(nt):
    g = G(nt); h = H(nt)
    first = [mfma(g, vAq, vBq[nt], None if OPT['cz'] else vC)]
    gs = [mfma(g, vX+4*k, Wg(nt,k), g) for k in range(4)]
    hs = [mfma(h, vX+4*k, Wh(nt,k), h if k else None) for k in range(4)]
    if OPT['co']: return first + gs + hs
    return first + [x for p in zip(hs, gs) for x in p]
def acc(nt, j): return vAcc + j * 4 + nt * 2
SS = [72, 73, 74, 75, 8, 9, 10, 11]; NN = [76, 77, 78, 79, 12, 13, 14, 15]; PP = [81, 82, 83, 80, 25, 26, 27, 24]
def chain(nt):
    o = []
    for hq in (0, 4):
        for j in range(4):
            a = acc(nt, j); q = hq + j
            o += [f"v_fmac_f32 v{a}, v{SS[q]}, v{PP[q]}", f"v_fmac_f32 v{a+1}, v{NN[q]}, v{PP[q]}"]
    return o
def avals(nt):
    g = G(nt)
    return [f"v_add_f32 v{g+r}, v{g+r}, v{vC1}" for r in range(16)]
def frac(nt):
    g = G(nt); h = H(nt); o = []
    R = range(8); f = lambda q: 4 * (q % 4) + 2 * (q // 4)
    o += [f"v_mul_f32 v{NN[q]}, v{h+f(q)}, v{g+f(q)+1}" for q in R]
    o += [f"v_add_f32 v{SS[q]}, v{g+f(q)}, v{g+f(q)+1}" for q in R]
    o += [f"v_mul_f32 v{PP[q]}, v{g+f(q)}, v{g+f(q)+1}" for q in R]
    o += [f"v_fmac_f32 v{NN[q]}, v{h+f(q)+1}, v{g+f(q)}" for q in R]
    return o
def mix(a, b):
    o = []; a = list(a); b = list(b)
    while a or b:
        if a: o += a[:2]; a = a[2:]
        if b: o += b[:2]; b = b[2:]
    return o
def exps(nt): return [f"v_exp_f32_e64 v{G(nt)+r}, v{G(nt)+r} clamp" for r in range(16)]
def rcps(): return [f"v_rcp_f32 v{p}, v{p}" for p in PP]
def rd_x(): return [f"ds_read_b128 {vr(vX+4*s,4)}, v{vXa+s}" for s in range(4)]
def rd_aq():
    return [f"ds_read_b32 v{vAq}, v{vAqA} offset:{M4}", "s_mov_b32 exec_lo, 0", f"ds_read_b64 {vr(vAq,2)}, v{vEa}", "s_mov_b32 exec_lo, -1"]
def rd_mr(ahead): return [f"ds_read_u16 v{vEa}, v{vAqA} offset:{M4+2+ahead}"]
AEV = f"v_lshl_add_u32 v{vEa}, v{vEa}, 3, s42"
def rd_idx(): return [f"ds_read_b128 {vr(vIdx,4)}, v{vIxA} offset:{M4}"]
def mads(): return [f"v_mad_u32_u16 v{vIdx+i}, v{vIdx+i}, s{s128}, v{vIdx+4+i}" for i in range(4)]
def rd_qa(): return [f"ds_read_u16 v{vQaV}, v{vQaA} offset:{QA}"]
AQV = f"v_add_u32 v{vQaV}, v{vQaV}, v{vQaC}"
def rd_bq(nt): return [f"ds_read_b64_tr_b16 {vr(vBq[nt]+2,2)}, v{vQaV} offset:{ATAB+64*nt}"]
def rd_wk(): return [f"ds_read_b32 v{vWK}, v{vQaA} offset:{QA-8}"]
def dma(): return [f"buffer_load_dwordx4 v{vIdx+i}, {sr(sX,4)}, 0 offen offset:{1024*i} lds" for i in range(4)]

def hi_phase(ms, trans, extras, per=(2, 2, 2, 3, 2, 2, 3, 2, 2)):
    t = 0
    for g in range(9):
        e(ms[g])
        for _ in range(per[g]):
            e(trans[t]); t += 1
        for x in extras[g]:
            e(x)
    assert t == 20

def side_consts():
    c("copy source addresses: v82 weights, v78/v79 own x rows")
    e(f"v_lshrrev_b32 v81, 5, v{vLane}")
    e(f"v_and_b32 v77, 7, v{vLane}")
    e("v_lshlrev_b32 v78, 2, v81")
    e("v_xor_b32 v77, v77, v78")
    e(f"v_and_b32 v82, 16, v{vLane}")
    e("v_lshlrev_b32 v82, 2, v82")
    e("v_xor_b32 v82, v68, v82")
    e(f"s_and_b32 s{sT2}, s{sWave}, 1")
    e(f"s_lshl_b32 s{sT1}, s{sT2}, 1")
    e(f"v_xor_b32 v78, s{sT1}, v77")
    e("v_lshlrev_b32 v78, 4, v78")
    e(f"v_lshrrev_b32 v79, 3, v{vLane}")
    e("v_lshl_add_u32 v78, v79, 9, v78")
    e("v_xor_b32 v79, 16, v78")
    e("v_add_u32 v79, 128, v79")
    e(f"s_lshr_b32 s{sT0}, s{sWave}, 1")
    e(f"s_lshl_b32 s{sT0}, s{sT0}, 5")
    e(f"s_add_u32 s{sQw}, s{sT0}, s{sBase}")
    e(f"s_add_u32 s{sQw}, s{sQw}, s{sT1}")
    e(f"s_lshl_b32 s{sQw}, s{sQw}, 7")

def lane_consts():
    c("---- lane constants ----")
    e(f"v_and_b32 v67, 31, v{vLane}")
    e(f"v_bfe_u32 v70, v{vLane}, 2, 1")
    e(f"v_bfe_u32 v71, v{vLane}, 3, 2")
    e("v_and_b32 v72, 1, v71")
    e("v_lshlrev_b32 v72, 4, v72")
    e("v_mov_b32 v73, 0x3f80")
    e("v_cmp_eq_u32 vcc, v70, v81")
    e("v_lshlrev_b32 v72, v72, v73")
    e("v_cmp_gt_u32 s[42:43], 2, v71")
    e("v_cndmask_b32 v72, 0, v72, vcc")
    e(f"v_and_b32 v73, 3, v{vLane}")
    e(f"v_cndmask_b32 v{vAq+2}, 0, v72, s[42:43]")
    e(f"v_cndmask_b32 v{vAq+3}, v72, 0, s[42:43]")
    e(f"v_mov_b32 v{vAq+1}, 0x3f80")
    for i in range(4):
        e(f"v_xor_b32 v74, {i}, v77")
        e(f"v_lshlrev_b32 v74, 4, v74")
        e(f"v_add_u32 v{vIdx+4+i}, {3072-1024*i}, v74")
    e(f"v_bfe_u32 v74, v{vLane}, 2, 3")
    e(f"v_bfe_u32 v75, v{vLane}, 4, 1")
    e("v_lshl_add_u32 v72, v75, 2, v73")
    e("v_lshlrev_b32 v76, 10, v73")
    e("v_lshl_add_u32 v76, v74, 7, v76")
    e(f"v_add_u32 v76, s{sStg}, v76")
    e("v_xor_b32 v72, v72, v81")
    for s_ in range(4):
        e(f"v_xor_b32 v74, {2*s_}, v72")
        e(f"v_lshl_add_u32 v{vXa+s_}, v74, 4, v76")
    e(f"v_lshlrev_b32 v{vN16}, 2, v75")
    e(f"v_xor_b32 v{vN16}, v{vN16}, v67")
    e(f"v_lshlrev_b32 v{vN16}, 4, v{vN16}")
    e(f"v_add_u32 v{vN16}, {ROWS}, v{vN16}")
    e(f"v_mov_b32 v{vC1}, {f32(2.0**(-2*SC))}")
    e(f"v_mov_b32 v{vZa}, {ZERO}")
    e("v_lshlrev_b32 v73, 3, v73")
    e(f"v_lshl_add_u32 v{vQaC}, v75, 5, v73")
    c("setup addresses: v8 A table write, v9/v10/v11 transposed reads, v12 wc, v24..27 own x")
    e(f"s_and_b32 s{sT2}, s{sWave}, 1")
    e(f"s_lshr_b32 s{sT0}, s{sWave}, 1")
    e(f"s_lshl_b32 s{sT1}, s{sT0}, 5")
    e(f"v_add_u32 v8, s{sT1}, v67")
    e(f"v_cmp_gt_u32 {sr(sMore,2)}, s{sNN}, v8")
    e(f"v_mul_u32_u24 v8, {AST}, v8")
    e("v_lshl_add_u32 v8, v81, 3, v8")
    e(f"s_lshl_b32 s{sT2}, s{sT2}, 6")
    e(f"v_add_u32 v8, s{sT2}, v8")
    e(f"v_bfe_u32 v71, v{vLane}, 2, 2")
    e("v_lshl_add_u32 v12, v81, 2, v71")
    e(f"v_lshl_add_u32 v12, v12, 7, v{vQaC}")
    e(f"v_add_u32 v12, {WCT}, v12")
    e("v_lshl_add_u32 v9, v81, 3, v71")
    e(f"v_lshl_add_u32 v9, v9, 7, v{vQaC}")
    e(f"v_bfe_u32 v71, v{vLane}, 3, 1")
    e("v_lshl_add_u32 v9, v71, 6, v9")
    e(f"v_add_u32 v9, {WRAW}, v9")
    e("v_xor_b32 v10, 64, v9")
    e(f"v_xor_b32 v11, s{sT2}, v9")
    e(f"s_lshl_b32 s{sT0}, s{sT0}, 12")
    e(f"s_add_u32 s{sT0}, s{sT0}, {XOWN}")
    e(f"s_sub_u32 s{sT0}, s{sT0}, s{sStg}")
    for s_ in range(4):
        e(f"v_add_u32 v{24+s_}, s{sT0}, v{vXa+s_}")

def prefetch_all(lanes, first_line, vt):
    if not lanes: return
    e(f"s_and_b32 s{sT2}, s2, 31")
    e(f"s_mul_i32 s{sT2}, s{sT2}, 782")
    e(f"s_mul_i32 s{sT1}, s{sWave}, {lanes}")
    e(f"s_add_u32 s{sT2}, s{sT2}, s{sT1}")
    e(f"s_add_u32 s{sT2}, s{sT2}, {first_line}")
    e(f"s_lshl_b32 s{sT2}, s{sT2}, 7")
    e(f"v_lshlrev_b32 v{vt}, 7, v{vLane}")
    e(f"s_mov_b64 exec, {(1<<lanes)-1 if lanes<64 else -1}" if lanes<=32 or lanes==64 else f"s_bfm_b64 exec, {lanes}, 0")
    e(f"buffer_load_dword v{vt}, v{vt}, {sr(sXr,4)}, s{sT2} offen")
    e("s_mov_b64 exec, -1")

def scale8(first, n):
    for r in range(n):
        e(f"v_lshlrev_b32 v72, 16, v{first+r}")
        e(f"v_and_b32 v73, 0xffff0000, v{first+r}")
        e(f"v_mul_f32 v72, v74, v72")
        e(f"v_mul_f32 v73, v74, v73")
        e(f"v_cvt_pk_bf16_f32 v{first+r}, v72, v73")

def k2():
    st = FL[OPT['stf']]; ld = FL[OPT['ldf']]
    sP = 3
    e(".p2align 8")
    e(f"{NAME}_kernel:")
    e("s_cmp_ge_u32 s2, 256")
    e("s_cbranch_scc1 K2_END")
    stamp(0)
    e("s_load_dwordx8 s[44:51], s[0:1], 0")
    e("s_load_dwordx8 s[52:59], s[0:1], 64")
    e("s_load_dwordx8 s[60:67], s[0:1], 32")
    e(f"s_mov_b32 s{sP}, s2")
    if OPT['cpf']:
        c("pull the code into the L2 (one dword per 128-byte line, threads 0..CODE/128)")
        e("s_getpc_b64 s[68:69]")
        e("v_lshlrev_b32 v250, 7, v0")
        e("v_mov_b32 v251, s69")
        e(f"s_movk_i32 s70, {OPT['cpf']}")
        e("v_cmp_gt_u32 s[72:73], s70, v0")
        e("v_add_co_u32 v250, vcc, s68, v250")
        e("s_nop 1")
        e("v_addc_co_u32 v251, vcc, 0, v251, vcc")
        e("s_mov_b64 exec, s[72:73]")
        e("s_cbranch_execz K2_NOPF")
        e("global_load_dword v252, v[250:251], off")
        e("K2_NOPF:")
        e("s_mov_b64 exec, -1")
    e(f"s_and_b32 s{sT0}, s2, 7")
    e("s_lshr_b32 s2, s2, 3")
    e(f"s_lshl_b32 s{sT0}, s{sT0}, 5")
    e(f"s_or_b32 s2, s2, s{sT0}")
    e(f"v_and_b32 v{vLane}, 63, v0")
    e("v_lshrrev_b32 v2, 6, v0")
    e(f"s_mul_i32 s{sT0}, s{sP}, {CH*4}")
    e(f"v_readfirstlane_b32 s{sWave}, v2")
    e(f"v_lshl_add_u32 v64, v0, 4, s{sT0}")
    e(f"v_add_u32 v65, 7168, v64")
    e("v_lshlrev_b32 v66, 1, v64")
    e("v_lshlrev_b32 v67, 1, v65")
    e(f"s_mov_b32 s{sT1}, {E*4}")
    e("s_movk_i32 s42, 336")
    e(f"v_cmp_gt_u32 s[76:77], s{sT1}, v64")
    e(f"v_cmp_gt_u32 s[78:79], s{sT1}, v65")
    e("v_cmp_gt_u32 vcc, s42, v0")
    e(f"v_lshlrev_b32 v68, 4, v{vLane}")
    e(f"v_add_u32 v69, {P_HIST}, v68")
    e(f"v_lshrrev_b32 v248, 3, v{vLane}")
    e("v_and_b32 v249, 0x70, v68")
    e("v_lshl_or_b32 v248, v248, 15, v249")
    for i in range(4):
        e(f"v_mov_b32 v{72+i}, 0")
    e("s_and_b64 s[78:79], s[78:79], vcc")
    e(f"s_cmp_eq_u32 s{sWave}, 7")
    e("s_cselect_b64 s[80:81], -1, 0")
    e("s_andn2_b64 s[76:77], s[76:77], s[80:81]")
    e("s_mov_b64 exec, s[80:81]")
    e("ds_write_b128 v69, v[72:75]")
    e(f"ds_write_b128 v68, v[72:75] offset:{CNT}")
    e(f"ds_write_b128 v68, v[72:75] offset:{ZERO+16-1024}")
    e(f"s_mul_i32 s{sBase}, s2, {BK}")
    e(f"s_add_u32 s{sNN}, s{sBase}, {BK+65535}")
    e(f"s_add_u32 s{sBase}, s{sBase}, 65535")
    e(f"s_lshr_b32 s{sBase}, s{sBase}, 16")
    e(f"s_lshr_b32 s{sNN}, s{sNN}, 16")
    e(f"s_sub_u32 s{sNN}, s{sNN}, s{sBase}")
    e(f"s_mov_b32 s{sJ0}, 0")
    e(f"s_movk_i32 s{sLW}, 384")
    e(f"s_mov_b32 s{sFirst}, 1")
    e(f"s_mul_i32 s{sStg}, s{sWave}, {SST}")
    e(f"s_add_u32 s{sStg}, s{sStg}, {STG}")
    e("s_waitcnt lgkmcnt(0)")
    if OPT['tw']:
        srd(sWs, 58, WS_SIZE)
        e(f"v_lshlrev_b32 v83, {OPT['tw']}, v{vLane}")
        e(f"buffer_load_dword v83, v83, {sr(sWs,4)}, 0 offen")
    srd(68, 50, E * 4)
    e("s_mov_b64 exec, s[76:77]")
    e("buffer_load_dwordx4 v[192:195], v64, s[68:71], 0 offen" + ld)
    e("s_mov_b64 exec, s[78:79]")
    e("buffer_load_dwordx4 v[196:199], v65, s[68:71], 0 offen" + ld)
    srd(sWs, 58, WS_SIZE)
    c("wave 7 of the first workgroups clears the run table")
    NCL = OPT['ncl']; PER = 262144 // NCL
    e(f"s_cmp_lt_u32 s{sP}, {NCL}")
    e("s_cselect_b64 exec, s[80:81], 0")
    e("s_cbranch_execz P1_NOCL")
    e(f"s_mul_i32 s{sT0}, s{sP}, {PER}")
    for k in range(PER // 1024):
        e(f"buffer_store_dwordx4 v[72:75], v68, {sr(sWs,4)}, s{sT0} offen offset:{(k%4)*1024} sc1")
        if k % 4 == 3 and k + 1 < PER // 1024:
            e(f"s_add_u32 s{sT0}, s{sT0}, 4096")
    e("P1_NOCL:")
    srd(72, 48, E * 4)
    srd(sOut, 46, E * 8)
    e("s_barrier")
    pt('b1')
    e("s_mov_b64 exec, s[76:77]")
    e("buffer_load_dwordx4 v[200:203], v64, s[72:75], 0 offen" + ld)
    e(f"buffer_load_dwordx4 v[208:211], v66, {sr(sOut,4)}, 0 offen" + ld)
    e(f"buffer_load_dwordx4 v[212:215], v66, {sr(sOut,4)}, 0 offen offset:16" + ld)
    e("s_mov_b64 exec, -1")
    srd(sWc, 56, 256)
    srd(sXr, 44, N * 128)
    e("s_sub_u32 s50, s44, 3072")
    e("s_subb_u32 s51, s45, 0")
    srd(sX, 50, N * 128 + 3072)
    e(f"s_movk_i32 s{s128}, 128")
    side_consts()
    e(f"s_cmp_eq_u32 s{sWave}, 7")
    e("s_cbranch_scc1 P1_W7A")
    e("v_mov_b32 v70, 12")
    e(f"s_mov_b32 s{sT0}, {BM}")
    e("s_movk_i32 s42, 0x3fc")
    e(f"v_mov_b32 v71, {P_HIST}")
    if OPT['eb']:
        if OPT['eb'] == 1: e("s_waitcnt vmcnt(4)")
        e("s_mov_b64 exec, s[78:79]")
        e("buffer_load_dwordx4 v[204:207], v65, s[72:75], 0 offen" + ld)
        e(f"buffer_load_dwordx4 v[216:219], v67, {sr(sOut,4)}, 0 offen" + ld)
        e(f"buffer_load_dwordx4 v[220:223], v67, {sr(sOut,4)}, 0 offen offset:16" + ld)
    for it in range(2):
        e(f"s_mov_b64 exec, s[{76+2*it}:{77+2*it}]")
        e(f"s_waitcnt vmcnt({4-it})")
        for i in range(4):
            e(f"v_mul_u32_u24 v{224+4*it+i}, s{sT0}, v{192+4*it+i}")
        for i in range(4):
            e(f"v_lshrrev_b32 v{224+4*it+i}, 22, v{224+4*it+i}")
        for i in range(4):
            e(f"v_and_or_b32 v{224+4*it+i}, v{224+4*it+i}, s42, v71")
            e(f"ds_add_rtn_u32 v{232+4*it+i}, v{224+4*it+i}, v70")
        for i in range(4):
            e(f"v_and_b32 v{192+4*it+i}, 127, v{192+4*it+i}")
    if not OPT['eb']:
        e("s_mov_b64 exec, s[78:79]")
        e("buffer_load_dwordx4 v[204:207], v65, s[72:75], 0 offen" + ld)
        e(f"buffer_load_dwordx4 v[216:219], v67, {sr(sOut,4)}, 0 offen" + ld)
        e(f"buffer_load_dwordx4 v[220:223], v67, {sr(sOut,4)}, 0 offen offset:16" + ld)
    e("s_mov_b64 exec, -1")
    e("s_waitcnt lgkmcnt(0)")
    def p1_scan():
        e("s_barrier")
        pt('b2')
        e("ds_read_b128 v[240:243], v69")
        e("s_waitcnt lgkmcnt(0)")
        e("v_add_u32 v72, v240, v241")
        e("v_add_u32 v73, v72, v242")
        e("v_add_u32 v76, v73, v243")
        e("v_mov_b32 v80, v76")
        scan64(80)
        e("v_sub_u32 v244, v80, v76")
        e("v_add_u32 v245, v244, v240")
        e("v_add_u32 v246, v244, v72")
        e("v_add_u32 v247, v244, v73")
    p1_scan()
    e(f"ds_write_b128 v69, v[244:247] offset:{P_BASE-P_HIST}")
    e("s_waitcnt lgkmcnt(0)")
    for it in range(2):
        e(f"s_mov_b64 exec, s[{76+2*it}:{77+2*it}]")
        for i in range(4):
            e(f"ds_read_b32 v{224+4*it+i}, v{224+4*it+i} offset:{P_BASE-P_HIST}")
    e("s_mov_b64 exec, -1")
    def side_dma():
        e(f"s_lshl_b32 s{sT1}, s{sWave}, 11")
        e(f"s_add_u32 m0, s{sT1}, {XOWN}")
        e(f"s_lshl_b32 s{sT1}, s{sWave}, 10")
        e(f"buffer_load_dwordx4 v78, {sr(sXr,4)}, s{sQw} offen lds")
        e("s_add_u32 m0, m0, 1024")
        e("s_nop 0")
        e(f"buffer_load_dwordx4 v79, {sr(sXr,4)}, s{sQw} offen lds")
        for k, pw in enumerate((52, 60, 66)):
            e(f"s_add_u32 m0, s{sT1}, {WRAW+8192*(k+1)}")
            srd(68, pw, 8192)
            e(f"buffer_load_dwordx4 v82, s[68:71], s{sT1} offen lds")
    def side_wb():
        e(f"s_lshl_b32 s{sT1}, s{sWave}, 10")
        srd(68, 62, 8192)
        e(f"buffer_load_dwordx4 v[112:115], v82, s[68:71], s{sT1} offen")
    def side_copies():
        if OPT['sp'] == 0:
            side_dma(); side_wb()
    side_copies()
    pt('side')
    NX = 6 if OPT['sp'] == 0 else 0
    for it in range(2):
        e(f"s_mov_b64 exec, s[{76+2*it}:{77+2*it}]")
        e(f"s_waitcnt vmcnt({NX+5-3*it}) lgkmcnt({4 if it==0 else 8})")
        for i in range(4):
            k = 4 * it + i
            e(f"v_lshl_or_b32 v{200+k}, v{192+k}, 18, v{200+k}")
            e(f"v_add_u32 v{224+k}, v{224+k}, v{232+k}")
            e(f"ds_write_b32 v{224+k}, v{200+k} offset:{P_STG+8}")
        for i in range(4):
            k = 4 * it + i
            if i % 2 == 0:
                e(f"s_waitcnt vmcnt({NX+4-3*it-i//2})")
            e(f"v_add_u32 v{224+k}, {P_STG}, v{224+k}")
            e(f"ds_write2_b32 v{224+k}, v{208+2*k}, v{209+2*k} offset0:0 offset1:1")
    e("s_mov_b64 exec, -1")
    pt('p1scat')
    e("P1_J:")
    pt('pj')
    if OPT['sp'] == 1:
        side_dma(); side_wb()
    if OPT['sp'] == 2:
        side_wb()
    e("v_lshlrev_b32 v64, 4, v0")
    e(f"v_add_u32 v65, {P_STG}, v64")
    e(f"s_mul_i32 s{sT0}, s{sP}, {CHB}")
    e(f"s_add_u32 s{sT0}, s{sT0}, {WS_REC}")
    NT_ = 448 if OPT['pf7'] else 512
    NR = -(-2352 // NT_)
    e(f"s_movk_i32 s42, {2352 - (NR-1)*NT_}")
    e("v_cmp_gt_u32 vcc, s42, v0")
    e("s_waitcnt lgkmcnt(0)")
    e("s_barrier")
    pt('b3')
    if OPT['pf7']:
        e("s_andn2_b64 exec, exec, s[80:81]")
    for k in range(NR):
        e(f"ds_read_b128 {vr(192+4*k,4)}, v65 offset:{k*NT_*16}")
    for k in range(NR):
        if k == NR-1:
            e("s_mov_b64 exec, vcc")
        e(f"s_waitcnt lgkmcnt({NR-1-k})")
        e(f"buffer_store_dwordx4 {vr(192+4*k,4)}, v64, {sr(sWs,4)}, s{sT0} offen" + FL[OPT['rs']])
        if k < NR-1:
            e(f"s_add_u32 s{sT0}, s{sT0}, {NT_*16}")
    e("s_mov_b64 exec, -1")
    if OPT['sp'] == 2:
        side_dma(); NR += 5
    e(f"s_cmp_eq_u32 s{sWave}, 7")
    e("s_cbranch_scc1 P1_W7B")
    pt('stored')
    def mid(wait):
        srd(sOut, 54, N * 128)
        lane_consts()
        e(f"v_mov_b32 v74, {f32(-LOG2E)}")
        e(f"v_add_u32 v75, {WRAW}, v64")
        if wait is not None: e(f"s_waitcnt vmcnt({wait})")
        scale8(112, 4)
        e("ds_write_b128 v75, v[112:115]")
    mid(NR)
    e("s_waitcnt vmcnt(0)")
    e("P1_RDY:")
    pt('rdy')
    e(f"s_lshl_b32 s{sT1}, s{sP}, 7")
    e("s_waitcnt lgkmcnt(0)")
    e("s_barrier")
    pt('b4')
    c("publish this chunk's run table (every word carries a valid bit)")
    e("s_mov_b64 exec, s[80:81]")
    e(f"buffer_store_dwordx4 v[244:247], v248, {sr(sWs,4)}, s{sT1} offen" + FL[OPT['ps']])
    e("s_mov_b64 exec, -1")
    prefetch_all(OPT['pfa'], 0, 19)
    if OPT['tlb']:
        e(f"v_lshlrev_b32 v15, {OPT['tlb']}, v0")
        e(f"buffer_load_dword v15, v15, {sr(sXr,4)}, 0 offen")
    c("---- A table and U for this wave's (node tile, channel half); weight operands ----")
    for s_ in range(4):
        e(f"ds_read_b128 {vr(40+4*s_,4)}, v{24+s_}")
    for m in range(2):
        for s_ in range(4):
            for hf in range(2):
                e(f"ds_read_b64_tr_b16 {vr(vW+16*m+4*s_+2*hf,2)}, v11 offset:{16384+m*8192+s_*2048+hf*512}")
    e(f"s_mov_b32 s{sT0}, {f32(-LOG2E)}")
    e("s_waitcnt lgkmcnt(8)")
    for s_ in range(4):
        e(mfma(84, vW+4*s_, 40+4*s_, 84 if s_ else None))
    e("s_waitcnt lgkmcnt(0)")
    for s_ in range(4):
        e(mfma(112, vW+16+4*s_, 40+4*s_, 112 if s_ else None))
    for m in range(2):
        for nt in range(2):
            for s_ in range(4):
                for hf in range(2):
                    e(f"ds_read_b64_tr_b16 {vr(vW+32*m+16*nt+4*s_+2*hf,2)}, v{9+nt} offset:{m*8192+s_*2048+hf*512}")
    for nt in range(2):
        e(f"ds_read_b64_tr_b16 {vr(vBq[nt],2)}, v12 offset:{64*nt}")
    for r in range(16):
        e(f"v_mul_f32 v{84+r}, s{sT0}, v{84+r}")
    for r in range(8):
        e(f"v_cvt_pk_bf16_f32 v{72+r}, v{84+2*r}, v{85+2*r}")
    e(f"s_mov_b64 exec, {sr(sMore,2)}")
    for j in range(4):
        e(f"ds_write_b64 v8, {vr(72+2*j,2)} offset:{ATAB+j*16}")
    e("s_mov_b64 exec, -1")
    c("U (f32) to its final owners through LDS: 16-byte chunk q of node n sits at n*256 + (q ^ (n&7))*16")
    e(f"s_lshr_b32 s{sT0}, s{sWave}, 1")
    e(f"s_lshl_b32 s{sT0}, s{sT0}, 5")
    e(f"s_and_b32 s{sT1}, s{sWave}, 1")
    e(f"s_lshl_b32 s{sT1}, s{sT1}, 3")
    e(f"v_add_u32 v13, s{sT0}, v67")
    e("s_movk_i32 s42, 112")
    e("v_cmp_gt_u32 vcc, s42, v13")
    e(f"v_and_b32 v14, 7, v{vLane}")
    e("v_xor_b32 v14, v14, v81")
    e(f"v_or_b32 v14, s{sT1}, v14")
    e("v_lshlrev_b32 v13, 8, v13")
    e(f"v_add_u32 v13, {UTMP}, v13")
    e("s_mov_b64 exec, vcc")
    for j in range(4):
        e(f"v_xor_b32 v15, {2*j}, v14")
        e("v_lshl_add_u32 v15, v15, 4, v13")
        e(f"ds_write_b128 v15, {vr(112+4*j,4)}")
    e("s_mov_b64 exec, -1")
    c("epilogue thread = (node tid>>2, chunks c and c+4): output offset, row address, residual operand")
    e("v_lshrrev_b32 v13, 2, v0")
    e("v_and_b32 v14, 3, v0")
    e(f"v_add_u32 v{vOut}, s{sBase}, v13")
    e(f"v_lshlrev_b32 v{vOut}, 7, v{vOut}")
    e(f"v_lshl_add_u32 v{vOut}, v14, 4, v{vOut}")
    e(f"buffer_load_dwordx4 {vr(vXo,4)}, v{vOut}, {sr(sXr,4)}, 0 offen")
    e(f"buffer_load_dwordx4 {vr(vXo+4,4)}, v{vOut}, {sr(sXr,4)}, 0 offen offset:64")
    e(f"v_mul_u32_u24 v{vRow}, {RST}, v13")
    e(f"v_lshl_add_u32 v{vRow}, v14, 7, v{vRow}")
    e(f"v_add_u32 v{vRow}, {ROWS}, v{vRow}")
    e("v_lshrrev_b32 v15, 1, v14")
    e(f"v_lshl_add_u32 v{vRow}, v15, 6, v{vRow}")
    e("v_and_b32 v15, 7, v13")
    e("v_lshlrev_b32 v14, 1, v14")
    e("v_xor_b32 v14, v14, v15")
    e("v_lshlrev_b32 v14, 4, v14")
    e(f"v_lshl_add_u32 v{vTl}, v13, 8, v14")
    e(f"v_add_u32 v{vTl}, {UTMP}, v{vTl}")
    e(f"v_xor_b32 v31, 16, v{vTl}")
    if not OPT['cz']:
        for r in range(16):
            e(f"v_mov_b32 v{vC+r}, {f32(-2.0*SC)}")
    e("K2_ROUND:")
    c("window offset (0xffff = lane outside the window)")
    e(f"v_and_b32 v67, 15, v{vLane}")
    e("v_mul_u32_u24 v67, 12, v67")
    e(f"v_cmp_gt_u32 vcc, s{sLW}, v67")
    e(f"v_add_u32 v66, s{sJ0}, v67")
    e("v_lshrrev_b32 v68, 4, v0")
    e(f"s_mov_b32 s{sT0}, {8*CHB}")
    e(f"v_mul_u32_u24 v68, s{sT0}, v68")
    e("v_add3_u32 v68, v68, v66, -1")
    e("v_mov_b32 v69, 0xffff")
    e("v_cndmask_b32 v66, v69, v66, vcc")
    e("v_mov_b32 v71, 192")
    e("v_and_b32 v64, 0x1f0, v0")
    e("v_lshlrev_b32 v64, 6, v64")
    e(f"s_lshr_b32 s{sT0}, s2, 5")
    e(f"s_lshl_b32 s{sT0}, s{sT0}, 15")
    e(f"s_and_b32 s{sT1}, s2, 31")
    e(f"s_lshl_b32 s{sT1}, s{sT1}, 2")
    e(f"s_add_u32 s{sT0}, s{sT0}, s{sT1}")
    e(f"s_mov_b32 s{sCnt}, 0x40000")
    pt('poll')
    c("wait for the run tables of this wave's 32 producers")
    sd = "dst_sel:DWORD dst_unused:UNUSED_PAD "
    vRa = 84
    for i in range(8):
        e(f"s_mov_b64 {sr(sMk+2*i,2)}, 0")
    e("K2_POLL:")
    for i in range(8):
        e(f"buffer_load_dword v{vTe+i}, v64, {sr(sWs,4)}, s{sT0} offen offset:{i*128} sc1")
    e("s_waitcnt vmcnt(0)")
    e(f"v_bitop3_b32 v69, v{vTe}, v{vTe+1}, v{vTe+2} bitop3:0x80")
    e(f"v_bitop3_b32 v70, v{vTe+3}, v{vTe+4}, v{vTe+5} bitop3:0x80")
    e(f"v_bitop3_b32 v69, v69, v{vTe+6}, v{vTe+7} bitop3:0x80")
    e(f"v_bitop3_b32 v69, v69, v70, 1 bitop3:0x80")
    e("v_cmp_eq_u32 s[76:77], 0, v69")
    pt('go')
    c("fetch the runs that have been published since the last look (a cleared word has count 0)")
    e(f"s_mov_b32 s{sT1}, {WS_REC}")
    for i in range(8):
        e(f"v_cmp_lt_u32_sdwa vcc, v66, v{vTe+i} src0_sel:DWORD src1_sel:WORD_1")
        e(f"v_add_u32_sdwa v{vRa+i}, v68, v{vTe+i} {sd}src0_sel:DWORD src1_sel:WORD_0")
        e(f"s_andn2_b64 exec, vcc, {sr(sMk+2*i,2)}")
        e(f"buffer_load_dwordx3 {vr(192+4*i,3)}, v{vRa+i}, {sr(sWs,4)}, s{sT1} offen sc1")
        e(f"s_mov_b64 {sr(sMk+2*i,2)}, vcc")
        e("s_mov_b64 exec, -1")
        if i < 7:
            e(f"s_add_u32 s{sT1}, s{sT1}, {CHB}")
    e("s_cmp_eq_u64 s[76:77], 0")
    e("s_cbranch_scc1 K2_GO")
    e(f"s_sub_u32 s{sCnt}, s{sCnt}, 1")
    e("s_cbranch_scc1 K2_END")
    e(f"s_sleep {OPT['slp']}")
    e("s_branch K2_POLL")
    e("K2_GO:")
    c("records past the 16th of a run: packed per 16-lane group into two more slots")
    def ovf(vj, extra):
        e("v_mov_b32 v72, 0")
        e("v_mov_b32 v73, 0")
        for i in range(8):
            e(f"v_sub_u32_sdwa v69, v{vTe+i}, v71 clamp {sd}src0_sel:WORD_1 src1_sel:DWORD")
            e(f"v_add_u32 v74, v{vj}, v72")
            e(f"s_mov_b32 s{sT0}, {192+extra+i*CHB}")
            e("v_cmp_lt_u32 vcc, v74, v69")
            e(f"v_add3_u32 v75, v{vRa+i}, v72, s{sT0}")
            e("v_sub_u32 v72, v72, v69")
            e("v_cndmask_b32 v73, v73, v75, vcc")
    ovf(67, 0)
    e("v_add_u32 v74, v67, v72")
    e("v_add_u32 v75, 192, v74")
    e("v_add_u32 v69, 384, v72")
    e(f"v_cmp_gt_i32 {sr(sMk+16,2)}, 0, v74")
    e(f"v_cmp_gt_i32 {sr(sMk+18,2)}, 0, v75")
    e("v_cmp_gt_i32 s[76:77], 0, v69")
    e(f"v_max3_u32 v69, v{vTe}, v{vTe+1}, v{vTe+2}")
    e(f"v_max3_u32 v70, v{vTe+3}, v{vTe+4}, v{vTe+5}")
    e(f"v_max3_u32 v69, v69, v{vTe+6}, v{vTe+7}")
    e("v_max_u32 v69, v69, v70")
    e(f"s_add_u32 s{sT1}, s{sJ0}, s{sLW}")
    e(f"s_lshl_b32 s{sT1}, s{sT1}, 16")
    e(f"s_or_b32 s{sT1}, s{sT1}, 0xffff")
    e(f"v_cmp_lt_u32 vcc, s{sT1}, v69")
    e(f"s_mov_b32 s{sCnt}, {WS_REC}")
    e(f"s_cmp_eq_u32 s{sLW}, 384")
    e(f"s_cselect_b64 {sr(sMk+16,2)}, {sr(sMk+16,2)}, 0")
    e(f"s_cselect_b64 {sr(sMk+18,2)}, {sr(sMk+18,2)}, 0")
    e("s_cselect_b64 s[76:77], s[76:77], vcc")
    e(f"s_mov_b64 exec, {sr(sMk+16,2)}")
    e(f"buffer_load_dwordx3 v[224:226], v73, {sr(sWs,4)}, s{sCnt} offen sc1")
    e("s_mov_b64 exec, -1")
    e(f"s_cmp_lg_u64 {sr(sMk+18,2)}, 0")
    e("s_cbranch_scc1 K2_OVF2")
    e("K2_OVFD:")
    e("v_mov_b32 v66, 4")
    e("v_mov_b32 v67, 0")
    e("s_mov_b64 exec, s[76:77]")
    e(f"ds_write_b32 v67, v66 offset:{MORE}")
    e("s_mov_b64 exec, -1")
    for r in range(16):
        e(f"v_mov_b32 v{vAcc+r}, 0")
    c("scan / meta lane constants while the records are in flight")
    e(f"v_lshl_add_u32 v8, v{vLane}, 1, s{sBase}")
    e("v_add_u32 v9, 1, v8")
    e("v_and_b32 v8, 127, v8")
    e("v_and_b32 v9, 127, v9")
    e("v_lshlrev_b32 v8, 2, v8")
    e("v_lshlrev_b32 v9, 2, v9")
    e(f"s_add_u32 s{sT0}, s{sNN}, 7")
    e(f"v_lshlrev_b32 v10, 1, v{vLane}")
    e("v_add_u32 v11, 1, v10")
    e(f"v_cmp_gt_u32 vcc, s{sT0}, v10")
    e(f"v_cmp_gt_u32 s[76:77], s{sT0}, v11")
    e("v_lshrrev_b32 v12, 2, v0")
    e("v_cndmask_b32 v10, 0, 16, vcc")
    e("v_cndmask_b32 v11, 0, 16, s[76:77]")
    e(f"v_cmp_gt_u32 vcc, s{sT0}, v12")
    e(f"v_cmp_gt_u32 s[76:77], s{sNN}, v12")
    e(f"v_add_u32 v13, s{sBase}, v12")
    e("v_cndmask_b32 v14, 0, 16, vcc")
    e("v_and_b32 v13, 127, v13")
    e("v_lshlrev_b32 v13, 2, v13")
    e(f"v_mul_u32_u24 v15, {AST + (RST//16 << 16)}, v12")
    e(f"v_mov_b32 v64, {NOROW:#x}")
    e("v_cndmask_b32 v15, v64, v15, s[76:77]")
    e(f"s_mul_i32 s{sT0}, s{sWave}, 640")
    e(f"v_add_u32 v64, s{sT0}, v{vLane}")
    e(f"s_mov_b32 s{sEr}, {ER}")
    e(f"v_lshl_add_u32 v65, v64, 3, s{sEr}")
    e("v_lshlrev_b32 v64, 16, v64")
    e(f"s_mov_b32 s{sT0}, 0xffff")
    for j in range(4):
        e(f"v_mov_b32 v{vN+j}, 0")
        e(f"v_mov_b32 v{vP+j}, 1.0")
        e(f"v_mov_b32 v{24+j}, 1.0")
    for q in range(10):
        r = 192 + 4 * q
        e(f"s_mov_b64 exec, {sr(sMk+2*q,2)}")
        if q < 9: e(f"s_waitcnt vmcnt({8-q})")
        e(f"v_lshrrev_b32 v{112+q}, 16, v{r+2}")
        e(f"ds_add_rtn_u32 v{r+3}, v{112+q}, v66 offset:{CNT}")
        e(f"ds_write_b64 v65, {vr(r,2)} offset:{512*q}")
        e(f"v_and_or_b32 v{r+2}, v{r+2}, s{sT0}, v64")
        if q: e(f"v_add_u32 v{r+2}, {q<<22:#x}, v{r+2}")
    e("s_mov_b64 exec, -1")
    e("s_waitcnt lgkmcnt(0)")
    e("s_barrier")
    pt('hist')
    c("---- scan (every wave, redundantly) ----")
    e(f"ds_read_b32 v64, v8 offset:{CNT}")
    e(f"ds_read_b32 v65, v9 offset:{CNT}")
    e(f"ds_read_b32 v68, v67 offset:{MORE}")
    prefetch_all(OPT['pfb'], 8*OPT['pfa'], 255)
    e("s_waitcnt lgkmcnt(1)")
    e(f"s_cmp_eq_u32 s{sFirst}, 0")
    e("s_cbranch_scc1 K2_NOU")
    for it in range(2):
        e(f"ds_read_b128 {vr(vV+8*it,4)}, v{vTl} offset:{128*it}")
        e(f"ds_read_b128 {vr(vV+8*it+4,4)}, v31 offset:{128*it}")
    e("K2_NOU:")
    e("v_add_u32 v69, 15, v64")
    e("v_add_u32 v70, 15, v65")
    e("v_and_b32 v69, -16, v69")
    e("v_and_b32 v70, -16, v70")
    e("v_max_u32 v69, v69, v10")
    e("v_max_u32 v70, v70, v11")
    e("v_add_u32 v71, v69, v70")
    e("v_mov_b32 v72, v71")
    scan64(72)
    e("v_sub_u32 v73, v72, v71")
    e("v_add_u32 v74, v73, v69")
    e(f"v_readlane_b32 s{sQt}, v72, 63")
    e("v_lshl_or_b32 v64, v64, 16, v73")
    e("v_lshl_or_b32 v65, v65, 16, v74")
    e(f"ds_write_b32 v8, v64 offset:{BI}")
    e(f"ds_write_b32 v9, v65 offset:{BI}")
    e("v_max_u32 v69, v69, v70")
    e(f"s_lshr_b32 s{sTt}, s{sQt}, 7")
    pt('s1')
    e(f"ds_read_b32 v64, v13 offset:{BI}")
    for q in range(10):
        e(f"s_mov_b64 exec, {sr(sMk+2*q,2)}")
        e(f"ds_read_u16 v{112+q}, v{112+q} offset:{BI}")
    e("s_mov_b64 exec, -1")
    e("s_waitcnt lgkmcnt(13)")
    e(f"v_readfirstlane_b32 s{sMore}, v68")
    e(f"s_cmp_gt_u32 s{sQt}, {CAP*4}")
    e(f"s_cselect_b32 s{sT0}, 1, s{sMore}")
    e(f"s_cmp_eq_u32 s{sLW}, 384")
    e(f"s_cselect_b32 s{sT0}, s{sT0}, 0")
    e(f"s_cmp_lg_u32 s{sT0}, 0")
    e("s_cbranch_scc1 K2_FAIL")
    c("pads")
    e("v_and_b32 v65, 3, v0")
    e(f"v_mov_b32 v70, {PADV:#x}")
    e("s_waitcnt lgkmcnt(10)")
    e("v_lshrrev_b32 v68, 16, v64")
    e("v_and_b32 v64, 0xffff, v64")
    e("v_add_u32 v74, 15, v68")
    e("v_and_b32 v74, -16, v74")
    e("v_max_u32 v74, v74, v14")
    e("v_lshl_add_u32 v68, v65, 2, v68")
    e("v_cmp_lt_u32 s[76:77], v68, v74")
    e("v_add_u32 v68, v68, v64")
    e("s_mov_b64 exec, s[76:77]")
    e(f"ds_write_b32 v68, v70 offset:{M4}")
    e("s_waitcnt lgkmcnt(1)")
    pt('s2')
    c("---- scatter: index words first ----")
    for q in range(10):
        r = 192 + 4 * q
        e(f"s_mov_b64 exec, {sr(sMk+2*q,2)}")
        e(f"v_add_u32 v{112+q}, v{112+q}, v{r+3}")
        e(f"ds_write_b32 v{112+q}, v{r+2} offset:{M4}")
    e("s_mov_b64 exec, -1")
    pt('s3')
    e(f"s_lshr_b32 s{sT0}, s{sTt}, 3")
    e(f"s_and_b32 s{sT1}, s{sTt}, 7")
    e(f"s_lshl_b32 s{sT2}, s{sT0}, 4")
    e(f"s_add_u32 s{sCnt}, s{sT2}, 16")
    e(f"v_cmp_lt_u32 vcc, s{sCnt}, v69")
    e(f"s_add_u32 s{sCnt}, s{sCnt}, s{sT2}")
    e(f"v_cmp_lt_u32 s[76:77], s{sCnt}, v69")
    e(f"s_mul_i32 s{sQw}, s{sT0}, s{sWave}")
    e(f"s_min_u32 s{sT2}, s{sT1}, s{sWave}")
    e(f"s_add_u32 s{sQw}, s{sQw}, s{sT2}")
    e(f"s_lshl_b32 s{sQw}, s{sQw}, 3")
    e(f"s_cmp_lt_u32 s{sWave}, s{sT1}")
    e(f"s_addc_u32 s{sNT}, s{sT0}, 0")
    e("s_cmp_lg_u64 vcc, 0")
    e(f"s_cselect_b32 s{sBig}, 1, 0")
    e("s_cmp_lg_u64 s[76:77], 0")
    e(f"s_cselect_b32 s{sBig}, 2, s{sBig}")
    c("column of (half h, register group j) = 4h + j, one quad per tile")
    e(f"v_bfe_u32 v66, v{vLane}, 3, 1")
    e(f"v_lshrrev_b32 v69, 4, v{vLane}")
    e("v_lshl_add_u32 v66, v66, 2, v69")
    e(f"v_mul_u32_u24 v66, s{sNT}, v66")
    e(f"v_add_lshl_u32 v{vIxA}, v66, s{sQw}, 4")
    e(f"s_mov_b32 m0, s{sStg}")
    e(f"s_mov_b32 s{sDum}, {NOROW:#x}")
    e("s_waitcnt lgkmcnt(0)")
    e("s_barrier")
    pt('scat')
    for x in rd_idx(): e(x)
    e(f"v_add_u32 v{vIxA}, 16, v{vIxA}")
    c("quad words: thread = (node, k0)")
    e("v_lshrrev_b32 v69, 4, v74")
    e("v_lshrrev_b32 v64, 4, v64")
    e("v_add_lshl_u32 v68, v64, v65, 2")
    e("v_add_u32 v70, -1, v69")
    e(f"v_or_b32 v71, {NONLAST:#x}, v15")
    e(f"s_mov_b32 s{sT1}, {ROWS+512}")
    e(f"v_mad_u32_u16 v72, v15, 16, s{sT1} op_sel:[1,0,0,0]")
    e("v_mov_b32 v73, 0x100000")
    e("ds_write2_b32 v72, v73, v73 offset0:0 offset1:1")
    def blk_dma():
        for x in mads() + dma() + rd_idx(): e(x)
        e(f"v_add_u32 v{vIxA}, 16, v{vIxA}")
    def blk_qm(t):
        for u in range(3):
            e("v_cmp_lt_u32 vcc, v65, v69")
            e("v_cmp_eq_u32 s[76:77], v65, v70")
            e("s_and_b64 exec, exec, vcc")
            e("v_add_u32 v65, 4, v65")
            e("v_cndmask_b32 v72, v71, v15, s[76:77]")
            e(f"ds_write_b32 v68, v72 offset:{QA+16*u}")
        e(f"K2_QM{t}:")
        e("v_cmp_lt_u32 vcc, v65, v69")
        e("v_cmp_eq_u32 s[76:77], v65, v70")
        e("s_and_b64 exec, exec, vcc")
        e(f"s_cbranch_execz K2_QMD{t}")
        e("v_add_u32 v65, 4, v65")
        e("v_cndmask_b32 v72, v71, v15, s[76:77]")
        e(f"ds_write_b32 v68, v72 offset:{QA+48}")
        e("v_add_u32 v68, 16, v68")
        e(f"s_branch K2_QM{t}")
        e(f"K2_QMD{t}:")
        e("s_mov_b64 exec, -1")
        e(f"v_lshrrev_b32 v66, 5, v{vLane}")
        e(f"v_bfe_u32 v69, v{vLane}, 2, 2")
        e("v_lshl_add_u32 v66, v66, 2, v69")
        e(f"v_mul_u32_u24 v66, s{sNT}, v66")
        e(f"v_add_lshl_u32 v{vQaA}, v66, s{sQw}, 2")
        e(f"v_bfe_u32 v8, v{vLane}, 2, 1")
        e(f"v_bfe_u32 v9, v{vLane}, 3, 2")
        e("v_lshl_add_u32 v8, v8, 2, v9")
        e(f"v_mul_u32_u24 v8, s{sNT}, v8")
        e(f"v_add_lshl_u32 v8, v8, s{sQw}, 2")
        e(f"v_and_or_b32 v8, v{vLane}, 3, v8")
        e(f"v_lshlrev_b32 v{vAqA}, 2, v8")
        e("s_waitcnt lgkmcnt(0)")
    e(f"s_cmp_ge_u32 s{sWave}, 4")
    e("s_cbranch_scc1 K2_ORD_B")
    e("s_waitcnt lgkmcnt(0)")
    blk_dma(); blk_qm('a')
    e("s_barrier")
    e("s_branch K2_ORD_J")
    e("K2_ORD_B:")
    blk_qm('b')
    e("s_barrier")
    blk_dma()
    e("K2_ORD_J:")
    pt('meta')
    for x in rd_qa() + rd_mr(0): e(x)
    e(f"v_add_u32 v{vQaA}, 4, v{vQaA}")
    e(f"s_cmp_eq_u32 s{sFirst}, 0")
    e(f"s_cbranch_scc1 K2_NOV")
    for r in range(8):
        e(f"v_lshlrev_b32 v8, 16, v{vXo+r}")
        e(f"v_and_b32 v9, 0xffff0000, v{vXo+r}")
        e(f"v_add_f32 v{vV+2*r}, v{vV+2*r}, v8")
        e(f"v_add_f32 v{vV+2*r+1}, v{vV+2*r+1}, v9")
    e(f"K2_NOV:")
    e("s_waitcnt lgkmcnt(0)")
    e(AQV); e(AEV)
    for x in rd_bq(0) + rd_bq(1) + rd_aq() + rd_qa() + rd_mr(16): e(x)
    for r in range(8, 16):
        e(f"v_mov_b32 v{r}, 0")
    for j in range(4):
        e(f"v_mov_b32 v{vS+j}, 0")
    e(f"v_mov_b32 v{vWK}, {NOROW:#x}")
    e(f"v_lshrrev_b32 v{vWK+3}, 5, v{vLane}")
    e(f"v_mul_u32_u24 v{vWK+3}, {4*RST}, v{vWK+3}")
    e(f"v_add_u32 v{vWK+3}, s{sStg}, v{vWK+3}")
    e(f"v_bfe_u32 v{vWK+5}, v{vLane}, 2, 2")
    e(f"v_mul_u32_u24 v{vWK+5}, {RST}, v{vWK+5}")
    e(f"v_add_u32 v{vWK+5}, v{vWK+5}, v{vWK+3}")
    e(f"v_add_u32 v{vWK+3}, v{vWK+3}, v{vN16}")
    e(f"v_subrev_u32 v{vWK+3}, {ROWS}, v{vWK+3}")
    e("v_lshrrev_b32 v19, 2, v0")
    e(f"v_cmp_gt_u32 s[78:79], s{sNN}, v19")
    e(f"v_mul_u32_u24 v19, {RST}, v19")
    e(f"v_add_u32 v19, {ROWS}, v19")
    e("v_and_b32 v31, 2, v0")
    e("v_lshlrev_b32 v31, 6, v31")
    e(f"v_sub_u32 v31, v{vRow}, v31")
    for x in mads(): e(x)
    e(f"v_add_u32 v{vAqA}, 16, v{vAqA}")
    e(f"s_mov_b32 s{sCnt}, s{sNT}")
    e("s_waitcnt vmcnt(0)")
    pt('f4')
    for x in rd_x(): e(x)
    e(f"s_cmp_eq_u32 s{sNT}, 0")
    e("s_cbranch_scc1 K2_DRAIN")
    ms = mfmas(0); dm = dma()
    e("s_waitcnt lgkmcnt(4)")
    e(ms[0])
    e("s_waitcnt lgkmcnt(0)")
    for k in range(1, 9):
        e(ms[k])
        if k <= 4: e(dm[k-1])
        if k == 5: e(rd_idx()[0])
    e("s_waitcnt lgkmcnt(0)")
    e("s_nop 3")
    if not OPT['tl']: stamp(6)
    if OPT['role']:
        role_loops()
    else:
        e(".p2align 6")
        e("K2_LOOP:")
        loop_body()
    e("K2_DRAIN:")
    e("s_setprio 0")
    for x in rcps(): e(x)
    for x in cmps(): e(x)
    e(f"v_cmp_gt_i32 s[76:77], 0, v{vWK}")
    e(f"v_and_b32 v{vWK+2}, 0x3fffffff, v{vWK}")
    e(f"s_mov_b32 s{sT1}, {ROWS+512}")
    e(f"v_mad_u32_u16 v{vWK+4}, v{vWK+2}, 16, s{sT1} op_sel:[1,0,0,0]")
    e(f"s_lshl_b32 s{sT1}, s{sBig}, 2")
    e(f"v_and_or_b32 v{vWK+4}, v{vLane}, s{sT1}, v{vWK+4}")
    for x in chain(1): e(x)
    for x in mwrites(False): e(x)
    stamp(7)
    c("---- tails ----")
    e(f"s_cmp_eq_u32 s{sBig}, 2")
    e("s_cbranch_scc1 K2_TAILAT")
    c("park the tails in this wave's staging area and leave a pointer in the node's row")
    e("s_waitcnt vmcnt(0)")
    for j in range(4):
        e(f"ds_write_b128 v{vWK+3}, {vr(vAcc+4*j,4)} offset:{RST*j}")
    e("s_mov_b64 exec, s[76:77]")
    e(f"ds_write_b32 v{vWK+4}, v{vWK+5}")
    e("K2_TAILD:")
    e("s_mov_b64 exec, -1")
    c("---- epilogue ----")
    eps = f32(1e-6 * 2.0**(2*SC))
    e(f"v_mov_b32 v9, {eps}")
    e(f"v_sub_u32 v13, v{vRow}, v19")
    e("v_sub_u32 v14, v31, v19")
    e(f"s_cmp_eq_u32 s{sMore}, 0")
    e(f"s_cselect_b32 s{sT1}, s{sFirst}, 0")
    e(f"s_cmp_eq_u32 s{sBig}, 1")
    e("s_waitcnt lgkmcnt(0)")
    pt('e1')
    e("s_barrier")
    pt('e2')
    e("s_mov_b64 exec, s[78:79]")
    e("ds_read_b64 v[10:11], v19 offset:512")
    for k in range(8):
        e(f"ds_read_b128 {vr(192+4*k,4)}, v{vRow if k<4 else 31} offset:{16*k}")
    e("s_waitcnt lgkmcnt(8)")
    def add_tail(p):
        e(f"v_add_u32 v12, v13, v{p}")
        e(f"v_add_u32 v15, v14, v{p}")
        for k in range(8):
            e(f"ds_read_b128 {vr(224+4*k,4)}, v{12 if k<4 else 15} offset:{16*k}")
        for k in range(8):
            e(f"s_waitcnt lgkmcnt({7-k})")
            e(f"v_pk_add_f32 {vr(192+4*k,2)}, {vr(192+4*k,2)}, {vr(224+4*k,2)}")
            e(f"v_pk_add_f32 {vr(194+4*k,2)}, {vr(194+4*k,2)}, {vr(226+4*k,2)}")
    add_tail(10)
    e("s_cbranch_scc1 K2_TAIL2")
    e("K2_TAIL2D:")
    e(f"s_cmp_eq_u32 s{sT1}, 0")
    e("s_cbranch_scc1 K2_SLOWTOT")
    e("K2_FIN:")
    e("s_mov_b64 exec, s[78:79]")
    e("s_cbranch_execz K2_DONE")
    for k in range(8):
        e(f"v_add_f32 v{192+4*k}, v{192+4*k}, v9")
        e(f"v_add_f32 v{194+4*k}, v{194+4*k}, v9")
    pt('e3')
    for it in range(2):
        for k in range(8):
            e(f"v_rcp_f32 v{192+4*k+2*it}, v{192+4*k+2*it}")
        e("s_nop 0")
        for k in range(8):
            e(f"v_fmac_f32 v{vV+8*it+k}, v{192+4*k+2*it}, v{193+4*k+2*it}")
        for k in range(4):
            e(f"v_cvt_pk_bf16_f32 v{112+4*it+k}, v{vV+8*it+2*k}, v{vV+8*it+2*k+1}")
        c("x + relu(z) = max(x + z, x); bf16 patterns order like f16 patterns")
        for k in range(4):
            e(f"v_pk_max_f16 v{112+4*it+k}, v{112+4*it+k}, v{vXo+4*it+k}")
        e(f"buffer_store_dwordx4 {vr(112+4*it,4)}, v{vOut}, {sr(sOut,4)}, 0 offen offset:{64*it}" + FL[OPT['ost']])
    e("K2_DONE:")
    if OPT['stamp']:
        e("s_mov_b64 exec, -1")
        stamp(8)
        diag_out(1, 9, sWave, sWs, sNT)
    e("K2_END:")
    e("s_endpgm")
    flush_ool()
    c("---- wave 7, phase 1: ready count, scaled wb / wc rows, run table words ----")
    e("P1_W7A:")
    p1_scan()
    e(f"s_cmp_lt_u32 s3, {NCL}")
    e("s_cbranch_scc0 P1_NOF")
    e(f"s_lshl_b32 s{sT0}, s3, {2 if NCL<=64 else (1 if NCL==128 else 0)}")
    e("v_mov_b32 v76, 1")
    e("s_mov_b64 exec, 1")
    e("s_waitcnt vmcnt(0)")
    if OPT['cat']:
        e(f"buffer_atomic_add v76, v74, {sr(sWc,4)}, s{sT0} offen sc1")
    else:
        e(f"buffer_store_{'dword' if NCL<=64 else ('short' if NCL==128 else 'byte')} v76, v74, {sr(sWc,4)}, s{sT0} offen sc1")
    e("s_mov_b64 exec, -1")
    e("P1_NOF:")
    srd(68, 64, 512)
    e(f"buffer_load_dwordx4 v[224:227], v68, s[68:71], 0 offen")
    side_copies()
    for i in range(4):
        e(f"v_lshl_or_b32 v{244+i}, v{240+i}, 16, v{244+i}")
        e(f"v_or_b32 v{244+i}, 1, v{244+i}")
    e("s_branch P1_J")
    e("P1_W7B:")
    mid(NR)
    scale8(224, 4)
    c("lanes 32..63 hold flag rows (0, R, 0, 0); lanes 0..31 the wc' rows")
    e(f"v_lshrrev_b32 v73, 3, v{vLane}")
    e("v_cmp_eq_u32 vcc, 5, v73")
    e(f"v_mov_b32 v72, {(RFLAG>>16)*0x10001:#x}")
    e(f"v_xor_b32 v73, 512, v68")
    for r in range(4):
        e(f"v_cndmask_b32 v{224+r}, v{224+r}, v72, vcc")
    if OPT['cz']:
        bz = struct.unpack("<I", struct.pack("<f", -2.0 * SC))[0] >> 16
        e("s_bfm_b64 exec, 8, 48")
        for r in range(4):
            e(f"v_mov_b32 v{224+r}, {bz*0x10001:#x}")
        e("s_mov_b64 exec, -1")
    e(f"v_add_u32 v73, {WCT}, v73")
    e("ds_write_b128 v73, v[224:227]")
    c("the whole table must have been cleared before anything is published or trusted")
    e(f"v_and_b32 v74, {min(NCL,64)-1}, v{vLane}")
    e("v_lshlrev_b32 v74, 2, v74")
    e(f"s_mov_b32 s{sCnt}, 0x40000")
    if OPT['ra']: e("s_waitcnt vmcnt(0)")
    e("P1_POLL:")
    e(f"buffer_load_dword v76, v74, {sr(sWc,4)}, 0 offen" + FL[OPT['pl_']])
    e("s_waitcnt vmcnt(0)")
    e(f"v_cmp_ne_u32 vcc, {1 if NCL<=64 else (0x10001 if NCL==128 else 0x01010101)}, v76")
    e(f"s_sub_u32 s{sCnt}, s{sCnt}, 1")
    e("s_cbranch_scc1 K2_END")
    e("s_cmp_eq_u64 vcc, 0")
    e("s_cbranch_scc1 P1_RDY")
    e("s_sleep 8")
    e("s_branch P1_POLL")
    c("---- rare paths ----")
    e("K2_OVF2:")
    e("v_add_u32 v70, 192, v67")
    ovf(70, 192)
    e(f"s_mov_b64 exec, {sr(sMk+18,2)}")
    e(f"buffer_load_dwordx3 v[228:230], v73, {sr(sWs,4)}, s{sCnt} offen sc1")
    e("s_mov_b64 exec, -1")
    e("s_waitcnt vmcnt(0)")
    e("s_branch K2_OVFD")
    e("K2_NEXT:")
    e("v_lshlrev_b32 v64, 2, v0")
    e("v_mov_b32 v66, 0")
    e("s_movk_i32 s42, 132")
    e("v_cmp_gt_u32 vcc, s42, v0")
    e("s_mov_b64 exec, vcc")
    e(f"ds_write_b32 v64, v66 offset:{CNT}")
    e("s_mov_b64 exec, -1")
    e("s_waitcnt lgkmcnt(0)")
    e("s_barrier")
    e("s_branch K2_ROUND")
    e("K2_TAIL2:")
    add_tail(11)
    e("s_branch K2_TAIL2D")
    e("K2_TAILAT:")
    for j in range(4):
        e(f"v_mov_b32_dpp v{vWK+4+j}, v{vWK+2} row_newbcast:{4*j} row_mask:0xf bank_mask:0xf")
    for j in range(4):
        e(f"v_mad_u32_u16 v{vWK+4+j}, v{vWK+4+j}, 16, v{vN16} op_sel:[1,0,0,0]")
    e("s_waitcnt lgkmcnt(0)")
    e("s_barrier")
    for j in range(4):
        for y in expand(j, 76): e(y)
        for i in range(4):
            e(f"ds_add_f32 v{vWK+4+j}, v{vAcc+4*j+i} offset:{4*i}")
    e("s_branch K2_TAILD")
    e("K2_FAIL:")
    e(f"s_movk_i32 s{sLW}, 144")
    e("s_waitcnt vmcnt(0) lgkmcnt(0)")
    e("s_barrier")
    e("s_branch K2_NEXT")
    e("K2_SLOWTOT:")
    e("s_mov_b64 exec, -1")
    e("v_lshlrev_b32 v14, 7, v0")
    e(f"s_lshl_b32 s{sT1}, s2, 16")
    e(f"s_add_u32 s{sT1}, s{sT1}, {WS_TOT}")
    e("s_waitcnt lgkmcnt(0)")
    e(f"s_cmp_lg_u32 s{sFirst}, 0")
    e("s_cbranch_scc1 K2_ST1")
    for r in range(8):
        e(f"buffer_load_dwordx4 {vr(224+4*r,4)}, v14, {sr(sWs,4)}, s{sT1} offen offset:{16*r} sc1")
    e("s_waitcnt vmcnt(0)")
    for r in range(32):
        e(f"v_add_f32 v{192+r}, v{192+r}, v{224+r}")
    e(f"s_cmp_eq_u32 s{sMore}, 0")
    e("s_cbranch_scc1 K2_FIN")
    e("K2_ST1:")
    for r in range(8):
        e(f"buffer_store_dwordx4 {vr(192+4*r,4)}, v14, {sr(sWs,4)}, s{sT1} offen offset:{16*r} sc1")
    e(f"s_mov_b32 s{sFirst}, 0")
    e(f"s_add_u32 s{sJ0}, s{sJ0}, s{sLW}")
    e("s_waitcnt vmcnt(0)")
    e("s_barrier")
    e("s_branch K2_NEXT")

def hi_pure(nt, prio, first=(), after=0, wait=False):
    e(f"s_setprio {prio}")
    ms = mfmas(1 - nt); av = list(first) + avals(nt)
    tr = rcps() + exps(nt)
    per = (3, 3, 3, 3, 3, 3, 2, 2, 2); fl = [0, 0, 0, 0, 0, 0, 2, 2, 2]
    if wait:
        tr = exps(nt)[:4] + rcps() + exps(nt)[4:]
        av = avals(nt)[:1] + list(first) + avals(nt)[1:]
        per = (3, 3, 2, 3, 3, 3, 3, 2, 2); fl = [0, 0, 1, 0, 0, 0, 0, 2, 2]
    t = 0; f = 0
    for g in range(9):
        if wait and g == 3: e("s_waitcnt lgkmcnt(0)")
        e(ms[g])
        seq = [tr[t + i] for i in range(per[g])]; t += per[g]
        fs = [av[f + i] for i in range(fl[g])]; f += fl[g]
        while seq or fs:
            if seq: e(seq.pop(0))
            if fs: e(fs.pop(0))
    e(f"s_setprio {after}")
    assert f >= len(first)
    return av[f:]

def lo_part(nt, rest, adds):
    for y in list(rest) + chain(1 - nt) + list(adds) + frac(nt): e(y)

sEr = 42
sWm = 68
sDum = 43
def cmps(): return [f"v_cmp_gt_u32 {sr(sWm,2)}, s{sDum}, v{vWK}"]
WL = [0]
def expand(j, sm):
    return [f"s_bfe_i32 exec_lo, s{sm}, {0x10000+4*j:#x}", f"s_bfe_i32 exec_hi, s{sm+1}, {0x10000+4*j:#x}"]
OOL = []
def flush_ool():
    for y in OOL: e(y)
    OOL.clear()
def mwrites(zero=True):
    WL[0] += 1; end = f"KE{WL[0]}"
    o = [f"s_or_b32 s{sWm+2}, s{sWm}, s{sWm+1}", f"s_cbranch_scc0 {end}"]
    for j in range(4):
        WL[0] += 1
        o += [f"s_bitcmp0_b32 s{sWm+2}, {4*j}", f"s_cbranch_scc1 KW{WL[0]}"] + expand(j, sWm) + [
              f"v_mov_b32_dpp v{vWK+1}, v{vWK} row_newbcast:{4*j} row_mask:0xf bank_mask:0xf",
              f"v_mad_u32_u16 v{vWK+1}, v{vWK+1}, 16, v{vN16} op_sel:[1,0,0,0]",
              f"ds_write_b128 v{vWK+1}, {vr(vAcc+4*j,4)}"]
        if zero: o += [f"ds_read_b128 {vr(vAcc+4*j,4)}, v{vZa}"]
        o += [f"KW{WL[0]}:"]
    return o + ["s_mov_b64 exec, -1", f"{end}:"]

TL = [0]
def tl():
    if OPT['tl']:
        e(f"s_memtime {sr(44+2*TL[0],2)}"); TL[0] += 1
def tl_dump(lab):
    if not OPT['tl']: return
    n = TL[0]; TL[0] = 0
    e(f"s_cmp_lg_u32 s{sCnt}, {OPT['tl']}")
    e(f"s_cbranch_scc1 {lab}")
    e("s_waitcnt lgkmcnt(0)")
    for i in range(n):
        e(f"s_mov_b32 s{sSt+2+2*i}, s{44+2*i}")
    e(f"{lab}:")
def hi_last(prio, first, after):
    e(f"s_setprio {prio}")
    for y in rcps() + list(first) + exps(1): e(y)
    e(f"s_setprio {after}")
    return avals(1)

def role_loops():
    adds = [f"v_add_u32 v{vIxA}, 16, v{vIxA}", f"v_add_u32 v{vAqA}, 16, v{vAqA}", f"v_add_u32 v{vQaA}, 4, v{vQaA}"]
    cm = cmps()
    e(f"s_mov_b64 {sr(sWm,2)}, 0")
    e(f"s_cmp_ge_u32 s{sWave}, 4")
    e("s_cbranch_scc1 KB_PRE")
    e("s_branch KA_ENTRY")
    e(".p2align 6")
    e("KA_LOOP:")
    tail = (cm + avals(1))[6:]
    e("s_waitcnt lgkmcnt(0)")
    lo_part(1, tail, [])
    e("KA_ENTRY:")
    tl()
    r = hi_pure(0, OPT['pa'], mads() + [AEV, AQV])
    tl()
    e("s_waitcnt vmcnt(0)")
    for y in rd_x() + rd_aq() + rd_bq(0) + rd_bq(1): e(y)
    e(f"s_sub_u32 s{sCnt}, s{sCnt}, 1")
    e(f"s_cmp_eq_u32 s{sCnt}, 0")
    e("s_waitcnt lgkmcnt(4)")
    for y in dma(): e(y)
    e("s_waitcnt lgkmcnt(0)")
    tl()
    lo_part(0, r, adds)
    e("s_cbranch_scc1 KA_LAST")
    tl()
    hi_pure(1, OPT['pa'], cm, OPT['pa'])
    L.pop()
    tl()
    for y in mwrites() + ["s_setprio 0"] + rd_wk() + rd_qa() + rd_idx() + rd_mr(0): e(y)
    tl()
    tl_dump("KA_TL")
    if OPT['trace']: trace_code()
    e("s_branch KA_LOOP")
    flush_ool()
    e("KA_LAST:")
    r = hi_last(OPT['pa'], cm, OPT['pa'])
    for y in mwrites() + ["s_setprio 0"] + rd_wk(): e(y)
    e("s_waitcnt lgkmcnt(0)")
    lo_part(1, r, [])
    e("s_branch K2_DRAIN")
    flush_ool()
    e("KB_PRE:")
    e(f"v_subrev_u32 v{vAqA}, 16, v{vAqA}")
    e(".p2align 6")
    e("KB_LOOP:")
    tl()
    r = hi_pure(0, OPT['pb'], mads() + [AEV, AQV], OPT['pl'])
    tl()
    lo_part(0, r, adds)
    tl()
    if OPT['fo'] == 2:
        for y in mwrites() + rd_wk(): e(y)
        e(f"s_sub_u32 s{sCnt}, s{sCnt}, 1")
        e(f"s_cmp_eq_u32 s{sCnt}, 0")
        e("s_cbranch_scc1 KB_LAST")
        for y in rd_aq() + rd_bq(0): e(y)
        e("s_waitcnt vmcnt(0)")
        for y in rd_x(): e(y)
        e("s_waitcnt lgkmcnt(3)")
        tl()
        r = hi_pure(1, OPT['pb'], cm, OPT['pl'], True)
    else:
        e("s_waitcnt vmcnt(0)")
    if OPT['fo'] == 2:
        pass
    elif OPT['fo']:
        for y in rd_x() + rd_aq() + rd_bq(0): e(y)
        e(f"s_sub_u32 s{sCnt}, s{sCnt}, 1")
        e("s_waitcnt lgkmcnt(0)")
        if OPT['bd'] == 0:
            for y in dma(): e(y)
        for y in mwrites() + rd_wk(): e(y)
        e(f"s_cmp_eq_u32 s{sCnt}, 0")
        e("s_cbranch_scc1 KB_LAST")
        tl()
        r = hi_pure(1, OPT['pb'], ["s_waitcnt lgkmcnt(0)"] + cm, OPT['pl'])
    else:
        for y in rd_x() + rd_aq() + rd_bq(0) + mwrites() + rd_wk(): e(y)
        e(f"s_sub_u32 s{sCnt}, s{sCnt}, 1")
        e(f"s_cmp_eq_u32 s{sCnt}, 0")
        e("s_cbranch_scc1 KB_LAST")
        e("s_waitcnt lgkmcnt(0)")
        tl()
        r = hi_pure(1, OPT['pb'], cm, OPT['pl'])
    tl()
    lo_part(1, r, [])
    tl()
    for y in (dma() if OPT['bd'] else []) + rd_bq(1) + rd_qa() + rd_mr(16) + rd_idx(): e(y)
    tl_dump("KB_TL")
    if OPT['trace']: trace_code()
    e("s_waitcnt lgkmcnt(0)")
    e("s_branch KB_LOOP")
    flush_ool()
    e("KB_LAST:")
    r = hi_last(OPT['pb'], [], OPT['pl'])
    e("s_waitcnt lgkmcnt(0)")
    lo_part(1, r, [])

def trace_code():
    e("s_memtime s[44:45]")
    e("s_memrealtime s[46:47]")
    e(f"s_lshl_b32 s48, s2, 3")
    e(f"s_add_u32 s48, s48, s{sWave}")
    e(f"s_lshl_b32 s48, s48, 4")
    e(f"s_add_u32 s48, s48, s{sCnt}")
    e(f"s_lshl_b32 s48, s48, 3")
    e(f"s_add_u32 s48, s48, {WS_DIAG+0x80000}")
    e("s_waitcnt lgkmcnt(0)")
    e("v_mov_b32 v8, s44")
    e("v_mov_b32 v9, s46")
    e("v_mov_b32 v10, 0")
    e("s_mov_b64 exec, 1")
    e(f"buffer_store_dwordx2 v[8:9], v10, {sr(sWs,4)}, s48 offen")
    e("s_mov_b64 exec, -1")

def loop_body():
    global L
    n0 = len(L)
    loop_body0()
    k = OPT['kill']
    body = L[n0:]; del L[n0:]
    for l in body:
        t = l.strip()
        if k & 1 and t.startswith('ds_read'): continue
        if k & 2 and t.startswith('ds_write'): continue
        if k & 4 and t.startswith('buffer_load'): continue
        if k & 8 and t.startswith('s_waitcnt') and not OPT['trace']: continue
        if k & 16 and t.startswith('v_add_u32'): continue
        if k & 32 and t.startswith('v_fmaak'): l = l.replace('v_fmaak_f32','v_mul_f32').rsplit(',',1)[0]
        if k & 64 and t.startswith('v_fma_f32'): l = l.replace('v_fma_f32','v_mul_f32').rsplit(',',1)[0]
        if k & 128 and t.startswith('v_and_b32'): continue
        L.append(l)
def loop_body0():
    e("s_setprio 1")
    ex = [[] for _ in range(9)]
    x = rd_x(); md = mads()
    ex[0] = rd_aq() + rd_bq(0)
    ex[1] = rd_bq(1) + ["s_waitcnt vmcnt(0)"]
    ex[2] = [x[0]]
    ex[4] = [x[1]]
    ex[5] = md[:2]
    ex[6] = [x[2]]
    ex[7] = md[2:]
    ex[8] = [x[3]]
    hi_phase(mfmas(1), rcps() + exps(0), ex)
    e("s_setprio 0")
    for y in mix(chain(1), avals(0)): e(y)
    e(f"v_add_u32 v{vIxA}, 64, v{vIxA}")
    e(f"v_add_u32 v{vAqA}, v{vAqA}, v{vAqI}")
    for y in frac(0): e(y)
    e("s_setprio 1")
    e("s_waitcnt lgkmcnt(0)")
    ex = [[] for _ in range(9)]
    w = writes(); d = dma(); wk = rd_wk()
    ex[0] = [d[0], w[0]]; ex[1] = [d[1], w[1]]; ex[2] = [d[2], w[2]]
    ex[4] = [d[3], w[3]]; ex[5] = wk; ex[7] = rd_qa() + [f"s_sub_u32 s{sCnt}, s{sCnt}, 1"]; ex[8] = rd_idx()
    hi_phase(mfmas(0), rcps() + exps(1), ex)
    e("s_setprio 0")
    av = avals(1)
    for y in av[:8]: e(y)
    e("s_waitcnt lgkmcnt(0)")
    for y in mix(chain(0), av[8:]): e(y)
    for j in range(4):
        e(f"v_add_u32 v{vWK+2*j}, v{vWK+2*j}, v{vN16}")
    e(f"v_add_u32 v{vWkA}, 32, v{vWkA}")
    e(f"v_add_u32 v{vQaV}, v{vQaV}, v{vQaC}")
    e(f"v_add_u32 v{vQaA}, 16, v{vQaA}")
    for y in frac(1): e(y)
    if OPT['trace']: trace_code()
    e(f"s_cmp_lg_u32 s{sCnt}, 0")
    e("s_cbranch_scc1 K2_LOOP")

def kd(name, vg, sg):
    L.extend([f".amdhsa_kernel {name}",
              f"  .amdhsa_next_free_vgpr {vg}",
              f"  .amdhsa_next_free_sgpr {sg}",
              f"  .amdhsa_accum_offset {(vg+3)//4*4}",
              "  .amdhsa_group_segment_fixed_size 0",
              "  .amdhsa_kernarg_size 96",
              "  .amdhsa_user_sgpr_count 2",
              "  .amdhsa_user_sgpr_kernarg_segment_ptr 1",
              "  .amdhsa_system_sgpr_workgroup_id_x 1",
              ".end_amdhsa_kernel"])

hdr = open("cdna_kernels/%s.s.ref" % NAME).read().split("\n")
for l in hdr:
    if l.startswith("; Override") : break
    L.append(l)
if OPT['lst']:
    L.append(f"; @launch kernel={NAME}_kernel grid=(256,1,1) block=(512,1,1) lds={K2_LDS}")
else:
    L.append(f"; @launch grid=(256,1,1) block=(512,1,1) lds={K2_LDS}")
L.append('.amdgcn_target "amdgcn-amd-amdhsa--gfx950"')
L.append(".text")
L.append(f".globl {NAME}_kernel")
L.append(f".type {NAME}_kernel,@function")
sSt = 82
for i, n in enumerate(OPT.get('pts', 'b2,b3,b4,go,hist').split(',')): PTS[n] = i + 1
k2()
L.append("K2_CODE_END:")
L.append('.section .rodata,"a"')
L.append(".p2align 6")
kd(f"{NAME}_kernel", 256, 102)
open(sys.argv[1], "w").write("\n".join(L) + "\n")
print("K2_LDS", K2_LDS, "ATAB", ATAB, "STG", STG, "ROWS", ROWS)
```

```python
import sys, struct

NAME = "standalone__edge_featured_mpnn_gatedgcn__graph"
OPT = dict(stamp=0, trace=0, stf=1, ldf=3, sched=0, remap=1, nodefirst=0, kill=0, pf=1, h1=4, dbg=0, alt=0, alt2=0, slp=10, rt=0, ost=0, role=1, fill=14, pa=2, pb=1, pl=3, wf=1, tl=0, mw=1, bt=-1, fb=0, peel=1, pf7=0, pfa=0, pfb=16, skp=2, dl=1, qu=3, lat=0, tlb=0, tw=0, rs=1, rl=1, pl_=1, ps=1, ncl=64, cat=0, wofs=0, bal=4, sp=0, ra=0, cz=1, co=0, cpf=0, em=1, bo=0, prog=1, bw=1, b64=0, wsk=1, wa=1, bd=1, fo=2, tr=1, eb=0, lst=0)
for a in sys.argv[2:]:
    k, v = a.split('=')
    OPT[k] = int(v) if k != 'pts' else v

L = []
def e(s=""): L.append("    " + s if s and not s.endswith(":") else s)
def c(s): L.append("    ; " + s)
def f32(x): return "0x%08x" % struct.unpack("<I", struct.pack("<f", x))[0]
def vr(a, n): return f"v[{a}:{a+n-1}]"
def sr(a, n): return f"s[{a}:{a+n-1}]"
FL = ["", " sc1", " sc0 sc1", " nt", " sc1 nt", " sc0 sc1 nt"]

N = 25000; E = 800000
CH = 3136
CHB = CH * 12
BM = 171799
BK = 6399988
WS_T = 0
WS_IMG = 0x40000
WS_REC = 0x80000 + OPT['wofs'] * 0x100000
WS_AU = 0xA00000
WS_TOT = 0x1100000
WS_DIAG = 0x2F00000
WS_SIZE = 0x10000000
LOG2E = 1.4426950408889634
NODE_WGS = 196
RFLAG = 0x21800000
sSt = 82

def srd(d, b, size, stride=0):
    e(f"s_mov_b32 s{d}, s{b}")
    e(f"s_and_b32 s{d+1}, s{b+1}, 0xffff")
    if stride:
        e(f"s_or_b32 s{d+1}, s{d+1}, {stride<<16:#x}")
    e(f"s_mov_b32 s{d+2}, {size}")
    e(f"s_mov_b32 s{d+3}, 0x20000")

def scan64(v):
    for m in ("row_shr:1 row_mask:0xf", "row_shr:2 row_mask:0xf", "row_shr:4 row_mask:0xf",
              "row_shr:8 row_mask:0xf", "row_bcast:15 row_mask:0xa", "row_bcast:31 row_mask:0xc"):
        e("s_nop 1")
        e(f"v_add_u32_dpp v{v}, v{v}, v{v} {m} bank_mask:0xf")

PTS = {}
def pt(name):
    if name in PTS: stamp(PTS[name])
def stamp(i):
    if OPT['stamp']:
        e(f"{'s_memrealtime' if OPT['rt'] else 's_memtime'} {sr(sSt+2*i,2)}")
        if i == 0:
            e(f"s_memrealtime {sr(sSt+18,2)}")
def diag_out(kidx, nst, swave, ssrd, extra=None, vt=8):
    if OPT['dbg']:
        e("s_memrealtime s[42:43]")
        e("s_load_dwordx2 s[44:45], s[0:1], 80")
        e("s_waitcnt lgkmcnt(0)")
        e(f"s_cmp_lg_u32 s2, {OPT['dbg']}")
        e(f"s_cbranch_scc1 K{kidx+1}_END")
        e(f"s_cmp_lg_u32 s{swave}, 5")
        e(f"s_cbranch_scc1 K{kidx+1}_END")
        e(f"s_add_u32 s44, s44, {512*(1-kidx)}")
        e("s_addc_u32 s45, s45, 0")
        srd(48, 44, 64)
        e(f"v_mov_b32 v{vt}, 0")
        e("s_mov_b64 exec, 1")
        sel = [(2,3,5,6,8),(1,2,4,5,6,7,8)][kidx]
        o = [0, 7][kidx]
        e(f"v_mov_b32 v{vt+1}, s{sSt+18}")
        e(f"buffer_store_dword v{vt+1}, v{vt}, s[48:51], 0 offen offset:{4*o}")
        for n, i in enumerate(sel):
            e(f"s_sub_u32 s40, s{sSt+2*i}, s{sSt}")
            e(f"v_mov_b32 v{vt+1}, s40")
            e(f"buffer_store_dword v{vt+1}, v{vt}, s[48:51], 0 offen offset:{4*(o+1+n)}")
        e(f"v_mov_b32 v{vt+1}, s42")
        e(f"buffer_store_dword v{vt+1}, v{vt}, s[48:51], 0 offen offset:{4*(o+1+len(sel))}")
        return
    e("s_memrealtime s[42:43]")
    e("s_waitcnt lgkmcnt(0)")
    e(f"s_lshl_b32 s39, s2, 4")
    e(f"s_add_u32 s39, s39, s{swave}")
    e(f"s_lshl_b32 s39, s39, 6")
    e(f"s_add_u32 s39, s39, {WS_DIAG + kidx*0x40000}")
    e(f"v_mov_b32 v{vt}, 0")
    e("s_mov_b64 exec, 1")
    for i in range(1, nst):
        e(f"s_sub_u32 s40, s{sSt+2*i}, {'0' if OPT['rt']==2 or OPT['tl'] else 's%d' % sSt}")
        e(f"v_mov_b32 v{vt+1}, s40")
        e(f"buffer_store_dword v{vt+1}, v{vt}, {sr(ssrd,4)}, s39 offen offset:{4*(i-1)}")
    if extra is not None:
        e(f"v_mov_b32 v{vt+1}, s{extra}")
        e(f"buffer_store_dword v{vt+1}, v{vt}, {sr(ssrd,4)}, s39 offen offset:48")
    e("s_getreg_b32 s40, hwreg(HW_REG_HW_ID)")
    e(f"v_mov_b32 v{vt+1}, s40")
    e(f"buffer_store_dword v{vt+1}, v{vt}, {sr(ssrd,4)}, s39 offen offset:52")
    e(f"v_mov_b32 v{vt+1}, s{sSt+18}")
    e(f"buffer_store_dword v{vt+1}, v{vt}, {sr(ssrd,4)}, s39 offen offset:56")
    e(f"v_mov_b32 v{vt+1}, s42")
    e(f"buffer_store_dword v{vt+1}, v{vt}, {sr(ssrd,4)}, s39 offen offset:60")

def mfma(d, a, b, cc):
    cs = "0" if cc is None else vr(cc, 16)
    return f"v_mfma_f32_32x32x16_bf16 {vr(d,16)}, {vr(a,4)}, {vr(b,4)}, {cs}"

CAP = 3584
CNT = 0
MORE = 512
ZERO = 1056
BI = 528
M4 = 1280
QA = M4 + CAP * 4 + 64
AST = 136
RST = 528
ATAB = QA + (CAP // 4) * 4 + 64
ER = (ATAB + 98 * AST + 15) // 16 * 16
STG = (ER + 40960 + 255) // 256 * 256
SST = 4352
ROWS = STG + 8 * SST
EPSR = ROWS + 98 * RST
K2_LDS = EPSR + 512
WRAW = STG
XOWN = ROWS
WCT = ROWS + 16384
P_HIST = (WCT + 1024 + 1023) // 1024 * 1024
P_BASE = P_HIST + 1024
UTMP = P_BASE + 1024
P_STG = ER
NONLAST = 0x80000000; NOROW = 0x40000000
assert CHB <= 40960 and UTMP + 112 * 256 <= K2_LDS
assert ATAB % 8 == 0 and K2_LDS <= 160 * 1024 and ATAB < 65536, (K2_LDS, ATAB)
SC = 24
PADV = 0x7F007F00
RFLAG = 0x21800000

vW = 128; vD = [192, 224]; vX = 112; vBq = [104, 108]; vAq = 100; vAcc = 84
vS = 72; vN = 76; vP = 80; vWK = 64; vIdx = 56; vC = 40; vXo = 32; vV = 40; vRow = 28; vOut = 29; vTl = 30; vXa = 20
vLane = 1; vAqA = 2; vEa = 3; vIxA = 4; vQaA = 5; vQaV = 6; vQaC = 7
vZa = 16; vN16 = 17; vC1 = 18; vTail = 19
vTe = 8
sX = 4; sXr = 8; sWs = 12; sOut = 16; sWc = 20
sBase = 24; sNN = 25; sWave = 26; sJ0 = 27; sLW = 28; sFirst = 29; s128 = 30; sQt = 31; sTt = 32
sNT = 33; sQw = 34; sStg = 35; sMore = 36; sBig = 37; sCnt = 38; sT0 = 39; sT1 = 40; sT2 = 41
sMk = 44

def G(b): return vD[b]
def H(b): return vD[b] + 16
def Wg(nt, s): return vW + (nt * 4 + s) * 4
def Wh(nt, s): return vW + 32 + (nt * 4 + s) * 4
def mfmas(nt):
    g = G(nt); h = H(nt)
    first = [mfma(g, vAq, vBq[nt], None if OPT['cz'] else vC)]
    gs = [mfma(g, vX+4*k, Wg(nt,k), g) for k in range(4)]
    hs = [mfma(h, vX+4*k, Wh(nt,k), h if k else None) for k in range(4)]
    if OPT['co']: return first + gs + hs
    return first + [x for p in zip(hs, gs) for x in p]
def acc(nt, j): return vAcc + j * 4 + nt * 2
SS = [72, 73, 74, 75, 8, 9, 10, 11]; NN = [76, 77, 78, 79, 12, 13, 14, 15]; PP = [81, 82, 83, 80, 25, 26, 27, 24]
def chain(nt):
    o = []
    for hq in (0, 4):
        for j in range(4):
            a = acc(nt, j); q = hq + j
            o += [f"v_fmac_f32 v{a}, v{SS[q]}, v{PP[q]}", f"v_fmac_f32 v{a+1}, v{NN[q]}, v{PP[q]}"]
    return o
def avals(nt):
    g = G(nt)
    return [f"v_add_f32 v{g+r}, v{g+r}, v{vC1}" for r in range(16)]
def frac(nt):
    g = G(nt); h = H(nt); o = []
    R = range(8); f = lambda q: 4 * (q % 4) + 2 * (q // 4)
    o += [f"v_mul_f32 v{NN[q]}, v{h+f(q)}, v{g+f(q)+1}" for q in R]
    o += [f"v_add_f32 v{SS[q]}, v{g+f(q)}, v{g+f(q)+1}" for q in R]
    o += [f"v_mul_f32 v{PP[q]}, v{g+f(q)}, v{g+f(q)+1}" for q in R]
    o += [f"v_fmac_f32 v{NN[q]}, v{h+f(q)+1}, v{g+f(q)}" for q in R]
    return o
def mix(a, b):
    o = []; a = list(a); b = list(b)
    while a or b:
        if a: o += a[:2]; a = a[2:]
        if b: o += b[:2]; b = b[2:]
    return o
def exps(nt): return [f"v_exp_f32_e64 v{G(nt)+r}, v{G(nt)+r} clamp" for r in range(16)]
def rcps(): return [f"v_rcp_f32 v{p}, v{p}" for p in PP]
def rd_x(): return [f"ds_read_b128 {vr(vX+4*s,4)}, v{vXa+s}" for s in range(4)]
def rd_aq():
    return [f"ds_read_b32 v{vAq}, v{vAqA} offset:{M4}", "s_mov_b32 exec_lo, 0", f"ds_read_b64 {vr(vAq,2)}, v{vEa}", "s_mov_b32 exec_lo, -1"]
def rd_mr(ahead): return [f"ds_read_u16 v{vEa}, v{vAqA} offset:{M4+2+ahead}"]
AEV = f"v_lshl_add_u32 v{vEa}, v{vEa}, 3, s42"
def rd_idx(o=0): return [f"ds_read_b128 {vr(vIdx,4)}, v{vIxA} offset:{M4+o}"]
def mads(): return [f"v_mad_u32_u16 v{vIdx+i}, v{vIdx+i}, s{s128}, v{vIdx+4+i}" for i in range(4)]
def rd_qa(o=0): return [f"ds_read_u16 v{vQaV}, v{vQaA} offset:{QA+o}"]
AQV = f"v_add_u32 v{vQaV}, v{vQaV}, v{vQaC}"
def rd_bq(nt): return [f"ds_read_b64_tr_b16 {vr(vBq[nt]+2,2)}, v{vQaV} offset:{ATAB+64*nt}"]
def rd_wk(): return [f"ds_read_b32 v{vWK}, v{vQaA} offset:{QA-4}"]
def dma(): return [f"buffer_load_dwordx4 v{vIdx+i}, {sr(sX,4)}, 0 offen offset:{1024*i} lds" for i in range(4)]

def hi_phase(ms, trans, extras, per=(2, 2, 2, 3, 2, 2, 3, 2, 2)):
    t = 0
    for g in range(9):
        e(ms[g])
        for _ in range(per[g]):
            e(trans[t]); t += 1
        for x in extras[g]:
            e(x)
    assert t == 20

def side_consts():
    c("copy source addresses: v82 weights, v78/v79 own x rows")
    e(f"v_lshrrev_b32 v81, 5, v{vLane}")
    e(f"v_and_b32 v77, 7, v{vLane}")
    e("v_lshlrev_b32 v78, 2, v81")
    e("v_xor_b32 v77, v77, v78")
    e(f"v_and_b32 v82, 16, v{vLane}")
    e("v_lshlrev_b32 v82, 2, v82")
    e("v_xor_b32 v82, v68, v82")
    e(f"s_and_b32 s{sT2}, s{sWave}, 1")
    e(f"s_lshl_b32 s{sT1}, s{sT2}, 1")
    e(f"v_xor_b32 v78, s{sT1}, v77")
    e("v_lshlrev_b32 v78, 4, v78")
    e(f"v_lshrrev_b32 v79, 3, v{vLane}")
    e("v_lshl_add_u32 v78, v79, 9, v78")
    e("v_xor_b32 v79, 16, v78")
    e("v_add_u32 v79, 128, v79")
    e(f"s_lshr_b32 s{sT0}, s{sWave}, 1")
    e(f"s_lshl_b32 s{sT0}, s{sT0}, 5")
    e(f"s_add_u32 s{sQw}, s{sT0}, s{sBase}")
    e(f"s_add_u32 s{sQw}, s{sQw}, s{sT1}")
    e(f"s_lshl_b32 s{sQw}, s{sQw}, 7")

def lane_consts():
    c("---- lane constants ----")
    e(f"v_and_b32 v67, 31, v{vLane}")
    e(f"v_bfe_u32 v70, v{vLane}, 2, 1")
    e(f"v_bfe_u32 v71, v{vLane}, 3, 2")
    e("v_and_b32 v72, 1, v71")
    e("v_lshlrev_b32 v72, 4, v72")
    e("v_mov_b32 v73, 0x3f80")
    e("v_cmp_eq_u32 vcc, v70, v81")
    e("v_lshlrev_b32 v72, v72, v73")
    e("v_cmp_gt_u32 s[42:43], 2, v71")
    e("v_cndmask_b32 v72, 0, v72, vcc")
    e(f"v_and_b32 v73, 3, v{vLane}")
    e(f"v_cndmask_b32 v{vAq+2}, 0, v72, s[42:43]")
    e(f"v_cndmask_b32 v{vAq+3}, v72, 0, s[42:43]")
    e(f"v_mov_b32 v{vAq+1}, 0x3f80")
    for i in range(4):
        e(f"v_xor_b32 v74, {i}, v77")
        e(f"v_lshlrev_b32 v74, 4, v74")
        e(f"v_add_u32 v{vIdx+4+i}, {3072-1024*i}, v74")
    e(f"v_bfe_u32 v74, v{vLane}, 2, 3")
    e(f"v_bfe_u32 v75, v{vLane}, 4, 1")
    e("v_lshl_add_u32 v72, v75, 2, v73")
    e("v_lshlrev_b32 v76, 10, v73")
    e("v_lshl_add_u32 v76, v74, 7, v76")
    e(f"v_add_u32 v76, s{sStg}, v76")
    e("v_xor_b32 v72, v72, v81")
    for s_ in range(4):
        e(f"v_xor_b32 v74, {2*s_}, v72")
        e(f"v_lshl_add_u32 v{vXa+s_}, v74, 4, v76")
    e(f"v_lshlrev_b32 v{vN16}, 2, v75")
    e(f"v_xor_b32 v{vN16}, v{vN16}, v67")
    e(f"v_lshlrev_b32 v{vN16}, 4, v{vN16}")
    e(f"v_add_u32 v{vN16}, {ROWS}, v{vN16}")
    e(f"v_mov_b32 v{vC1}, {f32(2.0**(-2*SC))}")
    e(f"v_mov_b32 v{vZa}, {ZERO}")
    e("v_lshlrev_b32 v73, 3, v73")
    e(f"v_lshl_add_u32 v{vQaC}, v75, 5, v73")
    c("setup addresses: v8 A table write, v9/v10/v11 transposed reads, v12 wc, v24..27 own x")
    e(f"s_and_b32 s{sT2}, s{sWave}, 1")
    e(f"s_lshr_b32 s{sT0}, s{sWave}, 1")
    e(f"s_lshl_b32 s{sT1}, s{sT0}, 5")
    e(f"v_add_u32 v8, s{sT1}, v67")
    e(f"v_cmp_gt_u32 {sr(sMore,2)}, s{sNN}, v8")
    e(f"v_mul_u32_u24 v8, {AST}, v8")
    e("v_lshl_add_u32 v8, v81, 3, v8")
    e(f"s_lshl_b32 s{sT2}, s{sT2}, 6")
    e(f"v_add_u32 v8, s{sT2}, v8")
    e(f"v_bfe_u32 v71, v{vLane}, 2, 2")
    e("v_lshl_add_u32 v12, v81, 2, v71")
    e(f"v_lshl_add_u32 v12, v12, 7, v{vQaC}")
    e(f"v_add_u32 v12, {WCT}, v12")
    e("v_lshl_add_u32 v9, v81, 3, v71")
    e(f"v_lshl_add_u32 v9, v9, 7, v{vQaC}")
    e(f"v_bfe_u32 v71, v{vLane}, 3, 1")
    e("v_lshl_add_u32 v9, v71, 6, v9")
    e(f"v_add_u32 v9, {WRAW}, v9")
    e("v_xor_b32 v10, 64, v9")
    e(f"v_xor_b32 v11, s{sT2}, v9")
    e(f"s_lshl_b32 s{sT0}, s{sT0}, 12")
    e(f"s_add_u32 s{sT0}, s{sT0}, {XOWN}")
    e(f"s_sub_u32 s{sT0}, s{sT0}, s{sStg}")
    for s_ in range(4):
        e(f"v_add_u32 v{24+s_}, s{sT0}, v{vXa+s_}")

def prefetch_all(lanes, first_line, vt):
    if not lanes: return
    e(f"s_and_b32 s{sT2}, s2, 31")
    e(f"s_mul_i32 s{sT2}, s{sT2}, 782")
    e(f"s_mul_i32 s{sT1}, s{sWave}, {lanes}")
    e(f"s_add_u32 s{sT2}, s{sT2}, s{sT1}")
    e(f"s_add_u32 s{sT2}, s{sT2}, {first_line}")
    e(f"s_lshl_b32 s{sT2}, s{sT2}, 7")
    e(f"v_lshlrev_b32 v{vt}, 7, v{vLane}")
    e(f"s_mov_b64 exec, {(1<<lanes)-1 if lanes<64 else -1}" if lanes<=32 or lanes==64 else f"s_bfm_b64 exec, {lanes}, 0")
    e(f"buffer_load_dword v{vt}, v{vt}, {sr(sXr,4)}, s{sT2} offen")
    e("s_mov_b64 exec, -1")

def scale8(first, n):
    for r in range(n):
        e(f"v_lshlrev_b32 v72, 16, v{first+r}")
        e(f"v_and_b32 v73, 0xffff0000, v{first+r}")
        e(f"v_mul_f32 v72, v74, v72")
        e(f"v_mul_f32 v73, v74, v73")
        e(f"v_cvt_pk_bf16_f32 v{first+r}, v72, v73")

def k2():
    st = FL[OPT['stf']]; ld = FL[OPT['ldf']]
    sP = 3
    e(".p2align 8")
    e(f"{NAME}_kernel:")
    e("s_cmp_ge_u32 s2, 256")
    e("s_cbranch_scc1 K2_END")
    stamp(0)
    e("s_load_dwordx8 s[44:51], s[0:1], 0")
    e("s_load_dwordx8 s[52:59], s[0:1], 64")
    e("s_load_dwordx8 s[60:67], s[0:1], 32")
    e(f"s_mov_b32 s{sP}, s2")
    if OPT['cpf']:
        c("pull the code into the L2 (one dword per 128-byte line, threads 0..CODE/128)")
        e("s_getpc_b64 s[68:69]")
        e("v_lshlrev_b32 v250, 7, v0")
        e("v_mov_b32 v251, s69")
        e(f"s_movk_i32 s70, {OPT['cpf']}")
        e("v_cmp_gt_u32 s[72:73], s70, v0")
        e("v_add_co_u32 v250, vcc, s68, v250")
        e("s_nop 1")
        e("v_addc_co_u32 v251, vcc, 0, v251, vcc")
        e("s_mov_b64 exec, s[72:73]")
        e("s_cbranch_execz K2_NOPF")
        e("global_load_dword v252, v[250:251], off")
        e("K2_NOPF:")
        e("s_mov_b64 exec, -1")
    e(f"s_and_b32 s{sT0}, s2, 7")
    e("s_lshr_b32 s2, s2, 3")
    e(f"s_lshl_b32 s{sT0}, s{sT0}, 5")
    e(f"s_or_b32 s2, s2, s{sT0}")
    e(f"v_and_b32 v{vLane}, 63, v0")
    e("v_lshrrev_b32 v2, 6, v0")
    e(f"s_mul_i32 s{sT0}, s{sP}, {CH*4}")
    e(f"v_readfirstlane_b32 s{sWave}, v2")
    e(f"v_lshl_add_u32 v64, v0, 4, s{sT0}")
    e(f"v_add_u32 v65, 7168, v64")
    e("v_lshlrev_b32 v66, 1, v64")
    e("v_lshlrev_b32 v67, 1, v65")
    e(f"s_mov_b32 s{sT1}, {E*4}")
    e("s_movk_i32 s42, 336")
    e(f"v_cmp_gt_u32 s[76:77], s{sT1}, v64")
    e(f"v_cmp_gt_u32 s[78:79], s{sT1}, v65")
    e("v_cmp_gt_u32 vcc, s42, v0")
    e(f"v_lshlrev_b32 v68, 4, v{vLane}")
    e(f"v_add_u32 v69, {P_HIST}, v68")
    e(f"v_lshrrev_b32 v248, 3, v{vLane}")
    e("v_and_b32 v249, 0x70, v68")
    e("v_lshl_or_b32 v248, v248, 15, v249")
    for i in range(4):
        e(f"v_mov_b32 v{72+i}, 0")
    e("s_and_b64 s[78:79], s[78:79], vcc")
    e(f"s_cmp_eq_u32 s{sWave}, 7")
    e("s_cselect_b64 s[80:81], -1, 0")
    e("s_andn2_b64 s[76:77], s[76:77], s[80:81]")
    e("s_mov_b64 exec, s[80:81]")
    e("ds_write_b128 v69, v[72:75]")
    e(f"ds_write_b128 v68, v[72:75] offset:{CNT}")
    e(f"ds_write_b128 v68, v[72:75] offset:{ZERO+16-1024}")
    e(f"s_mul_i32 s{sBase}, s2, {BK}")
    e(f"s_add_u32 s{sNN}, s{sBase}, {BK+65535}")
    e(f"s_add_u32 s{sBase}, s{sBase}, 65535")
    e(f"s_lshr_b32 s{sBase}, s{sBase}, 16")
    e(f"s_lshr_b32 s{sNN}, s{sNN}, 16")
    e(f"s_sub_u32 s{sNN}, s{sNN}, s{sBase}")
    e(f"s_mov_b32 s{sJ0}, 0")
    e(f"s_movk_i32 s{sLW}, 384")
    e(f"s_mov_b32 s{sFirst}, 1")
    e(f"s_mul_i32 s{sStg}, s{sWave}, {SST}")
    e(f"s_add_u32 s{sStg}, s{sStg}, {STG}")
    e("s_waitcnt lgkmcnt(0)")
    if OPT['tw']:
        srd(sWs, 58, WS_SIZE)
        e(f"v_lshlrev_b32 v83, {OPT['tw']}, v{vLane}")
        e(f"buffer_load_dword v83, v83, {sr(sWs,4)}, 0 offen")
    srd(68, 50, E * 4)
    e("s_mov_b64 exec, s[76:77]")
    e("buffer_load_dwordx4 v[192:195], v64, s[68:71], 0 offen" + ld)
    e("s_mov_b64 exec, s[78:79]")
    e("buffer_load_dwordx4 v[196:199], v65, s[68:71], 0 offen" + ld)
    srd(sWs, 58, WS_SIZE)
    c("wave 7 of the first workgroups clears the run table")
    NCL = OPT['ncl']; PER = 262144 // NCL
    e(f"s_cmp_lt_u32 s{sP}, {NCL}")
    e("s_cselect_b64 exec, s[80:81], 0")
    e("s_cbranch_execz P1_NOCL")
    e(f"s_mul_i32 s{sT0}, s{sP}, {PER}")
    for k in range(PER // 1024):
        e(f"buffer_store_dwordx4 v[72:75], v68, {sr(sWs,4)}, s{sT0} offen offset:{(k%4)*1024} sc1")
        if k % 4 == 3 and k + 1 < PER // 1024:
            e(f"s_add_u32 s{sT0}, s{sT0}, 4096")
    e("P1_NOCL:")
    srd(72, 48, E * 4)
    srd(sOut, 46, E * 8)
    e("s_barrier")
    pt('b1')
    e("s_mov_b64 exec, s[76:77]")
    e("buffer_load_dwordx4 v[200:203], v64, s[72:75], 0 offen" + ld)
    e(f"buffer_load_dwordx4 v[208:211], v66, {sr(sOut,4)}, 0 offen" + ld)
    e(f"buffer_load_dwordx4 v[212:215], v66, {sr(sOut,4)}, 0 offen offset:16" + ld)
    e("s_mov_b64 exec, -1")
    srd(sWc, 56, 256)
    srd(sXr, 44, N * 128)
    e("s_sub_u32 s50, s44, 3072")
    e("s_subb_u32 s51, s45, 0")
    srd(sX, 50, N * 128 + 3072)
    e(f"s_movk_i32 s{s128}, 128")
    side_consts()
    e(f"s_cmp_eq_u32 s{sWave}, 7")
    e("s_cbranch_scc1 P1_W7A")
    e("v_mov_b32 v70, 12")
    e(f"s_mov_b32 s{sT0}, {BM}")
    e("s_movk_i32 s42, 0x3fc")
    e(f"v_mov_b32 v71, {P_HIST}")
    if OPT['eb']:
        if OPT['eb'] == 1: e("s_waitcnt vmcnt(4)")
        e("s_mov_b64 exec, s[78:79]")
        e("buffer_load_dwordx4 v[204:207], v65, s[72:75], 0 offen" + ld)
        e(f"buffer_load_dwordx4 v[216:219], v67, {sr(sOut,4)}, 0 offen" + ld)
        e(f"buffer_load_dwordx4 v[220:223], v67, {sr(sOut,4)}, 0 offen offset:16" + ld)
    for it in range(2):
        e(f"s_mov_b64 exec, s[{76+2*it}:{77+2*it}]")
        e(f"s_waitcnt vmcnt({4-it})")
        for i in range(4):
            e(f"v_mul_u32_u24 v{224+4*it+i}, s{sT0}, v{192+4*it+i}")
        for i in range(4):
            e(f"v_lshrrev_b32 v{224+4*it+i}, 22, v{224+4*it+i}")
        for i in range(4):
            e(f"v_and_or_b32 v{224+4*it+i}, v{224+4*it+i}, s42, v71")
            e(f"ds_add_rtn_u32 v{232+4*it+i}, v{224+4*it+i}, v70")
        for i in range(4):
            e(f"v_and_b32 v{192+4*it+i}, 127, v{192+4*it+i}")
    if not OPT['eb']:
        e("s_mov_b64 exec, s[78:79]")
        e("buffer_load_dwordx4 v[204:207], v65, s[72:75], 0 offen" + ld)
        e(f"buffer_load_dwordx4 v[216:219], v67, {sr(sOut,4)}, 0 offen" + ld)
        e(f"buffer_load_dwordx4 v[220:223], v67, {sr(sOut,4)}, 0 offen offset:16" + ld)
    e("s_mov_b64 exec, -1")
    e("s_waitcnt lgkmcnt(0)")
    def p1_scan():
        e("s_barrier")
        pt('b2')
        e("ds_read_b128 v[240:243], v69")
        e("s_waitcnt lgkmcnt(0)")
        e("v_add_u32 v72, v240, v241")
        e("v_add_u32 v73, v72, v242")
        e("v_add_u32 v76, v73, v243")
        e("v_mov_b32 v80, v76")
        scan64(80)
        e("v_sub_u32 v244, v80, v76")
        e("v_add_u32 v245, v244, v240")
        e("v_add_u32 v246, v244, v72")
        e("v_add_u32 v247, v244, v73")
    p1_scan()
    e(f"ds_write_b128 v69, v[244:247] offset:{P_BASE-P_HIST}")
    e("s_waitcnt lgkmcnt(0)")
    for it in range(2):
        e(f"s_mov_b64 exec, s[{76+2*it}:{77+2*it}]")
        for i in range(4):
            e(f"ds_read_b32 v{224+4*it+i}, v{224+4*it+i} offset:{P_BASE-P_HIST}")
    e("s_mov_b64 exec, -1")
    def side_dma():
        e(f"s_lshl_b32 s{sT1}, s{sWave}, 11")
        e(f"s_add_u32 m0, s{sT1}, {XOWN}")
        e(f"s_lshl_b32 s{sT1}, s{sWave}, 10")
        e(f"buffer_load_dwordx4 v78, {sr(sXr,4)}, s{sQw} offen lds")
        e("s_add_u32 m0, m0, 1024")
        e("s_nop 0")
        e(f"buffer_load_dwordx4 v79, {sr(sXr,4)}, s{sQw} offen lds")
        for k, pw in enumerate((52, 60, 66)):
            e(f"s_add_u32 m0, s{sT1}, {WRAW+8192*(k+1)}")
            srd(68, pw, 8192)
            e(f"buffer_load_dwordx4 v82, s[68:71], s{sT1} offen lds")
    def side_wb():
        e(f"s_lshl_b32 s{sT1}, s{sWave}, 10")
        srd(68, 62, 8192)
        e(f"buffer_load_dwordx4 v[112:115], v82, s[68:71], s{sT1} offen")
    def side_copies():
        if OPT['sp'] == 0:
            side_dma(); side_wb()
    side_copies()
    pt('side')
    NX = 6 if OPT['sp'] == 0 else 0
    for it in range(2):
        e(f"s_mov_b64 exec, s[{76+2*it}:{77+2*it}]")
        e(f"s_waitcnt vmcnt({NX+5-3*it}) lgkmcnt({4 if it==0 else 8})")
        for i in range(4):
            k = 4 * it + i
            e(f"v_lshl_or_b32 v{200+k}, v{192+k}, 18, v{200+k}")
            e(f"v_add_u32 v{224+k}, v{224+k}, v{232+k}")
            e(f"ds_write_b32 v{224+k}, v{200+k} offset:{P_STG+8}")
        for i in range(4):
            k = 4 * it + i
            if i % 2 == 0:
                e(f"s_waitcnt vmcnt({NX+4-3*it-i//2})")
            e(f"v_add_u32 v{224+k}, {P_STG}, v{224+k}")
            e(f"ds_write2_b32 v{224+k}, v{208+2*k}, v{209+2*k} offset0:0 offset1:1")
    e("s_mov_b64 exec, -1")
    pt('p1scat')
    e("P1_J:")
    pt('pj')
    if OPT['sp'] == 1:
        side_dma(); side_wb()
    if OPT['sp'] == 2:
        side_wb()
    e("v_lshlrev_b32 v64, 4, v0")
    e(f"v_add_u32 v65, {P_STG}, v64")
    e(f"s_mul_i32 s{sT0}, s{sP}, {CHB}")
    e(f"s_add_u32 s{sT0}, s{sT0}, {WS_REC}")
    NT_ = 448 if OPT['pf7'] else 512
    NR = -(-2352 // NT_)
    e(f"s_movk_i32 s42, {2352 - (NR-1)*NT_}")
    e("v_cmp_gt_u32 vcc, s42, v0")
    e("s_waitcnt lgkmcnt(0)")
    e("s_barrier")
    pt('b3')
    if OPT['pf7']:
        e("s_andn2_b64 exec, exec, s[80:81]")
    for k in range(NR):
        e(f"ds_read_b128 {vr(192+4*k,4)}, v65 offset:{k*NT_*16}")
    for k in range(NR):
        if k == NR-1:
            e("s_mov_b64 exec, vcc")
        e(f"s_waitcnt lgkmcnt({NR-1-k})")
        e(f"buffer_store_dwordx4 {vr(192+4*k,4)}, v64, {sr(sWs,4)}, s{sT0} offen" + FL[OPT['rs']])
        if k < NR-1:
            e(f"s_add_u32 s{sT0}, s{sT0}, {NT_*16}")
    e("s_mov_b64 exec, -1")
    if OPT['sp'] == 2:
        side_dma(); NR += 5
    e(f"s_cmp_eq_u32 s{sWave}, 7")
    e("s_cbranch_scc1 P1_W7B")
    pt('stored')
    def mid(wait):
        srd(sOut, 54, N * 128)
        lane_consts()
        e(f"v_mov_b32 v74, {f32(-LOG2E)}")
        e(f"v_add_u32 v75, {WRAW}, v64")
        if wait is not None: e(f"s_waitcnt vmcnt({wait})")
        scale8(112, 4)
        e("ds_write_b128 v75, v[112:115]")
    mid(NR)
    e("s_waitcnt vmcnt(0)")
    e("P1_RDY:")
    pt('rdy')
    e(f"s_lshl_b32 s{sT1}, s{sP}, 7")
    e("s_waitcnt lgkmcnt(0)")
    e("s_barrier")
    pt('b4')
    c("publish this chunk's run table (every word carries a valid bit)")
    e("s_mov_b64 exec, s[80:81]")
    e(f"buffer_store_dwordx4 v[244:247], v248, {sr(sWs,4)}, s{sT1} offen" + FL[OPT['ps']])
    e("s_mov_b64 exec, -1")
    prefetch_all(OPT['pfa'], 0, 19)
    if OPT['tlb']:
        e(f"v_lshlrev_b32 v15, {OPT['tlb']}, v0")
        e(f"buffer_load_dword v15, v15, {sr(sXr,4)}, 0 offen")
    c("---- A table and U for this wave's (node tile, channel half); weight operands ----")
    for s_ in range(4):
        e(f"ds_read_b128 {vr(40+4*s_,4)}, v{24+s_}")
    for m in range(2):
        for s_ in range(4):
            for hf in range(2):
                e(f"ds_read_b64_tr_b16 {vr(vW+16*m+4*s_+2*hf,2)}, v11 offset:{16384+m*8192+s_*2048+hf*512}")
    e(f"s_mov_b32 s{sT0}, {f32(-LOG2E)}")
    e("s_waitcnt lgkmcnt(8)")
    for s_ in range(4):
        e(mfma(84, vW+4*s_, 40+4*s_, 84 if s_ else None))
    e("s_waitcnt lgkmcnt(0)")
    for s_ in range(4):
        e(mfma(112, vW+16+4*s_, 40+4*s_, 112 if s_ else None))
    for m in range(2):
        for nt in range(2):
            for s_ in range(4):
                for hf in range(2):
                    e(f"ds_read_b64_tr_b16 {vr(vW+32*m+16*nt+4*s_+2*hf,2)}, v{9+nt} offset:{m*8192+s_*2048+hf*512}")
    for nt in range(2):
        e(f"ds_read_b64_tr_b16 {vr(vBq[nt],2)}, v12 offset:{64*nt}")
    for r in range(16):
        e(f"v_mul_f32 v{84+r}, s{sT0}, v{84+r}")
    for r in range(8):
        e(f"v_cvt_pk_bf16_f32 v{72+r}, v{84+2*r}, v{85+2*r}")
    e(f"s_mov_b64 exec, {sr(sMore,2)}")
    for j in range(4):
        e(f"ds_write_b64 v8, {vr(72+2*j,2)} offset:{ATAB+j*16}")
    e("s_mov_b64 exec, -1")
    c("U (f32) to its final owners through LDS: 16-byte chunk q of node n sits at n*256 + (q ^ (n&7))*16")
    e(f"s_lshr_b32 s{sT0}, s{sWave}, 1")
    e(f"s_lshl_b32 s{sT0}, s{sT0}, 5")
    e(f"s_and_b32 s{sT1}, s{sWave}, 1")
    e(f"s_lshl_b32 s{sT1}, s{sT1}, 3")
    e(f"v_add_u32 v13, s{sT0}, v67")
    e("s_movk_i32 s42, 112")
    e("v_cmp_gt_u32 vcc, s42, v13")
    e(f"v_and_b32 v14, 7, v{vLane}")
    e("v_xor_b32 v14, v14, v81")
    e(f"v_or_b32 v14, s{sT1}, v14")
    e("v_lshlrev_b32 v13, 8, v13")
    e(f"v_add_u32 v13, {UTMP}, v13")
    e("s_mov_b64 exec, vcc")
    for j in range(4):
        e(f"v_xor_b32 v15, {2*j}, v14")
        e("v_lshl_add_u32 v15, v15, 4, v13")
        e(f"ds_write_b128 v15, {vr(112+4*j,4)}")
    e("s_mov_b64 exec, -1")
    c("epilogue thread = (node tid>>2, chunks c and c+4): output offset, row address, residual operand")
    e("v_lshrrev_b32 v13, 2, v0")
    e("v_and_b32 v14, 3, v0")
    e(f"v_add_u32 v{vOut}, s{sBase}, v13")
    e(f"v_lshlrev_b32 v{vOut}, 7, v{vOut}")
    e(f"v_lshl_add_u32 v{vOut}, v14, 4, v{vOut}")
    e(f"buffer_load_dwordx4 {vr(vXo,4)}, v{vOut}, {sr(sXr,4)}, 0 offen")
    e(f"buffer_load_dwordx4 {vr(vXo+4,4)}, v{vOut}, {sr(sXr,4)}, 0 offen offset:64")
    e(f"v_mul_u32_u24 v{vRow}, {RST}, v13")
    e(f"v_lshl_add_u32 v{vRow}, v14, 7, v{vRow}")
    e(f"v_add_u32 v{vRow}, {ROWS}, v{vRow}")
    e("v_lshrrev_b32 v15, 1, v14")
    e(f"v_lshl_add_u32 v{vRow}, v15, 6, v{vRow}")
    e("v_and_b32 v15, 7, v13")
    e("v_lshlrev_b32 v14, 1, v14")
    e("v_xor_b32 v14, v14, v15")
    e("v_lshlrev_b32 v14, 4, v14")
    e(f"v_lshl_add_u32 v{vTl}, v13, 8, v14")
    e(f"v_add_u32 v{vTl}, {UTMP}, v{vTl}")
    e(f"v_xor_b32 v31, 16, v{vTl}")
    if not OPT['cz']:
        for r in range(16):
            e(f"v_mov_b32 v{vC+r}, {f32(-2.0*SC)}")
    e("K2_ROUND:")
    c("window offset (0xffff = lane outside the window)")
    e(f"v_and_b32 v67, 15, v{vLane}")
    e("v_mul_u32_u24 v67, 12, v67")
    e(f"v_cmp_gt_u32 vcc, s{sLW}, v67")
    e(f"v_add_u32 v66, s{sJ0}, v67")
    e("v_lshrrev_b32 v68, 4, v0")
    e(f"s_mov_b32 s{sT0}, {8*CHB}")
    e(f"v_mul_u32_u24 v68, s{sT0}, v68")
    e("v_add3_u32 v68, v68, v66, -1")
    e("v_mov_b32 v69, 0xffff")
    e("v_cndmask_b32 v66, v69, v66, vcc")
    e("v_mov_b32 v71, 192")
    e("v_and_b32 v64, 0x1f0, v0")
    e("v_lshlrev_b32 v64, 6, v64")
    e(f"s_lshr_b32 s{sT0}, s2, 5")
    e(f"s_lshl_b32 s{sT0}, s{sT0}, 15")
    e(f"s_and_b32 s{sT1}, s2, 31")
    e(f"s_lshl_b32 s{sT1}, s{sT1}, 2")
    e(f"s_add_u32 s{sT0}, s{sT0}, s{sT1}")
    e(f"s_mov_b32 s{sCnt}, 0x40000")
    pt('poll')
    c("wait for the run tables of this wave's 32 producers")
    sd = "dst_sel:DWORD dst_unused:UNUSED_PAD "
    vRa = 84
    for i in range(8):
        e(f"s_mov_b64 {sr(sMk+2*i,2)}, 0")
    e("K2_POLL:")
    for i in range(8):
        e(f"buffer_load_dword v{vTe+i}, v64, {sr(sWs,4)}, s{sT0} offen offset:{i*128} sc1")
    e("s_waitcnt vmcnt(0)")
    e(f"v_bitop3_b32 v69, v{vTe}, v{vTe+1}, v{vTe+2} bitop3:0x80")
    e(f"v_bitop3_b32 v70, v{vTe+3}, v{vTe+4}, v{vTe+5} bitop3:0x80")
    e(f"v_bitop3_b32 v69, v69, v{vTe+6}, v{vTe+7} bitop3:0x80")
    e(f"v_bitop3_b32 v69, v69, v70, 1 bitop3:0x80")
    e("v_cmp_eq_u32 s[76:77], 0, v69")
    pt('go')
    c("fetch the runs that have been published since the last look (a cleared word has count 0)")
    e(f"s_mov_b32 s{sT1}, {WS_REC}")
    for i in range(8):
        e(f"v_cmp_lt_u32_sdwa vcc, v66, v{vTe+i} src0_sel:DWORD src1_sel:WORD_1")
        e(f"v_add_u32_sdwa v{vRa+i}, v68, v{vTe+i} {sd}src0_sel:DWORD src1_sel:WORD_0")
        e(f"s_andn2_b64 exec, vcc, {sr(sMk+2*i,2)}")
        e(f"buffer_load_dwordx3 {vr(192+4*i,3)}, v{vRa+i}, {sr(sWs,4)}, s{sT1} offen sc1")
        e(f"s_mov_b64 {sr(sMk+2*i,2)}, vcc")
        e("s_mov_b64 exec, -1")
        if i < 7:
            e(f"s_add_u32 s{sT1}, s{sT1}, {CHB}")
    e("s_cmp_eq_u64 s[76:77], 0")
    e("s_cbranch_scc1 K2_GO")
    e(f"s_sub_u32 s{sCnt}, s{sCnt}, 1")
    e("s_cbranch_scc1 K2_END")
    e(f"s_sleep {OPT['slp']}")
    e("s_branch K2_POLL")
    e("K2_GO:")
    c("records past the 16th of a run: packed per 16-lane group into two more slots")
    def ovf(vj, extra):
        e("v_mov_b32 v72, 0")
        e("v_mov_b32 v73, 0")
        for i in range(8):
            e(f"v_sub_u32_sdwa v69, v{vTe+i}, v71 clamp {sd}src0_sel:WORD_1 src1_sel:DWORD")
            e(f"v_add_u32 v74, v{vj}, v72")
            e(f"s_mov_b32 s{sT0}, {192+extra+i*CHB}")
            e("v_cmp_lt_u32 vcc, v74, v69")
            e(f"v_add3_u32 v75, v{vRa+i}, v72, s{sT0}")
            e("v_sub_u32 v72, v72, v69")
            e("v_cndmask_b32 v73, v73, v75, vcc")
    ovf(67, 0)
    e("v_add_u32 v74, v67, v72")
    e("v_add_u32 v75, 192, v74")
    e("v_add_u32 v69, 384, v72")
    e(f"v_cmp_gt_i32 {sr(sMk+16,2)}, 0, v74")
    e(f"v_cmp_gt_i32 {sr(sMk+18,2)}, 0, v75")
    e("v_cmp_gt_i32 s[76:77], 0, v69")
    e(f"v_max3_u32 v69, v{vTe}, v{vTe+1}, v{vTe+2}")
    e(f"v_max3_u32 v70, v{vTe+3}, v{vTe+4}, v{vTe+5}")
    e(f"v_max3_u32 v69, v69, v{vTe+6}, v{vTe+7}")
    e("v_max_u32 v69, v69, v70")
    e(f"s_add_u32 s{sT1}, s{sJ0}, s{sLW}")
    e(f"s_lshl_b32 s{sT1}, s{sT1}, 16")
    e(f"s_or_b32 s{sT1}, s{sT1}, 0xffff")
    e(f"v_cmp_lt_u32 vcc, s{sT1}, v69")
    e(f"s_mov_b32 s{sCnt}, {WS_REC}")
    e(f"s_cmp_eq_u32 s{sLW}, 384")
    e(f"s_cselect_b64 {sr(sMk+16,2)}, {sr(sMk+16,2)}, 0")
    e(f"s_cselect_b64 {sr(sMk+18,2)}, {sr(sMk+18,2)}, 0")
    e("s_cselect_b64 s[76:77], s[76:77], vcc")
    e(f"s_mov_b64 exec, {sr(sMk+16,2)}")
    e(f"buffer_load_dwordx3 v[224:226], v73, {sr(sWs,4)}, s{sCnt} offen sc1")
    e("s_mov_b64 exec, -1")
    e(f"s_cmp_lg_u64 {sr(sMk+18,2)}, 0")
    e("s_cbranch_scc1 K2_OVF2")
    e("K2_OVFD:")
    e("v_mov_b32 v66, 4")
    e("v_mov_b32 v67, 0")
    e("s_mov_b64 exec, s[76:77]")
    e(f"ds_write_b32 v67, v66 offset:{MORE}")
    e("s_mov_b64 exec, -1")
    for r in range(16):
        e(f"v_mov_b32 v{vAcc+r}, 0")
    c("scan / meta lane constants while the records are in flight")
    e(f"v_lshl_add_u32 v8, v{vLane}, 1, s{sBase}")
    e("v_add_u32 v9, 1, v8")
    e("v_and_b32 v8, 127, v8")
    e("v_and_b32 v9, 127, v9")
    e("v_lshlrev_b32 v8, 2, v8")
    e("v_lshlrev_b32 v9, 2, v9")
    e(f"s_add_u32 s{sT0}, s{sNN}, 7")
    e(f"v_lshlrev_b32 v10, 1, v{vLane}")
    e("v_add_u32 v11, 1, v10")
    e(f"v_cmp_gt_u32 vcc, s{sT0}, v10")
    e(f"v_cmp_gt_u32 s[76:77], s{sT0}, v11")
    e("v_lshrrev_b32 v12, 2, v0")
    e("v_cndmask_b32 v10, 0, 16, vcc")
    e("v_cndmask_b32 v11, 0, 16, s[76:77]")
    e(f"v_cmp_gt_u32 vcc, s{sT0}, v12")
    e(f"v_cmp_gt_u32 s[76:77], s{sNN}, v12")
    e(f"v_add_u32 v13, s{sBase}, v12")
    e("v_cndmask_b32 v14, 0, 16, vcc")
    e("v_and_b32 v13, 127, v13")
    e("v_lshlrev_b32 v13, 2, v13")
    e(f"v_mul_u32_u24 v15, {AST + (RST//16 << 16)}, v12")
    e(f"v_mov_b32 v64, {NOROW:#x}")
    e("v_cndmask_b32 v15, v64, v15, s[76:77]")
    e(f"s_mul_i32 s{sT0}, s{sWave}, 640")
    e(f"v_add_u32 v64, s{sT0}, v{vLane}")
    e(f"s_mov_b32 s{sEr}, {ER}")
    e(f"v_lshl_add_u32 v65, v64, 3, s{sEr}")
    e("v_lshlrev_b32 v64, 16, v64")
    e(f"s_mov_b32 s{sT0}, 0xffff")
    for j in range(4):
        e(f"v_mov_b32 v{vN+j}, 0")
        e(f"v_mov_b32 v{vP+j}, 1.0")
        e(f"v_mov_b32 v{24+j}, 1.0")
    for q in range(10):
        r = 192 + 4 * q
        e(f"s_mov_b64 exec, {sr(sMk+2*q,2)}")
        if q < 9: e(f"s_waitcnt vmcnt({8-q})")
        e(f"v_lshrrev_b32 v{112+q}, 16, v{r+2}")
        e(f"ds_add_rtn_u32 v{r+3}, v{112+q}, v66 offset:{CNT}")
        e(f"ds_write_b64 v65, {vr(r,2)} offset:{512*q}")
        e(f"v_and_or_b32 v{r+2}, v{r+2}, s{sT0}, v64")
        if q: e(f"v_add_u32 v{r+2}, {q<<22:#x}, v{r+2}")
    e("s_mov_b64 exec, -1")
    e("s_waitcnt lgkmcnt(0)")
    e("s_barrier")
    pt('hist')
    c("---- scan (every wave, redundantly) ----")
    e(f"ds_read_b32 v64, v8 offset:{CNT}")
    e(f"ds_read_b32 v65, v9 offset:{CNT}")
    e(f"ds_read_b32 v68, v67 offset:{MORE}")
    prefetch_all(OPT['pfb'], 8*OPT['pfa'], 255)
    e("s_waitcnt lgkmcnt(1)")
    e(f"s_cmp_eq_u32 s{sFirst}, 0")
    e("s_cbranch_scc1 K2_NOU")
    for it in range(2):
        e(f"ds_read_b128 {vr(vV+8*it,4)}, v{vTl} offset:{128*it}")
        e(f"ds_read_b128 {vr(vV+8*it+4,4)}, v31 offset:{128*it}")
    e("K2_NOU:")
    e("v_add_u32 v69, 15, v64")
    e("v_add_u32 v70, 15, v65")
    e("v_and_b32 v69, -16, v69")
    e("v_and_b32 v70, -16, v70")
    e("v_max_u32 v69, v69, v10")
    e("v_max_u32 v70, v70, v11")
    e("v_add_u32 v71, v69, v70")
    e("v_mov_b32 v72, v71")
    scan64(72)
    e("v_sub_u32 v73, v72, v71")
    e("v_add_u32 v74, v73, v69")
    e(f"v_readlane_b32 s{sQt}, v72, 63")
    e("v_lshl_or_b32 v64, v64, 16, v73")
    e("v_lshl_or_b32 v65, v65, 16, v74")
    e(f"ds_write_b32 v8, v64 offset:{BI}")
    e(f"ds_write_b32 v9, v65 offset:{BI}")
    e("v_max_u32 v69, v69, v70")
    e(f"s_lshr_b32 s{sTt}, s{sQt}, 7")
    pt('s1')
    e(f"ds_read_b32 v64, v13 offset:{BI}")
    for q in range(10):
        e(f"s_mov_b64 exec, {sr(sMk+2*q,2)}")
        e(f"ds_read_u16 v{112+q}, v{112+q} offset:{BI}")
    e("s_mov_b64 exec, -1")
    e("s_waitcnt lgkmcnt(13)")
    e(f"v_readfirstlane_b32 s{sMore}, v68")
    e(f"s_cmp_gt_u32 s{sQt}, {CAP*4}")
    e(f"s_cselect_b32 s{sT0}, 1, s{sMore}")
    e(f"s_cmp_eq_u32 s{sLW}, 384")
    e(f"s_cselect_b32 s{sT0}, s{sT0}, 0")
    e(f"s_cmp_lg_u32 s{sT0}, 0")
    e("s_cbranch_scc1 K2_FAIL")
    c("pads")
    e("v_and_b32 v65, 3, v0")
    e(f"v_mov_b32 v70, {PADV:#x}")
    e("s_waitcnt lgkmcnt(10)")
    e("v_lshrrev_b32 v68, 16, v64")
    e("v_and_b32 v64, 0xffff, v64")
    e("v_add_u32 v74, 15, v68")
    e("v_and_b32 v74, -16, v74")
    e("v_max_u32 v74, v74, v14")
    e("v_lshl_add_u32 v68, v65, 2, v68")
    e("v_cmp_lt_u32 s[76:77], v68, v74")
    e("v_add_u32 v68, v68, v64")
    e("s_mov_b64 exec, s[76:77]")
    e(f"ds_write_b32 v68, v70 offset:{M4}")
    e("s_waitcnt lgkmcnt(1)")
    pt('s2')
    c("---- scatter: index words first ----")
    for q in range(10):
        r = 192 + 4 * q
        e(f"s_mov_b64 exec, {sr(sMk+2*q,2)}")
        e(f"v_add_u32 v{112+q}, v{112+q}, v{r+3}")
        e(f"ds_write_b32 v{112+q}, v{r+2} offset:{M4}")
    e("s_mov_b64 exec, -1")
    pt('s3')
    e(f"s_lshr_b32 s{sT0}, s{sTt}, 3")
    e(f"s_and_b32 s{sT1}, s{sTt}, 7")
    e(f"s_lshl_b32 s{sT2}, s{sT0}, 4")
    e(f"s_add_u32 s{sCnt}, s{sT2}, 16")
    e(f"v_cmp_lt_u32 vcc, s{sCnt}, v69")
    e(f"s_add_u32 s{sCnt}, s{sCnt}, s{sT2}")
    e(f"v_cmp_lt_u32 s[76:77], s{sCnt}, v69")
    e(f"s_mul_i32 s{sQw}, s{sT0}, s{sWave}")
    e(f"s_min_u32 s{sT2}, s{sT1}, s{sWave}")
    e(f"s_add_u32 s{sQw}, s{sQw}, s{sT2}")
    e(f"s_lshl_b32 s{sQw}, s{sQw}, 3")
    e(f"s_cmp_lt_u32 s{sWave}, s{sT1}")
    e(f"s_addc_u32 s{sNT}, s{sT0}, 0")
    e("s_cmp_lg_u64 vcc, 0")
    e(f"s_cselect_b32 s{sBig}, 1, 0")
    e("s_cmp_lg_u64 s[76:77], 0")
    e(f"s_cselect_b32 s{sBig}, 2, s{sBig}")
    c("column of (half h, register group j) = 4h + j, one quad per tile")
    e(f"v_bfe_u32 v66, v{vLane}, 3, 1")
    e(f"v_lshrrev_b32 v69, 4, v{vLane}")
    e("v_lshl_add_u32 v66, v66, 2, v69")
    e(f"v_mul_u32_u24 v66, s{sNT}, v66")
    e(f"v_add_lshl_u32 v{vIxA}, v66, s{sQw}, 4")
    e(f"s_mov_b32 m0, s{sStg}")
    e(f"s_mov_b32 s{sDum}, {NOROW:#x}")
    e("s_waitcnt lgkmcnt(0)")
    e("s_barrier")
    pt('scat')
    for x in rd_idx(): e(x)
    e(f"v_add_u32 v{vIxA}, 16, v{vIxA}")
    c("quad words: thread = (node, k0)")
    e("v_lshrrev_b32 v69, 4, v74")
    e("v_lshrrev_b32 v64, 4, v64")
    e("v_add_lshl_u32 v68, v64, v65, 2")
    e("v_add_u32 v70, -1, v69")
    e(f"v_or_b32 v71, {NONLAST:#x}, v15")
    def blk_dma():
        for x in mads() + dma() + rd_idx(): e(x)
        e(f"v_add_u32 v{vIxA}, 16, v{vIxA}")
    def blk_qm(t):
        e(f"s_mov_b32 s{sT1}, {ROWS+512}")
        e(f"v_mad_u32_u16 v72, v15, 16, s{sT1} op_sel:[1,0,0,0]")
        e("v_mov_b32 v73, 0x100000")
        e(f"v_mov_b32 v75, {EPSR}")
        e("ds_write2_b32 v72, v75, v73 offset0:0 offset1:1")
        eps = f32(1e-6 * 2.0**(2*SC))
        e(f"s_cmp_lg_u32 s{sFirst}, 0")
        e(f"s_cselect_b32 s{sEps}, {eps}, 0")
        e(f"v_lshl_add_u32 v72, v{vLane}, 3, v75")
        e(f"v_mov_b32 v73, s{sEps}")
        e("ds_write2_b32 v72, v73, v67 offset0:0 offset1:1")
        for u in range(3):
            e("v_cmp_lt_u32 vcc, v65, v69")
            e("v_cmp_eq_u32 s[76:77], v65, v70")
            e("s_and_b64 exec, exec, vcc")
            e("v_add_u32 v65, 4, v65")
            e("v_cndmask_b32 v72, v71, v15, s[76:77]")
            e(f"ds_write_b32 v68, v72 offset:{QA+16*u}")
        e(f"K2_QM{t}:")
        e("v_cmp_lt_u32 vcc, v65, v69")
        e("v_cmp_eq_u32 s[76:77], v65, v70")
        e("s_and_b64 exec, exec, vcc")
        e(f"s_cbranch_execz K2_QMD{t}")
        e("v_add_u32 v65, 4, v65")
        e("v_cndmask_b32 v72, v71, v15, s[76:77]")
        e(f"ds_write_b32 v68, v72 offset:{QA+48}")
        e("v_add_u32 v68, 16, v68")
        e(f"s_branch K2_QM{t}")
        e(f"K2_QMD{t}:")
        e("s_mov_b64 exec, -1")
        e(f"v_lshrrev_b32 v66, 5, v{vLane}")
        e(f"v_bfe_u32 v69, v{vLane}, 2, 2")
        e("v_lshl_add_u32 v66, v66, 2, v69")
        e(f"v_mul_u32_u24 v66, s{sNT}, v66")
        e(f"v_add_lshl_u32 v{vQaA}, v66, s{sQw}, 2")
        e(f"v_bfe_u32 v8, v{vLane}, 2, 1")
        e(f"v_bfe_u32 v9, v{vLane}, 3, 2")
        e("v_lshl_add_u32 v8, v8, 2, v9")
        e(f"v_mul_u32_u24 v8, s{sNT}, v8")
        e(f"v_add_lshl_u32 v8, v8, s{sQw}, 2")
        e(f"v_and_or_b32 v8, v{vLane}, 3, v8")
        e(f"v_lshlrev_b32 v{vAqA}, 2, v8")
        e("s_waitcnt lgkmcnt(0)")
    e(f"s_cmp_ge_u32 s{sWave}, 4")
    e("s_cbranch_scc1 K2_ORD_B")
    e("s_waitcnt lgkmcnt(0)")
    blk_dma(); blk_qm('a')
    e("s_barrier")
    e("s_branch K2_ORD_J")
    e("K2_ORD_B:")
    blk_qm('b')
    e("s_barrier")
    blk_dma()
    e("K2_ORD_J:")
    pt('meta')
    for x in rd_qa() + rd_mr(0): e(x)
    e(f"ds_read_b32 v{vWK}, v{vQaA} offset:{QA}")
    e(f"v_add_u32 v{vQaA}, 4, v{vQaA}")
    e(f"s_cmp_eq_u32 s{sFirst}, 0")
    e(f"s_cbranch_scc1 K2_NOV")
    for r in range(8):
        e(f"v_lshlrev_b32 v8, 16, v{vXo+r}")
        e(f"v_and_b32 v9, 0xffff0000, v{vXo+r}")
        e(f"v_add_f32 v{vV+2*r}, v{vV+2*r}, v8")
        e(f"v_add_f32 v{vV+2*r+1}, v{vV+2*r+1}, v9")
    e(f"K2_NOV:")
    e("s_waitcnt lgkmcnt(0)")
    e(AQV); e(AEV)
    e(f"v_and_b32 v{vWK}, 0x3fffffff, v{vWK}")
    for x in rd_bq(0) + rd_bq(1) + rd_aq() + rd_qa() + rd_mr(16): e(x)
    for r in range(8, 16):
        e(f"v_mov_b32 v{r}, 0")
    for j in range(4):
        e(f"v_mov_b32 v{vS+j}, 0")
    for j in range(4):
        e(f"v_mov_b32_dpp v{RP[j]}, v{vWK} row_newbcast:{4*j} row_mask:0xf bank_mask:0xf")
    for j in range(4):
        e(f"v_mad_u32_u16 v{RP[j]}, v{RP[j]}, 16, v{vN16} op_sel:[1,0,0,0]")
    e(f"v_mov_b32 v{vWK}, {NOROW:#x}")
    e(f"v_lshrrev_b32 v{vWK+3}, 5, v{vLane}")
    e(f"v_mul_u32_u24 v{vWK+3}, {4*RST}, v{vWK+3}")
    e(f"v_add_u32 v{vWK+3}, s{sStg}, v{vWK+3}")
    e(f"v_bfe_u32 v{vWK+5}, v{vLane}, 2, 2")
    e(f"v_mul_u32_u24 v{vWK+5}, {RST}, v{vWK+5}")
    e(f"v_add_u32 v{vWK+5}, v{vWK+5}, v{vWK+3}")
    e(f"v_add_u32 v{vWK+3}, v{vWK+3}, v{vN16}")
    e(f"v_subrev_u32 v{vWK+3}, {ROWS}, v{vWK+3}")
    e("v_lshrrev_b32 v19, 2, v0")
    e(f"v_cmp_gt_u32 s[78:79], s{sNN}, v19")
    e(f"v_mul_u32_u24 v19, {RST}, v19")
    e(f"v_add_u32 v19, {ROWS}, v19")
    e("v_and_b32 v31, 2, v0")
    e("v_lshlrev_b32 v31, 6, v31")
    e(f"v_sub_u32 v31, v{vRow}, v31")
    for x in mads(): e(x)
    e(f"v_add_u32 v{vAqA}, 16, v{vAqA}")
    e(f"s_mov_b32 s{sCnt}, s{sNT}")
    e("s_waitcnt vmcnt(0)")
    pt('f4')
    for x in rd_x(): e(x)
    e(f"s_cmp_eq_u32 s{sNT}, 0")
    e("s_cbranch_scc1 K2_DRAIN")
    ms = mfmas(0); dm = dma()
    e("s_waitcnt lgkmcnt(4)")
    e(ms[0])
    e("s_waitcnt lgkmcnt(0)")
    for k in range(1, 9):
        e(ms[k])
        if k <= 4: e(dm[k-1])
        if k == 5: e(rd_idx()[0])
    e("s_waitcnt lgkmcnt(0)")
    e("s_nop 3")
    if not OPT['tl']: stamp(6)
    if OPT['role']:
        role_loops()
    else:
        e(".p2align 6")
        e("K2_LOOP:")
        loop_body()
    e("K2_DRAIN:")
    e("s_setprio 0")
    for x in rcps(): e(x)
    for x in cmps(): e(x)
    e(f"v_cmp_gt_i32 s[76:77], 0, v{vWK}")
    e(f"v_and_b32 v30, 0x3fffffff, v{vWK}")
    e(f"s_mov_b32 s{sT1}, {ROWS+512}")
    e(f"v_mad_u32_u16 v{vWK+4}, v30, 16, s{sT1} op_sel:[1,0,0,0]")
    e(f"s_lshl_b32 s{sT1}, s{sBig}, 2")
    e(f"v_and_or_b32 v{vWK+4}, v{vLane}, s{sT1}, v{vWK+4}")
    for x in chain(1): e(x)
    for x in mwrites(False): e(x)
    stamp(7)
    c("---- tails ----")
    e(f"s_cmp_eq_u32 s{sBig}, 2")
    e("s_cbranch_scc1 K2_TAILAT")
    c("park the tails in this wave's staging area and leave a pointer in the node's row")
    e(f"s_cmp_eq_u32 s{sBig}, 0")
    e(f"s_cselect_b32 s{sT2}, s{sEps}, 0")
    e("s_waitcnt vmcnt(0)")
    for j in range(4):
        for nt in range(2):
            e(f"v_add_f32 v{acc(nt,j)}, s{sT2 if j%2 else sEps}, v{acc(nt,j)}")
        e(f"ds_write_b128 v{vWK+3}, {vr(vAcc+4*j,4)} offset:{RST*j}")
    e("s_mov_b64 exec, s[76:77]")
    e(f"ds_write_b32 v{vWK+4}, v{vWK+5}")
    e("K2_TAILD:")
    e("s_mov_b64 exec, -1")
    c("---- epilogue ----")
    e(f"s_mov_b32 s{sT2}, 0x100000")
    e(f"v_sub_u32 v13, v{vRow}, v19")
    e("v_sub_u32 v14, v31, v19")
    e(f"s_cmp_eq_u32 s{sMore}, 0")
    e(f"s_cselect_b32 s{sT1}, s{sFirst}, 0")
    e(f"s_cmp_eq_u32 s{sBig}, 1")
    e("s_waitcnt lgkmcnt(0)")
    pt('e1')
    e("s_barrier")
    pt('e2')
    e("s_mov_b64 exec, s[78:79]")
    e("s_cbranch_execz K2_TAIL2D")
    e("ds_read_b64 v[10:11], v19 offset:512")
    for k in range(8):
        e(f"ds_read_b128 {vr(192+4*k,4)}, v{vRow if k<4 else 31} offset:{16*k}")
    e("s_waitcnt lgkmcnt(8)")
    def add_tail(p):
        e(f"v_cmp_gt_u32 vcc, s{sT2}, v{p}")
        e(f"v_add_u32 v12, v13, v{p}")
        e(f"v_add_u32 v15, v14, v{p}")
        e("s_mov_b64 exec, vcc")
        for k in range(8):
            e(f"ds_read_b128 {vr(224+4*k,4)}, v{12 if k<4 else 15} offset:{16*k}")
        for k in range(8):
            e(f"s_waitcnt lgkmcnt({7-k})")
            e(f"v_pk_add_f32 {vr(192+4*k,2)}, {vr(192+4*k,2)}, {vr(224+4*k,2)}")
            e(f"v_pk_add_f32 {vr(194+4*k,2)}, {vr(194+4*k,2)}, {vr(226+4*k,2)}")
        e("s_mov_b64 exec, s[78:79]")
    add_tail(10)
    e("s_cbranch_scc1 K2_TAIL2")
    e("K2_TAIL2D:")
    pt('e4')
    e(f"s_cmp_eq_u32 s{sT1}, 0")
    e("s_cbranch_scc1 K2_SLOWTOT")
    e("K2_FIN:")
    e("s_mov_b64 exec, s[78:79]")
    e("s_cbranch_execz K2_DONE")
    pt('e3')
    for it in range(2):
        for k in range(8):
            e(f"v_rcp_f32 v{192+4*k+2*it}, v{192+4*k+2*it}")
        e("s_nop 0")
        for k in range(8):
            e(f"v_fmac_f32 v{vV+8*it+k}, v{192+4*k+2*it}, v{193+4*k+2*it}")
        for k in range(4):
            e(f"v_cvt_pk_bf16_f32 v{112+4*it+k}, v{vV+8*it+2*k}, v{vV+8*it+2*k+1}")
        c("x + relu(z) = max(x + z, x); bf16 patterns order like f16 patterns")
        for k in range(4):
            e(f"v_pk_max_f16 v{112+4*it+k}, v{112+4*it+k}, v{vXo+4*it+k}")
        e(f"buffer_store_dwordx4 {vr(112+4*it,4)}, v{vOut}, {sr(sOut,4)}, 0 offen offset:{64*it}" + FL[OPT['ost']])
    e("K2_DONE:")
    if OPT['stamp']:
        e("s_mov_b64 exec, -1")
        stamp(8)
        e("s_barrier")
        diag_out(1, 9, sWave, sWs, sNT)
    e("K2_END:")
    e("s_endpgm")
    flush_ool()
    c("---- wave 7, phase 1: ready count, scaled wb / wc rows, run table words ----")
    e("P1_W7A:")
    p1_scan()
    e(f"s_cmp_lt_u32 s3, {NCL}")
    e("s_cbranch_scc0 P1_NOF")
    e(f"s_lshl_b32 s{sT0}, s3, {2 if NCL<=64 else (1 if NCL==128 else 0)}")
    e("v_mov_b32 v76, 1")
    e("s_mov_b64 exec, 1")
    e("s_waitcnt vmcnt(0)")
    if OPT['cat']:
        e(f"buffer_atomic_add v76, v74, {sr(sWc,4)}, s{sT0} offen sc1")
    else:
        e(f"buffer_store_{'dword' if NCL<=64 else ('short' if NCL==128 else 'byte')} v76, v74, {sr(sWc,4)}, s{sT0} offen sc1")
    e("s_mov_b64 exec, -1")
    e("P1_NOF:")
    srd(68, 64, 512)
    e(f"buffer_load_dwordx4 v[224:227], v68, s[68:71], 0 offen")
    side_copies()
    for i in range(4):
        e(f"v_lshl_or_b32 v{244+i}, v{240+i}, 16, v{244+i}")
        e(f"v_or_b32 v{244+i}, 1, v{244+i}")
    e("s_branch P1_J")
    e("P1_W7B:")
    mid(NR)
    scale8(224, 4)
    c("lanes 32..63 hold flag rows (0, R, 0, 0); lanes 0..31 the wc' rows")
    e(f"v_lshrrev_b32 v73, 3, v{vLane}")
    e("v_cmp_eq_u32 vcc, 5, v73")
    e(f"v_mov_b32 v72, {(RFLAG>>16)*0x10001:#x}")
    e(f"v_xor_b32 v73, 512, v68")
    for r in range(4):
        e(f"v_cndmask_b32 v{224+r}, v{224+r}, v72, vcc")
    if OPT['cz']:
        bz = struct.unpack("<I", struct.pack("<f", -2.0 * SC))[0] >> 16
        e("s_bfm_b64 exec, 8, 48")
        for r in range(4):
            e(f"v_mov_b32 v{224+r}, {bz*0x10001:#x}")
        e("s_mov_b64 exec, -1")
    e(f"v_add_u32 v73, {WCT}, v73")
    e("ds_write_b128 v73, v[224:227]")
    c("the whole table must have been cleared before anything is published or trusted")
    e(f"v_and_b32 v74, {min(NCL,64)-1}, v{vLane}")
    e("v_lshlrev_b32 v74, 2, v74")
    e(f"s_mov_b32 s{sCnt}, 0x40000")
    if OPT['ra']: e("s_waitcnt vmcnt(0)")
    e("P1_POLL:")
    e(f"buffer_load_dword v76, v74, {sr(sWc,4)}, 0 offen" + FL[OPT['pl_']])
    e("s_waitcnt vmcnt(0)")
    e(f"v_cmp_ne_u32 vcc, {1 if NCL<=64 else (0x10001 if NCL==128 else 0x01010101)}, v76")
    e(f"s_sub_u32 s{sCnt}, s{sCnt}, 1")
    e("s_cbranch_scc1 K2_END")
    e("s_cmp_eq_u64 vcc, 0")
    e("s_cbranch_scc1 P1_RDY")
    e("s_sleep 8")
    e("s_branch P1_POLL")
    c("---- rare paths ----")
    e("K2_OVF2:")
    e("v_add_u32 v70, 192, v67")
    ovf(70, 192)
    e(f"s_mov_b64 exec, {sr(sMk+18,2)}")
    e(f"buffer_load_dwordx3 v[228:230], v73, {sr(sWs,4)}, s{sCnt} offen sc1")
    e("s_mov_b64 exec, -1")
    e("s_waitcnt vmcnt(0)")
    e("s_branch K2_OVFD")
    e("K2_NEXT:")
    e("v_lshlrev_b32 v64, 2, v0")
    e("v_mov_b32 v66, 0")
    e("s_movk_i32 s42, 132")
    e("v_cmp_gt_u32 vcc, s42, v0")
    e("s_mov_b64 exec, vcc")
    e(f"ds_write_b32 v64, v66 offset:{CNT}")
    e("s_mov_b64 exec, -1")
    e("s_waitcnt lgkmcnt(0)")
    e("s_barrier")
    e("s_branch K2_ROUND")
    e("K2_TAIL2:")
    add_tail(11)
    e("s_branch K2_TAIL2D")
    e("K2_TAILAT:")
    e("s_waitcnt lgkmcnt(0)")
    e("s_barrier")
    for j in range(4):
        for y in expand(j, 76): e(y)
        for i in range(4):
            e(f"ds_add_f32 v{RP[j]}, v{vAcc+4*j+i} offset:{4*i}")
    e("s_branch K2_TAILD")
    e("K2_FAIL:")
    e(f"s_movk_i32 s{sLW}, 144")
    e("s_waitcnt vmcnt(0) lgkmcnt(0)")
    e("s_barrier")
    e("s_branch K2_NEXT")
    e("K2_SLOWTOT:")
    e("s_mov_b64 exec, -1")
    e("v_lshlrev_b32 v14, 7, v0")
    e(f"s_lshl_b32 s{sT1}, s2, 16")
    e(f"s_add_u32 s{sT1}, s{sT1}, {WS_TOT}")
    e("s_waitcnt lgkmcnt(0)")
    e(f"s_cmp_lg_u32 s{sFirst}, 0")
    e("s_cbranch_scc1 K2_ST1")
    for r in range(8):
        e(f"buffer_load_dwordx4 {vr(224+4*r,4)}, v14, {sr(sWs,4)}, s{sT1} offen offset:{16*r} sc1")
    e("s_waitcnt vmcnt(0)")
    for r in range(32):
        e(f"v_add_f32 v{192+r}, v{192+r}, v{224+r}")
    e(f"s_cmp_eq_u32 s{sMore}, 0")
    e("s_cbranch_scc1 K2_FIN")
    e("K2_ST1:")
    for r in range(8):
        e(f"buffer_store_dwordx4 {vr(192+4*r,4)}, v14, {sr(sWs,4)}, s{sT1} offen offset:{16*r} sc1")
    e(f"s_mov_b32 s{sFirst}, 0")
    e(f"s_add_u32 s{sJ0}, s{sJ0}, s{sLW}")
    e("s_waitcnt vmcnt(0)")
    e("s_barrier")
    e("s_branch K2_NEXT")

def hi_pure(nt, prio, first=(), after=0, wait=False):
    e(f"s_setprio {prio}")
    ms = mfmas(1 - nt); av = list(first) + avals(nt)
    tr = rcps() + exps(nt)
    per = (3, 3, 3, 3, 3, 3, 2, 2, 2); fl = [0, 0, 0, 0, 0, 0, 2, 2, 2]
    if wait:
        tr = exps(nt)[:4] + rcps() + exps(nt)[4:]
        av = avals(nt)[:1] + list(first) + avals(nt)[1:]
        per = (3, 3, 2, 3, 3, 3, 3, 2, 2); fl = [0, 0, 1, 0, 0, 0, 0, 2, 2]
    t = 0; f = 0
    for g in range(9):
        if wait and g == 3: e("s_waitcnt lgkmcnt(0)")
        e(ms[g])
        seq = [tr[t + i] for i in range(per[g])]; t += per[g]
        fs = [av[f + i] for i in range(fl[g])]; f += fl[g]
        while seq or fs:
            if seq: e(seq.pop(0))
            if fs: e(fs.pop(0))
    e(f"s_setprio {after}")
    assert f >= len(first)
    return av[f:]

def lo_part(nt, rest, adds):
    for y in list(rest) + chain(1 - nt) + list(adds) + frac(nt): e(y)

sEr = 42
sEps = 80
sWm = 68
sDum = 43
def cmps(): return [f"v_cmp_gt_u32 {sr(sWm,2)}, s{sDum}, v{vWK}"]
WL = [0]
RP = [65, 66, 70, 71]
def expand(j, sm):
    return [f"s_bfe_i32 exec_lo, s{sm}, {0x10000+4*j:#x}", f"s_bfe_i32 exec_hi, s{sm+1}, {0x10000+4*j:#x}"]
OOL = []
def flush_ool():
    for y in OOL: e(y)
    OOL.clear()
def mwrites(zero=True):
    WL[0] += 1; end = f"KE{WL[0]}"
    o = [f"s_or_b32 s{sWm+2}, s{sWm}, s{sWm+1}", f"s_cbranch_scc0 {end}"]
    for j in range(4):
        WL[0] += 1
        o += [f"s_bitcmp0_b32 s{sWm+2}, {4*j}", f"s_cbranch_scc1 KW{WL[0]}"] + expand(j, sWm) + [
              f"ds_write_b128 v{RP[j]}, {vr(vAcc+4*j,4)}"]
        if zero: o += [f"ds_read_b128 {vr(vAcc+4*j,4)}, v{vZa}", f"v_add_u32 v{RP[j]}, {RST}, v{RP[j]}"]
        o += [f"KW{WL[0]}:"]
    return o + ["s_mov_b64 exec, -1", f"{end}:"]

TL = [0]
def tl():
    if OPT['tl']:
        e(f"s_memtime {sr(44+2*TL[0],2)}"); TL[0] += 1
def tl_dump(lab):
    if not OPT['tl']: return
    n = TL[0]; TL[0] = 0
    e(f"s_cmp_lg_u32 s{sCnt}, {OPT['tl']}")
    e(f"s_cbranch_scc1 {lab}")
    e("s_waitcnt lgkmcnt(0)")
    for i in range(n):
        e(f"s_mov_b32 s{sSt+2+2*i}, s{44+2*i}")
    e(f"{lab}:")
def hi_last(prio, first, after):
    e(f"s_setprio {prio}")
    for y in rcps() + list(first) + exps(1): e(y)
    e(f"s_setprio {after}")
    return avals(1)

def role_loops():
    adds = [f"v_add_u32 v{vIxA}, 16, v{vIxA}", f"v_add_u32 v{vAqA}, 16, v{vAqA}", f"v_add_u32 v{vQaA}, 4, v{vQaA}"]
    cm = cmps()
    e(f"s_mov_b64 {sr(sWm,2)}, 0")
    e(f"s_cmp_ge_u32 s{sWave}, 4")
    e("s_cbranch_scc1 KB_LOOP")
    e("s_branch KA_ENTRY")
    e(".p2align 6")
    e("KA_LOOP:")
    tail = (cm + avals(1))[6:]
    e("s_waitcnt lgkmcnt(0)")
    lo_part(1, tail, adds)
    e("KA_ENTRY:")
    tl()
    r = hi_pure(0, OPT['pa'], mads() + [AEV, AQV])
    tl()
    e("s_waitcnt vmcnt(0)")
    for y in rd_x() + rd_aq() + rd_bq(0) + rd_bq(1): e(y)
    e(f"s_sub_u32 s{sCnt}, s{sCnt}, 1")
    e(f"s_cmp_eq_u32 s{sCnt}, 0")
    e("s_waitcnt lgkmcnt(4)")
    for y in dma(): e(y)
    e("s_waitcnt lgkmcnt(0)")
    tl()
    lo_part(0, r, [])
    e("s_cbranch_scc1 KA_LAST")
    tl()
    hi_pure(1, OPT['pa'], cm, OPT['pa'])
    L.pop()
    tl()
    for y in mwrites() + ["s_setprio 0"] + rd_wk() + rd_qa(4) + rd_idx(16) + rd_mr(16): e(y)
    tl()
    tl_dump("KA_TL")
    if OPT['trace']: trace_code()
    e("s_branch KA_LOOP")
    flush_ool()
    e("KA_LAST:")
    r = hi_last(OPT['pa'], cm, OPT['pa'])
    for y in mwrites() + ["s_setprio 0"] + rd_wk(): e(y)
    e("s_waitcnt lgkmcnt(0)")
    lo_part(1, r, [])
    e("s_branch K2_DRAIN")
    flush_ool()
    e(".p2align 6")
    e("KB_LOOP:")
    tl()
    r = hi_pure(0, OPT['pb'], mads() + [AEV, AQV], OPT['pl'])
    tl()
    lo_part(0, r, [])
    tl()
    if OPT['fo'] == 2:
        for y in mwrites() + rd_wk(): e(y)
        e(f"s_sub_u32 s{sCnt}, s{sCnt}, 1")
        e(f"s_cmp_eq_u32 s{sCnt}, 0")
        e("s_cbranch_scc1 KB_LAST")
        for y in rd_aq() + rd_bq(0): e(y)
        e("s_waitcnt vmcnt(0)")
        for y in rd_x(): e(y)
        e("s_waitcnt lgkmcnt(3)")
        tl()
        r = hi_pure(1, OPT['pb'], cm, OPT['pl'], True)
    else:
        e("s_waitcnt vmcnt(0)")
    if OPT['fo'] == 2:
        pass
    elif OPT['fo']:
        for y in rd_x() + rd_aq() + rd_bq(0): e(y)
        e(f"s_sub_u32 s{sCnt}, s{sCnt}, 1")
        e("s_waitcnt lgkmcnt(0)")
        if OPT['bd'] == 0:
            for y in dma(): e(y)
        for y in mwrites() + rd_wk(): e(y)
        e(f"s_cmp_eq_u32 s{sCnt}, 0")
        e("s_cbranch_scc1 KB_LAST")
        tl()
        r = hi_pure(1, OPT['pb'], ["s_waitcnt lgkmcnt(0)"] + cm, OPT['pl'])
    else:
        for y in rd_x() + rd_aq() + rd_bq(0) + mwrites() + rd_wk(): e(y)
        e(f"s_sub_u32 s{sCnt}, s{sCnt}, 1")
        e(f"s_cmp_eq_u32 s{sCnt}, 0")
        e("s_cbranch_scc1 KB_LAST")
        e("s_waitcnt lgkmcnt(0)")
        tl()
        r = hi_pure(1, OPT['pb'], cm, OPT['pl'])
    tl()
    lo_part(1, r, adds)
    tl()
    for y in (dma() if OPT['bd'] else []) + rd_bq(1) + rd_qa() + rd_mr(0) + rd_idx(): e(y)
    tl_dump("KB_TL")
    if OPT['trace']: trace_code()
    e("s_waitcnt lgkmcnt(0)")
    e("s_branch KB_LOOP")
    flush_ool()
    e("KB_LAST:")
    r = hi_last(OPT['pb'], [], OPT['pl'])
    e("s_waitcnt lgkmcnt(0)")
    lo_part(1, r, [])

def trace_code():
    e("s_memtime s[44:45]")
    e("s_memrealtime s[46:47]")
    e(f"s_lshl_b32 s48, s2, 3")
    e(f"s_add_u32 s48, s48, s{sWave}")
    e(f"s_lshl_b32 s48, s48, 4")
    e(f"s_add_u32 s48, s48, s{sCnt}")
    e(f"s_lshl_b32 s48, s48, 3")
    e(f"s_add_u32 s48, s48, {WS_DIAG+0x80000}")
    e("s_waitcnt lgkmcnt(0)")
    e("v_mov_b32 v30, s44")
    e("v_mov_b32 v68, 0")
    e("s_mov_b64 exec, 1")
    e(f"buffer_store_dword v30, v68, {sr(sWs,4)}, s48 offen")
    e("s_mov_b64 exec, -1")

def loop_body():
    global L
    n0 = len(L)
    loop_body0()
    k = OPT['kill']
    body = L[n0:]; del L[n0:]
    for l in body:
        t = l.strip()
        if k & 1 and t.startswith('ds_read'): continue
        if k & 2 and t.startswith('ds_write'): continue
        if k & 4 and t.startswith('buffer_load'): continue
        if k & 8 and t.startswith('s_waitcnt') and not OPT['trace']: continue
        if k & 16 and t.startswith('v_add_u32'): continue
        if k & 32 and t.startswith('v_fmaak'): l = l.replace('v_fmaak_f32','v_mul_f32').rsplit(',',1)[0]
        if k & 64 and t.startswith('v_fma_f32'): l = l.replace('v_fma_f32','v_mul_f32').rsplit(',',1)[0]
        if k & 128 and t.startswith('v_and_b32'): continue
        L.append(l)
def loop_body0():
    e("s_setprio 1")
    ex = [[] for _ in range(9)]
    x = rd_x(); md = mads()
    ex[0] = rd_aq() + rd_bq(0)
    ex[1] = rd_bq(1) + ["s_waitcnt vmcnt(0)"]
    ex[2] = [x[0]]
    ex[4] = [x[1]]
    ex[5] = md[:2]
    ex[6] = [x[2]]
    ex[7] = md[2:]
    ex[8] = [x[3]]
    hi_phase(mfmas(1), rcps() + exps(0), ex)
    e("s_setprio 0")
    for y in mix(chain(1), avals(0)): e(y)
    e(f"v_add_u32 v{vIxA}, 64, v{vIxA}")
    e(f"v_add_u32 v{vAqA}, v{vAqA}, v{vAqI}")
    for y in frac(0): e(y)
    e("s_setprio 1")
    e("s_waitcnt lgkmcnt(0)")
    ex = [[] for _ in range(9)]
    w = writes(); d = dma(); wk = rd_wk()
    ex[0] = [d[0], w[0]]; ex[1] = [d[1], w[1]]; ex[2] = [d[2], w[2]]
    ex[4] = [d[3], w[3]]; ex[5] = wk; ex[7] = rd_qa() + [f"s_sub_u32 s{sCnt}, s{sCnt}, 1"]; ex[8] = rd_idx()
    hi_phase(mfmas(0), rcps() + exps(1), ex)
    e("s_setprio 0")
    av = avals(1)
    for y in av[:8]: e(y)
    e("s_waitcnt lgkmcnt(0)")
    for y in mix(chain(0), av[8:]): e(y)
    for j in range(4):
        e(f"v_add_u32 v{vWK+2*j}, v{vWK+2*j}, v{vN16}")
    e(f"v_add_u32 v{vWkA}, 32, v{vWkA}")
    e(f"v_add_u32 v{vQaV}, v{vQaV}, v{vQaC}")
    e(f"v_add_u32 v{vQaA}, 16, v{vQaA}")
    for y in frac(1): e(y)
    if OPT['trace']: trace_code()
    e(f"s_cmp_lg_u32 s{sCnt}, 0")
    e("s_cbranch_scc1 K2_LOOP")

def kd(name, vg, sg):
    L.extend([f".amdhsa_kernel {name}",
              f"  .amdhsa_next_free_vgpr {vg}",
              f"  .amdhsa_next_free_sgpr {sg}",
              f"  .amdhsa_accum_offset {(vg+3)//4*4}",
              "  .amdhsa_group_segment_fixed_size 0",
              "  .amdhsa_kernarg_size 96",
              "  .amdhsa_user_sgpr_count 2",
              "  .amdhsa_user_sgpr_kernarg_segment_ptr 1",
              "  .amdhsa_system_sgpr_workgroup_id_x 1",
              ".end_amdhsa_kernel"])

hdr = open("cdna_kernels/%s.s.ref" % NAME).read().split("\n")
for l in hdr:
    if l.startswith("; Override") : break
    L.append(l)
if OPT['lst']:
    L.append(f"; @launch kernel={NAME}_kernel grid=(256,1,1) block=(512,1,1) lds={K2_LDS}")
else:
    L.append(f"; @launch grid=(256,1,1) block=(512,1,1) lds={K2_LDS}")
L.append('.amdgcn_target "amdgcn-amd-amdhsa--gfx950"')
L.append(".text")
L.append(f".globl {NAME}_kernel")
L.append(f".type {NAME}_kernel,@function")
sSt = 82
for i, n in enumerate(OPT.get('pts', 'b2,b3,b4,go,hist').split(',')): PTS[n] = i + 1
k2()
L.append("K2_CODE_END:")
L.append('.section .rodata,"a"')
L.append(".p2align 6")
kd(f"{NAME}_kernel", 256, 102)
open(sys.argv[1], "w").write("\n".join(L) + "\n")
print("K2_LDS", K2_LDS, "ATAB", ATAB, "STG", STG, "ROWS", ROWS)
```

```python
import sys, struct

NAME = "standalone__edge_featured_mpnn_gatedgcn__graph"
OPT = dict(stamp=0, trace=0, stf=1, ldf=3, sched=0, remap=1, nodefirst=0, kill=0, pf=1, h1=4, dbg=0, alt=0, alt2=0, slp=10, rt=0, ost=0, role=1, fill=14, pa=2, pb=1, pl=3, wf=1, tl=0, mw=1, bt=-1, fb=0, peel=1, pf7=0, pfa=0, pfb=16, skp=2, dl=1, qu=3, lat=0, tlb=0, tw=0, rs=1, rl=1, pl_=1, ps=1, ncl=64, cat=0, wofs=0, bal=4, sp=0, ra=0, cz=1, co=0, cpf=0, em=1, bo=0, prog=1, bw=1, b64=0, wsk=1, wa=1, bd=1, fo=2, tr=1, xf=0, xv=0, eb=0, lst=0)
for a in sys.argv[2:]:
    k, v = a.split('=')
    OPT[k] = int(v) if k != 'pts' else v

L = []
def e(s=""): L.append("    " + s if s and not s.endswith(":") else s)
def c(s): L.append("    ; " + s)
def f32(x): return "0x%08x" % struct.unpack("<I", struct.pack("<f", x))[0]
def vr(a, n): return f"v[{a}:{a+n-1}]"
def sr(a, n): return f"s[{a}:{a+n-1}]"
FL = ["", " sc1", " sc0 sc1", " nt", " sc1 nt", " sc0 sc1 nt"]

N = 25000; E = 800000
CH = 3136
CHB = CH * 12
BM = 171799
BK = 6399988
WS_T = 0
WS_IMG = 0x40000
WS_REC = 0x80000 + OPT['wofs'] * 0x100000
WS_AU = 0xA00000
WS_TOT = 0x1100000
WS_DIAG = 0x2F00000
WS_SIZE = 0x10000000
LOG2E = 1.4426950408889634
NODE_WGS = 196
RFLAG = 0x21800000
sSt = 82

def srd(d, b, size, stride=0):
    e(f"s_mov_b32 s{d}, s{b}")
    e(f"s_and_b32 s{d+1}, s{b+1}, 0xffff")
    if stride:
        e(f"s_or_b32 s{d+1}, s{d+1}, {stride<<16:#x}")
    e(f"s_mov_b32 s{d+2}, {size}")
    e(f"s_mov_b32 s{d+3}, 0x20000")

def scan64(v):
    for m in ("row_shr:1 row_mask:0xf", "row_shr:2 row_mask:0xf", "row_shr:4 row_mask:0xf",
              "row_shr:8 row_mask:0xf", "row_bcast:15 row_mask:0xa", "row_bcast:31 row_mask:0xc"):
        e("s_nop 1")
        e(f"v_add_u32_dpp v{v}, v{v}, v{v} {m} bank_mask:0xf")

PTS = {}
def pt(name):
    if name in PTS: stamp(PTS[name])
def stamp(i):
    if OPT['stamp']:
        e(f"{'s_memrealtime' if OPT['rt'] else 's_memtime'} {sr(sSt+2*i,2)}")
        if i == 0:
            e(f"s_memrealtime {sr(sSt+18,2)}")
def diag_out(kidx, nst, swave, ssrd, extra=None, vt=8):
    if OPT['dbg']:
        e("s_memrealtime s[42:43]")
        e("s_load_dwordx2 s[44:45], s[0:1], 80")
        e("s_waitcnt lgkmcnt(0)")
        e(f"s_cmp_lg_u32 s2, {OPT['dbg']}")
        e(f"s_cbranch_scc1 K{kidx+1}_END")
        e(f"s_cmp_lg_u32 s{swave}, 5")
        e(f"s_cbranch_scc1 K{kidx+1}_END")
        e(f"s_add_u32 s44, s44, {512*(1-kidx)}")
        e("s_addc_u32 s45, s45, 0")
        srd(48, 44, 64)
        e(f"v_mov_b32 v{vt}, 0")
        e("s_mov_b64 exec, 1")
        sel = [(2,3,5,6,8),(1,2,4,5,6,7,8)][kidx]
        o = [0, 7][kidx]
        e(f"v_mov_b32 v{vt+1}, s{sSt+18}")
        e(f"buffer_store_dword v{vt+1}, v{vt}, s[48:51], 0 offen offset:{4*o}")
        for n, i in enumerate(sel):
            e(f"s_sub_u32 s40, s{sSt+2*i}, s{sSt}")
            e(f"v_mov_b32 v{vt+1}, s40")
            e(f"buffer_store_dword v{vt+1}, v{vt}, s[48:51], 0 offen offset:{4*(o+1+n)}")
        e(f"v_mov_b32 v{vt+1}, s42")
        e(f"buffer_store_dword v{vt+1}, v{vt}, s[48:51], 0 offen offset:{4*(o+1+len(sel))}")
        return
    e("s_memrealtime s[42:43]")
    e("s_waitcnt lgkmcnt(0)")
    e(f"s_lshl_b32 s39, s2, 4")
    e(f"s_add_u32 s39, s39, s{swave}")
    e(f"s_lshl_b32 s39, s39, 6")
    e(f"s_add_u32 s39, s39, {WS_DIAG + kidx*0x40000}")
    e(f"v_mov_b32 v{vt}, 0")
    e("s_mov_b64 exec, 1")
    for i in range(1, nst):
        e(f"s_sub_u32 s40, s{sSt+2*i}, {'0' if OPT['rt']==2 or OPT['tl'] else 's%d' % sSt}")
        e(f"v_mov_b32 v{vt+1}, s40")
        e(f"buffer_store_dword v{vt+1}, v{vt}, {sr(ssrd,4)}, s39 offen offset:{4*(i-1)}")
    if extra is not None:
        e(f"v_mov_b32 v{vt+1}, s{extra}")
        e(f"buffer_store_dword v{vt+1}, v{vt}, {sr(ssrd,4)}, s39 offen offset:48")
    e("s_getreg_b32 s40, hwreg(HW_REG_HW_ID)")
    e(f"v_mov_b32 v{vt+1}, s40")
    e(f"buffer_store_dword v{vt+1}, v{vt}, {sr(ssrd,4)}, s39 offen offset:52")
    e(f"v_mov_b32 v{vt+1}, s{sSt+18}")
    e(f"buffer_store_dword v{vt+1}, v{vt}, {sr(ssrd,4)}, s39 offen offset:56")
    e(f"v_mov_b32 v{vt+1}, s42")
    e(f"buffer_store_dword v{vt+1}, v{vt}, {sr(ssrd,4)}, s39 offen offset:60")

def mfma(d, a, b, cc):
    cs = "0" if cc is None else vr(cc, 16)
    return f"v_mfma_f32_32x32x16_bf16 {vr(d,16)}, {vr(a,4)}, {vr(b,4)}, {cs}"

CAP = 3584
CNT = 0
MORE = 512
ZERO = 1056
BI = 528
M4 = 1280
QA = M4 + CAP * 4 + 64
AST = 136
RST = 528
ATAB = QA + (CAP // 4) * 4 + 64
ER = (ATAB + 98 * AST + 15) // 16 * 16
STG = (ER + 40960 + 255) // 256 * 256
SST = 4352
ROWS = STG + 8 * SST
EPSR = ROWS + 98 * RST
K2_LDS = EPSR + 512
WRAW = STG
XOWN = ROWS
WCT = ROWS + 16384
P_HIST = (WCT + 1024 + 1023) // 1024 * 1024
P_BASE = P_HIST + 1024
UTMP = P_BASE + 1024
P_STG = ER
NONLAST = 0x80000000; NOROW = 0x40000000
assert CHB <= 40960 and UTMP + 112 * 256 <= K2_LDS
assert ATAB % 8 == 0 and K2_LDS <= 160 * 1024 and ATAB < 65536, (K2_LDS, ATAB)
SC = 24
PADV = 0x7F007F00
RFLAG = 0x21800000

vW = 128; vD = [192, 224]; vX = 112; vBq = [104, 108]; vAq = 100; vAcc = 84
vS = 72; vN = 76; vP = 80; vWK = 64; vIdx = 56; vC = 40; vXo = 32; vV = 40; vRow = 28; vOut = 29; vTl = 30; vXa = 20
vLane = 1; vAqA = 2; vEa = 3; vIxA = 4; vQaA = 5; vQaV = 6; vQaC = 7
vZa = 16; vN16 = 17; vC1 = 18; vTail = 19
vTe = 8
sX = 4; sXr = 8; sWs = 12; sOut = 16; sWc = 20
sBase = 24; sNN = 25; sWave = 26; sJ0 = 27; sLW = 28; sFirst = 29; s128 = 30; sQt = 31; sTt = 32
sNT = 33; sQw = 34; sStg = 35; sMore = 36; sBig = 37; sCnt = 38; sT0 = 39; sT1 = 40; sT2 = 41
sMk = 44

def G(b): return vD[b]
def H(b): return vD[b] + 16
def Wg(nt, s): return vW + (nt * 4 + s) * 4
def Wh(nt, s): return vW + 32 + (nt * 4 + s) * 4
def mfmas(nt):
    g = G(nt); h = H(nt)
    first = [mfma(g, vAq, vBq[nt], None if OPT['cz'] else vC)]
    gs = [mfma(g, vX+4*k, Wg(nt,k), g) for k in range(4)]
    hs = [mfma(h, vX+4*k, Wh(nt,k), h if k else None) for k in range(4)]
    if OPT['co']: return first + gs + hs
    return first + [x for p in zip(hs, gs) for x in p]
def acc(nt, j): return vAcc + j * 4 + nt * 2
SS = [72, 73, 74, 75, 8, 9, 10, 11]; NN = [76, 77, 78, 79, 12, 13, 14, 15]; PP = [81, 82, 83, 80, 25, 26, 27, 24]
def chain(nt):
    o = []
    for hq in (0, 4):
        for j in range(4):
            a = acc(nt, j); q = hq + j
            o += [f"v_fmac_f32 v{a}, v{SS[q]}, v{PP[q]}", f"v_fmac_f32 v{a+1}, v{NN[q]}, v{PP[q]}"]
    return o
def avals(nt):
    g = G(nt)
    return [f"v_add_f32 v{g+r}, v{g+r}, v{vC1}" for r in range(16)]
def frac(nt):
    g = G(nt); h = H(nt); o = []
    R = range(8); f = lambda q: 4 * (q % 4) + 2 * (q // 4)
    o += [f"v_mul_f32 v{NN[q]}, v{h+f(q)}, v{g+f(q)+1}" for q in R]
    o += [f"v_add_f32 v{SS[q]}, v{g+f(q)}, v{g+f(q)+1}" for q in R]
    o += [f"v_mul_f32 v{PP[q]}, v{g+f(q)}, v{g+f(q)+1}" for q in R]
    o += [f"v_fmac_f32 v{NN[q]}, v{h+f(q)+1}, v{g+f(q)}" for q in R]
    return o
def mix(a, b):
    o = []; a = list(a); b = list(b)
    while a or b:
        if a: o += a[:2]; a = a[2:]
        if b: o += b[:2]; b = b[2:]
    return o
def exps(nt): return [f"v_exp_f32_e64 v{G(nt)+r}, v{G(nt)+r} clamp" for r in range(16)]
def rcps(): return [f"v_rcp_f32 v{p}, v{p}" for p in PP]
def rd_x(): return [f"ds_read_b128 {vr(vX+4*s,4)}, v{vXa+s}" for s in range(4)]
def rd_aq():
    return [f"ds_read_b32 v{vAq}, v{vAqA} offset:{M4}", "s_mov_b32 exec_lo, 0", f"ds_read_b64 {vr(vAq,2)}, v{vEa}", "s_mov_b32 exec_lo, -1"]
def rd_mr(ahead): return [f"ds_read_u16 v{vEa}, v{vAqA} offset:{M4+2+ahead}"]
AEV = f"v_lshl_add_u32 v{vEa}, v{vEa}, 3, s42"
def rd_idx(o=0): return [f"ds_read_b128 {vr(vIdx,4)}, v{vIxA} offset:{M4+o}"]
def mads(): return [f"v_mad_u32_u16 v{vIdx+i}, v{vIdx+i}, s{s128}, v{vIdx+4+i}" for i in range(4)]
def rd_qa(o=0): return [f"ds_read_u16 v{vQaV}, v{vQaA} offset:{QA+o}"]
AQV = f"v_add_u32 v{vQaV}, v{vQaV}, v{vQaC}"
def rd_bq(nt): return [f"ds_read_b64_tr_b16 {vr(vBq[nt]+2,2)}, v{vQaV} offset:{ATAB+64*nt}"]
def rd_wk(): return [f"ds_read_b32 v{vWK}, v{vQaA} offset:{QA-4}"]
def dma(): return [f"buffer_load_dwordx4 v{vIdx+i}, {sr(sX,4)}, 0 offen offset:{1024*i} lds" for i in range(4)]

def hi_phase(ms, trans, extras, per=(2, 2, 2, 3, 2, 2, 3, 2, 2)):
    t = 0
    for g in range(9):
        e(ms[g])
        for _ in range(per[g]):
            e(trans[t]); t += 1
        for x in extras[g]:
            e(x)
    assert t == 20

def side_consts():
    c("copy source addresses: v82 weights, v78/v79 own x rows")
    e(f"v_lshrrev_b32 v81, 5, v{vLane}")
    e(f"v_and_b32 v77, 7, v{vLane}")
    e("v_lshlrev_b32 v78, 2, v81")
    e("v_xor_b32 v77, v77, v78")
    e(f"v_and_b32 v82, 16, v{vLane}")
    e("v_lshlrev_b32 v82, 2, v82")
    e("v_xor_b32 v82, v68, v82")
    e(f"s_and_b32 s{sT2}, s{sWave}, 1")
    e(f"s_lshl_b32 s{sT1}, s{sT2}, 1")
    e(f"v_xor_b32 v78, s{sT1}, v77")
    e("v_lshlrev_b32 v78, 4, v78")
    e(f"v_lshrrev_b32 v79, 3, v{vLane}")
    e("v_lshl_add_u32 v78, v79, 9, v78")
    e("v_xor_b32 v79, 16, v78")
    e("v_add_u32 v79, 128, v79")
    e(f"s_lshr_b32 s{sT0}, s{sWave}, 1")
    e(f"s_lshl_b32 s{sT0}, s{sT0}, 5")
    e(f"s_add_u32 s{sQw}, s{sT0}, s{sBase}")
    e(f"s_add_u32 s{sQw}, s{sQw}, s{sT1}")
    e(f"s_lshl_b32 s{sQw}, s{sQw}, 7")

def lane_consts():
    c("---- lane constants ----")
    e(f"v_and_b32 v67, 31, v{vLane}")
    e(f"v_bfe_u32 v70, v{vLane}, 2, 1")
    e(f"v_bfe_u32 v71, v{vLane}, 3, 2")
    e("v_and_b32 v72, 1, v71")
    e("v_lshlrev_b32 v72, 4, v72")
    e("v_mov_b32 v73, 0x3f80")
    e("v_cmp_eq_u32 vcc, v70, v81")
    e("v_lshlrev_b32 v72, v72, v73")
    e("v_cmp_gt_u32 s[42:43], 2, v71")
    e("v_cndmask_b32 v72, 0, v72, vcc")
    e(f"v_and_b32 v73, 3, v{vLane}")
    e(f"v_cndmask_b32 v{vAq+2}, 0, v72, s[42:43]")
    e(f"v_cndmask_b32 v{vAq+3}, v72, 0, s[42:43]")
    e(f"v_mov_b32 v{vAq+1}, 0x3f80")
    for i in range(4):
        e(f"v_xor_b32 v74, {i}, v77")
        e(f"v_lshlrev_b32 v74, 4, v74")
        e(f"v_add_u32 v{vIdx+4+i}, {3072-1024*i}, v74")
    e(f"v_bfe_u32 v74, v{vLane}, 2, 3")
    e(f"v_bfe_u32 v75, v{vLane}, 4, 1")
    e("v_lshl_add_u32 v72, v75, 2, v73")
    e("v_lshlrev_b32 v76, 10, v73")
    e("v_lshl_add_u32 v76, v74, 7, v76")
    e(f"v_add_u32 v76, s{sStg}, v76")
    e("v_xor_b32 v72, v72, v81")
    for s_ in range(4):
        e(f"v_xor_b32 v74, {2*s_}, v72")
        e(f"v_lshl_add_u32 v{vXa+s_}, v74, 4, v76")
    e(f"v_lshlrev_b32 v{vN16}, 2, v75")
    e(f"v_xor_b32 v{vN16}, v{vN16}, v67")
    e(f"v_lshlrev_b32 v{vN16}, 4, v{vN16}")
    e(f"v_add_u32 v{vN16}, {ROWS}, v{vN16}")
    e(f"v_mov_b32 v{vC1}, {f32(2.0**(-2*SC))}")
    e(f"v_mov_b32 v{vZa}, {ZERO}")
    e("v_lshlrev_b32 v73, 3, v73")
    e(f"v_lshl_add_u32 v{vQaC}, v75, 5, v73")
    c("setup addresses: v8 A table write, v9/v10/v11 transposed reads, v12 wc, v24..27 own x")
    e(f"s_and_b32 s{sT2}, s{sWave}, 1")
    e(f"s_lshr_b32 s{sT0}, s{sWave}, 1")
    e(f"s_lshl_b32 s{sT1}, s{sT0}, 5")
    e(f"v_add_u32 v8, s{sT1}, v67")
    e(f"v_cmp_gt_u32 {sr(sMore,2)}, s{sNN}, v8")
    e(f"v_mul_u32_u24 v8, {AST}, v8")
    e("v_lshl_add_u32 v8, v81, 3, v8")
    e(f"s_lshl_b32 s{sT2}, s{sT2}, 6")
    e(f"v_add_u32 v8, s{sT2}, v8")
    e(f"v_bfe_u32 v71, v{vLane}, 2, 2")
    e("v_lshl_add_u32 v12, v81, 2, v71")
    e(f"v_lshl_add_u32 v12, v12, 7, v{vQaC}")
    e(f"v_add_u32 v12, {WCT}, v12")
    e("v_lshl_add_u32 v9, v81, 3, v71")
    e(f"v_lshl_add_u32 v9, v9, 7, v{vQaC}")
    e(f"v_bfe_u32 v71, v{vLane}, 3, 1")
    e("v_lshl_add_u32 v9, v71, 6, v9")
    e(f"v_add_u32 v9, {WRAW}, v9")
    e("v_xor_b32 v10, 64, v9")
    e(f"v_xor_b32 v11, s{sT2}, v9")
    e(f"s_lshl_b32 s{sT0}, s{sT0}, 12")
    e(f"s_add_u32 s{sT0}, s{sT0}, {XOWN}")
    e(f"s_sub_u32 s{sT0}, s{sT0}, s{sStg}")
    for s_ in range(4):
        e(f"v_add_u32 v{24+s_}, s{sT0}, v{vXa+s_}")

def prefetch_all(lanes, first_line, vt):
    if not lanes: return
    e(f"s_and_b32 s{sT2}, s2, 31")
    e(f"s_mul_i32 s{sT2}, s{sT2}, 782")
    e(f"s_mul_i32 s{sT1}, s{sWave}, {lanes}")
    e(f"s_add_u32 s{sT2}, s{sT2}, s{sT1}")
    e(f"s_add_u32 s{sT2}, s{sT2}, {first_line}")
    e(f"s_lshl_b32 s{sT2}, s{sT2}, 7")
    e(f"v_lshlrev_b32 v{vt}, 7, v{vLane}")
    e(f"s_mov_b64 exec, {(1<<lanes)-1 if lanes<64 else -1}" if lanes<=32 or lanes==64 else f"s_bfm_b64 exec, {lanes}, 0")
    e(f"buffer_load_dword v{vt}, v{vt}, {sr(sXr,4)}, s{sT2} offen")
    e("s_mov_b64 exec, -1")

def scale8(first, n):
    for r in range(n):
        e(f"v_lshlrev_b32 v72, 16, v{first+r}")
        e(f"v_and_b32 v73, 0xffff0000, v{first+r}")
        e(f"v_mul_f32 v72, v74, v72")
        e(f"v_mul_f32 v73, v74, v73")
        e(f"v_cvt_pk_bf16_f32 v{first+r}, v72, v73")

def k2():
    st = FL[OPT['stf']]; ld = FL[OPT['ldf']]
    sP = 3
    e(".p2align 8")
    e(f"{NAME}_kernel:")
    e("s_cmp_ge_u32 s2, 256")
    e("s_cbranch_scc1 K2_END")
    stamp(0)
    e("s_load_dwordx8 s[44:51], s[0:1], 0")
    e("s_load_dwordx8 s[52:59], s[0:1], 64")
    e("s_load_dwordx8 s[60:67], s[0:1], 32")
    e(f"s_mov_b32 s{sP}, s2")
    if OPT['cpf']:
        c("pull the code into the L2 (one dword per 128-byte line, threads 0..CODE/128)")
        e("s_getpc_b64 s[68:69]")
        e("v_lshlrev_b32 v250, 7, v0")
        e("v_mov_b32 v251, s69")
        e(f"s_movk_i32 s70, {OPT['cpf']}")
        e("v_cmp_gt_u32 s[72:73], s70, v0")
        e("v_add_co_u32 v250, vcc, s68, v250")
        e("s_nop 1")
        e("v_addc_co_u32 v251, vcc, 0, v251, vcc")
        e("s_mov_b64 exec, s[72:73]")
        e("s_cbranch_execz K2_NOPF")
        e("global_load_dword v252, v[250:251], off")
        e("K2_NOPF:")
        e("s_mov_b64 exec, -1")
    e(f"s_and_b32 s{sT0}, s2, 7")
    e("s_lshr_b32 s2, s2, 3")
    e(f"s_lshl_b32 s{sT0}, s{sT0}, 5")
    e(f"s_or_b32 s2, s2, s{sT0}")
    e(f"v_and_b32 v{vLane}, 63, v0")
    e("v_lshrrev_b32 v2, 6, v0")
    e(f"s_mul_i32 s{sT0}, s{sP}, {CH*4}")
    e(f"v_readfirstlane_b32 s{sWave}, v2")
    e(f"v_lshl_add_u32 v64, v0, 4, s{sT0}")
    e(f"v_add_u32 v65, 7168, v64")
    e("v_lshlrev_b32 v66, 1, v64")
    e("v_lshlrev_b32 v67, 1, v65")
    e(f"s_mov_b32 s{sT1}, {E*4}")
    e("s_movk_i32 s42, 336")
    e(f"v_cmp_gt_u32 s[76:77], s{sT1}, v64")
    e(f"v_cmp_gt_u32 s[78:79], s{sT1}, v65")
    e("v_cmp_gt_u32 vcc, s42, v0")
    e(f"v_lshlrev_b32 v68, 4, v{vLane}")
    e(f"v_add_u32 v69, {P_HIST}, v68")
    e(f"v_lshrrev_b32 v248, 3, v{vLane}")
    e("v_and_b32 v249, 0x70, v68")
    e("v_lshl_or_b32 v248, v248, 15, v249")
    for i in range(4):
        e(f"v_mov_b32 v{72+i}, 0")
    e("s_and_b64 s[78:79], s[78:79], vcc")
    e(f"s_cmp_eq_u32 s{sWave}, 7")
    e("s_cselect_b64 s[80:81], -1, 0")
    e("s_andn2_b64 s[76:77], s[76:77], s[80:81]")
    e("s_mov_b64 exec, s[80:81]")
    e("ds_write_b128 v69, v[72:75]")
    e(f"ds_write_b128 v68, v[72:75] offset:{CNT}")
    e(f"ds_write_b128 v68, v[72:75] offset:{ZERO+16-1024}")
    e(f"s_mul_i32 s{sBase}, s2, {BK}")
    e(f"s_add_u32 s{sNN}, s{sBase}, {BK+65535}")
    e(f"s_add_u32 s{sBase}, s{sBase}, 65535")
    e(f"s_lshr_b32 s{sBase}, s{sBase}, 16")
    e(f"s_lshr_b32 s{sNN}, s{sNN}, 16")
    e(f"s_sub_u32 s{sNN}, s{sNN}, s{sBase}")
    e(f"s_mov_b32 s{sJ0}, 0")
    e(f"s_movk_i32 s{sLW}, 384")
    e(f"s_mov_b32 s{sFirst}, 1")
    e(f"s_mul_i32 s{sStg}, s{sWave}, {SST}")
    e(f"s_add_u32 s{sStg}, s{sStg}, {STG}")
    e("s_waitcnt lgkmcnt(0)")
    if OPT['tw']:
        srd(sWs, 58, WS_SIZE)
        e(f"v_lshlrev_b32 v83, {OPT['tw']}, v{vLane}")
        e(f"buffer_load_dword v83, v83, {sr(sWs,4)}, 0 offen")
    srd(68, 50, E * 4)
    e("s_mov_b64 exec, s[76:77]")
    e("buffer_load_dwordx4 v[192:195], v64, s[68:71], 0 offen" + ld)
    e("s_mov_b64 exec, s[78:79]")
    e("buffer_load_dwordx4 v[196:199], v65, s[68:71], 0 offen" + ld)
    srd(sWs, 58, WS_SIZE)
    c("wave 7 of the first workgroups clears the run table")
    NCL = OPT['ncl']; PER = 262144 // NCL
    e(f"s_cmp_lt_u32 s{sP}, {NCL}")
    e("s_cselect_b64 exec, s[80:81], 0")
    e("s_cbranch_execz P1_NOCL")
    e(f"s_mul_i32 s{sT0}, s{sP}, {PER}")
    for k in range(PER // 1024):
        e(f"buffer_store_dwordx4 v[72:75], v68, {sr(sWs,4)}, s{sT0} offen offset:{(k%4)*1024} sc1")
        if k % 4 == 3 and k + 1 < PER // 1024:
            e(f"s_add_u32 s{sT0}, s{sT0}, 4096")
    e("P1_NOCL:")
    srd(72, 48, E * 4)
    srd(sOut, 46, E * 8)
    e("s_barrier")
    pt('b1')
    e("s_mov_b64 exec, s[76:77]")
    e("buffer_load_dwordx4 v[200:203], v64, s[72:75], 0 offen" + ld)
    e(f"buffer_load_dwordx4 v[208:211], v66, {sr(sOut,4)}, 0 offen" + ld)
    e(f"buffer_load_dwordx4 v[212:215], v66, {sr(sOut,4)}, 0 offen offset:16" + ld)
    e("s_mov_b64 exec, -1")
    srd(sWc, 56, 256)
    srd(sXr, 44, N * 128)
    e("s_sub_u32 s50, s44, 3072")
    e("s_subb_u32 s51, s45, 0")
    srd(sX, 50, N * 128 + 3072)
    e(f"s_movk_i32 s{s128}, 128")
    side_consts()
    e(f"s_cmp_eq_u32 s{sWave}, 7")
    e("s_cbranch_scc1 P1_W7A")
    e("v_mov_b32 v70, 12")
    e(f"s_mov_b32 s{sT0}, {BM}")
    e("s_movk_i32 s42, 0x3fc")
    e(f"v_mov_b32 v71, {P_HIST}")
    if OPT['eb']:
        if OPT['eb'] == 1: e("s_waitcnt vmcnt(4)")
        e("s_mov_b64 exec, s[78:79]")
        e("buffer_load_dwordx4 v[204:207], v65, s[72:75], 0 offen" + ld)
        e(f"buffer_load_dwordx4 v[216:219], v67, {sr(sOut,4)}, 0 offen" + ld)
        e(f"buffer_load_dwordx4 v[220:223], v67, {sr(sOut,4)}, 0 offen offset:16" + ld)
    for it in range(2):
        e(f"s_mov_b64 exec, s[{76+2*it}:{77+2*it}]")
        e(f"s_waitcnt vmcnt({4-it})")
        for i in range(4):
            e(f"v_mul_u32_u24 v{224+4*it+i}, s{sT0}, v{192+4*it+i}")
        for i in range(4):
            e(f"v_lshrrev_b32 v{224+4*it+i}, 22, v{224+4*it+i}")
        for i in range(4):
            e(f"v_and_or_b32 v{224+4*it+i}, v{224+4*it+i}, s42, v71")
            e(f"ds_add_rtn_u32 v{232+4*it+i}, v{224+4*it+i}, v70")
        for i in range(4):
            e(f"v_and_b32 v{192+4*it+i}, 127, v{192+4*it+i}")
    if not OPT['eb']:
        e("s_mov_b64 exec, s[78:79]")
        e("buffer_load_dwordx4 v[204:207], v65, s[72:75], 0 offen" + ld)
        e(f"buffer_load_dwordx4 v[216:219], v67, {sr(sOut,4)}, 0 offen" + ld)
        e(f"buffer_load_dwordx4 v[220:223], v67, {sr(sOut,4)}, 0 offen offset:16" + ld)
    e("s_mov_b64 exec, -1")
    e("s_waitcnt lgkmcnt(0)")
    def p1_scan():
        e("s_barrier")
        pt('b2')
        e("ds_read_b128 v[240:243], v69")
        e("s_waitcnt lgkmcnt(0)")
        e("v_add_u32 v72, v240, v241")
        e("v_add_u32 v73, v72, v242")
        e("v_add_u32 v76, v73, v243")
        e("v_mov_b32 v80, v76")
        scan64(80)
        e("v_sub_u32 v244, v80, v76")
        e("v_add_u32 v245, v244, v240")
        e("v_add_u32 v246, v244, v72")
        e("v_add_u32 v247, v244, v73")
    p1_scan()
    e(f"ds_write_b128 v69, v[244:247] offset:{P_BASE-P_HIST}")
    e("s_waitcnt lgkmcnt(0)")
    for it in range(2):
        e(f"s_mov_b64 exec, s[{76+2*it}:{77+2*it}]")
        for i in range(4):
            e(f"ds_read_b32 v{224+4*it+i}, v{224+4*it+i} offset:{P_BASE-P_HIST}")
    e("s_mov_b64 exec, -1")
    def side_dma():
        e(f"s_lshl_b32 s{sT1}, s{sWave}, 11")
        e(f"s_add_u32 m0, s{sT1}, {XOWN}")
        e(f"s_lshl_b32 s{sT1}, s{sWave}, 10")
        e(f"buffer_load_dwordx4 v78, {sr(sXr,4)}, s{sQw} offen lds")
        e("s_add_u32 m0, m0, 1024")
        e("s_nop 0")
        e(f"buffer_load_dwordx4 v79, {sr(sXr,4)}, s{sQw} offen lds")
        for k, pw in enumerate((52, 60, 66)):
            e(f"s_add_u32 m0, s{sT1}, {WRAW+8192*(k+1)}")
            srd(68, pw, 8192)
            e(f"buffer_load_dwordx4 v82, s[68:71], s{sT1} offen lds")
    def side_wb():
        e(f"s_lshl_b32 s{sT1}, s{sWave}, 10")
        srd(68, 62, 8192)
        e(f"buffer_load_dwordx4 v[112:115], v82, s[68:71], s{sT1} offen")
    def side_copies():
        if OPT['sp'] == 0:
            side_dma(); side_wb()
    side_copies()
    pt('side')
    NX = 6 if OPT['sp'] == 0 else 0
    for it in range(2):
        e(f"s_mov_b64 exec, s[{76+2*it}:{77+2*it}]")
        e(f"s_waitcnt vmcnt({NX+5-3*it}) lgkmcnt({4 if it==0 else 8})")
        for i in range(4):
            k = 4 * it + i
            e(f"v_lshl_or_b32 v{200+k}, v{192+k}, 18, v{200+k}")
            e(f"v_add_u32 v{224+k}, v{224+k}, v{232+k}")
            e(f"ds_write_b32 v{224+k}, v{200+k} offset:{P_STG+8}")
        for i in range(4):
            k = 4 * it + i
            if i % 2 == 0:
                e(f"s_waitcnt vmcnt({NX+4-3*it-i//2})")
            e(f"v_add_u32 v{224+k}, {P_STG}, v{224+k}")
            e(f"ds_write2_b32 v{224+k}, v{208+2*k}, v{209+2*k} offset0:0 offset1:1")
    e("s_mov_b64 exec, -1")
    pt('p1scat')
    e("P1_J:")
    pt('pj')
    if OPT['sp'] == 1:
        side_dma(); side_wb()
    if OPT['sp'] == 2:
        side_wb()
    e("v_lshlrev_b32 v64, 4, v0")
    e(f"v_add_u32 v65, {P_STG}, v64")
    e(f"s_mul_i32 s{sT0}, s{sP}, {CHB}")
    e(f"s_add_u32 s{sT0}, s{sT0}, {WS_REC}")
    NT_ = 448 if OPT['pf7'] else 512
    NR = -(-2352 // NT_)
    e(f"s_movk_i32 s42, {2352 - (NR-1)*NT_}")
    e("v_cmp_gt_u32 vcc, s42, v0")
    e("s_waitcnt lgkmcnt(0)")
    e("s_barrier")
    pt('b3')
    if OPT['pf7']:
        e("s_andn2_b64 exec, exec, s[80:81]")
    for k in range(NR):
        e(f"ds_read_b128 {vr(192+4*k,4)}, v65 offset:{k*NT_*16}")
    for k in range(NR):
        if k == NR-1:
            e("s_mov_b64 exec, vcc")
        e(f"s_waitcnt lgkmcnt({NR-1-k})")
        e(f"buffer_store_dwordx4 {vr(192+4*k,4)}, v64, {sr(sWs,4)}, s{sT0} offen" + FL[OPT['rs']])
        if k < NR-1:
            e(f"s_add_u32 s{sT0}, s{sT0}, {NT_*16}")
    e("s_mov_b64 exec, -1")
    if OPT['sp'] == 2:
        side_dma(); NR += 5
    e(f"s_cmp_eq_u32 s{sWave}, 7")
    e("s_cbranch_scc1 P1_W7B")
    pt('stored')
    def mid(wait):
        srd(sOut, 54, N * 128)
        lane_consts()
        e(f"v_mov_b32 v74, {f32(-LOG2E)}")
        e(f"v_add_u32 v75, {WRAW}, v64")
        if wait is not None: e(f"s_waitcnt vmcnt({wait})")
        scale8(112, 4)
        e("ds_write_b128 v75, v[112:115]")
    mid(NR)
    e("s_waitcnt vmcnt(0)")
    e("P1_RDY:")
    pt('rdy')
    e(f"s_lshl_b32 s{sT1}, s{sP}, 7")
    e("s_waitcnt lgkmcnt(0)")
    e("s_barrier")
    pt('b4')
    c("publish this chunk's run table (every word carries a valid bit)")
    e("s_mov_b64 exec, s[80:81]")
    e(f"buffer_store_dwordx4 v[244:247], v248, {sr(sWs,4)}, s{sT1} offen" + FL[OPT['ps']])
    e("s_mov_b64 exec, -1")
    prefetch_all(OPT['pfa'], 0, 19)
    if OPT['tlb']:
        e(f"v_lshlrev_b32 v15, {OPT['tlb']}, v0")
        e(f"buffer_load_dword v15, v15, {sr(sXr,4)}, 0 offen")
    c("---- A table and U for this wave's (node tile, channel half); weight operands ----")
    for s_ in range(4):
        e(f"ds_read_b128 {vr(40+4*s_,4)}, v{24+s_}")
    for m in range(2):
        for s_ in range(4):
            for hf in range(2):
                e(f"ds_read_b64_tr_b16 {vr(vW+16*m+4*s_+2*hf,2)}, v11 offset:{16384+m*8192+s_*2048+hf*512}")
    e(f"s_mov_b32 s{sT0}, {f32(-LOG2E)}")
    e("s_waitcnt lgkmcnt(8)")
    for s_ in range(4):
        e(mfma(84, vW+4*s_, 40+4*s_, 84 if s_ else None))
    e("s_waitcnt lgkmcnt(0)")
    for s_ in range(4):
        e(mfma(112, vW+16+4*s_, 40+4*s_, 112 if s_ else None))
    for m in range(2):
        for nt in range(2):
            for s_ in range(4):
                for hf in range(2):
                    e(f"ds_read_b64_tr_b16 {vr(vW+32*m+16*nt+4*s_+2*hf,2)}, v{9+nt} offset:{m*8192+s_*2048+hf*512}")
    for nt in range(2):
        e(f"ds_read_b64_tr_b16 {vr(vBq[nt],2)}, v12 offset:{64*nt}")
    for r in range(16):
        e(f"v_mul_f32 v{84+r}, s{sT0}, v{84+r}")
    for r in range(8):
        e(f"v_cvt_pk_bf16_f32 v{72+r}, v{84+2*r}, v{85+2*r}")
    e(f"s_mov_b64 exec, {sr(sMore,2)}")
    for j in range(4):
        e(f"ds_write_b64 v8, {vr(72+2*j,2)} offset:{ATAB+j*16}")
    e("s_mov_b64 exec, -1")
    c("U (f32) to its final owners through LDS: 16-byte chunk q of node n sits at n*256 + (q ^ (n&7))*16")
    e(f"s_lshr_b32 s{sT0}, s{sWave}, 1")
    e(f"s_lshl_b32 s{sT0}, s{sT0}, 5")
    e(f"s_and_b32 s{sT1}, s{sWave}, 1")
    e(f"s_lshl_b32 s{sT1}, s{sT1}, 3")
    e(f"v_add_u32 v13, s{sT0}, v67")
    e("s_movk_i32 s42, 112")
    e("v_cmp_gt_u32 vcc, s42, v13")
    e(f"v_and_b32 v14, 7, v{vLane}")
    e("v_xor_b32 v14, v14, v81")
    e(f"v_or_b32 v14, s{sT1}, v14")
    e("v_lshlrev_b32 v13, 8, v13")
    e(f"v_add_u32 v13, {UTMP}, v13")
    e("s_mov_b64 exec, vcc")
    for j in range(4):
        e(f"v_xor_b32 v15, {2*j}, v14")
        e("v_lshl_add_u32 v15, v15, 4, v13")
        e(f"ds_write_b128 v15, {vr(112+4*j,4)}")
    e("s_mov_b64 exec, -1")
    c("epilogue thread = (node tid>>2, chunks c and c+4): output offset, row address, residual operand")
    e("v_lshrrev_b32 v13, 2, v0")
    e("v_and_b32 v14, 3, v0")
    e(f"v_add_u32 v{vOut}, s{sBase}, v13")
    e(f"v_lshlrev_b32 v{vOut}, 7, v{vOut}")
    e(f"v_lshl_add_u32 v{vOut}, v14, 4, v{vOut}")
    e(f"buffer_load_dwordx4 {vr(vXo,4)}, v{vOut}, {sr(sXr,4)}, 0 offen")
    e(f"buffer_load_dwordx4 {vr(vXo+4,4)}, v{vOut}, {sr(sXr,4)}, 0 offen offset:64")
    e(f"v_mul_u32_u24 v{vRow}, {RST}, v13")
    e(f"v_lshl_add_u32 v{vRow}, v14, 7, v{vRow}")
    e(f"v_add_u32 v{vRow}, {ROWS}, v{vRow}")
    e("v_lshrrev_b32 v15, 1, v14")
    e(f"v_lshl_add_u32 v{vRow}, v15, 6, v{vRow}")
    e("v_and_b32 v15, 7, v13")
    e("v_lshlrev_b32 v14, 1, v14")
    e("v_xor_b32 v14, v14, v15")
    e("v_lshlrev_b32 v14, 4, v14")
    e(f"v_lshl_add_u32 v{vTl}, v13, 8, v14")
    e(f"v_add_u32 v{vTl}, {UTMP}, v{vTl}")
    e(f"v_xor_b32 v31, 16, v{vTl}")
    if not OPT['cz']:
        for r in range(16):
            e(f"v_mov_b32 v{vC+r}, {f32(-2.0*SC)}")
    e("K2_ROUND:")
    c("window offset (0xffff = lane outside the window)")
    e(f"v_and_b32 v67, 15, v{vLane}")
    e("v_mul_u32_u24 v67, 12, v67")
    e(f"v_cmp_gt_u32 vcc, s{sLW}, v67")
    e(f"v_add_u32 v66, s{sJ0}, v67")
    e("v_lshrrev_b32 v68, 4, v0")
    e(f"s_mov_b32 s{sT0}, {8*CHB}")
    e(f"v_mul_u32_u24 v68, s{sT0}, v68")
    e("v_add3_u32 v68, v68, v66, -1")
    e("v_mov_b32 v69, 0xffff")
    e("v_cndmask_b32 v66, v69, v66, vcc")
    e("v_mov_b32 v71, 192")
    e("v_and_b32 v64, 0x1f0, v0")
    e("v_lshlrev_b32 v64, 6, v64")
    e(f"s_lshr_b32 s{sT0}, s2, 5")
    e(f"s_lshl_b32 s{sT0}, s{sT0}, 15")
    e(f"s_and_b32 s{sT1}, s2, 31")
    e(f"s_lshl_b32 s{sT1}, s{sT1}, 2")
    e(f"s_add_u32 s{sT0}, s{sT0}, s{sT1}")
    e(f"s_mov_b32 s{sCnt}, 0x40000")
    pt('poll')
    c("wait for the run tables of this wave's 32 producers")
    sd = "dst_sel:DWORD dst_unused:UNUSED_PAD "
    vRa = 84
    for i in range(8):
        e(f"s_mov_b64 {sr(sMk+2*i,2)}, 0")
    e("K2_POLL:")
    for i in range(8):
        e(f"buffer_load_dword v{vTe+i}, v64, {sr(sWs,4)}, s{sT0} offen offset:{i*128} sc1")
    e("s_waitcnt vmcnt(0)")
    e(f"v_bitop3_b32 v69, v{vTe}, v{vTe+1}, v{vTe+2} bitop3:0x80")
    e(f"v_bitop3_b32 v70, v{vTe+3}, v{vTe+4}, v{vTe+5} bitop3:0x80")
    e(f"v_bitop3_b32 v69, v69, v{vTe+6}, v{vTe+7} bitop3:0x80")
    e(f"v_bitop3_b32 v69, v69, v70, 1 bitop3:0x80")
    e("v_cmp_eq_u32 s[76:77], 0, v69")
    pt('go')
    c("fetch the runs that have been published since the last look (a cleared word has count 0)")
    e(f"s_mov_b32 s{sT1}, {WS_REC}")
    for i in range(8):
        e(f"v_cmp_lt_u32_sdwa vcc, v66, v{vTe+i} src0_sel:DWORD src1_sel:WORD_1")
        e(f"v_add_u32_sdwa v{vRa+i}, v68, v{vTe+i} {sd}src0_sel:DWORD src1_sel:WORD_0")
        e(f"s_andn2_b64 exec, vcc, {sr(sMk+2*i,2)}")
        e(f"buffer_load_dwordx3 {vr(192+4*i,3)}, v{vRa+i}, {sr(sWs,4)}, s{sT1} offen sc1")
        e(f"s_mov_b64 {sr(sMk+2*i,2)}, vcc")
        e("s_mov_b64 exec, -1")
        if i < 7:
            e(f"s_add_u32 s{sT1}, s{sT1}, {CHB}")
    e("s_cmp_eq_u64 s[76:77], 0")
    e("s_cbranch_scc1 K2_GO")
    e(f"s_sub_u32 s{sCnt}, s{sCnt}, 1")
    e("s_cbranch_scc1 K2_END")
    e(f"s_sleep {OPT['slp']}")
    e("s_branch K2_POLL")
    e("K2_GO:")
    c("records past the 16th of a run: packed per 16-lane group into two more slots")
    def ovf(vj, extra):
        e("v_mov_b32 v72, 0")
        e("v_mov_b32 v73, 0")
        for i in range(8):
            e(f"v_sub_u32_sdwa v69, v{vTe+i}, v71 clamp {sd}src0_sel:WORD_1 src1_sel:DWORD")
            e(f"v_add_u32 v74, v{vj}, v72")
            e(f"s_mov_b32 s{sT0}, {192+extra+i*CHB}")
            e("v_cmp_lt_u32 vcc, v74, v69")
            e(f"v_add3_u32 v75, v{vRa+i}, v72, s{sT0}")
            e("v_sub_u32 v72, v72, v69")
            e("v_cndmask_b32 v73, v73, v75, vcc")
    ovf(67, 0)
    e("v_add_u32 v74, v67, v72")
    e("v_add_u32 v75, 192, v74")
    e("v_add_u32 v69, 384, v72")
    e(f"v_cmp_gt_i32 {sr(sMk+16,2)}, 0, v74")
    e(f"v_cmp_gt_i32 {sr(sMk+18,2)}, 0, v75")
    e("v_cmp_gt_i32 s[76:77], 0, v69")
    e(f"v_max3_u32 v69, v{vTe}, v{vTe+1}, v{vTe+2}")
    e(f"v_max3_u32 v70, v{vTe+3}, v{vTe+4}, v{vTe+5}")
    e(f"v_max3_u32 v69, v69, v{vTe+6}, v{vTe+7}")
    e("v_max_u32 v69, v69, v70")
    e(f"s_add_u32 s{sT1}, s{sJ0}, s{sLW}")
    e(f"s_lshl_b32 s{sT1}, s{sT1}, 16")
    e(f"s_or_b32 s{sT1}, s{sT1}, 0xffff")
    e(f"v_cmp_lt_u32 vcc, s{sT1}, v69")
    e(f"s_mov_b32 s{sCnt}, {WS_REC}")
    e(f"s_cmp_eq_u32 s{sLW}, 384")
    e(f"s_cselect_b64 {sr(sMk+16,2)}, {sr(sMk+16,2)}, 0")
    e(f"s_cselect_b64 {sr(sMk+18,2)}, {sr(sMk+18,2)}, 0")
    e("s_cselect_b64 s[76:77], s[76:77], vcc")
    e(f"s_mov_b64 exec, {sr(sMk+16,2)}")
    e(f"buffer_load_dwordx3 v[224:226], v73, {sr(sWs,4)}, s{sCnt} offen sc1")
    e("s_mov_b64 exec, -1")
    e(f"s_cmp_lg_u64 {sr(sMk+18,2)}, 0")
    e("s_cbranch_scc1 K2_OVF2")
    e("K2_OVFD:")
    e("v_mov_b32 v66, 4")
    e("v_mov_b32 v67, 0")
    e("s_mov_b64 exec, s[76:77]")
    e(f"ds_write_b32 v67, v66 offset:{MORE}")
    e("s_mov_b64 exec, -1")
    for r in range(16):
        e(f"v_mov_b32 v{vAcc+r}, 0")
    c("scan / meta lane constants while the records are in flight")
    e(f"v_lshl_add_u32 v8, v{vLane}, 1, s{sBase}")
    e("v_add_u32 v9, 1, v8")
    e("v_and_b32 v8, 127, v8")
    e("v_and_b32 v9, 127, v9")
    e("v_lshlrev_b32 v8, 2, v8")
    e("v_lshlrev_b32 v9, 2, v9")
    e(f"s_add_u32 s{sT0}, s{sNN}, 7")
    e(f"v_lshlrev_b32 v10, 1, v{vLane}")
    e("v_add_u32 v11, 1, v10")
    e(f"v_cmp_gt_u32 vcc, s{sT0}, v10")
    e(f"v_cmp_gt_u32 s[76:77], s{sT0}, v11")
    e("v_lshrrev_b32 v12, 2, v0")
    e("v_cndmask_b32 v10, 0, 16, vcc")
    e("v_cndmask_b32 v11, 0, 16, s[76:77]")
    e(f"v_cmp_gt_u32 vcc, s{sT0}, v12")
    e(f"v_cmp_gt_u32 s[76:77], s{sNN}, v12")
    e(f"v_add_u32 v13, s{sBase}, v12")
    e("v_cndmask_b32 v14, 0, 16, vcc")
    e("v_and_b32 v13, 127, v13")
    e("v_lshlrev_b32 v13, 2, v13")
    e(f"v_mul_u32_u24 v15, {AST + (RST//16 << 16)}, v12")
    e(f"v_mov_b32 v64, {NOROW:#x}")
    e("v_cndmask_b32 v15, v64, v15, s[76:77]")
    e(f"s_mul_i32 s{sT0}, s{sWave}, 640")
    e(f"v_add_u32 v64, s{sT0}, v{vLane}")
    e(f"s_mov_b32 s{sEr}, {ER}")
    e(f"v_lshl_add_u32 v65, v64, 3, s{sEr}")
    e("v_lshlrev_b32 v64, 16, v64")
    e(f"s_mov_b32 s{sT0}, 0xffff")
    for j in range(4):
        e(f"v_mov_b32 v{vN+j}, 0")
        e(f"v_mov_b32 v{vP+j}, 1.0")
        e(f"v_mov_b32 v{24+j}, 1.0")
    c("lanes without a record: harmless table address, out-of-range position")
    for q in range(10):
        e(f"v_mov_b32 v{112+q}, 0")
        e(f"v_mov_b32 v{195+4*q}, 0x100000")
    if OPT['pfb']:
        e(f"s_and_b32 s{sT2}, s2, 31")
        e(f"s_mul_i32 s{sT2}, s{sT2}, 782")
        e(f"s_mul_i32 s{sT1}, s{sWave}, {OPT['pfb']}")
        e(f"s_add_u32 s{sT2}, s{sT2}, s{sT1}")
        e(f"v_add_lshl_u32 v255, v{vLane}, s{sT2}, 7")
        e(f"v_cmp_gt_u32 vcc, {OPT['pfb']}, v{vLane}")
        e("v_mov_b32 v254, -16")
        e(f"v_mov_b32 v70, {PADV:#x}")
        e("v_cndmask_b32 v255, v254, v255, vcc")
    for q in range(10):
        r = 192 + 4 * q
        e(f"s_mov_b64 exec, {sr(sMk+2*q,2)}")
        if q < 9: e(f"s_waitcnt vmcnt({8-q})")
        e(f"v_lshrrev_b32 v{112+q}, 16, v{r+2}")
        e(f"ds_add_rtn_u32 v{r+3}, v{112+q}, v66 offset:{CNT}")
        e(f"ds_write_b64 v65, {vr(r,2)} offset:{512*q}")
        e(f"v_and_or_b32 v{r+2}, v{r+2}, s{sT0}, v64")
        if q: e(f"v_add_u32 v{r+2}, {q<<22:#x}, v{r+2}")
    e("s_mov_b64 exec, -1")
    e("s_waitcnt lgkmcnt(0)")
    e("s_barrier")
    pt('hist')
    c("---- scan (every wave, redundantly) ----")
    e(f"ds_read_b32 v64, v8 offset:{CNT}")
    e(f"ds_read_b32 v65, v9 offset:{CNT}")
    e(f"ds_read_b32 v68, v67 offset:{MORE}")
    if OPT['pfb']:
        e(f"buffer_load_dword v255, v255, {sr(sXr,4)}, 0 offen")
    e("s_waitcnt lgkmcnt(1)")
    e(f"s_cmp_eq_u32 s{sFirst}, 0")
    e("s_cbranch_scc1 K2_NOU")
    for it in range(2):
        e(f"ds_read_b128 {vr(vV+8*it,4)}, v{vTl} offset:{128*it}")
        e(f"ds_read_b128 {vr(vV+8*it+4,4)}, v31 offset:{128*it}")
    e("K2_NOU:")
    e("v_add_u32 v69, 15, v64")
    e("v_add_u32 v70, 15, v65")
    e("v_and_b32 v69, -16, v69")
    e("v_and_b32 v70, -16, v70")
    e("v_max_u32 v69, v69, v10")
    e("v_max_u32 v70, v70, v11")
    e("v_add_u32 v71, v69, v70")
    e("v_mov_b32 v72, v71")
    scan64(72)
    e("v_sub_u32 v73, v72, v71")
    e("v_add_u32 v74, v73, v69")
    e(f"v_readlane_b32 s{sQt}, v72, 63")
    e("v_lshl_or_b32 v64, v64, 16, v73")
    e("v_lshl_or_b32 v65, v65, 16, v74")
    e(f"ds_write_b32 v8, v64 offset:{BI}")
    e(f"ds_write_b32 v9, v65 offset:{BI}")
    e("v_max_u32 v69, v69, v70")
    e(f"s_lshr_b32 s{sTt}, s{sQt}, 7")
    pt('s1')
    e(f"ds_read_b32 v64, v13 offset:{BI}")
    for q in range(10):
        e(f"ds_read_u16 v{112+q}, v{112+q} offset:{BI}")
    e(f"s_lshr_b32 s{sT0}, s{sTt}, 3")
    e(f"s_and_b32 s{sT1}, s{sTt}, 7")
    e(f"s_lshl_b32 s{sT2}, s{sT0}, 4")
    e(f"s_add_u32 s{sCnt}, s{sT2}, 16")
    e(f"v_cmp_lt_u32 vcc, s{sCnt}, v69")
    e(f"s_add_u32 s{sCnt}, s{sCnt}, s{sT2}")
    e(f"v_cmp_lt_u32 s[76:77], s{sCnt}, v69")
    e(f"s_mul_i32 s{sQw}, s{sT0}, s{sWave}")
    e(f"s_min_u32 s{sT2}, s{sT1}, s{sWave}")
    e(f"s_add_u32 s{sQw}, s{sQw}, s{sT2}")
    e(f"s_lshl_b32 s{sQw}, s{sQw}, 3")
    e(f"s_cmp_lt_u32 s{sWave}, s{sT1}")
    e(f"s_addc_u32 s{sNT}, s{sT0}, 0")
    e("s_cmp_lg_u64 vcc, 0")
    e(f"s_cselect_b32 s{sBig}, 1, 0")
    e("s_cmp_lg_u64 s[76:77], 0")
    e(f"s_cselect_b32 s{sBig}, 2, s{sBig}")
    c("column of (half h, register group j) = 4h + j, one quad per tile")
    e(f"v_bfe_u32 v66, v{vLane}, 3, 1")
    e(f"v_lshrrev_b32 v69, 4, v{vLane}")
    e("v_lshl_add_u32 v66, v66, 2, v69")
    e(f"v_mul_u32_u24 v66, s{sNT}, v66")
    e(f"v_add_lshl_u32 v{vIxA}, v66, s{sQw}, 4")
    e(f"s_mov_b32 m0, s{sStg}")
    e(f"s_mov_b32 s{sDum}, {0 if OPT['xf'] else NOROW:#x}")
    e("s_waitcnt lgkmcnt(13)")
    e(f"v_readfirstlane_b32 s{sMore}, v68")
    e(f"s_cmp_gt_u32 s{sQt}, {CAP*4}")
    e(f"s_cselect_b32 s{sT0}, 1, s{sMore}")
    e(f"s_cmp_eq_u32 s{sLW}, 384")
    e(f"s_cselect_b32 s{sT0}, s{sT0}, 0")
    e(f"s_cmp_lg_u32 s{sT0}, 0")
    e("s_cbranch_scc1 K2_FAIL")
    c("---- scatter index words ----")
    for q in range(10):
        r = 192 + 4 * q
        if q % 5 == 0: e("s_waitcnt lgkmcnt(5)")
        e(f"v_add_u32 v{112+q}, v{112+q}, v{r+3}")
        e(f"ds_write_b32 v{112+q}, v{r+2} offset:{M4}")
    c("pads")
    e("v_and_b32 v65, 3, v0")
    e(f"v_mov_b32 v70, {PADV:#x}")
    e("v_lshrrev_b32 v68, 16, v64")
    e("v_and_b32 v64, 0xffff, v64")
    e("v_add_u32 v74, 15, v68")
    e("v_and_b32 v74, -16, v74")
    e("v_max_u32 v74, v74, v14")
    e("v_lshl_add_u32 v68, v65, 2, v68")
    e("v_cmp_lt_u32 vcc, v68, v74")
    e("v_add_u32 v68, v68, v64")
    e("s_mov_b64 exec, vcc")
    e(f"ds_write_b32 v68, v70 offset:{M4}")
    e("s_mov_b64 exec, -1")
    pt('s3')
    e("s_waitcnt lgkmcnt(0)")
    e("s_barrier")
    pt('scat')
    for x in rd_idx(): e(x)
    e(f"v_add_u32 v{vIxA}, 16, v{vIxA}")
    c("quad words: thread = (node, k0)")
    e("v_lshrrev_b32 v69, 4, v74")
    e("v_lshrrev_b32 v64, 4, v64")
    e("v_add_lshl_u32 v68, v64, v65, 2")
    e("v_add_u32 v70, -1, v69")
    e(f"v_or_b32 v71, {NONLAST:#x}, v15")
    def blk_dma():
        for x in mads() + dma() + rd_idx(): e(x)
        e(f"v_add_u32 v{vIxA}, 16, v{vIxA}")
    def blk_qm(t):
        e(f"s_mov_b32 s{sT1}, {ROWS+512}")
        e(f"v_mad_u32_u16 v72, v15, 16, s{sT1} op_sel:[1,0,0,0]")
        e("v_mov_b32 v73, 0x100000")
        e(f"v_mov_b32 v75, {EPSR}")
        e("ds_write2_b32 v72, v75, v73 offset0:0 offset1:1")
        eps = f32(1e-6 * 2.0**(2*SC))
        e(f"s_cmp_lg_u32 s{sFirst}, 0")
        e(f"s_cselect_b32 s{sEps}, {eps}, 0")
        e(f"v_lshl_add_u32 v72, v{vLane}, 3, v75")
        e(f"v_mov_b32 v73, s{sEps}")
        e("ds_write2_b32 v72, v73, v67 offset0:0 offset1:1")
        for u in range(3):
            e("v_cmp_lt_u32 vcc, v65, v69")
            e("v_cmp_eq_u32 s[76:77], v65, v70")
            e("s_and_b64 exec, exec, vcc")
            e("v_add_u32 v65, 4, v65")
            e("v_cndmask_b32 v72, v71, v15, s[76:77]")
            e(f"ds_write_b32 v68, v72 offset:{QA+16*u}")
        e(f"K2_QM{t}:")
        e("v_cmp_lt_u32 vcc, v65, v69")
        e("v_cmp_eq_u32 s[76:77], v65, v70")
        e("s_and_b64 exec, exec, vcc")
        e(f"s_cbranch_execz K2_QMD{t}")
        e("v_add_u32 v65, 4, v65")
        e("v_cndmask_b32 v72, v71, v15, s[76:77]")
        e(f"ds_write_b32 v68, v72 offset:{QA+48}")
        e("v_add_u32 v68, 16, v68")
        e(f"s_branch K2_QM{t}")
        e(f"K2_QMD{t}:")
        e("s_mov_b64 exec, -1")
        e(f"v_lshrrev_b32 v66, 5, v{vLane}")
        e(f"v_bfe_u32 v69, v{vLane}, 2, 2")
        e("v_lshl_add_u32 v66, v66, 2, v69")
        e(f"v_mul_u32_u24 v66, s{sNT}, v66")
        e(f"v_add_lshl_u32 v{vQaA}, v66, s{sQw}, 2")
        e(f"v_bfe_u32 v8, v{vLane}, 2, 1")
        e(f"v_bfe_u32 v9, v{vLane}, 3, 2")
        e("v_lshl_add_u32 v8, v8, 2, v9")
        e(f"v_mul_u32_u24 v8, s{sNT}, v8")
        e(f"v_add_lshl_u32 v8, v8, s{sQw}, 2")
        e(f"v_and_or_b32 v8, v{vLane}, 3, v8")
        e(f"v_lshlrev_b32 v{vAqA}, 2, v8")
        e("s_waitcnt lgkmcnt(0)")
    e(f"s_cmp_ge_u32 s{sWave}, 4")
    e("s_cbranch_scc1 K2_ORD_B")
    e("s_waitcnt lgkmcnt(0)")
    blk_dma(); blk_qm('a')
    e("s_barrier")
    e("s_branch K2_ORD_J")
    e("K2_ORD_B:")
    blk_qm('b')
    e("s_barrier")
    blk_dma()
    e("K2_ORD_J:")
    pt('meta')
    for x in rd_qa() + rd_mr(0): e(x)
    e(f"ds_read_b32 v{vWK}, v{vQaA} offset:{QA}")
    e(f"v_add_u32 v{vQaA}, 4, v{vQaA}")
    e(f"s_cmp_eq_u32 s{sFirst}, 0")
    e(f"s_cbranch_scc1 K2_NOV")
    for r in range(8):
        e(f"v_lshlrev_b32 v8, 16, v{vXo+r}")
        e(f"v_and_b32 v9, 0xffff0000, v{vXo+r}")
        e(f"v_add_f32 v{vV+2*r}, v{vV+2*r}, v8")
        e(f"v_add_f32 v{vV+2*r+1}, v{vV+2*r+1}, v9")
    e(f"K2_NOV:")
    e("s_waitcnt lgkmcnt(0)")
    e(AQV); e(AEV)
    e(f"v_and_b32 v{vWK}, 0x3fffffff, v{vWK}")
    for x in rd_bq(0) + rd_bq(1) + rd_aq() + rd_qa() + rd_mr(16): e(x)
    for r in range(8, 16):
        e(f"v_mov_b32 v{r}, 0")
    for j in range(4):
        e(f"v_mov_b32 v{vS+j}, 0")
    for j in range(4):
        e(f"v_mov_b32_dpp v{RP[j]}, v{vWK} row_newbcast:{4*j} row_mask:0xf bank_mask:0xf")
    for j in range(4):
        e(f"v_mad_u32_u16 v{RP[j]}, v{RP[j]}, 16, v{vN16} op_sel:[1,0,0,0]")
    e(f"v_mov_b32 v{vWK}, {NOROW:#x}")
    e(f"v_lshrrev_b32 v{vWK+3}, 5, v{vLane}")
    e(f"v_mul_u32_u24 v{vWK+3}, {4*RST}, v{vWK+3}")
    e(f"v_add_u32 v{vWK+3}, s{sStg}, v{vWK+3}")
    e(f"v_bfe_u32 v{vWK+5}, v{vLane}, 2, 2")
    e(f"v_mul_u32_u24 v{vWK+5}, {RST}, v{vWK+5}")
    e(f"v_add_u32 v{vWK+5}, v{vWK+5}, v{vWK+3}")
    e(f"v_add_u32 v{vWK+3}, v{vWK+3}, v{vN16}")
    e(f"v_subrev_u32 v{vWK+3}, {ROWS}, v{vWK+3}")
    e("v_lshrrev_b32 v19, 2, v0")
    e(f"v_cmp_gt_u32 s[78:79], s{sNN}, v19")
    e(f"v_mul_u32_u24 v19, {RST}, v19")
    e(f"v_add_u32 v19, {ROWS}, v19")
    e("v_and_b32 v31, 2, v0")
    e("v_lshlrev_b32 v31, 6, v31")
    e(f"v_sub_u32 v31, v{vRow}, v31")
    for x in mads(): e(x)
    e(f"v_add_u32 v{vAqA}, 16, v{vAqA}")
    e(f"s_mov_b32 s{sCnt}, s{sNT}")
    e("s_waitcnt vmcnt(0)")
    pt('f4')
    for x in rd_x(): e(x)
    e(f"s_cmp_eq_u32 s{sNT}, 0")
    e("s_cbranch_scc1 K2_DRAIN")
    ms = mfmas(0); dm = dma()
    e("s_waitcnt lgkmcnt(4)")
    e(ms[0])
    e("s_waitcnt lgkmcnt(0)")
    for k in range(1, 9):
        e(ms[k])
        if k <= 4: e(dm[k-1])
        if k == 5: e(rd_idx()[0])
    e("s_waitcnt lgkmcnt(0)")
    e("s_nop 3")
    if not OPT['tl']: stamp(6)
    if OPT['role']:
        role_loops()
    else:
        e(".p2align 6")
        e("K2_LOOP:")
        loop_body()
    e("K2_DRAIN:")
    e("s_setprio 0")
    for x in rcps(): e(x)
    for x in cmps(): e(x)
    e(f"v_cmp_gt_i32 s[76:77], 0, v{vWK}")
    e(f"v_and_b32 v30, 0x3fffffff, v{vWK}")
    e(f"s_mov_b32 s{sT1}, {ROWS+512}")
    e(f"v_mad_u32_u16 v{vWK+4}, v30, 16, s{sT1} op_sel:[1,0,0,0]")
    e(f"s_lshl_b32 s{sT1}, s{sBig}, 2")
    e(f"v_and_or_b32 v{vWK+4}, v{vLane}, s{sT1}, v{vWK+4}")
    for x in chain(1): e(x)
    for x in mwrites(False): e(x)
    stamp(7)
    c("---- tails ----")
    e(f"s_cmp_eq_u32 s{sBig}, 2")
    e("s_cbranch_scc1 K2_TAILAT")
    c("park the tails in this wave's staging area and leave a pointer in the node's row")
    e(f"s_cmp_eq_u32 s{sBig}, 0")
    e(f"s_cselect_b32 s{sT2}, s{sEps}, 0")
    e("s_waitcnt vmcnt(0)")
    for j in range(4):
        for nt in range(2):
            e(f"v_add_f32 v{acc(nt,j)}, s{sT2 if j%2 else sEps}, v{acc(nt,j)}")
        e(f"ds_write_b128 v{vWK+3}, {vr(vAcc+4*j,4)} offset:{RST*j}")
    e("s_mov_b64 exec, s[76:77]")
    e(f"ds_write_b32 v{vWK+4}, v{vWK+5}")
    e("K2_TAILD:")
    e("s_mov_b64 exec, -1")
    c("---- epilogue ----")
    e(f"s_mov_b32 s{sT2}, 0x100000")
    e(f"v_sub_u32 v13, v{vRow}, v19")
    e("v_sub_u32 v14, v31, v19")
    e(f"s_cmp_eq_u32 s{sMore}, 0")
    e(f"s_cselect_b32 s{sT1}, s{sFirst}, 0")
    e(f"s_cmp_eq_u32 s{sBig}, 1")
    e("s_waitcnt lgkmcnt(0)")
    pt('e1')
    e("s_barrier")
    pt('e2')
    e("s_mov_b64 exec, s[78:79]")
    e("s_cbranch_execz K2_TAIL2D")
    e("ds_read_b64 v[10:11], v19 offset:512")
    for k in range(8):
        e(f"ds_read_b128 {vr(192+4*k,4)}, v{vRow if k<4 else 31} offset:{16*k}")
    e("s_waitcnt lgkmcnt(8)")
    def add_tail(p):
        e(f"v_cmp_gt_u32 vcc, s{sT2}, v{p}")
        e(f"v_add_u32 v12, v13, v{p}")
        e(f"v_add_u32 v15, v14, v{p}")
        e("s_mov_b64 exec, vcc")
        for k in range(8):
            e(f"ds_read_b128 {vr(224+4*k,4)}, v{12 if k<4 else 15} offset:{16*k}")
        for k in range(8):
            e(f"s_waitcnt lgkmcnt({7-k})")
            e(f"v_pk_add_f32 {vr(192+4*k,2)}, {vr(192+4*k,2)}, {vr(224+4*k,2)}")
            e(f"v_pk_add_f32 {vr(194+4*k,2)}, {vr(194+4*k,2)}, {vr(226+4*k,2)}")
        e("s_mov_b64 exec, s[78:79]")
    add_tail(10)
    e("s_cbranch_scc1 K2_TAIL2")
    e("K2_TAIL2D:")
    pt('e4')
    e(f"s_cmp_eq_u32 s{sT1}, 0")
    e("s_cbranch_scc1 K2_SLOWTOT")
    e("K2_FIN:")
    e("s_mov_b64 exec, s[78:79]")
    e("s_cbranch_execz K2_DONE")
    pt('e3')
    for it in range(2):
        for k in range(8):
            e(f"v_rcp_f32 v{192+4*k+2*it}, v{192+4*k+2*it}")
        e("s_nop 0")
        for k in range(8):
            e(f"v_fmac_f32 v{vV+8*it+k}, v{192+4*k+2*it}, v{193+4*k+2*it}")
        for k in range(4):
            e(f"v_cvt_pk_bf16_f32 v{112+4*it+k}, v{vV+8*it+2*k}, v{vV+8*it+2*k+1}")
        c("x + relu(z) = max(x + z, x); bf16 patterns order like f16 patterns")
        for k in range(4):
            e(f"v_pk_max_f16 v{112+4*it+k}, v{112+4*it+k}, v{vXo+4*it+k}")
        e(f"buffer_store_dwordx4 {vr(112+4*it,4)}, v{vOut}, {sr(sOut,4)}, 0 offen offset:{64*it}" + FL[OPT['ost']])
    e("K2_DONE:")
    if OPT['stamp']:
        e("s_mov_b64 exec, -1")
        stamp(8)
        e("s_barrier")
        diag_out(1, 9, sWave, sWs, sNT)
    e("K2_END:")
    e("s_endpgm")
    flush_ool()
    c("---- wave 7, phase 1: ready count, scaled wb / wc rows, run table words ----")
    e("P1_W7A:")
    p1_scan()
    e(f"s_cmp_lt_u32 s3, {NCL}")
    e("s_cbranch_scc0 P1_NOF")
    e(f"s_lshl_b32 s{sT0}, s3, {2 if NCL<=64 else (1 if NCL==128 else 0)}")
    e("v_mov_b32 v76, 1")
    e("s_mov_b64 exec, 1")
    e("s_waitcnt vmcnt(0)")
    if OPT['cat']:
        e(f"buffer_atomic_add v76, v74, {sr(sWc,4)}, s{sT0} offen sc1")
    else:
        e(f"buffer_store_{'dword' if NCL<=64 else ('short' if NCL==128 else 'byte')} v76, v74, {sr(sWc,4)}, s{sT0} offen sc1")
    e("s_mov_b64 exec, -1")
    e("P1_NOF:")
    srd(68, 64, 512)
    e(f"buffer_load_dwordx4 v[224:227], v68, s[68:71], 0 offen")
    side_copies()
    for i in range(4):
        e(f"v_lshl_or_b32 v{244+i}, v{240+i}, 16, v{244+i}")
        e(f"v_or_b32 v{244+i}, 1, v{244+i}")
    e("s_branch P1_J")
    e("P1_W7B:")
    mid(NR)
    scale8(224, 4)
    c("lanes 32..63 hold flag rows (0, R, 0, 0); lanes 0..31 the wc' rows")
    e(f"v_lshrrev_b32 v73, 3, v{vLane}")
    e("v_cmp_eq_u32 vcc, 5, v73")
    e(f"v_mov_b32 v72, {(RFLAG>>16)*0x10001:#x}")
    e(f"v_xor_b32 v73, 512, v68")
    for r in range(4):
        e(f"v_cndmask_b32 v{224+r}, v{224+r}, v72, vcc")
    if OPT['cz']:
        bz = struct.unpack("<I", struct.pack("<f", -2.0 * SC))[0] >> 16
        e("s_bfm_b64 exec, 8, 48")
        for r in range(4):
            e(f"v_mov_b32 v{224+r}, {bz*0x10001:#x}")
        e("s_mov_b64 exec, -1")
    e(f"v_add_u32 v73, {WCT}, v73")
    e("ds_write_b128 v73, v[224:227]")
    c("the whole table must have been cleared before anything is published or trusted")
    e(f"v_and_b32 v74, {min(NCL,64)-1}, v{vLane}")
    e("v_lshlrev_b32 v74, 2, v74")
    e(f"s_mov_b32 s{sCnt}, 0x40000")
    if OPT['ra']: e("s_waitcnt vmcnt(0)")
    e("P1_POLL:")
    e(f"buffer_load_dword v76, v74, {sr(sWc,4)}, 0 offen" + FL[OPT['pl_']])
    e("s_waitcnt vmcnt(0)")
    e(f"v_cmp_ne_u32 vcc, {1 if NCL<=64 else (0x10001 if NCL==128 else 0x01010101)}, v76")
    e(f"s_sub_u32 s{sCnt}, s{sCnt}, 1")
    e("s_cbranch_scc1 K2_END")
    e("s_cmp_eq_u64 vcc, 0")
    e("s_cbranch_scc1 P1_RDY")
    e("s_sleep 8")
    e("s_branch P1_POLL")
    c("---- rare paths ----")
    e("K2_OVF2:")
    e("v_add_u32 v70, 192, v67")
    ovf(70, 192)
    e(f"s_mov_b64 exec, {sr(sMk+18,2)}")
    e(f"buffer_load_dwordx3 v[228:230], v73, {sr(sWs,4)}, s{sCnt} offen sc1")
    e("s_mov_b64 exec, -1")
    e("s_waitcnt vmcnt(0)")
    e("s_branch K2_OVFD")
    e("K2_NEXT:")
    e("v_lshlrev_b32 v64, 2, v0")
    e("v_mov_b32 v66, 0")
    e("s_movk_i32 s42, 132")
    e("v_cmp_gt_u32 vcc, s42, v0")
    e("s_mov_b64 exec, vcc")
    e(f"ds_write_b32 v64, v66 offset:{CNT}")
    e("s_mov_b64 exec, -1")
    e("s_waitcnt lgkmcnt(0)")
    e("s_barrier")
    e("s_branch K2_ROUND")
    e("K2_TAIL2:")
    add_tail(11)
    e("s_branch K2_TAIL2D")
    e("K2_TAILAT:")
    e("s_waitcnt lgkmcnt(0)")
    e("s_barrier")
    for j in range(4):
        for y in expand(j, 76): e(y)
        for i in range(4):
            e(f"ds_add_f32 v{RP[j]}, v{vAcc+4*j+i} offset:{4*i}")
    e("s_branch K2_TAILD")
    e("K2_FAIL:")
    e(f"s_movk_i32 s{sLW}, 144")
    e("s_waitcnt vmcnt(0) lgkmcnt(0)")
    e("s_barrier")
    e("s_branch K2_NEXT")
    e("K2_SLOWTOT:")
    e("s_mov_b64 exec, -1")
    e("v_lshlrev_b32 v14, 7, v0")
    e(f"s_lshl_b32 s{sT1}, s2, 16")
    e(f"s_add_u32 s{sT1}, s{sT1}, {WS_TOT}")
    e("s_waitcnt lgkmcnt(0)")
    e(f"s_cmp_lg_u32 s{sFirst}, 0")
    e("s_cbranch_scc1 K2_ST1")
    for r in range(8):
        e(f"buffer_load_dwordx4 {vr(224+4*r,4)}, v14, {sr(sWs,4)}, s{sT1} offen offset:{16*r} sc1")
    e("s_waitcnt vmcnt(0)")
    for r in range(32):
        e(f"v_add_f32 v{192+r}, v{192+r}, v{224+r}")
    e(f"s_cmp_eq_u32 s{sMore}, 0")
    e("s_cbranch_scc1 K2_FIN")
    e("K2_ST1:")
    for r in range(8):
        e(f"buffer_store_dwordx4 {vr(192+4*r,4)}, v14, {sr(sWs,4)}, s{sT1} offen offset:{16*r} sc1")
    e(f"s_mov_b32 s{sFirst}, 0")
    e(f"s_add_u32 s{sJ0}, s{sJ0}, s{sLW}")
    e("s_waitcnt vmcnt(0)")
    e("s_barrier")
    e("s_branch K2_NEXT")

def hi_pure(nt, prio, first=(), after=0, wait=False):
    e(f"s_setprio {prio}")
    ms = mfmas(1 - nt); av = list(first) + avals(nt)
    tr = rcps() + exps(nt)
    per = (3, 3, 3, 3, 3, 3, 2, 2, 2); fl = [0, 0, 0, 0, 0, 0, 2, 2, 2]
    if wait:
        tr = exps(nt)[:4] + rcps() + exps(nt)[4:]
        av = avals(nt)[:1] + list(first) + avals(nt)[1:]
        per = (3, 3, 2, 3, 3, 3, 3, 2, 2); fl = [0, 0, 1, 0, 0, 0, 0, 2, 2]
    t = 0; f = 0
    for g in range(9):
        if wait and g == 3: e("s_waitcnt lgkmcnt(0)")
        e(ms[g])
        seq = [tr[t + i] for i in range(per[g])]; t += per[g]
        fs = [av[f + i] for i in range(fl[g])]; f += fl[g]
        while seq or fs:
            if seq: e(seq.pop(0))
            if fs: e(fs.pop(0))
    e(f"s_setprio {after}")
    assert f >= len(first)
    return av[f:]

def lo_part(nt, rest, adds):
    for y in list(rest) + chain(1 - nt) + list(adds) + frac(nt): e(y)

sEr = 42
sEps = 80
sWm = 68
sDum = 43
def cmps(): return [f"v_cmp_gt_u32 {sr(sWm,2)}, s{sDum}, v{vWK}"]
WL = [0]
RP = [65, 66, 70, 71]
def expand(j, sm):
    return [f"s_bfe_i32 exec_lo, s{sm}, {0x10000+4*j:#x}", f"s_bfe_i32 exec_hi, s{sm+1}, {0x10000+4*j:#x}"]
OOL = []
def flush_ool():
    for y in OOL: e(y)
    OOL.clear()
def mwrites(zero=True):
    WL[0] += 1; end = f"KE{WL[0]}"
    o = [f"s_or_b32 s{sWm+2}, s{sWm}, s{sWm+1}", f"s_cbranch_scc0 {end}"]
    for j in range(4):
        WL[0] += 1
        o += [f"s_bitcmp0_b32 s{sWm+2}, {4*j}", f"s_cbranch_scc1 KW{WL[0]}"] + expand(j, sWm) + [
              f"ds_write_b128 v{RP[j]}, {vr(vAcc+4*j,4)}"]
        if zero: o += [f"ds_read_b128 {vr(vAcc+4*j,4)}, v{vZa}", f"v_add_u32 v{RP[j]}, {RST}, v{RP[j]}"]
        o += [f"KW{WL[0]}:"]
    return o + ["s_mov_b64 exec, -1", f"{end}:"]

TL = [0]
def tl():
    if OPT['tl']:
        e(f"s_memtime {sr(44+2*TL[0],2)}"); TL[0] += 1
def tl_dump(lab):
    if not OPT['tl']: return
    n = TL[0]; TL[0] = 0
    e(f"s_cmp_lg_u32 s{sCnt}, {OPT['tl']}")
    e(f"s_cbranch_scc1 {lab}")
    e("s_waitcnt lgkmcnt(0)")
    for i in range(n):
        e(f"s_mov_b32 s{sSt+2+2*i}, s{44+2*i}")
    e(f"{lab}:")
def hi_last(prio, first, after):
    e(f"s_setprio {prio}")
    for y in rcps() + list(first) + exps(1): e(y)
    e(f"s_setprio {after}")
    return avals(1)

def role_loops():
    adds = [f"v_add_u32 v{vIxA}, 16, v{vIxA}", f"v_add_u32 v{vAqA}, 16, v{vAqA}", f"v_add_u32 v{vQaA}, 4, v{vQaA}"]
    cm = cmps()
    e(f"s_mov_b64 {sr(sWm,2)}, 0")
    e(f"s_cmp_ge_u32 s{sWave}, 4")
    e("s_cbranch_scc1 KB_LOOP")
    e("s_branch KA_ENTRY")
    e(".p2align 6")
    e("KA_LOOP:")
    tail = (cm + avals(1))[6:]
    e("s_waitcnt lgkmcnt(0)")
    lo_part(1, tail, adds)
    e("KA_ENTRY:")
    tl()
    r = hi_pure(0, OPT['pa'], mads() + [AEV, AQV])
    tl()
    if not OPT['xv'] & 2: e("s_waitcnt vmcnt(0)")
    for y in rd_x() + rd_aq() + rd_bq(0) + rd_bq(1): e(y)
    e(f"s_sub_u32 s{sCnt}, s{sCnt}, 1")
    e(f"s_cmp_eq_u32 s{sCnt}, 0")
    e("s_waitcnt lgkmcnt(4)")
    for y in dma(): e(y)
    e("s_waitcnt lgkmcnt(0)")
    tl()
    lo_part(0, r, [])
    e("s_cbranch_scc1 KA_LAST")
    tl()
    hi_pure(1, OPT['pa'], cm, OPT['pa'])
    L.pop()
    tl()
    for y in mwrites() + ["s_setprio 0"] + rd_wk() + rd_qa(4) + rd_idx(16) + rd_mr(16): e(y)
    tl()
    tl_dump("KA_TL")
    if OPT['trace']: trace_code()
    e("s_branch KA_LOOP")
    flush_ool()
    e("KA_LAST:")
    r = hi_last(OPT['pa'], cm, OPT['pa'])
    for y in mwrites() + ["s_setprio 0"] + rd_wk(): e(y)
    e("s_waitcnt lgkmcnt(0)")
    lo_part(1, r, [])
    e("s_branch K2_DRAIN")
    flush_ool()
    e(".p2align 6")
    e("KB_LOOP:")
    tl()
    r = hi_pure(0, OPT['pb'], mads() + [AEV, AQV], OPT['pl'])
    tl()
    lo_part(0, r, [])
    tl()
    if OPT['fo'] == 2:
        for y in mwrites() + rd_wk(): e(y)
        e(f"s_sub_u32 s{sCnt}, s{sCnt}, 1")
        e(f"s_cmp_eq_u32 s{sCnt}, 0")
        e("s_cbranch_scc1 KB_LAST")
        for y in rd_aq() + rd_bq(0): e(y)
        if not OPT['xv'] & 1: e("s_waitcnt vmcnt(0)")
        for y in rd_x(): e(y)
        e("s_waitcnt lgkmcnt(3)")
        tl()
        r = hi_pure(1, OPT['pb'], cm, OPT['pl'], True)
    else:
        e("s_waitcnt vmcnt(0)")
    if OPT['fo'] == 2:
        pass
    elif OPT['fo']:
        for y in rd_x() + rd_aq() + rd_bq(0): e(y)
        e(f"s_sub_u32 s{sCnt}, s{sCnt}, 1")
        e("s_waitcnt lgkmcnt(0)")
        if OPT['bd'] == 0:
            for y in dma(): e(y)
        for y in mwrites() + rd_wk(): e(y)
        e(f"s_cmp_eq_u32 s{sCnt}, 0")
        e("s_cbranch_scc1 KB_LAST")
        tl()
        r = hi_pure(1, OPT['pb'], ["s_waitcnt lgkmcnt(0)"] + cm, OPT['pl'])
    else:
        for y in rd_x() + rd_aq() + rd_bq(0) + mwrites() + rd_wk(): e(y)
        e(f"s_sub_u32 s{sCnt}, s{sCnt}, 1")
        e(f"s_cmp_eq_u32 s{sCnt}, 0")
        e("s_cbranch_scc1 KB_LAST")
        e("s_waitcnt lgkmcnt(0)")
        tl()
        r = hi_pure(1, OPT['pb'], cm, OPT['pl'])
    tl()
    lo_part(1, r, adds)
    tl()
    for y in (dma() if OPT['bd'] else []) + rd_bq(1) + rd_qa() + rd_mr(0) + rd_idx(): e(y)
    tl_dump("KB_TL")
    if OPT['trace']: trace_code()
    e("s_waitcnt lgkmcnt(0)")
    e("s_branch KB_LOOP")
    flush_ool()
    e("KB_LAST:")
    r = hi_last(OPT['pb'], [], OPT['pl'])
    e("s_waitcnt lgkmcnt(0)")
    lo_part(1, r, [])

def trace_code():
    e("s_memtime s[44:45]")
    e("s_memrealtime s[46:47]")
    e(f"s_lshl_b32 s48, s2, 3")
    e(f"s_add_u32 s48, s48, s{sWave}")
    e(f"s_lshl_b32 s48, s48, 4")
    e(f"s_add_u32 s48, s48, s{sCnt}")
    e(f"s_lshl_b32 s48, s48, 3")
    e(f"s_add_u32 s48, s48, {WS_DIAG+0x80000}")
    e("s_waitcnt lgkmcnt(0)")
    e("v_mov_b32 v30, s44")
    e("v_mov_b32 v68, 0")
    e("s_mov_b64 exec, 1")
    e(f"buffer_store_dword v30, v68, {sr(sWs,4)}, s48 offen")
    e("s_mov_b64 exec, -1")

def loop_body():
    global L
    n0 = len(L)
    loop_body0()
    k = OPT['kill']
    body = L[n0:]; del L[n0:]
    for l in body:
        t = l.strip()
        if k & 1 and t.startswith('ds_read'): continue
        if k & 2 and t.startswith('ds_write'): continue
        if k & 4 and t.startswith('buffer_load'): continue
        if k & 8 and t.startswith('s_waitcnt') and not OPT['trace']: continue
        if k & 16 and t.startswith('v_add_u32'): continue
        if k & 32 and t.startswith('v_fmaak'): l = l.replace('v_fmaak_f32','v_mul_f32').rsplit(',',1)[0]
        if k & 64 and t.startswith('v_fma_f32'): l = l.replace('v_fma_f32','v_mul_f32').rsplit(',',1)[0]
        if k & 128 and t.startswith('v_and_b32'): continue
        L.append(l)
def loop_body0():
    e("s_setprio 1")
    ex = [[] for _ in range(9)]
    x = rd_x(); md = mads()
    ex[0] = rd_aq() + rd_bq(0)
    ex[1] = rd_bq(1) + ["s_waitcnt vmcnt(0)"]
    ex[2] = [x[0]]
    ex[4] = [x[1]]
    ex[5] = md[:2]
    ex[6] = [x[2]]
    ex[7] = md[2:]
    ex[8] = [x[3]]
    hi_phase(mfmas(1), rcps() + exps(0), ex)
    e("s_setprio 0")
    for y in mix(chain(1), avals(0)): e(y)
    e(f"v_add_u32 v{vIxA}, 64, v{vIxA}")
    e(f"v_add_u32 v{vAqA}, v{vAqA}, v{vAqI}")
    for y in frac(0): e(y)
    e("s_setprio 1")
    e("s_waitcnt lgkmcnt(0)")
    ex = [[] for _ in range(9)]
    w = writes(); d = dma(); wk = rd_wk()
    ex[0] = [d[0], w[0]]; ex[1] = [d[1], w[1]]; ex[2] = [d[2], w[2]]
    ex[4] = [d[3], w[3]]; ex[5] = wk; ex[7] = rd_qa() + [f"s_sub_u32 s{sCnt}, s{sCnt}, 1"]; ex[8] = rd_idx()
    hi_phase(mfmas(0), rcps() + exps(1), ex)
    e("s_setprio 0")
    av = avals(1)
    for y in av[:8]: e(y)
    e("s_waitcnt lgkmcnt(0)")
    for y in mix(chain(0), av[8:]): e(y)
    for j in range(4):
        e(f"v_add_u32 v{vWK+2*j}, v{vWK+2*j}, v{vN16}")
    e(f"v_add_u32 v{vWkA}, 32, v{vWkA}")
    e(f"v_add_u32 v{vQaV}, v{vQaV}, v{vQaC}")
    e(f"v_add_u32 v{vQaA}, 16, v{vQaA}")
    for y in frac(1): e(y)
    if OPT['trace']: trace_code()
    e(f"s_cmp_lg_u32 s{sCnt}, 0")
    e("s_cbranch_scc1 K2_LOOP")

def kd(name, vg, sg):
    L.extend([f".amdhsa_kernel {name}",
              f"  .amdhsa_next_free_vgpr {vg}",
              f"  .amdhsa_next_free_sgpr {sg}",
              f"  .amdhsa_accum_offset {(vg+3)//4*4}",
              "  .amdhsa_group_segment_fixed_size 0",
              "  .amdhsa_kernarg_size 96",
              "  .amdhsa_user_sgpr_count 2",
              "  .amdhsa_user_sgpr_kernarg_segment_ptr 1",
              "  .amdhsa_system_sgpr_workgroup_id_x 1",
              ".end_amdhsa_kernel"])

hdr = open("cdna_kernels/%s.s.ref" % NAME).read().split("\n")
for l in hdr:
    if l.startswith("; Override") : break
    L.append(l)
if OPT['lst']:
    L.append(f"; @launch kernel={NAME}_kernel grid=(256,1,1) block=(512,1,1) lds={K2_LDS}")
else:
    L.append(f"; @launch grid=(256,1,1) block=(512,1,1) lds={K2_LDS}")
L.append('.amdgcn_target "amdgcn-amd-amdhsa--gfx950"')
L.append(".text")
L.append(f".globl {NAME}_kernel")
L.append(f".type {NAME}_kernel,@function")
sSt = 82
for i, n in enumerate(OPT.get('pts', 'b2,b3,b4,go,hist').split(',')): PTS[n] = i + 1
k2()
L.append("K2_CODE_END:")
L.append('.section .rodata,"a"')
L.append(".p2align 6")
kd(f"{NAME}_kernel", 256, 102)
open(sys.argv[1], "w").write("\n".join(L) + "\n")
print("K2_LDS", K2_LDS, "ATAB", ATAB, "STG", STG, "ROWS", ROWS)
```

```python
import sys, struct

NAME = "standalone__edge_featured_mpnn_gatedgcn__graph"
OPT = dict(stamp=0, trace=0, stf=1, ldf=3, sched=0, remap=1, nodefirst=0, kill=0, pf=1, h1=4, dbg=0, alt=0, alt2=0, slp=10, rt=0, ost=1, role=1, fill=14, pa=2, pb=1, pl=3, wf=1, tl=0, mw=1, bt=-1, fb=0, peel=1, pf7=0, pfa=0, pfb=16, skp=2, dl=1, qu=3, lat=0, tlb=0, tw=0, rs=1, rl=1, pl_=1, ps=1, ncl=64, cat=0, wofs=0, bal=4, sp=0, ra=0, cz=1, co=0, cpf=0, em=1, bo=0, prog=1, bw=1, b64=0, wsk=1, wa=1, bd=1, fo=2, tr=1, xf=0, xv=0, lc=1, hold=0, th=0, eb=0, lst=0)
for a in sys.argv[2:]:
    k, v = a.split('=')
    OPT[k] = int(v) if k != 'pts' else v

L = []
def e(s=""): L.append("    " + s if s and not s.endswith(":") else s)
def c(s): L.append("    ; " + s)
def f32(x): return "0x%08x" % struct.unpack("<I", struct.pack("<f", x))[0]
def vr(a, n): return f"v[{a}:{a+n-1}]"
def sr(a, n): return f"s[{a}:{a+n-1}]"
FL = ["", " sc1", " sc0 sc1", " nt", " sc1 nt", " sc0 sc1 nt"]

N = 25000; E = 800000
CH = 3136
CHB = CH * 12
BM = 171799
BK = 6399988
WS_T = 0
WS_IMG = 0x40000
WS_REC = 0x80000 + OPT['wofs'] * 0x100000
WS_AU = 0xA00000
WS_TOT = 0x1100000
WS_DIAG = 0x2F00000
WS_SIZE = 0x10000000
LOG2E = 1.4426950408889634
NODE_WGS = 196
RFLAG = 0x21800000
sSt = 82

def srd(d, b, size, stride=0):
    e(f"s_mov_b32 s{d}, s{b}")
    e(f"s_and_b32 s{d+1}, s{b+1}, 0xffff")
    if stride:
        e(f"s_or_b32 s{d+1}, s{d+1}, {stride<<16:#x}")
    e(f"s_mov_b32 s{d+2}, {size}")
    e(f"s_mov_b32 s{d+3}, 0x20000")

def scan64(v):
    for m in ("row_shr:1 row_mask:0xf", "row_shr:2 row_mask:0xf", "row_shr:4 row_mask:0xf",
              "row_shr:8 row_mask:0xf", "row_bcast:15 row_mask:0xa", "row_bcast:31 row_mask:0xc"):
        e("s_nop 1")
        e(f"v_add_u32_dpp v{v}, v{v}, v{v} {m} bank_mask:0xf")

PTS = {}
def pt(name):
    if name in PTS: stamp(PTS[name])
def stamp(i):
    if OPT['stamp']:
        e(f"{'s_memrealtime' if OPT['rt'] else 's_memtime'} {sr(sSt+2*i,2)}")
        if i == 0:
            e(f"s_memrealtime {sr(sSt+18,2)}")
def diag_out(kidx, nst, swave, ssrd, extra=None, vt=8):
    if OPT['dbg']:
        e("s_memrealtime s[42:43]")
        e("s_load_dwordx2 s[44:45], s[0:1], 80")
        e("s_waitcnt lgkmcnt(0)")
        e(f"s_cmp_lg_u32 s2, {OPT['dbg']}")
        e(f"s_cbranch_scc1 K{kidx+1}_END")
        e(f"s_cmp_lg_u32 s{swave}, 5")
        e(f"s_cbranch_scc1 K{kidx+1}_END")
        e(f"s_add_u32 s44, s44, {512*(1-kidx)}")
        e("s_addc_u32 s45, s45, 0")
        srd(48, 44, 64)
        e(f"v_mov_b32 v{vt}, 0")
        e("s_mov_b64 exec, 1")
        sel = [(2,3,5,6,8),(1,2,4,5,6,7,8)][kidx]
        o = [0, 7][kidx]
        e(f"v_mov_b32 v{vt+1}, s{sSt+18}")
        e(f"buffer_store_dword v{vt+1}, v{vt}, s[48:51], 0 offen offset:{4*o}")
        for n, i in enumerate(sel):
            e(f"s_sub_u32 s40, s{sSt+2*i}, s{sSt}")
            e(f"v_mov_b32 v{vt+1}, s40")
            e(f"buffer_store_dword v{vt+1}, v{vt}, s[48:51], 0 offen offset:{4*(o+1+n)}")
        e(f"v_mov_b32 v{vt+1}, s42")
        e(f"buffer_store_dword v{vt+1}, v{vt}, s[48:51], 0 offen offset:{4*(o+1+len(sel))}")
        return
    e("s_memrealtime s[42:43]")
    e("s_waitcnt lgkmcnt(0)")
    e(f"s_lshl_b32 s39, s2, 4")
    e(f"s_add_u32 s39, s39, s{swave}")
    e(f"s_lshl_b32 s39, s39, 6")
    e(f"s_add_u32 s39, s39, {WS_DIAG + kidx*0x40000}")
    e(f"v_mov_b32 v{vt}, 0")
    e("s_mov_b64 exec, 1")
    for i in range(1, nst):
        e(f"s_sub_u32 s40, s{sSt+2*i}, {'0' if OPT['rt']==2 or OPT['tl'] else 's%d' % sSt}")
        e(f"v_mov_b32 v{vt+1}, s40")
        e(f"buffer_store_dword v{vt+1}, v{vt}, {sr(ssrd,4)}, s39 offen offset:{4*(i-1)}")
    if extra is not None:
        e(f"v_mov_b32 v{vt+1}, s{extra}")
        e(f"buffer_store_dword v{vt+1}, v{vt}, {sr(ssrd,4)}, s39 offen offset:48")
    e("s_getreg_b32 s40, hwreg(HW_REG_HW_ID)")
    e(f"v_mov_b32 v{vt+1}, s40")
    e(f"buffer_store_dword v{vt+1}, v{vt}, {sr(ssrd,4)}, s39 offen offset:52")
    e(f"v_mov_b32 v{vt+1}, s{sSt+18}")
    e(f"buffer_store_dword v{vt+1}, v{vt}, {sr(ssrd,4)}, s39 offen offset:56")
    e(f"v_mov_b32 v{vt+1}, s42")
    e(f"buffer_store_dword v{vt+1}, v{vt}, {sr(ssrd,4)}, s39 offen offset:60")

def mfma(d, a, b, cc):
    cs = "0" if cc is None else vr(cc, 16)
    return f"v_mfma_f32_32x32x16_bf16 {vr(d,16)}, {vr(a,4)}, {vr(b,4)}, {cs}"

CAP = 3584
CNT = 0
MORE = 512
ZERO = 1056
BI = 528
M4 = 1280
QA = M4 + CAP * 4 + 64
AST = 136
RST = 528
ATAB = QA + (CAP // 4) * 4 + 64
ER = (ATAB + 98 * AST + 15) // 16 * 16
STG = (ER + 40960 + 255) // 256 * 256
SST = 4352
ROWS = STG + 8 * SST
EPSR = ROWS + 98 * RST
K2_LDS = EPSR + 512
WRAW = STG
XOWN = ROWS
WCT = ROWS + 16384
P_HIST = (WCT + 1024 + 1023) // 1024 * 1024
P_BASE = P_HIST + 1024
UTMP = P_BASE + 1024
P_STG = ER
NONLAST = 0x80000000; NOROW = 0x40000000
assert CHB <= 40960 and UTMP + 112 * 256 <= K2_LDS
assert ATAB % 8 == 0 and K2_LDS <= 160 * 1024 and ATAB < 65536, (K2_LDS, ATAB)
SC = 24
PADV = 0x7F007F00
RFLAG = 0x21800000

vW = 128; vD = [192, 224]; vX = 112; vBq = [104, 108]; vAq = 100; vAcc = 84
vS = 72; vN = 76; vP = 80; vWK = 64; vIdx = 56; vC = 40; vXo = 32; vV = 40; vRow = 28; vOut = 29; vTl = 30; vXa = 20
vLane = 1; vAqA = 2; vEa = 3; vIxA = 4; vQaA = 5; vQaV = 6; vQaC = 7
vZa = 16; vN16 = 17; vC1 = 18; vTail = 19
vTe = 8
sX = 4; sXr = 8; sWs = 12; sOut = 16; sWc = 20
sBase = 24; sNN = 25; sWave = 26; sJ0 = 27; sLW = 28; sFirst = 29; s128 = 30; sQt = 31; sTt = 32
sNT = 33; sQw = 34; sStg = 35; sMore = 36; sBig = 37; sCnt = 38; sT0 = 39; sT1 = 40; sT2 = 41
sMk = 44

def G(b): return vD[b]
def H(b): return vD[b] + 16
def Wg(nt, s): return vW + (nt * 4 + s) * 4
def Wh(nt, s): return vW + 32 + (nt * 4 + s) * 4
def mfmas(nt):
    g = G(nt); h = H(nt)
    first = [mfma(g, vAq, vBq[nt], None if OPT['cz'] else vC)]
    gs = [mfma(g, vX+4*k, Wg(nt,k), g) for k in range(4)]
    hs = [mfma(h, vX+4*k, Wh(nt,k), h if k else None) for k in range(4)]
    if OPT['co']: return first + gs + hs
    return first + [x for p in zip(hs, gs) for x in p]
def acc(nt, j): return vAcc + j * 4 + nt * 2
SS = [72, 73, 74, 75, 8, 9, 10, 11]; NN = [76, 77, 78, 79, 12, 13, 14, 15]; PP = [81, 82, 83, 80, 25, 26, 27, 24]
def chain(nt):
    o = []
    for hq in (0, 4):
        for j in range(4):
            a = acc(nt, j); q = hq + j
            o += [f"v_fmac_f32 v{a}, v{SS[q]}, v{PP[q]}", f"v_fmac_f32 v{a+1}, v{NN[q]}, v{PP[q]}"]
    return o
def avals(nt):
    g = G(nt)
    return [f"v_add_f32 v{g+r}, v{g+r}, v{vC1}" for r in range(16)]
def frac(nt):
    g = G(nt); h = H(nt); o = []
    R = range(8); f = lambda q: 4 * (q % 4) + 2 * (q // 4)
    o += [f"v_mul_f32 v{NN[q]}, v{h+f(q)}, v{g+f(q)+1}" for q in R]
    o += [f"v_add_f32 v{SS[q]}, v{g+f(q)}, v{g+f(q)+1}" for q in R]
    o += [f"v_mul_f32 v{PP[q]}, v{g+f(q)}, v{g+f(q)+1}" for q in R]
    o += [f"v_fmac_f32 v{NN[q]}, v{h+f(q)+1}, v{g+f(q)}" for q in R]
    return o
def mix(a, b):
    o = []; a = list(a); b = list(b)
    while a or b:
        if a: o += a[:2]; a = a[2:]
        if b: o += b[:2]; b = b[2:]
    return o
def exps(nt): return [f"v_exp_f32_e64 v{G(nt)+r}, v{G(nt)+r} clamp" for r in range(16)]
def rcps(): return [f"v_rcp_f32 v{p}, v{p}" for p in PP]
def rd_x(): return [f"ds_read_b128 {vr(vX+4*s,4)}, v{vXa+s}" for s in range(4)]
def rd_aq():
    return [f"ds_read_b32 v{vAq}, v{vAqA} offset:{M4}", "s_mov_b32 exec_lo, 0", f"ds_read_b64 {vr(vAq,2)}, v{vEa}", "s_mov_b32 exec_lo, -1"]
def rd_mr(ahead): return [f"ds_read_u16 v{vEa}, v{vAqA} offset:{M4+2+ahead}"]
AEV = f"v_lshl_add_u32 v{vEa}, v{vEa}, 3, s42"
def rd_idx(o=0): return [f"ds_read_b128 {vr(vIdx,4)}, v{vIxA} offset:{M4+o}"]
def mads(): return [f"v_mad_u32_u16 v{vIdx+i}, v{vIdx+i}, s{s128}, v{vIdx+4+i}" for i in range(4)]
def rd_qa(o=0): return [f"ds_read_u16 v{vQaV}, v{vQaA} offset:{QA+o}"]
AQV = f"v_add_u32 v{vQaV}, v{vQaV}, v{vQaC}"
def rd_bq(nt): return [f"ds_read_b64_tr_b16 {vr(vBq[nt]+2,2)}, v{vQaV} offset:{ATAB+64*nt}"]
def rd_wk(): return [f"ds_read_b32 v{vWK}, v{vQaA} offset:{QA-4}"]
def dma(): return [f"buffer_load_dwordx4 v{vIdx+i}, {sr(sX,4)}, 0 offen offset:{1024*i} lds" for i in range(4)]

def hi_phase(ms, trans, extras, per=(2, 2, 2, 3, 2, 2, 3, 2, 2)):
    t = 0
    for g in range(9):
        e(ms[g])
        for _ in range(per[g]):
            e(trans[t]); t += 1
        for x in extras[g]:
            e(x)
    assert t == 20

def side_consts():
    c("copy source addresses: v82 weights, v78/v79 own x rows")
    e(f"v_lshrrev_b32 v81, 5, v{vLane}")
    e(f"v_and_b32 v77, 7, v{vLane}")
    e("v_lshlrev_b32 v78, 2, v81")
    e("v_xor_b32 v77, v77, v78")
    e(f"v_and_b32 v82, 16, v{vLane}")
    e("v_lshlrev_b32 v82, 2, v82")
    e("v_xor_b32 v82, v68, v82")

def lane_consts():
    c("---- lane constants ----")
    e(f"v_and_b32 v67, 31, v{vLane}")
    e(f"v_bfe_u32 v70, v{vLane}, 2, 1")
    e(f"v_bfe_u32 v71, v{vLane}, 3, 2")
    e("v_and_b32 v72, 1, v71")
    e("v_lshlrev_b32 v72, 4, v72")
    e("v_mov_b32 v73, 0x3f80")
    e("v_cmp_eq_u32 vcc, v70, v81")
    e("v_lshlrev_b32 v72, v72, v73")
    e("v_cmp_gt_u32 s[42:43], 2, v71")
    e("v_cndmask_b32 v72, 0, v72, vcc")
    e(f"v_and_b32 v73, 3, v{vLane}")
    e(f"v_cndmask_b32 v{vAq+2}, 0, v72, s[42:43]")
    e(f"v_cndmask_b32 v{vAq+3}, v72, 0, s[42:43]")
    e(f"v_mov_b32 v{vAq+1}, 0x3f80")
    for i in range(4):
        e(f"v_xor_b32 v74, {i}, v77")
        e(f"v_lshlrev_b32 v74, 4, v74")
        e(f"v_add_u32 v{vIdx+4+i}, {3072-1024*i}, v74")
    e(f"v_bfe_u32 v74, v{vLane}, 2, 3")
    e(f"v_bfe_u32 v75, v{vLane}, 4, 1")
    e("v_lshl_add_u32 v72, v75, 2, v73")
    e("v_lshlrev_b32 v76, 10, v73")
    e("v_lshl_add_u32 v76, v74, 7, v76")
    e(f"v_add_u32 v76, s{sStg}, v76")
    e("v_xor_b32 v72, v72, v81")
    for s_ in range(4):
        e(f"v_xor_b32 v74, {2*s_}, v72")
        e(f"v_lshl_add_u32 v{vXa+s_}, v74, 4, v76")
    e(f"v_lshlrev_b32 v{vN16}, 2, v75")
    e(f"v_xor_b32 v{vN16}, v{vN16}, v67")
    e(f"v_lshlrev_b32 v{vN16}, 4, v{vN16}")
    e(f"v_add_u32 v{vN16}, {ROWS}, v{vN16}")
    e(f"v_mov_b32 v{vC1}, {f32(2.0**(-2*SC))}")
    e(f"v_mov_b32 v{vZa}, {ZERO}")
    e("v_lshlrev_b32 v73, 3, v73")
    e(f"v_lshl_add_u32 v{vQaC}, v75, 5, v73")
    c("setup addresses: v8 A table write, v9/v10/v11 transposed reads, v12 wc, v24..27 own x")
    e(f"s_and_b32 s{sT2}, s{sWave}, 1")
    e(f"s_lshr_b32 s{sT0}, s{sWave}, 1")
    e(f"s_lshl_b32 s{sT1}, s{sT0}, 5")
    e(f"v_add_u32 v8, s{sT1}, v67")
    e(f"v_cmp_gt_u32 {sr(sMore,2)}, s{sNN}, v8")
    e(f"v_mul_u32_u24 v8, {AST}, v8")
    e("v_lshl_add_u32 v8, v81, 3, v8")
    e(f"s_lshl_b32 s{sT2}, s{sT2}, 6")
    e(f"v_add_u32 v8, s{sT2}, v8")
    e(f"v_bfe_u32 v71, v{vLane}, 2, 2")
    e("v_lshl_add_u32 v12, v81, 2, v71")
    e(f"v_lshl_add_u32 v12, v12, 7, v{vQaC}")
    e(f"v_add_u32 v12, {WCT}, v12")
    e("v_lshl_add_u32 v9, v81, 3, v71")
    e(f"v_lshl_add_u32 v9, v9, 7, v{vQaC}")
    e(f"v_bfe_u32 v71, v{vLane}, 3, 1")
    e("v_lshl_add_u32 v9, v71, 6, v9")
    e(f"v_add_u32 v9, {WRAW}, v9")
    e("v_xor_b32 v10, 64, v9")
    e(f"v_xor_b32 v11, s{sT2}, v9")
    e(f"s_mul_i32 s{sQw}, s{sWave}, 5120")
    e(f"s_add_u32 s{sQw}, s{sQw}, {(ER+255)//256*256}")
    e(f"s_sub_u32 s{sT0}, s{sQw}, s{sStg}")
    for s_ in range(4):
        e(f"v_add_u32 v{24+s_}, s{sT0}, v{vXa+s_}")
    e(f"s_add_u32 s{sT1}, s{sT1}, s{sBase}")
    e(f"v_lshrrev_b32 v71, 3, v{vLane}")
    e(f"v_lshl_add_u32 v{vIdx}, v71, 2, s{sT1}")
    for i in range(1, 4):
        e(f"v_add_u32 v{vIdx+i}, {i}, v{vIdx}")
    for x in mads(): e(x)

def prefetch_all(lanes, first_line, vt):
    if not lanes: return
    e(f"s_and_b32 s{sT2}, s2, 31")
    e(f"s_mul_i32 s{sT2}, s{sT2}, 782")
    e(f"s_mul_i32 s{sT1}, s{sWave}, {lanes}")
    e(f"s_add_u32 s{sT2}, s{sT2}, s{sT1}")
    e(f"s_add_u32 s{sT2}, s{sT2}, {first_line}")
    e(f"s_lshl_b32 s{sT2}, s{sT2}, 7")
    e(f"v_lshlrev_b32 v{vt}, 7, v{vLane}")
    e(f"s_mov_b64 exec, {(1<<lanes)-1 if lanes<64 else -1}" if lanes<=32 or lanes==64 else f"s_bfm_b64 exec, {lanes}, 0")
    e(f"buffer_load_dword v{vt}, v{vt}, {sr(sXr,4)}, s{sT2} offen")
    e("s_mov_b64 exec, -1")

def scale8(first, n):
    for r in range(n):
        e(f"v_lshlrev_b32 v72, 16, v{first+r}")
        e(f"v_and_b32 v73, 0xffff0000, v{first+r}")
        e(f"v_mul_f32 v72, v74, v72")
        e(f"v_mul_f32 v73, v74, v73")
        e(f"v_cvt_pk_bf16_f32 v{first+r}, v72, v73")

def k2():
    st = FL[OPT['stf']]; ld = FL[OPT['ldf']]
    sP = 3
    e(".p2align 8")
    e(f"{NAME}_kernel:")
    e("s_cmp_ge_u32 s2, 256")
    e("s_cbranch_scc1 K2_END")
    stamp(0)
    e("s_load_dwordx8 s[44:51], s[0:1], 0")
    e("s_load_dwordx8 s[52:59], s[0:1], 64")
    e("s_load_dwordx8 s[60:67], s[0:1], 32")
    e(f"s_mov_b32 s{sP}, s2")
    if OPT['cpf']:
        c("pull the code into the L2 (one dword per 128-byte line, threads 0..CODE/128)")
        e("s_getpc_b64 s[68:69]")
        e("v_lshlrev_b32 v250, 7, v0")
        e("v_mov_b32 v251, s69")
        e(f"s_movk_i32 s70, {OPT['cpf']}")
        e("v_cmp_gt_u32 s[72:73], s70, v0")
        e("v_add_co_u32 v250, vcc, s68, v250")
        e("s_nop 1")
        e("v_addc_co_u32 v251, vcc, 0, v251, vcc")
        e("s_mov_b64 exec, s[72:73]")
        e("s_cbranch_execz K2_NOPF")
        e("global_load_dword v252, v[250:251], off")
        e("K2_NOPF:")
        e("s_mov_b64 exec, -1")
    e(f"s_and_b32 s{sT0}, s2, 7")
    e("s_lshr_b32 s2, s2, 3")
    e(f"s_lshl_b32 s{sT0}, s{sT0}, 5")
    e(f"s_or_b32 s2, s2, s{sT0}")
    e(f"v_and_b32 v{vLane}, 63, v0")
    e("v_lshrrev_b32 v2, 6, v0")
    e(f"s_mul_i32 s{sT0}, s{sP}, {CH*4}")
    e(f"v_readfirstlane_b32 s{sWave}, v2")
    e(f"v_lshl_add_u32 v64, v0, 4, s{sT0}")
    e(f"v_add_u32 v65, 7168, v64")
    e("v_lshlrev_b32 v66, 1, v64")
    e("v_lshlrev_b32 v67, 1, v65")
    e(f"s_mov_b32 s{sT1}, {E*4}")
    e("s_movk_i32 s42, 336")
    e(f"v_cmp_gt_u32 s[76:77], s{sT1}, v64")
    e(f"v_cmp_gt_u32 s[78:79], s{sT1}, v65")
    e("v_cmp_gt_u32 vcc, s42, v0")
    e(f"v_lshlrev_b32 v68, 4, v{vLane}")
    e(f"v_add_u32 v69, {P_HIST}, v68")
    e(f"v_lshrrev_b32 v248, 3, v{vLane}")
    e("v_and_b32 v249, 0x70, v68")
    e("v_lshl_or_b32 v248, v248, 15, v249")
    for i in range(4):
        e(f"v_mov_b32 v{72+i}, 0")
    e("s_and_b64 s[78:79], s[78:79], vcc")
    e(f"s_cmp_eq_u32 s{sWave}, 7")
    e("s_cselect_b64 s[80:81], -1, 0")
    e("s_andn2_b64 s[76:77], s[76:77], s[80:81]")
    e("s_mov_b64 exec, s[80:81]")
    e("ds_write_b128 v69, v[72:75]")
    e(f"ds_write_b128 v68, v[72:75] offset:{CNT}")
    e(f"ds_write_b128 v68, v[72:75] offset:{ZERO+16-1024}")
    e(f"s_mul_i32 s{sBase}, s2, {BK}")
    e(f"s_add_u32 s{sNN}, s{sBase}, {BK+65535}")
    e(f"s_add_u32 s{sBase}, s{sBase}, 65535")
    e(f"s_lshr_b32 s{sBase}, s{sBase}, 16")
    e(f"s_lshr_b32 s{sNN}, s{sNN}, 16")
    e(f"s_sub_u32 s{sNN}, s{sNN}, s{sBase}")
    e(f"s_mov_b32 s{sJ0}, 0")
    e(f"s_movk_i32 s{sLW}, 384")
    e(f"s_mov_b32 s{sFirst}, 1")
    e(f"s_mul_i32 s{sStg}, s{sWave}, {SST}")
    e(f"s_add_u32 s{sStg}, s{sStg}, {STG}")
    e("s_waitcnt lgkmcnt(0)")
    if OPT['tw']:
        srd(sWs, 58, WS_SIZE)
        e(f"v_lshlrev_b32 v83, {OPT['tw']}, v{vLane}")
        e(f"buffer_load_dword v83, v83, {sr(sWs,4)}, 0 offen")
    srd(68, 50, E * 4)
    e("s_mov_b64 exec, s[76:77]")
    e("buffer_load_dwordx4 v[192:195], v64, s[68:71], 0 offen" + ld)
    e("s_mov_b64 exec, s[78:79]")
    e("buffer_load_dwordx4 v[196:199], v65, s[68:71], 0 offen" + ld)
    srd(sWs, 58, WS_SIZE)
    c("wave 7 of the first workgroups clears the run table")
    NCL = OPT['ncl']; PER = 262144 // NCL
    e(f"s_cmp_lt_u32 s{sP}, {NCL}")
    e("s_cselect_b64 exec, s[80:81], 0")
    e("s_cbranch_execz P1_NOCL")
    e(f"s_mul_i32 s{sT0}, s{sP}, {PER}")
    for k in range(PER // 1024):
        e(f"buffer_store_dwordx4 v[72:75], v68, {sr(sWs,4)}, s{sT0} offen offset:{(k%4)*1024} sc1")
        if k % 4 == 3 and k + 1 < PER // 1024:
            e(f"s_add_u32 s{sT0}, s{sT0}, 4096")
    e("P1_NOCL:")
    srd(72, 48, E * 4)
    srd(sOut, 46, E * 8)
    e("s_barrier")
    pt('b1')
    e("s_mov_b64 exec, s[76:77]")
    e("buffer_load_dwordx4 v[200:203], v64, s[72:75], 0 offen" + ld)
    e(f"buffer_load_dwordx4 v[208:211], v66, {sr(sOut,4)}, 0 offen" + ld)
    e(f"buffer_load_dwordx4 v[212:215], v66, {sr(sOut,4)}, 0 offen offset:16" + ld)
    e("s_mov_b64 exec, -1")
    srd(sWc, 56, 256)
    srd(sXr, 44, N * 128)
    e("s_sub_u32 s50, s44, 3072")
    e("s_subb_u32 s51, s45, 0")
    srd(sX, 50, N * 128 + 3072)
    e(f"s_movk_i32 s{s128}, 128")
    side_consts()
    e(f"s_cmp_eq_u32 s{sWave}, 7")
    e("s_cbranch_scc1 P1_W7A")
    e("v_mov_b32 v70, 12")
    e(f"s_mov_b32 s{sT0}, {BM}")
    e("s_movk_i32 s42, 0x3fc")
    e(f"v_mov_b32 v71, {P_HIST}")
    if OPT['eb']:
        if OPT['eb'] == 1: e("s_waitcnt vmcnt(3)")
        e("s_mov_b64 exec, s[78:79]")
        e("buffer_load_dwordx4 v[204:207], v65, s[72:75], 0 offen" + ld)
        e(f"buffer_load_dwordx4 v[216:219], v67, {sr(sOut,4)}, 0 offen" + ld)
        e(f"buffer_load_dwordx4 v[220:223], v67, {sr(sOut,4)}, 0 offen offset:16" + ld)
    for it in range(2):
        e(f"s_mov_b64 exec, s[{76+2*it}:{77+2*it}]")
        e(f"s_waitcnt vmcnt({(7 if OPT['eb'] else 4)-it})")
        for i in range(4):
            e(f"v_mul_u32_u24 v{224+4*it+i}, s{sT0}, v{192+4*it+i}")
        for i in range(4):
            e(f"v_lshrrev_b32 v{224+4*it+i}, 22, v{224+4*it+i}")
        for i in range(4):
            e(f"v_and_or_b32 v{224+4*it+i}, v{224+4*it+i}, s42, v71")
            e(f"ds_add_rtn_u32 v{232+4*it+i}, v{224+4*it+i}, v70")
        for i in range(4):
            e(f"v_and_b32 v{192+4*it+i}, 127, v{192+4*it+i}")
    if not OPT['eb']:
        e("s_mov_b64 exec, s[78:79]")
        e("buffer_load_dwordx4 v[204:207], v65, s[72:75], 0 offen" + ld)
        e(f"buffer_load_dwordx4 v[216:219], v67, {sr(sOut,4)}, 0 offen" + ld)
        e(f"buffer_load_dwordx4 v[220:223], v67, {sr(sOut,4)}, 0 offen offset:16" + ld)
    e("s_mov_b64 exec, -1")
    e("s_waitcnt lgkmcnt(0)")
    def p1_scan():
        e("s_barrier")
        pt('b2')
        e("ds_read_b128 v[240:243], v69")
        e("s_waitcnt lgkmcnt(0)")
        e("v_add_u32 v72, v240, v241")
        e("v_add_u32 v73, v72, v242")
        e("v_add_u32 v76, v73, v243")
        e("v_mov_b32 v80, v76")
        scan64(80)
        e("v_sub_u32 v244, v80, v76")
        e("v_add_u32 v245, v244, v240")
        e("v_add_u32 v246, v244, v72")
        e("v_add_u32 v247, v244, v73")
    p1_scan()
    e(f"ds_write_b128 v69, v[244:247] offset:{P_BASE-P_HIST}")
    e("s_waitcnt lgkmcnt(0)")
    for it in range(2):
        e(f"s_mov_b64 exec, s[{76+2*it}:{77+2*it}]")
        for i in range(4):
            e(f"ds_read_b32 v{224+4*it+i}, v{224+4*it+i} offset:{P_BASE-P_HIST}")
    e("s_mov_b64 exec, -1")
    def side_dma():
        e(f"s_lshl_b32 s{sT1}, s{sWave}, 10")
        for k, pw in enumerate((52, 60, 66)):
            e(f"s_add_u32 m0, s{sT1}, {WRAW+8192*(k+1)}")
            srd(68, pw, 8192)
            e(f"buffer_load_dwordx4 v82, s[68:71], s{sT1} offen lds")
    def side_wb():
        e(f"s_lshl_b32 s{sT1}, s{sWave}, 10")
        srd(68, 62, 8192)
        e(f"buffer_load_dwordx4 v[112:115], v82, s[68:71], s{sT1} offen")
    def side_copies():
        if OPT['sp'] == 0:
            side_dma(); side_wb()
    side_copies()
    if OPT['lc']: lane_consts()
    pt('side')
    NX = 4 if OPT['sp'] == 0 else 0
    for it in range(2):
        e(f"s_mov_b64 exec, s[{76+2*it}:{77+2*it}]")
        e(f"s_waitcnt vmcnt({NX+5-3*it}) lgkmcnt({4 if it==0 else 8})")
        for i in range(4):
            k = 4 * it + i
            e(f"v_lshl_or_b32 v{200+k}, v{192+k}, 18, v{200+k}")
            e(f"v_add_u32 v{224+k}, v{224+k}, v{232+k}")
            e(f"ds_write_b32 v{224+k}, v{200+k} offset:{P_STG+8}")
        for i in range(4):
            k = 4 * it + i
            if i % 2 == 0:
                e(f"s_waitcnt vmcnt({NX+4-3*it-i//2})")
            e(f"v_add_u32 v{224+k}, {P_STG}, v{224+k}")
            e(f"ds_write2_b32 v{224+k}, v{208+2*k}, v{209+2*k} offset0:0 offset1:1")
    e("s_mov_b64 exec, -1")
    pt('p1scat')
    e("P1_J:")
    pt('pj')
    if OPT['sp'] == 1:
        side_dma(); side_wb()
    if OPT['sp'] == 2:
        side_wb()
    e("v_lshlrev_b32 v64, 4, v0")
    e(f"v_add_u32 v65, {P_STG}, v64")
    e(f"s_mul_i32 s{sT0}, s{sP}, {CHB}")
    e(f"s_add_u32 s{sT0}, s{sT0}, {WS_REC}")
    NT_ = 448 if OPT['pf7'] else 512
    NR = -(-2352 // NT_)
    e(f"s_movk_i32 s42, {2352 - (NR-1)*NT_}")
    e("v_cmp_gt_u32 vcc, s42, v0")
    e("s_waitcnt lgkmcnt(0)")
    e("s_barrier")
    pt('b3')
    if OPT['hold']:
        e("HOLD:")
        e("s_memrealtime s[68:69]")
        e("s_waitcnt lgkmcnt(0)")
        e(f"s_sub_u32 s68, s68, s{sSt+18}")
        e(f"s_cmp_lt_u32 s68, {OPT['hold']}")
        e("s_cbranch_scc1 HOLD")
    if OPT['pf7']:
        e("s_andn2_b64 exec, exec, s[80:81]")
    for k in range(NR):
        e(f"ds_read_b128 {vr(192+4*k,4)}, v65 offset:{k*NT_*16}")
    for k in range(NR):
        if k == NR-1:
            e("s_mov_b64 exec, vcc")
        e(f"s_waitcnt lgkmcnt({NR-1-k})")
        if OPT['th'] and k >= OPT['th']: e(f"s_waitcnt vmcnt({OPT['th']-1})")
        e(f"buffer_store_dwordx4 {vr(192+4*k,4)}, v64, {sr(sWs,4)}, s{sT0} offen" + FL[OPT['rs']])
        if k < NR-1:
            e(f"s_add_u32 s{sT0}, s{sT0}, {NT_*16}")
    e("s_mov_b64 exec, -1")
    if OPT['sp'] == 2:
        side_dma(); NR += 3
    e(f"s_cmp_eq_u32 s{sWave}, 7")
    e("s_cbranch_scc1 P1_W7B")
    pt('stored')
    def mid(wait):
        srd(sOut, 54, N * 128)
        if not OPT['lc']: lane_consts()
        e(f"v_mov_b32 v74, {f32(-LOG2E)}")
        e(f"v_add_u32 v75, {WRAW}, v64")
        if wait is not None: e(f"s_waitcnt vmcnt({wait})")
        scale8(112, 4)
        e("ds_write_b128 v75, v[112:115]")
    mid(NR)
    e("s_waitcnt vmcnt(0)")
    e("P1_RDY:")
    pt('rdy')
    e(f"s_lshl_b32 s{sT1}, s{sP}, 7")
    e("s_waitcnt lgkmcnt(0)")
    e("s_barrier")
    pt('b4')
    c("publish this chunk's run table (every word carries a valid bit)")
    e("s_mov_b64 exec, s[80:81]")
    e(f"buffer_store_dwordx4 v[244:247], v248, {sr(sWs,4)}, s{sT1} offen" + FL[OPT['ps']])
    e("s_mov_b64 exec, -1")
    prefetch_all(OPT['pfa'], 0, 19)
    if OPT['tlb']:
        e(f"v_lshlrev_b32 v15, {OPT['tlb']}, v0")
        e(f"buffer_load_dword v15, v15, {sr(sXr,4)}, 0 offen")
    c("---- A table and U for this wave's (node tile, channel half); weight operands ----")
    e(f"s_mov_b32 m0, s{sQw}")
    e("s_nop 0")
    for x in dma(): e(x)
    for m in range(2):
        for s_ in range(4):
            for hf in range(2):
                e(f"ds_read_b64_tr_b16 {vr(192+16*m+4*s_+2*hf,2)}, v11 offset:{16384+m*8192+s_*2048+hf*512}")
    for m in range(2):
        for nt in range(2):
            for s_ in range(4):
                for hf in range(2):
                    e(f"ds_read_b64_tr_b16 {vr(vW+32*m+16*nt+4*s_+2*hf,2)}, v{9+nt} offset:{m*8192+s_*2048+hf*512}")
    for nt in range(2):
        e(f"ds_read_b64_tr_b16 {vr(vBq[nt],2)}, v12 offset:{64*nt}")
    c("epilogue thread = (node tid>>2, chunks c and c+4): output offset, row address, residual operand")
    e("v_lshrrev_b32 v13, 2, v0")
    e("v_and_b32 v14, 3, v0")
    e(f"v_add_u32 v{vOut}, s{sBase}, v13")
    e(f"v_lshlrev_b32 v{vOut}, 7, v{vOut}")
    e(f"v_lshl_add_u32 v{vOut}, v14, 4, v{vOut}")
    e(f"buffer_load_dwordx4 {vr(vXo,4)}, v{vOut}, {sr(sXr,4)}, 0 offen")
    e(f"buffer_load_dwordx4 {vr(vXo+4,4)}, v{vOut}, {sr(sXr,4)}, 0 offen offset:64")
    e(f"v_mul_u32_u24 v{vRow}, {RST}, v13")
    e(f"v_lshl_add_u32 v{vRow}, v14, 7, v{vRow}")
    e(f"v_add_u32 v{vRow}, {ROWS}, v{vRow}")
    e("v_lshrrev_b32 v15, 1, v14")
    e(f"v_lshl_add_u32 v{vRow}, v15, 6, v{vRow}")
    e("v_and_b32 v15, 7, v13")
    e("v_lshlrev_b32 v14, 1, v14")
    e("v_xor_b32 v14, v14, v15")
    e("v_lshlrev_b32 v14, 4, v14")
    e(f"v_lshl_add_u32 v{vTl}, v13, 8, v14")
    e(f"v_add_u32 v{vTl}, {UTMP}, v{vTl}")
    e(f"v_xor_b32 v31, 16, v{vTl}")
    e(f"s_mov_b32 s{sT0}, {f32(-LOG2E)}")
    e("s_waitcnt vmcnt(2)")
    pt('xo')
    for s_ in range(4):
        e(f"ds_read_b128 {vr(40+4*s_,4)}, v{24+s_}")
    e("s_waitcnt lgkmcnt(0)")
    for s_ in range(4):
        e(mfma(84, 192+4*s_, 40+4*s_, 84 if s_ else None))
    for s_ in range(4):
        e(mfma(112, 208+4*s_, 40+4*s_, 112 if s_ else None))
    e("s_nop 7")
    for r in range(16):
        e(f"v_mul_f32 v{84+r}, s{sT0}, v{84+r}")
    for r in range(8):
        e(f"v_cvt_pk_bf16_f32 v{72+r}, v{84+2*r}, v{85+2*r}")
    e(f"s_mov_b64 exec, {sr(sMore,2)}")
    for j in range(4):
        e(f"ds_write_b64 v8, {vr(72+2*j,2)} offset:{ATAB+j*16}")
    e("s_mov_b64 exec, -1")
    c("U (f32) to its final owners through LDS: 16-byte chunk q of node n sits at n*256 + (q ^ (n&7))*16")
    e(f"s_lshr_b32 s{sT0}, s{sWave}, 1")
    e(f"s_lshl_b32 s{sT0}, s{sT0}, 5")
    e(f"s_and_b32 s{sT1}, s{sWave}, 1")
    e(f"s_lshl_b32 s{sT1}, s{sT1}, 3")
    e(f"v_add_u32 v13, s{sT0}, v67")
    e("s_movk_i32 s42, 112")
    e("v_cmp_gt_u32 vcc, s42, v13")
    e(f"v_and_b32 v14, 7, v{vLane}")
    e("v_xor_b32 v14, v14, v81")
    e(f"v_or_b32 v14, s{sT1}, v14")
    e("v_lshlrev_b32 v13, 8, v13")
    e(f"v_add_u32 v13, {UTMP}, v13")
    e("s_mov_b64 exec, vcc")
    for j in range(4):
        e(f"v_xor_b32 v15, {2*j}, v14")
        e("v_lshl_add_u32 v15, v15, 4, v13")
        e(f"ds_write_b128 v15, {vr(112+4*j,4)}")
    e("s_mov_b64 exec, -1")
    if not OPT['cz']:
        for r in range(16):
            e(f"v_mov_b32 v{vC+r}, {f32(-2.0*SC)}")
    e("K2_ROUND:")
    c("window offset (0xffff = lane outside the window)")
    e(f"v_and_b32 v67, 15, v{vLane}")
    e("v_mul_u32_u24 v67, 12, v67")
    e(f"v_cmp_gt_u32 vcc, s{sLW}, v67")
    e(f"v_add_u32 v66, s{sJ0}, v67")
    e("v_lshrrev_b32 v68, 4, v0")
    e(f"s_mov_b32 s{sT0}, {8*CHB}")
    e(f"v_mul_u32_u24 v68, s{sT0}, v68")
    e("v_add3_u32 v68, v68, v66, -1")
    e("v_mov_b32 v69, 0xffff")
    e("v_cndmask_b32 v66, v69, v66, vcc")
    e("v_mov_b32 v71, 192")
    e("v_and_b32 v64, 0x1f0, v0")
    e("v_lshlrev_b32 v64, 6, v64")
    e(f"s_lshr_b32 s{sT0}, s2, 5")
    e(f"s_lshl_b32 s{sT0}, s{sT0}, 15")
    e(f"s_and_b32 s{sT1}, s2, 31")
    e(f"s_lshl_b32 s{sT1}, s{sT1}, 2")
    e(f"s_add_u32 s{sT0}, s{sT0}, s{sT1}")
    e(f"s_mov_b32 s{sCnt}, 0x40000")
    pt('poll')
    c("wait for the run tables of this wave's 32 producers")
    sd = "dst_sel:DWORD dst_unused:UNUSED_PAD "
    vRa = 84
    for i in range(8):
        e(f"s_mov_b64 {sr(sMk+2*i,2)}, 0")
    e("K2_POLL:")
    for i in range(8):
        e(f"buffer_load_dword v{vTe+i}, v64, {sr(sWs,4)}, s{sT0} offen offset:{i*128} sc1")
    e("s_waitcnt vmcnt(0)")
    e(f"v_bitop3_b32 v69, v{vTe}, v{vTe+1}, v{vTe+2} bitop3:0x80")
    e(f"v_bitop3_b32 v70, v{vTe+3}, v{vTe+4}, v{vTe+5} bitop3:0x80")
    e(f"v_bitop3_b32 v69, v69, v{vTe+6}, v{vTe+7} bitop3:0x80")
    e(f"v_bitop3_b32 v69, v69, v70, 1 bitop3:0x80")
    e("v_cmp_eq_u32 s[76:77], 0, v69")
    pt('go')
    c("fetch the runs that have been published since the last look (a cleared word has count 0)")
    e(f"s_mov_b32 s{sT1}, {WS_REC}")
    for i in range(8):
        e(f"v_cmp_lt_u32_sdwa vcc, v66, v{vTe+i} src0_sel:DWORD src1_sel:WORD_1")
        e(f"v_add_u32_sdwa v{vRa+i}, v68, v{vTe+i} {sd}src0_sel:DWORD src1_sel:WORD_0")
        e(f"s_andn2_b64 exec, vcc, {sr(sMk+2*i,2)}")
        e(f"buffer_load_dwordx3 {vr(192+4*i,3)}, v{vRa+i}, {sr(sWs,4)}, s{sT1} offen sc1")
        e(f"s_mov_b64 {sr(sMk+2*i,2)}, vcc")
        e("s_mov_b64 exec, -1")
        if i < 7:
            e(f"s_add_u32 s{sT1}, s{sT1}, {CHB}")
    e("s_cmp_eq_u64 s[76:77], 0")
    e("s_cbranch_scc1 K2_GO")
    e(f"s_sub_u32 s{sCnt}, s{sCnt}, 1")
    e("s_cbranch_scc1 K2_END")
    e(f"s_sleep {OPT['slp']}")
    e("s_branch K2_POLL")
    e("K2_GO:")
    c("records past the 16th of a run: packed per 16-lane group into two more slots")
    def ovf(vj, extra):
        e("v_mov_b32 v72, 0")
        e("v_mov_b32 v73, 0")
        for i in range(8):
            e(f"v_sub_u32_sdwa v69, v{vTe+i}, v71 clamp {sd}src0_sel:WORD_1 src1_sel:DWORD")
            e(f"v_add_u32 v74, v{vj}, v72")
            e(f"s_mov_b32 s{sT0}, {192+extra+i*CHB}")
            e("v_cmp_lt_u32 vcc, v74, v69")
            e(f"v_add3_u32 v75, v{vRa+i}, v72, s{sT0}")
            e("v_sub_u32 v72, v72, v69")
            e("v_cndmask_b32 v73, v73, v75, vcc")
    ovf(67, 0)
    e("v_add_u32 v74, v67, v72")
    e("v_add_u32 v75, 192, v74")
    e("v_add_u32 v69, 384, v72")
    e(f"v_cmp_gt_i32 {sr(sMk+16,2)}, 0, v74")
    e(f"v_cmp_gt_i32 {sr(sMk+18,2)}, 0, v75")
    e("v_cmp_gt_i32 s[76:77], 0, v69")
    e(f"v_max3_u32 v69, v{vTe}, v{vTe+1}, v{vTe+2}")
    e(f"v_max3_u32 v70, v{vTe+3}, v{vTe+4}, v{vTe+5}")
    e(f"v_max3_u32 v69, v69, v{vTe+6}, v{vTe+7}")
    e("v_max_u32 v69, v69, v70")
    e(f"s_add_u32 s{sT1}, s{sJ0}, s{sLW}")
    e(f"s_lshl_b32 s{sT1}, s{sT1}, 16")
    e(f"s_or_b32 s{sT1}, s{sT1}, 0xffff")
    e(f"v_cmp_lt_u32 vcc, s{sT1}, v69")
    e(f"s_mov_b32 s{sCnt}, {WS_REC}")
    e(f"s_cmp_eq_u32 s{sLW}, 384")
    e(f"s_cselect_b64 {sr(sMk+16,2)}, {sr(sMk+16,2)}, 0")
    e(f"s_cselect_b64 {sr(sMk+18,2)}, {sr(sMk+18,2)}, 0")
    e("s_cselect_b64 s[76:77], s[76:77], vcc")
    e(f"s_mov_b64 exec, {sr(sMk+16,2)}")
    e(f"buffer_load_dwordx3 v[224:226], v73, {sr(sWs,4)}, s{sCnt} offen sc1")
    e("s_mov_b64 exec, -1")
    e(f"s_cmp_lg_u64 {sr(sMk+18,2)}, 0")
    e("s_cbranch_scc1 K2_OVF2")
    e("K2_OVFD:")
    e("v_mov_b32 v66, 4")
    e("v_mov_b32 v67, 0")
    e("s_mov_b64 exec, s[76:77]")
    e(f"ds_write_b32 v67, v66 offset:{MORE}")
    e("s_mov_b64 exec, -1")
    for r in range(16):
        e(f"v_mov_b32 v{vAcc+r}, 0")
    c("scan / meta lane constants while the records are in flight")
    e(f"v_lshl_add_u32 v8, v{vLane}, 1, s{sBase}")
    e("v_add_u32 v9, 1, v8")
    e("v_and_b32 v8, 127, v8")
    e("v_and_b32 v9, 127, v9")
    e("v_lshlrev_b32 v8, 2, v8")
    e("v_lshlrev_b32 v9, 2, v9")
    e(f"s_add_u32 s{sT0}, s{sNN}, 7")
    e(f"v_lshlrev_b32 v10, 1, v{vLane}")
    e("v_add_u32 v11, 1, v10")
    e(f"v_cmp_gt_u32 vcc, s{sT0}, v10")
    e(f"v_cmp_gt_u32 s[76:77], s{sT0}, v11")
    e("v_lshrrev_b32 v12, 2, v0")
    e("v_cndmask_b32 v10, 0, 16, vcc")
    e("v_cndmask_b32 v11, 0, 16, s[76:77]")
    e(f"v_cmp_gt_u32 vcc, s{sT0}, v12")
    e(f"v_cmp_gt_u32 s[76:77], s{sNN}, v12")
    e(f"v_add_u32 v13, s{sBase}, v12")
    e("v_cndmask_b32 v14, 0, 16, vcc")
    e("v_and_b32 v13, 127, v13")
    e("v_lshlrev_b32 v13, 2, v13")
    e(f"v_mul_u32_u24 v15, {AST + (RST//16 << 16)}, v12")
    e(f"v_mov_b32 v64, {NOROW:#x}")
    e("v_cndmask_b32 v15, v64, v15, s[76:77]")
    e(f"s_mul_i32 s{sT0}, s{sWave}, 640")
    e(f"v_add_u32 v64, s{sT0}, v{vLane}")
    e(f"s_mov_b32 s{sEr}, {ER}")
    e(f"v_lshl_add_u32 v65, v64, 3, s{sEr}")
    e("v_lshlrev_b32 v64, 16, v64")
    e(f"s_mov_b32 s{sT0}, 0xffff")
    for j in range(4):
        e(f"v_mov_b32 v{vN+j}, 0")
        e(f"v_mov_b32 v{vP+j}, 1.0")
        e(f"v_mov_b32 v{24+j}, 1.0")
    c("lanes without a record: harmless table address, out-of-range position")
    for q in range(10):
        e(f"v_mov_b32 v{112+q}, 0")
        e(f"v_mov_b32 v{195+4*q}, 0x100000")
    if OPT['pfb']:
        e(f"s_and_b32 s{sT2}, s2, 31")
        e(f"s_mul_i32 s{sT2}, s{sT2}, 782")
        e(f"s_mul_i32 s{sT1}, s{sWave}, {OPT['pfb']}")
        e(f"s_add_u32 s{sT2}, s{sT2}, s{sT1}")
        e(f"v_add_lshl_u32 v255, v{vLane}, s{sT2}, 7")
        e(f"v_cmp_gt_u32 vcc, {OPT['pfb']}, v{vLane}")
        e("v_mov_b32 v254, -16")
        e(f"v_mov_b32 v70, {PADV:#x}")
        e("v_cndmask_b32 v255, v254, v255, vcc")
    for q in range(10):
        r = 192 + 4 * q
        e(f"s_mov_b64 exec, {sr(sMk+2*q,2)}")
        if q < 9: e(f"s_waitcnt vmcnt({8-q})")
        e(f"v_lshrrev_b32 v{112+q}, 16, v{r+2}")
        e(f"ds_add_rtn_u32 v{r+3}, v{112+q}, v66 offset:{CNT}")
        e(f"ds_write_b64 v65, {vr(r,2)} offset:{512*q}")
        e(f"v_and_or_b32 v{r+2}, v{r+2}, s{sT0}, v64")
        if q: e(f"v_add_u32 v{r+2}, {q<<22:#x}, v{r+2}")
    e("s_mov_b64 exec, -1")
    e("s_waitcnt lgkmcnt(0)")
    e("s_barrier")
    pt('hist')
    c("---- scan (every wave, redundantly) ----")
    e(f"ds_read_b32 v64, v8 offset:{CNT}")
    e(f"ds_read_b32 v65, v9 offset:{CNT}")
    e(f"ds_read_b32 v68, v67 offset:{MORE}")
    if OPT['pfb']:
        e(f"buffer_load_dword v255, v255, {sr(sXr,4)}, 0 offen")
    e("s_waitcnt lgkmcnt(1)")
    e(f"s_cmp_eq_u32 s{sFirst}, 0")
    e("s_cbranch_scc1 K2_NOU")
    for it in range(2):
        e(f"ds_read_b128 {vr(vV+8*it,4)}, v{vTl} offset:{128*it}")
        e(f"ds_read_b128 {vr(vV+8*it+4,4)}, v31 offset:{128*it}")
    e("K2_NOU:")
    e("v_add_u32 v69, 15, v64")
    e("v_add_u32 v70, 15, v65")
    e("v_and_b32 v69, -16, v69")
    e("v_and_b32 v70, -16, v70")
    e("v_max_u32 v69, v69, v10")
    e("v_max_u32 v70, v70, v11")
    e("v_add_u32 v71, v69, v70")
    e("v_mov_b32 v72, v71")
    scan64(72)
    e("v_sub_u32 v73, v72, v71")
    e("v_add_u32 v74, v73, v69")
    e(f"v_readlane_b32 s{sQt}, v72, 63")
    e("v_lshl_or_b32 v64, v64, 16, v73")
    e("v_lshl_or_b32 v65, v65, 16, v74")
    e(f"ds_write_b32 v8, v64 offset:{BI}")
    e(f"ds_write_b32 v9, v65 offset:{BI}")
    e("v_max_u32 v69, v69, v70")
    e(f"s_lshr_b32 s{sTt}, s{sQt}, 7")
    pt('s1')
    e(f"ds_read_b32 v64, v13 offset:{BI}")
    for q in range(10):
        e(f"ds_read_u16 v{112+q}, v{112+q} offset:{BI}")
    e(f"s_lshr_b32 s{sT0}, s{sTt}, 3")
    e(f"s_and_b32 s{sT1}, s{sTt}, 7")
    e(f"s_lshl_b32 s{sT2}, s{sT0}, 4")
    e(f"s_add_u32 s{sCnt}, s{sT2}, 16")
    e(f"v_cmp_lt_u32 vcc, s{sCnt}, v69")
    e(f"s_add_u32 s{sCnt}, s{sCnt}, s{sT2}")
    e(f"v_cmp_lt_u32 s[76:77], s{sCnt}, v69")
    e(f"s_mul_i32 s{sQw}, s{sT0}, s{sWave}")
    e(f"s_min_u32 s{sT2}, s{sT1}, s{sWave}")
    e(f"s_add_u32 s{sQw}, s{sQw}, s{sT2}")
    e(f"s_lshl_b32 s{sQw}, s{sQw}, 3")
    e(f"s_cmp_lt_u32 s{sWave}, s{sT1}")
    e(f"s_addc_u32 s{sNT}, s{sT0}, 0")
    e("s_cmp_lg_u64 vcc, 0")
    e(f"s_cselect_b32 s{sBig}, 1, 0")
    e("s_cmp_lg_u64 s[76:77], 0")
    e(f"s_cselect_b32 s{sBig}, 2, s{sBig}")
    c("column of (half h, register group j) = 4h + j, one quad per tile")
    e(f"v_bfe_u32 v66, v{vLane}, 3, 1")
    e(f"v_lshrrev_b32 v69, 4, v{vLane}")
    e("v_lshl_add_u32 v66, v66, 2, v69")
    e(f"v_mul_u32_u24 v66, s{sNT}, v66")
    e(f"v_add_lshl_u32 v{vIxA}, v66, s{sQw}, 4")
    e(f"s_mov_b32 m0, s{sStg}")
    e(f"s_mov_b32 s{sDum}, {0 if OPT['xf'] else NOROW:#x}")
    e("s_waitcnt lgkmcnt(13)")
    e(f"v_readfirstlane_b32 s{sMore}, v68")
    e(f"s_cmp_gt_u32 s{sQt}, {CAP*4}")
    e(f"s_cselect_b32 s{sT0}, 1, s{sMore}")
    e(f"s_cmp_eq_u32 s{sLW}, 384")
    e(f"s_cselect_b32 s{sT0}, s{sT0}, 0")
    e(f"s_cmp_lg_u32 s{sT0}, 0")
    e("s_cbranch_scc1 K2_FAIL")
    c("---- scatter index words ----")
    for q in range(10):
        r = 192 + 4 * q
        if q % 5 == 0: e("s_waitcnt lgkmcnt(5)")
        e(f"v_add_u32 v{112+q}, v{112+q}, v{r+3}")
        e(f"ds_write_b32 v{112+q}, v{r+2} offset:{M4}")
    c("pads")
    e("v_and_b32 v65, 3, v0")
    e(f"v_mov_b32 v70, {PADV:#x}")
    e("v_lshrrev_b32 v68, 16, v64")
    e("v_and_b32 v64, 0xffff, v64")
    e("v_add_u32 v74, 15, v68")
    e("v_and_b32 v74, -16, v74")
    e("v_max_u32 v74, v74, v14")
    e("v_lshl_add_u32 v68, v65, 2, v68")
    e("v_cmp_lt_u32 vcc, v68, v74")
    e("v_add_u32 v68, v68, v64")
    e("s_mov_b64 exec, vcc")
    e(f"ds_write_b32 v68, v70 offset:{M4}")
    e("s_mov_b64 exec, -1")
    pt('s3')
    e("s_waitcnt lgkmcnt(0)")
    e("s_barrier")
    pt('scat')
    for x in rd_idx(): e(x)
    e(f"v_add_u32 v{vIxA}, 16, v{vIxA}")
    c("quad words: thread = (node, k0)")
    e("v_lshrrev_b32 v69, 4, v74")
    e("v_lshrrev_b32 v64, 4, v64")
    e("v_add_lshl_u32 v68, v64, v65, 2")
    e("v_add_u32 v70, -1, v69")
    e(f"v_or_b32 v71, {NONLAST:#x}, v15")
    def blk_dma():
        for x in mads() + dma() + rd_idx(): e(x)
        e(f"v_add_u32 v{vIxA}, 16, v{vIxA}")
    def blk_qm(t):
        e(f"s_mov_b32 s{sT1}, {ROWS+512}")
        e(f"v_mad_u32_u16 v72, v15, 16, s{sT1} op_sel:[1,0,0,0]")
        e("v_mov_b32 v73, 0x100000")
        e(f"v_mov_b32 v75, {EPSR}")
        e("ds_write2_b32 v72, v75, v73 offset0:0 offset1:1")
        eps = f32(1e-6 * 2.0**(2*SC))
        e(f"s_cmp_lg_u32 s{sFirst}, 0")
        e(f"s_cselect_b32 s{sEps}, {eps}, 0")
        e(f"v_lshl_add_u32 v72, v{vLane}, 3, v75")
        e(f"v_mov_b32 v73, s{sEps}")
        e("ds_write2_b32 v72, v73, v67 offset0:0 offset1:1")
        for u in range(3):
            e("v_cmp_lt_u32 vcc, v65, v69")
            e("v_cmp_eq_u32 s[76:77], v65, v70")
            e("s_and_b64 exec, exec, vcc")
            e("v_add_u32 v65, 4, v65")
            e("v_cndmask_b32 v72, v71, v15, s[76:77]")
            e(f"ds_write_b32 v68, v72 offset:{QA+16*u}")
        e(f"K2_QM{t}:")
        e("v_cmp_lt_u32 vcc, v65, v69")
        e("v_cmp_eq_u32 s[76:77], v65, v70")
        e("s_and_b64 exec, exec, vcc")
        e(f"s_cbranch_execz K2_QMD{t}")
        e("v_add_u32 v65, 4, v65")
        e("v_cndmask_b32 v72, v71, v15, s[76:77]")
        e(f"ds_write_b32 v68, v72 offset:{QA+48}")
        e("v_add_u32 v68, 16, v68")
        e(f"s_branch K2_QM{t}")
        e(f"K2_QMD{t}:")
        e("s_mov_b64 exec, -1")
        e(f"v_lshrrev_b32 v66, 5, v{vLane}")
        e(f"v_bfe_u32 v69, v{vLane}, 2, 2")
        e("v_lshl_add_u32 v66, v66, 2, v69")
        e(f"v_mul_u32_u24 v66, s{sNT}, v66")
        e(f"v_add_lshl_u32 v{vQaA}, v66, s{sQw}, 2")
        e(f"v_bfe_u32 v8, v{vLane}, 2, 1")
        e(f"v_bfe_u32 v9, v{vLane}, 3, 2")
        e("v_lshl_add_u32 v8, v8, 2, v9")
        e(f"v_mul_u32_u24 v8, s{sNT}, v8")
        e(f"v_add_lshl_u32 v8, v8, s{sQw}, 2")
        e(f"v_and_or_b32 v8, v{vLane}, 3, v8")
        e(f"v_lshlrev_b32 v{vAqA}, 2, v8")
        e("s_waitcnt lgkmcnt(0)")
    e(f"s_cmp_ge_u32 s{sWave}, 4")
    e("s_cbranch_scc1 K2_ORD_B")
    e("s_waitcnt lgkmcnt(0)")
    blk_dma(); blk_qm('a')
    e("s_barrier")
    e("s_branch K2_ORD_J")
    e("K2_ORD_B:")
    blk_qm('b')
    e("s_barrier")
    blk_dma()
    e("K2_ORD_J:")
    pt('meta')
    for x in rd_qa() + rd_mr(0): e(x)
    e(f"ds_read_b32 v{vWK}, v{vQaA} offset:{QA}")
    e(f"v_add_u32 v{vQaA}, 4, v{vQaA}")
    e(f"s_cmp_eq_u32 s{sFirst}, 0")
    e(f"s_cbranch_scc1 K2_NOV")
    for r in range(8):
        e(f"v_lshlrev_b32 v8, 16, v{vXo+r}")
        e(f"v_and_b32 v9, 0xffff0000, v{vXo+r}")
        e(f"v_add_f32 v{vV+2*r}, v{vV+2*r}, v8")
        e(f"v_add_f32 v{vV+2*r+1}, v{vV+2*r+1}, v9")
    e(f"K2_NOV:")
    e("s_waitcnt lgkmcnt(0)")
    e(AQV); e(AEV)
    e(f"v_and_b32 v{vWK}, 0x3fffffff, v{vWK}")
    for x in rd_bq(0) + rd_bq(1) + rd_aq() + rd_qa() + rd_mr(16): e(x)
    for r in range(8, 16):
        e(f"v_mov_b32 v{r}, 0")
    for j in range(4):
        e(f"v_mov_b32 v{vS+j}, 0")
    for j in range(4):
        e(f"v_mov_b32_dpp v{RP[j]}, v{vWK} row_newbcast:{4*j} row_mask:0xf bank_mask:0xf")
    for j in range(4):
        e(f"v_mad_u32_u16 v{RP[j]}, v{RP[j]}, 16, v{vN16} op_sel:[1,0,0,0]")
    e(f"v_mov_b32 v{vWK}, {NOROW:#x}")
    e(f"v_lshrrev_b32 v{vWK+3}, 5, v{vLane}")
    e(f"v_mul_u32_u24 v{vWK+3}, {4*RST}, v{vWK+3}")
    e(f"v_add_u32 v{vWK+3}, s{sStg}, v{vWK+3}")
    e(f"v_bfe_u32 v{vWK+5}, v{vLane}, 2, 2")
    e(f"v_mul_u32_u24 v{vWK+5}, {RST}, v{vWK+5}")
    e(f"v_add_u32 v{vWK+5}, v{vWK+5}, v{vWK+3}")
    e(f"v_add_u32 v{vWK+3}, v{vWK+3}, v{vN16}")
    e(f"v_subrev_u32 v{vWK+3}, {ROWS}, v{vWK+3}")
    e("v_lshrrev_b32 v19, 2, v0")
    e(f"v_cmp_gt_u32 s[78:79], s{sNN}, v19")
    e(f"v_mul_u32_u24 v19, {RST}, v19")
    e(f"v_add_u32 v19, {ROWS}, v19")
    e("v_and_b32 v31, 2, v0")
    e("v_lshlrev_b32 v31, 6, v31")
    e(f"v_sub_u32 v31, v{vRow}, v31")
    for x in mads(): e(x)
    e(f"v_add_u32 v{vAqA}, 16, v{vAqA}")
    e(f"s_mov_b32 s{sCnt}, s{sNT}")
    e("s_waitcnt vmcnt(0)")
    pt('f4')
    for x in rd_x(): e(x)
    e(f"s_cmp_eq_u32 s{sNT}, 0")
    e("s_cbranch_scc1 K2_DRAIN")
    ms = mfmas(0); dm = dma()
    e("s_waitcnt lgkmcnt(4)")
    e(ms[0])
    e("s_waitcnt lgkmcnt(0)")
    for k in range(1, 9):
        e(ms[k])
        if k <= 4: e(dm[k-1])
        if k == 5: e(rd_idx()[0])
    e("s_waitcnt lgkmcnt(0)")
    e("s_nop 3")
    if not OPT['tl']: stamp(6)
    if OPT['role']:
        role_loops()
    else:
        e(".p2align 6")
        e("K2_LOOP:")
        loop_body()
    e("K2_DRAIN:")
    e("s_setprio 0")
    for x in rcps(): e(x)
    for x in cmps(): e(x)
    e(f"v_cmp_gt_i32 s[76:77], 0, v{vWK}")
    e(f"v_and_b32 v30, 0x3fffffff, v{vWK}")
    e(f"s_mov_b32 s{sT1}, {ROWS+512}")
    e(f"v_mad_u32_u16 v{vWK+4}, v30, 16, s{sT1} op_sel:[1,0,0,0]")
    e(f"s_lshl_b32 s{sT1}, s{sBig}, 2")
    e(f"v_and_or_b32 v{vWK+4}, v{vLane}, s{sT1}, v{vWK+4}")
    for x in chain(1): e(x)
    for x in mwrites(False): e(x)
    stamp(7)
    c("---- tails ----")
    e(f"s_cmp_eq_u32 s{sBig}, 2")
    e("s_cbranch_scc1 K2_TAILAT")
    c("park the tails in this wave's staging area and leave a pointer in the node's row")
    e(f"s_cmp_eq_u32 s{sBig}, 0")
    e(f"s_cselect_b32 s{sT2}, s{sEps}, 0")
    e("s_waitcnt vmcnt(0)")
    for j in range(4):
        for nt in range(2):
            e(f"v_add_f32 v{acc(nt,j)}, s{sT2 if j%2 else sEps}, v{acc(nt,j)}")
        e(f"ds_write_b128 v{vWK+3}, {vr(vAcc+4*j,4)} offset:{RST*j}")
    e("s_mov_b64 exec, s[76:77]")
    e(f"ds_write_b32 v{vWK+4}, v{vWK+5}")
    e("K2_TAILD:")
    e("s_mov_b64 exec, -1")
    c("---- epilogue ----")
    e(f"s_mov_b32 s{sT2}, 0x100000")
    e(f"v_sub_u32 v13, v{vRow}, v19")
    e("v_sub_u32 v14, v31, v19")
    e(f"s_cmp_eq_u32 s{sMore}, 0")
    e(f"s_cselect_b32 s{sT1}, s{sFirst}, 0")
    e(f"s_cmp_eq_u32 s{sBig}, 1")
    e("s_waitcnt lgkmcnt(0)")
    pt('e1')
    e("s_barrier")
    pt('e2')
    e("s_mov_b64 exec, s[78:79]")
    e("s_cbranch_execz K2_TAIL2D")
    e("ds_read_b64 v[10:11], v19 offset:512")
    for k in range(8):
        e(f"ds_read_b128 {vr(192+4*k,4)}, v{vRow if k<4 else 31} offset:{16*k}")
    e("s_waitcnt lgkmcnt(8)")
    def add_tail(p):
        e(f"v_cmp_gt_u32 vcc, s{sT2}, v{p}")
        e(f"v_add_u32 v12, v13, v{p}")
        e(f"v_add_u32 v15, v14, v{p}")
        e("s_mov_b64 exec, vcc")
        for k in range(8):
            e(f"ds_read_b128 {vr(224+4*k,4)}, v{12 if k<4 else 15} offset:{16*k}")
        for k in range(8):
            e(f"s_waitcnt lgkmcnt({7-k})")
            e(f"v_pk_add_f32 {vr(192+4*k,2)}, {vr(192+4*k,2)}, {vr(224+4*k,2)}")
            e(f"v_pk_add_f32 {vr(194+4*k,2)}, {vr(194+4*k,2)}, {vr(226+4*k,2)}")
        e("s_mov_b64 exec, s[78:79]")
    add_tail(10)
    e("s_cbranch_scc1 K2_TAIL2")
    e("K2_TAIL2D:")
    pt('e4')
    e(f"s_cmp_eq_u32 s{sT1}, 0")
    e("s_cbranch_scc1 K2_SLOWTOT")
    e("K2_FIN:")
    e("s_mov_b64 exec, s[78:79]")
    e("s_cbranch_execz K2_DONE")
    pt('e3')
    for it in range(2):
        for k in range(8):
            e(f"v_rcp_f32 v{192+4*k+2*it}, v{192+4*k+2*it}")
        e("s_nop 0")
        for k in range(8):
            e(f"v_fmac_f32 v{vV+8*it+k}, v{192+4*k+2*it}, v{193+4*k+2*it}")
        for k in range(4):
            e(f"v_cvt_pk_bf16_f32 v{112+4*it+k}, v{vV+8*it+2*k}, v{vV+8*it+2*k+1}")
        c("x + relu(z) = max(x + z, x); bf16 patterns order like f16 patterns")
        for k in range(4):
            e(f"v_pk_max_f16 v{112+4*it+k}, v{112+4*it+k}, v{vXo+4*it+k}")
        e(f"buffer_store_dwordx4 {vr(112+4*it,4)}, v{vOut}, {sr(sOut,4)}, 0 offen offset:{64*it}" + FL[OPT['ost']])
    e("K2_DONE:")
    if OPT['stamp']:
        e("s_mov_b64 exec, -1")
        stamp(8)
        e("s_barrier")
        diag_out(1, 9, sWave, sWs, sNT)
    e("K2_END:")
    e("s_endpgm")
    flush_ool()
    c("---- wave 7, phase 1: ready count, scaled wb / wc rows, run table words ----")
    e("P1_W7A:")
    p1_scan()
    e(f"s_cmp_lt_u32 s3, {NCL}")
    e("s_cbranch_scc0 P1_NOF")
    e(f"s_lshl_b32 s{sT0}, s3, {2 if NCL<=64 else (1 if NCL==128 else 0)}")
    e("v_mov_b32 v76, 1")
    e("s_mov_b64 exec, 1")
    e("s_waitcnt vmcnt(0)")
    if OPT['cat']:
        e(f"buffer_atomic_add v76, v74, {sr(sWc,4)}, s{sT0} offen sc1")
    else:
        e(f"buffer_store_{'dword' if NCL<=64 else ('short' if NCL==128 else 'byte')} v76, v74, {sr(sWc,4)}, s{sT0} offen sc1")
    e("s_mov_b64 exec, -1")
    e("P1_NOF:")
    srd(68, 64, 512)
    e(f"buffer_load_dwordx4 v[224:227], v68, s[68:71], 0 offen")
    side_copies()
    if OPT['lc']: lane_consts()
    for i in range(4):
        e(f"v_lshl_or_b32 v{244+i}, v{240+i}, 16, v{244+i}")
        e(f"v_or_b32 v{244+i}, 1, v{244+i}")
    e("s_branch P1_J")
    e("P1_W7B:")
    mid(NR)
    scale8(224, 4)
    c("lanes 32..63 hold flag rows (0, R, 0, 0); lanes 0..31 the wc' rows")
    e(f"v_lshrrev_b32 v73, 3, v{vLane}")
    e("v_cmp_eq_u32 vcc, 5, v73")
    e(f"v_mov_b32 v72, {(RFLAG>>16)*0x10001:#x}")
    e(f"v_xor_b32 v73, 512, v68")
    for r in range(4):
        e(f"v_cndmask_b32 v{224+r}, v{224+r}, v72, vcc")
    if OPT['cz']:
        bz = struct.unpack("<I", struct.pack("<f", -2.0 * SC))[0] >> 16
        e("s_bfm_b64 exec, 8, 48")
        for r in range(4):
            e(f"v_mov_b32 v{224+r}, {bz*0x10001:#x}")
        e("s_mov_b64 exec, -1")
    e(f"v_add_u32 v73, {WCT}, v73")
    e("ds_write_b128 v73, v[224:227]")
    c("the whole table must have been cleared before anything is published or trusted")
    e(f"v_and_b32 v74, {min(NCL,64)-1}, v{vLane}")
    e("v_lshlrev_b32 v74, 2, v74")
    e(f"s_mov_b32 s{sCnt}, 0x40000")
    if OPT['ra']: e("s_waitcnt vmcnt(0)")
    e("P1_POLL:")
    e(f"buffer_load_dword v76, v74, {sr(sWc,4)}, 0 offen" + FL[OPT['pl_']])
    e("s_waitcnt vmcnt(0)")
    e(f"v_cmp_ne_u32 vcc, {1 if NCL<=64 else (0x10001 if NCL==128 else 0x01010101)}, v76")
    e(f"s_sub_u32 s{sCnt}, s{sCnt}, 1")
    e("s_cbranch_scc1 K2_END")
    e("s_cmp_eq_u64 vcc, 0")
    e("s_cbranch_scc1 P1_RDY")
    e("s_sleep 8")
    e("s_branch P1_POLL")
    c("---- rare paths ----")
    e("K2_OVF2:")
    e("v_add_u32 v70, 192, v67")
    ovf(70, 192)
    e(f"s_mov_b64 exec, {sr(sMk+18,2)}")
    e(f"buffer_load_dwordx3 v[228:230], v73, {sr(sWs,4)}, s{sCnt} offen sc1")
    e("s_mov_b64 exec, -1")
    e("s_waitcnt vmcnt(0)")
    e("s_branch K2_OVFD")
    e("K2_NEXT:")
    e("v_lshlrev_b32 v64, 2, v0")
    e("v_mov_b32 v66, 0")
    e("s_movk_i32 s42, 132")
    e("v_cmp_gt_u32 vcc, s42, v0")
    e("s_mov_b64 exec, vcc")
    e(f"ds_write_b32 v64, v66 offset:{CNT}")
    e("s_mov_b64 exec, -1")
    e("s_waitcnt lgkmcnt(0)")
    e("s_barrier")
    e("s_branch K2_ROUND")
    e("K2_TAIL2:")
    add_tail(11)
    e("s_branch K2_TAIL2D")
    e("K2_TAILAT:")
    e("s_waitcnt lgkmcnt(0)")
    e("s_barrier")
    for j in range(4):
        for y in expand(j, 76): e(y)
        for i in range(4):
            e(f"ds_add_f32 v{RP[j]}, v{vAcc+4*j+i} offset:{4*i}")
    e("s_branch K2_TAILD")
    e("K2_FAIL:")
    e(f"s_movk_i32 s{sLW}, 144")
    e("s_waitcnt vmcnt(0) lgkmcnt(0)")
    e("s_barrier")
    e("s_branch K2_NEXT")
    e("K2_SLOWTOT:")
    e("s_mov_b64 exec, -1")
    e("v_lshlrev_b32 v14, 7, v0")
    e(f"s_lshl_b32 s{sT1}, s2, 16")
    e(f"s_add_u32 s{sT1}, s{sT1}, {WS_TOT}")
    e("s_waitcnt lgkmcnt(0)")
    e(f"s_cmp_lg_u32 s{sFirst}, 0")
    e("s_cbranch_scc1 K2_ST1")
    for r in range(8):
        e(f"buffer_load_dwordx4 {vr(224+4*r,4)}, v14, {sr(sWs,4)}, s{sT1} offen offset:{16*r} sc1")
    e("s_waitcnt vmcnt(0)")
    for r in range(32):
        e(f"v_add_f32 v{192+r}, v{192+r}, v{224+r}")
    e(f"s_cmp_eq_u32 s{sMore}, 0")
    e("s_cbranch_scc1 K2_FIN")
    e("K2_ST1:")
    for r in range(8):
        e(f"buffer_store_dwordx4 {vr(192+4*r,4)}, v14, {sr(sWs,4)}, s{sT1} offen offset:{16*r} sc1")
    e(f"s_mov_b32 s{sFirst}, 0")
    e(f"s_add_u32 s{sJ0}, s{sJ0}, s{sLW}")
    e("s_waitcnt vmcnt(0)")
    e("s_barrier")
    e("s_branch K2_NEXT")

def hi_pure(nt, prio, first=(), after=0, wait=False):
    e(f"s_setprio {prio}")
    ms = mfmas(1 - nt); av = list(first) + avals(nt)
    tr = rcps() + exps(nt)
    per = (3, 3, 3, 3, 3, 3, 2, 2, 2); fl = [0, 0, 0, 0, 0, 0, 2, 2, 2]
    if wait:
        tr = exps(nt)[:4] + rcps() + exps(nt)[4:]
        av = avals(nt)[:1] + list(first) + avals(nt)[1:]
        per = (3, 3, 2, 3, 3, 3, 3, 2, 2); fl = [0, 0, 1, 0, 0, 0, 0, 2, 2]
    t = 0; f = 0
    for g in range(9):
        if wait and g == 3: e("s_waitcnt lgkmcnt(0)")
        e(ms[g])
        seq = [tr[t + i] for i in range(per[g])]; t += per[g]
        fs = [av[f + i] for i in range(fl[g])]; f += fl[g]
        while seq or fs:
            if seq: e(seq.pop(0))
            if fs: e(fs.pop(0))
    e(f"s_setprio {after}")
    assert f >= len(first)
    return av[f:]

def lo_part(nt, rest, adds):
    for y in list(rest) + chain(1 - nt) + list(adds) + frac(nt): e(y)

sEr = 42
sEps = 80
sWm = 68
sDum = 43
def cmps(): return [f"v_cmp_gt_u32 {sr(sWm,2)}, s{sDum}, v{vWK}"]
WL = [0]
RP = [65, 66, 70, 71]
def expand(j, sm):
    return [f"s_bfe_i32 exec_lo, s{sm}, {0x10000+4*j:#x}", f"s_bfe_i32 exec_hi, s{sm+1}, {0x10000+4*j:#x}"]
OOL = []
def flush_ool():
    for y in OOL: e(y)
    OOL.clear()
def mwrites(zero=True):
    WL[0] += 1; end = f"KE{WL[0]}"
    o = [f"s_or_b32 s{sWm+2}, s{sWm}, s{sWm+1}", f"s_cbranch_scc0 {end}"]
    for j in range(4):
        WL[0] += 1
        o += [f"s_bitcmp0_b32 s{sWm+2}, {4*j}", f"s_cbranch_scc1 KW{WL[0]}"] + expand(j, sWm) + [
              f"ds_write_b128 v{RP[j]}, {vr(vAcc+4*j,4)}"]
        if zero: o += [f"ds_read_b128 {vr(vAcc+4*j,4)}, v{vZa}", f"v_add_u32 v{RP[j]}, {RST}, v{RP[j]}"]
        o += [f"KW{WL[0]}:"]
    return o + ["s_mov_b64 exec, -1", f"{end}:"]

TL = [0]
def tl():
    if OPT['tl']:
        e(f"s_memtime {sr(44+2*TL[0],2)}"); TL[0] += 1
def tl_dump(lab):
    if not OPT['tl']: return
    n = TL[0]; TL[0] = 0
    e(f"s_cmp_lg_u32 s{sCnt}, {OPT['tl']}")
    e(f"s_cbranch_scc1 {lab}")
    e("s_waitcnt lgkmcnt(0)")
    for i in range(n):
        e(f"s_mov_b32 s{sSt+2+2*i}, s{44+2*i}")
    e(f"{lab}:")
def hi_last(prio, first, after):
    e(f"s_setprio {prio}")
    for y in rcps() + list(first) + exps(1): e(y)
    e(f"s_setprio {after}")
    return avals(1)

def role_loops():
    adds = [f"v_add_u32 v{vIxA}, 16, v{vIxA}", f"v_add_u32 v{vAqA}, 16, v{vAqA}", f"v_add_u32 v{vQaA}, 4, v{vQaA}"]
    cm = cmps()
    e(f"s_mov_b64 {sr(sWm,2)}, 0")
    e(f"s_cmp_ge_u32 s{sWave}, 4")
    e("s_cbranch_scc1 KB_LOOP")
    e("s_branch KA_ENTRY")
    e(".p2align 6")
    e("KA_LOOP:")
    tail = (cm + avals(1))[6:]
    e("s_waitcnt lgkmcnt(0)")
    lo_part(1, tail, adds)
    e("KA_ENTRY:")
    tl()
    r = hi_pure(0, OPT['pa'], mads() + [AEV, AQV])
    tl()
    if not OPT['xv'] & 2: e("s_waitcnt vmcnt(0)")
    for y in rd_x() + rd_aq() + rd_bq(0) + rd_bq(1): e(y)
    e(f"s_sub_u32 s{sCnt}, s{sCnt}, 1")
    e(f"s_cmp_eq_u32 s{sCnt}, 0")
    e("s_waitcnt lgkmcnt(4)")
    for y in dma(): e(y)
    e("s_waitcnt lgkmcnt(0)")
    tl()
    lo_part(0, r, [])
    e("s_cbranch_scc1 KA_LAST")
    tl()
    hi_pure(1, OPT['pa'], cm, OPT['pa'])
    L.pop()
    tl()
    for y in mwrites() + ["s_setprio 0"] + rd_wk() + rd_qa(4) + rd_idx(16) + rd_mr(16): e(y)
    tl()
    tl_dump("KA_TL")
    if OPT['trace']: trace_code()
    e("s_branch KA_LOOP")
    flush_ool()
    e("KA_LAST:")
    r = hi_last(OPT['pa'], cm, OPT['pa'])
    for y in mwrites() + ["s_setprio 0"] + rd_wk(): e(y)
    e("s_waitcnt lgkmcnt(0)")
    lo_part(1, r, [])
    e("s_branch K2_DRAIN")
    flush_ool()
    e(".p2align 6")
    e("KB_LOOP:")
    tl()
    r = hi_pure(0, OPT['pb'], mads() + [AEV, AQV], OPT['pl'])
    tl()
    lo_part(0, r, [])
    tl()
    if OPT['fo'] == 2:
        for y in mwrites() + rd_wk(): e(y)
        e(f"s_sub_u32 s{sCnt}, s{sCnt}, 1")
        e(f"s_cmp_eq_u32 s{sCnt}, 0")
        e("s_cbranch_scc1 KB_LAST")
        for y in rd_aq() + rd_bq(0): e(y)
        if not OPT['xv'] & 1: e("s_waitcnt vmcnt(0)")
        for y in rd_x(): e(y)
        e("s_waitcnt lgkmcnt(3)")
        tl()
        r = hi_pure(1, OPT['pb'], cm, OPT['pl'], True)
    else:
        e("s_waitcnt vmcnt(0)")
    if OPT['fo'] == 2:
        pass
    elif OPT['fo']:
        for y in rd_x() + rd_aq() + rd_bq(0): e(y)
        e(f"s_sub_u32 s{sCnt}, s{sCnt}, 1")
        e("s_waitcnt lgkmcnt(0)")
        if OPT['bd'] == 0:
            for y in dma(): e(y)
        for y in mwrites() + rd_wk(): e(y)
        e(f"s_cmp_eq_u32 s{sCnt}, 0")
        e("s_cbranch_scc1 KB_LAST")
        tl()
        r = hi_pure(1, OPT['pb'], ["s_waitcnt lgkmcnt(0)"] + cm, OPT['pl'])
    else:
        for y in rd_x() + rd_aq() + rd_bq(0) + mwrites() + rd_wk(): e(y)
        e(f"s_sub_u32 s{sCnt}, s{sCnt}, 1")
        e(f"s_cmp_eq_u32 s{sCnt}, 0")
        e("s_cbranch_scc1 KB_LAST")
        e("s_waitcnt lgkmcnt(0)")
        tl()
        r = hi_pure(1, OPT['pb'], cm, OPT['pl'])
    tl()
    lo_part(1, r, adds)
    tl()
    for y in (dma() if OPT['bd'] else []) + rd_bq(1) + rd_qa() + rd_mr(0) + rd_idx(): e(y)
    tl_dump("KB_TL")
    if OPT['trace']: trace_code()
    e("s_waitcnt lgkmcnt(0)")
    e("s_branch KB_LOOP")
    flush_ool()
    e("KB_LAST:")
    r = hi_last(OPT['pb'], [], OPT['pl'])
    e("s_waitcnt lgkmcnt(0)")
    lo_part(1, r, [])

def trace_code():
    e("s_memtime s[44:45]")
    e("s_memrealtime s[46:47]")
    e(f"s_lshl_b32 s48, s2, 3")
    e(f"s_add_u32 s48, s48, s{sWave}")
    e(f"s_lshl_b32 s48, s48, 4")
    e(f"s_add_u32 s48, s48, s{sCnt}")
    e(f"s_lshl_b32 s48, s48, 3")
    e(f"s_add_u32 s48, s48, {WS_DIAG+0x80000}")
    e("s_waitcnt lgkmcnt(0)")
    e("v_mov_b32 v30, s44")
    e("v_mov_b32 v68, 0")
    e("s_mov_b64 exec, 1")
    e(f"buffer_store_dword v30, v68, {sr(sWs,4)}, s48 offen")
    e("s_mov_b64 exec, -1")

def loop_body():
    global L
    n0 = len(L)
    loop_body0()
    k = OPT['kill']
    body = L[n0:]; del L[n0:]
    for l in body:
        t = l.strip()
        if k & 1 and t.startswith('ds_read'): continue
        if k & 2 and t.startswith('ds_write'): continue
        if k & 4 and t.startswith('buffer_load'): continue
        if k & 8 and t.startswith('s_waitcnt') and not OPT['trace']: continue
        if k & 16 and t.startswith('v_add_u32'): continue
        if k & 32 and t.startswith('v_fmaak'): l = l.replace('v_fmaak_f32','v_mul_f32').rsplit(',',1)[0]
        if k & 64 and t.startswith('v_fma_f32'): l = l.replace('v_fma_f32','v_mul_f32').rsplit(',',1)[0]
        if k & 128 and t.startswith('v_and_b32'): continue
        L.append(l)
def loop_body0():
    e("s_setprio 1")
    ex = [[] for _ in range(9)]
    x = rd_x(); md = mads()
    ex[0] = rd_aq() + rd_bq(0)
    ex[1] = rd_bq(1) + ["s_waitcnt vmcnt(0)"]
    ex[2] = [x[0]]
    ex[4] = [x[1]]
    ex[5] = md[:2]
    ex[6] = [x[2]]
    ex[7] = md[2:]
    ex[8] = [x[3]]
    hi_phase(mfmas(1), rcps() + exps(0), ex)
    e("s_setprio 0")
    for y in mix(chain(1), avals(0)): e(y)
    e(f"v_add_u32 v{vIxA}, 64, v{vIxA}")
    e(f"v_add_u32 v{vAqA}, v{vAqA}, v{vAqI}")
    for y in frac(0): e(y)
    e("s_setprio 1")
    e("s_waitcnt lgkmcnt(0)")
    ex = [[] for _ in range(9)]
    w = writes(); d = dma(); wk = rd_wk()
    ex[0] = [d[0], w[0]]; ex[1] = [d[1], w[1]]; ex[2] = [d[2], w[2]]
    ex[4] = [d[3], w[3]]; ex[5] = wk; ex[7] = rd_qa() + [f"s_sub_u32 s{sCnt}, s{sCnt}, 1"]; ex[8] = rd_idx()
    hi_phase(mfmas(0), rcps() + exps(1), ex)
    e("s_setprio 0")
    av = avals(1)
    for y in av[:8]: e(y)
    e("s_waitcnt lgkmcnt(0)")
    for y in mix(chain(0), av[8:]): e(y)
    for j in range(4):
        e(f"v_add_u32 v{vWK+2*j}, v{vWK+2*j}, v{vN16}")
    e(f"v_add_u32 v{vWkA}, 32, v{vWkA}")
    e(f"v_add_u32 v{vQaV}, v{vQaV}, v{vQaC}")
    e(f"v_add_u32 v{vQaA}, 16, v{vQaA}")
    for y in frac(1): e(y)
    if OPT['trace']: trace_code()
    e(f"s_cmp_lg_u32 s{sCnt}, 0")
    e("s_cbranch_scc1 K2_LOOP")

def kd(name, vg, sg):
    L.extend([f".amdhsa_kernel {name}",
              f"  .amdhsa_next_free_vgpr {vg}",
              f"  .amdhsa_next_free_sgpr {sg}",
              f"  .amdhsa_accum_offset {(vg+3)//4*4}",
              "  .amdhsa_group_segment_fixed_size 0",
              "  .amdhsa_kernarg_size 96",
              "  .amdhsa_user_sgpr_count 2",
              "  .amdhsa_user_sgpr_kernarg_segment_ptr 1",
              "  .amdhsa_system_sgpr_workgroup_id_x 1",
              ".end_amdhsa_kernel"])

hdr = open("cdna_kernels/%s.s.ref" % NAME).read().split("\n")
for l in hdr:
    if l.startswith("; Override") : break
    L.append(l)
if OPT['lst']:
    L.append(f"; @launch kernel={NAME}_kernel grid=(256,1,1) block=(512,1,1) lds={K2_LDS}")
else:
    L.append(f"; @launch grid=(256,1,1) block=(512,1,1) lds={K2_LDS}")
L.append('.amdgcn_target "amdgcn-amd-amdhsa--gfx950"')
L.append(".text")
L.append(f".globl {NAME}_kernel")
L.append(f".type {NAME}_kernel,@function")
sSt = 82
for i, n in enumerate(OPT.get('pts', 'b2,b3,b4,go,hist').split(',')): PTS[n] = i + 1
k2()
L.append("K2_CODE_END:")
L.append('.section .rodata,"a"')
L.append(".p2align 6")
kd(f"{NAME}_kernel", 256, 102)
open(sys.argv[1], "w").write("\n".join(L) + "\n")
print("K2_LDS", K2_LDS, "ATAB", ATAB, "STG", STG, "ROWS", ROWS)
```

```python
import sys, struct

NAME = "standalone__edge_featured_mpnn_gatedgcn__graph"
OPT = dict(stamp=0, trace=0, stf=1, ldf=3, sched=0, remap=1, nodefirst=0, kill=0, pf=1, h1=4, dbg=0, alt=0, alt2=0, slp=10, rt=0, ost=1, role=1, fill=14, pa=2, pb=1, pl=3, wf=1, tl=0, mw=1, bt=-1, fb=0, peel=1, pf7=0, pfa=0, pfb=16, skp=2, dl=1, qu=3, lat=0, tlb=0, tw=0, rs=1, rl=1, pl_=1, ps=1, ncl=64, cat=0, wofs=0, bal=4, sp=0, ra=0, cz=1, co=0, cpf=0, em=1, bo=0, prog=1, bw=1, b64=0, wsk=1, wa=1, bd=1, fo=2, tr=1, xf=0, xv=0, lc=1, hold=0, th=0, al=6, pad=0, e4=0, eb=0, lst=0)
for a in sys.argv[2:]:
    k, v = a.split('=')
    OPT[k] = int(v) if k != 'pts' else v

L = []
def e(s=""): L.append("    " + s if s and not s.endswith(":") else s)
def c(s): L.append("    ; " + s)
def f32(x): return "0x%08x" % struct.unpack("<I", struct.pack("<f", x))[0]
def vr(a, n): return f"v[{a}:{a+n-1}]"
def sr(a, n): return f"s[{a}:{a+n-1}]"
FL = ["", " sc1", " sc0 sc1", " nt", " sc1 nt", " sc0 sc1 nt"]

N = 25000; E = 800000
CH = 3136
CHB = CH * 12
BM = 171799
BK = 6399988
WS_T = 0
WS_IMG = 0x40000
WS_REC = 0x80000 + OPT['wofs'] * 0x100000
WS_AU = 0xA00000
WS_TOT = 0x1100000
WS_DIAG = 0x2F00000
WS_SIZE = 0x10000000
LOG2E = 1.4426950408889634
NODE_WGS = 196
RFLAG = 0x21800000
sSt = 82

def srd(d, b, size, stride=0):
    e(f"s_mov_b32 s{d}, s{b}")
    e(f"s_and_b32 s{d+1}, s{b+1}, 0xffff")
    if stride:
        e(f"s_or_b32 s{d+1}, s{d+1}, {stride<<16:#x}")
    e(f"s_mov_b32 s{d+2}, {size}")
    e(f"s_mov_b32 s{d+3}, 0x20000")

def scan64(v):
    for m in ("row_shr:1 row_mask:0xf", "row_shr:2 row_mask:0xf", "row_shr:4 row_mask:0xf",
              "row_shr:8 row_mask:0xf", "row_bcast:15 row_mask:0xa", "row_bcast:31 row_mask:0xc"):
        e("s_nop 1")
        e(f"v_add_u32_dpp v{v}, v{v}, v{v} {m} bank_mask:0xf")

PTS = {}
def pt(name):
    if name in PTS: stamp(PTS[name])
def stamp(i):
    if OPT['stamp']:
        e(f"{'s_memrealtime' if OPT['rt'] else 's_memtime'} {sr(sSt+2*i,2)}")
        if i == 0:
            e(f"s_memrealtime {sr(sSt+18,2)}")
def diag_out(kidx, nst, swave, ssrd, extra=None, vt=8):
    if OPT['dbg']:
        e("s_memrealtime s[42:43]")
        e("s_load_dwordx2 s[44:45], s[0:1], 80")
        e("s_waitcnt lgkmcnt(0)")
        e(f"s_cmp_lg_u32 s2, {OPT['dbg']}")
        e(f"s_cbranch_scc1 K{kidx+1}_END")
        e(f"s_cmp_lg_u32 s{swave}, 5")
        e(f"s_cbranch_scc1 K{kidx+1}_END")
        e(f"s_add_u32 s44, s44, {512*(1-kidx)}")
        e("s_addc_u32 s45, s45, 0")
        srd(48, 44, 64)
        e(f"v_mov_b32 v{vt}, 0")
        e("s_mov_b64 exec, 1")
        sel = [(2,3,5,6,8),(1,2,4,5,6,7,8)][kidx]
        o = [0, 7][kidx]
        e(f"v_mov_b32 v{vt+1}, s{sSt+18}")
        e(f"buffer_store_dword v{vt+1}, v{vt}, s[48:51], 0 offen offset:{4*o}")
        for n, i in enumerate(sel):
            e(f"s_sub_u32 s40, s{sSt+2*i}, s{sSt}")
            e(f"v_mov_b32 v{vt+1}, s40")
            e(f"buffer_store_dword v{vt+1}, v{vt}, s[48:51], 0 offen offset:{4*(o+1+n)}")
        e(f"v_mov_b32 v{vt+1}, s42")
        e(f"buffer_store_dword v{vt+1}, v{vt}, s[48:51], 0 offen offset:{4*(o+1+len(sel))}")
        return
    e("s_memrealtime s[42:43]")
    e("s_waitcnt lgkmcnt(0)")
    e(f"s_lshl_b32 s39, s2, 4")
    e(f"s_add_u32 s39, s39, s{swave}")
    e(f"s_lshl_b32 s39, s39, 6")
    e(f"s_add_u32 s39, s39, {WS_DIAG + kidx*0x40000}")
    e(f"v_mov_b32 v{vt}, 0")
    e("s_mov_b64 exec, 1")
    for i in range(1, nst):
        e(f"s_sub_u32 s40, s{sSt+2*i}, {'0' if OPT['rt']==2 or OPT['tl'] else 's%d' % sSt}")
        e(f"v_mov_b32 v{vt+1}, s40")
        e(f"buffer_store_dword v{vt+1}, v{vt}, {sr(ssrd,4)}, s39 offen offset:{4*(i-1)}")
    if extra is not None:
        e(f"v_mov_b32 v{vt+1}, s{extra}")
        e(f"buffer_store_dword v{vt+1}, v{vt}, {sr(ssrd,4)}, s39 offen offset:48")
    e("s_getreg_b32 s40, hwreg(HW_REG_HW_ID)")
    e(f"v_mov_b32 v{vt+1}, s40")
    e(f"buffer_store_dword v{vt+1}, v{vt}, {sr(ssrd,4)}, s39 offen offset:52")
    e(f"v_mov_b32 v{vt+1}, s{sSt+18}")
    e(f"buffer_store_dword v{vt+1}, v{vt}, {sr(ssrd,4)}, s39 offen offset:56")
    e(f"v_mov_b32 v{vt+1}, s42")
    e(f"buffer_store_dword v{vt+1}, v{vt}, {sr(ssrd,4)}, s39 offen offset:60")

def mfma(d, a, b, cc):
    cs = "0" if cc is None else vr(cc, 16)
    return f"v_mfma_f32_32x32x16_bf16 {vr(d,16)}, {vr(a,4)}, {vr(b,4)}, {cs}"

CAP = 3584
CNT = 0
MORE = 512
ZERO = 1056
BI = 528
M4 = 1280
QA = M4 + CAP * 4 + 64
AST = 136
RST = 528
ATAB = QA + (CAP // 4) * 4 + 64
ER = (ATAB + 98 * AST + 15) // 16 * 16
STG = (ER + 40960 + 255) // 256 * 256
SST = 4352
ROWS = STG + 8 * SST
EPSR = ROWS + 98 * RST
K2_LDS = EPSR + 512
WRAW = STG
XOWN = ROWS
WCT = ROWS + 16384
P_HIST = (WCT + 1024 + 1023) // 1024 * 1024
P_BASE = P_HIST + 1024
UTMP = P_BASE + 1024
P_STG = ER
NONLAST = 0x80000000; NOROW = 0x40000000
assert CHB <= 40960 and UTMP + 112 * 256 <= K2_LDS
assert ATAB % 8 == 0 and K2_LDS <= 160 * 1024 and ATAB < 65536, (K2_LDS, ATAB)
SC = 24
PADV = 0x7F007F00
RFLAG = 0x21800000

vW = 128; vD = [192, 224]; vX = 112; vBq = [104, 108]; vAq = 100; vAcc = 84
vS = 72; vN = 76; vP = 80; vWK = 64; vIdx = 56; vC = 40; vXo = 32; vV = 40; vRow = 28; vOut = 29; vTl = 30; vXa = 20
vLane = 1; vAqA = 2; vEa = 3; vIxA = 4; vQaA = 5; vQaV = 6; vQaC = 7
vZa = 16; vN16 = 17; vC1 = 18; vTail = 19
vTe = 8
sX = 4; sXr = 8; sWs = 12; sOut = 16; sWc = 20
sBase = 24; sNN = 25; sWave = 26; sJ0 = 27; sLW = 28; sFirst = 29; s128 = 30; sQt = 31; sTt = 32
sNT = 33; sQw = 34; sStg = 35; sMore = 36; sBig = 37; sCnt = 38; sT0 = 39; sT1 = 40; sT2 = 41
sMk = 44

def G(b): return vD[b]
def H(b): return vD[b] + 16
def Wg(nt, s): return vW + (nt * 4 + s) * 4
def Wh(nt, s): return vW + 32 + (nt * 4 + s) * 4
def mfmas(nt):
    g = G(nt); h = H(nt)
    first = [mfma(g, vAq, vBq[nt], None if OPT['cz'] else vC)]
    gs = [mfma(g, vX+4*k, Wg(nt,k), g) for k in range(4)]
    hs = [mfma(h, vX+4*k, Wh(nt,k), h if k else None) for k in range(4)]
    if OPT['co']: return first + gs + hs
    return first + [x for p in zip(hs, gs) for x in p]
def acc(nt, j): return vAcc + j * 4 + nt * 2
SS = [72, 73, 74, 75, 8, 9, 10, 11]; NN = [76, 77, 78, 79, 12, 13, 14, 15]; PP = [81, 82, 83, 80, 25, 26, 27, 24]
def chain(nt):
    o = []
    for hq in (0, 4):
        for j in range(4):
            a = acc(nt, j); q = hq + j
            o += [f"v_fmac_f32 v{a}, v{SS[q]}, v{PP[q]}", f"v_fmac_f32 v{a+1}, v{NN[q]}, v{PP[q]}"]
    return o
def avals(nt):
    g = G(nt)
    return [f"v_add_f32 v{g+r}, v{g+r}, v{vC1}" for r in range(16)]
def frac(nt):
    g = G(nt); h = H(nt); o = []
    R = range(8); f = lambda q: 4 * (q % 4) + 2 * (q // 4)
    o += [f"v_mul_f32 v{NN[q]}, v{h+f(q)}, v{g+f(q)+1}" for q in R]
    o += [f"v_add_f32 v{SS[q]}, v{g+f(q)}, v{g+f(q)+1}" for q in R]
    o += [f"v_mul_f32 v{PP[q]}, v{g+f(q)}, v{g+f(q)+1}" for q in R]
    o += [f"v_fmac_f32 v{NN[q]}, v{h+f(q)+1}, v{g+f(q)}" for q in R]
    return o
def mix(a, b):
    o = []; a = list(a); b = list(b)
    while a or b:
        if a: o += a[:2]; a = a[2:]
        if b: o += b[:2]; b = b[2:]
    return o
def exps(nt): return [f"v_exp_f32_e64 v{G(nt)+r}, v{G(nt)+r} clamp" for r in range(16)]
def rcps(): return [f"v_rcp_f32 v{p}, v{p}" for p in PP]
def rd_x(): return [f"ds_read_b128 {vr(vX+4*s,4)}, v{vXa+s}" for s in range(4)]
def rd_aq():
    return [f"ds_read_b32 v{vAq}, v{vAqA} offset:{M4}", "s_mov_b32 exec_lo, 0", f"ds_read_b64 {vr(vAq,2)}, v{vEa}", "s_mov_b32 exec_lo, -1"]
def rd_mr(ahead): return [f"ds_read_u16 v{vEa}, v{vAqA} offset:{M4+2+ahead}"]
AEV = f"v_lshl_add_u32 v{vEa}, v{vEa}, 3, s42"
def rd_idx(o=0): return [f"ds_read_b128 {vr(vIdx,4)}, v{vIxA} offset:{M4+o}"]
def mads(): return [f"v_mad_u32_u16 v{vIdx+i}, v{vIdx+i}, s{s128}, v{vIdx+4+i}" for i in range(4)]
def rd_qa(o=0): return [f"ds_read_u16 v{vQaV}, v{vQaA} offset:{QA+o}"]
AQV = f"v_add_u32 v{vQaV}, v{vQaV}, v{vQaC}"
def rd_bq(nt): return [f"ds_read_b64_tr_b16 {vr(vBq[nt]+2,2)}, v{vQaV} offset:{ATAB+64*nt}"]
def rd_wk(): return [f"ds_read_b32 v{vWK}, v{vQaA} offset:{QA-4}"]
def dma(): return [f"buffer_load_dwordx4 v{vIdx+i}, {sr(sX,4)}, 0 offen offset:{1024*i} lds" for i in range(4)]

def hi_phase(ms, trans, extras, per=(2, 2, 2, 3, 2, 2, 3, 2, 2)):
    t = 0
    for g in range(9):
        e(ms[g])
        for _ in range(per[g]):
            e(trans[t]); t += 1
        for x in extras[g]:
            e(x)
    assert t == 20

def side_consts():
    c("copy source addresses: v82 weights, v78/v79 own x rows")
    e(f"v_lshrrev_b32 v81, 5, v{vLane}")
    e(f"v_and_b32 v77, 7, v{vLane}")
    e("v_lshlrev_b32 v78, 2, v81")
    e("v_xor_b32 v77, v77, v78")
    e(f"v_and_b32 v82, 16, v{vLane}")
    e("v_lshlrev_b32 v82, 2, v82")
    e("v_xor_b32 v82, v68, v82")

def lane_consts():
    c("---- lane constants ----")
    e(f"v_and_b32 v67, 31, v{vLane}")
    e(f"v_bfe_u32 v70, v{vLane}, 2, 1")
    e(f"v_bfe_u32 v71, v{vLane}, 3, 2")
    e("v_and_b32 v72, 1, v71")
    e("v_lshlrev_b32 v72, 4, v72")
    e("v_mov_b32 v73, 0x3f80")
    e("v_cmp_eq_u32 vcc, v70, v81")
    e("v_lshlrev_b32 v72, v72, v73")
    e("v_cmp_gt_u32 s[42:43], 2, v71")
    e("v_cndmask_b32 v72, 0, v72, vcc")
    e(f"v_and_b32 v73, 3, v{vLane}")
    e(f"v_cndmask_b32 v{vAq+2}, 0, v72, s[42:43]")
    e(f"v_cndmask_b32 v{vAq+3}, v72, 0, s[42:43]")
    e(f"v_mov_b32 v{vAq+1}, 0x3f80")
    for i in range(4):
        e(f"v_xor_b32 v74, {i}, v77")
        e(f"v_lshlrev_b32 v74, 4, v74")
        e(f"v_add_u32 v{vIdx+4+i}, {3072-1024*i}, v74")
    e(f"v_bfe_u32 v74, v{vLane}, 2, 3")
    e(f"v_bfe_u32 v75, v{vLane}, 4, 1")
    e("v_lshl_add_u32 v72, v75, 2, v73")
    e("v_lshlrev_b32 v76, 10, v73")
    e("v_lshl_add_u32 v76, v74, 7, v76")
    e(f"v_add_u32 v76, s{sStg}, v76")
    e("v_xor_b32 v72, v72, v81")
    for s_ in range(4):
        e(f"v_xor_b32 v74, {2*s_}, v72")
        e(f"v_lshl_add_u32 v{vXa+s_}, v74, 4, v76")
    e(f"v_lshlrev_b32 v{vN16}, 2, v75")
    e(f"v_xor_b32 v{vN16}, v{vN16}, v67")
    e(f"v_lshlrev_b32 v{vN16}, 4, v{vN16}")
    e(f"v_add_u32 v{vN16}, {ROWS}, v{vN16}")
    e(f"v_mov_b32 v{vC1}, {f32(2.0**(-2*SC))}")
    e(f"v_mov_b32 v{vZa}, {ZERO}")
    e("v_lshlrev_b32 v73, 3, v73")
    e(f"v_lshl_add_u32 v{vQaC}, v75, 5, v73")
    c("setup addresses: v8 A table write, v9/v10/v11 transposed reads, v12 wc, v24..27 own x")
    e(f"s_and_b32 s{sT2}, s{sWave}, 1")
    e(f"s_lshr_b32 s{sT0}, s{sWave}, 1")
    e(f"s_lshl_b32 s{sT1}, s{sT0}, 5")
    e(f"v_add_u32 v8, s{sT1}, v67")
    e("v_mov_b32 v13, v8")
    e(f"v_mul_u32_u24 v8, {AST}, v8")
    e("v_lshl_add_u32 v8, v81, 3, v8")
    e(f"s_lshl_b32 s{sT2}, s{sT2}, 6")
    e(f"v_add_u32 v8, s{sT2}, v8")
    e(f"v_bfe_u32 v71, v{vLane}, 2, 2")
    e("v_lshl_add_u32 v12, v81, 2, v71")
    e(f"v_lshl_add_u32 v12, v12, 7, v{vQaC}")
    e(f"v_add_u32 v12, {WCT}, v12")
    e("v_lshl_add_u32 v9, v81, 3, v71")
    e(f"v_lshl_add_u32 v9, v9, 7, v{vQaC}")
    e(f"v_bfe_u32 v71, v{vLane}, 3, 1")
    e("v_lshl_add_u32 v9, v71, 6, v9")
    e(f"v_add_u32 v9, {WRAW}, v9")
    e("v_xor_b32 v10, 64, v9")
    e(f"v_xor_b32 v11, s{sT2}, v9")
    e(f"s_mul_i32 s{sQw}, s{sWave}, 5120")
    e(f"s_add_u32 s{sQw}, s{sQw}, {(ER+255)//256*256}")
    e(f"s_sub_u32 s{sT0}, s{sQw}, s{sStg}")
    for s_ in range(4):
        e(f"v_add_u32 v{24+s_}, s{sT0}, v{vXa+s_}")
    e(f"s_add_u32 s{sT1}, s{sT1}, s{sBase}")
    e(f"v_lshrrev_b32 v71, 3, v{vLane}")
    e(f"v_lshl_add_u32 v{vIdx}, v71, 2, s{sT1}")
    for i in range(1, 4):
        e(f"v_add_u32 v{vIdx+i}, {i}, v{vIdx}")
    for x in mads(): e(x)

def prefetch_all(lanes, first_line, vt):
    if not lanes: return
    e(f"s_and_b32 s{sT2}, s2, 31")
    e(f"s_mul_i32 s{sT2}, s{sT2}, 782")
    e(f"s_mul_i32 s{sT1}, s{sWave}, {lanes}")
    e(f"s_add_u32 s{sT2}, s{sT2}, s{sT1}")
    e(f"s_add_u32 s{sT2}, s{sT2}, {first_line}")
    e(f"s_lshl_b32 s{sT2}, s{sT2}, 7")
    e(f"v_lshlrev_b32 v{vt}, 7, v{vLane}")
    e(f"s_mov_b64 exec, {(1<<lanes)-1 if lanes<64 else -1}" if lanes<=32 or lanes==64 else f"s_bfm_b64 exec, {lanes}, 0")
    e(f"buffer_load_dword v{vt}, v{vt}, {sr(sXr,4)}, s{sT2} offen")
    e("s_mov_b64 exec, -1")

def scale8(first, n):
    for r in range(n):
        e(f"v_lshlrev_b32 v72, 16, v{first+r}")
        e(f"v_and_b32 v73, 0xffff0000, v{first+r}")
        e(f"v_mul_f32 v72, v74, v72")
        e(f"v_mul_f32 v73, v74, v73")
        e(f"v_cvt_pk_bf16_f32 v{first+r}, v72, v73")

def k2():
    st = FL[OPT['stf']]; ld = FL[OPT['ldf']]
    sP = 3
    HM = ['s[76:77]', 's[78:79]', 's[32:33]', 's[36:37]']
    e(".p2align 8")
    e(f"{NAME}_kernel:")
    e("s_cmp_ge_u32 s2, 256")
    e("s_cbranch_scc1 K2_END")
    stamp(0)
    e("s_load_dwordx8 s[44:51], s[0:1], 0")
    e("s_load_dwordx8 s[52:59], s[0:1], 64")
    e("s_load_dwordx8 s[60:67], s[0:1], 32")
    e(f"s_mov_b32 s{sP}, s2")
    if OPT['cpf']:
        c("pull the code into the L2 (one dword per 128-byte line, threads 0..CODE/128)")
        e("s_getpc_b64 s[68:69]")
        e("v_lshlrev_b32 v250, 7, v0")
        e("v_mov_b32 v251, s69")
        e(f"s_movk_i32 s70, {OPT['cpf']}")
        e("v_cmp_gt_u32 s[72:73], s70, v0")
        e("v_add_co_u32 v250, vcc, s68, v250")
        e("s_nop 1")
        e("v_addc_co_u32 v251, vcc, 0, v251, vcc")
        e("s_mov_b64 exec, s[72:73]")
        e("s_cbranch_execz K2_NOPF")
        e("global_load_dword v252, v[250:251], off")
        e("K2_NOPF:")
        e("s_mov_b64 exec, -1")
    if OPT['remap']:
        e(f"s_and_b32 s{sT0}, s2, 7")
        e("s_lshr_b32 s2, s2, 3")
        e(f"s_lshl_b32 s{sT0}, s{sT0}, 5")
        e(f"s_or_b32 s2, s2, s{sT0}")
    e(f"v_and_b32 v{vLane}, 63, v0")
    e("v_lshrrev_b32 v2, 6, v0")
    e(f"s_mul_i32 s{sT0}, s{sP}, {CH*4}")
    e(f"v_readfirstlane_b32 s{sWave}, v2")
    c("a wave takes 256 edges twice; lane l owns edges 2l, 2l+1 of each half so that every load is contiguous")
    e(f"v_lshl_add_u32 v64, v2, 10, s{sT0}")
    e(f"v_lshl_add_u32 v64, v{vLane}, 3, v64")
    e(f"v_add_u32 v65, 7168, v64")
    e("v_lshlrev_b32 v66, 1, v64")
    e("v_lshlrev_b32 v67, 1, v65")
    e(f"s_add_u32 s{sT1}, s{sT0}, {CH*4}")
    e(f"s_min_u32 s{sT1}, s{sT1}, {E*4}")
    e(f"s_sub_u32 s42, s{sT1}, 512")
    e(f"v_cmp_gt_u32 {HM[0]}, s{sT1}, v64")
    e(f"v_cmp_gt_u32 {HM[1]}, s42, v64")
    e(f"v_cmp_gt_u32 {HM[2]}, s{sT1}, v65")
    e(f"v_cmp_gt_u32 {HM[3]}, s42, v65")
    e(f"v_lshlrev_b32 v68, 4, v{vLane}")
    e(f"v_add_u32 v69, {P_HIST}, v68")
    e(f"v_lshrrev_b32 v248, 3, v{vLane}")
    e("v_and_b32 v249, 0x70, v68")
    e("v_lshl_or_b32 v248, v248, 15, v249")
    for i in range(4):
        e(f"v_mov_b32 v{72+i}, 0")
    e(f"s_cmp_eq_u32 s{sWave}, 7")
    e("s_cselect_b64 s[80:81], -1, 0")
    e("s_andn2_b64 s[76:77], s[76:77], s[80:81]")
    e("s_andn2_b64 s[78:79], s[78:79], s[80:81]")
    e("s_mov_b64 exec, s[80:81]")
    e("ds_write_b128 v69, v[72:75]")
    e(f"ds_write_b128 v68, v[72:75] offset:{CNT}")
    e(f"ds_write_b128 v68, v[72:75] offset:{ZERO+16-1024}")
    e(f"s_mul_i32 s{sBase}, s2, {BK}")
    e(f"s_add_u32 s{sNN}, s{sBase}, {BK+65535}")
    e(f"s_add_u32 s{sBase}, s{sBase}, 65535")
    e(f"s_lshr_b32 s{sBase}, s{sBase}, 16")
    e(f"s_lshr_b32 s{sNN}, s{sNN}, 16")
    e(f"s_sub_u32 s{sNN}, s{sNN}, s{sBase}")
    e(f"s_mov_b32 s{sJ0}, 0")
    e(f"s_movk_i32 s{sLW}, 384")
    e(f"s_mov_b32 s{sFirst}, 1")
    e(f"s_mul_i32 s{sStg}, s{sWave}, {SST}")
    e(f"s_add_u32 s{sStg}, s{sStg}, {STG}")
    e("s_waitcnt lgkmcnt(0)")
    if OPT['tw']:
        srd(sWs, 58, WS_SIZE)
        e(f"v_lshlrev_b32 v83, {OPT['tw']}, v{vLane}")
        e(f"buffer_load_dword v83, v83, {sr(sWs,4)}, 0 offen")
    srd(68, 50, E * 4)
    for hh in range(4):
        e(f"s_mov_b64 exec, {HM[hh]}")
        e(f"buffer_load_dwordx2 {vr(192+2*hh,2)}, v{64+hh//2}, s[68:71], 0 offen offset:{512*(hh%2)}" + ld)
    def bulk(it):
        for hh in (2*it, 2*it+1):
            e(f"s_mov_b64 exec, {HM[hh]}")
            e(f"buffer_load_dwordx2 {vr(200+2*hh,2)}, v{64+it}, s[72:75], 0 offen offset:{512*(hh%2)}" + ld)
            e(f"buffer_load_dwordx4 {vr(208+4*hh,4)}, v{66+it}, {sr(sOut,4)}, 0 offen offset:{1024*(hh%2)}" + ld)
    srd(sWs, 58, WS_SIZE)
    c("wave 7 of the first workgroups clears the run table")
    NCL = OPT['ncl']; PER = 262144 // NCL
    e(f"s_cmp_lt_u32 s{sP}, {NCL}")
    e("s_cselect_b64 exec, s[80:81], 0")
    e("s_cbranch_execz P1_NOCL")
    e(f"s_mul_i32 s{sT0}, s{sP}, {PER}")
    for k in range(PER // 1024):
        e(f"buffer_store_dwordx4 v[72:75], v68, {sr(sWs,4)}, s{sT0} offen offset:{(k%4)*1024} sc1")
        if k % 4 == 3 and k + 1 < PER // 1024:
            e(f"s_add_u32 s{sT0}, s{sT0}, 4096")
    e("P1_NOCL:")
    srd(72, 48, E * 4)
    srd(sOut, 46, E * 8)
    e("s_barrier")
    pt('b1')
    bulk(0)
    if OPT['eb']: bulk(1)
    e("s_mov_b64 exec, -1")
    srd(sWc, 56, 256)
    srd(sXr, 44, N * 128)
    e("s_sub_u32 s50, s44, 3072")
    e("s_subb_u32 s51, s45, 0")
    srd(sX, 50, N * 128 + 3072)
    e(f"s_movk_i32 s{s128}, 128")
    side_consts()
    e(f"s_cmp_eq_u32 s{sWave}, 7")
    e("s_cbranch_scc1 P1_W7A")
    e("v_mov_b32 v70, 12")
    e(f"s_mov_b32 s{sT0}, {BM}")
    e("s_movk_i32 s42, 0x3fc")
    e(f"v_mov_b32 v71, {P_HIST}")
    for hh in range(4):
        e(f"s_mov_b64 exec, {HM[hh]}")
        e(f"s_waitcnt vmcnt({(11 if OPT['eb'] else 7)-hh})")
        R2 = (2*hh, 2*hh+1)
        for k in R2:
            e(f"v_mul_u32_u24 v{224+k}, s{sT0}, v{192+k}")
        for k in R2:
            e(f"v_lshrrev_b32 v{224+k}, 22, v{224+k}")
        for k in R2:
            e(f"v_and_or_b32 v{224+k}, v{224+k}, s42, v71")
            e(f"ds_add_rtn_u32 v{232+k}, v{224+k}, v70")
        for k in R2:
            e(f"v_and_b32 v{192+k}, 127, v{192+k}")
    if not OPT['eb']: bulk(1)
    e("s_mov_b64 exec, -1")
    e("s_waitcnt lgkmcnt(0)")
    def p1_scan():
        e("s_barrier")
        pt('b2')
        e("ds_read_b128 v[240:243], v69")
        e("s_waitcnt lgkmcnt(0)")
        e("v_add_u32 v72, v240, v241")
        e("v_add_u32 v73, v72, v242")
        e("v_add_u32 v76, v73, v243")
        e("v_mov_b32 v80, v76")
        scan64(80)
        e("v_sub_u32 v244, v80, v76")
        e("v_add_u32 v245, v244, v240")
        e("v_add_u32 v246, v244, v72")
        e("v_add_u32 v247, v244, v73")
    p1_scan()
    e(f"ds_write_b128 v69, v[244:247] offset:{P_BASE-P_HIST}")
    e("s_waitcnt lgkmcnt(0)")
    for hh in range(4):
        e(f"s_mov_b64 exec, {HM[hh]}")
        for k in (2*hh, 2*hh+1):
            e(f"ds_read_b32 v{224+k}, v{224+k} offset:{P_BASE-P_HIST}")
    e("s_mov_b64 exec, -1")
    def side_dma():
        e(f"s_lshl_b32 s{sT1}, s{sWave}, 10")
        for k, pw in enumerate((52, 60, 66)):
            e(f"s_add_u32 m0, s{sT1}, {WRAW+8192*(k+1)}")
            srd(68, pw, 8192)
            e(f"buffer_load_dwordx4 v82, s[68:71], s{sT1} offen lds")
    def side_wb():
        e(f"s_lshl_b32 s{sT1}, s{sWave}, 10")
        srd(68, 62, 8192)
        e(f"buffer_load_dwordx4 v[112:115], v82, s[68:71], s{sT1} offen")
    def side_copies():
        if OPT['sp'] == 0:
            side_dma(); side_wb()
    side_copies()
    if OPT['lc']: lane_consts()
    pt('side')
    NX = 4 if OPT['sp'] == 0 else 0
    e(f"s_movk_i32 s42, {P_STG}")
    e("s_waitcnt lgkmcnt(0)")
    for hh in range(4):
        e(f"s_mov_b64 exec, {HM[hh]}")
        e(f"s_waitcnt vmcnt({NX+6-2*hh})")
        for k in (2*hh, 2*hh+1):
            e(f"v_lshl_or_b32 v{200+k}, v{192+k}, 18, v{200+k}")
            e(f"v_add3_u32 v{224+k}, v{224+k}, v{232+k}, s42")
            e(f"ds_write_b32 v{224+k}, v{200+k} offset:8")
            e(f"ds_write2_b32 v{224+k}, v{208+2*k}, v{209+2*k} offset0:0 offset1:1")
    e("s_mov_b64 exec, -1")
    pt('p1scat')
    e("P1_J:")
    pt('pj')
    if OPT['sp'] == 1:
        side_dma(); side_wb()
    if OPT['sp'] == 2:
        side_wb()
    e("v_lshlrev_b32 v64, 4, v0")
    e(f"v_add_u32 v65, {P_STG}, v64")
    e(f"s_mul_i32 s{sT0}, s{sP}, {CHB}")
    e(f"s_add_u32 s{sT0}, s{sT0}, {WS_REC}")
    NT_ = 448 if OPT['pf7'] else 512
    NR = -(-2352 // NT_)
    e(f"s_movk_i32 s42, {2352 - (NR-1)*NT_}")
    e("v_cmp_gt_u32 vcc, s42, v0")
    e("s_waitcnt lgkmcnt(0)")
    e("s_barrier")
    pt('b3')
    if OPT['hold']:
        e("HOLD:")
        e("s_memrealtime s[68:69]")
        e("s_waitcnt lgkmcnt(0)")
        e(f"s_sub_u32 s68, s68, s{sSt+18}")
        e(f"s_cmp_lt_u32 s68, {OPT['hold']}")
        e("s_cbranch_scc1 HOLD")
    if OPT['pf7']:
        e("s_andn2_b64 exec, exec, s[80:81]")
    for k in range(NR):
        e(f"ds_read_b128 {vr(192+4*k,4)}, v65 offset:{k*NT_*16}")
    for k in range(NR):
        if k == NR-1:
            e("s_mov_b64 exec, vcc")
        e(f"s_waitcnt lgkmcnt({NR-1-k})")
        if OPT['th'] and k >= OPT['th']: e(f"s_waitcnt vmcnt({OPT['th']-1})")
        e(f"buffer_store_dwordx4 {vr(192+4*k,4)}, v64, {sr(sWs,4)}, s{sT0} offen" + FL[OPT['rs']])
        if k < NR-1:
            e(f"s_add_u32 s{sT0}, s{sT0}, {NT_*16}")
    e("s_mov_b64 exec, -1")
    if OPT['sp'] == 2:
        side_dma(); NR += 3
    e(f"s_cmp_eq_u32 s{sWave}, 7")
    e("s_cbranch_scc1 P1_W7B")
    pt('stored')
    def mid(wait):
        srd(sOut, 54, N * 128)
        if not OPT['lc']: lane_consts()
        e(f"v_mov_b32 v74, {f32(-LOG2E)}")
        e(f"v_add_u32 v75, {WRAW}, v64")
        if wait is not None: e(f"s_waitcnt vmcnt({wait})")
        scale8(112, 4)
        e("ds_write_b128 v75, v[112:115]")
    mid(NR)
    e("s_waitcnt vmcnt(0)")
    e("P1_RDY:")
    pt('rdy')
    e(f"s_lshl_b32 s{sT1}, s{sP}, 7")
    e("s_waitcnt lgkmcnt(0)")
    e("s_barrier")
    pt('b4')
    c("publish this chunk's run table (every word carries a valid bit)")
    e("s_mov_b64 exec, s[80:81]")
    e(f"buffer_store_dwordx4 v[244:247], v248, {sr(sWs,4)}, s{sT1} offen" + FL[OPT['ps']])
    e("s_mov_b64 exec, -1")
    prefetch_all(OPT['pfa'], 0, 19)
    if OPT['tlb']:
        e(f"v_lshlrev_b32 v15, {OPT['tlb']}, v0")
        e(f"buffer_load_dword v15, v15, {sr(sXr,4)}, 0 offen")
    e(f"v_cmp_gt_u32 {sr(sMore,2)}, s{sNN}, v13")
    c("---- A table and U for this wave's (node tile, channel half); weight operands ----")
    e(f"s_mov_b32 m0, s{sQw}")
    e("s_nop 0")
    for x in dma(): e(x)
    for m in range(2):
        for s_ in range(4):
            for hf in range(2):
                e(f"ds_read_b64_tr_b16 {vr(192+16*m+4*s_+2*hf,2)}, v11 offset:{16384+m*8192+s_*2048+hf*512}")
    for m in range(2):
        for nt in range(2):
            for s_ in range(4):
                for hf in range(2):
                    e(f"ds_read_b64_tr_b16 {vr(vW+32*m+16*nt+4*s_+2*hf,2)}, v{9+nt} offset:{m*8192+s_*2048+hf*512}")
    for nt in range(2):
        e(f"ds_read_b64_tr_b16 {vr(vBq[nt],2)}, v12 offset:{64*nt}")
    c("epilogue thread = (node tid>>2, chunks c and c+4): output offset, row address, residual operand")
    e("v_lshrrev_b32 v13, 2, v0")
    e("v_and_b32 v14, 3, v0")
    e(f"v_add_u32 v{vOut}, s{sBase}, v13")
    e(f"v_lshlrev_b32 v{vOut}, 7, v{vOut}")
    e(f"v_lshl_add_u32 v{vOut}, v14, 4, v{vOut}")
    e(f"buffer_load_dwordx4 {vr(vXo,4)}, v{vOut}, {sr(sXr,4)}, 0 offen")
    e(f"buffer_load_dwordx4 {vr(vXo+4,4)}, v{vOut}, {sr(sXr,4)}, 0 offen offset:64")
    e(f"v_mul_u32_u24 v{vRow}, {RST}, v13")
    e(f"v_lshl_add_u32 v{vRow}, v14, 7, v{vRow}")
    e(f"v_add_u32 v{vRow}, {ROWS}, v{vRow}")
    e("v_lshrrev_b32 v15, 1, v14")
    e(f"v_lshl_add_u32 v{vRow}, v15, 6, v{vRow}")
    e("v_and_b32 v15, 7, v13")
    e("v_lshlrev_b32 v14, 1, v14")
    e("v_xor_b32 v14, v14, v15")
    e("v_lshlrev_b32 v14, 4, v14")
    e(f"v_lshl_add_u32 v{vTl}, v13, 8, v14")
    e(f"v_add_u32 v{vTl}, {UTMP}, v{vTl}")
    e(f"v_xor_b32 v31, 16, v{vTl}")
    e(f"s_mov_b32 s{sT0}, {f32(-LOG2E)}")
    e("s_waitcnt vmcnt(2)")
    pt('xo')
    for s_ in range(4):
        e(f"ds_read_b128 {vr(40+4*s_,4)}, v{24+s_}")
    e("s_waitcnt lgkmcnt(0)")
    for s_ in range(4):
        e(mfma(84, 192+4*s_, 40+4*s_, 84 if s_ else None))
    for s_ in range(4):
        e(mfma(112, 208+4*s_, 40+4*s_, 112 if s_ else None))
    e("s_nop 7")
    for r in range(16):
        e(f"v_mul_f32 v{84+r}, s{sT0}, v{84+r}")
    for r in range(8):
        e(f"v_cvt_pk_bf16_f32 v{72+r}, v{84+2*r}, v{85+2*r}")
    e(f"s_mov_b64 exec, {sr(sMore,2)}")
    for j in range(4):
        e(f"ds_write_b64 v8, {vr(72+2*j,2)} offset:{ATAB+j*16}")
    e("s_mov_b64 exec, -1")
    c("U (f32) to its final owners through LDS: 16-byte chunk q of node n sits at n*256 + (q ^ (n&7))*16")
    e(f"s_lshr_b32 s{sT0}, s{sWave}, 1")
    e(f"s_lshl_b32 s{sT0}, s{sT0}, 5")
    e(f"s_and_b32 s{sT1}, s{sWave}, 1")
    e(f"s_lshl_b32 s{sT1}, s{sT1}, 3")
    e(f"v_add_u32 v13, s{sT0}, v67")
    e("s_movk_i32 s42, 112")
    e("v_cmp_gt_u32 vcc, s42, v13")
    e(f"v_and_b32 v14, 7, v{vLane}")
    e("v_xor_b32 v14, v14, v81")
    e(f"v_or_b32 v14, s{sT1}, v14")
    e("v_lshlrev_b32 v13, 8, v13")
    e(f"v_add_u32 v13, {UTMP}, v13")
    e("s_mov_b64 exec, vcc")
    for j in range(4):
        e(f"v_xor_b32 v15, {2*j}, v14")
        e("v_lshl_add_u32 v15, v15, 4, v13")
        e(f"ds_write_b128 v15, {vr(112+4*j,4)}")
    e("s_mov_b64 exec, -1")
    if not OPT['cz']:
        for r in range(16):
            e(f"v_mov_b32 v{vC+r}, {f32(-2.0*SC)}")
    e("K2_ROUND:")
    c("window offset (0xffff = lane outside the window)")
    e(f"v_and_b32 v67, 15, v{vLane}")
    e("v_mul_u32_u24 v67, 12, v67")
    e(f"v_cmp_gt_u32 vcc, s{sLW}, v67")
    e(f"v_add_u32 v66, s{sJ0}, v67")
    e("v_lshrrev_b32 v68, 4, v0")
    e(f"s_mov_b32 s{sT0}, {8*CHB}")
    e(f"v_mul_u32_u24 v68, s{sT0}, v68")
    e("v_add3_u32 v68, v68, v66, -1")
    e("v_mov_b32 v69, 0xffff")
    e("v_cndmask_b32 v66, v69, v66, vcc")
    e("v_mov_b32 v71, 192")
    e("v_and_b32 v64, 0x1f0, v0")
    e("v_lshlrev_b32 v64, 6, v64")
    e(f"s_lshr_b32 s{sT0}, s2, 5")
    e(f"s_lshl_b32 s{sT0}, s{sT0}, 15")
    e(f"s_and_b32 s{sT1}, s2, 31")
    e(f"s_lshl_b32 s{sT1}, s{sT1}, 2")
    e(f"s_add_u32 s{sT0}, s{sT0}, s{sT1}")
    e(f"s_mov_b32 s{sCnt}, 0x40000")
    pt('poll')
    c("wait for the run tables of this wave's 32 producers")
    sd = "dst_sel:DWORD dst_unused:UNUSED_PAD "
    vRa = 84
    for i in range(8):
        e(f"s_mov_b64 {sr(sMk+2*i,2)}, 0")
    e("K2_POLL:")
    for i in range(8):
        e(f"buffer_load_dword v{vTe+i}, v64, {sr(sWs,4)}, s{sT0} offen offset:{i*128} sc1")
    e("s_waitcnt vmcnt(0)")
    e(f"v_bitop3_b32 v69, v{vTe}, v{vTe+1}, v{vTe+2} bitop3:0x80")
    e(f"v_bitop3_b32 v70, v{vTe+3}, v{vTe+4}, v{vTe+5} bitop3:0x80")
    e(f"v_bitop3_b32 v69, v69, v{vTe+6}, v{vTe+7} bitop3:0x80")
    e(f"v_bitop3_b32 v69, v69, v70, 1 bitop3:0x80")
    e("v_cmp_eq_u32 s[76:77], 0, v69")
    pt('go')
    c("fetch the runs that have been published since the last look (a cleared word has count 0)")
    e(f"s_mov_b32 s{sT1}, {WS_REC}")
    for i in range(8):
        e(f"v_cmp_lt_u32_sdwa vcc, v66, v{vTe+i} src0_sel:DWORD src1_sel:WORD_1")
        e(f"v_add_u32_sdwa v{vRa+i}, v68, v{vTe+i} {sd}src0_sel:DWORD src1_sel:WORD_0")
        e(f"s_andn2_b64 exec, vcc, {sr(sMk+2*i,2)}")
        e(f"buffer_load_dwordx3 {vr(192+4*i,3)}, v{vRa+i}, {sr(sWs,4)}, s{sT1} offen sc1")
        e(f"s_mov_b64 {sr(sMk+2*i,2)}, vcc")
        e("s_mov_b64 exec, -1")
        if i < 7:
            e(f"s_add_u32 s{sT1}, s{sT1}, {CHB}")
    e("s_cmp_eq_u64 s[76:77], 0")
    e("s_cbranch_scc1 K2_GO")
    e(f"s_sub_u32 s{sCnt}, s{sCnt}, 1")
    e("s_cbranch_scc1 K2_END")
    e(f"s_sleep {OPT['slp']}")
    e("s_branch K2_POLL")
    e("K2_GO:")
    c("records past the 16th of a run: packed per 16-lane group into two more slots")
    def ovf(vj, extra):
        e("v_mov_b32 v72, 0")
        e("v_mov_b32 v73, 0")
        for i in range(8):
            e(f"v_sub_u32_sdwa v69, v{vTe+i}, v71 clamp {sd}src0_sel:WORD_1 src1_sel:DWORD")
            e(f"v_add_u32 v74, v{vj}, v72")
            e(f"s_mov_b32 s{sT0}, {192+extra+i*CHB}")
            e("v_cmp_lt_u32 vcc, v74, v69")
            e(f"v_add3_u32 v75, v{vRa+i}, v72, s{sT0}")
            e("v_sub_u32 v72, v72, v69")
            e("v_cndmask_b32 v73, v73, v75, vcc")
    ovf(67, 0)
    e("v_add_u32 v74, v67, v72")
    e("v_add_u32 v75, 192, v74")
    e("v_add_u32 v69, 384, v72")
    e(f"v_cmp_gt_i32 {sr(sMk+16,2)}, 0, v74")
    e(f"v_cmp_gt_i32 {sr(sMk+18,2)}, 0, v75")
    e("v_cmp_gt_i32 s[76:77], 0, v69")
    e(f"v_max3_u32 v69, v{vTe}, v{vTe+1}, v{vTe+2}")
    e(f"v_max3_u32 v70, v{vTe+3}, v{vTe+4}, v{vTe+5}")
    e(f"v_max3_u32 v69, v69, v{vTe+6}, v{vTe+7}")
    e("v_max_u32 v69, v69, v70")
    e(f"s_add_u32 s{sT1}, s{sJ0}, s{sLW}")
    e(f"s_lshl_b32 s{sT1}, s{sT1}, 16")
    e(f"s_or_b32 s{sT1}, s{sT1}, 0xffff")
    e(f"v_cmp_lt_u32 vcc, s{sT1}, v69")
    e(f"s_mov_b32 s{sCnt}, {WS_REC}")
    e(f"s_cmp_eq_u32 s{sLW}, 384")
    e(f"s_cselect_b64 {sr(sMk+16,2)}, {sr(sMk+16,2)}, 0")
    e(f"s_cselect_b64 {sr(sMk+18,2)}, {sr(sMk+18,2)}, 0")
    e("s_cselect_b64 s[76:77], s[76:77], vcc")
    e(f"s_mov_b64 exec, {sr(sMk+16,2)}")
    e(f"buffer_load_dwordx3 v[224:226], v73, {sr(sWs,4)}, s{sCnt} offen sc1")
    e("s_mov_b64 exec, -1")
    e(f"s_cmp_lg_u64 {sr(sMk+18,2)}, 0")
    e("s_cbranch_scc1 K2_OVF2")
    e("K2_OVFD:")
    e("v_mov_b32 v66, 4")
    e("v_mov_b32 v67, 0")
    e("s_mov_b64 exec, s[76:77]")
    e(f"ds_write_b32 v67, v66 offset:{MORE}")
    e("s_mov_b64 exec, -1")
    for r in range(16):
        e(f"v_mov_b32 v{vAcc+r}, 0")
    c("scan / meta lane constants while the records are in flight")
    e(f"v_lshl_add_u32 v8, v{vLane}, 1, s{sBase}")
    e("v_add_u32 v9, 1, v8")
    e("v_and_b32 v8, 127, v8")
    e("v_and_b32 v9, 127, v9")
    e("v_lshlrev_b32 v8, 2, v8")
    e("v_lshlrev_b32 v9, 2, v9")
    e(f"s_add_u32 s{sT0}, s{sNN}, 7")
    e(f"v_lshlrev_b32 v10, 1, v{vLane}")
    e("v_add_u32 v11, 1, v10")
    e(f"v_cmp_gt_u32 vcc, s{sT0}, v10")
    e(f"v_cmp_gt_u32 s[76:77], s{sT0}, v11")
    e("v_lshrrev_b32 v12, 2, v0")
    e("v_cndmask_b32 v10, 0, 16, vcc")
    e("v_cndmask_b32 v11, 0, 16, s[76:77]")
    e(f"v_cmp_gt_u32 vcc, s{sT0}, v12")
    e(f"v_cmp_gt_u32 s[76:77], s{sNN}, v12")
    e(f"v_add_u32 v13, s{sBase}, v12")
    e("v_cndmask_b32 v14, 0, 16, vcc")
    e("v_and_b32 v13, 127, v13")
    e("v_lshlrev_b32 v13, 2, v13")
    e(f"v_mul_u32_u24 v15, {AST + (RST//16 << 16)}, v12")
    e(f"v_mov_b32 v64, {NOROW:#x}")
    e("v_cndmask_b32 v15, v64, v15, s[76:77]")
    e(f"s_mul_i32 s{sT0}, s{sWave}, 640")
    e(f"v_add_u32 v64, s{sT0}, v{vLane}")
    e(f"s_mov_b32 s{sEr}, {ER}")
    e(f"v_lshl_add_u32 v65, v64, 3, s{sEr}")
    e("v_lshlrev_b32 v64, 16, v64")
    e(f"s_mov_b32 s{sT0}, 0xffff")
    for j in range(4):
        e(f"v_mov_b32 v{vN+j}, 0")
        e(f"v_mov_b32 v{vP+j}, 1.0")
        e(f"v_mov_b32 v{24+j}, 1.0")
    c("lanes without a record: harmless table address, out-of-range position")
    for q in range(10):
        e(f"v_mov_b32 v{112+q}, 0")
        e(f"v_mov_b32 v{195+4*q}, 0x100000")
    if OPT['pfb']:
        e(f"s_and_b32 s{sT2}, s2, 31")
        e(f"s_mul_i32 s{sT2}, s{sT2}, 782")
        e(f"s_mul_i32 s{sT1}, s{sWave}, {OPT['pfb']}")
        e(f"s_add_u32 s{sT2}, s{sT2}, s{sT1}")
        e(f"v_add_lshl_u32 v255, v{vLane}, s{sT2}, 7")
        e(f"v_cmp_gt_u32 vcc, {OPT['pfb']}, v{vLane}")
        e("v_mov_b32 v254, -16")
        e(f"v_mov_b32 v70, {PADV:#x}")
        e("v_cndmask_b32 v255, v254, v255, vcc")
    for q in range(10):
        r = 192 + 4 * q
        e(f"s_mov_b64 exec, {sr(sMk+2*q,2)}")
        if q < 9: e(f"s_waitcnt vmcnt({8-q})")
        e(f"v_lshrrev_b32 v{112+q}, 16, v{r+2}")
        e(f"ds_add_rtn_u32 v{r+3}, v{112+q}, v66 offset:{CNT}")
        e(f"ds_write_b64 v65, {vr(r,2)} offset:{512*q}")
        e(f"v_and_or_b32 v{r+2}, v{r+2}, s{sT0}, v64")
        if q: e(f"v_add_u32 v{r+2}, {q<<22:#x}, v{r+2}")
    e("s_mov_b64 exec, -1")
    e("s_waitcnt lgkmcnt(0)")
    e("s_barrier")
    pt('hist')
    c("---- scan (every wave, redundantly) ----")
    e(f"ds_read_b32 v64, v8 offset:{CNT}")
    e(f"ds_read_b32 v65, v9 offset:{CNT}")
    e(f"ds_read_b32 v68, v67 offset:{MORE}")
    if OPT['pfb']:
        e(f"buffer_load_dword v255, v255, {sr(sXr,4)}, 0 offen")
    e("s_waitcnt lgkmcnt(1)")
    e(f"s_cmp_eq_u32 s{sFirst}, 0")
    e("s_cbranch_scc1 K2_NOU")
    for it in range(2):
        e(f"ds_read_b128 {vr(vV+8*it,4)}, v{vTl} offset:{128*it}")
        e(f"ds_read_b128 {vr(vV+8*it+4,4)}, v31 offset:{128*it}")
    e("K2_NOU:")
    e("v_add_u32 v69, 15, v64")
    e("v_add_u32 v70, 15, v65")
    e("v_and_b32 v69, -16, v69")
    e("v_and_b32 v70, -16, v70")
    e("v_max_u32 v69, v69, v10")
    e("v_max_u32 v70, v70, v11")
    e("v_add_u32 v71, v69, v70")
    e("v_mov_b32 v72, v71")
    scan64(72)
    e("v_sub_u32 v73, v72, v71")
    e("v_add_u32 v74, v73, v69")
    e(f"v_readlane_b32 s{sQt}, v72, 63")
    e("v_lshl_or_b32 v64, v64, 16, v73")
    e("v_lshl_or_b32 v65, v65, 16, v74")
    e(f"ds_write_b32 v8, v64 offset:{BI}")
    e(f"ds_write_b32 v9, v65 offset:{BI}")
    e("v_max_u32 v69, v69, v70")
    e(f"s_lshr_b32 s{sTt}, s{sQt}, 7")
    pt('s1')
    e(f"ds_read_b32 v64, v13 offset:{BI}")
    for q in range(10):
        e(f"ds_read_u16 v{112+q}, v{112+q} offset:{BI}")
    e(f"s_lshr_b32 s{sT0}, s{sTt}, 3")
    e(f"s_and_b32 s{sT1}, s{sTt}, 7")
    e(f"s_lshl_b32 s{sT2}, s{sT0}, 4")
    e(f"s_add_u32 s{sCnt}, s{sT2}, 16")
    e(f"v_cmp_lt_u32 vcc, s{sCnt}, v69")
    e(f"s_add_u32 s{sCnt}, s{sCnt}, s{sT2}")
    e(f"v_cmp_lt_u32 s[76:77], s{sCnt}, v69")
    e(f"s_mul_i32 s{sQw}, s{sT0}, s{sWave}")
    e(f"s_min_u32 s{sT2}, s{sT1}, s{sWave}")
    e(f"s_add_u32 s{sQw}, s{sQw}, s{sT2}")
    e(f"s_lshl_b32 s{sQw}, s{sQw}, 3")
    e(f"s_cmp_lt_u32 s{sWave}, s{sT1}")
    e(f"s_addc_u32 s{sNT}, s{sT0}, 0")
    e("s_cmp_lg_u64 vcc, 0")
    e(f"s_cselect_b32 s{sBig}, 1, 0")
    e("s_cmp_lg_u64 s[76:77], 0")
    e(f"s_cselect_b32 s{sBig}, 2, s{sBig}")
    c("column of (half h, register group j) = 4h + j, one quad per tile")
    e(f"v_bfe_u32 v66, v{vLane}, 3, 1")
    e(f"v_lshrrev_b32 v69, 4, v{vLane}")
    e("v_lshl_add_u32 v66, v66, 2, v69")
    e(f"v_mul_u32_u24 v66, s{sNT}, v66")
    e(f"v_add_lshl_u32 v{vIxA}, v66, s{sQw}, 4")
    e(f"s_mov_b32 m0, s{sStg}")
    e(f"s_mov_b32 s{sDum}, {0 if OPT['xf'] else NOROW:#x}")
    e("s_waitcnt lgkmcnt(13)")
    e(f"v_readfirstlane_b32 s{sMore}, v68")
    e(f"s_cmp_gt_u32 s{sQt}, {CAP*4}")
    e(f"s_cselect_b32 s{sT0}, 1, s{sMore}")
    e(f"s_cmp_eq_u32 s{sLW}, 384")
    e(f"s_cselect_b32 s{sT0}, s{sT0}, 0")
    e(f"s_cmp_lg_u32 s{sT0}, 0")
    e("s_cbranch_scc1 K2_FAIL")
    c("---- scatter index words ----")
    for q in range(10):
        r = 192 + 4 * q
        if q % 5 == 0: e("s_waitcnt lgkmcnt(5)")
        e(f"v_add_u32 v{112+q}, v{112+q}, v{r+3}")
        e(f"ds_write_b32 v{112+q}, v{r+2} offset:{M4}")
    c("pads")
    e("v_and_b32 v65, 3, v0")
    e(f"v_mov_b32 v70, {PADV:#x}")
    e("v_lshrrev_b32 v68, 16, v64")
    e("v_and_b32 v64, 0xffff, v64")
    e("v_add_u32 v74, 15, v68")
    e("v_and_b32 v74, -16, v74")
    e("v_max_u32 v74, v74, v14")
    e("v_lshl_add_u32 v68, v65, 2, v68")
    e("v_cmp_lt_u32 vcc, v68, v74")
    e("v_add_u32 v68, v68, v64")
    e("s_mov_b64 exec, vcc")
    e(f"ds_write_b32 v68, v70 offset:{M4}")
    e("s_mov_b64 exec, -1")
    pt('s3')
    e("s_waitcnt lgkmcnt(0)")
    e("s_barrier")
    pt('scat')
    for x in rd_idx(): e(x)
    e(f"v_add_u32 v{vIxA}, 16, v{vIxA}")
    c("quad words: thread = (node, k0)")
    e("v_lshrrev_b32 v69, 4, v74")
    e("v_lshrrev_b32 v64, 4, v64")
    e("v_add_lshl_u32 v68, v64, v65, 2")
    e("v_add_u32 v70, -1, v69")
    e(f"v_or_b32 v71, {NONLAST:#x}, v15")
    def blk_dma():
        for x in mads() + dma() + rd_idx(): e(x)
        e(f"v_add_u32 v{vIxA}, 16, v{vIxA}")
    def blk_qm(t):
        e(f"s_mov_b32 s{sT1}, {ROWS+512}")
        e(f"v_mad_u32_u16 v72, v15, 16, s{sT1} op_sel:[1,0,0,0]")
        e("v_mov_b32 v73, 0x100000")
        e(f"v_mov_b32 v75, {EPSR}")
        e("ds_write2_b32 v72, v75, v73 offset0:0 offset1:1")
        eps = f32(1e-6 * 2.0**(2*SC))
        e(f"s_cmp_lg_u32 s{sFirst}, 0")
        e(f"s_cselect_b32 s{sEps}, {eps}, 0")
        e(f"v_lshl_add_u32 v72, v{vLane}, 3, v75")
        e(f"v_mov_b32 v73, s{sEps}")
        e("ds_write2_b32 v72, v73, v67 offset0:0 offset1:1")
        for u in range(3):
            e("v_cmp_lt_u32 vcc, v65, v69")
            e("v_cmp_eq_u32 s[76:77], v65, v70")
            e("s_and_b64 exec, exec, vcc")
            e("v_add_u32 v65, 4, v65")
            e("v_cndmask_b32 v72, v71, v15, s[76:77]")
            e(f"ds_write_b32 v68, v72 offset:{QA+16*u}")
        e(f"K2_QM{t}:")
        e("v_cmp_lt_u32 vcc, v65, v69")
        e("v_cmp_eq_u32 s[76:77], v65, v70")
        e("s_and_b64 exec, exec, vcc")
        e(f"s_cbranch_execz K2_QMD{t}")
        e("v_add_u32 v65, 4, v65")
        e("v_cndmask_b32 v72, v71, v15, s[76:77]")
        e(f"ds_write_b32 v68, v72 offset:{QA+48}")
        e("v_add_u32 v68, 16, v68")
        e(f"s_branch K2_QM{t}")
        e(f"K2_QMD{t}:")
        e("s_mov_b64 exec, -1")
        e(f"v_lshrrev_b32 v66, 5, v{vLane}")
        e(f"v_bfe_u32 v69, v{vLane}, 2, 2")
        e("v_lshl_add_u32 v66, v66, 2, v69")
        e(f"v_mul_u32_u24 v66, s{sNT}, v66")
        e(f"v_add_lshl_u32 v{vQaA}, v66, s{sQw}, 2")
        e(f"v_bfe_u32 v8, v{vLane}, 2, 1")
        e(f"v_bfe_u32 v9, v{vLane}, 3, 2")
        e("v_lshl_add_u32 v8, v8, 2, v9")
        e(f"v_mul_u32_u24 v8, s{sNT}, v8")
        e(f"v_add_lshl_u32 v8, v8, s{sQw}, 2")
        e(f"v_and_or_b32 v8, v{vLane}, 3, v8")
        e(f"v_lshlrev_b32 v{vAqA}, 2, v8")
        e("s_waitcnt lgkmcnt(0)")
    e(f"s_cmp_ge_u32 s{sWave}, 4")
    e("s_cbranch_scc1 K2_ORD_B")
    e("s_waitcnt lgkmcnt(0)")
    blk_dma(); blk_qm('a')
    e("s_barrier")
    e("s_branch K2_ORD_J")
    e("K2_ORD_B:")
    blk_qm('b')
    e("s_barrier")
    blk_dma()
    e("K2_ORD_J:")
    pt('meta')
    for x in rd_qa() + rd_mr(0): e(x)
    e(f"ds_read_b32 v{vWK}, v{vQaA} offset:{QA}")
    e(f"v_add_u32 v{vQaA}, 4, v{vQaA}")
    e(f"s_cmp_eq_u32 s{sFirst}, 0")
    e(f"s_cbranch_scc1 K2_NOV")
    for r in range(8):
        e(f"v_lshlrev_b32 v8, 16, v{vXo+r}")
        e(f"v_and_b32 v9, 0xffff0000, v{vXo+r}")
        e(f"v_add_f32 v{vV+2*r}, v{vV+2*r}, v8")
        e(f"v_add_f32 v{vV+2*r+1}, v{vV+2*r+1}, v9")
    e(f"K2_NOV:")
    e("s_waitcnt lgkmcnt(0)")
    e(AQV); e(AEV)
    e(f"v_and_b32 v{vWK}, 0x3fffffff, v{vWK}")
    for x in rd_bq(0) + rd_bq(1) + rd_aq() + rd_qa() + rd_mr(16): e(x)
    for r in range(8, 16):
        e(f"v_mov_b32 v{r}, 0")
    for j in range(4):
        e(f"v_mov_b32 v{vS+j}, 0")
    for j in range(4):
        e(f"v_mov_b32_dpp v{RP[j]}, v{vWK} row_newbcast:{4*j} row_mask:0xf bank_mask:0xf")
    for j in range(4):
        e(f"v_mad_u32_u16 v{RP[j]}, v{RP[j]}, 16, v{vN16} op_sel:[1,0,0,0]")
    e(f"v_mov_b32 v{vWK}, {NOROW:#x}")
    e(f"v_lshrrev_b32 v{vWK+3}, 5, v{vLane}")
    e(f"v_mul_u32_u24 v{vWK+3}, {4*RST}, v{vWK+3}")
    e(f"v_add_u32 v{vWK+3}, s{sStg}, v{vWK+3}")
    e(f"v_bfe_u32 v{vWK+5}, v{vLane}, 2, 2")
    e(f"v_mul_u32_u24 v{vWK+5}, {RST}, v{vWK+5}")
    e(f"v_add_u32 v{vWK+5}, v{vWK+5}, v{vWK+3}")
    e(f"v_add_u32 v{vWK+3}, v{vWK+3}, v{vN16}")
    e(f"v_subrev_u32 v{vWK+3}, {ROWS}, v{vWK+3}")
    e("v_lshrrev_b32 v19, 2, v0")
    e(f"v_cmp_gt_u32 s[78:79], s{sNN}, v19")
    e(f"v_mul_u32_u24 v19, {RST}, v19")
    e(f"v_add_u32 v19, {ROWS}, v19")
    e("v_and_b32 v31, 2, v0")
    e("v_lshlrev_b32 v31, 6, v31")
    e(f"v_sub_u32 v31, v{vRow}, v31")
    for x in mads(): e(x)
    e(f"v_add_u32 v{vAqA}, 16, v{vAqA}")
    e(f"s_mov_b32 s{sCnt}, s{sNT}")
    e("s_waitcnt vmcnt(0)")
    pt('f4')
    for x in rd_x(): e(x)
    e(f"s_cmp_eq_u32 s{sNT}, 0")
    e("s_cbranch_scc1 K2_DRAIN")
    ms = mfmas(0); dm = dma()
    e("s_waitcnt lgkmcnt(4)")
    e(ms[0])
    e("s_waitcnt lgkmcnt(0)")
    for k in range(1, 9):
        e(ms[k])
        if k <= 4: e(dm[k-1])
        if k == 5: e(rd_idx()[0])
    e("s_waitcnt lgkmcnt(0)")
    e("s_nop 3")
    if not OPT['tl']: stamp(6)
    if OPT['role']:
        role_loops()
    else:
        e(".p2align 6")
        e("K2_LOOP:")
        loop_body()
    e("K2_DRAIN:")
    e("s_setprio 0")
    for x in rcps(): e(x)
    for x in cmps(): e(x)
    e(f"v_cmp_gt_i32 s[76:77], 0, v{vWK}")
    e(f"v_and_b32 v30, 0x3fffffff, v{vWK}")
    e(f"s_mov_b32 s{sT1}, {ROWS+512}")
    e(f"v_mad_u32_u16 v{vWK+4}, v30, 16, s{sT1} op_sel:[1,0,0,0]")
    e(f"s_lshl_b32 s{sT1}, s{sBig}, 2")
    e(f"v_and_or_b32 v{vWK+4}, v{vLane}, s{sT1}, v{vWK+4}")
    for x in chain(1): e(x)
    for x in mwrites(False): e(x)
    stamp(7)
    c("---- tails ----")
    e(f"s_cmp_eq_u32 s{sBig}, 2")
    e("s_cbranch_scc1 K2_TAILAT")
    c("park the tails in this wave's staging area and leave a pointer in the node's row")
    e(f"s_cmp_eq_u32 s{sBig}, 0")
    e(f"s_cselect_b32 s{sT2}, s{sEps}, 0")
    e("s_waitcnt vmcnt(0)")
    for j in range(4):
        for nt in range(2):
            e(f"v_add_f32 v{acc(nt,j)}, s{sT2 if j%2 else sEps}, v{acc(nt,j)}")
        e(f"ds_write_b128 v{vWK+3}, {vr(vAcc+4*j,4)} offset:{RST*j}")
    e("s_mov_b64 exec, s[76:77]")
    e(f"ds_write_b32 v{vWK+4}, v{vWK+5}")
    e("K2_TAILD:")
    e("s_mov_b64 exec, -1")
    c("---- epilogue ----")
    e(f"s_mov_b32 s{sT2}, 0x100000")
    e(f"v_sub_u32 v13, v{vRow}, v19")
    e("v_sub_u32 v14, v31, v19")
    e(f"s_cmp_eq_u32 s{sMore}, 0")
    e(f"s_cselect_b32 s{sT1}, s{sFirst}, 0")
    e(f"s_cmp_eq_u32 s{sBig}, 1")
    e("s_waitcnt lgkmcnt(0)")
    pt('e1')
    e("s_barrier")
    pt('e2')
    e("s_mov_b64 exec, s[78:79]")
    e("s_cbranch_execz K2_TAIL2D")
    e("ds_read_b64 v[10:11], v19 offset:512")
    for k in range(8):
        e(f"ds_read_b128 {vr(192+4*k,4)}, v{vRow if k<4 else 31} offset:{16*k}")
    e("s_waitcnt lgkmcnt(8)")
    def add_tail(p):
        e(f"v_cmp_gt_u32 vcc, s{sT2}, v{p}")
        e(f"v_add_u32 v12, v13, v{p}")
        e(f"v_add_u32 v15, v14, v{p}")
        e("s_mov_b64 exec, vcc")
        for k in range(8):
            e(f"ds_read_b128 {vr(224+4*k,4)}, v{12 if k<4 else 15} offset:{16*k}")
        for k in range(8):
            e(f"s_waitcnt lgkmcnt({7-k})")
            e(f"v_pk_add_f32 {vr(192+4*k,2)}, {vr(192+4*k,2)}, {vr(224+4*k,2)}")
            e(f"v_pk_add_f32 {vr(194+4*k,2)}, {vr(194+4*k,2)}, {vr(226+4*k,2)}")
        e("s_mov_b64 exec, s[78:79]")
    add_tail(10)
    e("s_cbranch_scc1 K2_TAIL2")
    e("K2_TAIL2D:")
    pt('e4')
    e(f"s_cmp_eq_u32 s{sT1}, 0")
    e("s_cbranch_scc1 K2_SLOWTOT")
    e("K2_FIN:")
    e("s_mov_b64 exec, s[78:79]")
    e("s_cbranch_execz K2_DONE")
    pt('e3')
    for it in range(2):
        for k in range(8):
            e(f"v_rcp_f32 v{192+4*k+2*it}, v{192+4*k+2*it}")
        e("s_nop 0")
        for k in range(8):
            e(f"v_fmac_f32 v{vV+8*it+k}, v{192+4*k+2*it}, v{193+4*k+2*it}")
        for k in range(4):
            e(f"v_cvt_pk_bf16_f32 v{112+4*it+k}, v{vV+8*it+2*k}, v{vV+8*it+2*k+1}")
        c("x + relu(z) = max(x + z, x); bf16 patterns order like f16 patterns")
        for k in range(4):
            e(f"v_pk_max_f16 v{112+4*it+k}, v{112+4*it+k}, v{vXo+4*it+k}")
        e(f"buffer_store_dwordx4 {vr(112+4*it,4)}, v{vOut}, {sr(sOut,4)}, 0 offen offset:{64*it}" + FL[OPT['ost']])
    e("K2_DONE:")
    if OPT['stamp']:
        e("s_mov_b64 exec, -1")
        stamp(8)
        e("s_barrier")
        diag_out(1, 9, sWave, sWs, sNT)
    e("K2_END:")
    e("s_endpgm")
    flush_ool()
    c("---- wave 7, phase 1: ready count, scaled wb / wc rows, run table words ----")
    e("P1_W7A:")
    p1_scan()
    e(f"s_cmp_lt_u32 s3, {NCL}")
    e("s_cbranch_scc0 P1_NOF")
    e(f"s_lshl_b32 s{sT0}, s3, {2 if NCL<=64 else (1 if NCL==128 else 0)}")
    e("v_mov_b32 v76, 1")
    e("s_mov_b64 exec, 1")
    e("s_waitcnt vmcnt(0)")
    if OPT['cat']:
        e(f"buffer_atomic_add v76, v74, {sr(sWc,4)}, s{sT0} offen sc1")
    else:
        e(f"buffer_store_{'dword' if NCL<=64 else ('short' if NCL==128 else 'byte')} v76, v74, {sr(sWc,4)}, s{sT0} offen sc1")
    e("s_mov_b64 exec, -1")
    e("P1_NOF:")
    srd(68, 64, 512)
    e(f"buffer_load_dwordx4 v[224:227], v68, s[68:71], 0 offen")
    side_copies()
    if OPT['lc']: lane_consts()
    for i in range(4):
        e(f"v_lshl_or_b32 v{244+i}, v{240+i}, 16, v{244+i}")
        e(f"v_or_b32 v{244+i}, 1, v{244+i}")
    e("s_branch P1_J")
    e("P1_W7B:")
    mid(NR)
    scale8(224, 4)
    c("lanes 32..63 hold flag rows (0, R, 0, 0); lanes 0..31 the wc' rows")
    e(f"v_lshrrev_b32 v73, 3, v{vLane}")
    e("v_cmp_eq_u32 vcc, 5, v73")
    e(f"v_mov_b32 v72, {(RFLAG>>16)*0x10001:#x}")
    e(f"v_xor_b32 v73, 512, v68")
    for r in range(4):
        e(f"v_cndmask_b32 v{224+r}, v{224+r}, v72, vcc")
    if OPT['cz']:
        bz = struct.unpack("<I", struct.pack("<f", -2.0 * SC))[0] >> 16
        e("s_bfm_b64 exec, 8, 48")
        for r in range(4):
            e(f"v_mov_b32 v{224+r}, {bz*0x10001:#x}")
        e("s_mov_b64 exec, -1")
    e(f"v_add_u32 v73, {WCT}, v73")
    e("ds_write_b128 v73, v[224:227]")
    c("the whole table must have been cleared before anything is published or trusted")
    e(f"v_and_b32 v74, {min(NCL,64)-1}, v{vLane}")
    e("v_lshlrev_b32 v74, 2, v74")
    e(f"s_mov_b32 s{sCnt}, 0x40000")
    if OPT['ra']: e("s_waitcnt vmcnt(0)")
    e("P1_POLL:")
    e(f"buffer_load_dword v76, v74, {sr(sWc,4)}, 0 offen" + FL[OPT['pl_']])
    e("s_waitcnt vmcnt(0)")
    e(f"v_cmp_ne_u32 vcc, {1 if NCL<=64 else (0x10001 if NCL==128 else 0x01010101)}, v76")
    e(f"s_sub_u32 s{sCnt}, s{sCnt}, 1")
    e("s_cbranch_scc1 K2_END")
    e("s_cmp_eq_u64 vcc, 0")
    e("s_cbranch_scc1 P1_RDY")
    e("s_sleep 8")
    e("s_branch P1_POLL")
    c("---- rare paths ----")
    e("K2_OVF2:")
    e("v_add_u32 v70, 192, v67")
    ovf(70, 192)
    e(f"s_mov_b64 exec, {sr(sMk+18,2)}")
    e(f"buffer_load_dwordx3 v[228:230], v73, {sr(sWs,4)}, s{sCnt} offen sc1")
    e("s_mov_b64 exec, -1")
    e("s_waitcnt vmcnt(0)")
    e("s_branch K2_OVFD")
    e("K2_NEXT:")
    e("v_lshlrev_b32 v64, 2, v0")
    e("v_mov_b32 v66, 0")
    e("s_movk_i32 s42, 132")
    e("v_cmp_gt_u32 vcc, s42, v0")
    e("s_mov_b64 exec, vcc")
    e(f"ds_write_b32 v64, v66 offset:{CNT}")
    e("s_mov_b64 exec, -1")
    e("s_waitcnt lgkmcnt(0)")
    e("s_barrier")
    e("s_branch K2_ROUND")
    e("K2_TAIL2:")
    add_tail(11)
    e("s_branch K2_TAIL2D")
    e("K2_TAILAT:")
    e("s_waitcnt lgkmcnt(0)")
    e("s_barrier")
    for j in range(4):
        for y in expand(j, 76): e(y)
        for i in range(4):
            e(f"ds_add_f32 v{RP[j]}, v{vAcc+4*j+i} offset:{4*i}")
    e("s_branch K2_TAILD")
    e("K2_FAIL:")
    e(f"s_movk_i32 s{sLW}, 144")
    e("s_waitcnt vmcnt(0) lgkmcnt(0)")
    e("s_barrier")
    e("s_branch K2_NEXT")
    e("K2_SLOWTOT:")
    e("s_mov_b64 exec, -1")
    e("v_lshlrev_b32 v14, 7, v0")
    e(f"s_lshl_b32 s{sT1}, s2, 16")
    e(f"s_add_u32 s{sT1}, s{sT1}, {WS_TOT}")
    e("s_waitcnt lgkmcnt(0)")
    e(f"s_cmp_lg_u32 s{sFirst}, 0")
    e("s_cbranch_scc1 K2_ST1")
    for r in range(8):
        e(f"buffer_load_dwordx4 {vr(224+4*r,4)}, v14, {sr(sWs,4)}, s{sT1} offen offset:{16*r} sc1")
    e("s_waitcnt vmcnt(0)")
    for r in range(32):
        e(f"v_add_f32 v{192+r}, v{192+r}, v{224+r}")
    e(f"s_cmp_eq_u32 s{sMore}, 0")
    e("s_cbranch_scc1 K2_FIN")
    e("K2_ST1:")
    for r in range(8):
        e(f"buffer_store_dwordx4 {vr(192+4*r,4)}, v14, {sr(sWs,4)}, s{sT1} offen offset:{16*r} sc1")
    e(f"s_mov_b32 s{sFirst}, 0")
    e(f"s_add_u32 s{sJ0}, s{sJ0}, s{sLW}")
    e("s_waitcnt vmcnt(0)")
    e("s_barrier")
    e("s_branch K2_NEXT")

def hi_pure(nt, prio, first=(), after=0, wait=False):
    e(f"s_setprio {prio}")
    ms = mfmas(1 - nt); av = list(first) + avals(nt)
    tr = rcps() + exps(nt)
    per = (3, 3, 3, 3, 3, 3, 2, 2, 2); fl = [0, 0, 0, 0, 0, 0, 2, 2, 2]
    if wait:
        tr = exps(nt)[:4] + rcps() + exps(nt)[4:]
        av = avals(nt)[:1] + list(first) + avals(nt)[1:]
        per = (3, 3, 2, 3, 3, 3, 3, 2, 2); fl = [0, 0, 1, 0, 0, 0, 0, 2, 2]
    t = 0; f = 0
    for g in range(9):
        if wait and g == 3: e("s_waitcnt lgkmcnt(0)")
        e(ms[g])
        seq = [tr[t + i] for i in range(per[g])]; t += per[g]
        fs = [av[f + i] for i in range(fl[g])]; f += fl[g]
        while seq or fs:
            if seq: e(seq.pop(0))
            if fs: e(fs.pop(0))
    e(f"s_setprio {after}")
    assert f >= len(first)
    return av[f:]

def lo_part(nt, rest, adds):
    for y in list(rest) + chain(1 - nt) + list(adds) + frac(nt): e(y)

sEr = 42
sEps = 80
sWm = 68
sDum = 43
def cmps(): return [f"v_cmp_gt_u32 {sr(sWm,2)}, s{sDum}, v{vWK}"]
WL = [0]
RP = [65, 66, 70, 71]
def expand(j, sm):
    return [f"s_bfe_i32 exec_lo, s{sm}, {0x10000+4*j:#x}", f"s_bfe_i32 exec_hi, s{sm+1}, {0x10000+4*j:#x}"]
OOL = []
def flush_ool():
    for y in OOL: e(y)
    OOL.clear()
def mwrites(zero=True):
    WL[0] += 1; end = f"KE{WL[0]}"
    o = [f"s_or_b32 s{sWm+2}, s{sWm}, s{sWm+1}", f"s_cbranch_scc0 {end}"]
    for j in range(4):
        WL[0] += 1
        o += [f"s_bitcmp0_b32 s{sWm+2}, {4*j}", f"s_cbranch_scc1 KW{WL[0]}"] + expand(j, sWm) + [
              f"ds_write_b128 v{RP[j]}, {vr(vAcc+4*j,4)}"]
        if zero: o += [f"ds_read_b128 {vr(vAcc+4*j,4)}, v{vZa}", f"v_add_u32 v{RP[j]}, {RST}, v{RP[j]}"]
        o += [f"KW{WL[0]}:"]
    return o + ["s_mov_b64 exec, -1", f"{end}:"]

TL = [0]
def tl():
    if OPT['tl']:
        e(f"s_memtime {sr(44+2*TL[0],2)}"); TL[0] += 1
def tl_dump(lab):
    if not OPT['tl']: return
    n = TL[0]; TL[0] = 0
    e(f"s_cmp_lg_u32 s{sCnt}, {OPT['tl']}")
    e(f"s_cbranch_scc1 {lab}")
    e("s_waitcnt lgkmcnt(0)")
    for i in range(n):
        e(f"s_mov_b32 s{sSt+2+2*i}, s{44+2*i}")
    e(f"{lab}:")
def hi_last(prio, first, after):
    e(f"s_setprio {prio}")
    for y in rcps() + list(first) + exps(1): e(y)
    e(f"s_setprio {after}")
    return avals(1)

def role_loops():
    adds = [f"v_add_u32 v{vIxA}, 16, v{vIxA}", f"v_add_u32 v{vAqA}, 16, v{vAqA}", f"v_add_u32 v{vQaA}, 4, v{vQaA}"]
    cm = cmps()
    e(f"s_mov_b64 {sr(sWm,2)}, 0")
    e(f"s_cmp_ge_u32 s{sWave}, 4")
    e("s_cbranch_scc1 KB_LOOP")
    e("s_branch KA_ENTRY")
    e(f".p2align {OPT['al']}")
    for _ in range(OPT['pad']): e("s_nop 0")
    e("KA_LOOP:")
    tail = (cm + avals(1))[6:]
    e("s_waitcnt lgkmcnt(0)")
    lo_part(1, tail, adds)
    e("KA_ENTRY:")
    tl()
    r = hi_pure(0, OPT['pa'], mads() + [AEV, AQV])
    tl()
    if not OPT['xv'] & 2: e("s_waitcnt vmcnt(0)")
    for y in rd_x() + rd_aq() + rd_bq(0) + rd_bq(1): e(y)
    e(f"s_sub_u32 s{sCnt}, s{sCnt}, 1")
    e(f"s_cmp_eq_u32 s{sCnt}, 0")
    e("s_waitcnt lgkmcnt(4)")
    for y in dma(): e(y)
    e("s_waitcnt lgkmcnt(0)")
    tl()
    lo_part(0, r, [])
    e("s_cbranch_scc1 KA_LAST")
    tl()
    hi_pure(1, OPT['pa'], cm, OPT['pa'])
    L.pop()
    tl()
    for y in mwrites() + ["s_setprio 0"] + rd_wk() + rd_qa(4) + rd_idx(16) + rd_mr(16): e(y)
    tl()
    tl_dump("KA_TL")
    if OPT['trace']: trace_code()
    e("s_branch KA_LOOP")
    flush_ool()
    e("KA_LAST:")
    r = hi_last(OPT['pa'], cm, OPT['pa'])
    for y in mwrites() + ["s_setprio 0"] + rd_wk(): e(y)
    e("s_waitcnt lgkmcnt(0)")
    lo_part(1, r, [])
    e("s_branch K2_DRAIN")
    flush_ool()
    e(f".p2align {OPT['al']}")
    for _ in range(OPT['pad']): e("s_nop 0")
    e("KB_LOOP:")
    tl()
    r = hi_pure(0, OPT['pb'], mads() + [AEV, AQV], OPT['pl'])
    tl()
    lo_part(0, r, [])
    tl()
    if OPT['fo'] == 2:
        for y in mwrites() + rd_wk(): e(y)
        e(f"s_sub_u32 s{sCnt}, s{sCnt}, 1")
        e(f"s_cmp_eq_u32 s{sCnt}, 0")
        e("s_cbranch_scc1 KB_LAST")
        for y in rd_aq() + rd_bq(0): e(y)
        if not OPT['xv'] & 1: e("s_waitcnt vmcnt(0)")
        for y in rd_x(): e(y)
        e("s_waitcnt lgkmcnt(3)")
        tl()
        r = hi_pure(1, OPT['pb'], cm, OPT['pl'], True)
    else:
        e("s_waitcnt vmcnt(0)")
    if OPT['fo'] == 2:
        pass
    elif OPT['fo']:
        for y in rd_x() + rd_aq() + rd_bq(0): e(y)
        e(f"s_sub_u32 s{sCnt}, s{sCnt}, 1")
        e("s_waitcnt lgkmcnt(0)")
        if OPT['bd'] == 0:
            for y in dma(): e(y)
        for y in mwrites() + rd_wk(): e(y)
        e(f"s_cmp_eq_u32 s{sCnt}, 0")
        e("s_cbranch_scc1 KB_LAST")
        tl()
        r = hi_pure(1, OPT['pb'], ["s_waitcnt lgkmcnt(0)"] + cm, OPT['pl'])
    else:
        for y in rd_x() + rd_aq() + rd_bq(0) + mwrites() + rd_wk(): e(y)
        e(f"s_sub_u32 s{sCnt}, s{sCnt}, 1")
        e(f"s_cmp_eq_u32 s{sCnt}, 0")
        e("s_cbranch_scc1 KB_LAST")
        e("s_waitcnt lgkmcnt(0)")
        tl()
        r = hi_pure(1, OPT['pb'], cm, OPT['pl'])
    tl()
    lo_part(1, r, adds)
    tl()
    for y in (dma() if OPT['bd'] else []) + rd_bq(1) + rd_qa() + rd_mr(0) + rd_idx(): e(y)
    tl_dump("KB_TL")
    if OPT['trace']: trace_code()
    e("s_waitcnt lgkmcnt(0)")
    e("s_branch KB_LOOP")
    flush_ool()
    e("KB_LAST:")
    r = hi_last(OPT['pb'], [], OPT['pl'])
    e("s_waitcnt lgkmcnt(0)")
    lo_part(1, r, [])

def trace_code():
    e("s_memtime s[44:45]")
    e("s_memrealtime s[46:47]")
    e(f"s_lshl_b32 s48, s2, 3")
    e(f"s_add_u32 s48, s48, s{sWave}")
    e(f"s_lshl_b32 s48, s48, 4")
    e(f"s_add_u32 s48, s48, s{sCnt}")
    e(f"s_lshl_b32 s48, s48, 3")
    e(f"s_add_u32 s48, s48, {WS_DIAG+0x80000}")
    e("s_waitcnt lgkmcnt(0)")
    e("v_mov_b32 v30, s44")
    e("v_mov_b32 v68, 0")
    e("s_mov_b64 exec, 1")
    e(f"buffer_store_dword v30, v68, {sr(sWs,4)}, s48 offen")
    e("s_mov_b64 exec, -1")

def loop_body():
    global L
    n0 = len(L)
    loop_body0()
    k = OPT['kill']
    body = L[n0:]; del L[n0:]
    for l in body:
        t = l.strip()
        if k & 1 and t.startswith('ds_read'): continue
        if k & 2 and t.startswith('ds_write'): continue
        if k & 4 and t.startswith('buffer_load'): continue
        if k & 8 and t.startswith('s_waitcnt') and not OPT['trace']: continue
        if k & 16 and t.startswith('v_add_u32'): continue
        if k & 32 and t.startswith('v_fmaak'): l = l.replace('v_fmaak_f32','v_mul_f32').rsplit(',',1)[0]
        if k & 64 and t.startswith('v_fma_f32'): l = l.replace('v_fma_f32','v_mul_f32').rsplit(',',1)[0]
        if k & 128 and t.startswith('v_and_b32'): continue
        L.append(l)
def loop_body0():
    e("s_setprio 1")
    ex = [[] for _ in range(9)]
    x = rd_x(); md = mads()
    ex[0] = rd_aq() + rd_bq(0)
    ex[1] = rd_bq(1) + ["s_waitcnt vmcnt(0)"]
    ex[2] = [x[0]]
    ex[4] = [x[1]]
    ex[5] = md[:2]
    ex[6] = [x[2]]
    ex[7] = md[2:]
    ex[8] = [x[3]]
    hi_phase(mfmas(1), rcps() + exps(0), ex)
    e("s_setprio 0")
    for y in mix(chain(1), avals(0)): e(y)
    e(f"v_add_u32 v{vIxA}, 64, v{vIxA}")
    e(f"v_add_u32 v{vAqA}, v{vAqA}, v{vAqI}")
    for y in frac(0): e(y)
    e("s_setprio 1")
    e("s_waitcnt lgkmcnt(0)")
    ex = [[] for _ in range(9)]
    w = writes(); d = dma(); wk = rd_wk()
    ex[0] = [d[0], w[0]]; ex[1] = [d[1], w[1]]; ex[2] = [d[2], w[2]]
    ex[4] = [d[3], w[3]]; ex[5] = wk; ex[7] = rd_qa() + [f"s_sub_u32 s{sCnt}, s{sCnt}, 1"]; ex[8] = rd_idx()
    hi_phase(mfmas(0), rcps() + exps(1), ex)
    e("s_setprio 0")
    av = avals(1)
    for y in av[:8]: e(y)
    e("s_waitcnt lgkmcnt(0)")
    for y in mix(chain(0), av[8:]): e(y)
    for j in range(4):
        e(f"v_add_u32 v{vWK+2*j}, v{vWK+2*j}, v{vN16}")
    e(f"v_add_u32 v{vWkA}, 32, v{vWkA}")
    e(f"v_add_u32 v{vQaV}, v{vQaV}, v{vQaC}")
    e(f"v_add_u32 v{vQaA}, 16, v{vQaA}")
    for y in frac(1): e(y)
    if OPT['trace']: trace_code()
    e(f"s_cmp_lg_u32 s{sCnt}, 0")
    e("s_cbranch_scc1 K2_LOOP")

def kd(name, vg, sg):
    L.extend([f".amdhsa_kernel {name}",
              f"  .amdhsa_next_free_vgpr {vg}",
              f"  .amdhsa_next_free_sgpr {sg}",
              f"  .amdhsa_accum_offset {(vg+3)//4*4}",
              "  .amdhsa_group_segment_fixed_size 0",
              "  .amdhsa_kernarg_size 96",
              "  .amdhsa_user_sgpr_count 2",
              "  .amdhsa_user_sgpr_kernarg_segment_ptr 1",
              "  .amdhsa_system_sgpr_workgroup_id_x 1",
              ".end_amdhsa_kernel"])

hdr = open("cdna_kernels/%s.s.ref" % NAME).read().split("\n")
for l in hdr:
    if l.startswith("; Override") : break
    L.append(l)
if OPT['lst']:
    L.append(f"; @launch kernel={NAME}_kernel grid=(256,1,1) block=(512,1,1) lds={K2_LDS}")
else:
    L.append(f"; @launch grid=(256,1,1) block=(512,1,1) lds={K2_LDS}")
L.append('.amdgcn_target "amdgcn-amd-amdhsa--gfx950"')
L.append(".text")
L.append(f".globl {NAME}_kernel")
L.append(f".type {NAME}_kernel,@function")
sSt = 82
for i, n in enumerate(OPT.get('pts', 'b2,b3,b4,go,hist').split(',')): PTS[n] = i + 1
k2()
L.append("K2_CODE_END:")
L.append('.section .rodata,"a"')
L.append(".p2align 6")
kd(f"{NAME}_kernel", 256, 102)
open(sys.argv[1], "w").write("\n".join(L) + "\n")
print("K2_LDS", K2_LDS, "ATAB", ATAB, "STG", STG, "ROWS", ROWS)
```

```python
import sys, struct

NAME = "standalone__edge_featured_mpnn_gatedgcn__graph"
OPT = dict(stamp=0, trace=0, stf=1, ldf=3, sched=0, remap=1, nodefirst=0, kill=0, pf=1, h1=4, dbg=0, alt=0, alt2=0, slp=10, rt=0, ost=1, role=1, fill=14, pa=2, pb=1, pl=3, wf=1, tl=0, mw=1, bt=-1, fb=0, peel=1, pf7=0, pfa=0, pfb=16, skp=2, dl=1, qu=3, lat=0, tlb=0, tw=0, rs=1, rl=1, pl_=1, ps=1, ncl=64, cat=0, wofs=0, bal=4, sp=0, ra=0, cz=1, co=0, cpf=0, em=1, bo=0, prog=1, bw=1, b64=0, wsk=1, wa=1, bd=1, fo=2, tr=1, xf=0, xv=0, lc=1, hold=0, th=0, al=6, pad=0, e4=0, tg=4, tp=0, ty=2, xl=1, eb=0, lst=0)
for a in sys.argv[2:]:
    k, v = a.split('=')
    OPT[k] = int(v) if k != 'pts' else v

L = []
def e(s=""): L.append("    " + s if s and not s.endswith(":") else s)
def c(s): L.append("    ; " + s)
def f32(x): return "0x%08x" % struct.unpack("<I", struct.pack("<f", x))[0]
def vr(a, n): return f"v[{a}:{a+n-1}]"
def sr(a, n): return f"s[{a}:{a+n-1}]"
FL = ["", " sc1", " sc0 sc1", " nt", " sc1 nt", " sc0 sc1 nt"]

N = 25000; E = 800000
CH = 3136
CHB = CH * 12
BM = 171799
BK = 6399988
WS_T = 0
WS_IMG = 0x40000
WS_REC = 0x80000 + OPT['wofs'] * 0x100000
WS_AU = 0xA00000
WS_TOT = 0x1100000
WS_DIAG = 0x2F00000
WS_SIZE = 0x10000000
LOG2E = 1.4426950408889634
NODE_WGS = 196
RFLAG = 0x21800000
sSt = 82

def srd(d, b, size, stride=0):
    e(f"s_mov_b32 s{d}, s{b}")
    e(f"s_and_b32 s{d+1}, s{b+1}, 0xffff")
    if stride:
        e(f"s_or_b32 s{d+1}, s{d+1}, {stride<<16:#x}")
    e(f"s_mov_b32 s{d+2}, {size}")
    e(f"s_mov_b32 s{d+3}, 0x20000")

def scan64(v):
    for m in ("row_shr:1 row_mask:0xf", "row_shr:2 row_mask:0xf", "row_shr:4 row_mask:0xf",
              "row_shr:8 row_mask:0xf", "row_bcast:15 row_mask:0xa", "row_bcast:31 row_mask:0xc"):
        e("s_nop 1")
        e(f"v_add_u32_dpp v{v}, v{v}, v{v} {m} bank_mask:0xf")

PTS = {}
def pt(name):
    if name in PTS: stamp(PTS[name])
def stamp(i):
    if OPT['stamp']:
        e(f"{'s_memrealtime' if OPT['rt'] else 's_memtime'} {sr(sSt+2*i,2)}")
        if i == 0:
            e(f"s_memrealtime {sr(sSt+18,2)}")
def diag_out(kidx, nst, swave, ssrd, extra=None, vt=8):
    if OPT['dbg']:
        e("s_memrealtime s[42:43]")
        e("s_load_dwordx2 s[44:45], s[0:1], 80")
        e("s_waitcnt lgkmcnt(0)")
        e(f"s_cmp_lg_u32 s2, {OPT['dbg']}")
        e(f"s_cbranch_scc1 K{kidx+1}_END")
        e(f"s_cmp_lg_u32 s{swave}, 5")
        e(f"s_cbranch_scc1 K{kidx+1}_END")
        e(f"s_add_u32 s44, s44, {512*(1-kidx)}")
        e("s_addc_u32 s45, s45, 0")
        srd(48, 44, 64)
        e(f"v_mov_b32 v{vt}, 0")
        e("s_mov_b64 exec, 1")
        sel = [(2,3,5,6,8),(1,2,4,5,6,7,8)][kidx]
        o = [0, 7][kidx]
        e(f"v_mov_b32 v{vt+1}, s{sSt+18}")
        e(f"buffer_store_dword v{vt+1}, v{vt}, s[48:51], 0 offen offset:{4*o}")
        for n, i in enumerate(sel):
            e(f"s_sub_u32 s40, s{sSt+2*i}, s{sSt}")
            e(f"v_mov_b32 v{vt+1}, s40")
            e(f"buffer_store_dword v{vt+1}, v{vt}, s[48:51], 0 offen offset:{4*(o+1+n)}")
        e(f"v_mov_b32 v{vt+1}, s42")
        e(f"buffer_store_dword v{vt+1}, v{vt}, s[48:51], 0 offen offset:{4*(o+1+len(sel))}")
        return
    e("s_memrealtime s[42:43]")
    e("s_waitcnt lgkmcnt(0)")
    e(f"s_lshl_b32 s39, s2, 4")
    e(f"s_add_u32 s39, s39, s{swave}")
    e(f"s_lshl_b32 s39, s39, 6")
    e(f"s_add_u32 s39, s39, {WS_DIAG + kidx*0x40000}")
    e(f"v_mov_b32 v{vt}, 0")
    e("s_mov_b64 exec, 1")
    for i in range(1, nst):
        e(f"s_sub_u32 s40, s{sSt+2*i}, {'0' if OPT['rt']==2 or OPT['tl'] else 's%d' % sSt}")
        e(f"v_mov_b32 v{vt+1}, s40")
        e(f"buffer_store_dword v{vt+1}, v{vt}, {sr(ssrd,4)}, s39 offen offset:{4*(i-1)}")
    if extra is not None:
        e(f"v_mov_b32 v{vt+1}, s{extra}")
        e(f"buffer_store_dword v{vt+1}, v{vt}, {sr(ssrd,4)}, s39 offen offset:48")
    e("s_getreg_b32 s40, hwreg(HW_REG_HW_ID)")
    e(f"v_mov_b32 v{vt+1}, s40")
    e(f"buffer_store_dword v{vt+1}, v{vt}, {sr(ssrd,4)}, s39 offen offset:52")
    e(f"v_mov_b32 v{vt+1}, s{sSt+18}")
    e(f"buffer_store_dword v{vt+1}, v{vt}, {sr(ssrd,4)}, s39 offen offset:56")
    e(f"v_mov_b32 v{vt+1}, s42")
    e(f"buffer_store_dword v{vt+1}, v{vt}, {sr(ssrd,4)}, s39 offen offset:60")

def mfma(d, a, b, cc):
    cs = "0" if cc is None else vr(cc, 16)
    return f"v_mfma_f32_32x32x16_bf16 {vr(d,16)}, {vr(a,4)}, {vr(b,4)}, {cs}"

CAP = 3584
CNT = 0
MORE = 512
ZERO = 1056
BI = 528
M4 = 1280
QA = M4 + CAP * 4 + 64
AST = 136
RST = 528
ATAB = QA + (CAP // 4) * 4 + 64
ER = (ATAB + 98 * AST + 15) // 16 * 16
STG = (ER + 40960 + 255) // 256 * 256
SST = 4352
ROWS = STG + 8 * SST
EPSR = ROWS + 98 * RST
K2_LDS = EPSR + 512
WRAW = STG
XOWN = ROWS
WCT = ROWS + 16384
P_HIST = (WCT + 1024 + 1023) // 1024 * 1024
P_BASE = P_HIST + 1024
UTMP = P_BASE + 1024
P_STG = ER
NONLAST = 0x80000000; NOROW = 0x40000000
assert CHB <= 40960 and UTMP + 112 * 256 <= K2_LDS
assert ATAB % 8 == 0 and K2_LDS <= 160 * 1024 and ATAB < 65536, (K2_LDS, ATAB)
SC = 24
PADV = 0x7F007F00
RFLAG = 0x21800000

vW = 128; vD = [192, 224]; vX = 112; vBq = [104, 108]; vAq = 100; vAcc = 84
vS = 72; vN = 76; vP = 80; vWK = 64; vIdx = 56; vC = 40; vXo = 32; vV = 40; vRow = 28; vOut = 29; vTl = 30; vXa = 20
vLane = 1; vAqA = 2; vEa = 3; vIxA = 4; vQaA = 5; vQaV = 6; vQaC = 7
vZa = 16; vN16 = 17; vC1 = 18; vTail = 19
vTe = 240
sX = 4; sXr = 8; sWs = 12; sOut = 16; sWc = 20
sBase = 24; sNN = 25; sWave = 26; sJ0 = 27; sLW = 28; sFirst = 29; s128 = 30; sQt = 31; sTt = 32
sNT = 33; sQw = 34; sStg = 35; sMore = 36; sBig = 37; sCnt = 38; sT0 = 39; sT1 = 40; sT2 = 41
sMk = 44

def G(b): return vD[b]
def H(b): return vD[b] + 16
def Wg(nt, s): return vW + (nt * 4 + s) * 4
def Wh(nt, s): return vW + 32 + (nt * 4 + s) * 4
def mfmas(nt):
    g = G(nt); h = H(nt)
    first = [mfma(g, vAq, vBq[nt], None if OPT['cz'] else vC)]
    gs = [mfma(g, vX+4*k, Wg(nt,k), g) for k in range(4)]
    hs = [mfma(h, vX+4*k, Wh(nt,k), h if k else None) for k in range(4)]
    if OPT['co']: return first + gs + hs
    return first + [x for p in zip(hs, gs) for x in p]
def acc(nt, j): return vAcc + j * 4 + nt * 2
SS = [72, 73, 74, 75, 8, 9, 10, 11]; NN = [76, 77, 78, 79, 12, 13, 14, 15]; PP = [81, 82, 83, 80, 25, 26, 27, 24]
def chain(nt):
    o = []
    for hq in (0, 4):
        for j in range(4):
            a = acc(nt, j); q = hq + j
            o += [f"v_fmac_f32 v{a}, v{SS[q]}, v{PP[q]}", f"v_fmac_f32 v{a+1}, v{NN[q]}, v{PP[q]}"]
    return o
def avals(nt):
    g = G(nt)
    return [f"v_add_f32 v{g+r}, v{g+r}, v{vC1}" for r in range(16)]
def frac(nt):
    g = G(nt); h = H(nt); o = []
    R = range(8); f = lambda q: 4 * (q % 4) + 2 * (q // 4)
    o += [f"v_mul_f32 v{NN[q]}, v{h+f(q)}, v{g+f(q)+1}" for q in R]
    o += [f"v_add_f32 v{SS[q]}, v{g+f(q)}, v{g+f(q)+1}" for q in R]
    o += [f"v_mul_f32 v{PP[q]}, v{g+f(q)}, v{g+f(q)+1}" for q in R]
    o += [f"v_fmac_f32 v{NN[q]}, v{h+f(q)+1}, v{g+f(q)}" for q in R]
    return o
def mix(a, b):
    o = []; a = list(a); b = list(b)
    while a or b:
        if a: o += a[:2]; a = a[2:]
        if b: o += b[:2]; b = b[2:]
    return o
def exps(nt): return [f"v_exp_f32_e64 v{G(nt)+r}, v{G(nt)+r} clamp" for r in range(16)]
def rcps(): return [f"v_rcp_f32 v{p}, v{p}" for p in PP]
def rd_x(): return [f"ds_read_b128 {vr(vX+4*s,4)}, v{vXa+s}" for s in range(4)]
def rd_aq():
    return [f"ds_read_b32 v{vAq}, v{vAqA} offset:{M4}", "s_mov_b32 exec_lo, 0", f"ds_read_b64 {vr(vAq,2)}, v{vEa}", "s_mov_b32 exec_lo, -1"]
def rd_mr(ahead): return [f"ds_read_u16 v{vEa}, v{vAqA} offset:{M4+2+ahead}"]
AEV = f"v_lshl_add_u32 v{vEa}, v{vEa}, 3, s42"
def rd_idx(o=0): return [f"ds_read_b128 {vr(vIdx,4)}, v{vIxA} offset:{M4+o}"]
def mads(): return [f"v_mad_u32_u16 v{vIdx+i}, v{vIdx+i}, s{s128}, v{vIdx+4+i}" for i in range(4)]
def rd_qa(o=0): return [f"ds_read_u16 v{vQaV}, v{vQaA} offset:{QA+o}"]
AQV = f"v_add_u32 v{vQaV}, v{vQaV}, v{vQaC}"
def rd_bq(nt): return [f"ds_read_b64_tr_b16 {vr(vBq[nt]+2,2)}, v{vQaV} offset:{ATAB+64*nt}"]
def rd_wk(): return [f"ds_read_b32 v{vWK}, v{vQaA} offset:{QA-4}"]
def dma(): return [f"buffer_load_dwordx4 v{vIdx+i}, {sr(sX,4)}, 0 offen offset:{1024*i} lds" for i in range(4)]

def hi_phase(ms, trans, extras, per=(2, 2, 2, 3, 2, 2, 3, 2, 2)):
    t = 0
    for g in range(9):
        e(ms[g])
        for _ in range(per[g]):
            e(trans[t]); t += 1
        for x in extras[g]:
            e(x)
    assert t == 20

def side_consts():
    c("copy source addresses: v82 weights, v78/v79 own x rows")
    e(f"v_lshrrev_b32 v81, 5, v{vLane}")
    e(f"v_and_b32 v77, 7, v{vLane}")
    e("v_lshlrev_b32 v78, 2, v81")
    e("v_xor_b32 v77, v77, v78")
    e(f"v_and_b32 v82, 16, v{vLane}")
    e("v_lshlrev_b32 v82, 2, v82")
    e("v_xor_b32 v82, v68, v82")

def lane_consts():
    c("---- lane constants ----")
    e(f"v_and_b32 v67, 31, v{vLane}")
    e(f"v_bfe_u32 v70, v{vLane}, 2, 1")
    e(f"v_bfe_u32 v71, v{vLane}, 3, 2")
    e("v_and_b32 v72, 1, v71")
    e("v_lshlrev_b32 v72, 4, v72")
    e("v_mov_b32 v73, 0x3f80")
    e("v_cmp_eq_u32 vcc, v70, v81")
    e("v_lshlrev_b32 v72, v72, v73")
    e("v_cmp_gt_u32 s[42:43], 2, v71")
    e("v_cndmask_b32 v72, 0, v72, vcc")
    e(f"v_and_b32 v73, 3, v{vLane}")
    e(f"v_cndmask_b32 v{vAq+2}, 0, v72, s[42:43]")
    e(f"v_cndmask_b32 v{vAq+3}, v72, 0, s[42:43]")
    e(f"v_mov_b32 v{vAq+1}, 0x3f80")
    for i in range(4):
        e(f"v_xor_b32 v74, {i}, v77")
        e(f"v_lshlrev_b32 v74, 4, v74")
        e(f"v_add_u32 v{vIdx+4+i}, {3072-1024*i}, v74")
    e(f"v_bfe_u32 v74, v{vLane}, 2, 3")
    e(f"v_bfe_u32 v75, v{vLane}, 4, 1")
    e("v_lshl_add_u32 v72, v75, 2, v73")
    e("v_lshlrev_b32 v76, 10, v73")
    e("v_lshl_add_u32 v76, v74, 7, v76")
    e(f"v_add_u32 v76, s{sStg}, v76")
    e("v_xor_b32 v72, v72, v81")
    for s_ in range(4):
        e(f"v_xor_b32 v74, {2*s_}, v72")
        e(f"v_lshl_add_u32 v{vXa+s_}, v74, 4, v76")
    e(f"v_lshlrev_b32 v{vN16}, 2, v75")
    e(f"v_xor_b32 v{vN16}, v{vN16}, v67")
    e(f"v_lshlrev_b32 v{vN16}, 4, v{vN16}")
    e(f"v_add_u32 v{vN16}, {ROWS}, v{vN16}")
    e(f"v_mov_b32 v{vC1}, {f32(2.0**(-2*SC))}")
    e(f"v_mov_b32 v{vZa}, {ZERO}")
    e("v_lshlrev_b32 v73, 3, v73")
    e(f"v_lshl_add_u32 v{vQaC}, v75, 5, v73")
    c("setup addresses: v252 A table write, v249/v250/v251 transposed reads, v253 wc, v24..27 own x")
    e(f"s_and_b32 s{sT2}, s{sWave}, 1")
    e(f"s_lshr_b32 s{sT0}, s{sWave}, 1")
    e(f"s_lshl_b32 s{sT1}, s{sT0}, 5")
    e(f"v_add_u32 v252, s{sT1}, v67")
    e("v_mov_b32 v254, v252")
    e(f"v_mul_u32_u24 v252, {AST}, v252")
    e("v_lshl_add_u32 v252, v81, 3, v252")
    e(f"s_lshl_b32 s{sT2}, s{sT2}, 6")
    e(f"v_add_u32 v252, s{sT2}, v252")
    e(f"v_bfe_u32 v71, v{vLane}, 2, 2")
    e("v_lshl_add_u32 v253, v81, 2, v71")
    e(f"v_lshl_add_u32 v253, v253, 7, v{vQaC}")
    e(f"v_add_u32 v253, {WCT}, v253")
    e("v_lshl_add_u32 v249, v81, 3, v71")
    e(f"v_lshl_add_u32 v249, v249, 7, v{vQaC}")
    e(f"v_bfe_u32 v71, v{vLane}, 3, 1")
    e("v_lshl_add_u32 v249, v71, 6, v249")
    e(f"v_add_u32 v249, {WRAW}, v249")
    e("v_xor_b32 v250, 64, v249")
    e(f"v_xor_b32 v251, s{sT2}, v249")
    e(f"s_mul_i32 s{sQw}, s{sWave}, 5120")
    e(f"s_add_u32 s{sQw}, s{sQw}, {(ER+255)//256*256}")
    e(f"s_sub_u32 s{sT0}, s{sQw}, s{sStg}")
    for s_ in range(4):
        e(f"v_add_u32 v{24+s_}, s{sT0}, v{vXa+s_}")
    e(f"s_add_u32 s{sT1}, s{sT1}, s{sBase}")
    e(f"v_lshrrev_b32 v71, 3, v{vLane}")
    e(f"v_lshl_add_u32 v{vIdx}, v71, 2, s{sT1}")
    for i in range(1, 4):
        e(f"v_add_u32 v{vIdx+i}, {i}, v{vIdx}")
    for x in mads(): e(x)

def prefetch_all(lanes, first_line, vt):
    if not lanes: return
    e(f"s_and_b32 s{sT2}, s2, 31")
    e(f"s_mul_i32 s{sT2}, s{sT2}, 782")
    e(f"s_mul_i32 s{sT1}, s{sWave}, {lanes}")
    e(f"s_add_u32 s{sT2}, s{sT2}, s{sT1}")
    e(f"s_add_u32 s{sT2}, s{sT2}, {first_line}")
    e(f"s_lshl_b32 s{sT2}, s{sT2}, 7")
    e(f"v_lshlrev_b32 v{vt}, 7, v{vLane}")
    e(f"s_mov_b64 exec, {(1<<lanes)-1 if lanes<64 else -1}" if lanes<=32 or lanes==64 else f"s_bfm_b64 exec, {lanes}, 0")
    e(f"buffer_load_dword v{vt}, v{vt}, {sr(sXr,4)}, s{sT2} offen")
    e("s_mov_b64 exec, -1")

def scale8(first, n):
    for r in range(n):
        e(f"v_lshlrev_b32 v72, 16, v{first+r}")
        e(f"v_and_b32 v73, 0xffff0000, v{first+r}")
        e(f"v_mul_f32 v72, v74, v72")
        e(f"v_mul_f32 v73, v74, v73")
        e(f"v_cvt_pk_bf16_f32 v{first+r}, v72, v73")

def k2():
    st = FL[OPT['stf']]; ld = FL[OPT['ldf']]
    sP = 3
    HM = ['s[76:77]', 's[78:79]', 's[32:33]', 's[36:37]']
    e(".p2align 8")
    e(f"{NAME}_kernel:")
    e("s_cmp_ge_u32 s2, 256")
    e("s_cbranch_scc1 K2_END")
    stamp(0)
    e("s_load_dwordx8 s[44:51], s[0:1], 0")
    e("s_load_dwordx8 s[52:59], s[0:1], 64")
    e("s_load_dwordx8 s[60:67], s[0:1], 32")
    e(f"s_mov_b32 s{sP}, s2")
    if OPT['cpf']:
        c("pull the code into the L2 (one dword per 128-byte line, threads 0..CODE/128)")
        e("s_getpc_b64 s[68:69]")
        e("v_lshlrev_b32 v250, 7, v0")
        e("v_mov_b32 v251, s69")
        e(f"s_movk_i32 s70, {OPT['cpf']}")
        e("v_cmp_gt_u32 s[72:73], s70, v0")
        e("v_add_co_u32 v250, vcc, s68, v250")
        e("s_nop 1")
        e("v_addc_co_u32 v251, vcc, 0, v251, vcc")
        e("s_mov_b64 exec, s[72:73]")
        e("s_cbranch_execz K2_NOPF")
        e("global_load_dword v252, v[250:251], off")
        e("K2_NOPF:")
        e("s_mov_b64 exec, -1")
    e(f"s_and_b32 s{sT0}, s2, 7")
    e("s_lshr_b32 s2, s2, 3")
    e(f"s_lshl_b32 s{sT0}, s{sT0}, 5")
    e(f"s_or_b32 s2, s2, s{sT0}")
    e(f"v_and_b32 v{vLane}, 63, v0")
    e("v_lshrrev_b32 v2, 6, v0")
    e(f"s_mul_i32 s{sT0}, s{sP}, {CH*4}")
    e(f"v_readfirstlane_b32 s{sWave}, v2")
    c("a wave takes 256 edges twice; lane l owns edges 2l, 2l+1 of each half so that every load is contiguous")
    e(f"v_lshl_add_u32 v64, v2, 10, s{sT0}")
    e(f"v_lshl_add_u32 v64, v{vLane}, 3, v64")
    e(f"v_add_u32 v65, 7168, v64")
    e("v_lshlrev_b32 v66, 1, v64")
    e("v_lshlrev_b32 v67, 1, v65")
    e(f"s_add_u32 s{sT1}, s{sT0}, {CH*4}")
    e(f"s_min_u32 s{sT1}, s{sT1}, {E*4}")
    e(f"s_sub_u32 s42, s{sT1}, 512")
    e(f"v_cmp_gt_u32 {HM[0]}, s{sT1}, v64")
    e(f"v_cmp_gt_u32 {HM[1]}, s42, v64")
    e(f"v_cmp_gt_u32 {HM[2]}, s{sT1}, v65")
    e(f"v_cmp_gt_u32 {HM[3]}, s42, v65")
    e(f"v_lshlrev_b32 v68, 4, v{vLane}")
    e(f"v_add_u32 v69, {P_HIST}, v68")
    TG = OPT['tg']
    e(f"v_lshrrev_b32 v248, {TG-2}, v{vLane}")
    e(f"v_and_b32 v249, {(4<<TG)-16}, v68")
    e(f"v_lshl_or_b32 v248, v248, {TG+10}, v249")
    for i in range(4):
        e(f"v_mov_b32 v{72+i}, 0")
    e(f"s_cmp_eq_u32 s{sWave}, 7")
    e("s_cselect_b64 s[80:81], -1, 0")
    e("s_andn2_b64 s[76:77], s[76:77], s[80:81]")
    e("s_andn2_b64 s[78:79], s[78:79], s[80:81]")
    e("s_mov_b64 exec, s[80:81]")
    e("ds_write_b128 v69, v[72:75]")
    e(f"ds_write_b128 v68, v[72:75] offset:{CNT}")
    e(f"ds_write_b128 v68, v[72:75] offset:{ZERO+16-1024}")
    e(f"s_mul_i32 s{sBase}, s2, {BK}")
    e(f"s_add_u32 s{sNN}, s{sBase}, {BK+65535}")
    e(f"s_add_u32 s{sBase}, s{sBase}, 65535")
    e(f"s_lshr_b32 s{sBase}, s{sBase}, 16")
    e(f"s_lshr_b32 s{sNN}, s{sNN}, 16")
    e(f"s_sub_u32 s{sNN}, s{sNN}, s{sBase}")
    e(f"s_mov_b32 s{sJ0}, 0")
    e(f"s_movk_i32 s{sLW}, 384")
    e(f"s_mov_b32 s{sFirst}, 1")
    e(f"s_mul_i32 s{sStg}, s{sWave}, {SST}")
    e(f"s_add_u32 s{sStg}, s{sStg}, {STG}")
    e("s_waitcnt lgkmcnt(0)")
    if OPT['tw']:
        srd(sWs, 58, WS_SIZE)
        e(f"v_lshlrev_b32 v83, {OPT['tw']}, v{vLane}")
        e(f"buffer_load_dword v83, v83, {sr(sWs,4)}, 0 offen")
    srd(68, 50, E * 4)
    for hh in range(4):
        e(f"s_mov_b64 exec, {HM[hh]}")
        e(f"buffer_load_dwordx2 {vr(192+2*hh,2)}, v{64+hh//2}, s[68:71], 0 offen offset:{512*(hh%2)}" + ld)
    def bulk(it):
        for hh in (2*it, 2*it+1):
            e(f"s_mov_b64 exec, {HM[hh]}")
            e(f"buffer_load_dwordx2 {vr(200+2*hh,2)}, v{64+it}, s[72:75], 0 offen offset:{512*(hh%2)}" + ld)
            e(f"buffer_load_dwordx4 {vr(208+4*hh,4)}, v{66+it}, {sr(sOut,4)}, 0 offen offset:{1024*(hh%2)}" + ld)
    srd(sWs, 58, WS_SIZE)
    c("wave 7 of the first workgroups clears the run table")
    NCL = OPT['ncl']; PER = 262144 // NCL
    e(f"s_cmp_lt_u32 s{sP}, {NCL}")
    e("s_cselect_b64 exec, s[80:81], 0")
    e("s_cbranch_execz P1_NOCL")
    e(f"s_mul_i32 s{sT0}, s{sP}, {PER}")
    for k in range(PER // 1024):
        e(f"buffer_store_dwordx4 v[72:75], v68, {sr(sWs,4)}, s{sT0} offen offset:{(k%4)*1024} sc1")
        if k % 4 == 3 and k + 1 < PER // 1024:
            e(f"s_add_u32 s{sT0}, s{sT0}, 4096")
    e("P1_NOCL:")
    srd(72, 48, E * 4)
    srd(sOut, 46, E * 8)
    e("s_barrier")
    pt('b1')
    bulk(0)
    if OPT['eb']: bulk(1)
    e("s_mov_b64 exec, -1")
    srd(sWc, 56, 256)
    srd(sXr, 44, N * 128)
    e("s_sub_u32 s50, s44, 3072")
    e("s_subb_u32 s51, s45, 0")
    srd(sX, 50, N * 128 + 3072)
    e(f"s_movk_i32 s{s128}, 128")
    side_consts()
    e(f"s_cmp_eq_u32 s{sWave}, 7")
    e("s_cbranch_scc1 P1_W7A")
    e("v_mov_b32 v70, 12")
    e(f"s_mov_b32 s{sT0}, {BM}")
    e("s_movk_i32 s42, 0x3fc")
    e(f"v_mov_b32 v71, {P_HIST}")
    for hh in range(4):
        e(f"s_mov_b64 exec, {HM[hh]}")
        e(f"s_waitcnt vmcnt({(11 if OPT['eb'] else 7)-hh})")
        R2 = (2*hh, 2*hh+1)
        for k in R2:
            e(f"v_mul_u32_u24 v{224+k}, s{sT0}, v{192+k}")
        for k in R2:
            e(f"v_lshrrev_b32 v{224+k}, 22, v{224+k}")
        for k in R2:
            e(f"v_and_or_b32 v{224+k}, v{224+k}, s42, v71")
            e(f"ds_add_rtn_u32 v{232+k}, v{224+k}, v70")
        for k in R2:
            e(f"v_and_b32 v{192+k}, 127, v{192+k}")
    if not OPT['eb']: bulk(1)
    e("s_mov_b64 exec, -1")
    e("s_waitcnt lgkmcnt(0)")
    def p1_scan():
        e("s_barrier")
        pt('b2')
        e("ds_read_b128 v[240:243], v69")
        e("s_waitcnt lgkmcnt(0)")
        e("v_add_u32 v72, v240, v241")
        e("v_add_u32 v73, v72, v242")
        e("v_add_u32 v76, v73, v243")
        e("v_mov_b32 v80, v76")
        scan64(80)
        e("v_sub_u32 v244, v80, v76")
        e("v_add_u32 v245, v244, v240")
        e("v_add_u32 v246, v244, v72")
        e("v_add_u32 v247, v244, v73")
    p1_scan()
    e(f"ds_write_b128 v69, v[244:247] offset:{P_BASE-P_HIST}")
    e("s_waitcnt lgkmcnt(0)")
    for hh in range(4):
        e(f"s_mov_b64 exec, {HM[hh]}")
        for k in (2*hh, 2*hh+1):
            e(f"ds_read_b32 v{224+k}, v{224+k} offset:{P_BASE-P_HIST}")
    e("s_mov_b64 exec, -1")
    def side_dma():
        e(f"s_lshl_b32 s{sT1}, s{sWave}, 10")
        for k, pw in enumerate((52, 60, 66)):
            e(f"s_add_u32 m0, s{sT1}, {WRAW+8192*(k+1)}")
            srd(68, pw, 8192)
            e(f"buffer_load_dwordx4 v82, s[68:71], s{sT1} offen lds")
    def side_wb():
        e(f"s_lshl_b32 s{sT1}, s{sWave}, 10")
        srd(68, 62, 8192)
        e(f"buffer_load_dwordx4 v[112:115], v82, s[68:71], s{sT1} offen")
    def side_copies():
        if OPT['sp'] == 0:
            side_dma(); side_wb()
    side_copies()
    if OPT['lc']: lane_consts()
    pt('side')
    NX = 4 if OPT['sp'] == 0 else 0
    e(f"s_movk_i32 s42, {P_STG}")
    e("s_waitcnt lgkmcnt(0)")
    for hh in range(4):
        e(f"s_mov_b64 exec, {HM[hh]}")
        e(f"s_waitcnt vmcnt({NX+6-2*hh})")
        for k in (2*hh, 2*hh+1):
            e(f"v_lshl_or_b32 v{200+k}, v{192+k}, 18, v{200+k}")
            e(f"v_add3_u32 v{224+k}, v{224+k}, v{232+k}, s42")
            e(f"ds_write_b32 v{224+k}, v{200+k} offset:8")
            e(f"ds_write2_b32 v{224+k}, v{208+2*k}, v{209+2*k} offset0:0 offset1:1")
    e("s_mov_b64 exec, -1")
    pt('p1scat')
    e("P1_J:")
    pt('pj')
    if OPT['sp'] == 1:
        side_dma(); side_wb()
    if OPT['sp'] == 2:
        side_wb()
    e("v_lshlrev_b32 v64, 4, v0")
    e(f"v_add_u32 v65, {P_STG}, v64")
    e(f"s_mul_i32 s{sT0}, s{2 if OPT['xl'] else sP}, {CHB}")
    e(f"s_add_u32 s{sT0}, s{sT0}, {WS_REC}")
    NT_ = 448 if OPT['pf7'] else 512
    NR = -(-2352 // NT_)
    e(f"s_movk_i32 s42, {2352 - (NR-1)*NT_}")
    e("v_cmp_gt_u32 vcc, s42, v0")
    e("s_waitcnt lgkmcnt(0)")
    e("s_barrier")
    pt('b3')
    if OPT['hold']:
        e("HOLD:")
        e("s_memrealtime s[68:69]")
        e("s_waitcnt lgkmcnt(0)")
        e(f"s_sub_u32 s68, s68, s{sSt+18}")
        e(f"s_cmp_lt_u32 s68, {OPT['hold']}")
        e("s_cbranch_scc1 HOLD")
    if OPT['pf7']:
        e("s_andn2_b64 exec, exec, s[80:81]")
    for k in range(NR):
        e(f"ds_read_b128 {vr(192+4*k,4)}, v65 offset:{k*NT_*16}")
    for k in range(NR):
        if k == NR-1:
            e("s_mov_b64 exec, vcc")
        e(f"s_waitcnt lgkmcnt({NR-1-k})")
        if OPT['th'] and k >= OPT['th']: e(f"s_waitcnt vmcnt({OPT['th']-1})")
        e(f"buffer_store_dwordx4 {vr(192+4*k,4)}, v64, {sr(sWs,4)}, s{sT0} offen" + FL[OPT['rs']])
        if k < NR-1:
            e(f"s_add_u32 s{sT0}, s{sT0}, {NT_*16}")
    e("s_mov_b64 exec, -1")
    if OPT['sp'] == 2:
        side_dma(); NR += 3
    e(f"s_cmp_eq_u32 s{sWave}, 7")
    e("s_cbranch_scc1 P1_W7B")
    pt('stored')
    def mid(wait):
        srd(sOut, 54, N * 128)
        if not OPT['lc']: lane_consts()
        e(f"v_mov_b32 v74, {f32(-LOG2E)}")
        e(f"v_add_u32 v75, {WRAW}, v64")
        if wait is not None: e(f"s_waitcnt vmcnt({wait})")
        scale8(112, 4)
        e("ds_write_b128 v75, v[112:115]")
    def taddr():
        e("v_lshrrev_b32 v64, 4, v0")
        e("v_and_b32 v65, 7, v0")
        e("v_lshl_add_u32 v64, v64, 3, v65")
        e(f"v_lshlrev_b32 v64, {TG+2}, v64")
        e(f"s_lshr_b32 s{sTa}, s2, {TG}")
        e(f"s_lshl_b32 s{sTa}, s{sTa}, {TG+10}")
        e(f"s_and_b32 s{sT1}, s2, {(1<<TG)-1}")
        e(f"s_lshl_b32 s{sT1}, s{sT1}, 2")
        e(f"s_add_u32 s{sTa}, s{sTa}, s{sT1}")
    TLOAD = f"buffer_load_dword v65, v64, {sr(sWs,4)}, s{sTa} offen sc1"
    def round_consts():
        c("scan / meta lane constants while the records are in flight")
        e(f"v_lshl_add_u32 v8, v{vLane}, 1, s{sBase}")
        e("v_add_u32 v9, 1, v8")
        e("v_and_b32 v8, 127, v8")
        e("v_and_b32 v9, 127, v9")
        e("v_lshlrev_b32 v8, 2, v8")
        e("v_lshlrev_b32 v9, 2, v9")
        e(f"s_add_u32 s{sT0}, s{sNN}, 7")
        e(f"v_lshlrev_b32 v10, 1, v{vLane}")
        e("v_add_u32 v11, 1, v10")
        e(f"v_cmp_gt_u32 vcc, s{sT0}, v10")
        e(f"v_cmp_gt_u32 s[76:77], s{sT0}, v11")
        e("v_lshrrev_b32 v12, 2, v0")
        e("v_cndmask_b32 v10, 0, 16, vcc")
        e("v_cndmask_b32 v11, 0, 16, s[76:77]")
        e(f"v_cmp_gt_u32 vcc, s{sT0}, v12")
        e(f"v_cmp_gt_u32 s[76:77], s{sNN}, v12")
        e(f"v_add_u32 v13, s{sBase}, v12")
        e("v_cndmask_b32 v14, 0, 16, vcc")
        e("v_and_b32 v13, 127, v13")
        e("v_lshlrev_b32 v13, 2, v13")
        e(f"v_mul_u32_u24 v15, {AST + (RST//16 << 16)}, v12")
        e(f"v_mov_b32 v82, {NOROW:#x}")
        e("v_cndmask_b32 v15, v82, v15, s[76:77]")
        e(f"s_mul_i32 s{sT0}, s{sWave}, 640")
        e(f"v_add_u32 v82, s{sT0}, v{vLane}")
        e(f"s_mov_b32 s{sEr}, {ER}")
        e(f"v_lshl_add_u32 v83, v82, 3, s{sEr}")
        e("v_lshlrev_b32 v82, 16, v82")
        if OPT['pfb']:
            e(f"s_and_b32 s{sT2}, s2, 31")
            e(f"s_mul_i32 s{sT2}, s{sT2}, 782")
            e(f"s_mul_i32 s{sT1}, s{sWave}, {OPT['pfb']}")
            e(f"s_add_u32 s{sT2}, s{sT2}, s{sT1}")
            e(f"v_add_lshl_u32 v255, v{vLane}, s{sT2}, 7")
            e(f"v_cmp_gt_u32 vcc, {OPT['pfb']}, v{vLane}")
            e("v_mov_b32 v70, -16")
            e("s_nop 0")
            e("v_cndmask_b32 v255, v70, v255, vcc")
        c("window offset (0xffff = lane outside the window)")
        e(f"v_and_b32 v67, 15, v{vLane}")
        e("v_mul_u32_u24 v67, 12, v67")
        e(f"v_cmp_gt_u32 vcc, s{sLW}, v67")
        e(f"v_add_u32 v66, s{sJ0}, v67")
        e("v_lshrrev_b32 v68, 4, v0")
        e(f"s_mov_b32 s{sT0}, {8*CHB}")
        e(f"v_mul_u32_u24 v68, s{sT0}, v68")
        e("v_add3_u32 v68, v68, v66, -1")
        e("v_mov_b32 v69, 0xffff")
        e("v_cndmask_b32 v66, v69, v66, vcc")
        e("v_mov_b32 v71, 192")
        e(f"s_mov_b32 s{sCnt}, 0x40000")
        for q in range(10):
            e(f"v_mov_b32 v{195+4*q}, 0x100000")
        for i in range(8):
            e(f"s_mov_b64 {sr(sMk+2*i,2)}, 0")
        taddr()
    def drain_work():
        c("epilogue thread = (node tid>>2, chunks c and c+4): output offset, row address, residual operand")
        e("v_lshrrev_b32 v13, 2, v0")
        e("v_and_b32 v14, 3, v0")
        e(f"v_add_u32 v{vOut}, s{sBase}, v13")
        e(f"v_lshlrev_b32 v{vOut}, 7, v{vOut}")
        e(f"v_lshl_add_u32 v{vOut}, v14, 4, v{vOut}")
        e(f"v_mul_u32_u24 v{vRow}, {RST}, v13")
        e(f"v_lshl_add_u32 v{vRow}, v14, 7, v{vRow}")
        e(f"v_add_u32 v{vRow}, {ROWS}, v{vRow}")
        e("v_lshrrev_b32 v15, 1, v14")
        e(f"v_lshl_add_u32 v{vRow}, v15, 6, v{vRow}")
        e("v_and_b32 v15, 7, v13")
        e("v_lshlrev_b32 v14, 1, v14")
        e("v_xor_b32 v14, v14, v15")
        e("v_lshlrev_b32 v14, 4, v14")
        e(f"v_lshl_add_u32 v{vTl}, v13, 8, v14")
        e(f"v_add_u32 v{vTl}, {UTMP}, v{vTl}")
        e(f"v_xor_b32 v31, 16, v{vTl}")
        round_consts()
    mid(NR)
    drain_work()
    e("s_waitcnt vmcnt(0)")
    e("P1_RDY:")
    pt('rdy')
    e(f"s_lshl_b32 s{sT1}, s{2 if OPT['xl'] else sP}, {TG+2}")
    e("s_waitcnt lgkmcnt(0)")
    e("s_barrier")
    pt('b4')
    c("publish this chunk's run table (every word carries a valid bit)")
    e("s_mov_b64 exec, s[80:81]")
    e(f"buffer_store_dwordx4 v[244:247], v248, {sr(sWs,4)}, s{sT1} offen" + FL[OPT['ps']])
    e("s_mov_b64 exec, -1")
    prefetch_all(OPT['pfa'], 0, 19)
    if OPT['tlb']:
        e(f"v_lshlrev_b32 v15, {OPT['tlb']}, v0")
        e(f"buffer_load_dword v15, v15, {sr(sXr,4)}, 0 offen")
    e(f"v_cmp_gt_u32 {sr(sMore,2)}, s{sNN}, v254")
    c("---- A table and U for this wave's (node tile, channel half); weight operands ----")
    e(f"s_mov_b32 m0, s{sQw}")
    e("s_nop 0")
    for x in dma(): e(x)
    for m in range(2):
        for s_ in range(4):
            for hf in range(2):
                e(f"ds_read_b64_tr_b16 {vr(vW+16*m+4*s_+2*hf,2)}, v251 offset:{16384+m*8192+s_*2048+hf*512}")
    def wreads(m):
        for nt in range(2):
            for s_ in range(4):
                for hf in range(2):
                    e(f"ds_read_b64_tr_b16 {vr(vW+32*m+16*nt+4*s_+2*hf,2)}, v{249+nt} offset:{m*8192+s_*2048+hf*512}")
    wreads(1)
    for nt in range(2):
        e(f"ds_read_b64_tr_b16 {vr(vBq[nt],2)}, v253 offset:{64*nt}")
    c("U (f32) goes to its final owners through LDS: 16-byte chunk q of node n sits at n*256 + (q ^ (n&7))*16")
    e(f"s_and_b32 s{sT1}, s{sWave}, 1")
    e(f"s_lshl_b32 s{sT1}, s{sT1}, 3")
    e(f"s_movk_i32 s{sT2}, 112")
    e(f"v_cmp_gt_u32 s[78:79], s{sT2}, v254")
    e(f"v_and_b32 v80, 7, v{vLane}")
    e("v_xor_b32 v80, v80, v81")
    e(f"v_or_b32 v80, s{sT1}, v80")
    e("v_lshlrev_b32 v254, 8, v254")
    e(f"v_add_u32 v254, {UTMP}, v254")
    for j in range(4):
        e(f"v_xor_b32 v{32+j}, {2*j}, v80")
        e(f"v_lshl_add_u32 v{32+j}, v{32+j}, 4, v254")
    e(f"v_mov_b32 v80, {f32(-LOG2E)}")
    e("s_waitcnt vmcnt(0)")
    pt('xo')
    for s_ in range(4):
        e(f"ds_read_b128 {vr(40+4*s_,4)}, v{24+s_}")
    e("s_waitcnt lgkmcnt(0)")
    for s_ in range(4):
        e(mfma(84, vW+4*s_, 40+4*s_, 84 if s_ else None))
    for s_ in range(4):
        e(mfma(112, vW+16+4*s_, 40+4*s_, 112 if s_ else None))
    e(f"s_cmp_ge_u32 s{sWave}, 4")
    if OPT['ty'] == 2:
        e("s_cbranch_scc0 K2_TY0")
        e(TLOAD)
        e("K2_TY0:")
    wreads(0)
    for r in range(16):
        e(f"v_mul_f32 v{84+r}, v80, v{84+r}")
    for r in range(8):
        e(f"v_cvt_pk_bf16_f32 v{72+r}, v{84+2*r}, v{85+2*r}")
    e(f"s_mov_b64 exec, {sr(sMore,2)}")
    for j in range(4):
        e(f"ds_write_b64 v252, {vr(72+2*j,2)} offset:{ATAB+j*16}")
    e("s_mov_b64 exec, s[78:79]")
    for j in range(4):
        e(f"ds_write_b128 v{32+j}, {vr(112+4*j,4)}")
    e("s_mov_b64 exec, -1")
    if OPT['ty'] == 2: e("s_cbranch_scc1 K2_ROUND")
    e(TLOAD)
    e("K2_ROUND:")
    for q in range(10):
        e(f"v_mov_b32 v{112+q}, 0")
    pt('poll')
    c("wait for the run tables of this wave's 32 producers")
    sd = "dst_sel:DWORD dst_unused:UNUSED_PAD "
    vRa = 232
    e("K2_POLL:")
    e("s_waitcnt vmcnt(0)")
    e("v_cmp_eq_u32 s[76:77], 0, v65")
    for i in range(8):
        e(f"v_mov_b32_dpp v{vTe+i}, v65 row_newbcast:{i} row_mask:0xf bank_mask:0xf")
    pt('go')
    c("fetch the runs that have been published since the last look (a cleared word has count 0)")
    def ovf_step(i, vj, extra):
        e(f"v_sub_u32_sdwa v69, v{vTe+i}, v71 clamp {sd}src0_sel:WORD_1 src1_sel:DWORD")
        e(f"v_add_u32 v74, v{vj}, v72")
        e(f"s_mov_b32 s{sT2}, {192+extra+i*CHB}")
        e("v_cmp_lt_u32 vcc, v74, v69")
        e(f"v_add3_u32 v75, v{vRa+i}, v72, s{sT2}")
        e("v_sub_u32 v72, v72, v69")
        e("v_cndmask_b32 v73, v73, v75, vcc")
    e(f"s_mov_b32 s{sT1}, {WS_REC}")
    e("v_mov_b32 v72, 0")
    e("v_mov_b32 v73, 0")
    for i in range(8):
        e(f"v_cmp_lt_u32_sdwa vcc, v66, v{vTe+i} src0_sel:DWORD src1_sel:WORD_1")
        e(f"v_add_u32_sdwa v{vRa+i}, v68, v{vTe+i} {sd}src0_sel:DWORD src1_sel:WORD_0")
        e(f"s_andn2_b64 exec, vcc, {sr(sMk+2*i,2)}")
        e(f"buffer_load_dwordx3 {vr(192+4*i,3)}, v{vRa+i}, {sr(sWs,4)}, s{sT1} offen sc1")
        e(f"s_mov_b64 {sr(sMk+2*i,2)}, vcc")
        e("s_mov_b64 exec, -1")
        if i < 7:
            e(f"s_add_u32 s{sT1}, s{sT1}, {CHB}")
        ovf_step(i, 67, 0)
    e("s_cmp_eq_u64 s[76:77], 0")
    e("s_cbranch_scc1 K2_GO")
    e(f"s_sub_u32 s{sCnt}, s{sCnt}, 1")
    e("s_cbranch_scc1 K2_END")
    e(f"s_sleep {OPT['slp']}")
    e(TLOAD)
    e("s_branch K2_POLL")
    e("K2_GO:")
    c("records past the 16th of a run: packed per 16-lane group into two more slots")
    def ovf(vj, extra):
        e("v_mov_b32 v72, 0")
        e("v_mov_b32 v73, 0")
        for i in range(8): ovf_step(i, vj, extra)
    e("v_add_u32 v74, v67, v72")
    e(f"v_cmp_gt_i32 {sr(sMk+16,2)}, 0, v74")
    e(f"s_mov_b32 s{sCnt}, {WS_REC}")
    e(f"s_cmp_eq_u32 s{sLW}, 384")
    e(f"s_cselect_b64 {sr(sMk+16,2)}, {sr(sMk+16,2)}, 0")
    e(f"s_mov_b64 exec, {sr(sMk+16,2)}")
    e(f"buffer_load_dwordx3 v[224:226], v73, {sr(sWs,4)}, s{sCnt} offen sc1")
    e("s_mov_b64 exec, -1")
    e("v_add_u32 v75, 192, v74")
    e("v_add_u32 v69, 384, v72")
    e(f"v_cmp_gt_i32 {sr(sMk+18,2)}, 0, v75")
    e("v_cmp_gt_i32 s[76:77], 0, v69")
    e(f"v_max3_u32 v69, v{vTe}, v{vTe+1}, v{vTe+2}")
    e(f"v_max3_u32 v70, v{vTe+3}, v{vTe+4}, v{vTe+5}")
    e(f"v_max3_u32 v69, v69, v{vTe+6}, v{vTe+7}")
    e("v_max_u32 v69, v69, v70")
    e(f"s_add_u32 s{sT1}, s{sJ0}, s{sLW}")
    e(f"s_lshl_b32 s{sT1}, s{sT1}, 16")
    e(f"s_or_b32 s{sT1}, s{sT1}, 0xffff")
    e(f"v_cmp_lt_u32 vcc, s{sT1}, v69")
    e(f"s_cmp_eq_u32 s{sLW}, 384")
    e(f"s_cselect_b64 {sr(sMk+18,2)}, {sr(sMk+18,2)}, 0")
    e("s_cselect_b64 s[76:77], s[76:77], vcc")
    e(f"s_cmp_lg_u64 {sr(sMk+18,2)}, 0")
    e("s_cbranch_scc1 K2_OVF2")
    e("K2_OVFD:")
    pt('h0')
    e("v_mov_b32 v66, 4")
    e("v_mov_b32 v67, 0")
    e("s_mov_b64 exec, s[76:77]")
    e(f"ds_write_b32 v67, v66 offset:{MORE}")
    e("s_mov_b64 exec, -1")
    e(f"s_mov_b32 s{sT0}, 0xffff")
    pt('h1')
    for q in range(10):
        r = 192 + 4 * q
        e(f"s_mov_b64 exec, {sr(sMk+2*q,2)}")
        if q < 9: e(f"s_waitcnt vmcnt({8-q})")
        e(f"v_lshrrev_b32 v{112+q}, 16, v{r+2}")
        e(f"ds_add_rtn_u32 v{r+3}, v{112+q}, v66 offset:{CNT}")
        e(f"ds_write_b64 v83, {vr(r,2)} offset:{512*q}")
        e(f"v_and_or_b32 v{r+2}, v{r+2}, s{sT0}, v82")
        if q: e(f"v_add_u32 v{r+2}, {q<<22:#x}, v{r+2}")
    e("s_mov_b64 exec, -1")
    pt('h2')
    e("s_waitcnt lgkmcnt(0)")
    e("s_barrier")
    pt('hist')
    c("---- scan (every wave, redundantly) ----")
    e(f"ds_read_b32 v64, v8 offset:{CNT}")
    e(f"ds_read_b32 v65, v9 offset:{CNT}")
    e(f"ds_read_b32 v68, v67 offset:{MORE}")
    e(f"buffer_load_dwordx4 {vr(vXo,4)}, v{vOut}, {sr(sXr,4)}, 0 offen")
    e(f"buffer_load_dwordx4 {vr(vXo+4,4)}, v{vOut}, {sr(sXr,4)}, 0 offen offset:64")
    if OPT['pfb']:
        e(f"buffer_load_dword v255, v255, {sr(sXr,4)}, 0 offen")
    e("s_waitcnt lgkmcnt(1)")
    e(f"s_cmp_eq_u32 s{sFirst}, 0")
    e("s_cbranch_scc1 K2_NOU")
    for it in range(2):
        e(f"ds_read_b128 {vr(vV+8*it,4)}, v{vTl} offset:{128*it}")
        e(f"ds_read_b128 {vr(vV+8*it+4,4)}, v31 offset:{128*it}")
    e("K2_NOU:")
    e("v_add_u32 v69, 15, v64")
    e("v_add_u32 v70, 15, v65")
    e("v_and_b32 v69, -16, v69")
    e("v_and_b32 v70, -16, v70")
    e("v_max_u32 v69, v69, v10")
    e("v_max_u32 v70, v70, v11")
    e("v_add_u32 v71, v69, v70")
    e("v_mov_b32 v72, v71")
    scan64(72)
    e("v_sub_u32 v73, v72, v71")
    e("v_add_u32 v74, v73, v69")
    e(f"v_readlane_b32 s{sQt}, v72, 63")
    e("v_lshl_or_b32 v64, v64, 16, v73")
    e("v_lshl_or_b32 v65, v65, 16, v74")
    e(f"ds_write_b32 v8, v64 offset:{BI}")
    e(f"ds_write_b32 v9, v65 offset:{BI}")
    e("v_max_u32 v69, v69, v70")
    e(f"s_lshr_b32 s{sTt}, s{sQt}, 7")
    pt('s1')
    e(f"ds_read_b32 v64, v13 offset:{BI}")
    for q in range(10):
        e(f"ds_read_u16 v{112+q}, v{112+q} offset:{BI}")
    e(f"s_lshr_b32 s{sT0}, s{sTt}, 3")
    e(f"s_and_b32 s{sT1}, s{sTt}, 7")
    e(f"s_lshl_b32 s{sT2}, s{sT0}, 4")
    e(f"s_add_u32 s{sCnt}, s{sT2}, 16")
    e(f"v_cmp_lt_u32 vcc, s{sCnt}, v69")
    e(f"s_add_u32 s{sCnt}, s{sCnt}, s{sT2}")
    e(f"v_cmp_lt_u32 s[76:77], s{sCnt}, v69")
    e(f"s_mul_i32 s{sQw}, s{sT0}, s{sWave}")
    e(f"s_min_u32 s{sT2}, s{sT1}, s{sWave}")
    e(f"s_add_u32 s{sQw}, s{sQw}, s{sT2}")
    e(f"s_lshl_b32 s{sQw}, s{sQw}, 3")
    e(f"s_cmp_lt_u32 s{sWave}, s{sT1}")
    e(f"s_addc_u32 s{sNT}, s{sT0}, 0")
    e("s_cmp_lg_u64 vcc, 0")
    e(f"s_cselect_b32 s{sBig}, 1, 0")
    e("s_cmp_lg_u64 s[76:77], 0")
    e(f"s_cselect_b32 s{sBig}, 2, s{sBig}")
    c("column of (half h, register group j) = 4h + j, one quad per tile")
    e(f"v_bfe_u32 v66, v{vLane}, 3, 1")
    e(f"v_lshrrev_b32 v69, 4, v{vLane}")
    e("v_lshl_add_u32 v66, v66, 2, v69")
    e(f"v_mul_u32_u24 v66, s{sNT}, v66")
    e(f"v_add_lshl_u32 v{vIxA}, v66, s{sQw}, 4")
    e(f"s_mov_b32 m0, s{sStg}")
    e(f"s_mov_b32 s{sDum}, {0 if OPT['xf'] else NOROW:#x}")
    e("s_waitcnt lgkmcnt(13)")
    e(f"v_readfirstlane_b32 s{sMore}, v68")
    e(f"s_cmp_gt_u32 s{sQt}, {CAP*4}")
    e(f"s_cselect_b32 s{sT0}, 1, s{sMore}")
    e(f"s_cmp_eq_u32 s{sLW}, 384")
    e(f"s_cselect_b32 s{sT0}, s{sT0}, 0")
    e(f"s_cmp_lg_u32 s{sT0}, 0")
    e("s_cbranch_scc1 K2_FAIL")
    c("---- scatter index words ----")
    for q in range(10):
        r = 192 + 4 * q
        if q % 5 == 0: e("s_waitcnt lgkmcnt(5)")
        e(f"v_add_u32 v{112+q}, v{112+q}, v{r+3}")
        e(f"ds_write_b32 v{112+q}, v{r+2} offset:{M4}")
    c("pads")
    e("v_and_b32 v65, 3, v0")
    e(f"v_mov_b32 v70, {PADV:#x}")
    e("v_lshrrev_b32 v68, 16, v64")
    e("v_and_b32 v64, 0xffff, v64")
    e("v_add_u32 v74, 15, v68")
    e("v_and_b32 v74, -16, v74")
    e("v_max_u32 v74, v74, v14")
    e("v_lshl_add_u32 v68, v65, 2, v68")
    e("v_cmp_lt_u32 vcc, v68, v74")
    e("v_add_u32 v68, v68, v64")
    e("s_mov_b64 exec, vcc")
    e(f"ds_write_b32 v68, v70 offset:{M4}")
    e("s_mov_b64 exec, -1")
    pt('s3')
    e("s_waitcnt lgkmcnt(0)")
    e("s_barrier")
    pt('scat')
    for x in rd_idx(): e(x)
    e(f"v_add_u32 v{vIxA}, 16, v{vIxA}")
    c("quad words: thread = (node, k0)")
    e("v_lshrrev_b32 v69, 4, v74")
    e("v_lshrrev_b32 v64, 4, v64")
    e("v_add_lshl_u32 v68, v64, v65, 2")
    e("v_add_u32 v70, -1, v69")
    e(f"v_or_b32 v71, {NONLAST:#x}, v15")
    def blk_dma():
        for x in mads() + dma() + rd_idx(): e(x)
        e(f"v_add_u32 v{vIxA}, 16, v{vIxA}")
    def blk_qm(t):
        e(f"s_mov_b32 s{sT1}, {ROWS+512}")
        e(f"v_mad_u32_u16 v72, v15, 16, s{sT1} op_sel:[1,0,0,0]")
        e("v_mov_b32 v73, 0x100000")
        e(f"v_mov_b32 v75, {EPSR}")
        e("ds_write2_b32 v72, v75, v73 offset0:0 offset1:1")
        eps = f32(1e-6 * 2.0**(2*SC))
        e(f"s_cmp_lg_u32 s{sFirst}, 0")
        e(f"s_cselect_b32 s{sEps}, {eps}, 0")
        e(f"v_lshl_add_u32 v72, v{vLane}, 3, v75")
        e(f"v_mov_b32 v73, s{sEps}")
        e("ds_write2_b32 v72, v73, v67 offset0:0 offset1:1")
        for u in range(3):
            e("v_cmp_lt_u32 vcc, v65, v69")
            e("v_cmp_eq_u32 s[76:77], v65, v70")
            e("s_and_b64 exec, exec, vcc")
            e("v_add_u32 v65, 4, v65")
            e("v_cndmask_b32 v72, v71, v15, s[76:77]")
            e(f"ds_write_b32 v68, v72 offset:{QA+16*u}")
        e(f"K2_QM{t}:")
        e("v_cmp_lt_u32 vcc, v65, v69")
        e("v_cmp_eq_u32 s[76:77], v65, v70")
        e("s_and_b64 exec, exec, vcc")
        e(f"s_cbranch_execz K2_QMD{t}")
        e("v_add_u32 v65, 4, v65")
        e("v_cndmask_b32 v72, v71, v15, s[76:77]")
        e(f"ds_write_b32 v68, v72 offset:{QA+48}")
        e("v_add_u32 v68, 16, v68")
        e(f"s_branch K2_QM{t}")
        e(f"K2_QMD{t}:")
        e("s_mov_b64 exec, -1")
        e(f"v_lshrrev_b32 v66, 5, v{vLane}")
        e(f"v_bfe_u32 v69, v{vLane}, 2, 2")
        e("v_lshl_add_u32 v66, v66, 2, v69")
        e(f"v_mul_u32_u24 v66, s{sNT}, v66")
        e(f"v_add_lshl_u32 v{vQaA}, v66, s{sQw}, 2")
        e(f"v_bfe_u32 v8, v{vLane}, 2, 1")
        e(f"v_bfe_u32 v9, v{vLane}, 3, 2")
        e("v_lshl_add_u32 v8, v8, 2, v9")
        e(f"v_mul_u32_u24 v8, s{sNT}, v8")
        e(f"v_add_lshl_u32 v8, v8, s{sQw}, 2")
        e(f"v_and_or_b32 v8, v{vLane}, 3, v8")
        e(f"v_lshlrev_b32 v{vAqA}, 2, v8")
        e("s_waitcnt lgkmcnt(0)")
    e(f"s_cmp_ge_u32 s{sWave}, 4")
    e("s_cbranch_scc1 K2_ORD_B")
    e("s_waitcnt lgkmcnt(0)")
    blk_dma(); blk_qm('a')
    e("s_barrier")
    e("s_branch K2_ORD_J")
    e("K2_ORD_B:")
    blk_qm('b')
    e("s_barrier")
    blk_dma()
    e("K2_ORD_J:")
    pt('meta')
    for x in rd_qa() + rd_mr(0): e(x)
    e(f"ds_read_b32 v{vWK}, v{vQaA} offset:{QA}")
    e(f"v_add_u32 v{vQaA}, 4, v{vQaA}")
    e(f"s_cmp_eq_u32 s{sFirst}, 0")
    e(f"s_cbranch_scc1 K2_NOV")
    e(f"s_waitcnt vmcnt({5 if OPT['pfb'] else 4})")
    for r in range(8):
        e(f"v_lshlrev_b32 v8, 16, v{vXo+r}")
        e(f"v_and_b32 v9, 0xffff0000, v{vXo+r}")
        e(f"v_add_f32 v{vV+2*r}, v{vV+2*r}, v8")
        e(f"v_add_f32 v{vV+2*r+1}, v{vV+2*r+1}, v9")
    e(f"K2_NOV:")
    e("s_waitcnt lgkmcnt(0)")
    e(AQV); e(AEV)
    e(f"v_and_b32 v{vWK}, 0x3fffffff, v{vWK}")
    for x in rd_bq(0) + rd_bq(1) + rd_aq() + rd_qa() + rd_mr(16): e(x)
    for r in range(8, 16):
        e(f"v_mov_b32 v{r}, 0")
    for r in range(16):
        e(f"v_mov_b32 v{vAcc+r}, 0")
    for j in range(4):
        e(f"v_mov_b32 v{vN+j}, 0")
        e(f"v_mov_b32 v{vP+j}, 1.0")
        e(f"v_mov_b32 v{24+j}, 1.0")
    for j in range(4):
        e(f"v_mov_b32 v{vS+j}, 0")
    for j in range(4):
        e(f"v_mov_b32_dpp v{RP[j]}, v{vWK} row_newbcast:{4*j} row_mask:0xf bank_mask:0xf")
    for j in range(4):
        e(f"v_mad_u32_u16 v{RP[j]}, v{RP[j]}, 16, v{vN16} op_sel:[1,0,0,0]")
    e(f"v_mov_b32 v{vWK}, {NOROW:#x}")
    e(f"v_lshrrev_b32 v{vWK+3}, 5, v{vLane}")
    e(f"v_mul_u32_u24 v{vWK+3}, {4*RST}, v{vWK+3}")
    e(f"v_add_u32 v{vWK+3}, s{sStg}, v{vWK+3}")
    e(f"v_bfe_u32 v{vWK+5}, v{vLane}, 2, 2")
    e(f"v_mul_u32_u24 v{vWK+5}, {RST}, v{vWK+5}")
    e(f"v_add_u32 v{vWK+5}, v{vWK+5}, v{vWK+3}")
    e(f"v_add_u32 v{vWK+3}, v{vWK+3}, v{vN16}")
    e(f"v_subrev_u32 v{vWK+3}, {ROWS}, v{vWK+3}")
    e("v_lshrrev_b32 v19, 2, v0")
    e(f"v_cmp_gt_u32 s[78:79], s{sNN}, v19")
    e(f"v_mul_u32_u24 v19, {RST}, v19")
    e(f"v_add_u32 v19, {ROWS}, v19")
    e("v_and_b32 v31, 2, v0")
    e("v_lshlrev_b32 v31, 6, v31")
    e(f"v_sub_u32 v31, v{vRow}, v31")
    for x in mads(): e(x)
    e(f"v_add_u32 v{vAqA}, 16, v{vAqA}")
    e(f"s_mov_b32 s{sCnt}, s{sNT}")
    e("s_waitcnt vmcnt(0)")
    pt('f4')
    for x in rd_x(): e(x)
    e(f"s_cmp_eq_u32 s{sNT}, 0")
    e("s_cbranch_scc1 K2_DRAIN")
    ms = mfmas(0); dm = dma()
    e("s_waitcnt lgkmcnt(4)")
    e(ms[0])
    e("s_waitcnt lgkmcnt(0)")
    for k in range(1, 9):
        e(ms[k])
        if k <= 4: e(dm[k-1])
        if k == 5: e(rd_idx()[0])
    e("s_waitcnt lgkmcnt(0)")
    e("s_nop 3")
    if not OPT['tl']: stamp(6)
    if OPT['role']:
        role_loops()
    else:
        e(".p2align 6")
        e("K2_LOOP:")
        loop_body()
    e("K2_DRAIN:")
    e("s_setprio 0")
    for x in rcps(): e(x)
    for x in cmps(): e(x)
    e(f"v_cmp_gt_i32 s[76:77], 0, v{vWK}")
    e(f"v_and_b32 v30, 0x3fffffff, v{vWK}")
    e(f"s_mov_b32 s{sT1}, {ROWS+512}")
    e(f"v_mad_u32_u16 v{vWK+4}, v30, 16, s{sT1} op_sel:[1,0,0,0]")
    e(f"s_lshl_b32 s{sT1}, s{sBig}, 2")
    e(f"v_and_or_b32 v{vWK+4}, v{vLane}, s{sT1}, v{vWK+4}")
    for x in chain(1): e(x)
    for x in mwrites(False): e(x)
    stamp(7)
    c("---- tails ----")
    e(f"s_cmp_eq_u32 s{sBig}, 2")
    e("s_cbranch_scc1 K2_TAILAT")
    c("park the tails in this wave's staging area and leave a pointer in the node's row")
    e(f"s_cmp_eq_u32 s{sBig}, 0")
    e(f"s_cselect_b32 s{sT2}, s{sEps}, 0")
    e("s_waitcnt vmcnt(0)")
    for j in range(4):
        for nt in range(2):
            e(f"v_add_f32 v{acc(nt,j)}, s{sT2 if j%2 else sEps}, v{acc(nt,j)}")
        e(f"ds_write_b128 v{vWK+3}, {vr(vAcc+4*j,4)} offset:{RST*j}")
    e("s_mov_b64 exec, s[76:77]")
    e(f"ds_write_b32 v{vWK+4}, v{vWK+5}")
    e("K2_TAILD:")
    e("s_mov_b64 exec, -1")
    c("---- epilogue ----")
    e(f"s_mov_b32 s{sT2}, 0x100000")
    e(f"v_sub_u32 v13, v{vRow}, v19")
    e("v_sub_u32 v14, v31, v19")
    e(f"s_cmp_eq_u32 s{sMore}, 0")
    e(f"s_cselect_b32 s{sT1}, s{sFirst}, 0")
    e(f"s_cmp_eq_u32 s{sBig}, 1")
    e("s_waitcnt lgkmcnt(0)")
    pt('e1')
    e("s_barrier")
    pt('e2')
    e("s_mov_b64 exec, s[78:79]")
    e("s_cbranch_execz K2_TAIL2D")
    e("ds_read_b64 v[10:11], v19 offset:512")
    for k in range(8):
        e(f"ds_read_b128 {vr(192+4*k,4)}, v{vRow if k<4 else 31} offset:{16*k}")
    e("s_waitcnt lgkmcnt(8)")
    def add_tail(p):
        e(f"v_cmp_gt_u32 vcc, s{sT2}, v{p}")
        e(f"v_add_u32 v12, v13, v{p}")
        e(f"v_add_u32 v15, v14, v{p}")
        e("s_mov_b64 exec, vcc")
        for k in range(8):
            e(f"ds_read_b128 {vr(224+4*k,4)}, v{12 if k<4 else 15} offset:{16*k}")
        for k in range(8):
            e(f"s_waitcnt lgkmcnt({7-k})")
            e(f"v_pk_add_f32 {vr(192+4*k,2)}, {vr(192+4*k,2)}, {vr(224+4*k,2)}")
            e(f"v_pk_add_f32 {vr(194+4*k,2)}, {vr(194+4*k,2)}, {vr(226+4*k,2)}")
        e("s_mov_b64 exec, s[78:79]")
    add_tail(10)
    e("s_cbranch_scc1 K2_TAIL2")
    e("K2_TAIL2D:")
    pt('e4')
    e(f"s_cmp_eq_u32 s{sT1}, 0")
    e("s_cbranch_scc1 K2_SLOWTOT")
    e("K2_FIN:")
    e("s_mov_b64 exec, s[78:79]")
    e("s_cbranch_execz K2_DONE")
    pt('e3')
    for it in range(2):
        for k in range(8):
            e(f"v_rcp_f32 v{192+4*k+2*it}, v{192+4*k+2*it}")
        e("s_nop 0")
        for k in range(8):
            e(f"v_fmac_f32 v{vV+8*it+k}, v{192+4*k+2*it}, v{193+4*k+2*it}")
        for k in range(4):
            e(f"v_cvt_pk_bf16_f32 v{112+4*it+k}, v{vV+8*it+2*k}, v{vV+8*it+2*k+1}")
        c("x + relu(z) = max(x + z, x); bf16 patterns order like f16 patterns")
        for k in range(4):
            e(f"v_pk_max_f16 v{112+4*it+k}, v{112+4*it+k}, v{vXo+4*it+k}")
        e(f"buffer_store_dwordx4 {vr(112+4*it,4)}, v{vOut}, {sr(sOut,4)}, 0 offen offset:{64*it}" + FL[OPT['ost']])
    e("K2_DONE:")
    if OPT['stamp']:
        e("s_mov_b64 exec, -1")
        stamp(8)
        e("s_barrier")
        diag_out(1, 9, sWave, sWs, sNT)
    e("K2_END:")
    e("s_endpgm")
    flush_ool()
    c("---- wave 7, phase 1: ready count, scaled wb / wc rows, run table words ----")
    e("P1_W7A:")
    p1_scan()
    e(f"s_cmp_lt_u32 s3, {NCL}")
    e("s_cbranch_scc0 P1_NOF")
    e(f"s_lshl_b32 s{sT0}, s3, {2 if NCL<=64 else (1 if NCL==128 else 0)}")
    e("v_mov_b32 v76, 1")
    e("s_mov_b64 exec, 1")
    e("s_waitcnt vmcnt(0)")
    if OPT['cat']:
        e(f"buffer_atomic_add v76, v74, {sr(sWc,4)}, s{sT0} offen sc1")
    else:
        e(f"buffer_store_{'dword' if NCL<=64 else ('short' if NCL==128 else 'byte')} v76, v74, {sr(sWc,4)}, s{sT0} offen sc1")
    e("s_mov_b64 exec, -1")
    e("P1_NOF:")
    srd(68, 64, 512)
    e(f"buffer_load_dwordx4 v[224:227], v68, s[68:71], 0 offen")
    side_copies()
    if OPT['lc']: lane_consts()
    for i in range(4):
        e(f"v_lshl_or_b32 v{244+i}, v{240+i}, 16, v{244+i}")
        e(f"v_or_b32 v{244+i}, 1, v{244+i}")
    e("s_branch P1_J")
    e("P1_W7B:")
    mid(NR)
    scale8(224, 4)
    c("lanes 32..63 hold flag rows (0, R, 0, 0); lanes 0..31 the wc' rows")
    e(f"v_lshrrev_b32 v73, 3, v{vLane}")
    e("v_cmp_eq_u32 vcc, 5, v73")
    e(f"v_mov_b32 v72, {(RFLAG>>16)*0x10001:#x}")
    e(f"v_xor_b32 v73, 512, v68")
    for r in range(4):
        e(f"v_cndmask_b32 v{224+r}, v{224+r}, v72, vcc")
    if OPT['cz']:
        bz = struct.unpack("<I", struct.pack("<f", -2.0 * SC))[0] >> 16
        e("s_bfm_b64 exec, 8, 48")
        for r in range(4):
            e(f"v_mov_b32 v{224+r}, {bz*0x10001:#x}")
        e("s_mov_b64 exec, -1")
    e(f"v_add_u32 v73, {WCT}, v73")
    e("ds_write_b128 v73, v[224:227]")
    drain_work()
    c("the whole table must have been cleared before anything is published or trusted")
    e(f"v_and_b32 v74, {min(NCL,64)-1}, v{vLane}")
    e("v_lshlrev_b32 v74, 2, v74")
    e(f"s_mov_b32 s{sT2}, 0x40000")
    if OPT['ra']: e("s_waitcnt vmcnt(0)")
    e("P1_POLL:")
    e(f"buffer_load_dword v76, v74, {sr(sWc,4)}, 0 offen" + FL[OPT['pl_']])
    e("s_waitcnt vmcnt(0)")
    e(f"v_cmp_ne_u32 vcc, {1 if NCL<=64 else (0x10001 if NCL==128 else 0x01010101)}, v76")
    e(f"s_sub_u32 s{sT2}, s{sT2}, 1")
    e("s_cbranch_scc1 K2_END")
    e("s_cmp_eq_u64 vcc, 0")
    e("s_cbranch_scc1 P1_RDY")
    e("s_sleep 8")
    e("s_branch P1_POLL")
    c("---- rare paths ----")
    e("K2_OVF2:")
    e("v_add_u32 v70, 192, v67")
    ovf(70, 192)
    e(f"s_mov_b64 exec, {sr(sMk+18,2)}")
    e(f"buffer_load_dwordx3 v[228:230], v73, {sr(sWs,4)}, s{sCnt} offen sc1")
    e("s_mov_b64 exec, -1")
    e("s_waitcnt vmcnt(0)")
    e("s_branch K2_OVFD")
    e("K2_NEXT:")
    e("v_lshlrev_b32 v64, 2, v0")
    e("v_mov_b32 v66, 0")
    e("s_movk_i32 s42, 132")
    e("v_cmp_gt_u32 vcc, s42, v0")
    e("s_mov_b64 exec, vcc")
    e(f"ds_write_b32 v64, v66 offset:{CNT}")
    e("s_mov_b64 exec, -1")
    round_consts()
    e(TLOAD)
    e("s_waitcnt lgkmcnt(0)")
    e("s_barrier")
    e("s_branch K2_ROUND")
    e("K2_TAIL2:")
    add_tail(11)
    e("s_branch K2_TAIL2D")
    e("K2_TAILAT:")
    e("s_waitcnt lgkmcnt(0)")
    e("s_barrier")
    for j in range(4):
        for y in expand(j, 76): e(y)
        for i in range(4):
            e(f"ds_add_f32 v{RP[j]}, v{vAcc+4*j+i} offset:{4*i}")
    e("s_branch K2_TAILD")
    e("K2_FAIL:")
    e(f"s_movk_i32 s{sLW}, 144")
    e("s_waitcnt vmcnt(0) lgkmcnt(0)")
    e("s_barrier")
    e("s_branch K2_NEXT")
    e("K2_SLOWTOT:")
    e("s_mov_b64 exec, -1")
    e("v_lshlrev_b32 v14, 7, v0")
    e(f"s_lshl_b32 s{sT1}, s2, 16")
    e(f"s_add_u32 s{sT1}, s{sT1}, {WS_TOT}")
    e("s_waitcnt lgkmcnt(0)")
    e(f"s_cmp_lg_u32 s{sFirst}, 0")
    e("s_cbranch_scc1 K2_ST1")
    for r in range(8):
        e(f"buffer_load_dwordx4 {vr(224+4*r,4)}, v14, {sr(sWs,4)}, s{sT1} offen offset:{16*r} sc1")
    e("s_waitcnt vmcnt(0)")
    for r in range(32):
        e(f"v_add_f32 v{192+r}, v{192+r}, v{224+r}")
    e(f"s_cmp_eq_u32 s{sMore}, 0")
    e("s_cbranch_scc1 K2_FIN")
    e("K2_ST1:")
    for r in range(8):
        e(f"buffer_store_dwordx4 {vr(192+4*r,4)}, v14, {sr(sWs,4)}, s{sT1} offen offset:{16*r} sc1")
    e(f"s_mov_b32 s{sFirst}, 0")
    e(f"s_add_u32 s{sJ0}, s{sJ0}, s{sLW}")
    e("s_waitcnt vmcnt(0)")
    e("s_barrier")
    e("s_branch K2_NEXT")

def hi_pure(nt, prio, first=(), after=0, wait=False):
    e(f"s_setprio {prio}")
    ms = mfmas(1 - nt); av = list(first) + avals(nt)
    tr = rcps() + exps(nt)
    per = (3, 3, 3, 3, 3, 3, 2, 2, 2); fl = [0, 0, 0, 0, 0, 0, 2, 2, 2]
    if wait:
        tr = exps(nt)[:4] + rcps() + exps(nt)[4:]
        av = avals(nt)[:1] + list(first) + avals(nt)[1:]
        per = (3, 3, 2, 3, 3, 3, 3, 2, 2); fl = [0, 0, 1, 0, 0, 0, 0, 2, 2]
    t = 0; f = 0
    for g in range(9):
        if wait and g == 3: e("s_waitcnt lgkmcnt(0)")
        e(ms[g])
        seq = [tr[t + i] for i in range(per[g])]; t += per[g]
        fs = [av[f + i] for i in range(fl[g])]; f += fl[g]
        while seq or fs:
            if seq: e(seq.pop(0))
            if fs: e(fs.pop(0))
    e(f"s_setprio {after}")
    assert f >= len(first)
    return av[f:]

def lo_part(nt, rest, adds):
    for y in list(rest) + chain(1 - nt) + list(adds) + frac(nt): e(y)

sEr = 42
sEps = 80
sTa = 31
sWm = 68
sDum = 43
def cmps(): return [f"v_cmp_gt_u32 {sr(sWm,2)}, s{sDum}, v{vWK}"]
WL = [0]
RP = [65, 66, 70, 71]
def expand(j, sm):
    return [f"s_bfe_i32 exec_lo, s{sm}, {0x10000+4*j:#x}", f"s_bfe_i32 exec_hi, s{sm+1}, {0x10000+4*j:#x}"]
OOL = []
def flush_ool():
    for y in OOL: e(y)
    OOL.clear()
def mwrites(zero=True):
    WL[0] += 1; end = f"KE{WL[0]}"
    o = [f"s_or_b32 s{sWm+2}, s{sWm}, s{sWm+1}", f"s_cbranch_scc0 {end}"]
    for j in range(4):
        WL[0] += 1
        o += [f"s_bitcmp0_b32 s{sWm+2}, {4*j}", f"s_cbranch_scc1 KW{WL[0]}"] + expand(j, sWm) + [
              f"ds_write_b128 v{RP[j]}, {vr(vAcc+4*j,4)}"]
        if zero: o += [f"ds_read_b128 {vr(vAcc+4*j,4)}, v{vZa}", f"v_add_u32 v{RP[j]}, {RST}, v{RP[j]}"]
        o += [f"KW{WL[0]}:"]
    return o + ["s_mov_b64 exec, -1", f"{end}:"]

TL = [0]
def tl():
    if OPT['tl']:
        e(f"s_memtime {sr(44+2*TL[0],2)}"); TL[0] += 1
def tl_dump(lab):
    if not OPT['tl']: return
    n = TL[0]; TL[0] = 0
    e(f"s_cmp_lg_u32 s{sCnt}, {OPT['tl']}")
    e(f"s_cbranch_scc1 {lab}")
    e("s_waitcnt lgkmcnt(0)")
    for i in range(n):
        e(f"s_mov_b32 s{sSt+2+2*i}, s{44+2*i}")
    e(f"{lab}:")
def hi_last(prio, first, after):
    e(f"s_setprio {prio}")
    for y in rcps() + list(first) + exps(1): e(y)
    e(f"s_setprio {after}")
    return avals(1)

def role_loops():
    adds = [f"v_add_u32 v{vIxA}, 16, v{vIxA}", f"v_add_u32 v{vAqA}, 16, v{vAqA}", f"v_add_u32 v{vQaA}, 4, v{vQaA}"]
    cm = cmps()
    e(f"s_mov_b64 {sr(sWm,2)}, 0")
    e(f"s_cmp_ge_u32 s{sWave}, 4")
    if OPT['xf'] == 2: e(f"s_cselect_b32 s{sDum}, 0, {NOROW:#x}")
    if OPT['xf'] == 3: e(f"s_cselect_b32 s{sDum}, {NOROW:#x}, 0")
    e("s_cbranch_scc1 KB_LOOP")
    e("s_branch KA_ENTRY")
    e(f".p2align {OPT['al']}")
    for _ in range(OPT['pad']): e("s_nop 0")
    e("KA_LOOP:")
    tail = (cm + avals(1))[6:]
    e("s_waitcnt lgkmcnt(0)")
    lo_part(1, tail, adds)
    e("KA_ENTRY:")
    tl()
    r = hi_pure(0, OPT['pa'], mads() + [AEV, AQV])
    tl()
    if not OPT['xv'] & 2: e("s_waitcnt vmcnt(0)")
    for y in rd_x() + rd_aq() + rd_bq(0) + rd_bq(1): e(y)
    e(f"s_sub_u32 s{sCnt}, s{sCnt}, 1")
    e(f"s_cmp_eq_u32 s{sCnt}, 0")
    e("s_waitcnt lgkmcnt(4)")
    for y in dma(): e(y)
    e("s_waitcnt lgkmcnt(0)")
    tl()
    lo_part(0, r, [])
    e("s_cbranch_scc1 KA_LAST")
    tl()
    hi_pure(1, OPT['pa'], cm, OPT['pa'])
    L.pop()
    tl()
    for y in mwrites() + ["s_setprio 0"] + rd_wk() + rd_qa(4) + rd_idx(16) + rd_mr(16): e(y)
    tl()
    tl_dump("KA_TL")
    if OPT['trace']: trace_code()
    e("s_branch KA_LOOP")
    flush_ool()
    e("KA_LAST:")
    r = hi_last(OPT['pa'], cm, OPT['pa'])
    for y in mwrites() + ["s_setprio 0"] + rd_wk(): e(y)
    e("s_waitcnt lgkmcnt(0)")
    lo_part(1, r, [])
    e("s_branch K2_DRAIN")
    flush_ool()
    e(f".p2align {OPT['al']}")
    for _ in range(OPT['pad']): e("s_nop 0")
    e("KB_LOOP:")
    tl()
    r = hi_pure(0, OPT['pb'], mads() + [AEV, AQV], OPT['pl'])
    tl()
    lo_part(0, r, [])
    tl()
    if OPT['fo'] == 2:
        for y in mwrites() + rd_wk(): e(y)
        e(f"s_sub_u32 s{sCnt}, s{sCnt}, 1")
        e(f"s_cmp_eq_u32 s{sCnt}, 0")
        e("s_cbranch_scc1 KB_LAST")
        for y in rd_aq() + rd_bq(0): e(y)
        if not OPT['xv'] & 1: e("s_waitcnt vmcnt(0)")
        for y in rd_x(): e(y)
        e("s_waitcnt lgkmcnt(3)")
        tl()
        r = hi_pure(1, OPT['pb'], cm, OPT['pl'], True)
    else:
        e("s_waitcnt vmcnt(0)")
    if OPT['fo'] == 2:
        pass
    elif OPT['fo']:
        for y in rd_x() + rd_aq() + rd_bq(0): e(y)
        e(f"s_sub_u32 s{sCnt}, s{sCnt}, 1")
        e("s_waitcnt lgkmcnt(0)")
        if OPT['bd'] == 0:
            for y in dma(): e(y)
        for y in mwrites() + rd_wk(): e(y)
        e(f"s_cmp_eq_u32 s{sCnt}, 0")
        e("s_cbranch_scc1 KB_LAST")
        tl()
        r = hi_pure(1, OPT['pb'], ["s_waitcnt lgkmcnt(0)"] + cm, OPT['pl'])
    else:
        for y in rd_x() + rd_aq() + rd_bq(0) + mwrites() + rd_wk(): e(y)
        e(f"s_sub_u32 s{sCnt}, s{sCnt}, 1")
        e(f"s_cmp_eq_u32 s{sCnt}, 0")
        e("s_cbranch_scc1 KB_LAST")
        e("s_waitcnt lgkmcnt(0)")
        tl()
        r = hi_pure(1, OPT['pb'], cm, OPT['pl'])
    tl()
    lo_part(1, r, adds)
    tl()
    for y in (dma() if OPT['bd'] else []) + rd_bq(1) + rd_qa() + rd_mr(0) + rd_idx(): e(y)
    tl_dump("KB_TL")
    if OPT['trace']: trace_code()
    e("s_waitcnt lgkmcnt(0)")
    e("s_branch KB_LOOP")
    flush_ool()
    e("KB_LAST:")
    r = hi_last(OPT['pb'], [], OPT['pl'])
    e("s_waitcnt lgkmcnt(0)")
    lo_part(1, r, [])

def trace_code():
    e("s_memtime s[44:45]")
    e("s_memrealtime s[46:47]")
    e(f"s_lshl_b32 s48, s2, 3")
    e(f"s_add_u32 s48, s48, s{sWave}")
    e(f"s_lshl_b32 s48, s48, 4")
    e(f"s_add_u32 s48, s48, s{sCnt}")
    e(f"s_lshl_b32 s48, s48, 3")
    e(f"s_add_u32 s48, s48, {WS_DIAG+0x80000}")
    e("s_waitcnt lgkmcnt(0)")
    e("v_mov_b32 v30, s44")
    e("v_mov_b32 v68, 0")
    e("s_mov_b64 exec, 1")
    e(f"buffer_store_dword v30, v68, {sr(sWs,4)}, s48 offen")
    e("s_mov_b64 exec, -1")

def loop_body():
    global L
    n0 = len(L)
    loop_body0()
    k = OPT['kill']
    body = L[n0:]; del L[n0:]
    for l in body:
        t = l.strip()
        if k & 1 and t.startswith('ds_read'): continue
        if k & 2 and t.startswith('ds_write'): continue
        if k & 4 and t.startswith('buffer_load'): continue
        if k & 8 and t.startswith('s_waitcnt') and not OPT['trace']: continue
        if k & 16 and t.startswith('v_add_u32'): continue
        if k & 32 and t.startswith('v_fmaak'): l = l.replace('v_fmaak_f32','v_mul_f32').rsplit(',',1)[0]
        if k & 64 and t.startswith('v_fma_f32'): l = l.replace('v_fma_f32','v_mul_f32').rsplit(',',1)[0]
        if k & 128 and t.startswith('v_and_b32'): continue
        L.append(l)
def loop_body0():
    e("s_setprio 1")
    ex = [[] for _ in range(9)]
    x = rd_x(); md = mads()
    ex[0] = rd_aq() + rd_bq(0)
    ex[1] = rd_bq(1) + ["s_waitcnt vmcnt(0)"]
    ex[2] = [x[0]]
    ex[4] = [x[1]]
    ex[5] = md[:2]
    ex[6] = [x[2]]
    ex[7] = md[2:]
    ex[8] = [x[3]]
    hi_phase(mfmas(1), rcps() + exps(0), ex)
    e("s_setprio 0")
    for y in mix(chain(1), avals(0)): e(y)
    e(f"v_add_u32 v{vIxA}, 64, v{vIxA}")
    e(f"v_add_u32 v{vAqA}, v{vAqA}, v{vAqI}")
    for y in frac(0): e(y)
    e("s_setprio 1")
    e("s_waitcnt lgkmcnt(0)")
    ex = [[] for _ in range(9)]
    w = writes(); d = dma(); wk = rd_wk()
    ex[0] = [d[0], w[0]]; ex[1] = [d[1], w[1]]; ex[2] = [d[2], w[2]]
    ex[4] = [d[3], w[3]]; ex[5] = wk; ex[7] = rd_qa() + [f"s_sub_u32 s{sCnt}, s{sCnt}, 1"]; ex[8] = rd_idx()
    hi_phase(mfmas(0), rcps() + exps(1), ex)
    e("s_setprio 0")
    av = avals(1)
    for y in av[:8]: e(y)
    e("s_waitcnt lgkmcnt(0)")
    for y in mix(chain(0), av[8:]): e(y)
    for j in range(4):
        e(f"v_add_u32 v{vWK+2*j}, v{vWK+2*j}, v{vN16}")
    e(f"v_add_u32 v{vWkA}, 32, v{vWkA}")
    e(f"v_add_u32 v{vQaV}, v{vQaV}, v{vQaC}")
    e(f"v_add_u32 v{vQaA}, 16, v{vQaA}")
    for y in frac(1): e(y)
    if OPT['trace']: trace_code()
    e(f"s_cmp_lg_u32 s{sCnt}, 0")
    e("s_cbranch_scc1 K2_LOOP")

def kd(name, vg, sg):
    L.extend([f".amdhsa_kernel {name}",
              f"  .amdhsa_next_free_vgpr {vg}",
              f"  .amdhsa_next_free_sgpr {sg}",
              f"  .amdhsa_accum_offset {(vg+3)//4*4}",
              "  .amdhsa_group_segment_fixed_size 0",
              "  .amdhsa_kernarg_size 96",
              "  .amdhsa_user_sgpr_count 2",
              "  .amdhsa_user_sgpr_kernarg_segment_ptr 1",
              "  .amdhsa_system_sgpr_workgroup_id_x 1",
              ".end_amdhsa_kernel"])

hdr = open("cdna_kernels/%s.s.ref" % NAME).read().split("\n")
for l in hdr:
    if l.startswith("; Override") : break
    L.append(l)
if OPT['lst']:
    L.append(f"; @launch kernel={NAME}_kernel grid=(256,1,1) block=(512,1,1) lds={K2_LDS}")
else:
    L.append(f"; @launch grid=(256,1,1) block=(512,1,1) lds={K2_LDS}")
L.extend("""; GatedGCN layer in one launch, 256 workgroups (one per CU, all resident), 8 waves each.
;  phase 1: workgroup p counting-sorts its 3136 edges by destination bucket (97/98 nodes) in LDS, writes the
;           records (attr, src, node) write-through to d_ws and, once they are acknowledged, publishes its run table.
;           The table is cleared first by 64 workgroups, which report through d_debug.
;  phase 2: workgroup b fetches its runs, groups them by node into quads of 4 edges (padded), and streams tiles of
;           32 edges: x[src] rows by LDS-DMA, MFMA for -log2e*(x_s wb + x_d wa + e wc) and x_s wv, exp / rcp on edge
;           pairs (eta1+eta2 = (a1+a2)/(a1 a2)), per-column register sums flushed at node ends.
;           agg = sum(eta hv) / (sum(eta) + 1e-6), out = x + relu(x wu + agg).
;  Buckets that do not fit (skewed graphs) are processed in several windowed rounds.""".split("\n"))
L.append('.amdgcn_target "amdgcn-amd-amdhsa--gfx950"')
L.append(".text")
L.append(f".globl {NAME}_kernel")
L.append(f".type {NAME}_kernel,@function")
sSt = 82
for i, n in enumerate(OPT.get('pts', 'b2,b3,b4,go,hist').split(',')): PTS[n] = i + 1
k2()
L.append("K2_CODE_END:")
L.append('.section .rodata,"a"')
L.append(".p2align 6")
kd(f"{NAME}_kernel", 256, 102)
open(sys.argv[1], "w").write("\n".join(L) + "\n")
print("K2_LDS", K2_LDS, "ATAB", ATAB, "STG", STG, "ROWS", ROWS)
```
